```python
import torch

def _softmax(x, axis=-1):
    return torch.softmax(x, dim=axis)
def _gelu(x):
    return torch.nn.functional.gelu(x, approximate="tanh")
def _silu(x):
    return torch.nn.functional.silu(x)
def _sigmoid(x):
    return torch.sigmoid(x)
def _layernorm(x, axis=-1, eps=1e-5):
    m = x.mean(dim=axis, keepdim=True)
    v = x.var(dim=axis, keepdim=True, unbiased=False)
    return (x - m) / torch.sqrt(v + eps)
def _scatter_add(tgt, idx, src, axis=0):
    return tgt.clone().index_add_(axis, idx, src)
def _segment_sum(src, seg, n):
    out = torch.zeros((n,) + src.shape[1:], dtype=src.dtype)
    return out.index_add_(0, seg, src)
def _pad(x, pw):
    flat = tuple(v for pair in reversed(pw) for v in pair)
    return torch.nn.functional.pad(x, flat)

kernel_name = 'sequential_preLN__sliding_block__glu_gated_geglu__prompt'

def setup_inputs():

    _w = (lambda a: (lambda t: t.to(torch.bfloat16) if t.is_floating_point() else t)(torch.as_tensor(a)))
    def _A_setup():
        B, S, D = 1, 2048, 640
        return {
            "x": _w((lambda *s: torch.randn(*s, dtype=torch.bfloat16) * 0.05)(B, S, D)),
            "wqkv": _w((lambda *s: torch.randn(*s, dtype=torch.bfloat16) * 0.05)(D, 3 * D)),
            "wo": _w((lambda *s: torch.randn(*s, dtype=torch.bfloat16) * 0.05)(D, D)),
        }
    _A_in = _A_setup()

    def _B_setup():
        B, S, Dm, Df = 1, 2048, 640, 1536
        return {
            "x": _w((lambda *s: torch.randn(*s, dtype=torch.bfloat16) * 0.05)(B, S, Dm)),
            "w_gate": _w((lambda *s: torch.randn(*s, dtype=torch.bfloat16) * 0.8)(Dm, Df) * (Dm ** -0.5)),
            "w_up": _w((lambda *s: torch.randn(*s, dtype=torch.bfloat16) * 0.8)(Dm, Df) * (Dm ** -0.5)),
            "w_down": _w((lambda *s: torch.randn(*s, dtype=torch.bfloat16) * 0.8)(Df, Dm) * (Df ** -0.5)),
        }
    _B_in = _B_setup()

    return {
        "A_x": _A_in["x"],
        "A_wqkv": _A_in["wqkv"],
        "A_wo": _A_in["wo"],
        "B_x": _B_in["x"],
        "B_w_gate": _B_in["w_gate"],
        "B_w_up": _B_in["w_up"],
        "B_w_down": _B_in["w_down"],
    }

def reference(A_x, A_wqkv, A_wo, B_x, B_w_gate, B_w_up, B_w_down):
    def _A_ref(x, wqkv, wo):
        B, S, D = x.shape
        H = 32; Dh = D // H; W = 256
        qkv = (lambda x, *d: x.permute(*d))((x @ wqkv).reshape(B, S, 3, H, Dh), 2, 0, 3, 1, 4)
        q, k, v = qkv[0], qkv[1], qkv[2]
        scores = torch.einsum("bhqd,bhkd->bhqk", q, k) * (Dh ** -0.5)
        idx = torch.arange(S)
        mask = (idx[:, None] - idx[None, :] >= 0) & (idx[:, None] - idx[None, :] < W)
        scores = torch.where(mask[None, None], scores, -1e9)
        p = _softmax(scores, axis=-1)
        o = torch.einsum("bhqk,bhkd->bhqd", p, v)
        return (lambda x, *d: x.permute(*d))(o, 0, 2, 1, 3).reshape(B, S, D) @ wo

    def _B_ref(x, w_gate, w_up, w_down):
        g = torch.einsum("bsd,df->bsf", x, w_gate)
        u = torch.einsum("bsd,df->bsf", x, w_up)
        h = _gelu(g) * u
        return torch.einsum("bsf,fd->bsd", h, w_down)

    x = A_x
    h = x + _A_ref(_layernorm(x, axis=-1), A_wqkv, A_wo)
    h2 = h + _B_ref(_layernorm(h, axis=-1), B_w_gate, B_w_up, B_w_down)
    return h2
```

```python
import re

REG_RE = re.compile(r'\b([vas])(?:(\d+)|\[(\d+):(\d+)\])')


def v(i, n=1):
    return f'v{i}' if n == 1 else f'v[{i}:{i+n-1}]'


def a(i, n=1):
    return f'a{i}' if n == 1 else f'a[{i}:{i+n-1}]'


def s(i, n=1):
    return f's{i}' if n == 1 else f's[{i}:{i+n-1}]'


def regs_of(opnd):
    out = set()
    for m in REG_RE.finditer(opnd):
        t = m.group(1)
        if m.group(2) is not None:
            out.add((t, int(m.group(2))))
        else:
            for i in range(int(m.group(3)), int(m.group(4)) + 1):
                out.add((t, i))
    if re.search(r'\bvcc\b', opnd):
        out.add(('vcc', 0))
    if re.search(r'\bexec\b', opnd):
        out.add(('exec', 0))
    if re.search(r'\bm0\b', opnd):
        out.add(('m0', 0))
    return out


def split_ops(rest):
    ops, depth, cur = [], 0, ''
    for ch in rest:
        if ch == '[':
            depth += 1
        if ch == ']':
            depth -= 1
        if ch == ',' and depth == 0:
            ops.append(cur.strip())
            cur = ''
        else:
            cur += ch
    if cur.strip():
        ops.append(cur.strip())
    return ops


TRANS = ('v_exp_f32', 'v_log_f32', 'v_rcp_f32', 'v_rsq_f32', 'v_sqrt_f32', 'v_sin_f32', 'v_cos_f32', 'v_rcp_iflag_f32')


class Ins:
    __slots__ = ('text', 'op', 'kind', 'wr', 'rd', 'srcc', 'passes', 'states', 'wide_store_data', 'is_lds_dma', 'srcab')

    def __init__(self, text):
        self.text = text
        t = text.split(';')[0].strip()
        parts = t.split(None, 1)
        op = parts[0]
        rest = parts[1] if len(parts) > 1 else ''
        self.op = op
        ops = split_ops(rest)
        self.wr, self.rd = set(), set()
        self.srcc = set()
        self.srcab = set()
        self.passes = 0
        self.states = 1
        self.wide_store_data = set()
        self.is_lds_dma = False
        R = [regs_of(o) for o in ops]
        allr = set().union(*R) if R else set()
        if op.startswith('v_mfma'):
            self.kind = 'mfma'
            self.passes = 8 if '32x32x16' in op else 4
            self.wr = R[0]
            self.srcab = R[1] | R[2]
            self.srcc = R[3]
            self.rd = R[1] | R[2] | R[3]
        elif op.startswith('v_'):
            self.kind = 'valu'
            if op in TRANS or op.rstrip('_e32').rstrip('_e64') in TRANS:
                self.kind = 'trans'
            if op.startswith('v_dot'):
                self.kind = 'dot'
            if op.startswith('v_permlane'):
                self.kind = 'permlane'
                self.wr = R[0] | R[1]
                self.rd = R[0] | R[1]
            elif op.startswith('v_cmpx'):
                self.wr = R[0] | {('exec', 0)}
                self.rd = set().union(*R[1:])
            elif op.startswith(('v_add_co', 'v_sub_co', 'v_addc_co', 'v_subb_co', 'v_subrev_co', 'v_mad_u64')):
                self.wr = R[0] | R[1]
                self.rd = set().union(*R[2:])
            elif op == 'v_nop':
                pass
            else:
                self.wr = R[0]
                self.rd = set().union(*R[1:]) if len(R) > 1 else set()
                if op.startswith(('v_fmac', 'v_dot2c', 'v_pk_fmac', 'v_writelane')):
                    self.rd |= R[0]
                if op.startswith('v_dot2_'):
                    self.srcc = R[3]
                if op.startswith('v_dot2c'):
                    self.srcc = R[0]
        elif op.startswith('ds_'):
            self.kind = 'lds'
            if op.startswith(('ds_read', 'ds_bpermute', 'ds_permute', 'ds_swizzle')):
                self.wr = R[0]
                self.rd = set().union(*R[1:]) if len(R) > 1 else set()
            else:
                self.rd = allr
        elif op.startswith(('buffer_', 'global_')):
            self.kind = 'vmem'
            if op in ('buffer_inv', 'buffer_wbl2'):
                pass
            elif re.search(r'\blds\b', rest) or 'load_lds' in op:
                self.is_lds_dma = True
                self.rd = allr | {('m0', 0)}
            elif 'load' in op:
                self.wr = R[0]
                self.rd = set().union(*R[1:])
            elif 'atomic' in op:
                if re.search(r'\bsc0\b', rest):
                    self.wr = R[0]
                self.rd = allr
            else:
                self.rd = allr
                if 'x4' in op or 'x3' in op:
                    self.wide_store_data = R[0] if op.startswith('buffer_') else R[1]
        elif op.startswith('s_'):
            self.kind = 'salu'
            if op == 's_nop':
                self.states = int(ops[0], 0) + 1
            elif op.startswith(('s_cmp', 's_cbranch', 's_branch', 's_waitcnt', 's_barrier', 's_endpgm', 's_sleep',
                                's_setprio', 's_bitcmp')):
                self.rd = allr
            elif op.startswith(('s_load', 's_memtime', 's_memrealtime', 's_buffer_load')):
                self.kind = 'smem'
                self.wr = R[0]
                self.rd = set().union(*R[1:]) if len(R) > 1 else set()
            else:
                self.wr = R[0]
                self.rd = set().union(*R[1:]) if len(R) > 1 else set()
                if 'saveexec' in op:
                    self.wr = self.wr | {('exec', 0)}
                if op.startswith(('s_addk', 's_mulk')):
                    self.rd |= R[0]
        else:
            raise ValueError('unknown instr ' + text)


def is_valu(i):
    return i.kind in ('valu', 'trans', 'dot', 'permlane')


def vec(rs):
    return {r for r in rs if r[0] in ('v', 'a')}


def sca(rs):
    return {r for r in rs if r[0] in ('s', 'vcc')}


def need_states(p, c):
    n = 0
    if p.kind == 'mfma':
        P = p.passes
        d = p.wr
        if c.kind == 'mfma':
            if c.srcc & d:
                if c.srcc == d and c.passes == P:
                    n = max(n, 0)
                else:
                    n = max(n, {4: 6, 8: 10}[P])
            if c.srcab & d:
                n = max(n, {4: 8, 8: 12}[P])
            if (c.wr & d) and not (c.srcc == d):
                n = max(n, {4: 8, 8: 12}[P])
        else:
            if (c.rd | c.wr) & d:
                n = max(n, {4: 8, 8: 12}[P])
            if (is_valu(c) or c.kind in ('lds', 'vmem')) and (c.wr & p.srcc):
                n = max(n, {4: 3, 8: 7}[P])
    if is_valu(p):
        vw = vec(p.wr)
        sw = sca(p.wr)
        if c.kind == 'mfma' and (c.rd & vw):
            n = max(n, 2)
        if c.kind == 'mfma' and ('exec', 0) in p.wr:
            n = max(n, 4)
        if c.kind == 'permlane' and (c.rd & vw):
            n = max(n, 2)
        if c.kind == 'permlane' and ('exec', 0) in p.wr:
            n = max(n, 4)
        if c.op.startswith(('v_readlane', 'v_readfirstlane')) and (c.rd & vw):
            n = max(n, 1)
        if c.op.startswith(('v_readlane', 'v_readfirstlane', 'v_writelane')) and ('exec', 0) in p.wr:
            n = max(n, 4)
        if is_valu(c) and (c.rd & sw):
            n = max(n, 2)
            if c.op.startswith(('v_readlane', 'v_writelane')):
                n = max(n, 4)
        if c.kind == 'vmem' and (c.rd & sw):
            n = max(n, 5)
        if c.kind in ('salu', 'smem') and (c.rd & sw):
            n = max(n, 1)
        if p.kind == 'trans' and is_valu(c) and c.kind != 'trans' and ((c.rd | c.wr) & vw):
            n = max(n, 1)
        if p.kind == 'trans' and c.kind in ('lds', 'vmem', 'mfma') and (c.rd & vw):
            n = max(n, 2 if c.kind == 'mfma' else 1)
        if p.kind == 'dot':
            if c.kind == 'dot' and c.op == p.op:
                if (c.rd - c.srcc) & vw:
                    n = max(n, 3)
            elif (c.rd | c.wr) & vw:
                n = max(n, 3)
        if 'dpp' in c.text and (c.rd & vw):
            n = max(n, 2)
        if 'op_sel' in p.text and not p.op.startswith('v_pk_') and is_valu(c) and ((c.rd | c.wr) & vw):
            n = max(n, 1)
    if p.kind == 'vmem' and p.wide_store_data:
        if c.wr & p.wide_store_data:
            n = max(n, 2 if is_valu(c) else 1)
    if p.kind == 'salu' and ('m0', 0) in p.wr and (c.is_lds_dma or 'addtid' in c.op):
        n = max(n, 1)
    return n


class K:
    def __init__(self):
        self.items = []
        self.vm_issued = 0
        self.vm_done = -1
        self.lg_issued = 0
        self.lg_done = -1
        self.nlabel = 0

    def raw(self, text):
        self.items.append(text)

    def c(self, text):
        self.items.append('    ; ' + text)

    def __call__(self, text):
        ins = Ins(text)
        self.items.append(ins)
        tok = None
        if ins.kind == 'vmem':
            tok = ('vm', self.vm_issued)
            self.vm_issued += 1
        elif ins.kind == 'lds':
            tok = ('lg', self.lg_issued)
            self.lg_issued += 1
        return tok

    def label(self, name):
        self.items.append(('label', name))

    _lab = [0]

    def newlabel(self, base='L'):
        K._lab[0] += 1
        return f'{base}_{K._lab[0]}'

    def wait(self, *toks):
        vm = max([t[1] for t in toks if t and t[0] == 'vm'], default=-1)
        lg = max([t[1] for t in toks if t and t[0] == 'lg'], default=-1)
        parts = []
        if vm > self.vm_done:
            n = self.vm_issued - vm - 1
            if n > 63:
                n = 63
                n = min(n, self.vm_issued - vm - 1)
            parts.append(f'vmcnt({min(n, 63)})')
            self.vm_done = vm
        if lg > self.lg_done:
            n = self.lg_issued - lg - 1
            parts.append(f'lgkmcnt({min(n, 15)})')
            self.lg_done = lg
        if parts:
            self('s_waitcnt ' + ' '.join(parts))

    def wait_all(self, vm=True, lg=True):
        parts = []
        if vm:
            parts.append('vmcnt(0)')
            self.vm_done = self.vm_issued - 1
        if lg:
            parts.append('lgkmcnt(0)')
            self.lg_done = self.lg_issued - 1
        self('s_waitcnt ' + ' '.join(parts))

    def reset_counters(self):
        self.vm_issued = 0
        self.vm_done = -1
        self.lg_issued = 0
        self.lg_done = -1

    def render(self):
        out = []
        hist = []
        npad = 0
        for it in self.items:
            if isinstance(it, str):
                out.append(it)
                continue
            if isinstance(it, tuple):
                out.append(it[1] + ':')
                continue
            c = it
            need = 0
            dist = 0
            for p in reversed(hist):
                n = need_states(p, c)
                if n > dist:
                    need = max(need, n - dist)
                dist += p.states
                if dist > 24:
                    break
            is_branch = c.op.startswith(('s_cbranch', 's_branch'))
            if is_branch:
                dist = 0
                for p in reversed(hist):
                    w = 0
                    if p.kind == 'mfma':
                        w = {4: 8, 8: 12}[p.passes]
                    elif is_valu(p):
                        w = 5 if sca(p.wr) or ('exec', 0) in p.wr else 3
                    elif p.kind == 'vmem' and p.wide_store_data:
                        w = 2
                    elif ('m0', 0) in p.wr:
                        w = 1
                    if w - 1 > dist:
                        need = max(need, w - 1 - dist)
                    dist += p.states
                    if dist > 24:
                        break
            while need > 0:
                k = min(need, 16)
                nop = Ins(f's_nop {k-1}')
                out.append('    ' + nop.text)
                hist.append(nop)
                need -= k
                npad += 1
            out.append('    ' + c.text)
            hist.append(c)
            if len(hist) > 40:
                hist = hist[-40:]
        return '\n'.join(out) + '\n'
```

```python
import math
import struct
import sys
from asmlib import K, v, a, s

NAME = 'sequential_preLN__sliding_block__glu_gated_geglu__prompt'

WS_QG = 0x0000000
WS_KG = 0x0280000
WS_VF = 0x0500000
WS_OC = 0x0780000
WS_H1 = 0x0A00000
WS_HC = 0x0C80000
WS_CS = 0x1280000
WS_SIZE = 0x1400000

S_X, S_WQKV, S_WO, S_WG, S_WU, S_WD, S_OUT, S_WS, S_DBG = 4, 8, 12, 16, 20, 24, 28, 32, 36
S_W = 40


def f32(x):
    return '0x%08x' % struct.unpack('<I', struct.pack('<f', x))[0]


def prologue(k, nwg):
    k(f's_cmp_ge_u32 s2, {nwg}')
    k('s_cbranch_scc1 %s' % k.endlabel)
    k('s_load_dwordx8 s[64:71], s[0:1], 0')
    k('s_load_dwordx8 s[72:79], s[0:1], 32')
    k('s_load_dwordx4 s[80:83], s[0:1], 64')
    k('v_and_b32 v1, 63, v0')
    k('v_lshrrev_b32 v2, 6, v0')
    k(f'v_readfirstlane_b32 s{S_W}, v2')
    k('s_waitcnt lgkmcnt(0)')
    for sr, src, size in ((S_X, 64, 2621440), (S_WQKV, 66, 2457600), (S_WO, 68, 819200), (S_WG, 72, 1966080),
                          (S_WU, 74, 1966080), (S_WD, 76, 1966080), (S_OUT, 78, 2621440), (S_WS, 82, WS_SIZE),
                          (S_DBG, 80, 256)):
        k(f's_mov_b32 s{sr}, s{src}')
        k(f's_and_b32 s{sr+1}, s{src+1}, 0xffff')
        k(f's_mov_b32 s{sr+2}, {size}')
        k(f's_mov_b32 s{sr+3}, 0x00020000')


def interleave(k, mfmas, fillers, first=0):
    n = len(mfmas)
    nf = len(fillers)
    fi = 0
    for _ in range(first):
        if fi < nf:
            f = fillers[fi]
            f() if callable(f) else k(f)
            fi += 1
    for i, m in enumerate(mfmas):
        k(m)
        tgt = first + ((nf - first) * (i + 1) + n - 1) // n
        while fi < min(tgt, nf):
            f = fillers[fi]
            f() if callable(f) else k(f)
            fi += 1
    while fi < nf:
        f = fillers[fi]
        f() if callable(f) else k(f)
        fi += 1


def rbf(k, d, src):
    k(f'v_cvt_pk_bf16_f32 {v(d)}, {v(src)}, {v(src)}')
    k(f'v_lshlrev_b32 {v(d)}, 16, {v(d)}')


def xhalf_sum(k, r, t1, t2):
    k(f'v_mov_b32 {v(t1)}, {v(r)}')
    k(f'v_mov_b32 {v(t2)}, {v(r)}')
    k(f'v_permlane32_swap_b32 {v(t1)}, {v(t2)}')
    k(f'v_add_f32 {v(r)}, {v(t1)}, {v(t2)}')


def ln_stats(k, vsum, vsq, vA, vB, t1, t2, t3, scale=None):
    xhalf_sum(k, vsum, t1, t2)
    xhalf_sum(k, vsq, t1, t2)
    k(f'v_mul_f32 {v(vsum)}, {f32(1.0/640)}, {v(vsum)}')
    k(f'v_mul_f32 {v(vsq)}, {f32(1.0/640)}, {v(vsq)}')
    k(f'v_fma_f32 {v(vsq)}, -{v(vsum)}, {v(vsum)}, {v(vsq)}')
    k(f'v_max_f32 {v(vsq)}, 0, {v(vsq)}')
    rbf(k, t1, vsum)
    rbf(k, t2, vsq)
    k(f'v_add_f32 {v(t2)}, {f32(1e-5)}, {v(t2)}')
    rbf(k, t2, t2)
    k(f'v_sqrt_f32 {v(t2)}, {v(t2)}')
    rbf(k, t2, t2)
    k(f'v_rcp_f32 {v(vA)}, {v(t2)}')
    if scale is not None:
        k(f'v_mul_f32 {v(vA)}, {scale}, {v(vA)}')
    k(f'v_mul_f32 {v(vB)}, {v(t1)}, {v(vA)}')
    k(f'v_sub_f32 {v(vB)}, 0, {v(vB)}')


def emit_p1(k):
    R = 5
    SLOT = 32768
    k('s_and_b32 s41, s2, 7')
    k('s_lshr_b32 s42, s2, 3')
    k('s_and_b32 s43, s41, 3')
    k('s_lshr_b32 s41, s41, 2')
    k('s_mul_i32 s41, s41, 30')
    k('s_add_u32 s41, s41, s42')
    k('s_lshr_b32 s44, s41, 2')
    k('s_and_b32 s41, s41, 3')
    k('s_lshl_b32 s43, s43, 2')
    k('s_add_u32 s45, s43, s41')
    S_NT, S_MT = 44, 45
    k(f's_lshl_b32 s46, s{S_MT}, 7')
    k(f's_lshl_b32 s47, s{S_W}, 5')
    k('s_add_u32 s46, s46, s47')
    S_TOK = 46
    k('v_lshrrev_b32 v10, 3, v1')
    k(f'v_add_u32 v10, s{S_TOK}, v10')
    k('v_mul_u32_u24 v10, 1280, v10')
    k('v_and_b32 v11, 7, v1')
    k('v_lshrrev_b32 v12, 4, v1')
    k('v_xor_b32 v11, v11, v12')
    k('v_xor_b32 v13, 4, v11')
    k('v_lshl_add_u32 v2, v11, 4, v10')
    k('v_lshl_add_u32 v3, v13, 4, v10')
    k(f'v_add_u32 v3, {10240-1024}, v3')
    k(f'v_add_u32 v4, {2*(10240-1024)}, v2')
    k(f'v_add_u32 v5, {2*(10240-1024)}, v3')
    k(f's_lshl_b32 s47, s{S_W}, 4')
    k('v_add_u32 v10, s47, v12')
    k('v_mul_u32_u24 v10, 3840, v10')
    k(f's_lshl_b32 s47, s{S_NT}, 8')
    k('v_add_u32 v10, s47, v10')
    k('v_bfe_u32 v11, v1, 2, 2')
    k('v_xor_b32 v11, v11, v12')
    k('v_lshl_add_u32 v10, v11, 6, v10')
    k('v_and_b32 v11, 3, v1')
    k('v_lshl_add_u32 v6, v11, 4, v10')
    for i in range(1, 4):
        k(f'v_add_u32 v{6+i}, {i*(4*3840-1024)}, v6')
    k(f's_lshl_b32 s48, s{S_W}, 12')
    S_LW = 48

    stage_tok = {}

    def dma_stage(st):
        ops = []
        slot = st % R

        def f0():
            k(f's_add_u32 m0, s{S_LW}, {slot*SLOT}')
            k(f's_mov_b32 s49, {st*128}')
        ops.append(f0)
        for i in range(4):
            ops.append(lambda i=i: stage_tok.__setitem__(st, k(
                f'buffer_load_dwordx4 v{2+i}, s[{S_X}:{S_X+3}], s49 offen offset:{i*1024} lds')))

        def f1():
            k(f's_add_u32 m0, s{S_LW}, {slot*SLOT+16384}')
            k(f's_mov_b32 s50, {st*64*3840}')
        ops.append(f1)
        for i in range(4):
            ops.append(lambda i=i: stage_tok.__setitem__(st, k(
                f'buffer_load_dwordx4 v{6+i}, s[{S_WQKV}:{S_WQKV+3}], s50 offen offset:{i*1024} lds')))
        return ops

    for st in range(R):
        for f in dma_stage(st):
            f()

    k('v_and_b32 v40, 31, v1')
    k('v_lshrrev_b32 v41, 5, v1')
    k('v_bfe_u32 v42, v1, 1, 3')
    k('v_xor_b32 v42, v42, v41')
    k('v_lshlrev_b32 v43, 7, v40')
    k('v_lshl_add_u32 v43, v42, 4, v43')
    k(f'v_add_u32 v10, s{S_LW}, v43')
    for ks in range(1, 4):
        k(f'v_xor_b32 v{10+ks}, {ks*32}, v10')
    k('v_bfe_u32 v42, v1, 2, 2')
    k('v_lshl_add_u32 v43, v41, 3, v42')
    k('v_lshlrev_b32 v43, 8, v43')
    k('v_bfe_u32 v44, v1, 4, 1')
    k('v_lshl_add_u32 v43, v44, 5, v43')
    k('v_and_b32 v44, 3, v1')
    k('v_lshl_add_u32 v43, v44, 3, v43')
    k('v_add_u32 v43, 16384, v43')
    for j in range(4):
        k(f's_add_u32 s49, s{S_W}, {j}')
        k('s_and_b32 s49, s49, 3')
        k('v_xor_b32 v44, s49, v42')
        k(f'v_lshl_add_u32 v{14+j}, v44, 6, v43')
    for q in (1, 2):
        for i in range(8):
            k(f'v_add_u32 v{10+8*q+i}, {q*65536}, v{10+i}')
    VSUM, VSQ, VCS, VONE = 34, 35, 36, 37
    k(f'v_mov_b32 v{VSUM}, 0')
    k(f'v_mov_b32 v{VSQ}, 0')
    k(f'v_mov_b32 v{VCS}, 0')
    k(f'v_mov_b32 v{VONE}, 0x3f803f80')
    XF = 40
    WF = 48
    ACC = 128

    lab_v = k.newlabel('P1_V')
    lab_epi = k.newlabel('P1_EPI')
    k(f's_cmp_ge_u32 s{S_NT}, 10')
    k(f's_cbranch_scc1 {lab_v}')
    saved = (k.vm_issued, k.vm_done, k.lg_issued, k.lg_done, dict(stage_tok))

    def mainloop(transposed):
        rd_tok = {}

        def reads(kk):
            st, ks = kk // 4, kk % 4
            slot = st % R
            q, so = slot // 2, (slot % 2) * SLOT
            b = kk % 2
            ops = []
            ops.append(lambda: rd_tok.__setitem__(kk, k(
                f'ds_read_b128 {v(XF+4*b,4)}, v{10+8*q+ks} offset:{so}')))
            for j in range(4):
                for hf in range(2):
                    ops.append(lambda j=j, hf=hf: rd_tok.__setitem__(kk, k(
                        f'ds_read_b64_tr_b16 {v(WF+16*b+4*j+2*hf,2)}, v{14+8*q+j} offset:{so+ks*4096+hf*1024}')))
            return ops

        k.wait(stage_tok[0])
        k('s_barrier')
        for f in reads(0):
            f()
        for kk in range(40):
            b = kk % 2
            k.wait(rd_tok[kk])
            fill = []
            if kk + 1 < 40:
                if (kk + 1) % 4 == 0:
                    st = kk // 4
                    k.wait(stage_tok[st + 1])
                    k('s_barrier')
                    fill += reads(kk + 1)
                    if st + R < 10:
                        fill += dma_stage(st + R)
                else:
                    fill += reads(kk + 1)
            for i in range(4):
                fill.append(f'v_dot2_f32_bf16 v{VSUM}, v{XF+4*b+i}, v{VONE}, v{VSUM}')
                fill.append(f'v_dot2_f32_bf16 v{VSQ}, v{XF+4*b+i}, v{XF+4*b+i}, v{VSQ}')
                fill.append(f'v_dot2_f32_bf16 v{VCS}, v{WF+16*b+i}, v{VONE}, v{VCS}')
            mf = []
            for j in range(4):
                c = '0' if kk == 0 else v(ACC + 16 * j, 16)
                A_, B_ = v(WF + 16 * b + 4 * j, 4), v(XF + 4 * b, 4)
                if not transposed:
                    A_, B_ = B_, A_
                mf.append(f'v_mfma_f32_32x32x16_bf16 {v(ACC+16*j,16)}, {A_}, {B_}, {c}')
            interleave(k, mf, fill)

    def common_epi(scale_sgpr):
        xhalf_sum(k, VCS, 80, 81)
        k('v_and_b32 v82, 31, v1')
        k('v_lshlrev_b32 v82, 2, v82')
        k(f's_lshl_b32 s49, s{S_W}, 7')
        k('v_add_u32 v82, s49, v82')
        k(f'ds_write_b32 v82, v{VCS}')
        ln_stats(k, VSUM, VSQ, 38, 39, 80, 81, 83, scale=scale_sgpr)

    mainloop(True)
    k(f's_mov_b32 s51, {f32(math.log2(math.e)/math.sqrt(20.0))}')
    k(f's_cmp_lt_u32 s{S_NT}, 5')
    k('s_cselect_b32 s51, s51, 1.0')
    common_epi('s51')
    k.wait_all(vm=False)
    k('s_barrier')
    k('v_and_b32 v84, 31, v1')
    k(f'v_add_u32 v84, s{S_TOK}, v84')
    k('v_lshlrev_b32 v84, 3, v84')
    k('v_lshrrev_b32 v85, 5, v1')
    k('v_lshl_add_u32 v84, v85, 14, v84')
    k('v_lshlrev_b32 v85, 4, v85')
    for j in range(4):
        k(f's_add_u32 s49, s{S_W}, {j}')
        k('s_and_b32 s49, s49, 3')
        k('s_lshl_b32 s52, s49, 7')
        k('v_add_u32 v86, s52, v85')
        toks = []
        for a_ in range(4):
            toks.append(k(f'ds_read_b128 {v(96+4*a_,4)}, v86 offset:{a_*32}'))
        k(f's_lshl_b32 s52, s{S_NT}, 5')
        k('s_lshl_b32 s53, s49, 3')
        k('s_add_u32 s52, s52, s53')
        k('s_lshl_b32 s52, s52, 14')
        for a_ in range(4):
            k.wait(toks[a_])
            r0 = ACC + 16 * j + 4 * a_
            for p in range(2):
                k(f'v_pk_mul_f32 {v(96+4*a_+2*p,2)}, {v(96+4*a_+2*p,2)}, {v(38,2)} op_sel:[0,1] op_sel_hi:[1,1]')
                k(f'v_pk_fma_f32 {v(r0+2*p,2)}, {v(r0+2*p,2)}, {v(38,2)}, {v(96+4*a_+2*p,2)} op_sel_hi:[1,0,1]')
            k(f'v_cvt_pk_bf16_f32 v{112+2*a_}, v{r0}, v{r0+1}')
            k(f'v_cvt_pk_bf16_f32 v{113+2*a_}, v{r0+2}, v{r0+3}')
            k(f's_add_u32 s53, s52, {WS_QG + a_*32768}')
            k(f'buffer_store_dwordx2 {v(112+2*a_,2)}, v84, s[{S_WS}:{S_WS+3}], s53 offen sc1')
    k(f's_branch {k.endlabel}')

    k.label(lab_v)
    k.vm_issued, k.vm_done, k.lg_issued, k.lg_done, st_ = saved
    stage_tok.clear()
    stage_tok.update(st_)
    mainloop(False)
    common_epi(None)
    k('v_and_b32 v82, 31, v1')
    k('v_lshlrev_b32 v82, 2, v82')
    k(f's_lshl_b32 s49, s{S_W}, 8')
    k('v_add_u32 v83, s49, v82')
    k('ds_write_b32 v83, v38 offset:1024')
    k('ds_write_b32 v83, v39 offset:1152')
    k.wait_all(vm=False)
    k('s_barrier')
    k('v_lshrrev_b32 v85, 5, v1')
    k('v_lshlrev_b32 v86, 4, v85')
    k('v_add_u32 v86, s49, v86')
    toks = []
    for a_ in range(4):
        toks.append(k(f'ds_read_b128 {v(192+4*a_,4)}, v86 offset:{1024+a_*32}'))
        toks.append(k(f'ds_read_b128 {v(208+4*a_,4)}, v86 offset:{1152+a_*32}'))
    for j in range(4):
        k(f's_add_u32 s52, s{S_W}, {j}')
        k('s_and_b32 s52, s52, 3')
        k('s_lshl_b32 s52, s52, 7')
        k('v_add_u32 v87, s52, v82')
        toks.append(k(f'ds_read_b32 v{224+2*j}, v87'))
    k('v_mul_u32_u24 v84, 10240, v85')
    k('v_lshl_add_u32 v84, v82, 2, v84')
    k(f's_lshr_b32 s53, s{S_TOK}, 5')
    k('s_mul_i32 s53, s53, 40960')
    k(f's_sub_u32 s54, s{S_NT}, 10')
    k('s_lshl_b32 s54, s54, 11')
    k('s_add_u32 s53, s53, s54')
    k(f's_add_u32 s53, s53, {WS_VF}')
    k.wait(*toks)
    for j in range(4):
        k(f's_add_u32 s52, s{S_W}, {j}')
        k('s_and_b32 s52, s52, 3')
        k('s_lshl_b32 s52, s52, 9')
        k('s_add_u32 s52, s52, s53')
        for m in range(2):
            for p in range(4):
                i = 8 * m + 2 * p
                r0 = ACC + 16 * j + i
                k(f'v_pk_mul_f32 {v(96,2)}, {v(208+i,2)}, {v(224+2*j,2)} op_sel_hi:[1,0]')
                k(f'v_pk_fma_f32 {v(r0,2)}, {v(r0,2)}, {v(192+i,2)}, {v(96,2)}')
                k(f'v_cvt_pk_bf16_f32 v{100+8*(j%2)+4*m+p}, v{r0}, v{r0+1}')
            k(f's_add_u32 s54, s52, {m*20480}')
            k(f'buffer_store_dwordx4 {v(100+8*(j%2)+4*m,4)}, v84, s[{S_WS}:{S_WS+3}], s54 offen sc1')


def emit_p2(k):
    k('s_and_b32 s44, s2, 7')
    k('s_lshr_b32 s45, s2, 3')
    S_I, S_H = 44, 45
    LK, LV = 0, 20480
    k(f's_lshl_b32 s46, s{S_I}, 8')
    k('s_sub_u32 s47, s46, 256')
    k('s_max_i32 s47, s47, 0')
    k(f's_cmp_lt_u32 s{S_W}, 2')
    k('s_cselect_b32 s48, s47, s46')
    k(f's_and_b32 s49, s{S_W}, 1')
    k('s_lshl_b32 s49, s49, 7')
    k('s_add_u32 s48, s48, s49')
    k('s_lshl_b32 s48, s48, 3')
    k(f's_mul_i32 s49, s{S_H}, {5*16384}')
    k('s_add_u32 s48, s48, s49')
    k(f's_add_u32 s48, s48, {WS_KG}')
    k('v_lshlrev_b32 v2, 4, v1')
    ktok = []
    for d4 in range(5):
        k(f's_add_u32 s49, s48, {d4*16384}')
        ktok.append(k(f'buffer_load_dwordx4 {v(160+4*d4,4)}, v2, s[{S_WS}:{S_WS+3}], s49 offen sc1'))
    k(f's_cmp_lt_u32 s{S_W}, 2')
    k('s_cselect_b32 s50, s47, s46')
    k('s_lshr_b32 s50, s50, 3')
    k('s_mul_i32 s50, s50, 10240')
    k(f's_mul_i32 s49, s{S_H}, 320')
    k('s_add_u32 s50, s50, s49')
    k(f's_add_u32 s50, s50, {WS_VF}')
    k(f's_and_b32 s49, s{S_W}, 1')
    k('s_mul_i32 s49, s49, 320')
    vtok = []
    for n in range(5):
        k(f'v_add_u32 v3, {n*64}, v1')
        k('v_add_u32 v3, s49, v3')
        k('v_mul_u32_u24 v4, 3277, v3')
        k('v_lshrrev_b32 v4, 16, v4')
        k('v_mul_u32_u24 v5, 20, v4')
        k('v_sub_u32 v5, v3, v5')
        k('v_mul_u32_u24 v4, 10240, v4')
        k(f'v_lshl_add_u32 v{6+n}, v5, 4, v4')
        vtok.append(k(f'buffer_load_dwordx4 {v(180+4*n,4)}, v{6+n}, s[{S_WS}:{S_WS+3}], s50 offen sc1'))
    QF = 16
    k('v_and_b32 v12, 31, v1')
    k('v_lshrrev_b32 v13, 5, v1')
    k('v_lshlrev_b32 v14, 3, v12')
    k('v_lshl_add_u32 v15, v13, 15, v14')
    k(f's_lshl_b32 s51, s{S_W}, 6')
    k('s_add_u32 s51, s51, s46')
    S_Q0 = 51
    k('s_lshl_b32 s52, s51, 3')
    k(f's_mul_i32 s49, s{S_H}, {5*16384}')
    k('s_add_u32 s52, s52, s49')
    k(f's_add_u32 s52, s52, {WS_QG}')
    k('s_add_u32 s53, s52, 16384')
    k(f's_add_u32 s54, s52, {4*16384}')
    qtok = []
    for u in range(2):
        qtok.append(k(f'buffer_load_dwordx2 {v(QF+8*u,2)}, v15, s[{S_WS}:{S_WS+3}], s52 offen offset:{u*256} sc1'))
        qtok.append(k(f'buffer_load_dwordx2 {v(QF+8*u+2,2)}, v15, s[{S_WS}:{S_WS+3}], s53 offen offset:{u*256} sc1'))
        qtok.append(k(f'buffer_load_dwordx2 {v(QF+8*u+4,2)}, v14, s[{S_WS}:{S_WS+3}], s54 offen offset:{u*256} sc1'))
        k(f'v_mov_b32 v{QF+8*u+6}, 0')
        k(f'v_mov_b32 v{QF+8*u+7}, 0')
    k('v_lshlrev_b32 v3, 2, v13')
    for i in range(16):
        a_, b_ = i // 4, i % 4
        k(f'v_add_u32 v4, {8*a_+b_}, v3')
        k(f'v_cmp_le_u32 s[{64+2*i}:{65+2*i}], v4, v12')
    PM = 32
    k('v_mov_b32 v5, 0xffff')
    k('v_mov_b32 v11, 0xffff0000')
    for p in range(8):
        k(f'v_cndmask_b32 v3, 0, v5, s[{64+4*p}:{65+4*p}]')
        k(f'v_cndmask_b32 v4, 0, v11, s[{66+4*p}:{67+4*p}]')
        k(f'v_or_b32 v{PM+p}, v3, v4')
    k('v_cmp_eq_u32 s[96:97], 1, v13')
    k('v_cmp_gt_u32 s[98:99], 20, v12')
    k('v_cmp_eq_u32 s[100:101], 0, v13')
    k(f's_lshl_b32 s49, s{S_W}, 10')
    k('v_add_u32 v3, s49, v2')
    for d4 in range(5):
        k.wait(ktok[d4])
        k(f'ds_write_b128 v3, {v(160+4*d4,4)} offset:{LK+d4*4096}')
    k(f's_mul_i32 s49, s{S_W}, 5120')
    k('v_add_u32 v4, s49, v2')
    for n in range(5):
        k.wait(vtok[n])
        k(f'ds_write_b128 v4, {v(180+4*n,4)} offset:{LV+n*1024}')
    k(f's_lshl_b32 s49, s{S_W}, 9')
    k('v_lshl_add_u32 v40, v13, 13, v14')
    k('v_add_u32 v40, s49, v40')
    k('v_add_u32 v41, s49, v14')
    k(f's_and_b32 s55, s{S_H}, 1')
    S_PI = 55
    k('v_bfe_u32 v3, v12, 3, 1')
    k('v_bfe_u32 v4, v12, 2, 1')
    k('v_and_b32 v5, 3, v12')
    k('v_lshl_add_u32 v6, v3, 2, v5')
    k('v_lshl_add_u32 v6, v4, 3, v6')
    k('s_lshl_b32 s49, s55, 2')
    k('v_add_u32 v6, s49, v6')
    k('s_lshl_b32 s49, s55, 4')
    k('s_sub_u32 s49, 16, s49')
    k('v_add_u32 v7, s49, v5')
    k('v_cmp_gt_u32 vcc, 16, v12')
    k('v_cndmask_b32 v6, v7, v6, vcc')
    k('v_mul_u32_u24 v7, 320, v13')
    k('v_lshl_add_u32 v42, v6, 4, v7')
    k(f's_mul_i32 s49, s{S_W}, 2560')
    k('v_add_u32 v42, s49, v42')
    VFB = 44
    k('v_mov_b32 v3, 0')
    k('v_mov_b32 v4, 0x3f803f80')
    k('v_cmp_eq_u32 vcc, 20, v12')
    k('v_cndmask_b32 v3, v3, v4, vcc')
    k('v_cmp_eq_u32 vcc, 24, v12')
    k('v_cndmask_b32 v3, v3, v4, vcc')
    for i in range(16):
        k(f'v_mov_b32 v{VFB+i}, v3')
    KFB = 60
    for b in range(2):
        k(f'v_mov_b32 v{KFB+8*b+6}, 0')
        k(f'v_mov_b32 v{KFB+8*b+7}, 0')
    k.wait(*qtok)
    for u in range(2):
        k(f'v_cndmask_b32 v{QF+8*u+4}, v{QF+8*u+4}, 0, s[96:97]')
        k(f'v_cndmask_b32 v{QF+8*u+5}, v{QF+8*u+5}, 0, s[96:97]')
    k.wait_all(vm=False)
    k('s_barrier')

    SA = 96
    OACC = 144

    def sreg(u, j):
        return v(SA + 16 * j, 16) if u == 0 else a(16 * j, 16)

    krd = {}

    def kreads(j):
        b = j % 2
        krd[j] = [k(f'ds_read_b64 {v(KFB+8*b,2)}, v40 offset:{LK+j*256}'),
                  k(f'ds_read_b64 {v(KFB+8*b+2,2)}, v40 offset:{LK+4096+j*256}'),
                  k(f'ds_read_b64 {v(KFB+8*b+4,2)}, v41 offset:{LK+16384+j*256}')]
    kreads(0)
    for j in range(10):
        b = j % 2
        k.wait(*krd[j])
        first = True
        for u in range(2):
            jj = j - u
            if jj < 0 or jj > 8:
                continue
            d = sreg(u, jj)
            k(f'v_mfma_f32_32x32x16_bf16 {d}, {v(KFB+8*b,4)}, {v(QF+8*u,4)}, 0')
            if first and j + 1 < 10:
                kreads(j + 1)
                first = False
            k(f'v_mfma_f32_32x32x16_bf16 {d}, {v(KFB+8*b+4,4)}, {v(QF+8*u+4,4)}, {d}')

    def softmax_pv(u):
        lab = k.newlabel('P2_FIX')
        k(f's_cmp_lg_u32 s{S_I}, 0')
        k(f's_cbranch_scc1 {lab}')
        k(f's_lshl_b32 s49, s{S_W}, 1')
        for jj in range(8):
            k(f's_cmp_ge_u32 s49, {8-u-jj}')
            k(f's_cbranch_scc1 {lab}')
            for i in range(16):
                k(f'v_mov_b32 v{SA+16*jj+i}, {f32(-1e30)}')
        k.label(lab)
        for i in range(16):
            k(f'v_cndmask_b32 v{SA+i}, v{SA+i}, v{SA+128+i}, s[{64+2*i}:{65+2*i}]')
        M0, M1 = 76, 77
        k(f'v_max3_f32 v{M0}, v{SA}, v{SA+1}, v{SA+2}')
        k(f'v_max3_f32 v{M1}, v{SA+3}, v{SA+4}, v{SA+5}')
        i = 6
        t = 0
        while i < 128:
            m = M0 if t % 2 == 0 else M1
            k(f'v_max3_f32 v{m}, v{m}, v{SA+i}, v{SA+i+1}')
            i += 2
            t += 1
        k(f'v_max_f32 v{M0}, v{M0}, v{M1}')
        k(f'v_mov_b32 v{M1}, v{M0}')
        k(f'v_permlane32_swap_b32 v{M0}, v{M1}')
        k(f'v_max_f32 v{M0}, v{M0}, v{M1}')
        k(f'v_sub_f32 v{M0}, 0, v{M0}')
        order = [1, 2, 3, 4, 5, 6, 7, 0]
        vrd = {}
        nbuf = [0]

        def vreads(jkey):
            toks = []
            k(f's_mov_b64 exec, s[98:99]')
            bufs = []
            for m in range(2):
                bi = nbuf[0] % 4
                nbuf[0] += 1
                bufs.append(bi)
                toks.append(k(f'ds_read_b128 {v(VFB+4*bi,4)}, v42 offset:{LV+(jkey+u)*1280+m*640}'))
            k('s_mov_b64 exec, -1')
            vrd[jkey] = (toks, bufs)

        oacc = a(OACC + 16 * u, 16)
        firstpv = [True]

        def pv(jkey, preg):
            toks, bufs = vrd[jkey]
            k.wait(*toks)
            for m in range(2):
                c = '0' if firstpv[0] else oacc
                firstpv[0] = False
                k(f'v_mfma_f32_32x32x16_bf16 {oacc}, {v(VFB+4*bufs[m],4)}, {v(preg+4*m,4)}, {c}')

        vreads(1)
        for idx, jb in enumerate(order):
            base = SA + 16 * jb
            for p in range(8):
                k(f'v_pk_add_f32 {v(base+2*p,2)}, {v(base+2*p,2)}, {v(M0,2)} op_sel_hi:[1,0]')
            for i in range(16):
                k(f'v_exp_f32 v{base+i}, v{base+i}')
            for p in range(8):
                k(f'v_cvt_pk_bf16_f32 v{base+p}, v{base+2*p}, v{base+2*p+1}')
            if jb != 0:
                nxt = order[idx + 1]
                vreads(nxt)
                pv(jb, base)
            else:
                for p in range(8):
                    k(f'v_and_b32 v{base+8+p}, v{PM+p}, v{base+p}')
                for p in range(8):
                    k(f'v_bfi_b32 v{base+p}, v{PM+p}, 0, v{base+p}')
                vreads(8)
                pv(0, base)
                pv(8, base + 8)

    softmax_pv(0)
    for i in range(144):
        k(f'v_accvgpr_read_b32 v{SA+i}, a{i}')
    softmax_pv(1)

    k(f's_lshr_b32 s49, s{S_H}, 1')
    k('s_mul_i32 s49, s49, 5')
    k(f's_mul_i32 s52, s{S_PI}, 3')
    k('s_add_u32 s52, s52, s49')
    k('s_lshl_b32 s52, s52, 15')
    k(f's_add_u32 s52, s52, {WS_OC}')
    k(f's_lshl_b32 s53, s{S_Q0}, 4')
    k('s_add_u32 s52, s52, s53')
    k('s_add_u32 s54, s49, 2')
    k('s_lshl_b32 s54, s54, 15')
    k(f's_add_u32 s54, s54, {WS_OC}')
    k('s_add_u32 s54, s54, s53')
    k(f's_lshl_b32 s49, s{S_PI}, 3')
    k('s_add_u32 s54, s54, s49')
    k('v_lshlrev_b32 v2, 4, v12')
    k('v_lshl_add_u32 v3, v13, 15, v2')
    for u in range(2):
        T = 96 + 32 * u
        for i in range(13):
            k(f'v_accvgpr_read_b32 v{T+i}, a{OACC+16*u+i}')
        k(f'v_cndmask_b32 v{T+13}, v{T+12}, v{T+8}, s[96:97]')
        k(f'v_rcp_f32 v{T+14}, v{T+13}')
        for p in range(6):
            k(f'v_pk_mul_f32 {v(T+2*p,2)}, {v(T+2*p,2)}, {v(T+14,2)} op_sel_hi:[1,0]')
        for p in range(6):
            k(f'v_cvt_pk_bf16_f32 v{T+16+p}, v{T+2*p}, v{T+2*p+1}')
        k(f'buffer_store_dwordx4 {v(T+16,4)}, v3, s[{S_WS}:{S_WS+3}], s52 offen offset:{u*512} sc1')
        k('s_mov_b64 exec, s[100:101]')
        k(f'buffer_store_dwordx2 {v(T+20,2)}, v2, s[{S_WS}:{S_WS+3}], s54 offen offset:{u*512} sc1')
        k('s_mov_b64 exec, -1')


def emit_p35(k, which):
    KT = 640 if which == 3 else 1536
    NST = KT // 128
    S_B = S_WO if which == 3 else S_WD
    ABASE = WS_OC if which == 3 else WS_HC
    NSLOT = min(NST, 8)
    WREG = NSLOT * 5120
    k('s_and_b32 s41, s2, 7')
    k('s_lshr_b32 s42, s2, 3')
    k('s_and_b32 s43, s41, 3')
    k('s_lshl_b32 s43, s43, 3')
    k('s_and_b32 s44, s42, 7')
    k('s_add_u32 s44, s44, s43')
    k('s_lshr_b32 s43, s41, 2')
    k('s_lshl_b32 s43, s43, 2')
    k('s_lshr_b32 s45, s42, 3')
    k('s_add_u32 s45, s45, s43')
    S_RT, S_CT = 44, 45
    k(f's_mul_i32 s46, s{S_CT}, 160')
    k(f's_and_b32 s47, s{S_CT}, 1')
    S_PAR = 47
    k('s_lshl_b32 s48, s47, 5')
    k('s_add_u32 s48, s48, s46')
    k('s_lshl_b32 s49, s47, 7')
    k('s_sub_u32 s49, 128, s49')
    k('s_add_u32 s49, s49, s46')
    k('v_lshrrev_b32 v10, 3, v1')
    k('v_bfe_u32 v11, v1, 1, 2')
    k('v_bfe_u32 v12, v1, 4, 1')
    k('v_xor_b32 v11, v11, v12')
    k('v_xor_b32 v13, 2, v11')
    k(f's_mul_i32 s50, s{S_W}, {KT//4}')
    k('v_add_u32 v10, s50, v10')
    k('v_mul_u32_u24 v10, 1280, v10')
    k('v_add_u32 v10, s48, v10')
    k('v_and_b32 v14, 1, v1')
    k('v_lshl_add_u32 v10, v14, 4, v10')
    k('v_lshl_add_u32 v2, v11, 5, v10')
    k('v_lshl_add_u32 v3, v13, 5, v10')
    k(f'v_add_u32 v3, {10240-1024}, v3')
    k(f'v_add_u32 v4, {2*(10240-1024)}, v2')
    k(f'v_add_u32 v5, {2*(10240-1024)}, v3')
    k('v_lshrrev_b32 v10, 1, v1')
    k('v_bfe_u32 v11, v1, 4, 1')
    k('v_lshlrev_b32 v11, 2, v11')
    k('v_xor_b32 v10, v10, v11')
    k('v_add_u32 v10, s50, v10')
    k('v_mul_u32_u24 v10, 1280, v10')
    k('v_add_u32 v10, s49, v10')
    k('v_lshl_add_u32 v6, v14, 4, v10')
    k(f's_mul_i32 s51, s{S_W}, {WREG}')
    S_LW = 51
    btok = {}

    def dma_step(st):
        slot = st % NSLOT
        ops = []

        def f0():
            k(f's_add_u32 m0, s{S_LW}, {slot*5120}')
            k(f's_mov_b32 s52, {st*32*1280}')
        ops.append(f0)
        for n in range(4):
            ops.append(lambda n=n: btok.__setitem__(st, k(
                f'buffer_load_dwordx4 v{2+n}, s[{S_B}:{S_B+3}], s52 offen offset:{n*1024} lds')))
        ops.append(lambda: k(f's_add_u32 m0, s{S_LW}, {slot*5120+4096}'))
        ops.append(lambda: btok.__setitem__(st, k(
            f'buffer_load_dwordx4 v6, s[{S_B}:{S_B+3}], s52 offen lds')))
        return ops

    k('v_and_b32 v15, 15, v1')
    k('v_lshrrev_b32 v16, 4, v1')
    k('v_lshlrev_b32 v7, 4, v15')
    k('v_lshl_add_u32 v7, v16, 15, v7')
    k(f's_lshl_b32 s53, s{S_RT}, 10')
    k(f's_mul_i32 s54, s{S_W}, {(KT//32)*32768}')
    k('s_add_u32 s53, s53, s54')
    k(f's_add_u32 s53, s53, {ABASE}')
    AF = 64
    atok = {}

    def aload(st):
        ops = [lambda: k(f's_add_u32 s54, s53, {st*4*32768}')]
        for t in range(4):
            ops.append(lambda t=t: atok.__setitem__(st, k(
                f'buffer_load_dwordx4 {v(AF+16*st+4*t,4)}, v7, s[{S_WS}:{S_WS+3}], s54 offen offset:{t*256} sc1')))
        return ops

    PRE = min(NSLOT, 7)
    for st in range(PRE):
        for f in dma_step(st) + aload(st):
            f()
    k('v_bfe_u32 v17, v1, 2, 2')
    k('v_lshl_add_u32 v18, v16, 3, v17')
    k('v_bfe_u32 v19, v1, 3, 1')
    k('v_bfe_u32 v20, v1, 4, 1')
    k('v_lshl_add_u32 v19, v20, 1, v19')
    k('v_and_b32 v21, 3, v1')
    k('v_lshlrev_b32 v22, 7, v18')
    k('v_lshl_add_u32 v22, v21, 3, v22')
    k(f'v_add_u32 v22, s{S_LW}, v22')
    for jt in range(4):
        k(f'v_xor_b32 v23, {jt}, v19')
        k(f'v_lshl_add_u32 v{24+jt}, v23, 5, v22')
    k('v_lshlrev_b32 v23, 2, v20')
    k('v_xor_b32 v23, v18, v23')
    k('v_lshlrev_b32 v28, 5, v23')
    k('v_lshl_add_u32 v28, v21, 3, v28')
    k(f'v_add_u32 v28, s{S_LW}, v28')
    k('v_add_u32 v28, 4096, v28')
    k('v_xor_b32 v29, 128, v28')
    assert WREG % 256 == 0 and 5120 % 256 == 0
    WF = 32
    WFA = 96
    rtok = {}

    def wreads(st):
        slot = st % NSLOT
        b = st % 2
        ops = []
        for jt in range(4):
            for hf in range(2):
                ops.append(lambda jt=jt, hf=hf: rtok.__setitem__(st, k(
                    f'ds_read_b64_tr_b16 {a(WFA+20*b+4*jt+2*hf,2)}, v{24+jt} offset:{slot*5120+hf*512}')))
        for hf in range(2):
            ops.append(lambda hf=hf: rtok.__setitem__(st, k(
                f'ds_read_b64_tr_b16 {a(WFA+20*b+16+2*hf,2)}, v{28+hf} offset:{slot*5120}')))
        return ops

    k.wait(btok[0])
    for f in wreads(0):
        f()
    for st in range(NST):
        b = st % 2
        k.wait(rtok[st], atok[st])
        fill = []
        if st + 1 < NST:
            fill.append(lambda st=st: k.wait(btok[st + 1]))
            fill += wreads(st + 1)
        nxt = st + PRE
        if nxt < NST:
            assert nxt - NSLOT <= st
            fill += dma_step(nxt) + aload(nxt)
        mf = []
        for t in range(4):
            for jt in range(5):
                acc = a(20 * t + 4 * jt, 4)
                c = '0' if st == 0 else acc
                mf.append(f'v_mfma_f32_16x16x32_bf16 {acc}, {a(WFA+20*b+4*jt,4)}, {v(AF+16*st+4*t,4)}, {c}')
        interleave(k, mf, fill)

    PITCH = 336
    PW = 64 * PITCH
    k.wait_all(vm=False)
    k('s_barrier')
    k(f'v_mul_u32_u24 v30, {PITCH}, v15')
    k('v_lshl_add_u32 v30, v16, 4, v30')
    k(f's_mul_i32 s52, s{S_W}, {PW}')
    k('v_add_u32 v30, s52, v30')
    k(f's_lshl_b32 s52, s{S_PAR}, 6')
    k('v_add_u32 v31, s52, v30')
    k(f's_lshl_b32 s52, s{S_PAR}, 8')
    k('s_sub_u32 s52, 256, s52')
    k('v_add_u32 v32, s52, v30')
    for t in range(4):
        for jt in range(5):
            if jt < 4:
                k(f'ds_write_b128 v31, {a(20*t+4*jt,4)} offset:{t*16*PITCH+jt*64}')
            else:
                k(f'ds_write_b128 v32, {a(20*t+4*jt,4)} offset:{t*16*PITCH}')
    res_tok = []
    for it in range(3):
        base = 160 + 24 * it
        k(f'v_add_u32 v33, {256*it}, v0')
        if which == 3:
            k('v_and_b32 v34, 63, v33')
            k('v_lshrrev_b32 v35, 6, v33')
        else:
            k('v_mul_u32_u24 v34, 6554, v33')
            k('v_lshrrev_b32 v34, 16, v34')
            k('v_mul_u32_u24 v35, 10, v34')
            k('v_sub_u32 v35, v33, v35')
        k(f'v_mul_u32_u24 v{40+it}, {PITCH}, v34')
        k(f'v_lshl_add_u32 v{40+it}, v35, 5, v{40+it}')
        k(f's_lshl_b32 s52, s{S_RT}, 6')
        k('v_add_u32 v36, s52, v34')
        k(f'v_mul_u32_u24 v{44+it}, 1280, v36')
        k(f'v_lshl_add_u32 v{44+it}, v35, 4, v{44+it}')
        k(f'v_add_u32 v{44+it}, s46, v{44+it}')
        k(f's_mul_i32 s52, s{S_CT}, 10')
        k('v_add_u32 v37, s52, v35')
        k(f'v_lshlrev_b32 v{48+it}, 15, v37')
        k(f'v_lshl_add_u32 v{48+it}, v36, 4, v{48+it}')
        if it == 2:
            k('v_cmp_gt_u32 vcc, 128, v0')
            k('s_mov_b64 s[56:57], vcc')
        if it == 2:
            pass
    k(f's_mov_b32 s55, {WS_H1}')
    lab_skip1 = k.newlabel('P35_S1')
    for it in range(3):
        if it == 2:
            k(f's_cmp_ge_u32 s{S_W}, 2')
            k(f's_cbranch_scc1 {lab_skip1}')
        if which == 3:
            k(f'buffer_load_dwordx4 {v(52+4*it,4)}, v{44+it}, s[{S_X}:{S_X+3}], 0 offen')
        else:
            k(f'buffer_load_dwordx4 {v(52+4*it,4)}, v{48+it}, s[{S_WS}:{S_WS+3}], s55 offen sc1')
    k.label(lab_skip1)
    k.wait_all()
    k('s_barrier')
    for it in range(3):
        if it == 2:
            k(f's_cmp_ge_u32 s{S_W}, 2')
            k(f's_cbranch_scc1 {k.endlabel}')
        T = 64
        toks = []
        for w in range(4):
            toks.append(k(f'ds_read_b128 {v(T+8*w,4)}, v{40+it} offset:{w*PW}'))
            toks.append(k(f'ds_read_b128 {v(T+8*w+4,4)}, v{40+it} offset:{w*PW+16}'))
        k.wait(*toks)
        for p in range(4):
            k(f'v_pk_add_f32 {v(T+2*p,2)}, {v(T+2*p,2)}, {v(T+8+2*p,2)}')
            k(f'v_pk_add_f32 {v(T+16+2*p,2)}, {v(T+16+2*p,2)}, {v(T+24+2*p,2)}')
        for p in range(4):
            k(f'v_pk_add_f32 {v(T+2*p,2)}, {v(T+2*p,2)}, {v(T+16+2*p,2)}')
        for p in range(4):
            k(f'v_cvt_pk_bf16_f32 v{T+8+p}, v{T+2*p}, v{T+2*p+1}')
        for p in range(4):
            k(f'v_lshlrev_b32 v{T+2*p}, 16, v{T+8+p}')
            k(f'v_and_b32 v{T+2*p+1}, 0xffff0000, v{T+8+p}')
            k(f'v_lshlrev_b32 v{T+16+2*p}, 16, v{52+4*it+p}')
            k(f'v_and_b32 v{T+16+2*p+1}, 0xffff0000, v{52+4*it+p}')
        for p in range(4):
            k(f'v_pk_add_f32 {v(T+2*p,2)}, {v(T+2*p,2)}, {v(T+16+2*p,2)}')
        O = 100 + 4 * it
        for p in range(4):
            k(f'v_cvt_pk_bf16_f32 v{O+p}, v{T+2*p}, v{T+2*p+1}')
        if which == 3:
            k(f'buffer_store_dwordx4 {v(O,4)}, v{48+it}, s[{S_WS}:{S_WS+3}], s55 offen sc1')
        else:
            k(f'buffer_store_dwordx4 {v(O,4)}, v{44+it}, s[{S_OUT}:{S_OUT+3}], 0 offen sc1')


def emit_colsum(k):
    k('s_sub_u32 s41, s2, 240')
    k('s_lshr_b32 s42, s41, 3')
    k('s_and_b32 s43, s41, 7')
    k('s_mul_i32 s43, s43, 384')
    k('s_cmp_eq_u32 s42, 0')
    k(f's_cselect_b32 s44, s{S_WG}, s{S_WU}')
    k(f's_cselect_b32 s45, s{S_WG+1}, s{S_WU+1}')
    k(f's_mov_b32 s46, 1966080')
    k('s_mov_b32 s47, 0x00020000')
    k('v_mul_u32_u24 v2, 2731, v0')
    k('v_lshrrev_b32 v2, 16, v2')
    k('v_mul_u32_u24 v3, 24, v2')
    k('v_sub_u32 v3, v0, v3')
    k(f'v_mul_u32_u24 v4, {64*3072}, v2')
    k('v_lshl_add_u32 v4, v3, 4, v4')
    k('v_add_u32 v4, s43, v4')
    for i in range(8):
        k(f'v_mov_b32 v{8+i}, 0')
    for batch in range(2):
        toks = []
        for r in range(32):
            k(f's_mov_b32 s48, {(batch*32+r)*3072}')
            toks.append(k(f'buffer_load_dwordx4 {v(32+4*r,4)}, v4, s[44:47], s48 offen'))
        for r in range(32):
            k.wait(toks[r])
            for p in range(4):
                k(f'v_lshlrev_b32 v16, 16, v{32+4*r+p}')
                k(f'v_and_b32 v17, 0xffff0000, v{32+4*r+p}')
                k(f'v_pk_add_f32 {v(8+2*p,2)}, {v(8+2*p,2)}, {v(16,2)}')
    k('v_mul_u32_u24 v5, 768, v2')
    k('v_lshl_add_u32 v5, v3, 5, v5')
    k(f'ds_write_b128 v5, {v(8,4)}')
    k(f'ds_write_b128 v5, {v(12,4)} offset:16')
    k.wait_all()
    k('s_barrier')
    k('v_lshlrev_b32 v6, 2, v0')
    toks = [k(f'ds_read_b32 v{20+r}, v6 offset:{r*768}') for r in range(10)]
    k.wait(*toks)
    for r in range(1, 10):
        k(f'v_add_f32 v20, v20, v{20+r}')
    k('s_mul_i32 s48, s41, 768')
    k(f's_add_u32 s48, s48, {WS_CS}')
    k('v_cmp_gt_u32 vcc, 192, v0')
    k('s_and_saveexec_b64 s[50:51], vcc')
    k(f's_cbranch_execz {k.endlabel}')
    k(f'buffer_store_dword v20, v6, s[{S_WS}:{S_WS+3}], s48 offen sc1')


def emit_p4(k):
    R = 6
    SLOT = 24576
    k('s_and_b32 s41, s2, 7')
    k('s_lshr_b32 s42, s2, 3')
    k('s_and_b32 s43, s41, 1')
    k('s_lshl_b32 s43, s43, 3')
    k('s_and_b32 s44, s42, 7')
    k('s_add_u32 s44, s44, s43')
    k('s_lshr_b32 s43, s41, 1')
    k('s_lshl_b32 s43, s43, 2')
    k('s_lshr_b32 s45, s42, 3')
    k('s_add_u32 s45, s45, s43')
    S_MT, S_FT = 44, 45
    k(f's_lshl_b32 s46, s{S_MT}, 7')
    k(f's_lshl_b32 s47, s{S_W}, 5')
    k('s_add_u32 s46, s46, s47')
    S_TOK = 46
    k(f's_cmp_lt_u32 s{S_W}, 2')
    k(f's_cselect_b32 s56, s{S_WG}, s{S_WU}')
    k(f's_cselect_b32 s57, s{S_WG+1}, s{S_WU+1}')
    k('s_mov_b32 s58, 1966080')
    k('s_mov_b32 s59, 0x00020000')
    k(f's_and_b32 s47, s{S_W}, 1')
    k(f's_mul_i32 s47, s47, {32*3072}')
    k(f's_mul_i32 s48, s{S_FT}, 192')
    k('s_add_u32 s47, s47, s48')
    for n in range(3):
        k(f'v_add_u32 v10, {n*64}, v1')
        k('v_mul_u32_u24 v11, 5462, v10')
        k('v_lshrrev_b32 v11, 16, v11')
        k('v_mul_u32_u24 v12, 12, v11')
        k('v_sub_u32 v12, v10, v12')
        k('v_mul_u32_u24 v11, 3072, v11')
        k(f'v_lshl_add_u32 v{2+n}, v12, 4, v11')
        k(f'v_add_u32 v{2+n}, s47, v{2+n}')
        if n:
            k(f'v_subrev_u32 v{2+n}, {n*1024}, v{2+n}')
    k(f's_mul_i32 s48, s{S_W}, 6144')
    S_LW = 48
    stok = {}

    def dma_stage(st):
        slot = st % R
        ops = []
        for per in range(2):
            def f0(per=per):
                k(f's_add_u32 m0, s{S_LW}, {slot*SLOT+per*3072}')
                k(f's_mov_b32 s49, {(st*64+per*16)*3072}')
            ops.append(f0)
            for n in range(3):
                ops.append(lambda n=n: stok.__setitem__(st, k(
                    f'buffer_load_dwordx4 v{2+n}, s[56:59], s49 offen offset:{n*1024} lds')))
        return ops

    k('v_and_b32 v13, 31, v1')
    k('v_lshrrev_b32 v14, 5, v1')
    k('v_lshlrev_b32 v5, 4, v13')
    k('v_lshl_add_u32 v5, v14, 15, v5')
    k(f's_lshl_b32 s50, s{S_TOK}, 4')
    k(f's_add_u32 s50, s50, {WS_H1}')
    AF = 96
    atok = {}

    def aload(st):
        ops = []
        for ks in range(4):
            kk = 4 * st + ks

            def f(kk=kk):
                k(f's_add_u32 s51, s50, {kk*65536}')
                atok[kk] = k(f'buffer_load_dwordx4 {v(AF+4*kk,4)}, v5, s[{S_WS}:{S_WS+3}], s51 offen sc1')
            ops.append(f)
        return ops

    for st in range(R):
        for f in aload(st) + dma_stage(st):
            f()
    k('v_bfe_u32 v15, v1, 2, 2')
    k('v_lshl_add_u32 v15, v14, 3, v15')
    k('v_mul_u32_u24 v15, 192, v15')
    k('v_bfe_u32 v16, v1, 4, 1')
    k('v_lshl_add_u32 v15, v16, 5, v15')
    k('v_and_b32 v16, 1, v1')
    k('v_lshl_add_u32 v15, v16, 4, v15')
    k('v_bfe_u32 v16, v1, 1, 1')
    k('v_lshl_add_u32 v6, v16, 3, v15')
    k(f'v_add_u32 v7, {2*SLOT}, v6')
    k(f'v_add_u32 v8, {4*SLOT}, v6')
    VSUM, VSQ, VONE = 20, 21, 22
    k(f'v_mov_b32 v{VSUM}, 0')
    k(f'v_mov_b32 v{VSQ}, 0')
    k(f'v_mov_b32 v{VONE}, 0x3f803f80')
    WFA = 96
    rtok = {}

    def reads(kk):
        st, ks = kk // 4, kk % 4
        slot = st % R
        q, so = slot // 2, (slot % 2) * SLOT
        b = kk % 2
        ops = []
        for j in range(6):
            for hf in range(2):
                off = so + (j // 3) * 12288 + ks * 3072 + hf * 768 + (j % 3) * 64
                ops.append(lambda j=j, hf=hf, off=off: rtok.__setitem__(kk, k(
                    f'ds_read_b64_tr_b16 {a(WFA+24*b+4*j+2*hf,2)}, v{6+q} offset:{off}')))
        return ops

    k.wait(stok[0])
    k('s_barrier')
    for f in reads(0):
        f()
    for kk in range(40):
        b = kk % 2
        k.wait(rtok[kk], atok[kk])
        fill = []
        if kk + 1 < 40:
            if (kk + 1) % 4 == 0:
                st = kk // 4
                k.wait(stok[st + 1])
                k('s_barrier')
                fill += reads(kk + 1)
                if st + R < 10:
                    fill += aload(st + R) + dma_stage(st + R)
            else:
                fill += reads(kk + 1)
        for i in range(4):
            fill.append(f'v_dot2_f32_bf16 v{VSUM}, v{AF+4*kk+i}, v{VONE}, v{VSUM}')
            fill.append(f'v_dot2_f32_bf16 v{VSQ}, v{AF+4*kk+i}, v{AF+4*kk+i}, v{VSQ}')
        mf = []
        for j in range(6):
            acc = a(16 * j, 16)
            c = '0' if kk == 0 else acc
            mf.append(f'v_mfma_f32_32x32x16_bf16 {acc}, {a(WFA+24*b+4*j,4)}, {v(AF+4*kk,4)}, {c}')
        interleave(k, mf, fill)

    k('v_lshlrev_b32 v9, 5, v14')
    k(f's_mul_i32 s51, s{S_FT}, 384')
    k(f's_add_u32 s51, s51, {WS_CS}')
    k(f's_add_u32 s52, s51, {1536*4}')
    CS = 96
    ctok = {}
    for p in range(3):
        for mtx in range(2):
            for q in range(4):
                off = p * 128 + (q // 2) * 64 + (q % 2) * 16
                ctok[p] = k(f'buffer_load_dwordx4 {v(CS+32*p+16*mtx+4*q,4)}, v9, s[{S_WS}:{S_WS+3}], s{51+mtx} offen offset:{off} sc1')
    xhalf_sum(k, VSUM, 24, 25)
    xhalf_sum(k, VSQ, 24, 25)
    k(f'v_mul_f32 v{VSUM}, {f32(1.0/640)}, v{VSUM}')
    k(f'v_mul_f32 v{VSQ}, {f32(1.0/640)}, v{VSQ}')
    k(f'v_fma_f32 v{VSQ}, -v{VSUM}, v{VSUM}, v{VSQ}')
    k(f'v_max_f32 v{VSQ}, 0, v{VSQ}')
    rbf(k, 24, VSUM)
    k('v_sub_f32 v26, 0, v24')
    rbf(k, 25, VSQ)
    k(f'v_add_f32 v25, {f32(1e-5)}, v25')
    rbf(k, 25, 25)
    k('v_sqrt_f32 v25, v25')
    rbf(k, 25, 25)
    k('v_rcp_f32 v28, v25')
    k('v_mul_f32 v30, v25, v25')
    c0 = -2.0 * math.sqrt(2.0 / math.pi) * math.log2(math.e)
    c1 = c0 * 0.044715
    k(f'v_mov_b32 v32, {f32(c0)}')
    k(f'v_mov_b32 v34, {f32(c1)}')
    k(f's_mul_i32 s53, s{S_FT}, {12*32768}')
    k(f's_lshl_b32 s54, s{S_TOK}, 4')
    k('s_add_u32 s53, s53, s54')
    k(f's_add_u32 s53, s53, {WS_HC}')
    G, U, T = 40, 56, 72
    for p in range(3):
        for i in range(16):
            k(f'v_accvgpr_read_b32 v{G+i}, a{16*p+i}')
            k(f'v_accvgpr_read_b32 v{U+i}, a{16*(3+p)+i}')
        k.wait(ctok[p])
        for q in range(8):
            g2, u2, t2 = v(G + 2 * q, 2), v(U + 2 * q, 2), v(T + 2 * q, 2)
            csg, csu = v(CS + 32 * p + 2 * q, 2), v(CS + 32 * p + 16 + 2 * q, 2)
            k(f'v_pk_fma_f32 {g2}, {csg}, {v(26,2)}, {g2} op_sel_hi:[1,0,1]')
            k(f'v_pk_fma_f32 {u2}, {csu}, {v(26,2)}, {u2} op_sel_hi:[1,0,1]')
            k(f'v_pk_mul_f32 {u2}, {u2}, {g2}')
            k(f'v_pk_mul_f32 {g2}, {g2}, {v(28,2)} op_sel_hi:[1,0]')
            k(f'v_pk_mul_f32 {t2}, {g2}, {g2}')
            k(f'v_pk_fma_f32 {t2}, {t2}, {v(34,2)}, {v(32,2)} op_sel_hi:[1,0,0]')
            k(f'v_pk_mul_f32 {t2}, {t2}, {g2}')
        for i in range(16):
            k(f'v_exp_f32 v{T+i}, v{T+i}')
        for q in range(8):
            t2 = v(T + 2 * q, 2)
            k(f'v_pk_fma_f32 {t2}, {t2}, {v(30,2)}, {v(30,2)} op_sel_hi:[1,0,0]')
        for i in range(16):
            k(f'v_rcp_f32 v{T+i}, v{T+i}')
        for q in range(8):
            k(f'v_pk_mul_f32 {v(U+2*q,2)}, {v(U+2*q,2)}, {v(T+2*q,2)}')
        O = 88
        for q in range(8):
            k(f'v_cvt_pk_bf16_f32 v{O+q}, v{U+2*q}, v{U+2*q+1}')
        for hf2 in range(2):
            k(f's_add_u32 s54, s53, {(4*p+2*hf2)*32768}')
            k(f'buffer_store_dwordx4 {v(O+4*hf2,4)}, v5, s[{S_WS}:{S_WS+3}], s54 offen sc1')


def kernel(name, nwg, body, vg=512, acc=256):
    k = K()
    k.endlabel = f'{name}_END'
    k.raw('.p2align 8')
    k.raw(f'.globl {name}')
    k.raw(f'.type {name},@function')
    k.raw(f'{name}:')
    prologue(k, nwg)
    body(k)
    k.label(k.endlabel)
    k('s_endpgm')
    desc = f'''.p2align 6
.amdhsa_kernel {name}
  .amdhsa_next_free_vgpr {vg}
  .amdhsa_next_free_sgpr 102
  .amdhsa_accum_offset {acc}
  .amdhsa_group_segment_fixed_size 0
  .amdhsa_kernarg_size 80
  .amdhsa_user_sgpr_count 2
  .amdhsa_user_sgpr_kernarg_segment_ptr 1
  .amdhsa_system_sgpr_workgroup_id_x 1
.end_amdhsa_kernel
'''
    return k.render(), desc


def p1_body(k):
    lab = k.newlabel('P1_CS')
    k('s_cmp_ge_u32 s2, 240')
    k(f's_cbranch_scc1 {lab}')
    emit_p1(k)
    k(f's_branch {k.endlabel}')
    k.label(lab)
    k.reset_counters()
    emit_colsum(k)


def main():
    ks = [('p1_kernel', 256, p1_body, 163840), ('p2_kernel', 256, emit_p2, 40960),
          ('p3_kernel', 256, lambda k: emit_p35(k, 3), 102400), ('p4_kernel', 256, emit_p4, 147456),
          ('p5_kernel', 256, lambda k: emit_p35(k, 5), 163840)]
    head = open('cdna_kernels/%s.s.ref' % NAME).read().split('\n')
    hdr = [l for l in head if l.startswith(';') and '@launch' not in l and 'Override launch' not in l and 'grid=ceil' not in l]
    out = '\n'.join(hdr) + '\n'
    for n, g, b, lds in ks:
        out += f'; @launch kernel={n} grid=({g},1,1) block=(256,1,1) lds={lds}\n'
    out += '.amdgcn_target "amdgcn-amd-amdhsa--gfx950"\n.text\n'
    descs = ''
    for n, g, b, lds in ks:
        t, d = kernel(n, g, b)
        out += t
        descs += d
    out += '.section .rodata,"a"\n' + descs
    path = sys.argv[1] if len(sys.argv) > 1 else 'cdna_kernels/%s.s' % NAME
    open(path, 'w').write(out)
    print('wrote', path, len(out), 'bytes')


if __name__ == '__main__':
    main()
```

```python
import re

REG_RE = re.compile(r'\b([vas])(?:(\d+)|\[(\d+):(\d+)\])')


def v(i, n=1):
    return f'v{i}' if n == 1 else f'v[{i}:{i+n-1}]'


def a(i, n=1):
    return f'a{i}' if n == 1 else f'a[{i}:{i+n-1}]'


def s(i, n=1):
    return f's{i}' if n == 1 else f's[{i}:{i+n-1}]'


def regs_of(opnd):
    out = set()
    for m in REG_RE.finditer(opnd):
        t = m.group(1)
        if m.group(2) is not None:
            out.add((t, int(m.group(2))))
        else:
            for i in range(int(m.group(3)), int(m.group(4)) + 1):
                out.add((t, i))
    if re.search(r'\bvcc\b', opnd):
        out.add(('vcc', 0))
    if re.search(r'\bexec\b', opnd):
        out.add(('exec', 0))
    if re.search(r'\bm0\b', opnd):
        out.add(('m0', 0))
    return out


def split_ops(rest):
    ops, depth, cur = [], 0, ''
    for ch in rest:
        if ch == '[':
            depth += 1
        if ch == ']':
            depth -= 1
        if ch == ',' and depth == 0:
            ops.append(cur.strip())
            cur = ''
        else:
            cur += ch
    if cur.strip():
        ops.append(cur.strip())
    return ops


TRANS = ('v_exp_f32', 'v_log_f32', 'v_rcp_f32', 'v_rsq_f32', 'v_sqrt_f32', 'v_sin_f32', 'v_cos_f32', 'v_rcp_iflag_f32')


class Ins:
    __slots__ = ('text', 'op', 'kind', 'wr', 'rd', 'srcc', 'passes', 'states', 'wide_store_data', 'is_lds_dma', 'srcab')

    def __init__(self, text):
        self.text = text
        t = text.split(';')[0].strip()
        parts = t.split(None, 1)
        op = parts[0]
        rest = parts[1] if len(parts) > 1 else ''
        self.op = op
        ops = split_ops(rest)
        self.wr, self.rd = set(), set()
        self.srcc = set()
        self.srcab = set()
        self.passes = 0
        self.states = 1
        self.wide_store_data = set()
        self.is_lds_dma = False
        R = [regs_of(o) for o in ops]
        allr = set().union(*R) if R else set()
        if op.startswith('v_mfma'):
            self.kind = 'mfma'
            self.passes = 8 if '32x32x16' in op else 4
            self.wr = R[0]
            self.srcab = R[1] | R[2]
            self.srcc = R[3]
            self.rd = R[1] | R[2] | R[3]
        elif op.startswith('v_'):
            self.kind = 'valu'
            if op in TRANS or op.rstrip('_e32').rstrip('_e64') in TRANS:
                self.kind = 'trans'
            if op.startswith('v_dot'):
                self.kind = 'dot'
            if op.startswith('v_permlane'):
                self.kind = 'permlane'
                self.wr = R[0] | R[1]
                self.rd = R[0] | R[1]
            elif op.startswith('v_cmpx'):
                self.wr = R[0] | {('exec', 0)}
                self.rd = set().union(*R[1:])
            elif op.startswith(('v_add_co', 'v_sub_co', 'v_addc_co', 'v_subb_co', 'v_subrev_co', 'v_mad_u64')):
                self.wr = R[0] | R[1]
                self.rd = set().union(*R[2:])
            elif op == 'v_nop':
                pass
            else:
                self.wr = R[0]
                self.rd = set().union(*R[1:]) if len(R) > 1 else set()
                if op.startswith(('v_fmac', 'v_dot2c', 'v_pk_fmac', 'v_writelane')):
                    self.rd |= R[0]
                if op.startswith('v_dot2_'):
                    self.srcc = R[3]
                if op.startswith('v_dot2c'):
                    self.srcc = R[0]
        elif op.startswith('ds_'):
            self.kind = 'lds'
            if op.startswith(('ds_read', 'ds_bpermute', 'ds_permute', 'ds_swizzle')) or '_rtn_' in op:
                self.wr = R[0]
                self.rd = set().union(*R[1:]) if len(R) > 1 else set()
            else:
                self.rd = allr
        elif op.startswith(('buffer_', 'global_')):
            self.kind = 'vmem'
            if op in ('buffer_inv', 'buffer_wbl2'):
                pass
            elif re.search(r'\blds\b', rest) or 'load_lds' in op:
                self.is_lds_dma = True
                self.rd = allr | {('m0', 0)}
            elif 'load' in op:
                self.wr = R[0]
                self.rd = set().union(*R[1:])
            elif 'atomic' in op:
                if re.search(r'\bsc0\b', rest):
                    self.wr = R[0]
                self.rd = allr
            else:
                self.rd = allr
                if 'x4' in op or 'x3' in op:
                    self.wide_store_data = R[0] if op.startswith('buffer_') else R[1]
        elif op.startswith('s_'):
            self.kind = 'salu'
            if op == 's_nop':
                self.states = int(ops[0], 0) + 1
            elif op.startswith(('s_cmp', 's_cbranch', 's_branch', 's_waitcnt', 's_barrier', 's_endpgm', 's_sleep',
                                's_setprio', 's_bitcmp')):
                self.rd = allr
            elif op.startswith(('s_load', 's_memtime', 's_memrealtime', 's_buffer_load')):
                self.kind = 'smem'
                self.wr = R[0]
                self.rd = set().union(*R[1:]) if len(R) > 1 else set()
            else:
                self.wr = R[0]
                self.rd = set().union(*R[1:]) if len(R) > 1 else set()
                if 'saveexec' in op:
                    self.wr = self.wr | {('exec', 0)}
                if op.startswith(('s_addk', 's_mulk')):
                    self.rd |= R[0]
        else:
            raise ValueError('unknown instr ' + text)


def is_valu(i):
    return i.kind in ('valu', 'trans', 'dot', 'permlane')


def vec(rs):
    return {r for r in rs if r[0] in ('v', 'a')}


def sca(rs):
    return {r for r in rs if r[0] in ('s', 'vcc')}


def need_states(p, c):
    n = 0
    if p.kind == 'mfma':
        P = p.passes
        d = p.wr
        if c.kind == 'mfma':
            if c.srcc & d:
                if c.srcc == d and c.passes == P:
                    n = max(n, 0)
                else:
                    n = max(n, {4: 6, 8: 10}[P])
            if c.srcab & d:
                n = max(n, {4: 8, 8: 12}[P])
            if (c.wr & d) and not (c.srcc == d):
                n = max(n, {4: 8, 8: 12}[P])
        else:
            if (c.rd | c.wr) & d:
                n = max(n, {4: 8, 8: 12}[P])
            if (is_valu(c) or c.kind in ('lds', 'vmem')) and (c.wr & p.srcc):
                n = max(n, {4: 3, 8: 7}[P])
    if is_valu(p):
        vw = vec(p.wr)
        sw = sca(p.wr)
        if c.kind == 'mfma' and (c.rd & vw):
            n = max(n, 2)
        if c.kind == 'mfma' and ('exec', 0) in p.wr:
            n = max(n, 4)
        if c.kind == 'permlane' and (c.rd & vw):
            n = max(n, 2)
        if c.kind == 'permlane' and ('exec', 0) in p.wr:
            n = max(n, 4)
        if c.op.startswith(('v_readlane', 'v_readfirstlane')) and (c.rd & vw):
            n = max(n, 1)
        if c.op.startswith(('v_readlane', 'v_readfirstlane', 'v_writelane')) and ('exec', 0) in p.wr:
            n = max(n, 4)
        if is_valu(c) and (c.rd & sw):
            n = max(n, 2)
            if c.op.startswith(('v_readlane', 'v_writelane')):
                n = max(n, 4)
        if c.kind == 'vmem' and (c.rd & sw):
            n = max(n, 5)
        if c.kind in ('salu', 'smem') and (c.rd & sw):
            n = max(n, 1)
        if p.kind == 'trans' and is_valu(c) and c.kind != 'trans' and ((c.rd | c.wr) & vw):
            n = max(n, 1)
        if p.kind == 'trans' and c.kind in ('lds', 'vmem', 'mfma') and (c.rd & vw):
            n = max(n, 2 if c.kind == 'mfma' else 1)
        if p.kind == 'dot':
            if c.kind == 'dot' and c.op == p.op:
                if (c.rd - c.srcc) & vw:
                    n = max(n, 3)
            elif (c.rd | c.wr) & vw:
                n = max(n, 3)
        if 'dpp' in c.text and (c.rd & vw):
            n = max(n, 2)
        if 'op_sel' in p.text and not p.op.startswith('v_pk_') and is_valu(c) and ((c.rd | c.wr) & vw):
            n = max(n, 1)
    if p.kind == 'vmem' and p.wide_store_data:
        if c.wr & p.wide_store_data:
            n = max(n, 2 if is_valu(c) else 1)
    if p.kind == 'salu' and ('m0', 0) in p.wr and (c.is_lds_dma or 'addtid' in c.op):
        n = max(n, 1)
    return n


class K:
    def __init__(self):
        self.items = []
        self.vm_issued = 0
        self.vm_done = -1
        self.lg_issued = 0
        self.lg_done = -1
        self.nlabel = 0
        self.cold = []

    def raw(self, text):
        self.items.append(text)

    def c(self, text):
        self.items.append('    ; ' + text)

    def __call__(self, text):
        ins = Ins(text)
        self.items.append(ins)
        tok = None
        if ins.kind == 'vmem':
            tok = ('vm', self.vm_issued)
            self.vm_issued += 1
        elif ins.kind == 'lds':
            tok = ('lg', self.lg_issued)
            self.lg_issued += 1
        return tok

    def label(self, name):
        self.items.append(('label', name))

    _lab = [0]

    def newlabel(self, base='L'):
        K._lab[0] += 1
        return f'{base}_{K._lab[0]}'

    def wait(self, *toks):
        vm = max([t[1] for t in toks if t and t[0] == 'vm'], default=-1)
        lg = max([t[1] for t in toks if t and t[0] == 'lg'], default=-1)
        parts = []
        if vm > self.vm_done:
            n = self.vm_issued - vm - 1
            if n > 63:
                n = 63
                n = min(n, self.vm_issued - vm - 1)
            parts.append(f'vmcnt({min(n, 63)})')
            self.vm_done = vm
        if lg > self.lg_done:
            n = self.lg_issued - lg - 1
            parts.append(f'lgkmcnt({min(n, 15)})')
            self.lg_done = lg
        if parts:
            self('s_waitcnt ' + ' '.join(parts))

    def wait_all(self, vm=True, lg=True):
        parts = []
        if vm:
            parts.append('vmcnt(0)')
            self.vm_done = self.vm_issued - 1
        if lg:
            parts.append('lgkmcnt(0)')
            self.lg_done = self.lg_issued - 1
        self('s_waitcnt ' + ' '.join(parts))

    def outline(self, cond_branch, fn):
        lc, lb = self.newlabel('OUT'), self.newlabel('OBK')
        self(f'{cond_branch} {lc} ;nodrain')
        self.label(lb)
        saved = self.items
        self.items = []
        self.label(lc)
        fn()
        self(f's_branch {lb}')
        blk = self.items
        self.items = saved
        self.cold.append(lambda c: c.items.extend(blk))

    def snap(self):
        return (self.vm_issued, self.vm_done, self.lg_issued, self.lg_done)

    def restore(self, sn):
        self.vm_issued, self.vm_done, self.lg_issued, self.lg_done = sn

    def reset_counters(self):
        self.vm_issued = 0
        self.vm_done = -1
        self.lg_issued = 0
        self.lg_done = -1

    def render(self):
        out = []
        hist = []
        npad = 0
        for it in self.items:
            if isinstance(it, str):
                out.append(it)
                continue
            if isinstance(it, tuple):
                out.append(it[1] + ':')
                continue
            c = it
            need = 0
            dist = 0
            for p in reversed(hist):
                n = need_states(p, c)
                if n > dist:
                    need = max(need, n - dist)
                dist += p.states
                if dist > 24:
                    break
            is_branch = c.op.startswith(('s_cbranch', 's_branch')) and 'nodrain' not in c.text
            if is_branch:
                dist = 0
                for p in reversed(hist):
                    w = 0
                    if p.kind == 'mfma':
                        w = {4: 8, 8: 12}[p.passes]
                    elif is_valu(p):
                        w = 5 if sca(p.wr) or ('exec', 0) in p.wr else 3
                    elif p.kind == 'vmem' and p.wide_store_data:
                        w = 2
                    elif ('m0', 0) in p.wr:
                        w = 1
                    if w - 1 > dist:
                        need = max(need, w - 1 - dist)
                    dist += p.states
                    if dist > 24:
                        break
            while need > 0:
                k = min(need, 16)
                nop = Ins(f's_nop {k-1}')
                out.append('    ' + nop.text)
                hist.append(nop)
                need -= k
                npad += 1
            out.append('    ' + c.text)
            hist.append(c)
            if len(hist) > 40:
                hist = hist[-40:]
        return '\n'.join(out) + '\n'
```

```python
import math
import struct
import sys
from asmlib import K, v, a, s

NAME = 'sequential_preLN__sliding_block__glu_gated_geglu__prompt'

WS_QG = 0x0000000
WS_KG = 0x0280000
WS_VF = 0x0500000
WS_OC = 0x0780000
WS_H1 = 0x0A00000
WS_HC = 0x0C80000
WS_CS = 0x1280000
WS_F2 = 0x1288000
WS_F3 = 0x128A000
WS_F0 = 0x128C000
WS_PC = 0x1290000
WS_PS = 0x12A8000
WS_HS = 0x12D0000
WS_PCS = 0x1340000
WS_ST = 0x1300000
WS_SIZE = 0x1400000
OOB = 0x40000000

S_X, S_WQKV, S_WO, S_WG, S_WU, S_WD, S_OUT, S_WS, S_DBG = 4, 8, 12, 16, 20, 24, 28, 32, 36
S_NONCE = 3
S_W, S_X8, S_I32, S_W4 = 40, 41, 42, 43
S_BUD = 57
WSR = f's[{S_WS}:{S_WS+3}]'
OPT = {}
STAMPS = False
XCH = 159744
XNONCE = XCH + 3072


def f32(x):
    return '0x%08x' % struct.unpack('<I', struct.pack('<f', x))[0]


def stamp(k, i):
    if not STAMPS:
        return
    k('s_memtime s[62:63]')
    k.wait_all(vm=False)
    k(f'v_writelane_b32 v255, s62, {i}')


def stamp_flush(k):
    if not STAMPS:
        return
    lab = k.newlabel('ST')
    k('s_memrealtime s[62:63]')
    k.wait_all()
    k('v_writelane_b32 v255, s62, 63')
    k(f'v_writelane_b32 v255, s{S_BUD}, 62')
    k(f's_cmp_lg_u32 s{S_W4}, 0')
    k(f's_cbranch_scc1 {lab}')
    k('v_lshlrev_b32 v254, 2, v1')
    k('s_lshl_b32 s62, s2, 9')
    k(f's_lshl_b32 s63, s{S_W}, 6')
    k('s_add_u32 s62, s62, s63')
    k(f's_add_u32 s62, s62, {WS_ST}')
    k(f'buffer_store_dword v255, v254, {WSR}, s62 offen')
    k.label(lab)


def run(k, f):
    return f() if callable(f) else k(f)


def runall(k, ops):
    for f in ops:
        run(k, f)


def roll_step(k, mf, rds, fill):
    n, nf, fi = len(mf), len(fill), 0
    for i, (wt, m) in enumerate(mf):
        k.wait(*wt())
        k(m)
        for f in (rds[i] if i < len(rds) else []):
            run(k, f)
        tgt = (nf * (i + 1) + n - 1) // n
        while fi < min(tgt, nf):
            run(k, fill[fi])
            fi += 1


def spread(k, main, side):
    n, nf = len(main), len(side)
    pos = {}
    for j in range(nf):
        pos.setdefault(int(j * n / max(nf, 1)), []).append(side[j])
    for i, m in enumerate(main):
        for f in pos.get(i, []):
            run(k, f)
        run(k, m)


def rbf(k, d, src):
    k(f'v_cvt_pk_bf16_f32 {v(d)}, {v(src)}, {v(src)}')
    k(f'v_lshlrev_b32 {v(d)}, 16, {v(d)}')


def xsum(k, r, t1, t2, which=32):
    k(f'v_mov_b32 {v(t1)}, {v(r)}')
    k(f'v_mov_b32 {v(t2)}, {v(r)}')
    k(f'v_permlane{which}_swap_b32 {v(t1)}, {v(t2)}')
    k(f'v_add_f32 {v(r)}, {v(t1)}, {v(t2)}')


def maxchain_ops(regs, t):
    regs = list(regs)
    ops = [f'v_max3_u32 v{t}, v{regs[0]}, v{regs[1]}, v{regs[2]}']
    i = 3
    while i < len(regs):
        if i + 1 < len(regs):
            ops.append(f'v_max3_u32 v{t}, v{t}, v{regs[i]}, v{regs[i+1]}')
            i += 2
        else:
            ops.append(f'v_max_u32 v{t}, v{t}, v{regs[i]}')
            i += 1
    return ops


def check_group(k, regs, t, reissue, slp=2):
    for o in maxchain_ops(regs, t):
        k(o)
    slow, back, loop = k.newlabel('SLOW'), k.newlabel('BACK'), k.newlabel('RETRY')
    k(f'v_cmp_eq_u32 vcc, -1, v{t}')
    k(f's_cbranch_vccnz {slow} ;nodrain')
    k.label(back)

    def cold(c):
        c.label(slow)
        c('s_nop 15')
        c.label(loop)
        c(f's_cmp_eq_u32 s{S_BUD}, 0')
        c(f's_cbranch_scc1 {back}')
        c(f's_sub_u32 s{S_BUD}, s{S_BUD}, 1')
        c(f's_sleep {slp}')
        reissue(c)
        c('s_waitcnt vmcnt(0)')
        for o in maxchain_ops(regs, t):
            c(o)
        c(f'v_cmp_eq_u32 vcc, -1, v{t}')
        c(f's_cbranch_vccnz {loop}')
        c(f's_branch {back}')
    k.cold.append(cold)


def nonce_issue(k, vr):
    k(f'v_mov_b32 v{vr+1}, 0')
    return k(f'buffer_load_dword v{vr}, v{vr+1}, s[{S_DBG}:{S_DBG+3}], 0 offen sc1')


def nonce_check(k, vr, tok):
    k.wait(tok)
    slow, back = k.newlabel('NSLOW'), k.newlabel('NBACK')
    k(f'v_readfirstlane_b32 s{S_NONCE}, v{vr}')
    k(f's_cmp_eq_u32 s{S_NONCE}, 0')
    k(f's_cbranch_scc1 {slow} ;nodrain')
    k.label(back)

    def cold(c):
        c.label(slow)
        c('s_nop 15')
        c(f's_cmp_eq_u32 s{S_BUD}, 0')
        c(f's_cbranch_scc1 {back}')
        c(f's_sub_u32 s{S_BUD}, s{S_BUD}, 1')
        c('s_sleep 4')
        c(f'buffer_load_dword v{vr}, v{vr+1}, s[{S_DBG}:{S_DBG+3}], 0 offen sc1')
        c('s_waitcnt vmcnt(0)')
        c(f'v_readfirstlane_b32 s{S_NONCE}, v{vr}')
        c(f's_cmp_eq_u32 s{S_NONCE}, 0')
        c(f's_cbranch_scc1 {slow}')
        c(f's_branch {back}')
    k.cold.append(cold)


def nonce_from_lds(k, t):
    k(f'v_mov_b32 v{t}, {XNONCE}')
    tk = k(f'ds_read_b32 v{t}, v{t}')
    k.wait(tk)
    k(f'v_readfirstlane_b32 s{S_NONCE}, v{t}')


def rflag_store(k, base, sidx, t1, t2):
    k(f'v_mov_b32 v{t1}, s{S_NONCE}')
    k(f'v_lshlrev_b32 v{t2}, 10, v1')
    k(f's_lshl_b32 s60, s{sidx}, 2')
    k(f's_add_u32 s60, s60, {base}')
    k(f's_mov_b32 s61, {OOB}')
    k(f's_cmp_eq_u32 s{S_W}, 0')
    k('s_cselect_b32 s60, s60, s61')
    k('s_mov_b64 exec, 0xff')
    k(f'buffer_store_dword v{t1}, v{t2}, {WSR}, s60 offen sc1')
    k('s_mov_b64 exec, -1')


def rflag_poll(k, sbase, va, vr, smask):
    loop, done = k.newlabel('POLL'), k.newlabel('PDONE')
    k(f's_cmp_lg_u32 s{S_W}, 0')
    k(f's_cbranch_scc1 {done}')
    k.label(loop)
    k.raw(f'    buffer_load_dword v{vr}, v{va}, {WSR}, s{sbase} offen sc1')
    k.raw('    s_waitcnt vmcnt(0)')
    k(f'v_cmp_ne_u32 vcc, s{S_NONCE}, v{vr}')
    k(f's_and_b64 vcc, vcc, s[{smask}:{smask+1}]')
    k(f's_cbranch_scc0 {done}')
    k(f's_cmp_eq_u32 s{S_BUD}, 0')
    k(f's_cbranch_scc1 {done}')
    k(f's_sub_u32 s{S_BUD}, s{S_BUD}, 1')
    k(f's_branch {loop}')
    k.label(done)


def flags_issue(k, base, vr, va):
    k(f'v_lshlrev_b32 v{va}, 4, v1')
    k(f's_lshl_b32 s60, s{S_X8}, 10')
    k(f'v_add_u32 v{va}, s60, v{va}')
    k(f's_mov_b32 s60, {base}')
    return k(f'buffer_load_dwordx4 {v(vr,4)}, v{va}, {WSR}, s60 offen sc1')


def flags_check(k, base, vr, va, tok):
    k.wait(tok)
    slow, back = k.newlabel('FSLOW'), k.newlabel('FBACK')

    def cmpops(c):
        for i in range(4):
            c(f'v_xor_b32 v{vr+i}, s{S_NONCE}, v{vr+i}')
        c(f'v_or3_b32 v{vr}, v{vr}, v{vr+1}, v{vr+2}')
        c(f'v_or_b32 v{vr}, v{vr}, v{vr+3}')
        c(f'v_cmp_ne_u32 vcc, 0, v{vr}')
    cmpops(k)
    k(f's_cbranch_vccnz {slow} ;nodrain')
    k.label(back)

    def cold(c):
        c.label(slow)
        c('s_nop 15')
        c(f's_cmp_eq_u32 s{S_BUD}, 0')
        c(f's_cbranch_scc1 {back}')
        c(f's_sub_u32 s{S_BUD}, s{S_BUD}, 1')
        c('s_sleep 12')
        c(f's_mov_b32 s58, {base}')
        c(f'buffer_load_dwordx4 {v(vr,4)}, v{va}, {WSR}, s58 offen sc1')
        c('s_waitcnt vmcnt(0)')
        cmpops(c)
        c(f's_cbranch_vccnz {slow}')
        c(f's_branch {back}')
    k.cold.append(cold)


def join(k):
    k.reset_counters()
    k.vm_issued = 1
    k.lg_issued = 1


def prologue(k):
    k('s_cmp_ge_u32 s2, 256')
    k('s_cbranch_scc1 %s' % k.realend)
    k('s_load_dwordx8 s[64:71], s[0:1], 0')
    k('s_load_dwordx8 s[72:79], s[0:1], 32')
    k('s_load_dwordx4 s[80:83], s[0:1], 64')
    k('s_memrealtime s[84:85]')
    k('v_and_b32 v1, 63, v0')
    k('v_lshrrev_b32 v2, 6, v0')
    k(f'v_readfirstlane_b32 s{S_W}, v2')
    k(f's_and_b32 s{S_X8}, s2, 7')
    k(f's_lshr_b32 s{S_I32}, s2, 3')
    k(f's_mov_b32 s{S_BUD}, {OPT.get("bud", 100000)}')
    k(f's_and_b32 s{S_W4}, s{S_W}, 3')
    k('v_and_b32 v0, 255, v0')
    for i in range(232, 237):
        k(f'v_mov_b32 v{i}, 0')
    k('s_waitcnt lgkmcnt(0)')
    for sr, src, size in ((S_X, 64, 2621440), (S_WQKV, 66, 2457600), (S_WO, 68, 819200), (S_WG, 72, 1966080),
                          (S_WU, 74, 1966080), (S_WD, 76, 1966080), (S_OUT, 78, 2621440), (S_WS, 82, WS_SIZE),
                          (S_DBG, 80, 256)):
        k(f's_mov_b32 s{sr}, s{src}')
        k(f's_and_b32 s{sr+1}, s{src+1}, 0xffff')
        k(f's_mov_b32 s{sr+2}, {size}')
        k(f's_mov_b32 s{sr+3}, 0x00020000')
    k(f's_or_b32 s60, s2, s{S_W}')
    k('s_cmp_eq_u32 s60, 0')
    k(f's_cselect_b32 s61, 0, 0x10000')
    k('s_or_b32 s60, s84, 1')
    k('v_mov_b32 v2, s60')
    k('v_mov_b32 v3, 0')
    k('s_mov_b64 exec, 1')
    k(f'buffer_store_dword v2, v3, s[{S_DBG}:{S_DBG+3}], s61 offen sc1')
    k('s_mov_b64 exec, -1')


def tile1(k):
    k(f's_and_b32 s47, s{S_X8}, 3')
    k(f's_lshr_b32 s46, s{S_X8}, 2')
    k('s_mul_i32 s46, s46, 30')
    k(f's_add_u32 s46, s46, s{S_I32}')
    k('s_lshr_b32 s44, s46, 2')
    k('s_and_b32 s46, s46, 3')
    k('s_lshl_b32 s47, s47, 2')
    k('s_add_u32 s45, s47, s46')
    k('s_add_u32 s56, s45, s44')
    for _ in range(2):
        k('s_sub_u32 s47, s56, 10')
        k('s_cmp_ge_u32 s56, 10')
        k('s_cselect_b32 s56, s47, s56')
    k('s_lshl_b32 s46, s45, 7')
    k(f's_lshl_b32 s47, s{S_W4}, 5')
    k('s_add_u32 s46, s46, s47')


def tile35(k, srt, sct, st):
    k(f's_and_b32 s{st}, s{S_X8}, 3')
    k(f's_lshl_b32 s{st}, s{st}, 3')
    k(f's_and_b32 s{srt}, s{S_I32}, 7')
    k(f's_add_u32 s{srt}, s{srt}, s{st}')
    k(f's_lshr_b32 s{st}, s{S_X8}, 2')
    k(f's_lshl_b32 s{st}, s{st}, 2')
    k(f's_lshr_b32 s{sct}, s{S_I32}, 3')
    k(f's_add_u32 s{sct}, s{sct}, s{st}')


def tile4(k, smt, sft, st):
    k(f's_and_b32 s{st}, s{S_X8}, 1')
    k(f's_lshl_b32 s{st}, s{st}, 3')
    k(f's_and_b32 s{smt}, s{S_I32}, 7')
    k(f's_add_u32 s{smt}, s{smt}, s{st}')
    k(f's_lshr_b32 s{st}, s{S_X8}, 1')
    k(f's_lshl_b32 s{st}, s{st}, 2')
    k(f's_lshr_b32 s{sft}, s{S_I32}, 3')
    k(f's_add_u32 s{sft}, s{sft}, s{st}')


def strip_id(k, sd):
    k(f's_and_b32 s{sd}, s{S_X8}, 1')
    k(f's_mul_i32 s{sd}, s{sd}, 1536')
    k(f's_lshr_b32 s61, s{S_X8}, 1')
    k('s_mul_i32 s61, s61, 384')
    k(f's_add_u32 s{sd}, s{sd}, s61')
    k(f's_lshl_b32 s61, s{S_I32}, 5')
    k(f's_add_u32 s{sd}, s{sd}, s61')


def clear_ops(k, vs, va):
    ops = []

    def o1():
        k(f's_and_b32 s60, s{S_I32}, 3')
        k(f's_lshl_b32 s61, s{S_X8}, 2')
        k('s_add_u32 s60, s60, s61')
        k('s_and_b32 s65, s60, 1')
        k('s_lshr_b32 s60, s60, 1')
        k('s_mul_i32 s60, s60, 5')
        k('s_lshl_b32 s60, s60, 15')
        k(f's_lshr_b32 s61, s{S_I32}, 2')
        k('s_lshl_b32 s61, s61, 12')
        k('s_add_u32 s60, s60, s61')
        k(f's_lshl_b32 s61, s{S_W4}, 10')
        k('s_add_u32 s60, s60, s61')
        k(f's_add_u32 s64, s60, {WS_OC}')
        k(f's_mul_i32 s61, s65, {3*32768}')
        k('s_add_u32 s66, s64, s61')
        k(f'buffer_store_dwordx4 {v(vs,4)}, v{va}, {WSR}, s66 offen sc1')

    def o2():
        k('s_add_u32 s60, s66, 32768')
        k(f'buffer_store_dwordx4 {v(vs,4)}, v{va}, {WSR}, s60 offen sc1')

    def o3():
        k('s_lshl_b32 s61, s65, 3')
        k('s_add_u32 s60, s64, s61')
        k('s_add_u32 s60, s60, 65536')
        k(f'buffer_store_dwordx2 {v(vs,2)}, v{va}, {WSR}, s60 offen sc1')

    def h1():
        tile35(k, 60, 61, 64)
        k('s_lshl_b32 s67, s61, 14')
        k('s_lshl_b32 s64, s60, 9')
        k('s_add_u32 s67, s67, s64')
        k(f's_add_u32 s67, s67, {WS_HS}')
        k('s_mul_i32 s61, s61, 10')
        k(f's_add_u32 s61, s61, s{S_W4}')
        k('s_lshl_b32 s61, s61, 15')
        k('s_lshl_b32 s60, s60, 10')
        k('s_add_u32 s64, s61, s60')
        k(f's_add_u32 s64, s64, {WS_H1}')
        k(f'buffer_store_dwordx4 {v(vs,4)}, v{va}, {WSR}, s64 offen sc1')

    def h2():
        k(f's_add_u32 s60, s64, {4*32768}')
        k(f'buffer_store_dwordx4 {v(vs,4)}, v{va}, {WSR}, s60 offen sc1')

    def h3():
        k(f's_add_u32 s60, s64, {8*32768}')
        k(f's_mov_b32 s65, {OOB}')
        k(f's_cmp_lt_u32 s{S_W4}, 2')
        k('s_cselect_b32 s60, s60, s65')
        k(f'buffer_store_dwordx4 {v(vs,4)}, v{va}, {WSR}, s60 offen sc1')

    def h4():
        k(f's_cmp_eq_u32 s{S_W4}, 2')
        k('s_cselect_b32 s60, s67, s65')
        k(f'buffer_store_dwordx2 {v(vs,2)}, v{va+1}, {WSR}, s60 offen sc1')

    def c1():
        tile4(k, 60, 61, 64)
        k('s_mul_i32 s61, s61, 384')
        k('s_mul_i32 s64, s60, 12288')
        k('s_add_u32 s61, s61, s64')
        k(f's_mul_i32 s64, s{S_W4}, 6144')
        k('s_add_u32 s61, s61, s64')
        k(f's_add_u32 s61, s61, {WS_PCS}')
        k('s_cmp_lt_u32 s60, 10')
        k('s_cselect_b32 s61, s61, s65')
        k(f's_cmp_lt_u32 s{S_W4}, 2')
        k('s_cselect_b32 s61, s61, s65')
        k('s_mov_b64 exec, 0xffffff')
        k(f'buffer_store_dwordx4 {v(vs,4)}, v{va}, {WSR}, s61 offen sc1')
        k('s_mov_b64 exec, -1')
    return [o1, o2, o3, h1, h2, h3, h4, c1]


def sparse_prefetch(k, srd, rows_per_wg, lines, pitch, colbytes_expr, va, vd, nthreads_needed):
    magic = {5: 13108, 6: 10923}[lines]
    k(f'v_mul_u32_u24 v{vd}, {magic}, v0')
    k(f'v_lshrrev_b32 v{vd}, 16, v{vd}')
    k(f'v_mul_u32_u24 v{vd}, {pitch-lines*128}, v{vd}')
    k(f'v_lshl_add_u32 v{va}, v0, 7, v{vd}')
    k(f's_mul_i32 s60, s{S_I32}, {rows_per_wg*pitch}')
    colbytes_expr()
    k('s_add_u32 s60, s60, s61')
    nw = (nthreads_needed + 63) // 64
    if nw < 4:
        k(f's_mov_b32 s61, {OOB}')
        k(f's_cmp_lt_u32 s{S_W4}, {nw}')
        k('s_cselect_b32 s60, s60, s61')
    for sr in srd:
        k(f'buffer_load_dword v{vd}, v{va}, s[{sr}:{sr+3}], s60 offen')


def pf_wo(k, va, vd):
    def cb():
        k(f's_lshr_b32 s61, s{S_X8}, 2')
        k('s_mul_i32 s61, s61, 640')
    sparse_prefetch(k, [S_WO], 20, 5, 1280, cb, va, vd, 100)


def pf_wd(k, va, vd):
    def cb():
        k(f's_lshr_b32 s61, s{S_X8}, 2')
        k('s_mul_i32 s61, s61, 640')
    sparse_prefetch(k, [S_WD], 48, 5, 1280, cb, va, vd, 240)


def pf_wgu(k, va, vd):
    def cb():
        k(f's_lshr_b32 s61, s{S_X8}, 1')
        k('s_mul_i32 s61, s61, 768')
    sparse_prefetch(k, [S_WG, S_WU], 20, 6, 3072, cb, va, vd, 120)


P1_R, P1_SLOT = 4, 32768


def p1_loader(k, g3):
    tile1(k)
    S_NT, S_TOK, S_LW, S_SIG = 44, 46, 48, 55
    lab_h, lab_e = k.newlabel('L_HELP'), k.newlabel('L_P1E')
    k(f's_cmp_ge_u32 s{S_I32}, 30')
    k(f's_cbranch_scc1 {lab_h}')
    k('s_cmp_ge_u32 s56, 5')
    k(f's_cselect_b32 s{S_SIG}, 5, 0')
    k('v_lshrrev_b32 v10, 3, v1')
    k(f'v_add_u32 v10, s{S_TOK}, v10')
    k('v_mul_u32_u24 v10, 1280, v10')
    k('v_and_b32 v11, 7, v1')
    k('v_lshrrev_b32 v12, 4, v1')
    k('v_xor_b32 v11, v11, v12')
    k('v_xor_b32 v13, 4, v11')
    k('v_lshl_add_u32 v2, v11, 4, v10')
    k('v_lshl_add_u32 v3, v13, 4, v10')
    k(f'v_add_u32 v3, {10240-1024}, v3')
    k(f'v_add_u32 v4, {2*(10240-1024)}, v2')
    k(f'v_add_u32 v5, {2*(10240-1024)}, v3')
    k(f's_lshl_b32 s47, s{S_W4}, 4')
    k('v_add_u32 v10, s47, v12')
    k('v_mul_u32_u24 v10, 3840, v10')
    k(f's_lshl_b32 s47, s{S_NT}, 8')
    k('v_add_u32 v10, s47, v10')
    k('v_bfe_u32 v11, v1, 2, 2')
    k('v_xor_b32 v11, v11, v12')
    k('v_lshl_add_u32 v10, v11, 6, v10')
    k('v_and_b32 v11, 3, v1')
    k('v_lshl_add_u32 v6, v11, 4, v10')
    for i in range(1, 4):
        k(f'v_add_u32 v{6+i}, {i*(4*3840-1024)}, v6')
    k(f's_lshl_b32 s{S_LW}, s{S_W4}, 12')
    tok = {}

    def issue(st):
        slot = st % P1_R
        k(f's_add_u32 m0, s{S_LW}, {slot*P1_SLOT}')
        k(f's_lshl_b32 s49, s{S_SIG}, 7')
        for i in range(4):
            k(f'buffer_load_dwordx4 v{2+i}, s[{S_X}:{S_X+3}], s49 offen offset:{i*1024} lds')
        k(f's_add_u32 m0, s{S_LW}, {slot*P1_SLOT+16384}')
        k(f's_mul_i32 s50, s{S_SIG}, {64*3840}')
        k(f's_add_u32 s{S_SIG}, s{S_SIG}, 1')
        k(f's_cmp_eq_u32 s{S_SIG}, 10')
        k(f's_cselect_b32 s{S_SIG}, 0, s{S_SIG}')
        for i in range(4):
            tok[st] = k(f'buffer_load_dwordx4 v{6+i}, s[{S_WQKV}:{S_WQKV+3}], s50 offen offset:{i*1024} lds')
    issue(0)
    issue(1)
    stamp(k, 1)
    k.wait(tok[0])
    k('s_barrier')
    stamp(k, 2)
    issue(2)
    issue(3)
    for st in range(1, 10):
        k.wait(tok[st])
        k('s_barrier')
        if st + 3 < 10:
            issue(st + 3)
        if st == 6:
            stamp(k, 3)
            pf_wo(k, 20, 21)
    k(f's_branch {lab_e}')
    k.label(lab_h)
    for st in range(10):
        k('s_barrier')
    pf_wo(k, 20, 21)
    k.label(lab_e)
    join(k)
    g3.dma_setup(24)
    nonce_from_lds(k, 22)
    p2_setup(k)
    stamp(k, 9)
    k('s_barrier')
    k('s_barrier')
    stamp(k, 10)
    NPRE = OPT.get('wopre', 5)
    for st in range(NPRE):
        runall(k, g3.dma_step(st))
    stamp(k, 11)
    g3.pending = [f for st in range(NPRE, 5) for f in g3.dma_step(st)]
    g3.pending_steps = list(range(NPRE, 5))


def p1_compute(k):
    tile1(k)
    S_NT, S_MT, S_TOK, S_LW, S_RHO = 44, 45, 46, 48, 56
    k(f's_lshl_b32 s{S_LW}, s{S_W4}, 12')
    for i in range(4):
        k(f'v_mov_b32 v{96+i}, -1')
    k('v_lshlrev_b32 v100, 4, v1')
    k('v_lshlrev_b32 v101, 3, v1')
    k('v_and_b32 v40, 31, v1')
    k('v_lshlrev_b32 v109, 3, v40')
    k('v_lshlrev_b32 v102, 2, v40')
    k(f's_lshl_b32 s51, s{S_RHO}, 14')
    k(f's_lshl_b32 s47, s{S_TOK}, 3')
    k('s_add_u32 s51, s51, s47')
    k(f's_add_u32 s51, s51, {WS_PS}')
    k(f's_mov_b32 s47, {OOB}')
    k(f's_cmp_lt_u32 s{S_NT}, 10')
    k('s_cselect_b32 s51, s51, s47')
    k(f's_mul_i32 s52, s{S_RHO}, 7680')
    k(f's_lshl_b32 s49, s{S_NT}, 9')
    k('s_add_u32 s52, s52, s49')
    k(f's_lshl_b32 s49, s{S_W4}, 7')
    k('s_add_u32 s52, s52, s49')
    k(f's_add_u32 s52, s52, {WS_PC}')
    k(f's_cmp_lt_u32 s{S_MT}, 10')
    k('s_cselect_b32 s52, s52, s47')
    k(f's_cmp_lt_u32 s{S_I32}, 30')
    k('s_cselect_b32 s51, s51, s47')
    k('s_cselect_b32 s52, s52, s47')
    k(f'buffer_store_dwordx2 {v(96,2)}, v109, {WSR}, s51 offen sc1')
    k(f'buffer_store_dword v96, v102, {WSR}, s52 offen sc1')
    NV = 252
    if OPT.get('warm', 0):
        k('v_lshlrev_b32 v110, 7, v1')
        k('s_mul_i32 s60, s2, 10240')
        k(f's_lshl_b32 s61, s{S_W4}, 13')
        k('s_add_u32 s60, s60, s61')
        k(f's_mov_b32 s61, {OOB}')
        k(f's_cmp_lt_u32 s{S_W4}, 2')
        k('s_cselect_b32 s60, s60, s61')
        k(f'buffer_load_dword v111, v110, s[{S_X}:{S_X+3}], s60 offen')
        k('s_mul_i32 s60, s2, 9600')
        k(f's_sub_u32 s64, s{S_W4}, 2')
        k('s_lshl_b32 s64, s64, 13')
        k('s_add_u32 s60, s60, s64')
        k(f's_cmp_ge_u32 s{S_W4}, 2')
        k('s_cselect_b32 s60, s60, s61')
        k(f'buffer_load_dword v111, v110, s[{S_WQKV}:{S_WQKV+3}], s60 offen')
    k('v_lshrrev_b32 v41, 5, v1')
    k('v_bfe_u32 v42, v1, 1, 3')
    k('v_xor_b32 v42, v42, v41')
    k('v_lshlrev_b32 v43, 7, v40')
    k('v_lshl_add_u32 v43, v42, 4, v43')
    k(f'v_add_u32 v10, s{S_LW}, v43')
    for ks in range(1, 4):
        k(f'v_xor_b32 v{10+ks}, {ks*32}, v10')
    k('v_bfe_u32 v42, v1, 2, 2')
    k('v_lshl_add_u32 v43, v41, 3, v42')
    k('v_lshlrev_b32 v43, 8, v43')
    k('v_bfe_u32 v44, v1, 4, 1')
    k('v_lshl_add_u32 v43, v44, 5, v43')
    k('v_and_b32 v44, 3, v1')
    k('v_lshl_add_u32 v43, v44, 3, v43')
    k('v_add_u32 v43, 16384, v43')
    for j in range(4):
        k(f's_add_u32 s49, s{S_W4}, {j}')
        k('s_and_b32 s49, s49, 3')
        k('v_xor_b32 v44, s49, v42')
        k(f'v_lshl_add_u32 v{14+j}, v44, 6, v43')
    for i in range(8):
        k(f'v_add_u32 v{18+i}, 65536, v{10+i}')
    VSUM, VSQ, VCS, VONE = 34, 35, 36, 37
    k(f'v_mov_b32 v{VSUM}, 0')
    k(f'v_mov_b32 v{VSQ}, 0')
    k(f'v_mov_b32 v{VCS}, 0')
    k(f'v_mov_b32 v{VONE}, 0x3f803f80')
    k('v_lshrrev_b32 v105, 5, v1')
    k(f'v_mul_u32_u24 v103, {5*16384}, v105')
    k('v_add_u32 v103, v103, v109')
    k(f'v_mul_u32_u24 v104, {5*7680}, v105')
    k('v_add_u32 v104, v104, v102')
    k(f's_lshl_b32 s53, s{S_TOK}, 3')
    k(f's_add_u32 s53, s53, {WS_PS}')
    k(f's_lshl_b32 s54, s{S_NT}, 9')
    k(f's_lshl_b32 s49, s{S_W4}, 7')
    k('s_add_u32 s54, s54, s49')
    k(f's_add_u32 s54, s54, {WS_PC}')
    k('s_sub_u32 s55, s56, 5')
    k('s_cmp_ge_u32 s56, 5')
    k('s_cselect_b32 s55, s55, s56')
    XF, WF, ACC = 40, 48, 128
    PR, PCR, FL = 232, 242, 248
    stamp(k, 1)
    lab_n = k.newlabel('NSKIP')
    k(f's_cmp_lg_u32 s{S_W}, 0')
    k(f's_cbranch_scc1 {lab_n}')
    k('s_sleep 16')
    sn_ = k.snap()
    ntok = nonce_issue(k, NV)
    nonce_check(k, NV, ntok)
    k(f'v_mov_b32 v{NV}, s{S_NONCE}')
    k(f'v_mov_b32 v{NV+1}, {XNONCE}')
    k(f'ds_write_b32 v{NV+1}, v{NV}')
    k.restore(sn_)
    k.label(lab_n)
    k.wait_all()
    stamp(k, 2)
    k('s_barrier')
    rflag_store(k, WS_F0, 2, 107, 108)
    nonce_from_lds(k, 107)
    stamp(k, 3)
    lab_v, lab_h, lab_done = k.newlabel('P1_V'), k.newlabel('C_HELP'), k.newlabel('C_P1D')
    k(f's_cmp_ge_u32 s{S_I32}, 30')
    k(f's_cbranch_scc1 {lab_h}')
    k(f's_cmp_ge_u32 s{S_NT}, 10')
    k(f's_cbranch_scc1 {lab_v}')
    saved = k.snap()
    T = {}

    def part_loads(c):
        for n in range(5):
            c(f's_add_u32 s58, s53, {n*16384}')
            c(f'buffer_load_dwordx2 {v(PR+2*n,2)}, v103, {WSR}, s58 offen sc1')
        tok = None
        for n in range(5):
            c(f's_add_u32 s58, s54, {n*7680}')
            tok = c(f'buffer_load_dword v{PCR+n}, v104, {WSR}, s58 offen sc1')
        return tok

    def mainloop(transposed):
        rd = {}

        def reads(kk):
            st, ks = kk // 4, kk % 4
            slot = st % P1_R
            q, so = slot // 2, (slot % 2) * P1_SLOT
            b = kk % 2
            ops = [[] for _ in range(4)]
            ops[0].append(lambda: rd.__setitem__((kk, 'x'), k(
                f'ds_read_b128 {v(XF+4*b,4)}, v{10+8*q+ks} offset:{so}')))
            for j in range(4):
                for hf in range(2):
                    ops[j].append(lambda j=j, hf=hf: rd.__setitem__((kk, j), k(
                        f'ds_read_b64_tr_b16 {v(WF+16*b+4*j+2*hf,2)}, v{14+8*q+j} offset:{so+ks*4096+hf*1024}')))
            return ops
        for l_ in reads(0):
            runall(k, l_)
        clr = clear_ops(k, 96, 100)
        for kk in range(40):
            b = kk % 2
            if kk % 8 == 4:
                stamp(k, 4 + kk // 8)
            fill, rds = [], []
            if kk >= OPT.get('clr0', 31) and clr:
                fill.append(clr.pop(0))
            if kk + 1 < 40:
                if (kk + 1) % 4 == 0:
                    k.wait_all(vm=False)
                    k('s_barrier')
                rds = reads(kk + 1)
            if kk < 20:
                def dots(b=b, kk=kk):
                    for i in range(4):
                        k(f'v_dot2_f32_bf16 v{VSUM}, v{XF+4*b+i}, v{VONE}, v{VSUM}')
                        k(f'v_dot2_f32_bf16 v{VSQ}, v{XF+4*b+i}, v{XF+4*b+i}, v{VSQ}')
                        k(f'v_dot2_f32_bf16 v{VCS}, v{WF+16*b+i}, v{VONE}, v{VCS}')
                    if kk % 4 == 3:
                        xsum(k, VSUM, 80, 81)
                        xsum(k, VSQ, 80, 81)
                        xsum(k, VCS, 80, 81)
                        k.raw(f'    buffer_store_dwordx2 {v(VSUM,2)}, v109, {WSR}, s51 offen sc1')
                        k.raw(f'    buffer_store_dword v{VCS}, v102, {WSR}, s52 offen sc1')

                def g_(dots=dots, kk=kk):
                    k(f's_cmp_eq_u32 s55, {kk//4}')
                    k.outline('s_cbranch_scc1', dots)
                fill.append(g_)
            if kk == 22:
                fill.append(lambda: T.__setitem__('flags', flags_issue(k, WS_F0, FL, 106)))
            if kk == 30:
                def f():
                    flags_check(k, WS_F0, FL, 106, T['flags'])
                    T['part'] = part_loads(k)
                fill.append(f)
            if kk == 38:
                fill.append(lambda: finalize(transposed))
            mf = []
            for j in range(4):
                c = '0' if kk == 0 else v(ACC + 16 * j, 16)
                A_, B_ = v(WF + 16 * b + 4 * j, 4), v(XF + 4 * b, 4)
                if not transposed:
                    A_, B_ = B_, A_
                mf.append((lambda j=j: [rd[kk, 'x'], rd[kk, j]],
                           f'v_mfma_f32_32x32x16_bf16 {v(ACC+16*j,16)}, {A_}, {B_}, {c}'))
            roll_step(k, mf, rds, fill)

    def finalize(transposed):
        k.wait(T['part'])
        check_group(k, list(range(PR, PR + 10)) + list(range(PCR, PCR + 5)), 80, part_loads)
        for n in range(1, 5):
            k(f'v_pk_add_f32 {v(PR,2)}, {v(PR,2)}, {v(PR+2*n,2)}')
            k(f'v_add_f32 v{PCR}, v{PCR}, v{PCR+n}')
        xsum(k, PCR, 80, 81)
        k(f's_lshl_b32 s49, s{S_W4}, 7')
        k(f's_add_u32 s49, s49, {XCH}')
        k('v_add_u32 v82, s49, v102')
        k(f'ds_write_b32 v82, v{PCR}')
        vsum, vsq = PR, PR + 1
        xsum(k, vsum, 80, 81)
        xsum(k, vsq, 80, 81)
        k(f'v_mul_f32 v{vsum}, {f32(1.0/640)}, v{vsum}')
        k(f'v_mul_f32 v{vsq}, {f32(1.0/640)}, v{vsq}')
        k(f'v_fma_f32 v{vsq}, -v{vsum}, v{vsum}, v{vsq}')
        k(f'v_max_f32 v{vsq}, 0, v{vsq}')
        rbf(k, 80, vsum)
        rbf(k, 81, vsq)
        k(f'v_add_f32 v81, {f32(1e-5)}, v81')
        rbf(k, 81, 81)
        k('v_sqrt_f32 v81, v81')
        rbf(k, 81, 81)
        k('v_rcp_f32 v38, v81')
        if transposed:
            k(f's_mov_b32 s49, {f32(math.log2(math.e)/math.sqrt(20.0))}')
            k(f's_cmp_lt_u32 s{S_NT}, 5')
            k('s_cselect_b32 s49, s49, 1.0')
            k('v_mul_f32 v38, s49, v38')
        k('v_mul_f32 v39, v80, v38')
        k('v_sub_f32 v39, 0, v39')
        if not transposed:
            k(f's_lshl_b32 s49, s{S_W4}, 8')
            k(f's_add_u32 s49, s49, {XCH}')
            k('v_add_u32 v83, s49, v102')
            k('ds_write_b32 v83, v38 offset:1024')
            k('ds_write_b32 v83, v39 offset:1152')

    def fin():
        stamp(k, 10)
        k(f's_lshl_b32 s49, s{S_MT}, 4')
        k(f's_add_u32 s49, s49, s{S_NT}')
        k.wait_all()
        k('s_barrier')
        rflag_store(k, WS_F2, 49, 80, 81)
        k(f's_branch {lab_done}')

    mainloop(True)
    stamp(k, 9)
    k.wait_all(vm=False)
    k('s_barrier')
    k(f's_lshl_b32 s49, s{S_TOK}, 3')
    k('v_add_u32 v84, s49, v109')
    k('v_lshl_add_u32 v84, v105, 14, v84')
    k('v_lshlrev_b32 v85, 4, v105')
    k(f'v_add_u32 v85, {XCH}, v85')
    toks = {}

    def csreads(j):
        k(f's_add_u32 s49, s{S_W4}, {j}')
        k('s_and_b32 s49, s49, 3')
        k('s_lshl_b32 s52, s49, 7')
        k('v_add_u32 v86, s52, v85')
        for a_ in range(4):
            toks[j, a_] = k(f'ds_read_b128 {v(192+16*(j%2)+4*a_,4)}, v86 offset:{a_*32}')
    csreads(0)
    csreads(1)
    for j in range(4):
        k(f's_add_u32 s49, s{S_W4}, {j}')
        k('s_and_b32 s49, s49, 3')
        k(f's_lshl_b32 s52, s{S_NT}, 5')
        k('s_lshl_b32 s53, s49, 3')
        k('s_add_u32 s52, s52, s53')
        k('s_lshl_b32 s52, s52, 14')
        C0 = 192 + 16 * (j % 2)
        for a_ in range(4):
            k.wait(toks[j, a_])
            r0 = ACC + 16 * j + 4 * a_
            for p in range(2):
                k(f'v_pk_mul_f32 {v(C0+4*a_+2*p,2)}, {v(C0+4*a_+2*p,2)}, {v(38,2)} op_sel:[0,1] op_sel_hi:[1,1]')
                k(f'v_pk_fma_f32 {v(r0+2*p,2)}, {v(r0+2*p,2)}, {v(38,2)}, {v(C0+4*a_+2*p,2)} op_sel_hi:[1,0,1]')
            k(f'v_cvt_pk_bf16_f32 v{112+2*a_}, v{r0}, v{r0+1}')
            k(f'v_cvt_pk_bf16_f32 v{113+2*a_}, v{r0+2}, v{r0+3}')
            k(f's_add_u32 s53, s52, {WS_QG + a_*32768}')
            k(f'buffer_store_dwordx2 {v(112+2*a_,2)}, v84, {WSR}, s53 offen sc1')
        if j + 2 < 4:
            csreads(j + 2)
    fin()
    k.label(lab_v)
    k.restore(saved)
    mainloop(False)
    stamp(k, 9)
    k.wait_all(vm=False)
    k('s_barrier')
    k(f's_lshl_b32 s49, s{S_W4}, 8')
    k(f's_add_u32 s49, s49, {XCH}')
    k('v_lshlrev_b32 v86, 4, v105')
    k('v_add_u32 v86, s49, v86')
    tl = []
    for a_ in range(4):
        tl.append(k(f'ds_read_b128 {v(192+4*a_,4)}, v86 offset:{1024+a_*32}'))
        tl.append(k(f'ds_read_b128 {v(208+4*a_,4)}, v86 offset:{1152+a_*32}'))
    for j in range(4):
        k(f's_add_u32 s52, s{S_W4}, {j}')
        k('s_and_b32 s52, s52, 3')
        k('s_lshl_b32 s52, s52, 7')
        k(f's_add_u32 s52, s52, {XCH}')
        k('v_add_u32 v87, s52, v102')
        tl.append(k(f'ds_read_b32 v{224+2*j}, v87'))
    k('v_mul_u32_u24 v84, 10240, v105')
    k('v_lshl_add_u32 v84, v102, 2, v84')
    k(f's_lshr_b32 s53, s{S_TOK}, 5')
    k('s_mul_i32 s53, s53, 40960')
    k(f's_sub_u32 s54, s{S_NT}, 10')
    k('s_lshl_b32 s54, s54, 11')
    k('s_add_u32 s53, s53, s54')
    k(f's_add_u32 s53, s53, {WS_VF}')
    k.wait(*tl)
    for j in range(4):
        k(f's_add_u32 s52, s{S_W4}, {j}')
        k('s_and_b32 s52, s52, 3')
        k('s_lshl_b32 s52, s52, 9')
        k('s_add_u32 s52, s52, s53')
        for m in range(2):
            for p in range(4):
                i = 8 * m + 2 * p
                r0 = ACC + 16 * j + i
                k(f'v_pk_mul_f32 {v(88+2*(p%2),2)}, {v(208+i,2)}, {v(224+2*j,2)} op_sel_hi:[1,0]')
                k(f'v_pk_fma_f32 {v(r0,2)}, {v(r0,2)}, {v(192+i,2)}, {v(88+2*(p%2),2)}')
                k(f'v_cvt_pk_bf16_f32 v{112+8*(j%2)+4*m+p}, v{r0}, v{r0+1}')
            k(f's_add_u32 s54, s52, {m*20480}')
            k(f'buffer_store_dwordx4 {v(112+8*(j%2)+4*m,4)}, v84, {WSR}, s54 offen sc1')
    fin()
    k.label(lab_h)
    k.restore(saved)
    for _ in range(9):
        k('s_barrier')
    runall(k, clear_ops(k, 96, 100))
    k('s_barrier')
    k(f's_lshl_b32 s49, s{S_X8}, 1')
    k(f's_add_u32 s49, s49, s{S_I32}')
    k('s_sub_u32 s49, s49, 30')
    k('s_lshl_b32 s49, s49, 4')
    k('s_add_u32 s49, s49, 15')
    k.wait_all()
    k('s_barrier')
    rflag_store(k, WS_F2, 49, 80, 81)
    k.label(lab_done)


class G35:
    def __init__(self, k, which, groups, vb, sb):
        self.k = k
        self.which = which
        self.KT = 640 if which == 3 else 1536
        self.NST = self.KT // 128
        self.SB = S_WO if which == 3 else S_WD
        self.groups = groups
        self.vb = vb
        self.sb = sb
        self.btok = {}
        self.rtok = {}

    def dma_setup(self, t0):
        k, vb, sb = self.k, self.vb, self.sb
        tile35(k, 61, 60, sb)
        k('s_and_b32 s61, s60, 1')
        k('s_mul_i32 s60, s60, 160')
        k(f'v_lshrrev_b32 v{t0}, 3, v1')
        k(f'v_bfe_u32 v{t0+1}, v1, 1, 2')
        k(f'v_bfe_u32 v{t0+2}, v1, 4, 1')
        k(f'v_xor_b32 v{t0+1}, v{t0+1}, v{t0+2}')
        k(f'v_xor_b32 v{t0+3}, 2, v{t0+1}')
        k(f's_mul_i32 s{sb+1}, s{S_W4}, {self.KT//4}')
        k(f'v_add_u32 v{t0}, s{sb+1}, v{t0}')
        k(f'v_mul_u32_u24 v{t0}, 1280, v{t0}')
        k(f's_lshl_b32 s{sb}, s61, 5')
        k(f's_add_u32 s{sb}, s{sb}, s60')
        k(f'v_add_u32 v{t0}, s{sb}, v{t0}')
        k(f'v_and_b32 v{t0+4}, 1, v1')
        k(f'v_lshl_add_u32 v{t0}, v{t0+4}, 4, v{t0}')
        k(f'v_lshl_add_u32 v{vb}, v{t0+1}, 5, v{t0}')
        k(f'v_lshl_add_u32 v{vb+1}, v{t0+3}, 5, v{t0}')
        k(f'v_add_u32 v{vb+1}, {10240-1024}, v{vb+1}')
        k(f'v_add_u32 v{vb+2}, {2*(10240-1024)}, v{vb}')
        k(f'v_add_u32 v{vb+3}, {2*(10240-1024)}, v{vb+1}')
        k(f'v_lshrrev_b32 v{t0}, 1, v1')
        k(f'v_lshlrev_b32 v{t0+2}, 2, v{t0+2}')
        k(f'v_xor_b32 v{t0}, v{t0}, v{t0+2}')
        k(f'v_add_u32 v{t0}, s{sb+1}, v{t0}')
        k(f'v_mul_u32_u24 v{t0}, 1280, v{t0}')
        k(f's_lshl_b32 s{sb}, s61, 7')
        k(f's_sub_u32 s{sb}, 128, s{sb}')
        k(f's_add_u32 s{sb}, s{sb}, s60')
        k(f'v_add_u32 v{t0}, s{sb}, v{t0}')
        k(f'v_lshl_add_u32 v{vb+4}, v{t0+4}, 4, v{t0}')
        k(f's_mul_i32 s{sb}, s{S_W4}, 5120')

    def dma_step(self, st):
        k, vb, sb = self.k, self.vb, self.sb
        base = self.groups[st % len(self.groups)]
        SB = self.SB
        ops = []

        def f0():
            k(f's_add_u32 m0, s{sb}, {base}')
            k(f's_mov_b32 s{sb+1}, {st*32*1280}')
        ops.append(f0)
        for n in range(4):
            ops.append(lambda n=n: self.btok.__setitem__(st, k(
                f'buffer_load_dwordx4 v{vb+n}, s[{SB}:{SB+3}], s{sb+1} offen offset:{n*1024} lds')))
        ops.append(lambda: k(f's_add_u32 m0, s{sb}, {base+4096}'))
        ops.append(lambda: self.btok.__setitem__(st, k(
            f'buffer_load_dwordx4 v{vb+4}, s[{SB}:{SB+3}], s{sb+1} offen lds')))
        return ops

    def breg_load(self, st, r0):
        k, vb, sb, SB = self.k, self.vb, self.sb, self.SB
        k(f's_mov_b32 s{sb+1}, {st*32*1280}')
        for n in range(4):
            k(f'buffer_load_dwordx4 {v(r0+4*n,4)}, v{vb+n}, s[{SB}:{SB+3}], s{sb+1} offen offset:{n*1024}')
        self.rtok[st] = (k(f'buffer_load_dwordx4 {v(r0+16,4)}, v{vb+4}, s[{SB}:{SB+3}], s{sb+1} offen'), r0)

    def breg_write(self, st, va):
        k = self.k
        tok, r0 = self.rtok[st]
        base = self.groups[st % len(self.groups)]
        q, so = base // 61440, base % 61440
        k.wait(tok)
        for n in range(5):
            self.btok[st] = k(f'ds_write_b128 v{va+q}, {v(r0+4*n,4)} offset:{so+n*1024}')

    def loader(self, nb_pre, st0=0):
        k, NST = self.k, self.NST
        NG = len(self.groups)
        k('v_lshlrev_b32 v12, 4, v1')
        k(f's_mul_i32 s46, s{S_W4}, 5120')
        k('v_add_u32 v21, s46, v12')
        k('v_add_u32 v22, 61440, v21')
        k('v_add_u32 v23, 122880, v21')
        stamp(k, st0)
        k('s_barrier')
        stamp(k, st0 + 1)
        nb = nb_pre
        for st in range(NST):
            k.wait(self.btok[st])
            k('s_barrier')
            if nb < NST and nb - NG <= st - 1:
                if nb in self.rtok:
                    self.breg_write(nb, 21)
                else:
                    runall(k, self.dma_step(nb))
                nb += 1
        stamp(k, st0 + 3)

    def compute(self, own_tok, st0=0):
        k, NST, which, KT = self.k, self.NST, self.which, self.KT
        NG = len(self.groups)
        ABASE = WS_OC if which == 3 else WS_HC
        S_RT, S_CT, S_PAR = 44, 45, 50
        tile35(k, 44, 45, 46)
        k('s_and_b32 s50, s45, 1')
        k(f's_mul_i32 s51, s{S_W4}, 5120')
        k('v_and_b32 v15, 15, v1')
        k('v_lshrrev_b32 v16, 4, v1')
        k('v_bfe_u32 v17, v1, 2, 2')
        k('v_lshl_add_u32 v18, v16, 3, v17')
        k('v_bfe_u32 v19, v1, 3, 1')
        k('v_bfe_u32 v20, v1, 4, 1')
        k('v_lshl_add_u32 v19, v20, 1, v19')
        k('v_and_b32 v21, 3, v1')
        k('v_lshlrev_b32 v22, 7, v18')
        k('v_lshl_add_u32 v22, v21, 3, v22')
        k('v_add_u32 v22, s51, v22')
        RA = 24
        for jt in range(4):
            k(f'v_xor_b32 v23, {jt}, v19')
            k(f'v_lshl_add_u32 v{RA+jt}, v23, 5, v22')
        k('v_lshlrev_b32 v23, 2, v20')
        k('v_xor_b32 v23, v18, v23')
        k(f'v_lshlrev_b32 v{RA+4}, 5, v23')
        k(f'v_lshl_add_u32 v{RA+4}, v21, 3, v{RA+4}')
        k(f'v_add_u32 v{RA+4}, s51, v{RA+4}')
        k(f'v_add_u32 v{RA+4}, 4096, v{RA+4}')
        k(f'v_xor_b32 v{RA+5}, 128, v{RA+4}')
        QS = 61440
        for q in (1, 2):
            for i in range(6):
                k(f'v_add_u32 v{RA+6*q+i}, {q*QS}, v{RA+i}')
        k('v_lshlrev_b32 v2, 4, v1')
        k('v_lshlrev_b32 v3, 4, v15')
        k('v_lshl_add_u32 v3, v16, 15, v3')
        for tau in range(4):
            k(f's_add_u32 s46, s{S_W4}, {tau}')
            k('s_and_b32 s46, s46, 3')
            k('s_lshl_b32 s46, s46, 8')
            k(f'v_add_u32 v{4+tau}, s46, v3')
        k('s_lshl_b32 s53, s44, 10')
        k(f's_mul_i32 s54, s{S_W4}, {(KT//32)*32768}')
        k('s_add_u32 s53, s53, s54')
        k(f's_add_u32 s53, s53, {ABASE}')
        NW = 5
        AFR = 164
        atok = {}

        def aload(c, st, sreg):
            c(f's_add_u32 s{sreg}, s53, {st*4*32768}')
            t_ = None
            for t in range(4):
                t_ = c(f'buffer_load_dwordx4 {v(AFR+16*(st%NW)+4*t,4)}, v{4+t}, {WSR}, s{sreg} offen sc1')
            return t_
        RES = 244
        k(f's_lshl_b32 s46, s{S_RT}, 6')
        k(f's_lshl_b32 s47, s{S_W4}, 4')
        k('s_add_u32 s46, s46, s47')
        S_TK = 46
        k('v_add_u32 v12, s46, v15')
        if which == 3:
            k('v_mul_u32_u24 v13, 1280, v12')
            k('v_lshl_add_u32 v13, v16, 3, v13')
            k(f's_mul_i32 s47, s{S_CT}, 160')
            k(f's_lshl_b32 s48, s{S_PAR}, 5')
            k('s_add_u32 s48, s48, s47')
            k(f's_lshl_b32 s49, s{S_PAR}, 7')
            k('s_sub_u32 s49, 128, s49')
            k('s_add_u32 s49, s49, s47')
            for jt in range(4):
                k(f'buffer_load_dwordx2 {v(RES+2*jt,2)}, v13, s[{S_X}:{S_X+3}], s48 offen offset:{jt*32}')
            rtk = k(f'buffer_load_dwordx2 {v(RES+8,2)}, v13, s[{S_X}:{S_X+3}], s49 offen')
            stamp(k, st0)
            k.wait(own_tok)
        else:
            k(f's_lshr_b32 s47, s{S_RT}, 1')
            k('s_lshl_b32 s47, s47, 6')
            k(f's_lshl_b32 s48, s{S_X8}, 10')
            k('s_add_u32 s47, s47, s48')
            k(f's_add_u32 s47, s47, {WS_F3}')
            k('v_lshlrev_b32 v13, 2, v15')
            k('s_mov_b64 s[48:49], -1')
            stamp(k, st0)
            rflag_poll(k, 47, 13, 14, 48)
            k('s_barrier')
        stamp(k, st0 + 1)
        ACC, WF = 44, 124
        D = OPT.get('ad', 3)
        for st in range(D):
            atok[st] = aload(k, st, 54)
        rt = {}

        def reads(st):
            base = self.groups[st % NG]
            q, so = base // QS, base % QS
            b = st % 2
            ops = []
            for jt in range(4):
                for hf in range(2):
                    ops.append(lambda jt=jt, hf=hf: rt.__setitem__((st, jt), k(
                        f'ds_read_b64_tr_b16 {v(WF+20*b+4*jt+2*hf,2)}, v{RA+6*q+jt} offset:{so+hf*512}')))
            for hf in range(2):
                ops.append(lambda hf=hf: rt.__setitem__((st, 4), k(
                    f'ds_read_b64_tr_b16 {v(WF+20*b+16+2*hf,2)}, v{RA+6*q+4+hf} offset:{so}')))
            return ops
        if which == 5:
            k('s_barrier')
        runall(k, reads(0))
        na = D
        for st in range(NST):
            b = st % 2
            R0 = AFR + 16 * (st % NW)
            k.wait(atok[st])
            if which == 3:
                check_group(k, range(R0, R0 + 16), 14, lambda c, st=st: aload(c, st, 58))
            if st == 0:
                stamp(k, st0 + 2)
            mf = []
            for t in range(4):
                for jt in range(5):
                    acc = v(ACC + 20 * t + 4 * jt, 4)
                    c = '0' if st == 0 else acc
                    mf.append((lambda jt=jt: [rt[st, jt]],
                               f'v_mfma_f32_16x16x32_bf16 {acc}, {v(WF+20*b+4*jt,4)}, {v(R0+4*t,4)}, {c}'))
            rds = [[] for _ in range(20)]
            cnt = 0
            while na < NST and na <= st + NW - 1 and cnt < 2:
                def al(na=na):
                    k(f's_add_u32 s54, s53, {na*4*32768}')
                rds[0 + 10 * cnt].append(al)
                for t in range(4):
                    rds[0 + 10 * cnt + 2 * t].append(lambda t=t, na=na: atok.__setitem__(na, k(
                        f'buffer_load_dwordx4 {v(AFR+16*(na%NW)+4*t,4)}, v{4+t}, {WSR}, s54 offen sc1')))
                na += 1
                cnt += 1
            if st + 1 < NST:
                if which == 5:
                    def bar():
                        k.wait_all(vm=False)
                        k('s_barrier')
                    rds[5].append(bar)
                for i, f in enumerate(reads(st + 1)):
                    rds[5 + i].append(f)
            roll_step(k, mf, rds, [])
        stamp(k, st0 + 3)
        for tau in range(1, 4):
            k(f's_add_u32 s47, s{S_W4}, {tau}')
            k('s_and_b32 s47, s47, 3')
            k('s_mul_i32 s47, s47, 15360')
            k(f'v_add_u32 v{17+tau}, s47, v2')
        k(f's_mul_i32 s47, s{S_W4}, 15360')
        k('v_add_u32 v21, s47, v2')
        k('s_barrier')
        for tau in range(1, 4):
            for jt in range(5):
                k(f'ds_write_b128 v{17+tau}, {v(ACC+20*tau+4*jt,4)} offset:{(tau-1)*5120+jt*1024}')
        k.wait_all(vm=False)
        k('s_barrier')
        S0, S1 = ACC, 124
        toks = {}
        for sidx in range(3):
            for jt in range(5):
                toks[sidx, jt] = k(f'ds_read_b128 {v(S1+20*sidx+4*jt,4)}, v21 offset:{sidx*5120+jt*1024}')
        for sidx in range(3):
            for jt in range(5):
                k.wait(toks[sidx, jt])
                for p in range(2):
                    r = 4 * jt + 2 * p
                    k(f'v_pk_add_f32 {v(S0+r,2)}, {v(S0+r,2)}, {v(S1+20*sidx+r,2)}')
        if which == 3:
            k('s_barrier')
            k.wait(rtk)
        stamp(k, st0 + 4)
        PK = 190
        for i in range(10):
            k(f'v_cvt_pk_bf16_f32 v{PK+i}, v{S0+2*i}, v{S0+2*i+1}')
        for i in range(10):
            k(f'v_lshlrev_b32 v{S0+2*i}, 16, v{PK+i}')
            k(f'v_and_b32 v{S0+2*i+1}, 0xffff0000, v{PK+i}')
            k(f'v_lshlrev_b32 v{S1+2*i}, 16, v{RES+i}')
            k(f'v_and_b32 v{S1+2*i+1}, 0xffff0000, v{RES+i}')
            k(f'v_pk_add_f32 {v(S0+2*i,2)}, {v(S0+2*i,2)}, {v(S1+2*i,2)}')
        if which == 3:
            PK = RES
        for i in range(10):
            k(f'v_cvt_pk_bf16_f32 v{PK+i}, v{S0+2*i}, v{S0+2*i+1}')
        if which == 3:
            k('v_lshlrev_b32 v13, 4, v12')
            k('v_lshrrev_b32 v14, 1, v16')
            k('v_lshl_add_u32 v13, v14, 15, v13')
            k('v_and_b32 v14, 1, v16')
            k('v_lshl_add_u32 v13, v14, 3, v13')
            k(f's_mul_i32 s47, s{S_CT}, 10')
            k(f's_lshl_b32 s48, s{S_PAR}, 1')
            k('s_add_u32 s48, s48, s47')
            k('s_lshl_b32 s48, s48, 15')
            k(f's_add_u32 s48, s48, {WS_H1}')
            k(f's_lshl_b32 s49, s{S_PAR}, 3')
            k('s_sub_u32 s49, 8, s49')
            k('s_add_u32 s49, s49, s47')
            k('s_lshl_b32 s49, s49, 15')
            k(f's_add_u32 s49, s49, {WS_H1}')
            for jt in range(4):
                k(f's_add_u32 s47, s48, {jt*65536}')
                k(f'buffer_store_dwordx2 {v(PK+2*jt,2)}, v13, {WSR}, s47 offen sc1')
            k(f'buffer_store_dwordx2 {v(PK+8,2)}, v13, {WSR}, s49 offen sc1')
            k('v_mov_b32 v152, 0')
            k('v_mov_b32 v153, 0')
            k('v_mov_b32 v154, 0x3f803f80')
            for i in range(10):
                k(f'v_dot2_f32_bf16 v152, v{PK+i}, v154, v152')
                k(f'v_dot2_f32_bf16 v153, v{PK+i}, v{PK+i}, v153')
            for r in (152, 153):
                xsum(k, r, 156, 157, 32)
                xsum(k, r, 156, 157, 16)
            k('v_lshlrev_b32 v14, 3, v12')
            k(f's_lshl_b32 s47, s{S_CT}, 14')
            k(f's_add_u32 s47, s47, {WS_HS}')
            k('s_mov_b64 exec, 0xffff')
            self.own = k(f'buffer_store_dwordx2 {v(152,2)}, v14, {WSR}, s47 offen sc1')
            k('s_mov_b64 exec, -1')
        else:
            P = 176
            k(f'v_mul_u32_u24 v13, {P}, v15')
            k('v_lshl_add_u32 v13, v16, 3, v13')
            k(f's_lshl_b32 s47, s{S_W4}, 12')
            k('s_add_u32 s47, s47, 65536')
            k('v_add_u32 v13, s47, v13')
            k(f's_lshl_b32 s48, s{S_PAR}, 5')
            k('v_add_u32 v14, s48, v13')
            k(f's_lshl_b32 s48, s{S_PAR}, 7')
            k('s_sub_u32 s48, 128, s48')
            k('v_add_u32 v13, s48, v13')
            for jt in range(4):
                k(f'ds_write_b64 v14, {v(PK+2*jt,2)} offset:{jt*32}')
            k(f'ds_write_b64 v13, {v(PK+8,2)}')
            k(f's_mul_i32 s48, s{S_CT}, 160')
            k(f's_mul_i32 s49, s{S_TK}, 1280')
            k('s_add_u32 s48, s48, s49')
            for it in range(3):
                k(f'v_add_u32 v17, {64*it}, v1')
                k('v_mul_u32_u24 v18, 6554, v17')
                k('v_lshrrev_b32 v18, 16, v18')
                k('v_mul_u32_u24 v19, 10, v18')
                k('v_sub_u32 v19, v17, v19')
                k(f'v_mul_u32_u24 v20, {P}, v18')
                k('v_lshl_add_u32 v20, v19, 4, v20')
                k(f'v_add_u32 v{160+it}, s47, v20')
                k('v_mul_u32_u24 v20, 1280, v18')
                k(f'v_lshl_add_u32 v{164+it}, v19, 4, v20')
            k.wait_all(vm=False)
            tl = [k(f'ds_read_b128 {v(168+4*it,4)}, v{160+it}') for it in range(3)]
            for it in range(3):
                k.wait(tl[it])
                if it == 2:
                    k('v_cmp_gt_u32 vcc, 32, v1')
                    k('s_mov_b64 exec, vcc')
                k(f'buffer_store_dwordx4 {v(168+4*it,4)}, v{164+it}, s[{S_OUT}:{S_OUT+3}], s48 offen sc1')
            k('s_mov_b64 exec, -1')


def p2_setup(k):
    LK, LV = 102400, 122880
    k(f's_and_b32 s45, s{S_I32}, 3')
    k(f's_lshl_b32 s44, s{S_X8}, 2')
    k('s_add_u32 s45, s45, s44')
    k(f's_lshr_b32 s44, s{S_I32}, 2')
    S_I, S_H = 44, 45
    k(f's_lshl_b32 s46, s{S_I}, 8')
    k('s_sub_u32 s47, s46, 256')
    k('s_max_i32 s47, s47, 0')
    k(f's_cmp_lt_u32 s{S_W4}, 2')
    k('s_cselect_b32 s48, s47, s46')
    k('s_mov_b32 s50, s48')
    k(f's_and_b32 s49, s{S_W4}, 1')
    k('s_lshl_b32 s49, s49, 7')
    k('s_add_u32 s48, s48, s49')
    k('s_lshl_b32 s48, s48, 3')
    k(f's_mul_i32 s49, s{S_H}, {5*16384}')
    k('s_add_u32 s48, s48, s49')
    k(f's_add_u32 s48, s48, {WS_KG}')
    k('v_lshlrev_b32 v2, 4, v1')
    k('s_lshr_b32 s50, s50, 3')
    k('s_mul_i32 s50, s50, 10240')
    k(f's_mul_i32 s49, s{S_H}, 320')
    k('s_add_u32 s50, s50, s49')
    k(f's_add_u32 s50, s50, {WS_VF}')
    k(f's_cmp_lt_u32 s{S_W}, 4')
    k('s_cselect_b32 s48, s48, s50')
    k('s_cselect_b64 s[96:97], -1, 0')
    k(f's_lshl_b32 s49, s{S_W4}, 10')
    k(f's_add_u32 s49, s49, {LK}')
    k(f's_mul_i32 s50, s{S_W4}, 5120')
    k(f's_add_u32 s50, s50, {LV}')
    k(f's_cmp_lt_u32 s{S_W}, 4')
    k('s_cselect_b32 s50, s49, s50')
    k('s_movk_i32 s56, 1024')
    k('s_cselect_b32 s56, 4096, s56')
    k(f's_and_b32 s49, s{S_W4}, 1')
    k('s_mul_i32 s49, s49, 320')
    for n in range(5):
        k(f'v_add_u32 v3, {n*64}, v1')
        k('v_add_u32 v3, s49, v3')
        k('v_mul_u32_u24 v4, 3277, v3')
        k('v_lshrrev_b32 v4, 16, v4')
        k('v_mul_u32_u24 v5, 20, v4')
        k('v_sub_u32 v5, v3, v5')
        k('v_mul_u32_u24 v4, 10240, v4')
        k(f'v_lshl_add_u32 v4, v5, 4, v4')
        k(f'v_add_u32 v5, {n*16384}, v2')
        k(f'v_cndmask_b32 v{6+n}, v4, v5, s[96:97]')
    k('v_and_b32 v12, 31, v1')
    k('v_lshrrev_b32 v13, 5, v1')
    k('v_lshlrev_b32 v14, 3, v12')
    k('v_lshl_add_u32 v15, v13, 15, v14')
    k(f's_lshl_b32 s51, s{S_W}, 5')
    k('s_add_u32 s51, s51, s46')
    S_Q0 = 51
    k('s_lshl_b32 s52, s51, 3')
    k(f's_mul_i32 s49, s{S_H}, {5*16384}')
    k('s_add_u32 s52, s52, s49')
    k(f's_add_u32 s52, s52, {WS_QG}')
    k('s_add_u32 s53, s52, 16384')
    k(f's_add_u32 s54, s52, {4*16384}')
    PM, NM, ONE, QF, KV, OACC, SB0 = 24, 32, 36, 40, 48, 72, 88
    k('v_lshlrev_b32 v3, 2, v13')
    for i in range(16):
        a_, b_ = i // 4, i % 4
        k(f'v_add_u32 v4, {8*a_+b_}, v3')
        k(f'v_cmp_le_u32 s[{64+2*i}:{65+2*i}], v4, v12')
    k('v_mov_b32 v5, 0xffff')
    k('v_mov_b32 v11, 0xffff0000')
    for p in range(8):
        k(f'v_cndmask_b32 v3, 0, v5, s[{64+4*p}:{65+4*p}]')
        k(f'v_cndmask_b32 v4, 0, v11, s[{66+4*p}:{67+4*p}]')
        k(f'v_or_b32 v{PM+p}, v3, v4')
    k('v_cmp_eq_u32 s[96:97], 1, v13')
    k('v_cmp_gt_u32 s[98:99], 20, v12')
    k('v_cmp_eq_u32 s[100:101], 0, v13')
    k(f's_lshl_b32 s49, s{S_W}, 8')
    k(f's_add_u32 s49, s49, {LK}')
    k('v_lshl_add_u32 v16, v13, 13, v14')
    k('v_add_u32 v16, s49, v16')
    k('v_add_u32 v17, s49, v14')
    k(f's_and_b32 s55, s{S_H}, 1')
    S_PI = 55
    k('v_bfe_u32 v3, v12, 3, 1')
    k('v_bfe_u32 v4, v12, 2, 1')
    k('v_and_b32 v5, 3, v12')
    k('v_lshl_add_u32 v18, v3, 2, v5')
    k('v_lshl_add_u32 v18, v4, 3, v18')
    k('s_lshl_b32 s49, s55, 2')
    k('v_add_u32 v18, s49, v18')
    k('s_lshl_b32 s49, s55, 4')
    k('s_sub_u32 s49, 16, s49')
    k('v_add_u32 v19, s49, v5')
    k('v_cmp_gt_u32 vcc, 16, v12')
    k('v_cndmask_b32 v18, v19, v18, vcc')
    k('v_mul_u32_u24 v19, 320, v13')
    k('v_lshl_add_u32 v18, v18, 4, v19')
    k(f's_mul_i32 s49, s{S_W}, 1280')
    k(f's_add_u32 s49, s49, {LV}')
    k('v_add_u32 v18, s49, v18')
    k('v_mov_b32 v19, 0')
    k('v_mov_b32 v4, 0x3f803f80')
    k('v_cmp_eq_u32 vcc, 20, v12')
    k('v_cndmask_b32 v19, v19, v4, vcc')
    k('v_cmp_eq_u32 vcc, 24, v12')
    k('v_cndmask_b32 v19, v19, v4, vcc')
    for b in range(3):
        k(f'v_mov_b32 v{KV+8*b+6}, 0')
        k(f'v_mov_b32 v{KV+8*b+7}, 0')
    k(f'v_mov_b32 v{QF+6}, 0')
    k(f'v_mov_b32 v{QF+7}, 0')
    k(f'v_cndmask_b32 v{ONE}, v4, 0, s[96:97]')
    for i in range(1, 4):
        k(f'v_mov_b32 v{ONE+i}, 0')
        k(f'v_mov_b32 v{NM+i}, 0')
    k('v_and_b32 v3, 15, v1')
    k(f's_mul_i32 s49, s{S_H}, 20')
    k('s_mov_b64 s[46:47], 0')
    for base, isq in ((0, True), (640, False), (1280, False)):
        for e in (0, 19):
            k(f's_add_u32 s60, s49, {base+e}')
            k('s_lshr_b32 s60, s60, 7')
            k('v_cmp_eq_u32 vcc, s60, v3')
            if isq:
                k('s_and_b64 vcc, vcc, s[96:97]')
            k('s_or_b64 s[46:47], s[46:47], vcc')
    k(f's_cmp_eq_u32 s{S_I}, 0')
    k('s_cselect_b32 s46, 0, s46')
    k(f's_lshl_b32 s49, s{S_I}, 7')
    k(f's_lshl_b32 s60, s{S_X8}, 10')
    k('s_add_u32 s49, s49, s60')
    k(f's_add_u32 s49, s49, {WS_F2 - 128}')
    k('v_lshlrev_b32 v3, 2, v1')


def emit_p2(k, g3):
    LK, LV = 102400, 122880
    S_I, S_H, S_Q0, S_PI = 44, 45, 51, 55
    PM, NM, ONE, QF, KV, OACC, SB0 = 24, 32, 36, 40, 48, 72, 88
    rflag_poll(k, 49, 3, 4, 46)
    k('s_barrier')
    stamp(k, 12)
    k('s_mov_b32 m0, s50')
    for n in range(5):
        if n:
            k('s_add_u32 m0, m0, s56')
        k(f'buffer_load_dwordx4 v{6+n}, {WSR}, s48 offen sc1 lds')
    k(f'buffer_load_dwordx2 {v(QF,2)}, v15, {WSR}, s52 offen sc1')
    k(f'buffer_load_dwordx2 {v(QF+2,2)}, v15, {WSR}, s53 offen sc1')
    qt = k(f'buffer_load_dwordx2 {v(QF+4,2)}, v14, {WSR}, s54 offen sc1')
    k.wait(qt)
    k(f'v_cndmask_b32 v{QF+4}, v{QF+4}, 0, s[96:97]')
    k(f'v_cndmask_b32 v{QF+5}, v{QF+5}, 0, s[96:97]')
    k('s_barrier')
    if OPT.get('prio', 1):
        k(f's_cmp_ge_u32 s{S_W}, 4')
        k.outline('s_cbranch_scc1', lambda: k('s_setprio 1'))
    stamp(k, 13)
    side_groups = []
    for st in g3.pending_steps:
        side_groups.append(g3.dma_step(st))
    side_groups.append([lambda: pf_wgu(k, 238, 239)])
    side_groups.append([lambda: pf_wd(k, 238, 239)])

    def guarded(ops):
        def f():
            k(f's_cmp_lt_u32 s{S_W}, 4')
            k.outline('s_cbranch_scc1', lambda: runall(k, ops))
        return f
    pf = [guarded(o) for o in side_groups]

    def slot(i):
        return SB0 + 16 * i
    krd = {}

    def kreads(j):
        b = j % 3
        krd[j] = [k(f'ds_read_b64 {v(KV+8*b,2)}, v16 offset:{j*256}'),
                  k(f'ds_read_b64 {v(KV+8*b+2,2)}, v16 offset:{4096+j*256}'),
                  k(f'ds_read_b64 {v(KV+8*b+4,2)}, v17 offset:{16384+j*256}')]
    kreads(0)
    kreads(1)
    for j in range(9):
        b = j % 3
        d = v(slot(j), 16)
        k.wait(*krd[j])
        k(f'v_mfma_f32_32x32x16_bf16 {d}, {v(KV+8*b,4)}, {v(QF,4)}, 0')
        if j + 2 < 9:
            kreads(j + 2)
        k(f'v_mfma_f32_32x32x16_bf16 {d}, {v(KV+8*b+4,4)}, {v(QF+4,4)}, {d}')
    stamp(k, 14)
    lab = k.newlabel('P2_FIX')
    k(f's_cmp_lg_u32 s{S_I}, 0')
    k(f's_cbranch_scc1 {lab}')
    for jj in range(8):
        k(f's_cmp_ge_u32 s{S_W}, {8-jj}')
        k(f's_cbranch_scc1 {lab}')
        for i in range(16):
            k(f'v_mov_b32 v{slot(jj)+i}, {f32(-1e30)}')
    k.label(lab)
    for i in range(16):
        k(f'v_mov_b32 v{KV+i}, v19')
    M0, M1 = 20, 21
    ops = []
    regs = [slot(jj) + i for jj in (1, 2, 3, 4, 5, 6, 7, 0) for i in range(16)]
    for i in range(16):
        ops.append(f'v_cndmask_b32 v{slot(0)+i}, v{slot(0)+i}, v{slot(8)+i}, s[{64+2*i}:{65+2*i}]')
    ops += [f'v_max3_f32 v{M0}, v{regs[0]}, v{regs[1]}, v{regs[2]}',
            f'v_max3_f32 v{M1}, v{regs[3]}, v{regs[4]}, v{regs[5]}']
    i, t = 6, 0
    while i < 128:
        m = M0 if t % 2 == 0 else M1
        ops.append(f'v_max3_f32 v{m}, v{m}, v{regs[i]}, v{regs[i+1]}')
        i += 2
        t += 1
    ops += [f'v_max_f32 v{M0}, v{M0}, v{M1}',
            f'v_mov_b32 v{M1}, v{M0}',
            f'v_permlane32_swap_b32 v{M0}, v{M1}',
            f'v_max_f32 v{M0}, v{M0}, v{M1}',
            f'v_sub_f32 v{M0}, 0, v{M0}',
            f'v_cvt_pk_bf16_f32 v{M1}, v{M0}, v{M0}',
            f'v_lshlrev_b32 v{M1}, 16, v{M1}',
            f'v_sub_f32 v{M1}, v{M0}, v{M1}',
            f'v_cvt_pk_bf16_f32 v{NM}, v{M0}, v{M1}',
            f'v_cndmask_b32 v{NM}, v{NM}, 0, s[96:97]']
    spread(k, ops, pf[:1])
    pf = pf[1:]
    stamp(k, 15)
    vrd = {}
    nbuf = [0]

    def vreads(jkey):
        toks, bufs = [], []
        k('s_mov_b64 exec, s[98:99]')
        for m in range(2):
            bi = nbuf[0] % 4
            nbuf[0] += 1
            bufs.append(bi)
            toks.append(k(f'ds_read_b128 {v(KV+4*bi,4)}, v18 offset:{jkey*1280+m*640}'))
        k('s_mov_b64 exec, -1')
        vrd[jkey] = (toks, bufs)
    first = [True]
    oacc = v(OACC, 16)

    def pv_ops(jkey, preg):
        o = []
        for m in range(2):
            def f(m=m):
                toks, bufs = vrd[jkey]
                k.wait(toks[m])
                c = '0' if first[0] else oacc
                first[0] = False
                k(f'v_mfma_f32_32x32x16_bf16 {oacc}, {v(KV+4*bufs[m],4)}, {v(preg+4*m,4)}, {c}')
            o.append(f)
        return o

    def sub_op(jb):
        d = v(slot(jb), 16)
        return f'v_mfma_f32_32x32x16_bf16 {d}, {v(ONE,4)}, {v(NM,4)}, {d}'
    order = [1, 2, 3, 4, 5, 6, 7, 0]
    k(sub_op(order[0]))
    k(sub_op(order[1]))
    vreads(order[0])
    for n, jb in enumerate(order):
        base = slot(jb)
        val = [f'v_exp_f32 v{base+i}, v{base+i}' for i in range(16)]
        val += [f'v_cvt_pk_bf16_f32 v{base+p}, v{base+2*p}, v{base+2*p+1}' for p in range(8)]
        if jb == 0:
            val += [f'v_and_b32 v{base+8+p}, v{PM+p}, v{base+p}' for p in range(8)]
            val += [f'v_bfi_b32 v{base+p}, v{PM+p}, 0, v{base+p}' for p in range(8)]
        side = []
        if n >= 1:
            side += pv_ops(order[n - 1], slot(order[n - 1]))
        nxt = order[n + 1] if n + 1 < 8 else 8
        side.append(lambda nxt=nxt: vreads(nxt))
        if n + 2 < 8:
            side.append(sub_op(order[n + 2]))
        if pf and n % 2 == 0:
            side.append(pf.pop(0))
        spread(k, val, side)
    tail = pv_ops(0, slot(0)) + pv_ops(8, slot(0) + 8)
    addr = [f's_lshr_b32 s49, s{S_H}, 1', 's_mul_i32 s49, s49, 5', f's_mul_i32 s52, s{S_PI}, 3',
            's_add_u32 s52, s52, s49', 's_lshl_b32 s52, s52, 15', f's_add_u32 s52, s52, {WS_OC}',
            f's_lshl_b32 s53, s{S_Q0}, 4', 's_add_u32 s52, s52, s53', 's_add_u32 s54, s49, 2',
            's_lshl_b32 s54, s54, 15', f's_add_u32 s54, s54, {WS_OC}', 's_add_u32 s54, s54, s53',
            f's_lshl_b32 s49, s{S_PI}, 3', 's_add_u32 s54, s54, s49', 'v_lshlrev_b32 v22, 4, v12',
            'v_lshl_add_u32 v23, v13, 15, v22']
    ftok = flags_issue(k, WS_F2, 240, 237)
    spread(k, addr, tail)
    stamp(k, 18)
    T = OACC
    k(f'v_cndmask_b32 v{T+13}, v{T+12}, v{T+8}, s[96:97]')
    k(f'v_rcp_f32 v{T+14}, v{T+13}')
    for p in range(6):
        k(f'v_pk_mul_f32 {v(T+2*p,2)}, {v(T+2*p,2)}, {v(T+14,2)} op_sel_hi:[1,0]')
    for p in range(6):
        k(f'v_cvt_pk_bf16_f32 v{104+p}, v{T+2*p}, v{T+2*p+1}')
    k(f'buffer_store_dwordx4 {v(104,4)}, v23, {WSR}, s52 offen sc1')
    k('s_mov_b64 exec, s[100:101]')
    own = k(f'buffer_store_dwordx2 {v(108,2)}, v22, {WSR}, s54 offen sc1')
    k('s_mov_b64 exec, -1')
    k.wait_all(vm=False)
    k('s_setprio 0')
    k('s_barrier')
    flags_check(k, WS_F2, 240, 237, ftok)
    return own


class P4:
    BS = [102400, 126976, 0, 24576, 49152, 73728]

    def __init__(self, k):
        self.k = k
        self.stok = {}
        self.rtok = {}
        self.VB = 2

    def setup_dma(self, t0):
        k = self.k
        VB = self.VB
        tile4(k, 61, 60, 68)
        k('s_sub_u32 s76, s61, 10')
        k('s_cmp_ge_u32 s61, 10')
        k('s_cselect_b32 s76, s76, s61')
        k(f's_cmp_lt_u32 s{S_W4}, 2')
        k(f's_cselect_b32 s64, s{S_WG}, s{S_WU}')
        k(f's_cselect_b32 s65, s{S_WG+1}, s{S_WU+1}')
        k('s_mov_b32 s66, 1966080')
        k('s_mov_b32 s67, 0x00020000')
        k(f's_and_b32 s61, s{S_W4}, 1')
        k(f's_mul_i32 s61, s61, {32*3072}')
        k('s_mul_i32 s60, s60, 192')
        k('s_add_u32 s60, s60, s61')
        for n in range(3):
            k(f'v_add_u32 v{t0}, {n*64}, v1')
            k(f'v_mul_u32_u24 v{t0+1}, 5462, v{t0}')
            k(f'v_lshrrev_b32 v{t0+1}, 16, v{t0+1}')
            k(f'v_mul_u32_u24 v{t0+2}, 12, v{t0+1}')
            k(f'v_sub_u32 v{t0+2}, v{t0}, v{t0+2}')
            k(f'v_mul_u32_u24 v{t0+1}, 3072, v{t0+1}')
            k(f'v_lshl_add_u32 v{VB+n}, v{t0+2}, 4, v{t0+1}')
            k(f'v_add_u32 v{VB+n}, s60, v{VB+n}')
            if n:
                k(f'v_subrev_u32 v{VB+n}, {n*1024}, v{VB+n}')
        k(f's_mul_i32 s68, s{S_W4}, 6144')

    def sig(self, c, st, sreg, stmp):
        c(f's_add_u32 s{sreg}, s76, {st}')
        c(f's_sub_u32 s{stmp}, s{sreg}, 10')
        c(f's_cmp_ge_u32 s{sreg}, 10')
        c(f's_cselect_b32 s{sreg}, s{stmp}, s{sreg}')

    def dma_stage(self, st):
        k = self.k
        base = self.BS[st % 6]
        self.sig(k, st, 69, 77)
        k(f's_mul_i32 s69, s69, {64*3072}')
        for per in range(2):
            k(f's_add_u32 m0, s68, {base+per*3072}')
            if per:
                k(f's_add_u32 s69, s69, {16*3072}')
            for n in range(3):
                self.stok[st] = k(f'buffer_load_dwordx4 v{self.VB+n}, s[64:67], s69 offen offset:{n*1024} lds')

    BR = 124

    def breg_load(self, st):
        k = self.k
        r0 = self.BR + 24 * (st - 6)
        self.sig(k, st, 69, 77)
        k(f's_mul_i32 s69, s69, {64*3072}')
        for per in range(2):
            if per:
                k(f's_add_u32 s69, s69, {16*3072}')
            for n in range(3):
                self.rtok[st] = k(f'buffer_load_dwordx4 {v(r0+12*per+4*n,4)}, v{self.VB+n}, s[64:67], s69 offen offset:{n*1024}')

    def breg_write(self, st):
        k = self.k
        r0 = self.BR + 24 * (st - 6)
        base = self.BS[st % 6]
        reg, off = (47, base - 102400) if base >= 102400 else (46, base)
        assert off + 6144 < 65536
        k.wait(self.rtok[st])
        for i in range(6):
            self.stok[st] = k(f'ds_write_b128 v{reg}, {v(r0+4*i,4)} offset:{off+i*1024}')

    def pre_colsum(self):
        k = self.k
        CA = 60
        k('v_lshlrev_b32 v46, 4, v1')
        k('v_add_u32 v46, s68, v46')
        k('v_add_u32 v47, 102400, v46')
        k.wait(self.stok[0])
        tk = [k(f'ds_read_b128 {v(84+4*i,4)}, v47 offset:{i*1024}') for i in range(6)]
        for n in range(3):
            k.wait(tk[n], tk[n + 3])
            for p in range(4):
                k(f'v_lshlrev_b32 v{CA+8*n+2*p}, 16, v{84+4*n+p}')
                k(f'v_and_b32 v{CA+8*n+2*p+1}, 0xffff0000, v{84+4*n+p}')
                k(f'v_lshlrev_b32 v{28+2*(p%2)}, 16, v{96+4*n+p}')
                k(f'v_and_b32 v{29+2*(p%2)}, 0xffff0000, v{96+4*n+p}')
                k(f'v_pk_add_f32 {v(CA+8*n+2*p,2)}, {v(CA+8*n+2*p,2)}, {v(28+2*(p%2),2)}')

    def pre_colsum_write(self):
        k = self.k
        CA = 60
        k('v_lshlrev_b32 v16, 5, v1')
        k('v_add_u32 v16, s68, v16')
        k('v_add_u32 v16, 73728, v16')
        for n in range(3):
            k(f'ds_write_b128 v16, {v(CA+8*n,4)} offset:{n*2048}')
            k(f'ds_write_b128 v16, {v(CA+8*n+4,4)} offset:{n*2048+16}')
        k.wait_all(vm=False)

    def loader_setup(self, g5):
        k = self.k
        tile4(k, 44, 45, 46)
        g5.dma_setup(40)
        k('v_cmp_le_u32 vcc, 96, v0')
        k(f'v_mov_b32 v16, {12288-384}')
        k('v_cndmask_b32 v17, 0, v16, vcc')
        k('v_lshl_add_u32 v17, v0, 2, v17')
        k('v_add_u32 v17, 73728, v17')
        k(f'v_mov_b32 v16, {6144-384}')
        k('v_cndmask_b32 v18, 0, v16, vcc')
        k('v_lshl_add_u32 v18, v0, 2, v18')
        k('v_cmp_gt_u32 vcc, 192, v0')
        k('v_cndmask_b32 v19, 0, v18, vcc')
        k(f'v_mov_b32 v16, {OOB}')
        k('v_cndmask_b32 v18, v16, v18, vcc')
        k('s_mul_i32 s51, s45, 384')
        k(f's_add_u32 s51, s51, {WS_PCS}')
        k('s_mul_i32 s52, s44, 12288')
        k('s_add_u32 s52, s52, s51')
        k(f's_mov_b32 s47, {OOB}')
        k('s_cmp_lt_u32 s44, 10')
        k('s_cselect_b32 s52, s52, s47')

    def colsum_reduce(self):
        k = self.k
        rr = list(range(84, 116))
        for half in range(4):
            tk = []
            for r in range(8):
                x = (half % 2) * 8 + r
                tk.append(k(f'ds_read_b32 v{rr[8*half+r]}, v17 offset:{x*384+(half//2)*6144}'))
            k.wait(*tk)
        for stp in (16, 8, 4, 2, 1):
            for i in range(stp):
                k(f'v_add_f32 v{rr[i]}, v{rr[i]}, v{rr[i+stp]}')
        k(f'buffer_store_dword v{rr[0]}, v18, {WSR}, s52 offen sc1')

    def loader(self, g5):
        k = self.k

        def gather(c):
            t = None
            for r in range(10):
                c(f's_add_u32 s58, s51, {r*12288}')
                t = c(f'buffer_load_dword v{24+r}, v19, {WSR}, s58 offen sc1')
            return t
        T = {}
        g5regs = {7: 60, 8: 80, 9: 100, 10: 124, 11: 148}
        S5 = OPT.get('s5', 7)
        plan = {S5: [('r', 7), ('r', 8), ('d', 0)], S5 + 1: [('d', 1), ('d', 2), ('r', 9)],
                S5 + 2: [('d', 3), ('d', 4), ('r', 10)], 10: [('d', 5), ('r', 11)]}
        for st in range(10):
            k.wait(self.stok[st])
            k.wait_all(vm=False)
            k('s_barrier')
            if st == 0:
                stamp(k, 32)
                self.colsum_reduce()
            if st == 1:
                self.dma_stage(5)
            if 1 <= st <= 4:
                self.dma_stage(st + 5)
            if st == 5:
                T['g'] = gather(k)
            if st == 6:
                k.wait(T['g'])
                check_group(k, range(24, 34), 11, gather, slp=8)
                for r in range(1, 10):
                    k(f'v_add_f32 v24, v24, v{24+r}')
                k('v_lshlrev_b32 v16, 2, v0')
                k(f'v_add_u32 v16, {XCH}, v16')
                k('ds_write_b32 v16, v24')
            for kind, s5 in ([] if OPT.get('nop5') else plan.get(st, [])):
                if kind == 'r':
                    g5.breg_load(s5, g5regs[s5])
                else:
                    runall(k, g5.dma_step(s5))
        self.plan_end = plan[10]
        self.g5regs = g5regs
        k.wait_all(vm=False)
        stamp(k, 38)
        k('s_barrier')
        for kind, s5 in self.plan_end:
            if kind == 'r':
                g5.breg_load(s5, g5regs[s5])
            else:
                runall(k, g5.dma_step(s5))
        runall(k, g5.dma_step(6))
        stamp(k, 39)
        k('s_barrier')

    def compute(self, own_tok):
        k = self.k
        tile4(k, 44, 45, 46)
        S_MT, S_FT, S_TOK = 44, 45, 46
        k('s_lshl_b32 s46, s44, 7')
        k(f's_lshl_b32 s47, s{S_W4}, 5')
        k('s_add_u32 s46, s46, s47')
        k('v_and_b32 v13, 31, v1')
        k('v_lshrrev_b32 v14, 5, v1')
        k('v_lshlrev_b32 v5, 4, v13')
        k('v_lshl_add_u32 v5, v14, 15, v5')
        k('v_bfe_u32 v15, v1, 2, 2')
        k('v_lshl_add_u32 v15, v14, 3, v15')
        k('v_mul_u32_u24 v15, 192, v15')
        k('v_bfe_u32 v16, v1, 4, 1')
        k('v_lshl_add_u32 v15, v16, 5, v15')
        k('v_and_b32 v16, 1, v1')
        k('v_lshl_add_u32 v15, v16, 4, v15')
        k('v_bfe_u32 v16, v1, 1, 1')
        k('v_lshl_add_u32 v6, v16, 3, v15')
        k('v_add_u32 v7, 49152, v6')
        k('v_add_u32 v8, 102400, v6')
        rbase = {0: (6, 0), 24576: (6, 24576), 49152: (7, 0), 73728: (7, 24576), 102400: (8, 0), 126976: (8, 24576)}
        k('s_sub_u32 s76, s44, 10')
        k('s_cmp_ge_u32 s44, 10')
        k('s_cselect_b32 s76, s76, s44')
        k('s_lshl_b32 s50, s46, 4')
        k(f's_add_u32 s50, s50, {WS_H1}')
        AFR = 180
        atok = {}

        def abase(c, st, sreg, stmp):
            self.sig(c, st, sreg, stmp)
            c(f's_lshl_b32 s{sreg}, s{sreg}, 18')
            c(f's_add_u32 s{sreg}, s{sreg}, s50')

        def aone(c, st, ks, sreg):
            if ks:
                c(f's_add_u32 s{sreg}, s{sreg}, 65536')
            return c(f'buffer_load_dwordx4 {v(AFR+16*(st%4)+4*ks,4)}, v5, {WSR}, s{sreg} offen sc1')

        def astage(c, st, sreg, stmp):
            abase(c, st, sreg, stmp)
            t = None
            for ks in range(4):
                t = aone(c, st, ks, sreg)
            return t
        k('v_lshlrev_b32 v9, 3, v13')
        k('v_lshl_add_u32 v9, v14, 16, v9')
        k(f's_lshl_b32 s51, s{S_TOK}, 3')
        k(f's_add_u32 s51, s51, {WS_HS}')
        HSR = 20

        def hsload(c):
            t = None
            for n in range(4):
                c(f's_add_u32 s58, s51, {n*16384}')
                t = c(f'buffer_load_dwordx2 {v(HSR+2*n,2)}, v9, {WSR}, s58 offen sc1')
            return t
        k('v_lshlrev_b32 v10, 5, v14')
        k(f'v_add_u32 v10, {XCH}, v10')
        ACC, WF = 36, 132

        def csload(p, base):
            t = None
            for mtx in range(2):
                for q in range(4):
                    off = mtx * 384 + p * 128 + (q // 2) * 64 + (q % 2) * 16
                    t = k(f'ds_read_b128 {v(base+16*mtx+4*q,4)}, v10 offset:{off}')
            return t
        rt = {}

        def reads(kk):
            st, ks = kk // 4, kk % 4
            reg, so = rbase[self.BS[st % 6]]
            b = kk % 2
            ops = [[] for _ in range(6)]
            for j in range(6):
                for hf in range(2):
                    off = so + (j // 3) * 12288 + ks * 3072 + hf * 768 + (j % 3) * 64
                    ops[j].append(lambda j=j, hf=hf, off=off: rt.__setitem__((kk, j), k(
                        f'ds_read_b64_tr_b16 {v(WF+24*b+4*j+2*hf,2)}, v{reg} offset:{off}')))
            return ops
        T = {}

        def stats():
            k.wait(T['hs'])
            check_group(k, range(HSR, HSR + 8), 11, hsload)
            for n in range(1, 4):
                k(f'v_pk_add_f32 {v(HSR,2)}, {v(HSR,2)}, {v(HSR+2*n,2)}')
            VSUM, VSQ = HSR, HSR + 1
            xsum(k, VSUM, 24, 25)
            xsum(k, VSQ, 24, 25)
            k(f'v_mul_f32 v{VSUM}, {f32(1.0/640)}, v{VSUM}')
            k(f'v_mul_f32 v{VSQ}, {f32(1.0/640)}, v{VSQ}')
            k(f'v_fma_f32 v{VSQ}, -v{VSUM}, v{VSUM}, v{VSQ}')
            k(f'v_max_f32 v{VSQ}, 0, v{VSQ}')
            rbf(k, 24, VSUM)
            k('v_sub_f32 v26, 0, v24')
            rbf(k, 25, VSQ)
            k(f'v_add_f32 v25, {f32(1e-5)}, v25')
            rbf(k, 25, 25)
            k('v_sqrt_f32 v25, v25')
            rbf(k, 25, 25)
            k('v_rcp_f32 v28, v25')
            k('v_mul_f32 v30, v25, v25')
        stamp(k, 30)
        k.wait(own_tok)
        stamp(k, 31)
        for st in range(3):
            atok[st] = astage(k, st, 49, 48)
        k('s_barrier')
        for l_ in reads(0):
            runall(k, l_)
        for kk in range(40):
            b = kk % 2
            st, ks = kk // 4, kk % 4
            R0 = AFR + 16 * (st % 4)
            if kk % 8 == 4:
                stamp(k, 33 + kk // 8)
            if ks == 0:
                k.wait(atok[st])
                check_group(k, range(R0, R0 + 16), 11, lambda c, st=st: astage(c, st, 58, 59))
                if kk == 0:
                    stamp(k, 32)
            fill, rds = [], []
            if st + 3 < 10:
                def al(st=st, ks=ks):
                    if ks == 0:
                        abase(k, st + 3, 49, 48)
                    atok[st + 3] = aone(k, st + 3, ks, 49)
                fill.append(al)
            if kk + 1 < 40:
                if (kk + 1) % 4 == 0:
                    if not OPT.get('nodrain4'):
                        k.wait_all(vm=False)
                    k('s_barrier')
                rds = reads(kk + 1)
            else:
                k.wait_all(vm=False)
                k('s_barrier')
            if kk == 28:
                fill.append(lambda: T.__setitem__('hs', hsload(k)))
            if kk == 39:
                fill.append(lambda: T.__setitem__(('cs', 0), csload(0, 212)))
            if kk == 37:
                fill.append(stats)
            mf = []
            for j in range(6):
                acc = v(ACC + 16 * j, 16)
                c = '0' if kk == 0 else acc
                mf.append((lambda j=j: [rt[kk, j]],
                           f'v_mfma_f32_32x32x16_bf16 {acc}, {v(WF+24*b+4*j,4)}, {v(R0+4*ks,4)}, {c}'))
            roll_step(k, mf, rds, fill)
        stamp(k, 38)
        T['cs', 1] = csload(1, 132)
        c0 = -2.0 * math.sqrt(2.0 / math.pi) * math.log2(math.e)
        c1 = c0 * 0.044715
        k(f'v_mov_b32 v32, {f32(c0)}')
        k(f'v_mov_b32 v34, {f32(c1)}')
        k(f's_mul_i32 s54, s{S_FT}, {12*32768}')
        k(f's_lshl_b32 s55, s{S_TOK}, 4')
        k('s_add_u32 s54, s54, s55')
        k(f's_add_u32 s54, s54, {WS_HC}')
        T_, O = 164, 180
        csb = {0: 212, 1: 132, 2: 212}
        for p in range(3):
            G, U, CS = ACC + 16 * p, ACC + 16 * (3 + p), csb[p]
            k.wait(T['cs', p])
            for q in range(8):
                g2, u2 = v(G + 2 * q, 2), v(U + 2 * q, 2)
                k(f'v_pk_fma_f32 {g2}, {v(CS+2*q,2)}, {v(26,2)}, {g2} op_sel_hi:[1,0,1]')
                k(f'v_pk_fma_f32 {u2}, {v(CS+16+2*q,2)}, {v(26,2)}, {u2} op_sel_hi:[1,0,1]')
            if p == 0:
                T['cs', 2] = csload(2, 212)
            for q in range(8):
                g2, u2, t2 = v(G + 2 * q, 2), v(U + 2 * q, 2), v(T_ + 2 * q, 2)
                k(f'v_pk_mul_f32 {u2}, {u2}, {g2}')
                k(f'v_pk_mul_f32 {g2}, {g2}, {v(28,2)} op_sel_hi:[1,0]')
                k(f'v_pk_mul_f32 {t2}, {g2}, {g2}')
                k(f'v_pk_fma_f32 {t2}, {t2}, {v(34,2)}, {v(32,2)} op_sel_hi:[1,0,0]')
                k(f'v_pk_mul_f32 {t2}, {t2}, {g2}')
            for i in range(16):
                k(f'v_exp_f32 v{T_+i}, v{T_+i}')
            for q in range(8):
                t2 = v(T_ + 2 * q, 2)
                k(f'v_pk_fma_f32 {t2}, {t2}, {v(30,2)}, {v(30,2)} op_sel_hi:[1,0,0]')
            for i in range(16):
                k(f'v_rcp_f32 v{T_+i}, v{T_+i}')
            for q in range(8):
                k(f'v_pk_mul_f32 {v(U+2*q,2)}, {v(U+2*q,2)}, {v(T_+2*q,2)}')
            for q in range(8):
                k(f'v_cvt_pk_bf16_f32 v{O+8*(p%2)+q}, v{U+2*q}, v{U+2*q+1}')
            for hf2 in range(2):
                k(f's_add_u32 s55, s54, {(4*p+2*hf2)*32768}')
                k(f'buffer_store_dwordx4 {v(O+8*(p%2)+4*hf2,4)}, v5, {WSR}, s55 offen sc1')
        stamp(k, 39)
        k(f's_lshl_b32 s49, s{S_MT}, 4')
        k(f's_add_u32 s49, s49, s{S_FT}')
        k.wait_all()
        k('s_barrier')
        rflag_store(k, WS_F3, 49, 11, 12)


def colsum_strip(k):
    lab = k.newlabel('CS_SKIP')
    k(f's_cmp_lg_u32 s{S_W4}, 0')
    k(f's_cbranch_scc1 {lab}')
    k(f's_cmp_ge_u32 s{S_I32}, 12')
    k(f's_cbranch_scc1 {lab}')
    sn = k.snap()
    k(f's_and_b32 s60, s{S_X8}, 1')
    k('s_cmp_eq_u32 s60, 0')
    k(f's_cselect_b32 s72, s{S_WG}, s{S_WU}')
    k(f's_cselect_b32 s73, s{S_WG+1}, s{S_WU+1}')
    k('s_mov_b32 s74, 1966080')
    k('s_mov_b32 s75, 0x00020000')
    k(f's_lshr_b32 s60, s{S_X8}, 1')
    k('s_mul_i32 s60, s60, 768')
    k(f's_lshl_b32 s61, s{S_I32}, 6')
    k('s_add_u32 s60, s60, s61')
    k('v_lshrrev_b32 v40, 2, v1')
    k('v_mul_u32_u24 v40, 3072, v40')
    k('v_and_b32 v41, 3, v1')
    k('v_lshl_add_u32 v40, v41, 4, v40')
    k('v_add_u32 v40, s60, v40')
    tk = []
    for n in range(40):
        k(f's_mov_b32 s61, {n*16*3072}')
        tk.append(k(f'buffer_load_dwordx4 {v(60+4*n,4)}, v40, s[72:75], s61 offen'))
    for i in range(8):
        k(f'v_mov_b32 v{44+i}, 0')
    for n in range(40):
        k.wait(tk[n])
        for p in range(4):
            k(f'v_lshlrev_b32 v{52+2*(p%2)}, 16, v{60+4*n+p}')
            k(f'v_and_b32 v{53+2*(p%2)}, 0xffff0000, v{60+4*n+p}')
            k(f'v_pk_add_f32 {v(44+2*p,2)}, {v(44+2*p,2)}, {v(52+2*(p%2),2)}')
    for i in range(8):
        xsum(k, 44 + i, 56, 57, 32)
        xsum(k, 44 + i, 56, 57, 16)
        k(f'v_add_f32_dpp v{44+i}, v{44+i}, v{44+i} row_ror:8 row_mask:0xf bank_mask:0xf')
        k(f'v_add_f32_dpp v{44+i}, v{44+i}, v{44+i} row_ror:4 row_mask:0xf bank_mask:0xf')
    strip_id(k, 60)
    k('s_lshl_b32 s60, s60, 2')
    k(f's_add_u32 s60, s60, {WS_CS}')
    k('v_lshlrev_b32 v41, 5, v41')
    k('s_mov_b64 exec, 0xf')
    k(f'buffer_store_dwordx4 {v(44,4)}, v41, {WSR}, s60 offen sc1')
    k(f'buffer_store_dwordx4 {v(48,4)}, v41, {WSR}, s60 offen offset:16 sc1')
    k('s_mov_b64 exec, -1')
    k.wait_all()
    k.restore(sn)
    k.label(lab)


def build():
    k = K()
    name = NAME + '_kernel'
    k.realend = 'K_END'
    k.raw('.p2align 8')
    k.raw(f'.globl {name}')
    k.raw(f'.type {name},@function')
    k.raw(f'{name}:')
    prologue(k)
    stamp(k, 0)
    g3 = G35(k, 3, [0, 20480, 40960, 61440, 81920], 232, 0)
    g5 = G35(k, 5, [49152, 69632, 90112, 110592, 131072, 0, 20480], 54, 70)
    p4 = P4(k)
    A3 = [102400, 118784, 135168]
    A5 = [61440, 77824, 143360]
    lab_l1, lab_p2, lab_l3, lab_fin = (k.newlabel(x) for x in ('L1', 'P2', 'L3', 'FIN'))
    k(f's_cmp_ge_u32 s{S_W}, 4')
    k(f's_cbranch_scc1 {lab_l1}')
    sn = k.snap()
    p1_compute(k)
    join(k)
    p2_setup(k)
    k(f's_branch {lab_p2}')
    k.label(lab_l1)
    k.restore(sn)
    p1_loader(k, g3)
    k.label(lab_p2)
    join(k)
    for st in range(5):
        g3.btok[st] = ('vm', 0)
    own = emit_p2(k, g3)
    k(f's_cmp_ge_u32 s{S_W}, 4')
    k(f's_cbranch_scc1 {lab_l3}')
    sn = k.snap()
    g3.compute(own, st0=20)
    p4.compute(g3.own)
    if not OPT.get('nop5'):
        g5.compute(None, st0=40)
    k(f's_branch {lab_fin}')
    k.label(lab_l3)
    k.restore(sn)
    p4.setup_dma(56)
    p4.dma_stage(0)
    p4.dma_stage(1)
    p4.loader_setup(g5)
    p4.pre_colsum()
    stamp(k, 23)
    k('s_barrier')
    k('s_barrier')
    k('s_barrier')
    stamp(k, 24)
    p4.dma_stage(2)
    p4.dma_stage(3)
    p4.dma_stage(4)
    p4.pre_colsum_write()
    stamp(k, 30)
    p4.loader(g5)
    if not OPT.get('nop5'):
        g5.loader(7, st0=40)
        k('s_barrier')
        k('s_barrier')
    k.label(lab_fin)
    join(k)
    stamp(k, 50)
    if STAMPS:
        k.wait_all()
        stamp(k, 51)
    stamp_flush(k)
    k.label(k.realend)
    k('s_endpgm')
    c = K()
    for f in k.cold:
        f(c)
    desc = f'''.section .rodata,"a"
.p2align 6
.amdhsa_kernel {name}
  .amdhsa_next_free_vgpr 256
  .amdhsa_next_free_sgpr 102
  .amdhsa_accum_offset 256
  .amdhsa_group_segment_fixed_size 0
  .amdhsa_kernarg_size 80
  .amdhsa_user_sgpr_count 2
  .amdhsa_user_sgpr_kernarg_segment_ptr 1
  .amdhsa_system_sgpr_workgroup_id_x 1
.end_amdhsa_kernel
'''
    return k.render() + c.render() + desc


def main():
    global STAMPS
    STAMPS = 'stamps' in sys.argv
    for a_ in sys.argv[2:]:
        if '=' in a_:
            kk, vv = a_.split('=')
            OPT[kk] = int(vv)
    head = open('cdna_kernels/%s.s.ref' % NAME).read().split('\n')
    hdr = [l for l in head if l.startswith(';') and '@launch' not in l and 'Override launch' not in l and 'grid=ceil' not in l]
    out = '\n'.join(hdr) + '\n'
    out += '; @launch grid=(256,1,1) block=(512,1,1) lds=163840\n'
    out += '.amdgcn_target "amdgcn-amd-amdhsa--gfx950"\n.text\n'
    out += build()
    path = sys.argv[1] if len(sys.argv) > 1 else 'cdna_kernels/%s.s' % NAME
    open(path, 'w').write(out)
    print('wrote', path, len(out), 'bytes')


if __name__ == '__main__':
    main()
```

```python
import math
import struct
import sys
from asmlib import K, v, a, s

NAME = 'sequential_preLN__sliding_block__glu_gated_geglu__prompt'

WS_QG = 0x0000000
WS_KG = 0x0280000
WS_VF = 0x0500000
WS_OC = 0x0780000
WS_H1 = 0x0A00000
WS_HC = 0x0C80000
WS_CS = 0x1280000
WS_F2 = 0x1288000
WS_F3 = 0x128A000
WS_F0 = 0x128C000
WS_PC = 0x1290000
WS_PS = 0x12A8000
WS_HS = 0x12D0000
WS_PCS = 0x1340000
WS_ST = 0x1300000
WS_SIZE = 0x1400000
OOB = 0x40000000

S_X, S_WQKV, S_WO, S_WG, S_WU, S_WD, S_OUT, S_WS, S_DBG = 4, 8, 12, 16, 20, 24, 28, 32, 36
S_NONCE = 3
S_W, S_X8, S_I32, S_W4 = 40, 41, 42, 43
S_BUD = 57
WSR = f's[{S_WS}:{S_WS+3}]'
OPT = {}
STAMPS = False
XCH = 159744
XNONCE = XCH + 3072
XCNT = XCH + 3080


def f32(x):
    return '0x%08x' % struct.unpack('<I', struct.pack('<f', x))[0]


def stamp(k, i):
    if not STAMPS:
        return
    k('s_memtime s[62:63]')
    k.wait_all(vm=False)
    k(f'v_writelane_b32 v255, s62, {i}')


def stamp_flush(k):
    if not STAMPS:
        return
    lab = k.newlabel('ST')
    k('s_memrealtime s[62:63]')
    k.wait_all()
    k('v_writelane_b32 v255, s62, 63')
    k(f'v_writelane_b32 v255, s{S_BUD}, 62')
    k(f's_cmp_lg_u32 s{S_W4}, 0')
    k(f's_cbranch_scc1 {lab}')
    k('v_lshlrev_b32 v254, 2, v1')
    k('s_lshl_b32 s62, s2, 9')
    k(f's_lshl_b32 s63, s{S_W}, 6')
    k('s_add_u32 s62, s62, s63')
    k(f's_add_u32 s62, s62, {WS_ST}')
    k(f'buffer_store_dword v255, v254, {WSR}, s62 offen')
    k.label(lab)


def run(k, f):
    return f() if callable(f) else k(f)


def runall(k, ops):
    for f in ops:
        run(k, f)


def roll_step(k, mf, rds, fill):
    n, nf, fi = len(mf), len(fill), 0
    for i, (wt, m) in enumerate(mf):
        k.wait(*wt())
        k(m)
        for f in (rds[i] if i < len(rds) else []):
            run(k, f)
        tgt = (nf * (i + 1) + n - 1) // n
        while fi < min(tgt, nf):
            run(k, fill[fi])
            fi += 1


def spread(k, main, side):
    n, nf = len(main), len(side)
    pos = {}
    for j in range(nf):
        pos.setdefault(int(j * n / max(nf, 1)), []).append(side[j])
    for i, m in enumerate(main):
        for f in pos.get(i, []):
            run(k, f)
        run(k, m)


def rbf(k, d, src):
    k(f'v_cvt_pk_bf16_f32 {v(d)}, {v(src)}, {v(src)}')
    k(f'v_lshlrev_b32 {v(d)}, 16, {v(d)}')


def xsum(k, r, t1, t2, which=32):
    k(f'v_mov_b32 {v(t1)}, {v(r)}')
    k(f'v_mov_b32 {v(t2)}, {v(r)}')
    k(f'v_permlane{which}_swap_b32 {v(t1)}, {v(t2)}')
    k(f'v_add_f32 {v(r)}, {v(t1)}, {v(t2)}')


def maxchain_ops(regs, t):
    regs = list(regs)
    ops = [f'v_max3_u32 v{t}, v{regs[0]}, v{regs[1]}, v{regs[2]}']
    i = 3
    while i < len(regs):
        if i + 1 < len(regs):
            ops.append(f'v_max3_u32 v{t}, v{t}, v{regs[i]}, v{regs[i+1]}')
            i += 2
        else:
            ops.append(f'v_max_u32 v{t}, v{t}, v{regs[i]}')
            i += 1
    return ops


def check_group(k, regs, t, reissue, slp=2):
    for o in maxchain_ops(regs, t):
        k(o)
    slow, back, loop = k.newlabel('SLOW'), k.newlabel('BACK'), k.newlabel('RETRY')
    k(f'v_cmp_eq_u32 vcc, -1, v{t}')
    k(f's_cbranch_vccnz {slow} ;nodrain')
    k.label(back)

    def cold(c):
        c.label(slow)
        c('s_nop 15')
        c.label(loop)
        c(f's_cmp_eq_u32 s{S_BUD}, 0')
        c(f's_cbranch_scc1 {back}')
        c(f's_sub_u32 s{S_BUD}, s{S_BUD}, 1')
        c(f's_sleep {slp}')
        reissue(c)
        c('s_waitcnt vmcnt(0)')
        for o in maxchain_ops(regs, t):
            c(o)
        c(f'v_cmp_eq_u32 vcc, -1, v{t}')
        c(f's_cbranch_vccnz {loop}')
        c(f's_branch {back}')
    k.cold.append(cold)


def nonce_issue(k, vr):
    k(f'v_mov_b32 v{vr+1}, 0')
    return k(f'buffer_load_dword v{vr}, v{vr+1}, s[{S_DBG}:{S_DBG+3}], 0 offen sc1')


def nonce_check(k, vr, tok):
    k.wait(tok)
    slow, back = k.newlabel('NSLOW'), k.newlabel('NBACK')
    k(f'v_readfirstlane_b32 s{S_NONCE}, v{vr}')
    k(f's_cmp_eq_u32 s{S_NONCE}, 0')
    k(f's_cbranch_scc1 {slow} ;nodrain')
    k.label(back)

    def cold(c):
        c.label(slow)
        c('s_nop 15')
        c(f's_cmp_eq_u32 s{S_BUD}, 0')
        c(f's_cbranch_scc1 {back}')
        c(f's_sub_u32 s{S_BUD}, s{S_BUD}, 1')
        c('s_sleep 4')
        c(f'buffer_load_dword v{vr}, v{vr+1}, s[{S_DBG}:{S_DBG+3}], 0 offen sc1')
        c('s_waitcnt vmcnt(0)')
        c(f'v_readfirstlane_b32 s{S_NONCE}, v{vr}')
        c(f's_cmp_eq_u32 s{S_NONCE}, 0')
        c(f's_cbranch_scc1 {slow}')
        c(f's_branch {back}')
    k.cold.append(cold)


def nonce_from_lds(k, t):
    k(f'v_mov_b32 v{t}, {XNONCE}')
    tk = k(f'ds_read_b32 v{t}, v{t}')
    k.wait(tk)
    k(f'v_readfirstlane_b32 s{S_NONCE}, v{t}')


def rflag_store(k, base, sidx, t1, t2):
    k(f'v_mov_b32 v{t1}, s{S_NONCE}')
    k(f'v_lshlrev_b32 v{t2}, 10, v1')
    k(f's_lshl_b32 s60, s{sidx}, 2')
    k(f's_add_u32 s60, s60, {base}')
    k(f's_mov_b32 s61, {OOB}')
    k(f's_cmp_eq_u32 s{S_W}, 0')
    k('s_cselect_b32 s60, s60, s61')
    k('s_mov_b64 exec, 0xff')
    k(f'buffer_store_dword v{t1}, v{t2}, {WSR}, s60 offen sc1')
    k('s_mov_b64 exec, -1')


def wflag_store(k, base, sidx, t1, t2, cnt):
    k(f'v_mov_b32 v{t1}, 1')
    k(f'v_mov_b32 v{t2}, {XCNT+4*cnt}')
    k('s_mov_b64 exec, 1')
    tk = k(f'ds_add_rtn_u32 v{t1}, v{t2}, v{t1}')
    k('s_mov_b64 exec, -1')
    k(f's_lshl_b32 s60, s{sidx}, 2')
    k(f's_add_u32 s60, s60, {base}')
    k.wait(tk)
    k(f'v_readfirstlane_b32 s61, v{t1}')
    k(f'v_mov_b32 v{t1}, s{S_NONCE}')
    k(f'v_lshlrev_b32 v{t2}, 10, v1')
    k('s_cmp_eq_u32 s61, 3')
    k(f's_cselect_b32 s60, s60, {OOB}')
    k('s_mov_b64 exec, 0xff')
    k(f'buffer_store_dword v{t1}, v{t2}, {WSR}, s60 offen sc1')
    k('s_mov_b64 exec, -1')


def cnt_wait(k, t1, t2, cnt, target, bound=2000):
    loop, done = k.newlabel('CW'), k.newlabel('CD')
    k(f'v_mov_b32 v{t2}, {XCNT+4*cnt}')
    k(f's_mov_b32 s61, {bound}')
    k.label(loop)
    k.raw(f'    ds_read_b32 v{t1}, v{t2}')
    k.raw('    s_waitcnt lgkmcnt(0)')
    k(f'v_readfirstlane_b32 s60, v{t1}')
    k(f's_cmp_ge_u32 s60, {target}')
    k(f's_cbranch_scc1 {done}')
    k('s_sub_u32 s61, s61, 1')
    k('s_cmp_eq_u32 s61, 0')
    k(f's_cbranch_scc1 {done}')
    k('s_sleep 2')
    k(f's_branch {loop}')
    k.label(done)


def wflag_poll(k, sbase, va, vr, smask, width, only_wave0):
    loop, done = k.newlabel('POLL'), k.newlabel('PDONE')
    if only_wave0:
        k(f's_cmp_lg_u32 s{S_W}, 0')
        k(f's_cbranch_scc1 {done}')
    k.label(loop)
    if width == 4:
        k.raw(f'    buffer_load_dwordx4 {v(vr,4)}, v{va}, {WSR}, s{sbase} offen sc1')
        k.raw('    s_waitcnt vmcnt(0)')
        for i in range(4):
            k(f'v_xor_b32 v{vr+i}, s{S_NONCE}, v{vr+i}')
        k(f'v_or3_b32 v{vr}, v{vr}, v{vr+1}, v{vr+2}')
        k(f'v_or_b32 v{vr}, v{vr}, v{vr+3}')
        k(f'v_cmp_ne_u32 vcc, 0, v{vr}')
    else:
        k.raw(f'    buffer_load_dword v{vr}, v{va}, {WSR}, s{sbase} offen sc1')
        k.raw('    s_waitcnt vmcnt(0)')
        k(f'v_cmp_ne_u32 vcc, s{S_NONCE}, v{vr}')
    k(f's_and_b64 vcc, vcc, s[{smask}:{smask+1}]')
    k(f's_cbranch_scc0 {done}')
    k(f's_cmp_eq_u32 s{S_BUD}, 0')
    k(f's_cbranch_scc1 {done}')
    k(f's_sub_u32 s{S_BUD}, s{S_BUD}, 1')
    k(f's_sleep {OPT.get("psl", 1)}')
    k(f's_branch {loop}')
    k.label(done)


def rflag_poll(k, sbase, va, vr, smask):
    loop, done = k.newlabel('POLL'), k.newlabel('PDONE')
    k(f's_cmp_lg_u32 s{S_W}, 0')
    k(f's_cbranch_scc1 {done}')
    k.label(loop)
    k.raw(f'    buffer_load_dword v{vr}, v{va}, {WSR}, s{sbase} offen sc1')
    k.raw('    s_waitcnt vmcnt(0)')
    k(f'v_cmp_ne_u32 vcc, s{S_NONCE}, v{vr}')
    k(f's_and_b64 vcc, vcc, s[{smask}:{smask+1}]')
    k(f's_cbranch_scc0 {done}')
    k(f's_cmp_eq_u32 s{S_BUD}, 0')
    k(f's_cbranch_scc1 {done}')
    k(f's_sub_u32 s{S_BUD}, s{S_BUD}, 1')
    k(f's_branch {loop}')
    k.label(done)


def flags_issue(k, base, vr, va):
    k(f'v_lshlrev_b32 v{va}, 4, v1')
    k(f's_lshl_b32 s60, s{S_X8}, 10')
    k(f'v_add_u32 v{va}, s60, v{va}')
    k(f's_mov_b32 s60, {base}')
    return k(f'buffer_load_dwordx4 {v(vr,4)}, v{va}, {WSR}, s60 offen sc1')


def flags_check(k, base, vr, va, tok):
    k.wait(tok)
    slow, back = k.newlabel('FSLOW'), k.newlabel('FBACK')

    def cmpops(c):
        for i in range(4):
            c(f'v_xor_b32 v{vr+i}, s{S_NONCE}, v{vr+i}')
        c(f'v_or3_b32 v{vr}, v{vr}, v{vr+1}, v{vr+2}')
        c(f'v_or_b32 v{vr}, v{vr}, v{vr+3}')
        c(f'v_cmp_ne_u32 vcc, 0, v{vr}')
    cmpops(k)
    k(f's_cbranch_vccnz {slow} ;nodrain')
    k.label(back)

    def cold(c):
        c.label(slow)
        c('s_nop 15')
        c(f's_cmp_eq_u32 s{S_BUD}, 0')
        c(f's_cbranch_scc1 {back}')
        c(f's_sub_u32 s{S_BUD}, s{S_BUD}, 1')
        c('s_sleep 12')
        c(f's_mov_b32 s58, {base}')
        c(f'buffer_load_dwordx4 {v(vr,4)}, v{va}, {WSR}, s58 offen sc1')
        c('s_waitcnt vmcnt(0)')
        cmpops(c)
        c(f's_cbranch_vccnz {slow}')
        c(f's_branch {back}')
    k.cold.append(cold)


def join(k):
    k.reset_counters()
    k.vm_issued = 1
    k.lg_issued = 1


def prologue(k):
    k('s_cmp_ge_u32 s2, 256')
    k('s_cbranch_scc1 %s' % k.realend)
    k('s_load_dwordx8 s[64:71], s[0:1], 0')
    k('s_load_dwordx8 s[72:79], s[0:1], 32')
    k('s_load_dwordx4 s[80:83], s[0:1], 64')
    k('s_memrealtime s[84:85]')
    k('v_and_b32 v1, 63, v0')
    k('v_lshrrev_b32 v2, 6, v0')
    k(f'v_readfirstlane_b32 s{S_W}, v2')
    k(f's_and_b32 s{S_X8}, s2, 7')
    k(f's_lshr_b32 s{S_I32}, s2, 3')
    k(f's_mov_b32 s{S_BUD}, {OPT.get("bud", 100000)}')
    k(f's_and_b32 s{S_W4}, s{S_W}, 3')
    k('v_and_b32 v0, 255, v0')
    k('v_mov_b32 v253, 0')
    k('s_waitcnt lgkmcnt(0)')
    for sr, src, size in ((S_X, 64, 2621440), (S_WQKV, 66, 2457600), (S_WO, 68, 819200), (S_WG, 72, 1966080),
                          (S_WU, 74, 1966080), (S_WD, 76, 1966080), (S_OUT, 78, 2621440), (S_WS, 82, WS_SIZE),
                          (S_DBG, 80, 256)):
        k(f's_mov_b32 s{sr}, s{src}')
        k(f's_and_b32 s{sr+1}, s{src+1}, 0xffff')
        k(f's_mov_b32 s{sr+2}, {size}')
        k(f's_mov_b32 s{sr+3}, 0x00020000')
    k(f's_or_b32 s60, s2, s{S_W}')
    k('s_cmp_eq_u32 s60, 0')
    k(f's_cselect_b32 s61, 0, 0x10000')
    k('s_or_b32 s60, s84, 1')
    k('v_mov_b32 v2, s60')
    k('v_mov_b32 v3, 0')
    k('s_mov_b64 exec, 1')
    k(f'buffer_store_dword v2, v3, s[{S_DBG}:{S_DBG+3}], s61 offen sc1')
    k('s_mov_b64 exec, -1')


def tile1(k):
    k(f's_and_b32 s47, s{S_X8}, 3')
    k(f's_lshr_b32 s46, s{S_X8}, 2')
    k('s_mul_i32 s46, s46, 30')
    k(f's_add_u32 s46, s46, s{S_I32}')
    k('s_lshr_b32 s44, s46, 2')
    k('s_and_b32 s46, s46, 3')
    k('s_lshl_b32 s47, s47, 2')
    k('s_add_u32 s45, s47, s46')
    k('s_add_u32 s56, s45, s44')
    for _ in range(2):
        k('s_sub_u32 s47, s56, 10')
        k('s_cmp_ge_u32 s56, 10')
        k('s_cselect_b32 s56, s47, s56')
    k('s_lshl_b32 s46, s45, 7')
    k(f's_lshl_b32 s47, s{S_W4}, 5')
    k('s_add_u32 s46, s46, s47')


def tile35(k, srt, sct, st):
    k(f's_and_b32 s{st}, s{S_X8}, 3')
    k(f's_lshl_b32 s{st}, s{st}, 3')
    k(f's_and_b32 s{srt}, s{S_I32}, 7')
    k(f's_add_u32 s{srt}, s{srt}, s{st}')
    k(f's_lshr_b32 s{st}, s{S_X8}, 2')
    k(f's_lshl_b32 s{st}, s{st}, 2')
    k(f's_lshr_b32 s{sct}, s{S_I32}, 3')
    k(f's_add_u32 s{sct}, s{sct}, s{st}')


def tile4(k, smt, sft, st):
    k(f's_and_b32 s{st}, s{S_X8}, 1')
    k(f's_lshl_b32 s{st}, s{st}, 3')
    k(f's_and_b32 s{smt}, s{S_I32}, 7')
    k(f's_add_u32 s{smt}, s{smt}, s{st}')
    k(f's_lshr_b32 s{st}, s{S_X8}, 1')
    k(f's_lshl_b32 s{st}, s{st}, 2')
    k(f's_lshr_b32 s{sft}, s{S_I32}, 3')
    k(f's_add_u32 s{sft}, s{sft}, s{st}')


def strip_id(k, sd):
    k(f's_and_b32 s{sd}, s{S_X8}, 1')
    k(f's_mul_i32 s{sd}, s{sd}, 1536')
    k(f's_lshr_b32 s61, s{S_X8}, 1')
    k('s_mul_i32 s61, s61, 384')
    k(f's_add_u32 s{sd}, s{sd}, s61')
    k(f's_lshl_b32 s61, s{S_I32}, 5')
    k(f's_add_u32 s{sd}, s{sd}, s61')


def clear_ops(k, vs, va):
    ops = []

    def o1():
        k(f's_and_b32 s60, s{S_I32}, 3')
        k(f's_lshl_b32 s61, s{S_X8}, 2')
        k('s_add_u32 s60, s60, s61')
        k('s_and_b32 s65, s60, 1')
        k('s_lshr_b32 s60, s60, 1')
        k('s_mul_i32 s60, s60, 5')
        k('s_lshl_b32 s60, s60, 15')
        k(f's_lshr_b32 s61, s{S_I32}, 2')
        k('s_lshl_b32 s61, s61, 12')
        k('s_add_u32 s60, s60, s61')
        k(f's_lshl_b32 s61, s{S_W4}, 10')
        k('s_add_u32 s60, s60, s61')
        k(f's_add_u32 s64, s60, {WS_OC}')
        k(f's_mul_i32 s61, s65, {3*32768}')
        k('s_add_u32 s66, s64, s61')
        k(f'buffer_store_dwordx4 {v(vs,4)}, v{va}, {WSR}, s66 offen sc1')

    def o2():
        k('s_add_u32 s60, s66, 32768')
        k(f'buffer_store_dwordx4 {v(vs,4)}, v{va}, {WSR}, s60 offen sc1')

    def o3():
        k('s_lshl_b32 s61, s65, 3')
        k('s_add_u32 s60, s64, s61')
        k('s_add_u32 s60, s60, 65536')
        k(f'buffer_store_dwordx2 {v(vs,2)}, v{va}, {WSR}, s60 offen sc1')

    def h1():
        tile35(k, 60, 61, 64)
        k('s_lshl_b32 s67, s61, 14')
        k('s_lshl_b32 s64, s60, 9')
        k('s_add_u32 s67, s67, s64')
        k(f's_add_u32 s67, s67, {WS_HS}')
        k('s_mul_i32 s61, s61, 10')
        k(f's_add_u32 s61, s61, s{S_W4}')
        k('s_lshl_b32 s61, s61, 15')
        k('s_lshl_b32 s60, s60, 10')
        k('s_add_u32 s64, s61, s60')
        k(f's_add_u32 s64, s64, {WS_H1}')
        k(f'buffer_store_dwordx4 {v(vs,4)}, v{va}, {WSR}, s64 offen sc1')

    def h2():
        k(f's_add_u32 s60, s64, {4*32768}')
        k(f'buffer_store_dwordx4 {v(vs,4)}, v{va}, {WSR}, s60 offen sc1')

    def h3():
        k(f's_add_u32 s60, s64, {8*32768}')
        k(f's_mov_b32 s65, {OOB}')
        k(f's_cmp_lt_u32 s{S_W4}, 2')
        k('s_cselect_b32 s60, s60, s65')
        k(f'buffer_store_dwordx4 {v(vs,4)}, v{va}, {WSR}, s60 offen sc1')

    def h4():
        k(f's_cmp_eq_u32 s{S_W4}, 2')
        k('s_cselect_b32 s60, s67, s65')
        k(f'buffer_store_dwordx2 {v(vs,2)}, v{va+1}, {WSR}, s60 offen sc1')

    def c1():
        tile4(k, 60, 61, 64)
        k('s_mul_i32 s61, s61, 384')
        k('s_mul_i32 s64, s60, 12288')
        k('s_add_u32 s61, s61, s64')
        k(f's_mul_i32 s64, s{S_W4}, 6144')
        k('s_add_u32 s61, s61, s64')
        k(f's_add_u32 s61, s61, {WS_PCS}')
        k('s_cmp_lt_u32 s60, 10')
        k('s_cselect_b32 s61, s61, s65')
        k(f's_cmp_lt_u32 s{S_W4}, 2')
        k('s_cselect_b32 s61, s61, s65')
        k('s_mov_b64 exec, 0xffffff')
        k(f'buffer_store_dwordx4 {v(vs,4)}, v{va}, {WSR}, s61 offen sc1')
        k('s_mov_b64 exec, -1')
    return [o1, o2, o3, h1, h2, h3, h4, c1]


def sparse_prefetch(k, srd, rows_per_wg, units, pitch, colshift, colmul, va, vd, nrep):
    magic = {10: 6554, 12: 5462}[units]
    rpi = 256 // units
    k(f'v_mul_u32_u24 v{vd}, {magic}, v0')
    k(f'v_lshrrev_b32 v{vd}, 16, v{vd}')
    k(f'v_mul_u32_u24 v{vd}, {pitch-units*64}, v{vd}')
    k(f'v_lshl_add_u32 v{va}, v0, 6, v{vd}')
    k(f's_mul_i32 s60, s{S_I32}, {rows_per_wg*pitch}')
    k(f's_lshr_b32 s61, s{S_X8}, {colshift}')
    k(f's_mul_i32 s61, s61, {colmul}')
    k('s_add_u32 s60, s60, s61')
    for r in range(nrep):
        if r:
            k(f's_add_u32 s60, s60, {rpi*pitch}')
        for sr in srd:
            k(f'buffer_load_dword v{vd}, v{va}, s[{sr}:{sr+3}], s60 offen')


def pf_wo(k, va, vd):
    sparse_prefetch(k, [S_WO], 20, 10, 1280, 2, 640, va, vd, 1)


def pf_wd(k, va, vd):
    sparse_prefetch(k, [S_WD], 48, 10, 1280, 2, 640, va, vd, 2)


def pf_wgu(k, va, vd):
    sparse_prefetch(k, [S_WG, S_WU], 20, 12, 3072, 1, 768, va, vd, 1)


P1_R, P1_SLOT = 4, 32768


def p1_loader(k, g3):
    tile1(k)
    S_NT, S_TOK, S_LW, S_SIG = 44, 46, 48, 55
    lab_h, lab_e = k.newlabel('L_HELP'), k.newlabel('L_P1E')
    k(f's_cmp_ge_u32 s{S_I32}, 30')
    k(f's_cbranch_scc1 {lab_h}')
    k('s_cmp_ge_u32 s56, 5')
    k(f's_cselect_b32 s{S_SIG}, 5, 0')
    k('v_lshrrev_b32 v10, 3, v1')
    k(f'v_add_u32 v10, s{S_TOK}, v10')
    k('v_mul_u32_u24 v10, 1280, v10')
    k('v_and_b32 v11, 7, v1')
    k('v_lshrrev_b32 v12, 4, v1')
    k('v_xor_b32 v11, v11, v12')
    k('v_xor_b32 v13, 4, v11')
    k('v_lshl_add_u32 v2, v11, 4, v10')
    k('v_lshl_add_u32 v3, v13, 4, v10')
    k(f'v_add_u32 v3, {10240-1024}, v3')
    k(f'v_add_u32 v4, {2*(10240-1024)}, v2')
    k(f'v_add_u32 v5, {2*(10240-1024)}, v3')
    k(f's_lshl_b32 s47, s{S_W4}, 4')
    k('v_add_u32 v10, s47, v12')
    k('v_mul_u32_u24 v10, 3840, v10')
    k(f's_lshl_b32 s47, s{S_NT}, 8')
    k('v_add_u32 v10, s47, v10')
    k('v_bfe_u32 v11, v1, 2, 2')
    k('v_xor_b32 v11, v11, v12')
    k('v_lshl_add_u32 v10, v11, 6, v10')
    k('v_and_b32 v11, 3, v1')
    k('v_lshl_add_u32 v6, v11, 4, v10')
    for i in range(1, 4):
        k(f'v_add_u32 v{6+i}, {i*(4*3840-1024)}, v6')
    k(f's_lshl_b32 s{S_LW}, s{S_W4}, 12')
    tok = {}

    def issue(st):
        slot = st % P1_R
        k(f's_add_u32 m0, s{S_LW}, {slot*P1_SLOT}')
        k(f's_lshl_b32 s49, s{S_SIG}, 7')
        for i in range(4):
            k(f'buffer_load_dwordx4 v{2+i}, s[{S_X}:{S_X+3}], s49 offen offset:{i*1024} lds')
        k(f's_add_u32 m0, s{S_LW}, {slot*P1_SLOT+16384}')
        k(f's_mul_i32 s50, s{S_SIG}, {64*3840}')
        k(f's_add_u32 s{S_SIG}, s{S_SIG}, 1')
        k(f's_cmp_eq_u32 s{S_SIG}, 10')
        k(f's_cselect_b32 s{S_SIG}, 0, s{S_SIG}')
        for i in range(4):
            tok[st] = k(f'buffer_load_dwordx4 v{6+i}, s[{S_WQKV}:{S_WQKV+3}], s50 offen offset:{i*1024} lds')
    issue(0)
    issue(1)
    stamp(k, 1)
    k.wait(tok[0])
    k('s_barrier')
    stamp(k, 2)
    issue(2)
    issue(3)
    for st in range(1, 10):
        k.wait(tok[st])
        k('s_barrier')
        if st + 3 < 10:
            issue(st + 3)
        if st == 6:
            stamp(k, 3)
            pf_wo(k, 20, 21)
    k(f's_branch {lab_e}')
    k.label(lab_h)
    for st in range(10):
        k('s_barrier')
    pf_wo(k, 20, 21)
    k.label(lab_e)
    join(k)
    nonce_from_lds(k, 22)
    g3.dma_setup(24)
    p2_setup(k)
    stamp(k, 9)
    k('s_barrier')
    stamp(k, 10)
    runall(k, g3.dma_step(4))
    stamp(k, 11)


def p1_compute(k):
    tile1(k)
    S_NT, S_MT, S_TOK, S_LW, S_RHO = 44, 45, 46, 48, 56
    k(f's_lshl_b32 s{S_LW}, s{S_W4}, 12')
    for i in range(4):
        k(f'v_mov_b32 v{96+i}, -1')
    k('v_lshlrev_b32 v100, 4, v1')
    k('v_lshlrev_b32 v101, 3, v1')
    k('v_and_b32 v40, 31, v1')
    k('v_lshlrev_b32 v109, 3, v40')
    k('v_lshlrev_b32 v102, 2, v40')
    k(f's_lshl_b32 s51, s{S_RHO}, 14')
    k(f's_lshl_b32 s47, s{S_TOK}, 3')
    k('s_add_u32 s51, s51, s47')
    k(f's_add_u32 s51, s51, {WS_PS}')
    k(f's_mov_b32 s47, {OOB}')
    k(f's_cmp_lt_u32 s{S_NT}, 10')
    k('s_cselect_b32 s51, s51, s47')
    k(f's_mul_i32 s52, s{S_RHO}, 7680')
    k(f's_lshl_b32 s49, s{S_NT}, 9')
    k('s_add_u32 s52, s52, s49')
    k(f's_lshl_b32 s49, s{S_W4}, 7')
    k('s_add_u32 s52, s52, s49')
    k(f's_add_u32 s52, s52, {WS_PC}')
    k(f's_cmp_lt_u32 s{S_MT}, 10')
    k('s_cselect_b32 s52, s52, s47')
    k(f's_cmp_lt_u32 s{S_I32}, 30')
    k('s_cselect_b32 s51, s51, s47')
    k('s_cselect_b32 s52, s52, s47')
    k(f'buffer_store_dwordx2 {v(96,2)}, v109, {WSR}, s51 offen sc1')
    sctok = k(f'buffer_store_dword v96, v102, {WSR}, s52 offen sc1')
    NV = 252
    if OPT.get('warm', 0):
        k('v_lshlrev_b32 v110, 7, v0')
        k(f's_and_b32 s60, s{S_X8}, 3')
        k('s_lshl_b32 s60, s60, 5')
        k(f's_add_u32 s60, s60, s{S_I32}')
        k('s_mul_i32 s60, s60, 20480')
        k('v_cmp_gt_u32 vcc, 160, v0')
        k(f'v_mov_b32 v111, {OOB}')
        k('v_cndmask_b32 v110, v111, v110, vcc')
        k(f'buffer_load_dword v111, v110, s[{S_X}:{S_X+3}], s60 offen')
        k('v_lshrrev_b32 v110, 4, v0')
        k('v_mul_u32_u24 v110, 3840, v110')
        k('v_and_b32 v112, 15, v0')
        k('v_lshl_add_u32 v110, v112, 7, v110')
        k(f's_mul_i32 s60, s{S_I32}, {20*3840}')
        k(f's_lshr_b32 s61, s{S_X8}, 2')
        k('s_mul_i32 s61, s61, 1792')
        k('s_add_u32 s60, s60, s61')
        k(f'buffer_load_dword v113, v110, s[{S_WQKV}:{S_WQKV+3}], s60 offen')
        k(f's_add_u32 s60, s60, {16*3840}')
        k(f's_mov_b32 s61, {OOB}')
        k(f's_cmp_eq_u32 s{S_W4}, 0')
        k('s_cselect_b32 s60, s60, s61')
        k(f'buffer_load_dword v114, v110, s[{S_WQKV}:{S_WQKV+3}], s60 offen')
    k('v_lshrrev_b32 v41, 5, v1')
    k('v_bfe_u32 v42, v1, 1, 3')
    k('v_xor_b32 v42, v42, v41')
    k('v_lshlrev_b32 v43, 7, v40')
    k('v_lshl_add_u32 v43, v42, 4, v43')
    k(f'v_add_u32 v10, s{S_LW}, v43')
    for ks in range(1, 4):
        k(f'v_xor_b32 v{10+ks}, {ks*32}, v10')
    k('v_bfe_u32 v42, v1, 2, 2')
    k('v_lshl_add_u32 v43, v41, 3, v42')
    k('v_lshlrev_b32 v43, 8, v43')
    k('v_bfe_u32 v44, v1, 4, 1')
    k('v_lshl_add_u32 v43, v44, 5, v43')
    k('v_and_b32 v44, 3, v1')
    k('v_lshl_add_u32 v43, v44, 3, v43')
    k('v_add_u32 v43, 16384, v43')
    for j in range(4):
        k(f's_add_u32 s49, s{S_W4}, {j}')
        k('s_and_b32 s49, s49, 3')
        k('v_xor_b32 v44, s49, v42')
        k(f'v_lshl_add_u32 v{14+j}, v44, 6, v43')
    for i in range(8):
        k(f'v_add_u32 v{18+i}, 65536, v{10+i}')
    VSUM, VSQ, VCS, VONE = 34, 35, 36, 37
    k(f'v_mov_b32 v{VSUM}, 0')
    k(f'v_mov_b32 v{VSQ}, 0')
    k(f'v_mov_b32 v{VCS}, 0')
    k(f'v_mov_b32 v{VONE}, 0x3f803f80')
    k('v_lshrrev_b32 v105, 5, v1')
    k(f'v_mul_u32_u24 v103, {5*16384}, v105')
    k('v_add_u32 v103, v103, v109')
    k(f'v_mul_u32_u24 v104, {5*7680}, v105')
    k('v_add_u32 v104, v104, v102')
    k(f's_lshl_b32 s53, s{S_TOK}, 3')
    k(f's_add_u32 s53, s53, {WS_PS}')
    k(f's_lshl_b32 s54, s{S_NT}, 9')
    k(f's_lshl_b32 s49, s{S_W4}, 7')
    k('s_add_u32 s54, s54, s49')
    k(f's_add_u32 s54, s54, {WS_PC}')
    k('s_sub_u32 s55, s56, 5')
    k('s_cmp_ge_u32 s56, 5')
    k('s_cselect_b32 s55, s55, s56')
    XF, WF, ACC = 40, 48, 128
    PR, PCR, FL = 232, 242, 248
    stamp(k, 1)
    def nonce_share():
        def blk():
            loop, done = k.newlabel('NL'), k.newlabel('ND')
            first = k.newlabel('NF')
            k(f's_branch {first}')
            k.label(loop)
            k.raw(f'    buffer_load_dword v{NV}, v{NV+1}, s[{S_DBG}:{S_DBG+3}], 0 offen sc1')
            k.label(first)
            k.raw('    s_waitcnt vmcnt(0)')
            k(f'v_readfirstlane_b32 s{S_NONCE}, v{NV}')
            k(f's_cmp_lg_u32 s{S_NONCE}, 0')
            k(f's_cbranch_scc1 {done}')
            k(f's_cmp_eq_u32 s{S_BUD}, 0')
            k(f's_cbranch_scc1 {done}')
            k(f's_sub_u32 s{S_BUD}, s{S_BUD}, 1')
            k('s_sleep 4')
            k(f's_branch {loop}')
            k.label(done)
            k(f'v_mov_b32 v{NV+1}, {XNONCE}')
            k.raw(f'    ds_write_b32 v{NV+1}, v{NV}')
            k.raw('    s_waitcnt lgkmcnt(0)')
        k(f's_cmp_eq_u32 s{S_W}, 0')
        k.outline('s_cbranch_scc1', blk)
        k.wait(sctok)

    def nonce_pre():
        def blk():
            k(f'v_mov_b32 v{NV+1}, 0')
            k.raw(f'    buffer_load_dword v{NV}, v{NV+1}, s[{S_DBG}:{S_DBG+3}], 0 offen sc1')
        k(f's_cmp_eq_u32 s{S_W}, 0')
        k.outline('s_cbranch_scc1', blk)

    def nonce_get():
        rflag_store(k, WS_F0, 2, 107, 108)
        nonce_from_lds(k, 107)
    k(f'v_mov_b32 v107, {XCNT}')
    k('v_mov_b32 v108, 0')
    k('ds_write_b32 v107, v108')
    k('ds_write_b32 v107, v108 offset:4')
    k.wait_all(vm=False)
    stamp(k, 2)
    k('s_barrier')
    nonce_pre()
    stamp(k, 3)
    lab_v, lab_h, lab_done = k.newlabel('P1_V'), k.newlabel('C_HELP'), k.newlabel('C_P1D')
    k(f's_cmp_ge_u32 s{S_I32}, 30')
    k(f's_cbranch_scc1 {lab_h}')
    k(f's_cmp_ge_u32 s{S_NT}, 10')
    k(f's_cbranch_scc1 {lab_v}')
    saved = k.snap()
    T = {}

    def part_loads(c):
        for n in range(5):
            c(f's_add_u32 s58, s53, {n*16384}')
            c(f'buffer_load_dwordx2 {v(PR+2*n,2)}, v103, {WSR}, s58 offen sc1')
        tok = None
        for n in range(5):
            c(f's_add_u32 s58, s54, {n*7680}')
            tok = c(f'buffer_load_dword v{PCR+n}, v104, {WSR}, s58 offen sc1')
        return tok

    def mainloop(transposed):
        rd = {}

        def reads(kk):
            st, ks = kk // 4, kk % 4
            slot = st % P1_R
            q, so = slot // 2, (slot % 2) * P1_SLOT
            b = kk % 2
            ops = [[] for _ in range(4)]
            ops[0].append(lambda: rd.__setitem__((kk, 'x'), k(
                f'ds_read_b128 {v(XF+4*b,4)}, v{10+8*q+ks} offset:{so}')))
            for j in range(4):
                for hf in range(2):
                    ops[j].append(lambda j=j, hf=hf: rd.__setitem__((kk, j), k(
                        f'ds_read_b64_tr_b16 {v(WF+16*b+4*j+2*hf,2)}, v{14+8*q+j} offset:{so+ks*4096+hf*1024}')))
            return ops
        for l_ in reads(0):
            runall(k, l_)
        clr = clear_ops(k, 96, 100)
        for kk in range(40):
            b = kk % 2
            if kk % 8 == 4:
                stamp(k, 4 + kk // 8)
            fill, rds = [], []
            if kk >= OPT.get('clr0', 31) and clr:
                fill.append(clr.pop(0))
            if kk + 1 < 40:
                if (kk + 1) % 4 == 0:
                    if kk == 7:
                        nonce_share()
                    k.wait_all(vm=False)
                    k('s_barrier')
                    if kk == 7:
                        nonce_get()
                rds = reads(kk + 1)
            if kk < 20:
                def dots(b=b, kk=kk):
                    for i in range(4):
                        k(f'v_dot2_f32_bf16 v{VSUM}, v{XF+4*b+i}, v{VONE}, v{VSUM}')
                        k(f'v_dot2_f32_bf16 v{VSQ}, v{XF+4*b+i}, v{XF+4*b+i}, v{VSQ}')
                        k(f'v_dot2_f32_bf16 v{VCS}, v{WF+16*b+i}, v{VONE}, v{VCS}')
                    if kk % 4 == 3:
                        xsum(k, VSUM, 80, 81)
                        xsum(k, VSQ, 80, 81)
                        xsum(k, VCS, 80, 81)
                        k.raw(f'    buffer_store_dwordx2 {v(VSUM,2)}, v109, {WSR}, s51 offen sc1')
                        k.raw(f'    buffer_store_dword v{VCS}, v102, {WSR}, s52 offen sc1')

                def g_(dots=dots, kk=kk):
                    k(f's_cmp_eq_u32 s55, {kk//4}')
                    k.outline('s_cbranch_scc1', dots)
                fill.append(g_)
            if kk == 22:
                fill.append(lambda: T.__setitem__('flags', flags_issue(k, WS_F0, FL, 106)))
            if kk == 30:
                def f():
                    flags_check(k, WS_F0, FL, 106, T['flags'])
                    T['part'] = part_loads(k)
                fill.append(f)
            if kk == 38:
                fill.append(lambda: finalize(transposed))
            mf = []
            for j in range(4):
                c = '0' if kk == 0 else v(ACC + 16 * j, 16)
                A_, B_ = v(WF + 16 * b + 4 * j, 4), v(XF + 4 * b, 4)
                if not transposed:
                    A_, B_ = B_, A_
                mf.append((lambda j=j: [rd[kk, 'x'], rd[kk, j]],
                           f'v_mfma_f32_32x32x16_bf16 {v(ACC+16*j,16)}, {A_}, {B_}, {c}'))
            roll_step(k, mf, rds, fill)

    def finalize(transposed):
        k.wait(T['part'])
        check_group(k, list(range(PR, PR + 10)) + list(range(PCR, PCR + 5)), 80, part_loads)
        for n in range(1, 5):
            k(f'v_pk_add_f32 {v(PR,2)}, {v(PR,2)}, {v(PR+2*n,2)}')
            k(f'v_add_f32 v{PCR}, v{PCR}, v{PCR+n}')
        xsum(k, PCR, 80, 81)
        k(f's_lshl_b32 s49, s{S_W4}, 7')
        k(f's_add_u32 s49, s49, {XCH}')
        k('v_add_u32 v82, s49, v102')
        k(f'ds_write_b32 v82, v{PCR}')
        vsum, vsq = PR, PR + 1
        xsum(k, vsum, 80, 81)
        xsum(k, vsq, 80, 81)
        k(f'v_mul_f32 v{vsum}, {f32(1.0/640)}, v{vsum}')
        k(f'v_mul_f32 v{vsq}, {f32(1.0/640)}, v{vsq}')
        k(f'v_fma_f32 v{vsq}, -v{vsum}, v{vsum}, v{vsq}')
        k(f'v_max_f32 v{vsq}, 0, v{vsq}')
        rbf(k, 80, vsum)
        rbf(k, 81, vsq)
        k(f'v_add_f32 v81, {f32(1e-5)}, v81')
        rbf(k, 81, 81)
        k('v_sqrt_f32 v81, v81')
        rbf(k, 81, 81)
        k('v_rcp_f32 v38, v81')
        if transposed:
            k(f's_mov_b32 s49, {f32(math.log2(math.e)/math.sqrt(20.0))}')
            k(f's_cmp_lt_u32 s{S_NT}, 5')
            k('s_cselect_b32 s49, s49, 1.0')
            k('v_mul_f32 v38, s49, v38')
        k('v_mul_f32 v39, v80, v38')
        k('v_sub_f32 v39, 0, v39')
        if not transposed:
            k(f's_lshl_b32 s49, s{S_W4}, 8')
            k(f's_add_u32 s49, s49, {XCH}')
            k('v_add_u32 v83, s49, v102')
            k('ds_write_b32 v83, v38 offset:1024')
            k('ds_write_b32 v83, v39 offset:1152')

    def fin():
        stamp(k, 10)
        k(f's_lshl_b32 s49, s{S_MT}, 4')
        k(f's_add_u32 s49, s49, s{S_NT}')
        k.wait_all()
        wflag_store(k, WS_F2, 49, 80, 81, 0)
        k(f's_branch {lab_done}')

    mainloop(True)
    stamp(k, 9)
    k.wait_all(vm=False)
    k('s_barrier')
    k(f's_lshl_b32 s49, s{S_TOK}, 3')
    k('v_add_u32 v84, s49, v109')
    k('v_lshl_add_u32 v84, v105, 14, v84')
    k('v_lshlrev_b32 v85, 4, v105')
    k(f'v_add_u32 v85, {XCH}, v85')
    toks = {}

    def csreads(j):
        k(f's_add_u32 s49, s{S_W4}, {j}')
        k('s_and_b32 s49, s49, 3')
        k('s_lshl_b32 s52, s49, 7')
        k('v_add_u32 v86, s52, v85')
        for a_ in range(4):
            toks[j, a_] = k(f'ds_read_b128 {v(192+16*(j%2)+4*a_,4)}, v86 offset:{a_*32}')
    csreads(0)
    csreads(1)
    for j in range(4):
        k(f's_add_u32 s49, s{S_W4}, {j}')
        k('s_and_b32 s49, s49, 3')
        k(f's_lshl_b32 s52, s{S_NT}, 5')
        k('s_lshl_b32 s53, s49, 3')
        k('s_add_u32 s52, s52, s53')
        k('s_lshl_b32 s52, s52, 14')
        C0 = 192 + 16 * (j % 2)
        for a_ in range(4):
            k.wait(toks[j, a_])
            r0 = ACC + 16 * j + 4 * a_
            for p in range(2):
                k(f'v_pk_mul_f32 {v(C0+4*a_+2*p,2)}, {v(C0+4*a_+2*p,2)}, {v(38,2)} op_sel:[0,1] op_sel_hi:[1,1]')
                k(f'v_pk_fma_f32 {v(r0+2*p,2)}, {v(r0+2*p,2)}, {v(38,2)}, {v(C0+4*a_+2*p,2)} op_sel_hi:[1,0,1]')
            k(f'v_cvt_pk_bf16_f32 v{112+2*a_}, v{r0}, v{r0+1}')
            k(f'v_cvt_pk_bf16_f32 v{113+2*a_}, v{r0+2}, v{r0+3}')
            k(f's_add_u32 s53, s52, {WS_QG + a_*32768}')
            k(f'buffer_store_dwordx2 {v(112+2*a_,2)}, v84, {WSR}, s53 offen sc1')
        if j + 2 < 4:
            csreads(j + 2)
    fin()
    k.label(lab_v)
    k.restore(saved)
    mainloop(False)
    stamp(k, 9)
    k.wait_all(vm=False)
    k('s_barrier')
    k(f's_lshl_b32 s49, s{S_W4}, 8')
    k(f's_add_u32 s49, s49, {XCH}')
    k('v_lshlrev_b32 v86, 4, v105')
    k('v_add_u32 v86, s49, v86')
    tl = []
    for a_ in range(4):
        tl.append(k(f'ds_read_b128 {v(192+4*a_,4)}, v86 offset:{1024+a_*32}'))
        tl.append(k(f'ds_read_b128 {v(208+4*a_,4)}, v86 offset:{1152+a_*32}'))
    for j in range(4):
        k(f's_add_u32 s52, s{S_W4}, {j}')
        k('s_and_b32 s52, s52, 3')
        k('s_lshl_b32 s52, s52, 7')
        k(f's_add_u32 s52, s52, {XCH}')
        k('v_add_u32 v87, s52, v102')
        tl.append(k(f'ds_read_b32 v{224+2*j}, v87'))
    k('v_mul_u32_u24 v84, 10240, v105')
    k('v_lshl_add_u32 v84, v102, 2, v84')
    k(f's_lshr_b32 s53, s{S_TOK}, 5')
    k('s_mul_i32 s53, s53, 40960')
    k(f's_sub_u32 s54, s{S_NT}, 10')
    k('s_lshl_b32 s54, s54, 11')
    k('s_add_u32 s53, s53, s54')
    k(f's_add_u32 s53, s53, {WS_VF}')
    k.wait(*tl)
    for j in range(4):
        k(f's_add_u32 s52, s{S_W4}, {j}')
        k('s_and_b32 s52, s52, 3')
        k('s_lshl_b32 s52, s52, 9')
        k('s_add_u32 s52, s52, s53')
        for m in range(2):
            for p in range(4):
                i = 8 * m + 2 * p
                r0 = ACC + 16 * j + i
                k(f'v_pk_mul_f32 {v(88+2*(p%2),2)}, {v(208+i,2)}, {v(224+2*j,2)} op_sel_hi:[1,0]')
                k(f'v_pk_fma_f32 {v(r0,2)}, {v(r0,2)}, {v(192+i,2)}, {v(88+2*(p%2),2)}')
                k(f'v_cvt_pk_bf16_f32 v{112+8*(j%2)+4*m+p}, v{r0}, v{r0+1}')
            k(f's_add_u32 s54, s52, {m*20480}')
            k(f'buffer_store_dwordx4 {v(112+8*(j%2)+4*m,4)}, v84, {WSR}, s54 offen sc1')
    fin()
    k.label(lab_h)
    k.restore(saved)
    nonce_share()
    k('s_barrier')
    nonce_get()
    for _ in range(8):
        k('s_barrier')
    runall(k, clear_ops(k, 96, 100))
    k('s_barrier')
    k(f's_lshl_b32 s49, s{S_X8}, 1')
    k(f's_add_u32 s49, s49, s{S_I32}')
    k('s_sub_u32 s49, s49, 30')
    k('s_lshl_b32 s49, s49, 4')
    k('s_add_u32 s49, s49, 15')
    k.wait_all()
    wflag_store(k, WS_F2, 49, 80, 81, 0)
    k.label(lab_done)


class G35:
    def __init__(self, k, which, groups, vb, sb):
        self.k = k
        self.which = which
        self.KT = 640 if which == 3 else 1536
        self.NST = self.KT // 128
        self.SB = S_WO if which == 3 else S_WD
        self.groups = groups
        self.vb = vb
        self.sb = sb
        self.btok = {}
        self.rtok = {}

    def dma_setup(self, t0):
        k, vb, sb = self.k, self.vb, self.sb
        tile35(k, 61, 60, sb)
        k('s_mul_i32 s60, s60, 160')
        k(f's_mul_i32 s{sb+1}, s{S_W4}, {(self.KT//4)*1280}')
        k(f's_add_u32 s60, s60, s{sb+1}')
        for n in range(5):
            k(f'v_add_u32 v{t0}, {64*n}, v1')
            k(f'v_mul_u32_u24 v{t0+1}, 6554, v{t0}')
            k(f'v_lshrrev_b32 v{t0+1}, 16, v{t0+1}')
            k(f'v_mul_u32_u24 v{t0+2}, 10, v{t0+1}')
            k(f'v_sub_u32 v{t0+2}, v{t0}, v{t0+2}')
            k(f'v_bfe_u32 v{t0+3}, v{t0+1}, 3, 1')
            k(f'v_lshlrev_b32 v{t0+3}, 2, v{t0+3}')
            k(f'v_xor_b32 v{t0+1}, v{t0+1}, v{t0+3}')
            k(f'v_mul_u32_u24 v{t0+1}, 1280, v{t0+1}')
            k(f'v_lshl_add_u32 v{vb+n}, v{t0+2}, 4, v{t0+1}')
            k(f'v_add_u32 v{vb+n}, s60, v{vb+n}')
            if 0 < n < 4:
                k(f'v_subrev_u32 v{vb+n}, {n*1024}, v{vb+n}')
        k(f's_mul_i32 s{sb}, s{S_W4}, 5120')

    def dma_step(self, st):
        k, vb, sb = self.k, self.vb, self.sb
        base = self.groups[st % len(self.groups)]
        SB = self.SB
        ops = []

        def f0():
            k(f's_add_u32 m0, s{sb}, {base}')
            k(f's_mov_b32 s{sb+1}, {st*32*1280}')
        ops.append(f0)
        for n in range(4):
            ops.append(lambda n=n: self.btok.__setitem__(st, k(
                f'buffer_load_dwordx4 v{vb+n}, s[{SB}:{SB+3}], s{sb+1} offen offset:{n*1024} lds')))
        ops.append(lambda: k(f's_add_u32 m0, s{sb}, {base+4096}'))
        ops.append(lambda: self.btok.__setitem__(st, k(
            f'buffer_load_dwordx4 v{vb+4}, s[{SB}:{SB+3}], s{sb+1} offen lds')))
        return ops

    def breg_load(self, st, r0):
        k, vb, sb, SB = self.k, self.vb, self.sb, self.SB
        k(f's_mov_b32 s{sb+1}, {st*32*1280}')
        for n in range(4):
            k(f'buffer_load_dwordx4 {v(r0+4*n,4)}, v{vb+n}, s[{SB}:{SB+3}], s{sb+1} offen offset:{n*1024}')
            if OPT.get('pace', 0):
                k(f's_sleep {OPT.get("pace")}')
        self.rtok[st] = (k(f'buffer_load_dwordx4 {v(r0+16,4)}, v{vb+4}, s[{SB}:{SB+3}], s{sb+1} offen'), r0)

    def breg_write(self, st, va):
        k = self.k
        tok, r0 = self.rtok[st]
        base = self.groups[st % len(self.groups)]
        q, so = base // 61440, base % 61440
        k.wait(tok)
        for n in range(5):
            self.btok[st] = k(f'ds_write_b128 v{va+q}, {v(r0+4*n,4)} offset:{so+n*1024}')

    def loader(self, nb_pre, st0=0):
        k, NST = self.k, self.NST
        NG = len(self.groups)
        k('v_lshlrev_b32 v12, 4, v1')
        k(f's_mul_i32 s46, s{S_W4}, 5120')
        k('v_add_u32 v21, s46, v12')
        k('v_add_u32 v22, 61440, v21')
        k('v_add_u32 v23, 122880, v21')
        stamp(k, st0)
        nb = nb_pre
        for st in range(NST):
            k.wait(self.btok[st])
            k('s_barrier')
            if nb < NST and nb - NG <= st - 1:
                if nb in self.rtok:
                    self.breg_write(nb, 21)
                else:
                    runall(k, self.dma_step(nb))
                nb += 1
        stamp(k, st0 + 3)

    def compute(self, own_tok, st0=0):
        k, NST, which, KT = self.k, self.NST, self.which, self.KT
        NG = len(self.groups)
        ABASE = WS_OC if which == 3 else WS_HC
        S_RT, S_CT, S_PAR = 44, 45, 50
        tile35(k, 44, 45, 46)
        k('s_mov_b32 s50, 0')
        k(f's_mul_i32 s51, s{S_W4}, 5120')
        k('v_and_b32 v15, 15, v1')
        k('v_lshrrev_b32 v16, 4, v1')
        k('v_bfe_u32 v17, v1, 2, 2')
        k('v_lshl_add_u32 v18, v16, 3, v17')
        k('v_bfe_u32 v20, v1, 4, 1')
        k('v_lshlrev_b32 v20, 2, v20')
        k('v_xor_b32 v19, v18, v20')
        k('v_xor_b32 v22, 4, v19')
        k('v_and_b32 v21, 3, v1')
        RA = 24
        for hf, src in ((0, 19), (1, 22)):
            k(f'v_mul_u32_u24 v{RA+hf}, 160, v{src}')
            k(f'v_lshl_add_u32 v{RA+hf}, v21, 3, v{RA+hf}')
            k(f'v_add_u32 v{RA+hf}, s51, v{RA+hf}')
        QS = 61440
        for q in (1, 2):
            for i in range(2):
                k(f'v_add_u32 v{RA+2*q+i}, {q*QS}, v{RA+i}')
        k('v_lshlrev_b32 v2, 4, v1')
        k('v_lshlrev_b32 v3, 4, v15')
        k('v_lshl_add_u32 v3, v16, 15, v3')
        for tau in range(4):
            k(f's_add_u32 s46, s{S_W4}, {tau}')
            k('s_and_b32 s46, s46, 3')
            k('s_lshl_b32 s46, s46, 8')
            k(f'v_add_u32 v{4+tau}, s46, v3')
        k('s_lshl_b32 s53, s44, 10')
        k(f's_mul_i32 s54, s{S_W4}, {(KT//32)*32768}')
        k('s_add_u32 s53, s53, s54')
        k(f's_add_u32 s53, s53, {ABASE}')
        NW = 5
        AFR = 164
        atok = {}

        def aload(c, st, sreg):
            c(f's_add_u32 s{sreg}, s53, {st*4*32768}')
            t_ = None
            for t in range(4):
                t_ = c(f'buffer_load_dwordx4 {v(AFR+16*(st%NW)+4*t,4)}, v{4+t}, {WSR}, s{sreg} offen sc1')
            return t_
        RES = 244
        k(f's_lshl_b32 s46, s{S_RT}, 6')
        k(f's_lshl_b32 s47, s{S_W4}, 4')
        k('s_add_u32 s46, s46, s47')
        S_TK = 46
        k('v_add_u32 v12, s46, v15')
        if which == 3:
            k('v_mul_u32_u24 v13, 1280, v12')
            k('v_lshl_add_u32 v13, v16, 3, v13')
            k(f's_mul_i32 s47, s{S_CT}, 160')
            k(f's_lshl_b32 s48, s{S_PAR}, 5')
            k('s_add_u32 s48, s48, s47')
            k(f's_lshl_b32 s49, s{S_PAR}, 7')
            k('s_sub_u32 s49, 128, s49')
            k('s_add_u32 s49, s49, s47')
            for jt in range(4):
                k(f'buffer_load_dwordx2 {v(RES+2*jt,2)}, v13, s[{S_X}:{S_X+3}], s48 offen offset:{jt*32}')
            rtk = k(f'buffer_load_dwordx2 {v(RES+8,2)}, v13, s[{S_X}:{S_X+3}], s49 offen')
            stamp(k, st0)
            k.wait(own_tok)
        else:
            stamp(k, st0)
            k.wait(own_tok)
        stamp(k, st0 + 1)
        ACC, WF = 44, 124
        D = OPT.get('ad', 3)
        for st in range(D):
            atok[st] = aload(k, st, 54)
        rt = {}

        def reads(st):
            base = self.groups[st % NG]
            q, so = base // QS, base % QS
            b = st % 2
            ops = []
            for jt in range(5):
                for hf in range(2):
                    ops.append(lambda jt=jt, hf=hf: rt.__setitem__((st, jt), k(
                        f'ds_read_b64_tr_b16 {v(WF+20*b+4*jt+2*hf,2)}, v{RA+2*q+hf} offset:{so+jt*32}')))
            return ops
        if which == 5:
            k('s_barrier')
        runall(k, reads(0))
        na = D
        for st in range(NST):
            b = st % 2
            R0 = AFR + 16 * (st % NW)
            k.wait(atok[st])
            check_group(k, range(R0, R0 + 16), 14, lambda c, st=st: aload(c, st, 58))
            if st == 0:
                stamp(k, st0 + 2)
            mf = []
            for t in range(4):
                for jt in range(5):
                    acc = v(ACC + 20 * t + 4 * jt, 4)
                    c = '0' if st == 0 else acc
                    mf.append((lambda jt=jt: [rt[st, jt]],
                               f'v_mfma_f32_16x16x32_bf16 {acc}, {v(WF+20*b+4*jt,4)}, {v(R0+4*t,4)}, {c}'))
            rds = [[] for _ in range(20)]
            cnt = 0
            while na < NST and na <= st + NW - 1 and cnt < 2:
                def al(na=na):
                    k(f's_add_u32 s54, s53, {na*4*32768}')
                rds[0 + 10 * cnt].append(al)
                for t in range(4):
                    rds[0 + 10 * cnt + 2 * t].append(lambda t=t, na=na: atok.__setitem__(na, k(
                        f'buffer_load_dwordx4 {v(AFR+16*(na%NW)+4*t,4)}, v{4+t}, {WSR}, s54 offen sc1')))
                na += 1
                cnt += 1
            if st + 1 < NST:
                if which == 5:
                    def bar():
                        k.wait_all(vm=False)
                        k('s_barrier')
                    rds[5].append(bar)
                for i, f in enumerate(reads(st + 1)):
                    rds[5 + i].append(f)
            roll_step(k, mf, rds, [])
        stamp(k, st0 + 3)
        for tau in range(1, 4):
            k(f's_add_u32 s47, s{S_W4}, {tau}')
            k('s_and_b32 s47, s47, 3')
            k('s_mul_i32 s47, s47, 15360')
            k(f'v_add_u32 v{17+tau}, s47, v2')
        k(f's_mul_i32 s47, s{S_W4}, 15360')
        k('v_add_u32 v21, s47, v2')
        k('s_barrier')
        for tau in range(1, 4):
            for jt in range(5):
                k(f'ds_write_b128 v{17+tau}, {v(ACC+20*tau+4*jt,4)} offset:{(tau-1)*5120+jt*1024}')
        k.wait_all(vm=False)
        k('s_barrier')
        S0, S1 = ACC, 124
        toks = {}
        for sidx in range(3):
            for jt in range(5):
                toks[sidx, jt] = k(f'ds_read_b128 {v(S1+20*sidx+4*jt,4)}, v21 offset:{sidx*5120+jt*1024}')
        for sidx in range(3):
            for jt in range(5):
                k.wait(toks[sidx, jt])
                for p in range(2):
                    r = 4 * jt + 2 * p
                    k(f'v_pk_add_f32 {v(S0+r,2)}, {v(S0+r,2)}, {v(S1+20*sidx+r,2)}')
        if which == 3:
            k('s_barrier')
            k.wait(rtk)
        stamp(k, st0 + 4)
        PK = 190
        for i in range(10):
            k(f'v_cvt_pk_bf16_f32 v{PK+i}, v{S0+2*i}, v{S0+2*i+1}')
        for i in range(10):
            k(f'v_lshlrev_b32 v{S0+2*i}, 16, v{PK+i}')
            k(f'v_and_b32 v{S0+2*i+1}, 0xffff0000, v{PK+i}')
            k(f'v_lshlrev_b32 v{S1+2*i}, 16, v{RES+i}')
            k(f'v_and_b32 v{S1+2*i+1}, 0xffff0000, v{RES+i}')
            k(f'v_pk_add_f32 {v(S0+2*i,2)}, {v(S0+2*i,2)}, {v(S1+2*i,2)}')
        if which == 3:
            PK = RES
        for i in range(10):
            k(f'v_cvt_pk_bf16_f32 v{PK+i}, v{S0+2*i}, v{S0+2*i+1}')
        if which == 3:
            k('v_lshlrev_b32 v13, 4, v12')
            k('v_lshrrev_b32 v14, 1, v16')
            k('v_lshl_add_u32 v13, v14, 15, v13')
            k('v_and_b32 v14, 1, v16')
            k('v_lshl_add_u32 v13, v14, 3, v13')
            k(f's_mul_i32 s47, s{S_CT}, 10')
            k(f's_lshl_b32 s48, s{S_PAR}, 1')
            k('s_add_u32 s48, s48, s47')
            k('s_lshl_b32 s48, s48, 15')
            k(f's_add_u32 s48, s48, {WS_H1}')
            k(f's_lshl_b32 s49, s{S_PAR}, 3')
            k('s_sub_u32 s49, 8, s49')
            k('s_add_u32 s49, s49, s47')
            k('s_lshl_b32 s49, s49, 15')
            k(f's_add_u32 s49, s49, {WS_H1}')
            for jt in range(4):
                k(f's_add_u32 s47, s48, {jt*65536}')
                k(f'buffer_store_dwordx2 {v(PK+2*jt,2)}, v13, {WSR}, s47 offen sc1')
            k(f'buffer_store_dwordx2 {v(PK+8,2)}, v13, {WSR}, s49 offen sc1')
            k('v_mov_b32 v152, 0')
            k('v_mov_b32 v153, 0')
            k('v_mov_b32 v154, 0x3f803f80')
            for i in range(10):
                k(f'v_dot2_f32_bf16 v152, v{PK+i}, v154, v152')
                k(f'v_dot2_f32_bf16 v153, v{PK+i}, v{PK+i}, v153')
            for r in (152, 153):
                xsum(k, r, 156, 157, 32)
                xsum(k, r, 156, 157, 16)
            k('v_lshlrev_b32 v14, 3, v12')
            k(f's_lshl_b32 s47, s{S_CT}, 14')
            k(f's_add_u32 s47, s47, {WS_HS}')
            k('s_mov_b64 exec, 0xffff')
            self.own = k(f'buffer_store_dwordx2 {v(152,2)}, v14, {WSR}, s47 offen sc1')
            k('s_mov_b64 exec, -1')
        else:
            P = 176
            k(f'v_mul_u32_u24 v13, {P}, v15')
            k('v_lshl_add_u32 v13, v16, 3, v13')
            k(f's_lshl_b32 s47, s{S_W4}, 12')
            k('s_add_u32 s47, s47, 65536')
            k('v_add_u32 v13, s47, v13')
            k(f's_lshl_b32 s48, s{S_PAR}, 5')
            k('v_add_u32 v14, s48, v13')
            k(f's_lshl_b32 s48, s{S_PAR}, 7')
            k('s_sub_u32 s48, 128, s48')
            k('v_add_u32 v13, s48, v13')
            for jt in range(4):
                k(f'ds_write_b64 v14, {v(PK+2*jt,2)} offset:{jt*32}')
            k(f'ds_write_b64 v13, {v(PK+8,2)}')
            k(f's_mul_i32 s48, s{S_CT}, 160')
            k(f's_mul_i32 s49, s{S_TK}, 1280')
            k('s_add_u32 s48, s48, s49')
            for it in range(3):
                k(f'v_add_u32 v17, {64*it}, v1')
                k('v_mul_u32_u24 v18, 6554, v17')
                k('v_lshrrev_b32 v18, 16, v18')
                k('v_mul_u32_u24 v19, 10, v18')
                k('v_sub_u32 v19, v17, v19')
                k(f'v_mul_u32_u24 v20, {P}, v18')
                k('v_lshl_add_u32 v20, v19, 4, v20')
                k(f'v_add_u32 v{160+it}, s47, v20')
                k('v_mul_u32_u24 v20, 1280, v18')
                k(f'v_lshl_add_u32 v{164+it}, v19, 4, v20')
            k.wait_all(vm=False)
            tl = [k(f'ds_read_b128 {v(168+4*it,4)}, v{160+it}') for it in range(3)]
            for it in range(3):
                k.wait(tl[it])
                if it == 2:
                    k('v_cmp_gt_u32 vcc, 32, v1')
                    k('s_mov_b64 exec, vcc')
                k(f'buffer_store_dwordx4 {v(168+4*it,4)}, v{164+it}, s[{S_OUT}:{S_OUT+3}], s48 offen sc1')
            k('s_mov_b64 exec, -1')


def p2_setup(k):
    LK, LV = 102400, 122880
    k(f's_and_b32 s45, s{S_I32}, 3')
    k(f's_lshl_b32 s44, s{S_X8}, 2')
    k('s_add_u32 s45, s45, s44')
    k(f's_lshr_b32 s44, s{S_I32}, 2')
    S_I, S_H = 44, 45
    k(f's_lshl_b32 s46, s{S_I}, 8')
    k('s_sub_u32 s47, s46, 256')
    k('s_max_i32 s47, s47, 0')
    k(f's_cmp_lt_u32 s{S_W4}, 2')
    k('s_cselect_b32 s48, s47, s46')
    k('s_mov_b32 s50, s48')
    k(f's_and_b32 s49, s{S_W4}, 1')
    k('s_lshl_b32 s49, s49, 7')
    k('s_add_u32 s48, s48, s49')
    k('s_lshl_b32 s48, s48, 3')
    k(f's_mul_i32 s49, s{S_H}, {5*16384}')
    k('s_add_u32 s48, s48, s49')
    k(f's_add_u32 s48, s48, {WS_KG}')
    k('v_lshlrev_b32 v2, 4, v1')
    k('s_lshr_b32 s50, s50, 3')
    k('s_mul_i32 s50, s50, 10240')
    k(f's_mul_i32 s49, s{S_H}, 320')
    k('s_add_u32 s50, s50, s49')
    k(f's_add_u32 s50, s50, {WS_VF}')
    k(f's_cmp_lt_u32 s{S_W}, 4')
    k('s_cselect_b32 s48, s48, s50')
    k('s_cselect_b64 s[96:97], -1, 0')
    k(f's_lshl_b32 s49, s{S_W4}, 10')
    k(f's_add_u32 s49, s49, {LK}')
    k(f's_mul_i32 s50, s{S_W4}, 5120')
    k(f's_add_u32 s50, s50, {LV}')
    k(f's_cmp_lt_u32 s{S_W}, 4')
    k('s_cselect_b32 s50, s49, s50')
    k('s_movk_i32 s56, 1024')
    k('s_cselect_b32 s56, 4096, s56')
    k(f's_and_b32 s49, s{S_W4}, 1')
    k('s_mul_i32 s49, s49, 320')
    for n in range(5):
        k(f'v_add_u32 v3, {n*64}, v1')
        k('v_add_u32 v3, s49, v3')
        k('v_mul_u32_u24 v4, 3277, v3')
        k('v_lshrrev_b32 v4, 16, v4')
        k('v_mul_u32_u24 v5, 20, v4')
        k('v_sub_u32 v5, v3, v5')
        k('v_mul_u32_u24 v4, 10240, v4')
        k(f'v_lshl_add_u32 v4, v5, 4, v4')
        k(f'v_add_u32 v5, {n*16384}, v2')
        k(f'v_cndmask_b32 v{6+n}, v4, v5, s[96:97]')
    k('v_and_b32 v12, 31, v1')
    k('v_lshrrev_b32 v13, 5, v1')
    k('v_lshlrev_b32 v14, 3, v12')
    k('v_lshl_add_u32 v15, v13, 15, v14')
    k(f's_lshl_b32 s51, s{S_W}, 5')
    k('s_add_u32 s51, s51, s46')
    S_Q0 = 51
    k('s_lshl_b32 s52, s51, 3')
    k(f's_mul_i32 s49, s{S_H}, {5*16384}')
    k('s_add_u32 s52, s52, s49')
    k(f's_add_u32 s52, s52, {WS_QG}')
    k('s_add_u32 s53, s52, 16384')
    k(f's_add_u32 s54, s52, {4*16384}')
    PM, NM, ONE, QF, KV, OACC, SB0 = 24, 32, 36, 40, 48, 72, 88
    k('v_lshlrev_b32 v3, 2, v13')
    for i in range(16):
        a_, b_ = i // 4, i % 4
        k(f'v_add_u32 v4, {8*a_+b_}, v3')
        k(f'v_cmp_le_u32 s[{64+2*i}:{65+2*i}], v4, v12')
    k('v_mov_b32 v5, 0xffff')
    k('v_mov_b32 v11, 0xffff0000')
    for p in range(8):
        k(f'v_cndmask_b32 v3, 0, v5, s[{64+4*p}:{65+4*p}]')
        k(f'v_cndmask_b32 v4, 0, v11, s[{66+4*p}:{67+4*p}]')
        k(f'v_or_b32 v{PM+p}, v3, v4')
    k('v_cmp_eq_u32 s[96:97], 1, v13')
    k('v_cmp_gt_u32 s[98:99], 20, v12')
    k('v_cmp_eq_u32 s[100:101], 0, v13')
    k(f's_lshl_b32 s49, s{S_W}, 8')
    k(f's_add_u32 s49, s49, {LK}')
    k('v_lshl_add_u32 v16, v13, 13, v14')
    k('v_add_u32 v16, s49, v16')
    k('v_add_u32 v17, s49, v14')
    k(f's_and_b32 s55, s{S_H}, 1')
    S_PI = 55
    k('v_bfe_u32 v3, v12, 3, 1')
    k('v_bfe_u32 v4, v12, 2, 1')
    k('v_and_b32 v5, 3, v12')
    k('v_lshl_add_u32 v18, v3, 2, v5')
    k('v_lshl_add_u32 v18, v4, 3, v18')
    k('s_lshl_b32 s49, s55, 2')
    k('v_add_u32 v18, s49, v18')
    k('s_lshl_b32 s49, s55, 4')
    k('s_sub_u32 s49, 16, s49')
    k('v_add_u32 v19, s49, v5')
    k('v_cmp_gt_u32 vcc, 16, v12')
    k('v_cndmask_b32 v18, v19, v18, vcc')
    k('v_mul_u32_u24 v19, 320, v13')
    k('v_lshl_add_u32 v18, v18, 4, v19')
    k(f's_mul_i32 s49, s{S_W}, 1280')
    k(f's_add_u32 s49, s49, {LV}')
    k('v_add_u32 v18, s49, v18')
    k('v_mov_b32 v19, 0')
    k('v_mov_b32 v4, 0x3f803f80')
    k('v_cmp_eq_u32 vcc, 20, v12')
    k('v_cndmask_b32 v19, v19, v4, vcc')
    k('v_cmp_eq_u32 vcc, 24, v12')
    k('v_cndmask_b32 v19, v19, v4, vcc')
    for b in range(3):
        k(f'v_mov_b32 v{KV+8*b+6}, 0')
        k(f'v_mov_b32 v{KV+8*b+7}, 0')
    k(f'v_mov_b32 v{QF+6}, 0')
    k(f'v_mov_b32 v{QF+7}, 0')
    k(f'v_cndmask_b32 v{ONE}, v4, 0, s[96:97]')
    for i in range(1, 4):
        k(f'v_mov_b32 v{ONE+i}, 0')
        k(f'v_mov_b32 v{NM+i}, 0')
    k('v_and_b32 v3, 15, v1')
    k(f's_mul_i32 s49, s{S_H}, 20')
    k('s_mov_b64 s[46:47], 0')
    for base, isq in ((0, True), (640, False), (1280, False)):
        for e in (0, 19):
            k(f's_add_u32 s60, s49, {base+e}')
            k('s_lshr_b32 s60, s60, 7')
            k('v_cmp_eq_u32 vcc, s60, v3')
            if isq:
                k('s_and_b64 vcc, vcc, s[96:97]')
            k('s_or_b64 s[46:47], s[46:47], vcc')
    k(f's_cmp_eq_u32 s{S_I}, 0')
    k('s_cselect_b32 s46, 0, s46')
    k(f's_lshl_b32 s49, s{S_I}, 7')
    k(f's_lshl_b32 s60, s{S_X8}, 10')
    k('s_add_u32 s49, s49, s60')
    k(f's_add_u32 s49, s49, {WS_F2 - 128}')
    k('v_lshlrev_b32 v3, 2, v1')


def emit_p2(k, g3):
    LK, LV = 102400, 122880
    S_I, S_H, S_Q0, S_PI = 44, 45, 51, 55
    PM, NM, ONE, QF, KV, OACC, SB0 = 24, 32, 36, 40, 48, 72, 88
    wflag_poll(k, 49, 3, 4, 46, 1, True)
    k('s_barrier')
    stamp(k, 12)
    k('s_mov_b32 m0, s50')
    for n in range(5):
        if n:
            k('s_add_u32 m0, m0, s56')
        k(f'buffer_load_dwordx4 v{6+n}, {WSR}, s48 offen sc1 lds')
    k(f'buffer_load_dwordx2 {v(QF,2)}, v15, {WSR}, s52 offen sc1')
    k(f'buffer_load_dwordx2 {v(QF+2,2)}, v15, {WSR}, s53 offen sc1')
    qt = k(f'buffer_load_dwordx2 {v(QF+4,2)}, v14, {WSR}, s54 offen sc1')
    k.wait(qt)
    k(f'v_cndmask_b32 v{QF+4}, v{QF+4}, 0, s[96:97]')
    k(f'v_cndmask_b32 v{QF+5}, v{QF+5}, 0, s[96:97]')
    k('s_barrier')
    if OPT.get('prio', 0):
        k(f's_cmp_ge_u32 s{S_W}, 4')
        k.outline('s_cbranch_scc1', lambda: k('s_setprio 1'))
    stamp(k, 13)
    k(f's_lshr_b32 s47, s{S_W}, 2')
    k('s_mul_i32 s46, s47, 40960')
    k('s_add_u32 s46, s46, s0')
    k(f's_mul_i32 s47, s47, {2*32*1280}')
    pf = []
    for st in range(2):
        for n in range(5):
            def f(st=st, n=n):
                k(f's_add_u32 m0, s46, {st*20480 + (4096 if n == 4 else 0)}')
                k(f's_add_u32 s1, s47, {st*32*1280}')
                off = f' offset:{n*1024}' if 0 < n < 4 else ''
                k(f'buffer_load_dwordx4 v{g3.vb+n}, s[{S_WO}:{S_WO+3}], s1 offen{off} lds')
            pf.append(f)

    def hclr(n):
        def f():
            if n == 0:
                for i in range(4):
                    k(f'v_mov_b32 v{244+i}, -1')
                tile4(k, 60, 61, 56)
                k('s_mul_i32 s61, s61, 12')
                k('s_lshl_b32 s61, s61, 15')
                k('s_lshl_b32 s60, s60, 11')
                k('s_add_u32 s56, s61, s60')
                k(f's_add_u32 s56, s56, {WS_HC}')
            k(f's_mul_i32 s60, s{S_W}, 3')
            k(f's_add_u32 s60, s60, {n}')
            k('s_and_b32 s61, s60, 1')
            k('s_lshl_b32 s61, s61, 10')
            k('s_lshr_b32 s60, s60, 1')
            k('s_lshl_b32 s60, s60, 15')
            k('s_add_u32 s60, s60, s61')
            k('s_add_u32 s60, s60, s56')
            k(f'buffer_store_dwordx4 {v(244,4)}, v2, {WSR}, s60 offen sc1')
        return f
    hc = [hclr(0), hclr(1), hclr(2)]

    def wgu():
        k(f's_cmp_lt_u32 s{S_W}, 4')
        k.outline('s_cbranch_scc1', lambda: pf_wgu(k, 238, 239))
    wgu()

    def slot(i):
        return SB0 + 16 * i
    krd = {}

    def kreads(j):
        b = j % 3
        krd[j] = [k(f'ds_read_b64 {v(KV+8*b,2)}, v16 offset:{j*256}'),
                  k(f'ds_read_b64 {v(KV+8*b+2,2)}, v16 offset:{4096+j*256}'),
                  k(f'ds_read_b64 {v(KV+8*b+4,2)}, v17 offset:{16384+j*256}')]
    kreads(0)
    kreads(1)
    for j in range(9):
        b = j % 3
        d = v(slot(j), 16)
        k.wait(*krd[j])
        k(f'v_mfma_f32_32x32x16_bf16 {d}, {v(KV+8*b,4)}, {v(QF,4)}, 0')
        if j + 2 < 9:
            kreads(j + 2)
        k(f'v_mfma_f32_32x32x16_bf16 {d}, {v(KV+8*b+4,4)}, {v(QF+4,4)}, {d}')
    stamp(k, 14)
    lab = k.newlabel('P2_FIX')
    k(f's_cmp_lg_u32 s{S_I}, 0')
    k(f's_cbranch_scc1 {lab}')
    for jj in range(8):
        k(f's_cmp_ge_u32 s{S_W}, {8-jj}')
        k(f's_cbranch_scc1 {lab}')
        for i in range(16):
            k(f'v_mov_b32 v{slot(jj)+i}, {f32(-1e30)}')
    k.label(lab)
    for i in range(16):
        k(f'v_mov_b32 v{KV+i}, v19')
    M0, M1 = 20, 21
    ops = []
    regs = [slot(jj) + i for jj in (1, 2, 3, 4, 5, 6, 7, 0) for i in range(16)]
    for i in range(16):
        ops.append(f'v_cndmask_b32 v{slot(0)+i}, v{slot(0)+i}, v{slot(8)+i}, s[{64+2*i}:{65+2*i}]')
    ops += [f'v_max3_f32 v{M0}, v{regs[0]}, v{regs[1]}, v{regs[2]}',
            f'v_max3_f32 v{M1}, v{regs[3]}, v{regs[4]}, v{regs[5]}']
    i, t = 6, 0
    while i < 128:
        m = M0 if t % 2 == 0 else M1
        ops.append(f'v_max3_f32 v{m}, v{m}, v{regs[i]}, v{regs[i+1]}')
        i += 2
        t += 1
    ops += [f'v_max_f32 v{M0}, v{M0}, v{M1}',
            f'v_mov_b32 v{M1}, v{M0}',
            f'v_permlane32_swap_b32 v{M0}, v{M1}',
            f'v_max_f32 v{M0}, v{M0}, v{M1}',
            f'v_sub_f32 v{M0}, 0, v{M0}',
            f'v_cvt_pk_bf16_f32 v{M1}, v{M0}, v{M0}',
            f'v_lshlrev_b32 v{M1}, 16, v{M1}',
            f'v_sub_f32 v{M1}, v{M0}, v{M1}',
            f'v_cvt_pk_bf16_f32 v{NM}, v{M0}, v{M1}',
            f'v_cndmask_b32 v{NM}, v{NM}, 0, s[96:97]']
    spread(k, ops, pf[:2])
    pf = pf[2:]
    stamp(k, 15)
    vrd = {}
    nbuf = [0]

    def vreads(jkey):
        toks, bufs = [], []
        k('s_mov_b64 exec, s[98:99]')
        for m in range(2):
            bi = nbuf[0] % 4
            nbuf[0] += 1
            bufs.append(bi)
            toks.append(k(f'ds_read_b128 {v(KV+4*bi,4)}, v18 offset:{jkey*1280+m*640}'))
        k('s_mov_b64 exec, -1')
        vrd[jkey] = (toks, bufs)
    first = [True]
    oacc = v(OACC, 16)

    def pv_ops(jkey, preg):
        o = []
        for m in range(2):
            def f(m=m):
                toks, bufs = vrd[jkey]
                k.wait(toks[m])
                c = '0' if first[0] else oacc
                first[0] = False
                k(f'v_mfma_f32_32x32x16_bf16 {oacc}, {v(KV+4*bufs[m],4)}, {v(preg+4*m,4)}, {c}')
            o.append(f)
        return o

    def sub_op(jb):
        d = v(slot(jb), 16)
        return f'v_mfma_f32_32x32x16_bf16 {d}, {v(ONE,4)}, {v(NM,4)}, {d}'
    order = [1, 2, 3, 4, 5, 6, 7, 0]
    k(sub_op(order[0]))
    k(sub_op(order[1]))
    vreads(order[0])
    for n, jb in enumerate(order):
        base = slot(jb)
        val = [f'v_exp_f32 v{base+i}, v{base+i}' for i in range(16)]
        val += [f'v_cvt_pk_bf16_f32 v{base+p}, v{base+2*p}, v{base+2*p+1}' for p in range(8)]
        if jb == 0:
            val += [f'v_and_b32 v{base+8+p}, v{PM+p}, v{base+p}' for p in range(8)]
            val += [f'v_bfi_b32 v{base+p}, v{PM+p}, 0, v{base+p}' for p in range(8)]
        side = []
        if n >= 1:
            side += pv_ops(order[n - 1], slot(order[n - 1]))
        nxt = order[n + 1] if n + 1 < 8 else 8
        side.append(lambda nxt=nxt: vreads(nxt))
        if n + 2 < 8:
            side.append(sub_op(order[n + 2]))
        if pf:
            side.append(pf.pop(0))
        if hc and n % 2 == 1:
            side.insert(1, hc.pop(0))
        spread(k, val, side)
    tail = pv_ops(0, slot(0)) + pv_ops(8, slot(0) + 8)
    addr = [f's_lshr_b32 s49, s{S_H}, 1', 's_mul_i32 s49, s49, 5', f's_mul_i32 s52, s{S_PI}, 3',
            's_add_u32 s52, s52, s49', 's_lshl_b32 s52, s52, 15', f's_add_u32 s52, s52, {WS_OC}',
            f's_lshl_b32 s53, s{S_Q0}, 4', 's_add_u32 s52, s52, s53', 's_add_u32 s54, s49, 2',
            's_lshl_b32 s54, s54, 15', f's_add_u32 s54, s54, {WS_OC}', 's_add_u32 s54, s54, s53',
            f's_lshl_b32 s49, s{S_PI}, 3', 's_add_u32 s54, s54, s49', 'v_lshlrev_b32 v22, 4, v12',
            'v_lshl_add_u32 v23, v13, 15, v22']
    ftok = flags_issue(k, WS_F2, 240, 237)
    spread(k, addr, tail)
    stamp(k, 18)
    T = OACC
    k(f'v_cndmask_b32 v{T+13}, v{T+12}, v{T+8}, s[96:97]')
    k(f'v_rcp_f32 v{T+14}, v{T+13}')
    for p in range(6):
        k(f'v_pk_mul_f32 {v(T+2*p,2)}, {v(T+2*p,2)}, {v(T+14,2)} op_sel_hi:[1,0]')
    for p in range(6):
        k(f'v_cvt_pk_bf16_f32 v{104+p}, v{T+2*p}, v{T+2*p+1}')
    k(f'buffer_store_dwordx4 {v(104,4)}, v23, {WSR}, s52 offen sc1')
    k('s_mov_b64 exec, s[100:101]')
    own = k(f'buffer_store_dwordx2 {v(108,2)}, v22, {WSR}, s54 offen sc1')
    k('s_mov_b64 exec, -1')
    k.wait_all(vm=False)
    k('s_setprio 0')
    flags_check(k, WS_F2, 240, 237, ftok)
    k('s_barrier')
    tile4(k, 48, 49, 50)
    k('s_lshl_b32 s48, s48, 4')
    k('s_add_u32 s49, s49, s48')
    rflag_store(k, WS_F3, 49, 3, 4)
    return own


class P4:
    BS = [102400, 126976, 0, 24576, 49152, 73728]

    def __init__(self, k):
        self.k = k
        self.stok = {}
        self.rtok = {}
        self.VB = 2

    def setup_dma(self, t0):
        k = self.k
        VB = self.VB
        tile4(k, 61, 60, 68)
        k('s_sub_u32 s76, s61, 10')
        k('s_cmp_ge_u32 s61, 10')
        k('s_cselect_b32 s76, s76, s61')
        k(f's_cmp_lt_u32 s{S_W4}, 2')
        k(f's_cselect_b32 s64, s{S_WG}, s{S_WU}')
        k(f's_cselect_b32 s65, s{S_WG+1}, s{S_WU+1}')
        k('s_mov_b32 s66, 1966080')
        k('s_mov_b32 s67, 0x00020000')
        k(f's_and_b32 s61, s{S_W4}, 1')
        k(f's_mul_i32 s61, s61, {32*3072}')
        k('s_mul_i32 s60, s60, 192')
        k('s_add_u32 s60, s60, s61')
        for n in range(3):
            k(f'v_add_u32 v{t0}, {n*64}, v1')
            k(f'v_mul_u32_u24 v{t0+1}, 5462, v{t0}')
            k(f'v_lshrrev_b32 v{t0+1}, 16, v{t0+1}')
            k(f'v_mul_u32_u24 v{t0+2}, 12, v{t0+1}')
            k(f'v_sub_u32 v{t0+2}, v{t0}, v{t0+2}')
            k(f'v_mul_u32_u24 v{t0+1}, 3072, v{t0+1}')
            k(f'v_lshl_add_u32 v{VB+n}, v{t0+2}, 4, v{t0+1}')
            k(f'v_add_u32 v{VB+n}, s60, v{VB+n}')
            if n:
                k(f'v_subrev_u32 v{VB+n}, {n*1024}, v{VB+n}')
        k(f's_mul_i32 s68, s{S_W4}, 6144')

    def sig(self, c, st, sreg, stmp):
        c(f's_add_u32 s{sreg}, s76, {st}')
        c(f's_sub_u32 s{stmp}, s{sreg}, 10')
        c(f's_cmp_ge_u32 s{sreg}, 10')
        c(f's_cselect_b32 s{sreg}, s{stmp}, s{sreg}')

    def dma_stage(self, st):
        k = self.k
        base = self.BS[st % 6]
        self.sig(k, st, 69, 77)
        k(f's_mul_i32 s69, s69, {64*3072}')
        for per in range(2):
            k(f's_add_u32 m0, s68, {base+per*3072}')
            if per:
                k(f's_add_u32 s69, s69, {16*3072}')
            for n in range(3):
                self.stok[st] = k(f'buffer_load_dwordx4 v{self.VB+n}, s[64:67], s69 offen offset:{n*1024} lds')

    BR = 124

    def breg_load(self, st):
        k = self.k
        r0 = self.BR + 24 * (st - 6)
        self.sig(k, st, 69, 77)
        k(f's_mul_i32 s69, s69, {64*3072}')
        for per in range(2):
            if per:
                k(f's_add_u32 s69, s69, {16*3072}')
            for n in range(3):
                self.rtok[st] = k(f'buffer_load_dwordx4 {v(r0+12*per+4*n,4)}, v{self.VB+n}, s[64:67], s69 offen offset:{n*1024}')

    def breg_write(self, st):
        k = self.k
        r0 = self.BR + 24 * (st - 6)
        base = self.BS[st % 6]
        reg, off = (47, base - 102400) if base >= 102400 else (46, base)
        assert off + 6144 < 65536
        k.wait(self.rtok[st])
        for i in range(6):
            self.stok[st] = k(f'ds_write_b128 v{reg}, {v(r0+4*i,4)} offset:{off+i*1024}')

    def pre_colsum(self):
        k = self.k
        CA = 60
        k('v_lshlrev_b32 v46, 4, v1')
        k('v_add_u32 v46, s68, v46')
        k('v_add_u32 v47, 102400, v46')
        k.wait(self.stok[0])
        tk = [k(f'ds_read_b128 {v(84+4*i,4)}, v47 offset:{i*1024}') for i in range(6)]
        for n in range(3):
            k.wait(tk[n], tk[n + 3])
            for p in range(4):
                k(f'v_lshlrev_b32 v{CA+8*n+2*p}, 16, v{84+4*n+p}')
                k(f'v_and_b32 v{CA+8*n+2*p+1}, 0xffff0000, v{84+4*n+p}')
                k(f'v_lshlrev_b32 v{28+2*(p%2)}, 16, v{96+4*n+p}')
                k(f'v_and_b32 v{29+2*(p%2)}, 0xffff0000, v{96+4*n+p}')
                k(f'v_pk_add_f32 {v(CA+8*n+2*p,2)}, {v(CA+8*n+2*p,2)}, {v(28+2*(p%2),2)}')

    def pre_colsum_write(self):
        k = self.k
        CA = 60
        k('v_lshlrev_b32 v16, 5, v1')
        k('v_add_u32 v16, s68, v16')
        k('v_add_u32 v16, 73728, v16')
        for n in range(3):
            k(f'ds_write_b128 v16, {v(CA+8*n,4)} offset:{n*2048}')
            k(f'ds_write_b128 v16, {v(CA+8*n+4,4)} offset:{n*2048+16}')
        k.wait_all(vm=False)

    def loader_setup(self, g5):
        k = self.k
        tile4(k, 44, 45, 46)
        g5.dma_setup(40)
        k('v_cmp_le_u32 vcc, 96, v0')
        k(f'v_mov_b32 v16, {12288-384}')
        k('v_cndmask_b32 v17, 0, v16, vcc')
        k('v_lshl_add_u32 v17, v0, 2, v17')
        k('v_add_u32 v17, 73728, v17')
        k(f'v_mov_b32 v16, {6144-384}')
        k('v_cndmask_b32 v18, 0, v16, vcc')
        k('v_lshl_add_u32 v18, v0, 2, v18')
        k('v_cmp_gt_u32 vcc, 192, v0')
        k('v_cndmask_b32 v19, 0, v18, vcc')
        k(f'v_mov_b32 v16, {OOB}')
        k('v_cndmask_b32 v18, v16, v18, vcc')
        k('s_mul_i32 s51, s45, 384')
        k(f's_add_u32 s51, s51, {WS_PCS}')
        k('s_mul_i32 s52, s44, 12288')
        k('s_add_u32 s52, s52, s51')
        k(f's_mov_b32 s47, {OOB}')
        k('s_cmp_lt_u32 s44, 10')
        k('s_cselect_b32 s52, s52, s47')

    def colsum_reduce(self):
        k = self.k
        rr = list(range(84, 116))
        for half in range(4):
            tk = []
            for r in range(8):
                x = (half % 2) * 8 + r
                tk.append(k(f'ds_read_b32 v{rr[8*half+r]}, v17 offset:{x*384+(half//2)*6144}'))
            k.wait(*tk)
        for stp in (16, 8, 4, 2, 1):
            for i in range(stp):
                k(f'v_add_f32 v{rr[i]}, v{rr[i]}, v{rr[i+stp]}')
        k(f'buffer_store_dword v{rr[0]}, v18, {WSR}, s52 offen sc1')

    def loader(self, g5):
        k = self.k

        def gather(c):
            t = None
            for r in range(10):
                c(f's_add_u32 s58, s51, {r*12288}')
                t = c(f'buffer_load_dword v{24+r}, v19, {WSR}, s58 offen sc1')
            return t
        T = {}
        g5regs = {2 + i: 60 + 20 * i for i in range(9)}
        k('v_lshlrev_b32 v12, 4, v1')
        k(f's_mul_i32 s46, s{S_W4}, 5120')
        k('v_add_u32 v21, s46, v12')
        k('v_add_u32 v22, 61440, v21')
        k('v_add_u32 v23, 122880, v21')
        for st in range(7):
            k.wait(self.stok[st])
            if st == 6:
                k.wait(self.stok[9])
            k.wait_all(vm=False)
            k('s_barrier')
            if st == 0:
                stamp(k, 32)
                self.colsum_reduce()
            if st == 1:
                self.dma_stage(5)
            if 1 <= st <= 4:
                self.dma_stage(st + 5)
            if st == OPT.get('pfwd', 2):
                pf_wd(k, 36, 37)
            if st == 4:
                T['g'] = gather(k)
            if st == 5:
                k.wait(T['g'])
                check_group(k, range(24, 34), 11, gather, slp=8)
                for r in range(1, 10):
                    k(f'v_add_f32 v24, v24, v{24+r}')
                k('v_lshlrev_b32 v16, 2, v0')
                k(f'v_add_u32 v16, {XCH}, v16')
                k('ds_write_b32 v16, v24')
        stamp(k, 36)
        runall(k, g5.dma_step(0))
        runall(k, g5.dma_step(1))
        NR1 = OPT.get('nr1', 6)
        for s5 in range(2, 2 + NR1):
            g5.breg_load(s5, g5regs[s5])
        stamp(k, 38)
        cnt_wait(k, 38, 39, 1, 4, bound=200000)
        for s5 in range(2, 7):
            g5.breg_write(s5, 21)
        for s5 in range(2 + NR1, 11):
            g5.breg_load(s5, g5regs[s5])
        stamp(k, 39)

    def compute(self, own_tok):
        k = self.k
        tile4(k, 44, 45, 46)
        S_MT, S_FT, S_TOK = 44, 45, 46
        k('s_lshl_b32 s46, s44, 7')
        k(f's_lshl_b32 s47, s{S_W4}, 5')
        k('s_add_u32 s46, s46, s47')
        k('v_and_b32 v13, 31, v1')
        k('v_lshrrev_b32 v14, 5, v1')
        k('v_lshlrev_b32 v5, 4, v13')
        k('v_lshl_add_u32 v5, v14, 15, v5')
        k('v_bfe_u32 v15, v1, 2, 2')
        k('v_lshl_add_u32 v15, v14, 3, v15')
        k('v_mul_u32_u24 v15, 192, v15')
        k('v_bfe_u32 v16, v1, 4, 1')
        k('v_lshl_add_u32 v15, v16, 5, v15')
        k('v_and_b32 v16, 1, v1')
        k('v_lshl_add_u32 v15, v16, 4, v15')
        k('v_bfe_u32 v16, v1, 1, 1')
        k('v_lshl_add_u32 v6, v16, 3, v15')
        k('v_add_u32 v7, 49152, v6')
        k('v_add_u32 v8, 102400, v6')
        rbase = {0: (6, 0), 24576: (6, 24576), 49152: (7, 0), 73728: (7, 24576), 102400: (8, 0), 126976: (8, 24576)}
        k('s_sub_u32 s76, s44, 10')
        k('s_cmp_ge_u32 s44, 10')
        k('s_cselect_b32 s76, s76, s44')
        k('s_lshl_b32 s50, s46, 4')
        k(f's_add_u32 s50, s50, {WS_H1}')
        AFR = 180
        atok = {}

        def abase(c, st, sreg, stmp):
            self.sig(c, st, sreg, stmp)
            c(f's_lshl_b32 s{sreg}, s{sreg}, 18')
            c(f's_add_u32 s{sreg}, s{sreg}, s50')

        def aone(c, st, ks, sreg):
            if ks:
                c(f's_add_u32 s{sreg}, s{sreg}, 65536')
            return c(f'buffer_load_dwordx4 {v(AFR+16*(st%4)+4*ks,4)}, v5, {WSR}, s{sreg} offen sc1')

        def astage(c, st, sreg, stmp):
            abase(c, st, sreg, stmp)
            t = None
            for ks in range(4):
                t = aone(c, st, ks, sreg)
            return t
        k('v_lshlrev_b32 v9, 3, v13')
        k('v_lshl_add_u32 v9, v14, 16, v9')
        k(f's_lshl_b32 s51, s{S_TOK}, 3')
        k(f's_add_u32 s51, s51, {WS_HS}')
        HSR = 20

        def hsload(c):
            t = None
            for n in range(4):
                c(f's_add_u32 s58, s51, {n*16384}')
                t = c(f'buffer_load_dwordx2 {v(HSR+2*n,2)}, v9, {WSR}, s58 offen sc1')
            return t
        k('v_lshlrev_b32 v10, 5, v14')
        k(f'v_add_u32 v10, {XCH}, v10')
        ACC, WF = 36, 132

        def csload(p, base):
            t = None
            for mtx in range(2):
                for q in range(4):
                    off = mtx * 384 + p * 128 + (q // 2) * 64 + (q % 2) * 16
                    t = k(f'ds_read_b128 {v(base+16*mtx+4*q,4)}, v10 offset:{off}')
            return t
        rt = {}

        def reads(kk):
            st, ks = kk // 4, kk % 4
            reg, so = rbase[self.BS[st % 6]]
            b = kk % 2
            ops = [[] for _ in range(6)]
            for j in range(6):
                for hf in range(2):
                    off = so + (j // 3) * 12288 + ks * 3072 + hf * 768 + (j % 3) * 64
                    ops[j].append(lambda j=j, hf=hf, off=off: rt.__setitem__((kk, j), k(
                        f'ds_read_b64_tr_b16 {v(WF+24*b+4*j+2*hf,2)}, v{reg} offset:{off}')))
            return ops
        T = {}

        def stats():
            k.wait(T['hs'])
            check_group(k, range(HSR, HSR + 8), 11, hsload)
            for n in range(1, 4):
                k(f'v_pk_add_f32 {v(HSR,2)}, {v(HSR,2)}, {v(HSR+2*n,2)}')
            VSUM, VSQ = HSR, HSR + 1
            xsum(k, VSUM, 24, 25)
            xsum(k, VSQ, 24, 25)
            k(f'v_mul_f32 v{VSUM}, {f32(1.0/640)}, v{VSUM}')
            k(f'v_mul_f32 v{VSQ}, {f32(1.0/640)}, v{VSQ}')
            k(f'v_fma_f32 v{VSQ}, -v{VSUM}, v{VSUM}, v{VSQ}')
            k(f'v_max_f32 v{VSQ}, 0, v{VSQ}')
            rbf(k, 24, VSUM)
            k('v_sub_f32 v26, 0, v24')
            rbf(k, 25, VSQ)
            k(f'v_add_f32 v25, {f32(1e-5)}, v25')
            rbf(k, 25, 25)
            k('v_sqrt_f32 v25, v25')
            rbf(k, 25, 25)
            k('v_rcp_f32 v28, v25')
            k('v_mul_f32 v30, v25, v25')
        stamp(k, 30)
        k.wait(own_tok)
        stamp(k, 31)
        for st in range(3):
            atok[st] = astage(k, st, 49, 48)
        k('s_barrier')
        for l_ in reads(0):
            runall(k, l_)
        for kk in range(40):
            b = kk % 2
            st, ks = kk // 4, kk % 4
            R0 = AFR + 16 * (st % 4)
            if kk % 8 == 4:
                stamp(k, 33 + kk // 8)
            if ks == 0:
                k.wait(atok[st])
                check_group(k, range(R0, R0 + 16), 11, lambda c, st=st: astage(c, st, 58, 59))
                if kk == 0:
                    stamp(k, 32)
            fill, rds = [], []
            if st + 3 < 10:
                def al(st=st, ks=ks):
                    if ks == 0:
                        abase(k, st + 3, 49, 48)
                    atok[st + 3] = aone(k, st + 3, ks, 49)
                fill.append(al)
            if kk + 1 < 40:
                if (kk + 1) % 4 == 0 and kk < 24:
                    k.wait_all(vm=False)
                    k('s_barrier')
                rds = reads(kk + 1)
            else:
                k.wait_all(vm=False)
                k('v_mov_b32 v2, 1')
                k(f'v_mov_b32 v3, {XCNT+4}')
                k('s_mov_b64 exec, 1')
                k('ds_add_u32 v3, v2')
                k('s_mov_b64 exec, -1')
            if kk == 28:
                fill.append(lambda: T.__setitem__('hs', hsload(k)))
            if kk == 29:
                fill.append(lambda: T.__setitem__('f3', flags_issue(k, WS_F3, 16, 12)))
            if kk == 38:
                fill.append(lambda: flags_check(k, WS_F3, 16, 12, T['f3']))
            if kk == 39:
                fill.append(lambda: T.__setitem__(('cs', 0), csload(0, 212)))
            if kk == 37:
                fill.append(stats)
            mf = []
            for j in range(6):
                acc = v(ACC + 16 * j, 16)
                c = '0' if kk == 0 else acc
                mf.append((lambda j=j: [rt[kk, j]],
                           f'v_mfma_f32_32x32x16_bf16 {acc}, {v(WF+24*b+4*j,4)}, {v(R0+4*ks,4)}, {c}'))
            roll_step(k, mf, rds, fill)
        stamp(k, 38)
        T['cs', 1] = csload(1, 132)
        c0 = -2.0 * math.sqrt(2.0 / math.pi) * math.log2(math.e)
        c1 = c0 * 0.044715
        k(f'v_mov_b32 v32, {f32(c0)}')
        k(f'v_mov_b32 v34, {f32(c1)}')
        k(f's_mul_i32 s54, s{S_FT}, {12*32768}')
        k(f's_lshl_b32 s55, s{S_TOK}, 4')
        k('s_add_u32 s54, s54, s55')
        k(f's_add_u32 s54, s54, {WS_HC}')
        T_, O = 164, 180
        csb = {0: 212, 1: 132, 2: 212}
        for p in range(3):
            G, U, CS = ACC + 16 * p, ACC + 16 * (3 + p), csb[p]
            k.wait(T['cs', p])
            for q in range(8):
                g2, u2 = v(G + 2 * q, 2), v(U + 2 * q, 2)
                k(f'v_pk_fma_f32 {g2}, {v(CS+2*q,2)}, {v(26,2)}, {g2} op_sel_hi:[1,0,1]')
                k(f'v_pk_fma_f32 {u2}, {v(CS+16+2*q,2)}, {v(26,2)}, {u2} op_sel_hi:[1,0,1]')
            if p == 0:
                T['cs', 2] = csload(2, 212)
            for q in range(8):
                g2, u2, t2 = v(G + 2 * q, 2), v(U + 2 * q, 2), v(T_ + 2 * q, 2)
                k(f'v_pk_mul_f32 {u2}, {u2}, {g2}')
                k(f'v_pk_mul_f32 {g2}, {g2}, {v(28,2)} op_sel_hi:[1,0]')
                k(f'v_pk_mul_f32 {t2}, {g2}, {g2}')
                k(f'v_pk_fma_f32 {t2}, {t2}, {v(34,2)}, {v(32,2)} op_sel_hi:[1,0,0]')
                k(f'v_pk_mul_f32 {t2}, {t2}, {g2}')
            for i in range(16):
                k(f'v_exp_f32 v{T_+i}, v{T_+i}')
            for q in range(8):
                t2 = v(T_ + 2 * q, 2)
                k(f'v_pk_fma_f32 {t2}, {t2}, {v(30,2)}, {v(30,2)} op_sel_hi:[1,0,0]')
            for i in range(16):
                k(f'v_rcp_f32 v{T_+i}, v{T_+i}')
            for q in range(8):
                k(f'v_pk_mul_f32 {v(U+2*q,2)}, {v(U+2*q,2)}, {v(T_+2*q,2)}')
            for q in range(8):
                k(f'v_cvt_pk_bf16_f32 v{O+8*(p%2)+q}, v{U+2*q}, v{U+2*q+1}')
            for hf2 in range(2):
                k(f's_add_u32 s55, s54, {(4*p+2*hf2)*32768}')
                self.own = k(f'buffer_store_dwordx4 {v(O+8*(p%2)+4*hf2,4)}, v5, {WSR}, s55 offen sc1')
        stamp(k, 39)


def colsum_strip(k):
    lab = k.newlabel('CS_SKIP')
    k(f's_cmp_lg_u32 s{S_W4}, 0')
    k(f's_cbranch_scc1 {lab}')
    k(f's_cmp_ge_u32 s{S_I32}, 12')
    k(f's_cbranch_scc1 {lab}')
    sn = k.snap()
    k(f's_and_b32 s60, s{S_X8}, 1')
    k('s_cmp_eq_u32 s60, 0')
    k(f's_cselect_b32 s72, s{S_WG}, s{S_WU}')
    k(f's_cselect_b32 s73, s{S_WG+1}, s{S_WU+1}')
    k('s_mov_b32 s74, 1966080')
    k('s_mov_b32 s75, 0x00020000')
    k(f's_lshr_b32 s60, s{S_X8}, 1')
    k('s_mul_i32 s60, s60, 768')
    k(f's_lshl_b32 s61, s{S_I32}, 6')
    k('s_add_u32 s60, s60, s61')
    k('v_lshrrev_b32 v40, 2, v1')
    k('v_mul_u32_u24 v40, 3072, v40')
    k('v_and_b32 v41, 3, v1')
    k('v_lshl_add_u32 v40, v41, 4, v40')
    k('v_add_u32 v40, s60, v40')
    tk = []
    for n in range(40):
        k(f's_mov_b32 s61, {n*16*3072}')
        tk.append(k(f'buffer_load_dwordx4 {v(60+4*n,4)}, v40, s[72:75], s61 offen'))
    for i in range(8):
        k(f'v_mov_b32 v{44+i}, 0')
    for n in range(40):
        k.wait(tk[n])
        for p in range(4):
            k(f'v_lshlrev_b32 v{52+2*(p%2)}, 16, v{60+4*n+p}')
            k(f'v_and_b32 v{53+2*(p%2)}, 0xffff0000, v{60+4*n+p}')
            k(f'v_pk_add_f32 {v(44+2*p,2)}, {v(44+2*p,2)}, {v(52+2*(p%2),2)}')
    for i in range(8):
        xsum(k, 44 + i, 56, 57, 32)
        xsum(k, 44 + i, 56, 57, 16)
        k(f'v_add_f32_dpp v{44+i}, v{44+i}, v{44+i} row_ror:8 row_mask:0xf bank_mask:0xf')
        k(f'v_add_f32_dpp v{44+i}, v{44+i}, v{44+i} row_ror:4 row_mask:0xf bank_mask:0xf')
    strip_id(k, 60)
    k('s_lshl_b32 s60, s60, 2')
    k(f's_add_u32 s60, s60, {WS_CS}')
    k('v_lshlrev_b32 v41, 5, v41')
    k('s_mov_b64 exec, 0xf')
    k(f'buffer_store_dwordx4 {v(44,4)}, v41, {WSR}, s60 offen sc1')
    k(f'buffer_store_dwordx4 {v(48,4)}, v41, {WSR}, s60 offen offset:16 sc1')
    k('s_mov_b64 exec, -1')
    k.wait_all()
    k.restore(sn)
    k.label(lab)


def build():
    k = K()
    name = NAME + '_kernel'
    k.realend = 'K_END'
    k.raw('.p2align 8')
    k.raw(f'.globl {name}')
    k.raw(f'.type {name},@function')
    k.raw(f'{name}:')
    prologue(k)
    stamp(k, 0)
    g3 = G35(k, 3, [0, 20480, 40960, 61440, 81920], 232, 0)
    g5 = G35(k, 5, [49152, 69632, 90112, 110592, 131072, 0, 20480], 54, 70)
    p4 = P4(k)
    A3 = [102400, 118784, 135168]
    A5 = [61440, 77824, 143360]
    lab_l1, lab_p2, lab_l3, lab_fin = (k.newlabel(x) for x in ('L1', 'P2', 'L3', 'FIN'))
    k(f's_cmp_ge_u32 s{S_W}, 4')
    k(f's_cbranch_scc1 {lab_l1}')
    sn = k.snap()
    p1_compute(k)
    join(k)
    g3.dma_setup(24)
    p2_setup(k)
    k(f's_branch {lab_p2}')
    k.label(lab_l1)
    k.restore(sn)
    p1_loader(k, g3)
    k.label(lab_p2)
    join(k)
    for st in range(5):
        g3.btok[st] = ('vm', 0)
    own = emit_p2(k, g3)
    k(f's_cmp_ge_u32 s{S_W}, 4')
    k(f's_cbranch_scc1 {lab_l3}')
    sn = k.snap()
    g3.compute(own, st0=20)
    p4.compute(g3.own)
    if not OPT.get('nop5'):
        g5.compute(p4.own, st0=40)
    k(f's_branch {lab_fin}')
    k.label(lab_l3)
    k.restore(sn)
    p4.setup_dma(56)
    p4.dma_stage(0)
    p4.dma_stage(1)
    p4.loader_setup(g5)
    p4.pre_colsum()
    stamp(k, 23)
    k('s_barrier')
    k('s_barrier')
    k('s_barrier')
    stamp(k, 24)
    p4.dma_stage(2)
    p4.dma_stage(3)
    p4.dma_stage(4)
    p4.pre_colsum_write()
    stamp(k, 30)
    p4.loader(g5)
    if not OPT.get('nop5'):
        g5.loader(7, st0=40)
        k('s_barrier')
        k('s_barrier')
    k.label(lab_fin)
    join(k)
    stamp(k, 50)
    if STAMPS:
        k.wait_all()
        stamp(k, 51)
    stamp_flush(k)
    k.label(k.realend)
    k('s_endpgm')
    c = K()
    for f in k.cold:
        f(c)
    desc = f'''.section .rodata,"a"
.p2align 6
.amdhsa_kernel {name}
  .amdhsa_next_free_vgpr 256
  .amdhsa_next_free_sgpr 102
  .amdhsa_accum_offset 256
  .amdhsa_group_segment_fixed_size 0
  .amdhsa_kernarg_size 80
  .amdhsa_user_sgpr_count 2
  .amdhsa_user_sgpr_kernarg_segment_ptr 1
  .amdhsa_system_sgpr_workgroup_id_x 1
.end_amdhsa_kernel
'''
    return k.render() + c.render() + desc


def main():
    global STAMPS
    STAMPS = 'stamps' in sys.argv
    for a_ in sys.argv[2:]:
        if '=' in a_:
            kk, vv = a_.split('=')
            OPT[kk] = int(vv)
    head = open('cdna_kernels/%s.s.ref' % NAME).read().split('\n')
    hdr = [l for l in head if l.startswith(';') and '@launch' not in l and 'Override launch' not in l and 'grid=ceil' not in l]
    out = '\n'.join(hdr) + '\n'
    out += '; @launch grid=(256,1,1) block=(512,1,1) lds=163840\n'
    out += '.amdgcn_target "amdgcn-amd-amdhsa--gfx950"\n.text\n'
    out += build()
    path = sys.argv[1] if len(sys.argv) > 1 else 'cdna_kernels/%s.s' % NAME
    open(path, 'w').write(out)
    print('wrote', path, len(out), 'bytes')


if __name__ == '__main__':
    main()
```

```python
import re

REG_RE = re.compile(r'\b([vas])(?:(\d+)|\[(\d+):(\d+)\])')


def v(i, n=1):
    return f'v{i}' if n == 1 else f'v[{i}:{i+n-1}]'


def a(i, n=1):
    return f'a{i}' if n == 1 else f'a[{i}:{i+n-1}]'


def s(i, n=1):
    return f's{i}' if n == 1 else f's[{i}:{i+n-1}]'


def regs_of(opnd):
    out = set()
    for m in REG_RE.finditer(opnd):
        t = m.group(1)
        if m.group(2) is not None:
            out.add((t, int(m.group(2))))
        else:
            for i in range(int(m.group(3)), int(m.group(4)) + 1):
                out.add((t, i))
    if re.search(r'\bvcc\b', opnd):
        out.add(('vcc', 0))
    if re.search(r'\bexec\b', opnd):
        out.add(('exec', 0))
    if re.search(r'\bm0\b', opnd):
        out.add(('m0', 0))
    return out


def split_ops(rest):
    ops, depth, cur = [], 0, ''
    for ch in rest:
        if ch == '[':
            depth += 1
        if ch == ']':
            depth -= 1
        if ch == ',' and depth == 0:
            ops.append(cur.strip())
            cur = ''
        else:
            cur += ch
    if cur.strip():
        ops.append(cur.strip())
    return ops


TRANS = ('v_exp_f32', 'v_log_f32', 'v_rcp_f32', 'v_rsq_f32', 'v_sqrt_f32', 'v_sin_f32', 'v_cos_f32', 'v_rcp_iflag_f32')


class Ins:
    __slots__ = ('text', 'op', 'kind', 'wr', 'rd', 'srcc', 'passes', 'states', 'wide_store_data', 'is_lds_dma', 'srcab')

    def __init__(self, text):
        self.text = text
        t = text.split(';')[0].strip()
        parts = t.split(None, 1)
        op = parts[0]
        rest = parts[1] if len(parts) > 1 else ''
        self.op = op
        ops = split_ops(rest)
        self.wr, self.rd = set(), set()
        self.srcc = set()
        self.srcab = set()
        self.passes = 0
        self.states = 1
        self.wide_store_data = set()
        self.is_lds_dma = False
        R = [regs_of(o) for o in ops]
        allr = set().union(*R) if R else set()
        if op.startswith('v_mfma'):
            self.kind = 'mfma'
            self.passes = 8 if '32x32x16' in op else 4
            self.wr = R[0]
            self.srcab = R[1] | R[2]
            self.srcc = R[3]
            self.rd = R[1] | R[2] | R[3]
        elif op.startswith('v_'):
            self.kind = 'valu'
            if op in TRANS or op.rstrip('_e32').rstrip('_e64') in TRANS:
                self.kind = 'trans'
            if op.startswith('v_dot'):
                self.kind = 'dot'
            if op.startswith('v_permlane'):
                self.kind = 'permlane'
                self.wr = R[0] | R[1]
                self.rd = R[0] | R[1]
            elif op.startswith('v_cmpx'):
                self.wr = R[0] | {('exec', 0)}
                self.rd = set().union(*R[1:])
            elif op.startswith(('v_add_co', 'v_sub_co', 'v_addc_co', 'v_subb_co', 'v_subrev_co', 'v_mad_u64')):
                self.wr = R[0] | R[1]
                self.rd = set().union(*R[2:])
            elif op == 'v_nop':
                pass
            else:
                self.wr = R[0]
                self.rd = set().union(*R[1:]) if len(R) > 1 else set()
                if op.startswith(('v_fmac', 'v_dot2c', 'v_pk_fmac', 'v_writelane')):
                    self.rd |= R[0]
                if op.startswith('v_dot2_'):
                    self.srcc = R[3]
                if op.startswith('v_dot2c'):
                    self.srcc = R[0]
        elif op.startswith('ds_'):
            self.kind = 'lds'
            if op.startswith(('ds_read', 'ds_bpermute', 'ds_permute', 'ds_swizzle')) or '_rtn_' in op:
                self.wr = R[0]
                self.rd = set().union(*R[1:]) if len(R) > 1 else set()
            else:
                self.rd = allr
        elif op.startswith(('buffer_', 'global_')):
            self.kind = 'vmem'
            if op in ('buffer_inv', 'buffer_wbl2'):
                pass
            elif re.search(r'\blds\b', rest) or 'load_lds' in op:
                self.is_lds_dma = True
                self.rd = allr | {('m0', 0)}
            elif 'load' in op:
                self.wr = R[0]
                self.rd = set().union(*R[1:])
            elif 'atomic' in op:
                if re.search(r'\bsc0\b', rest):
                    self.wr = R[0]
                self.rd = allr
            else:
                self.rd = allr
                if 'x4' in op or 'x3' in op:
                    self.wide_store_data = R[0] if op.startswith('buffer_') else R[1]
        elif op.startswith('s_'):
            self.kind = 'salu'
            if op == 's_nop':
                self.states = int(ops[0], 0) + 1
            elif op.startswith(('s_cmp', 's_cbranch', 's_branch', 's_waitcnt', 's_barrier', 's_endpgm', 's_sleep',
                                's_setprio', 's_bitcmp')):
                self.rd = allr
            elif op.startswith(('s_load', 's_memtime', 's_memrealtime', 's_buffer_load')):
                self.kind = 'smem'
                self.wr = R[0]
                self.rd = set().union(*R[1:]) if len(R) > 1 else set()
            else:
                self.wr = R[0]
                self.rd = set().union(*R[1:]) if len(R) > 1 else set()
                if 'saveexec' in op:
                    self.wr = self.wr | {('exec', 0)}
                if op.startswith(('s_addk', 's_mulk')):
                    self.rd |= R[0]
        else:
            raise ValueError('unknown instr ' + text)


def is_valu(i):
    return i.kind in ('valu', 'trans', 'dot', 'permlane')


def vec(rs):
    return {r for r in rs if r[0] in ('v', 'a')}


def sca(rs):
    return {r for r in rs if r[0] in ('s', 'vcc')}


def need_states(p, c):
    n = 0
    if p.kind == 'mfma':
        P = p.passes
        d = p.wr
        if c.kind == 'mfma':
            if c.srcc & d:
                if c.srcc == d and c.passes == P:
                    n = max(n, 0)
                else:
                    n = max(n, {4: 6, 8: 10}[P])
            if c.srcab & d:
                n = max(n, {4: 8, 8: 12}[P])
            if (c.wr & d) and not (c.srcc == d):
                n = max(n, {4: 8, 8: 12}[P])
        else:
            if (c.rd | c.wr) & d:
                n = max(n, {4: 8, 8: 12}[P])
            if (is_valu(c) or c.kind in ('lds', 'vmem')) and (c.wr & p.srcc):
                n = max(n, {4: 3, 8: 7}[P])
    if is_valu(p):
        vw = vec(p.wr)
        sw = sca(p.wr)
        if c.kind == 'mfma' and (c.rd & vw):
            n = max(n, 2)
        if c.kind == 'mfma' and ('exec', 0) in p.wr:
            n = max(n, 4)
        if c.kind == 'permlane' and (c.rd & vw):
            n = max(n, 2)
        if c.kind == 'permlane' and ('exec', 0) in p.wr:
            n = max(n, 4)
        if c.op.startswith(('v_readlane', 'v_readfirstlane')) and (c.rd & vw):
            n = max(n, 1)
        if c.op.startswith(('v_readlane', 'v_readfirstlane', 'v_writelane')) and ('exec', 0) in p.wr:
            n = max(n, 4)
        if is_valu(c) and (c.rd & sw):
            n = max(n, 2)
            if c.op.startswith(('v_readlane', 'v_writelane')):
                n = max(n, 4)
        if c.kind == 'vmem' and (c.rd & sw):
            n = max(n, 5)
        if c.kind in ('salu', 'smem') and (c.rd & sw):
            n = max(n, 1)
        if p.kind == 'trans' and is_valu(c) and c.kind != 'trans' and ((c.rd | c.wr) & vw):
            n = max(n, 1)
        if p.kind == 'trans' and c.kind in ('lds', 'vmem', 'mfma') and (c.rd & vw):
            n = max(n, 2 if c.kind == 'mfma' else 1)
        if p.kind == 'dot':
            if c.kind == 'dot' and c.op == p.op:
                if (c.rd - c.srcc) & vw:
                    n = max(n, 3)
            elif (c.rd | c.wr) & vw:
                n = max(n, 3)
        if 'dpp' in c.text and (c.rd & vw):
            n = max(n, 2)
        if 'op_sel' in p.text and not p.op.startswith('v_pk_') and is_valu(c) and ((c.rd | c.wr) & vw):
            n = max(n, 1)
    if p.kind == 'vmem' and p.wide_store_data:
        if c.wr & p.wide_store_data:
            n = max(n, 2 if is_valu(c) else 1)
    if p.kind == 'salu' and ('m0', 0) in p.wr and (c.is_lds_dma or 'addtid' in c.op):
        n = max(n, 1)
    return n


class K:
    def __init__(self):
        self.items = []
        self.vm_issued = 0
        self.vm_done = -1
        self.lg_issued = 0
        self.lg_done = -1
        self.nlabel = 0
        self.cold = []

    def raw(self, text):
        self.items.append(text)

    def c(self, text):
        self.items.append('    ; ' + text)

    def __call__(self, text):
        ins = Ins(text)
        self.items.append(ins)
        tok = None
        if ins.kind == 'vmem':
            tok = ('vm', self.vm_issued)
            self.vm_issued += 1
        elif ins.kind == 'lds':
            tok = ('lg', self.lg_issued)
            self.lg_issued += 1
        return tok

    def label(self, name):
        self.items.append(('label', name))

    _lab = [0]

    def newlabel(self, base='L'):
        K._lab[0] += 1
        return f'{base}_{K._lab[0]}'

    def wait(self, *toks):
        vm = max([t[1] for t in toks if t and t[0] == 'vm'], default=-1)
        lg = max([t[1] for t in toks if t and t[0] == 'lg'], default=-1)
        parts = []
        if vm > self.vm_done:
            n = self.vm_issued - vm - 1
            if n > 63:
                n = 63
                n = min(n, self.vm_issued - vm - 1)
            parts.append(f'vmcnt({min(n, 63)})')
            self.vm_done = vm
        if lg > self.lg_done:
            n = self.lg_issued - lg - 1
            parts.append(f'lgkmcnt({min(n, 15)})')
            self.lg_done = lg
        if parts:
            self('s_waitcnt ' + ' '.join(parts))

    def wait_all(self, vm=True, lg=True):
        parts = []
        if vm:
            parts.append('vmcnt(0)')
            self.vm_done = self.vm_issued - 1
        if lg:
            parts.append('lgkmcnt(0)')
            self.lg_done = self.lg_issued - 1
        self('s_waitcnt ' + ' '.join(parts))

    def outline(self, cond_branch, fn):
        lc, lb = self.newlabel('OUT'), self.newlabel('OBK')
        self(f'{cond_branch} {lc} ;nodrain')
        self.label(lb)
        saved = self.items
        self.items = []
        self.label(lc)
        fn()
        self(f's_branch {lb}')
        blk = self.items
        self.items = saved
        self.cold.append(lambda c: c.items.extend(blk))

    def capture(self, fn):
        saved = self.items
        self.items = []
        fn()
        blk = self.items
        self.items = saved
        return blk

    def snap(self):
        return (self.vm_issued, self.vm_done, self.lg_issued, self.lg_done)

    def restore(self, sn):
        self.vm_issued, self.vm_done, self.lg_issued, self.lg_done = sn

    def reset_counters(self):
        self.vm_issued = 0
        self.vm_done = -1
        self.lg_issued = 0
        self.lg_done = -1

    def render(self):
        out = []
        hist = []
        npad = 0
        for it in self.items:
            if isinstance(it, str):
                out.append(it)
                continue
            if isinstance(it, tuple):
                out.append(it[1] + ':')
                continue
            c = it
            need = 0
            dist = 0
            for p in reversed(hist):
                n = need_states(p, c)
                if n > dist:
                    need = max(need, n - dist)
                dist += p.states
                if dist > 24:
                    break
            is_branch = c.op.startswith(('s_cbranch', 's_branch')) and 'nodrain' not in c.text
            if is_branch:
                dist = 0
                for p in reversed(hist):
                    w = 0
                    if p.kind == 'mfma':
                        w = {4: 8, 8: 12}[p.passes]
                    elif is_valu(p):
                        w = 5 if sca(p.wr) or ('exec', 0) in p.wr else 3
                    elif p.kind == 'vmem' and p.wide_store_data:
                        w = 2
                    elif ('m0', 0) in p.wr:
                        w = 1
                    if w - 1 > dist:
                        need = max(need, w - 1 - dist)
                    dist += p.states
                    if dist > 24:
                        break
            while need > 0:
                k = min(need, 16)
                nop = Ins(f's_nop {k-1}')
                out.append('    ' + nop.text)
                hist.append(nop)
                need -= k
                npad += 1
            out.append('    ' + c.text)
            hist.append(c)
            if len(hist) > 40:
                hist = hist[-40:]
        return '\n'.join(out) + '\n'
```

```python
import math
import struct
import sys
from asmlib import K, v, a, s

NAME = 'sequential_preLN__sliding_block__glu_gated_geglu__prompt'

WS_QG = 0x0000000
WS_KG = 0x0280000
WS_VF = 0x0500000
WS_OC = 0x0780000
WS_H1 = 0x0A00000
WS_HC = 0x0C80000
WS_CS = 0x1280000
WS_F2 = 0x1288000
WS_F3 = 0x128A000
WS_F0 = 0x128C000
WS_PC = 0x1290000
WS_PS = 0x12A8000
WS_HS = 0x12D0000
WS_PCS = 0x1340000
WS_ST = 0x1300000
WS_SIZE = 0x1400000
OOB = 0x40000000

S_X, S_WQKV, S_WO, S_WG, S_WU, S_WD, S_OUT, S_WS, S_DBG = 4, 8, 12, 16, 20, 24, 28, 32, 36
S_NONCE = 3
S_W, S_X8, S_I32, S_W4 = 40, 41, 42, 43
S_BUD = 57
WSR = f's[{S_WS}:{S_WS+3}]'
OPT = {}
STAMPS = False
XCH = 159744
XNONCE = XCH + 3072
XCNT = XCH + 3080


def f32(x):
    return '0x%08x' % struct.unpack('<I', struct.pack('<f', x))[0]


def stamp(k, i):
    if not STAMPS:
        return
    k('s_memtime s[62:63]')
    k.wait_all(vm=False)
    k(f'v_writelane_b32 v255, s62, {i}')


def stamp_flush(k):
    if not STAMPS:
        return
    lab = k.newlabel('ST')
    k('s_memrealtime s[62:63]')
    k.wait_all()
    k('v_writelane_b32 v255, s62, 63')
    k(f'v_writelane_b32 v255, s{S_BUD}, 62')
    k(f's_cmp_lg_u32 s{S_W4}, 0')
    k(f's_cbranch_scc1 {lab}')
    k('v_lshlrev_b32 v254, 2, v1')
    k('s_lshl_b32 s62, s2, 9')
    k(f's_lshl_b32 s63, s{S_W}, 6')
    k('s_add_u32 s62, s62, s63')
    k(f's_add_u32 s62, s62, {WS_ST}')
    k(f'buffer_store_dword v255, v254, {WSR}, s62 offen')
    k.label(lab)


def run(k, f):
    return f() if callable(f) else k(f)


def runall(k, ops):
    for f in ops:
        run(k, f)


def roll_step(k, mf, rds, fill):
    n, nf, fi = len(mf), len(fill), 0
    for i, (wt, m) in enumerate(mf):
        k.wait(*wt())
        k(m)
        for f in (rds[i] if i < len(rds) else []):
            run(k, f)
        tgt = (nf * (i + 1) + n - 1) // n
        while fi < min(tgt, nf):
            run(k, fill[fi])
            fi += 1


def spread(k, main, side):
    n, nf = len(main), len(side)
    pos = {}
    for j in range(nf):
        pos.setdefault(int(j * n / max(nf, 1)), []).append(side[j])
    for i, m in enumerate(main):
        for f in pos.get(i, []):
            run(k, f)
        run(k, m)


def rbf(k, d, src):
    k(f'v_cvt_pk_bf16_f32 {v(d)}, {v(src)}, {v(src)}')
    k(f'v_lshlrev_b32 {v(d)}, 16, {v(d)}')


def xsum(k, r, t1, t2, which=32):
    k(f'v_mov_b32 {v(t1)}, {v(r)}')
    k(f'v_mov_b32 {v(t2)}, {v(r)}')
    k(f'v_permlane{which}_swap_b32 {v(t1)}, {v(t2)}')
    k(f'v_add_f32 {v(r)}, {v(t1)}, {v(t2)}')


def maxchain_ops(regs, t):
    regs = list(regs)
    ops = [f'v_max3_u32 v{t}, v{regs[0]}, v{regs[1]}, v{regs[2]}']
    i = 3
    while i < len(regs):
        if i + 1 < len(regs):
            ops.append(f'v_max3_u32 v{t}, v{t}, v{regs[i]}, v{regs[i+1]}')
            i += 2
        else:
            ops.append(f'v_max_u32 v{t}, v{t}, v{regs[i]}')
            i += 1
    return ops


def check_group(k, regs, t, reissue, slp=2):
    for o in maxchain_ops(regs, t):
        k(o)
    slow, back, loop = k.newlabel('SLOW'), k.newlabel('BACK'), k.newlabel('RETRY')
    k(f'v_cmp_eq_u32 vcc, -1, v{t}')
    k(f's_cbranch_vccnz {slow} ;nodrain')
    k.label(back)

    def cold(c):
        c.label(slow)
        c('s_nop 15')
        c.label(loop)
        c(f's_cmp_eq_u32 s{S_BUD}, 0')
        c(f's_cbranch_scc1 {back}')
        c(f's_sub_u32 s{S_BUD}, s{S_BUD}, 1')
        c(f's_sleep {slp}')
        reissue(c)
        c('s_waitcnt vmcnt(0)')
        for o in maxchain_ops(regs, t):
            c(o)
        c(f'v_cmp_eq_u32 vcc, -1, v{t}')
        c(f's_cbranch_vccnz {loop}')
        c(f's_branch {back}')
    k.cold.append(cold)


def nonce_issue(k, vr):
    k(f'v_mov_b32 v{vr+1}, 0')
    return k(f'buffer_load_dword v{vr}, v{vr+1}, s[{S_DBG}:{S_DBG+3}], 0 offen sc1')


def nonce_check(k, vr, tok):
    k.wait(tok)
    slow, back = k.newlabel('NSLOW'), k.newlabel('NBACK')
    k(f'v_readfirstlane_b32 s{S_NONCE}, v{vr}')
    k(f's_cmp_eq_u32 s{S_NONCE}, 0')
    k(f's_cbranch_scc1 {slow} ;nodrain')
    k.label(back)

    def cold(c):
        c.label(slow)
        c('s_nop 15')
        c(f's_cmp_eq_u32 s{S_BUD}, 0')
        c(f's_cbranch_scc1 {back}')
        c(f's_sub_u32 s{S_BUD}, s{S_BUD}, 1')
        c('s_sleep 4')
        c(f'buffer_load_dword v{vr}, v{vr+1}, s[{S_DBG}:{S_DBG+3}], 0 offen sc1')
        c('s_waitcnt vmcnt(0)')
        c(f'v_readfirstlane_b32 s{S_NONCE}, v{vr}')
        c(f's_cmp_eq_u32 s{S_NONCE}, 0')
        c(f's_cbranch_scc1 {slow}')
        c(f's_branch {back}')
    k.cold.append(cold)


def nonce_from_lds(k, t):
    k(f'v_mov_b32 v{t}, {XNONCE}')
    tk = k(f'ds_read_b32 v{t}, v{t}')
    k.wait(tk)
    k(f'v_readfirstlane_b32 s{S_NONCE}, v{t}')


def rflag_store(k, base, sidx, t1, t2, wave=0):
    k(f'v_mov_b32 v{t1}, s{S_NONCE}')
    k(f'v_lshlrev_b32 v{t2}, 10, v1')
    k(f's_lshl_b32 s60, s{sidx}, 2')
    k(f's_add_u32 s60, s60, {base}')
    k(f's_mov_b32 s61, {OOB}')
    k(f's_cmp_eq_u32 s{S_W}, {wave}')
    k('s_cselect_b32 s60, s60, s61')
    k('s_mov_b64 exec, 0xff')
    k(f'buffer_store_dword v{t1}, v{t2}, {WSR}, s60 offen sc1')
    k('s_mov_b64 exec, -1')


def wflag_store(k, base, sidx, t1, t2, cnt):
    k(f'v_mov_b32 v{t1}, 1')
    k(f'v_mov_b32 v{t2}, {XCNT+4*cnt}')
    k('s_mov_b64 exec, 1')
    tk = k(f'ds_add_rtn_u32 v{t1}, v{t2}, v{t1}')
    k('s_mov_b64 exec, -1')
    k(f's_lshl_b32 s60, s{sidx}, 2')
    k(f's_add_u32 s60, s60, {base}')
    k.wait(tk)
    k(f'v_readfirstlane_b32 s61, v{t1}')
    k(f'v_mov_b32 v{t1}, s{S_NONCE}')
    k(f'v_lshlrev_b32 v{t2}, 10, v1')
    k('s_cmp_eq_u32 s61, 3')
    k(f's_cselect_b32 s60, s60, {OOB}')
    k('s_mov_b64 exec, 0xff')
    k(f'buffer_store_dword v{t1}, v{t2}, {WSR}, s60 offen sc1')
    k('s_mov_b64 exec, -1')


def cnt_wait(k, t1, t2, cnt, target, bound=2000):
    loop, done = k.newlabel('CW'), k.newlabel('CD')
    k(f'v_mov_b32 v{t2}, {XCNT+4*cnt}')
    k(f's_mov_b32 s61, {bound}')
    k.label(loop)
    k.raw(f'    ds_read_b32 v{t1}, v{t2}')
    k.raw('    s_waitcnt lgkmcnt(0)')
    k(f'v_readfirstlane_b32 s60, v{t1}')
    k(f's_cmp_ge_u32 s60, {target}')
    k(f's_cbranch_scc1 {done}')
    k('s_sub_u32 s61, s61, 1')
    k('s_cmp_eq_u32 s61, 0')
    k(f's_cbranch_scc1 {done}')
    k('s_sleep 2')
    k(f's_branch {loop}')
    k.label(done)


def wflag_poll(k, sbase, va, vr, smask, width, only_wave0):
    loop, done = k.newlabel('POLL'), k.newlabel('PDONE')
    if only_wave0:
        k(f's_cmp_lg_u32 s{S_W}, 0')
        k(f's_cbranch_scc1 {done}')
    k.label(loop)
    if width == 4:
        k.raw(f'    buffer_load_dwordx4 {v(vr,4)}, v{va}, {WSR}, s{sbase} offen sc1')
        k.raw('    s_waitcnt vmcnt(0)')
        for i in range(4):
            k(f'v_xor_b32 v{vr+i}, s{S_NONCE}, v{vr+i}')
        k(f'v_or3_b32 v{vr}, v{vr}, v{vr+1}, v{vr+2}')
        k(f'v_or_b32 v{vr}, v{vr}, v{vr+3}')
        k(f'v_cmp_ne_u32 vcc, 0, v{vr}')
    else:
        k.raw(f'    buffer_load_dword v{vr}, v{va}, {WSR}, s{sbase} offen sc1')
        k.raw('    s_waitcnt vmcnt(0)')
        k(f'v_cmp_ne_u32 vcc, s{S_NONCE}, v{vr}')
    k(f's_and_b64 vcc, vcc, s[{smask}:{smask+1}]')
    k(f's_cbranch_scc0 {done}')
    k(f's_cmp_eq_u32 s{S_BUD}, 0')
    k(f's_cbranch_scc1 {done}')
    k(f's_sub_u32 s{S_BUD}, s{S_BUD}, 1')
    k(f's_sleep {OPT.get("psl", 1)}')
    k(f's_branch {loop}')
    k.label(done)


def rflag_poll(k, sbase, va, vr, smask):
    loop, done = k.newlabel('POLL'), k.newlabel('PDONE')
    k(f's_cmp_lg_u32 s{S_W}, 0')
    k(f's_cbranch_scc1 {done}')
    k.label(loop)
    k.raw(f'    buffer_load_dword v{vr}, v{va}, {WSR}, s{sbase} offen sc1')
    k.raw('    s_waitcnt vmcnt(0)')
    k(f'v_cmp_ne_u32 vcc, s{S_NONCE}, v{vr}')
    k(f's_and_b64 vcc, vcc, s[{smask}:{smask+1}]')
    k(f's_cbranch_scc0 {done}')
    k(f's_cmp_eq_u32 s{S_BUD}, 0')
    k(f's_cbranch_scc1 {done}')
    k(f's_sub_u32 s{S_BUD}, s{S_BUD}, 1')
    k(f's_branch {loop}')
    k.label(done)


def flags_issue(k, base, vr, va):
    k(f'v_lshlrev_b32 v{va}, 4, v1')
    k(f's_lshl_b32 s60, s{S_X8}, 10')
    k(f'v_add_u32 v{va}, s60, v{va}')
    k(f's_mov_b32 s60, {base}')
    return k(f'buffer_load_dwordx4 {v(vr,4)}, v{va}, {WSR}, s60 offen sc1')


def flags_check(k, base, vr, va, tok):
    k.wait(tok)
    slow, back = k.newlabel('FSLOW'), k.newlabel('FBACK')

    def cmpops(c):
        for i in range(4):
            c(f'v_xor_b32 v{vr+i}, s{S_NONCE}, v{vr+i}')
        c(f'v_or3_b32 v{vr}, v{vr}, v{vr+1}, v{vr+2}')
        c(f'v_or_b32 v{vr}, v{vr}, v{vr+3}')
        c(f'v_cmp_ne_u32 vcc, 0, v{vr}')
    cmpops(k)
    k(f's_cbranch_vccnz {slow} ;nodrain')
    k.label(back)

    def cold(c):
        c.label(slow)
        c('s_nop 15')
        c(f's_cmp_eq_u32 s{S_BUD}, 0')
        c(f's_cbranch_scc1 {back}')
        c(f's_sub_u32 s{S_BUD}, s{S_BUD}, 1')
        c('s_sleep 12')
        c(f's_mov_b32 s58, {base}')
        c(f'buffer_load_dwordx4 {v(vr,4)}, v{va}, {WSR}, s58 offen sc1')
        c('s_waitcnt vmcnt(0)')
        cmpops(c)
        c(f's_cbranch_vccnz {slow}')
        c(f's_branch {back}')
    k.cold.append(cold)


def join(k):
    k.reset_counters()
    k.vm_issued = 1
    k.lg_issued = 1


def prologue(k):
    k('s_cmp_ge_u32 s2, 256')
    k('s_cbranch_scc1 %s' % k.realend)
    if OPT.get('cpf', 1):
        k.raw('    s_getpc_b64 s[88:89]')
        k.raw('CODE_PC:')
        k.raw(f'    s_sub_u32 s88, s88, CODE_PC-{NAME}_kernel')
        k.raw('    s_subb_u32 s89, s89, 0')
        k.raw('    s_and_b32 s89, s89, 0xffff')
        k.raw(f'    s_mov_b32 s90, CODE_END-{NAME}_kernel')
        k.raw('    s_mov_b32 s91, 0x00020000')
        k('s_lshr_b32 s92, s2, 3')
        k('s_lshl_b32 s92, s92, 12')
        k('v_lshlrev_b32 v250, 7, v0')
        k('v_cmp_gt_u32 vcc, 32, v0')
        k(f'v_mov_b32 v251, {OOB}')
        k('v_cndmask_b32 v250, v251, v250, vcc')
        k('buffer_load_dword v251, v250, s[88:91], s92 offen')
    k('s_load_dwordx8 s[64:71], s[0:1], 0')
    k('s_load_dwordx8 s[72:79], s[0:1], 32')
    k('s_load_dwordx4 s[80:83], s[0:1], 64')
    k('s_memrealtime s[84:85]')
    k('v_and_b32 v1, 63, v0')
    k('v_lshrrev_b32 v2, 6, v0')
    k(f'v_readfirstlane_b32 s{S_W}, v2')
    k(f's_and_b32 s{S_X8}, s2, 7')
    k(f's_lshr_b32 s{S_I32}, s2, 3')
    k(f's_mov_b32 s{S_BUD}, {OPT.get("bud", 100000)}')
    k(f's_and_b32 s{S_W4}, s{S_W}, 3')
    k('v_and_b32 v0, 255, v0')
    k('v_mov_b32 v253, 0')
    k('s_waitcnt lgkmcnt(0)')
    for sr, src, size in ((S_X, 64, 2621440), (S_WQKV, 66, 2457600), (S_WO, 68, 819200), (S_WG, 72, 1966080),
                          (S_WU, 74, 1966080), (S_WD, 76, 1966080), (S_OUT, 78, 2621440), (S_WS, 82, WS_SIZE),
                          (S_DBG, 80, 256)):
        k(f's_mov_b32 s{sr}, s{src}')
        k(f's_and_b32 s{sr+1}, s{src+1}, 0xffff')
        k(f's_mov_b32 s{sr+2}, {size}')
        k(f's_mov_b32 s{sr+3}, 0x00020000')
    k(f's_or_b32 s60, s2, s{S_W}')
    k('s_cmp_eq_u32 s60, 0')
    k(f's_cselect_b32 s61, 0, 0x10000')
    k('s_or_b32 s60, s84, 1')
    k('v_mov_b32 v2, s60')
    k('v_mov_b32 v3, 0')
    k('s_mov_b64 exec, 1')
    k(f'buffer_store_dword v2, v3, s[{S_DBG}:{S_DBG+3}], s61 offen sc1')
    k('s_mov_b64 exec, -1')


def tile1(k):
    k(f's_and_b32 s47, s{S_X8}, 3')
    k(f's_lshr_b32 s46, s{S_X8}, 2')
    k('s_mul_i32 s46, s46, 30')
    k(f's_add_u32 s46, s46, s{S_I32}')
    k('s_lshr_b32 s44, s46, 2')
    k('s_and_b32 s46, s46, 3')
    k('s_lshl_b32 s47, s47, 2')
    k('s_add_u32 s45, s47, s46')
    k('s_add_u32 s56, s45, s44')
    for _ in range(2):
        k('s_sub_u32 s47, s56, 10')
        k('s_cmp_ge_u32 s56, 10')
        k('s_cselect_b32 s56, s47, s56')
    k('s_lshl_b32 s46, s45, 7')
    k(f's_lshl_b32 s47, s{S_W4}, 5')
    k('s_add_u32 s46, s46, s47')


def tile35(k, srt, sct, st):
    if OPT.get('m35', 0):
        k(f's_lshl_b32 s{st}, s{S_X8}, 2')
        k(f's_and_b32 s{srt}, s{S_I32}, 3')
        k(f's_add_u32 s{srt}, s{srt}, s{st}')
        k(f's_lshr_b32 s{sct}, s{S_I32}, 2')
        return
    k(f's_and_b32 s{st}, s{S_X8}, 3')
    k(f's_lshl_b32 s{st}, s{st}, 3')
    k(f's_and_b32 s{srt}, s{S_I32}, 7')
    k(f's_add_u32 s{srt}, s{srt}, s{st}')
    k(f's_lshr_b32 s{st}, s{S_X8}, 2')
    k(f's_lshl_b32 s{st}, s{st}, 2')
    k(f's_lshr_b32 s{sct}, s{S_I32}, 3')
    k(f's_add_u32 s{sct}, s{sct}, s{st}')


def tile4(k, smt, sft, st):
    if OPT.get('m4', 0):
        k(f's_and_b32 s{st}, s{S_X8}, 3')
        k(f's_lshl_b32 s{st}, s{st}, 2')
        k(f's_and_b32 s{smt}, s{S_I32}, 3')
        k(f's_add_u32 s{smt}, s{smt}, s{st}')
        k(f's_lshr_b32 s{st}, s{S_X8}, 2')
        k(f's_lshl_b32 s{st}, s{st}, 3')
        k(f's_lshr_b32 s{sft}, s{S_I32}, 2')
        k(f's_add_u32 s{sft}, s{sft}, s{st}')
        return
    k(f's_and_b32 s{st}, s{S_X8}, 1')
    k(f's_lshl_b32 s{st}, s{st}, 3')
    k(f's_and_b32 s{smt}, s{S_I32}, 7')
    k(f's_add_u32 s{smt}, s{smt}, s{st}')
    k(f's_lshr_b32 s{st}, s{S_X8}, 1')
    k(f's_lshl_b32 s{st}, s{st}, 2')
    k(f's_lshr_b32 s{sft}, s{S_I32}, 3')
    k(f's_add_u32 s{sft}, s{sft}, s{st}')


def strip_id(k, sd):
    k(f's_and_b32 s{sd}, s{S_X8}, 1')
    k(f's_mul_i32 s{sd}, s{sd}, 1536')
    k(f's_lshr_b32 s61, s{S_X8}, 1')
    k('s_mul_i32 s61, s61, 384')
    k(f's_add_u32 s{sd}, s{sd}, s61')
    k(f's_lshl_b32 s61, s{S_I32}, 5')
    k(f's_add_u32 s{sd}, s{sd}, s61')


def clear_ops(k, vs, va):
    ops = []

    def o1():
        k(f's_and_b32 s60, s{S_I32}, 3')
        k(f's_lshl_b32 s61, s{S_X8}, 2')
        k('s_add_u32 s60, s60, s61')
        k('s_and_b32 s65, s60, 1')
        k('s_lshr_b32 s60, s60, 1')
        k('s_mul_i32 s60, s60, 5')
        k('s_lshl_b32 s60, s60, 15')
        k(f's_lshr_b32 s61, s{S_I32}, 2')
        k('s_lshl_b32 s61, s61, 12')
        k('s_add_u32 s60, s60, s61')
        k(f's_lshl_b32 s61, s{S_W4}, 10')
        k('s_add_u32 s60, s60, s61')
        k(f's_add_u32 s64, s60, {WS_OC}')
        k(f's_mul_i32 s61, s65, {3*32768}')
        k('s_add_u32 s66, s64, s61')
        k(f'buffer_store_dwordx4 {v(vs,4)}, v{va}, {WSR}, s66 offen sc1')

    def o2():
        k('s_add_u32 s60, s66, 32768')
        k(f'buffer_store_dwordx4 {v(vs,4)}, v{va}, {WSR}, s60 offen sc1')

    def o3():
        k('s_lshl_b32 s61, s65, 3')
        k('s_add_u32 s60, s64, s61')
        k('s_add_u32 s60, s60, 65536')
        k(f'buffer_store_dwordx2 {v(vs,2)}, v{va}, {WSR}, s60 offen sc1')

    def h1():
        tile35(k, 60, 61, 64)
        k('s_lshl_b32 s67, s61, 14')
        k('s_lshl_b32 s64, s60, 9')
        k('s_add_u32 s67, s67, s64')
        k(f's_add_u32 s67, s67, {WS_HS}')
        k('s_mul_i32 s61, s61, 10')
        k(f's_add_u32 s61, s61, s{S_W4}')
        k('s_lshl_b32 s61, s61, 15')
        k('s_lshl_b32 s60, s60, 10')
        k('s_add_u32 s64, s61, s60')
        k(f's_add_u32 s64, s64, {WS_H1}')
        k(f'buffer_store_dwordx4 {v(vs,4)}, v{va}, {WSR}, s64 offen sc1')

    def h2():
        k(f's_add_u32 s60, s64, {4*32768}')
        k(f'buffer_store_dwordx4 {v(vs,4)}, v{va}, {WSR}, s60 offen sc1')

    def h3():
        k(f's_add_u32 s60, s64, {8*32768}')
        k(f's_mov_b32 s65, {OOB}')
        k(f's_cmp_lt_u32 s{S_W4}, 2')
        k('s_cselect_b32 s60, s60, s65')
        k(f'buffer_store_dwordx4 {v(vs,4)}, v{va}, {WSR}, s60 offen sc1')

    def h4():
        k(f's_cmp_eq_u32 s{S_W4}, 2')
        k('s_cselect_b32 s60, s67, s65')
        k(f'buffer_store_dwordx2 {v(vs,2)}, v{va+1}, {WSR}, s60 offen sc1')

    def c1():
        tile4(k, 60, 61, 64)
        k('s_mul_i32 s61, s61, 384')
        k('s_mul_i32 s64, s60, 12288')
        k('s_add_u32 s61, s61, s64')
        k(f's_mul_i32 s64, s{S_W4}, 6144')
        k('s_add_u32 s61, s61, s64')
        k(f's_add_u32 s61, s61, {WS_PCS}')
        k('s_cmp_lt_u32 s60, 10')
        k('s_cselect_b32 s61, s61, s65')
        k(f's_cmp_lt_u32 s{S_W4}, 2')
        k('s_cselect_b32 s61, s61, s65')
        k('s_mov_b64 exec, 0xffffff')
        k(f'buffer_store_dwordx4 {v(vs,4)}, v{va}, {WSR}, s61 offen sc1')
        k('s_mov_b64 exec, -1')
    return [o1, o2, o3, h1, h2, h3, h4, c1]


def sparse_prefetch(k, srd, rows_per_wg, lines, pitch, colshift, colmul, va, vd, toff=0):
    magic = {5: 13108, 6: 10923}[lines]
    k(f'v_subrev_u32 v{va}, {toff}, v0')
    k(f'v_cmp_gt_u32 vcc, {rows_per_wg*lines}, v{va}')
    k(f'v_mul_u32_u24 v{vd}, {magic}, v{va}')
    k(f'v_lshrrev_b32 v{vd}, 16, v{vd}')
    k(f'v_mul_u32_u24 v{vd}, {pitch-lines*128}, v{vd}')
    k(f'v_lshl_add_u32 v{va}, v{va}, 7, v{vd}')
    k(f'v_mov_b32 v{vd}, {OOB}')
    k(f'v_cndmask_b32 v{va}, v{vd}, v{va}, vcc')
    k(f's_mul_i32 s60, s{S_I32}, {rows_per_wg*pitch}')
    k(f's_lshr_b32 s61, s{S_X8}, {colshift}')
    k(f's_mul_i32 s61, s61, {colmul}')
    k('s_add_u32 s60, s60, s61')
    for sr in srd:
        k(f'buffer_load_dword v{vd}, v{va}, s[{sr}:{sr+3}], s60 offen')


def pf_wo(k, va, vd):
    sparse_prefetch(k, [S_WO], 20, 5, 1280, 2, 640, va, vd)


def pf_wd(k, va, vd):
    sparse_prefetch(k, [S_WD], 48, 5, 1280, 2, 640, va, vd)


def pf_wgu(k, va, vd, toff=0):
    sparse_prefetch(k, [S_WG, S_WU], 20, 6, 3072, 1, 768, va, vd, toff)


P1_R, P1_SLOT = 4, 32768


def p1_loader(k, g3):
    tile1(k)
    S_NT, S_TOK, S_LW, S_SIG = 44, 46, 48, 55
    lab_h, lab_e = k.newlabel('L_HELP'), k.newlabel('L_P1E')
    k(f's_cmp_ge_u32 s{S_I32}, 30')
    k(f's_cbranch_scc1 {lab_h}')
    k('s_cmp_ge_u32 s56, 5')
    k(f's_cselect_b32 s{S_SIG}, 5, 0')
    k('v_lshrrev_b32 v10, 3, v1')
    k(f'v_add_u32 v10, s{S_TOK}, v10')
    k('v_mul_u32_u24 v10, 1280, v10')
    k('v_and_b32 v11, 7, v1')
    k('v_lshrrev_b32 v12, 4, v1')
    k('v_xor_b32 v11, v11, v12')
    k('v_xor_b32 v13, 4, v11')
    k('v_lshl_add_u32 v2, v11, 4, v10')
    k('v_lshl_add_u32 v3, v13, 4, v10')
    k(f'v_add_u32 v3, {10240-1024}, v3')
    k(f'v_add_u32 v4, {2*(10240-1024)}, v2')
    k(f'v_add_u32 v5, {2*(10240-1024)}, v3')
    k(f's_lshl_b32 s47, s{S_W4}, 4')
    k('v_add_u32 v10, s47, v12')
    k('v_mul_u32_u24 v10, 3840, v10')
    k(f's_lshl_b32 s47, s{S_NT}, 8')
    k('v_add_u32 v10, s47, v10')
    k('v_bfe_u32 v11, v1, 2, 2')
    k('v_xor_b32 v11, v11, v12')
    k('v_lshl_add_u32 v10, v11, 6, v10')
    k('v_and_b32 v11, 3, v1')
    k('v_lshl_add_u32 v6, v11, 4, v10')
    for i in range(1, 4):
        k(f'v_add_u32 v{6+i}, {i*(4*3840-1024)}, v6')
    k(f's_lshl_b32 s{S_LW}, s{S_W4}, 12')
    tok = {}

    def issue(st):
        slot = st % P1_R
        k(f's_add_u32 m0, s{S_LW}, {slot*P1_SLOT}')
        k(f's_lshl_b32 s49, s{S_SIG}, 7')
        for i in range(4):
            k(f'buffer_load_dwordx4 v{2+i}, s[{S_X}:{S_X+3}], s49 offen offset:{i*1024} lds')
        k(f's_add_u32 m0, s{S_LW}, {slot*P1_SLOT+16384}')
        k(f's_mul_i32 s50, s{S_SIG}, {64*3840}')
        k(f's_add_u32 s{S_SIG}, s{S_SIG}, 1')
        k(f's_cmp_eq_u32 s{S_SIG}, 10')
        k(f's_cselect_b32 s{S_SIG}, 0, s{S_SIG}')
        for i in range(4):
            tok[st] = k(f'buffer_load_dwordx4 v{6+i}, s[{S_WQKV}:{S_WQKV+3}], s50 offen offset:{i*1024} lds')
    issue(0)
    issue(1)
    stamp(k, 1)
    k.wait(tok[0])
    k('s_barrier')
    stamp(k, 2)
    issue(2)
    issue(3)
    blk = k.capture(lambda: (g3.dma_setup(100), p2_setup(k)))
    nb_ = (len(blk) + 2) // 3
    for st in range(1, 10):
        k.wait(tok[st])
        k('s_barrier')
        if st + 3 < 10:
            issue(st + 3)
        if st == 6:
            stamp(k, 3)
            pf_wo(k, 120, 121)
        if 6 <= st <= 8:
            k.items.extend(blk[(st - 6) * nb_:(st - 5) * nb_])
    k(f's_branch {lab_e}')
    k.label(lab_h)
    for st in range(10):
        k('s_barrier')
    pf_wo(k, 120, 121)
    k.items.extend(blk)
    k.label(lab_e)
    join(k)
    nonce_from_lds(k, 122)
    stamp(k, 9)
    k('s_barrier')
    if OPT.get('wowait', 1):
        cnt_wait(k, 238, 239, 0, OPT.get('wowait', 1))
    stamp(k, 10)
    for st in range(5):
        runall(k, g3.dma_step(st))
    stamp(k, 11)


def p1_compute(k):
    tile1(k)
    S_NT, S_MT, S_TOK, S_LW, S_RHO = 44, 45, 46, 48, 56
    k(f's_lshl_b32 s{S_LW}, s{S_W4}, 12')
    for i in range(4):
        k(f'v_mov_b32 v{96+i}, -1')
    k('v_lshlrev_b32 v100, 4, v1')
    k('v_lshlrev_b32 v101, 3, v1')
    k('v_and_b32 v40, 31, v1')
    k('v_lshlrev_b32 v109, 3, v40')
    k('v_lshlrev_b32 v102, 2, v40')
    k(f's_lshl_b32 s51, s{S_RHO}, 14')
    k(f's_lshl_b32 s47, s{S_TOK}, 3')
    k('s_add_u32 s51, s51, s47')
    k(f's_add_u32 s51, s51, {WS_PS}')
    k(f's_mov_b32 s47, {OOB}')
    k(f's_cmp_lt_u32 s{S_NT}, 10')
    k('s_cselect_b32 s51, s51, s47')
    k(f's_mul_i32 s52, s{S_RHO}, 7680')
    k(f's_lshl_b32 s49, s{S_NT}, 9')
    k('s_add_u32 s52, s52, s49')
    k(f's_lshl_b32 s49, s{S_W4}, 7')
    k('s_add_u32 s52, s52, s49')
    k(f's_add_u32 s52, s52, {WS_PC}')
    k(f's_cmp_lt_u32 s{S_MT}, 10')
    k('s_cselect_b32 s52, s52, s47')
    k(f's_cmp_lt_u32 s{S_I32}, 30')
    k('s_cselect_b32 s51, s51, s47')
    k('s_cselect_b32 s52, s52, s47')
    k(f'buffer_store_dwordx2 {v(96,2)}, v109, {WSR}, s51 offen sc1')
    sctok = k(f'buffer_store_dword v96, v102, {WSR}, s52 offen sc1')
    NV = 252
    def warm():
        k('v_lshlrev_b32 v110, 7, v0')
        k(f's_and_b32 s60, s{S_X8}, 3')
        k('s_lshl_b32 s60, s60, 5')
        k(f's_add_u32 s60, s60, s{S_I32}')
        k('s_mul_i32 s60, s60, 20480')
        k('v_cmp_gt_u32 vcc, 160, v0')
        k(f'v_mov_b32 v111, {OOB}')
        k('v_cndmask_b32 v110, v111, v110, vcc')
        k(f'buffer_load_dword v111, v110, s[{S_X}:{S_X+3}], s60 offen')
        k('v_lshrrev_b32 v110, 4, v0')
        k('v_mul_u32_u24 v110, 3840, v110')
        k('v_and_b32 v112, 15, v0')
        k('v_lshl_add_u32 v110, v112, 7, v110')
        k(f's_mul_i32 s60, s{S_I32}, {20*3840}')
        k(f's_lshr_b32 s61, s{S_X8}, 2')
        k('s_mul_i32 s61, s61, 1792')
        k('s_add_u32 s60, s60, s61')
        k(f'buffer_load_dword v113, v110, s[{S_WQKV}:{S_WQKV+3}], s60 offen')
        k(f's_add_u32 s60, s60, {16*3840}')
        k(f's_mov_b32 s61, {OOB}')
        k(f's_cmp_eq_u32 s{S_W4}, 0')
        k('s_cselect_b32 s60, s60, s61')
        k(f'buffer_load_dword v114, v110, s[{S_WQKV}:{S_WQKV+3}], s60 offen')
    if OPT.get('warm', 0) == 1:
        warm()
    k('v_lshrrev_b32 v41, 5, v1')
    k('v_bfe_u32 v42, v1, 1, 3')
    k('v_xor_b32 v42, v42, v41')
    k('v_lshlrev_b32 v43, 7, v40')
    k('v_lshl_add_u32 v43, v42, 4, v43')
    k(f'v_add_u32 v10, s{S_LW}, v43')
    for ks in range(1, 4):
        k(f'v_xor_b32 v{10+ks}, {ks*32}, v10')
    k('v_bfe_u32 v42, v1, 2, 2')
    k('v_lshl_add_u32 v43, v41, 3, v42')
    k('v_lshlrev_b32 v43, 8, v43')
    k('v_bfe_u32 v44, v1, 4, 1')
    k('v_lshl_add_u32 v43, v44, 5, v43')
    k('v_and_b32 v44, 3, v1')
    k('v_lshl_add_u32 v43, v44, 3, v43')
    k('v_add_u32 v43, 16384, v43')
    for j in range(4):
        k(f's_add_u32 s49, s{S_W4}, {j}')
        k('s_and_b32 s49, s49, 3')
        k('v_xor_b32 v44, s49, v42')
        k(f'v_lshl_add_u32 v{14+j}, v44, 6, v43')
    for i in range(8):
        k(f'v_add_u32 v{18+i}, 65536, v{10+i}')
    VSUM, VSQ, VCS, VONE = 34, 35, 36, 37
    k(f'v_mov_b32 v{VSUM}, 0')
    k(f'v_mov_b32 v{VSQ}, 0')
    k(f'v_mov_b32 v{VCS}, 0')
    k(f'v_mov_b32 v{VONE}, 0x3f803f80')
    k('v_lshrrev_b32 v105, 5, v1')
    k(f'v_mul_u32_u24 v103, {5*16384}, v105')
    k('v_add_u32 v103, v103, v109')
    k(f'v_mul_u32_u24 v104, {5*7680}, v105')
    k('v_add_u32 v104, v104, v102')
    k(f's_lshl_b32 s53, s{S_TOK}, 3')
    k(f's_add_u32 s53, s53, {WS_PS}')
    k(f's_lshl_b32 s54, s{S_NT}, 9')
    k(f's_lshl_b32 s49, s{S_W4}, 7')
    k('s_add_u32 s54, s54, s49')
    k(f's_add_u32 s54, s54, {WS_PC}')
    k('s_sub_u32 s55, s56, 5')
    k('s_cmp_ge_u32 s56, 5')
    k('s_cselect_b32 s55, s55, s56')
    XF, WF, ACC = 40, 48, 128
    PR, PCR, FL = 232, 242, 248
    stamp(k, 1)
    def nonce_share():
        def blk():
            loop, done = k.newlabel('NL'), k.newlabel('ND')
            first = k.newlabel('NF')
            k(f's_branch {first}')
            k.label(loop)
            k.raw(f'    buffer_load_dword v{NV}, v{NV+1}, s[{S_DBG}:{S_DBG+3}], 0 offen sc1')
            k.label(first)
            k.raw('    s_waitcnt vmcnt(0)')
            k(f'v_readfirstlane_b32 s{S_NONCE}, v{NV}')
            k(f's_cmp_lg_u32 s{S_NONCE}, 0')
            k(f's_cbranch_scc1 {done}')
            k(f's_cmp_eq_u32 s{S_BUD}, 0')
            k(f's_cbranch_scc1 {done}')
            k(f's_sub_u32 s{S_BUD}, s{S_BUD}, 1')
            k('s_sleep 4')
            k(f's_branch {loop}')
            k.label(done)
            k(f'v_mov_b32 v{NV+1}, {XNONCE}')
            k.raw(f'    ds_write_b32 v{NV+1}, v{NV}')
            k.raw('    s_waitcnt lgkmcnt(0)')
        k(f's_cmp_eq_u32 s{S_W}, 0')
        k.outline('s_cbranch_scc1', blk)
        k.wait(sctok)

    def nonce_pre():
        def blk():
            k(f'v_mov_b32 v{NV+1}, 0')
            k.raw(f'    buffer_load_dword v{NV}, v{NV+1}, s[{S_DBG}:{S_DBG+3}], 0 offen sc1')
        k(f's_cmp_eq_u32 s{S_W}, 0')
        k.outline('s_cbranch_scc1', blk)

    def nonce_get():
        rflag_store(k, WS_F0, 2, 107, 108)
        nonce_from_lds(k, 107)
    k(f'v_mov_b32 v107, {XCNT}')
    k('v_mov_b32 v108, 0')
    k('ds_write_b32 v107, v108')
    k('ds_write_b32 v107, v108 offset:4')
    k.wait_all(vm=False)
    if OPT.get('warm', 0) == 3:
        k('s_sleep 20')
        warm()
    stamp(k, 2)
    k('s_barrier')
    nonce_pre()
    if OPT.get('warm', 0) == 2:
        warm()
    stamp(k, 3)
    lab_v, lab_h, lab_done = k.newlabel('P1_V'), k.newlabel('C_HELP'), k.newlabel('C_P1D')
    k(f's_cmp_ge_u32 s{S_I32}, 30')
    k(f's_cbranch_scc1 {lab_h}')
    k(f's_cmp_ge_u32 s{S_NT}, 10')
    k(f's_cbranch_scc1 {lab_v}')
    saved = k.snap()
    T = {}

    def part_loads(c):
        for n in range(5):
            c(f's_add_u32 s58, s53, {n*16384}')
            c(f'buffer_load_dwordx2 {v(PR+2*n,2)}, v103, {WSR}, s58 offen sc1')
        tok = None
        for n in range(5):
            c(f's_add_u32 s58, s54, {n*7680}')
            tok = c(f'buffer_load_dword v{PCR+n}, v104, {WSR}, s58 offen sc1')
        return tok

    def mainloop(transposed):
        rd = {}

        def reads(kk):
            st, ks = kk // 4, kk % 4
            slot = st % P1_R
            q, so = slot // 2, (slot % 2) * P1_SLOT
            b = kk % 2
            ops = [[] for _ in range(4)]
            ops[0].append(lambda: rd.__setitem__((kk, 'x'), k(
                f'ds_read_b128 {v(XF+4*b,4)}, v{10+8*q+ks} offset:{so}')))
            for j in range(4):
                for hf in range(2):
                    ops[j].append(lambda j=j, hf=hf: rd.__setitem__((kk, j), k(
                        f'ds_read_b64_tr_b16 {v(WF+16*b+4*j+2*hf,2)}, v{14+8*q+j} offset:{so+ks*4096+hf*1024}')))
            return ops
        for l_ in reads(0):
            runall(k, l_)
        clr = clear_ops(k, 96, 100)
        for kk in range(40):
            b = kk % 2
            if kk % 8 == 4:
                stamp(k, 4 + kk // 8)
            fill, rds = [], []
            if kk >= OPT.get('clr0', 31) and clr:
                fill.append(clr.pop(0))
            if kk + 1 < 40:
                if (kk + 1) % 4 == 0:
                    if kk == 7:
                        nonce_share()
                    k.wait_all(vm=False)
                    k('s_barrier')
                    if kk == 7:
                        nonce_get()
                rds = reads(kk + 1)
            if kk < 20:
                def dots(b=b, kk=kk):
                    for i in range(4):
                        k(f'v_dot2_f32_bf16 v{VSUM}, v{XF+4*b+i}, v{VONE}, v{VSUM}')
                        k(f'v_dot2_f32_bf16 v{VSQ}, v{XF+4*b+i}, v{XF+4*b+i}, v{VSQ}')
                        k(f'v_dot2_f32_bf16 v{VCS}, v{WF+16*b+i}, v{VONE}, v{VCS}')
                    if kk % 4 == 3:
                        xsum(k, VSUM, 80, 81)
                        xsum(k, VSQ, 80, 81)
                        xsum(k, VCS, 80, 81)
                        k.raw(f'    buffer_store_dwordx2 {v(VSUM,2)}, v109, {WSR}, s51 offen sc1')
                        k.raw(f'    buffer_store_dword v{VCS}, v102, {WSR}, s52 offen sc1')

                def g_(dots=dots, kk=kk):
                    k(f's_cmp_eq_u32 s55, {kk//4}')
                    k.outline('s_cbranch_scc1', dots)
                fill.append(g_)
            if kk == 22:
                fill.append(lambda: T.__setitem__('flags', flags_issue(k, WS_F0, FL, 106)))
            if kk == 30:
                def f():
                    flags_check(k, WS_F0, FL, 106, T['flags'])
                    T['part'] = part_loads(k)
                fill.append(f)
            if kk == 38:
                fill.append(lambda: finalize(transposed))
            mf = []
            for j in range(4):
                c = '0' if kk == 0 else v(ACC + 16 * j, 16)
                A_, B_ = v(WF + 16 * b + 4 * j, 4), v(XF + 4 * b, 4)
                if not transposed:
                    A_, B_ = B_, A_
                mf.append((lambda j=j: [rd[kk, 'x'], rd[kk, j]],
                           f'v_mfma_f32_32x32x16_bf16 {v(ACC+16*j,16)}, {A_}, {B_}, {c}'))
            roll_step(k, mf, rds, fill)

    def finalize(transposed):
        k.wait(T['part'])
        check_group(k, list(range(PR, PR + 10)) + list(range(PCR, PCR + 5)), 80, part_loads)
        for n in range(1, 5):
            k(f'v_pk_add_f32 {v(PR,2)}, {v(PR,2)}, {v(PR+2*n,2)}')
            k(f'v_add_f32 v{PCR}, v{PCR}, v{PCR+n}')
        xsum(k, PCR, 80, 81)
        k(f's_lshl_b32 s49, s{S_W4}, 7')
        k(f's_add_u32 s49, s49, {XCH}')
        k('v_add_u32 v82, s49, v102')
        k(f'ds_write_b32 v82, v{PCR}')
        vsum, vsq = PR, PR + 1
        xsum(k, vsum, 80, 81)
        xsum(k, vsq, 80, 81)
        k(f'v_mul_f32 v{vsum}, {f32(1.0/640)}, v{vsum}')
        k(f'v_mul_f32 v{vsq}, {f32(1.0/640)}, v{vsq}')
        k(f'v_fma_f32 v{vsq}, -v{vsum}, v{vsum}, v{vsq}')
        k(f'v_max_f32 v{vsq}, 0, v{vsq}')
        rbf(k, 80, vsum)
        rbf(k, 81, vsq)
        k(f'v_add_f32 v81, {f32(1e-5)}, v81')
        rbf(k, 81, 81)
        k('v_sqrt_f32 v81, v81')
        rbf(k, 81, 81)
        k('v_rcp_f32 v38, v81')
        if transposed:
            k(f's_mov_b32 s49, {f32(math.log2(math.e)/math.sqrt(20.0))}')
            k(f's_cmp_lt_u32 s{S_NT}, 5')
            k('s_cselect_b32 s49, s49, 1.0')
            k('v_mul_f32 v38, s49, v38')
        k('v_mul_f32 v39, v80, v38')
        k('v_sub_f32 v39, 0, v39')
        if not transposed:
            k(f's_lshl_b32 s49, s{S_W4}, 8')
            k(f's_add_u32 s49, s49, {XCH}')
            k('v_add_u32 v83, s49, v102')
            k('ds_write_b32 v83, v38 offset:1024')
            k('ds_write_b32 v83, v39 offset:1152')

    def fin():
        stamp(k, 10)
        k(f's_lshl_b32 s49, s{S_MT}, 4')
        k(f's_add_u32 s49, s49, s{S_NT}')
        k.wait_all()
        wflag_store(k, WS_F2, 49, 80, 81, 0)
        k(f's_branch {lab_done}')

    mainloop(True)
    stamp(k, 9)
    k.wait_all(vm=False)
    k('s_barrier')
    k(f's_lshl_b32 s49, s{S_TOK}, 3')
    k('v_add_u32 v84, s49, v109')
    k('v_lshl_add_u32 v84, v105, 14, v84')
    k('v_lshlrev_b32 v85, 4, v105')
    k(f'v_add_u32 v85, {XCH}, v85')
    toks = {}

    def csreads(j):
        k(f's_add_u32 s49, s{S_W4}, {j}')
        k('s_and_b32 s49, s49, 3')
        k('s_lshl_b32 s52, s49, 7')
        k('v_add_u32 v86, s52, v85')
        for a_ in range(4):
            toks[j, a_] = k(f'ds_read_b128 {v(192+16*(j%2)+4*a_,4)}, v86 offset:{a_*32}')
    csreads(0)
    csreads(1)
    for j in range(4):
        k(f's_add_u32 s49, s{S_W4}, {j}')
        k('s_and_b32 s49, s49, 3')
        k(f's_lshl_b32 s52, s{S_NT}, 5')
        k('s_lshl_b32 s53, s49, 3')
        k('s_add_u32 s52, s52, s53')
        k('s_lshl_b32 s52, s52, 14')
        C0 = 192 + 16 * (j % 2)
        for a_ in range(4):
            k.wait(toks[j, a_])
            r0 = ACC + 16 * j + 4 * a_
            for p in range(2):
                k(f'v_pk_mul_f32 {v(C0+4*a_+2*p,2)}, {v(C0+4*a_+2*p,2)}, {v(38,2)} op_sel:[0,1] op_sel_hi:[1,1]')
                k(f'v_pk_fma_f32 {v(r0+2*p,2)}, {v(r0+2*p,2)}, {v(38,2)}, {v(C0+4*a_+2*p,2)} op_sel_hi:[1,0,1]')
            k(f'v_cvt_pk_bf16_f32 v{112+2*a_}, v{r0}, v{r0+1}')
            k(f'v_cvt_pk_bf16_f32 v{113+2*a_}, v{r0+2}, v{r0+3}')
            k(f's_add_u32 s53, s52, {WS_QG + a_*32768}')
            k(f'buffer_store_dwordx2 {v(112+2*a_,2)}, v84, {WSR}, s53 offen sc1')
        if j + 2 < 4:
            csreads(j + 2)
    fin()
    k.label(lab_v)
    k.restore(saved)
    mainloop(False)
    stamp(k, 9)
    k.wait_all(vm=False)
    k('s_barrier')
    k(f's_lshl_b32 s49, s{S_W4}, 8')
    k(f's_add_u32 s49, s49, {XCH}')
    k('v_lshlrev_b32 v86, 4, v105')
    k('v_add_u32 v86, s49, v86')
    tl = []
    for a_ in range(4):
        tl.append(k(f'ds_read_b128 {v(192+4*a_,4)}, v86 offset:{1024+a_*32}'))
        tl.append(k(f'ds_read_b128 {v(208+4*a_,4)}, v86 offset:{1152+a_*32}'))
    for j in range(4):
        k(f's_add_u32 s52, s{S_W4}, {j}')
        k('s_and_b32 s52, s52, 3')
        k('s_lshl_b32 s52, s52, 7')
        k(f's_add_u32 s52, s52, {XCH}')
        k('v_add_u32 v87, s52, v102')
        tl.append(k(f'ds_read_b32 v{224+2*j}, v87'))
    k('v_mul_u32_u24 v84, 10240, v105')
    k('v_lshl_add_u32 v84, v102, 2, v84')
    k(f's_lshr_b32 s53, s{S_TOK}, 5')
    k('s_mul_i32 s53, s53, 40960')
    k(f's_sub_u32 s54, s{S_NT}, 10')
    k('s_lshl_b32 s54, s54, 11')
    k('s_add_u32 s53, s53, s54')
    k(f's_add_u32 s53, s53, {WS_VF}')
    k.wait(*tl)
    for j in range(4):
        k(f's_add_u32 s52, s{S_W4}, {j}')
        k('s_and_b32 s52, s52, 3')
        k('s_lshl_b32 s52, s52, 9')
        k('s_add_u32 s52, s52, s53')
        for m in range(2):
            for p in range(4):
                i = 8 * m + 2 * p
                r0 = ACC + 16 * j + i
                k(f'v_pk_mul_f32 {v(88+2*(p%2),2)}, {v(208+i,2)}, {v(224+2*j,2)} op_sel_hi:[1,0]')
                k(f'v_pk_fma_f32 {v(r0,2)}, {v(r0,2)}, {v(192+i,2)}, {v(88+2*(p%2),2)}')
                k(f'v_cvt_pk_bf16_f32 v{112+8*(j%2)+4*m+p}, v{r0}, v{r0+1}')
            k(f's_add_u32 s54, s52, {m*20480}')
            k(f'buffer_store_dwordx4 {v(112+8*(j%2)+4*m,4)}, v84, {WSR}, s54 offen sc1')
    fin()
    k.label(lab_h)
    k.restore(saved)
    nonce_share()
    k('s_barrier')
    nonce_get()
    for _ in range(8):
        k('s_barrier')
    runall(k, clear_ops(k, 96, 100))
    k('s_barrier')
    k(f's_lshl_b32 s49, s{S_X8}, 1')
    k(f's_add_u32 s49, s49, s{S_I32}')
    k('s_sub_u32 s49, s49, 30')
    k('s_lshl_b32 s49, s49, 4')
    k('s_add_u32 s49, s49, 15')
    k.wait_all()
    wflag_store(k, WS_F2, 49, 80, 81, 0)
    k.label(lab_done)


class G35:
    def __init__(self, k, which, groups, vb, sb):
        self.k = k
        self.which = which
        self.KT = 640 if which == 3 else 1536
        self.NST = self.KT // 128
        self.SB = S_WO if which == 3 else S_WD
        self.groups = groups
        self.vb = vb
        self.sb = sb
        self.btok = {}
        self.rtok = {}
        self.sr = 36 if which == 3 else 37

    def set_rho(self, sct):
        k = self.k
        sr = self.sr
        if not OPT.get('rot35', 1):
            k(f's_mov_b32 s{sr}, 0')
        elif self.which == 3:
            k(f's_sub_u32 s{sr}, s{sct}, 5')
            k(f's_cmp_ge_u32 s{sct}, 5')
            k(f's_cselect_b32 s{sr}, s{sr}, s{sct}')
        else:
            k(f's_mul_i32 s{sr}, s{sct}, 3')
            k(f's_lshr_b32 s{sr}, s{sr}, 1')

    def rot(self, c, st, sreg, stmp, mul, src=None):
        c(f's_add_u32 s{sreg}, s{self.sr if src is None else src}, {st}')
        c(f's_sub_u32 s{stmp}, s{sreg}, {self.NST}')
        c(f's_cmp_ge_u32 s{sreg}, {self.NST}')
        c(f's_cselect_b32 s{sreg}, s{stmp}, s{sreg}')
        c(f's_mul_i32 s{sreg}, s{sreg}, {mul}')

    def dma_setup(self, t0):
        k, vb, sb = self.k, self.vb, self.sb
        tile35(k, 61, 60, sb)
        self.set_rho(60)
        k('s_mul_i32 s60, s60, 160')
        k(f's_mul_i32 s{sb+1}, s{S_W4}, {(self.KT//4)*1280}')
        k(f's_add_u32 s60, s60, s{sb+1}')
        for n in range(5):
            k(f'v_add_u32 v{t0}, {64*n}, v1')
            k(f'v_mul_u32_u24 v{t0+1}, 6554, v{t0}')
            k(f'v_lshrrev_b32 v{t0+1}, 16, v{t0+1}')
            k(f'v_mul_u32_u24 v{t0+2}, 10, v{t0+1}')
            k(f'v_sub_u32 v{t0+2}, v{t0}, v{t0+2}')
            k(f'v_bfe_u32 v{t0+3}, v{t0+1}, 3, 1')
            k(f'v_lshlrev_b32 v{t0+3}, 2, v{t0+3}')
            k(f'v_xor_b32 v{t0+1}, v{t0+1}, v{t0+3}')
            k(f'v_mul_u32_u24 v{t0+1}, 1280, v{t0+1}')
            k(f'v_lshl_add_u32 v{vb+n}, v{t0+2}, 4, v{t0+1}')
            k(f'v_add_u32 v{vb+n}, s60, v{vb+n}')
            if 0 < n < 4:
                k(f'v_subrev_u32 v{vb+n}, {n*1024}, v{vb+n}')
        k(f's_mul_i32 s{sb}, s{S_W4}, 5120')

    def dma_step(self, st):
        k, vb, sb = self.k, self.vb, self.sb
        base = self.groups[st % len(self.groups)]
        SB = self.SB
        ops = []

        def f0():
            k(f's_add_u32 m0, s{sb}, {base}')
            self.rot(k, st, sb + 1, 38, 32 * 1280)
        ops.append(f0)
        for n in range(4):
            ops.append(lambda n=n: self.btok.__setitem__(st, k(
                f'buffer_load_dwordx4 v{vb+n}, s[{SB}:{SB+3}], s{sb+1} offen offset:{n*1024} lds')))
        ops.append(lambda: k(f's_add_u32 m0, s{sb}, {base+4096}'))
        ops.append(lambda: self.btok.__setitem__(st, k(
            f'buffer_load_dwordx4 v{vb+4}, s[{SB}:{SB+3}], s{sb+1} offen lds')))
        return ops

    def breg_load(self, st, r0):
        k, vb, sb, SB = self.k, self.vb, self.sb, self.SB
        self.rot(k, st, sb + 1, 38, 32 * 1280)
        for n in range(4):
            k(f'buffer_load_dwordx4 {v(r0+4*n,4)}, v{vb+n}, s[{SB}:{SB+3}], s{sb+1} offen offset:{n*1024}')
            if OPT.get('pace', 0):
                k(f's_sleep {OPT.get("pace")}')
        self.rtok[st] = (k(f'buffer_load_dwordx4 {v(r0+16,4)}, v{vb+4}, s[{SB}:{SB+3}], s{sb+1} offen'), r0)

    def breg_write(self, st, va):
        k = self.k
        tok, r0 = self.rtok[st]
        base = self.groups[st % len(self.groups)]
        q, so = base // 61440, base % 61440
        k.wait(tok)
        for n in range(5):
            self.btok[st] = k(f'ds_write_b128 v{va+q}, {v(r0+4*n,4)} offset:{so+n*1024}')

    def loader(self, nb_pre, st0=0):
        k, NST = self.k, self.NST
        NG = len(self.groups)
        k('v_lshlrev_b32 v12, 4, v1')
        k(f's_mul_i32 s46, s{S_W4}, 5120')
        k('v_add_u32 v21, s46, v12')
        k('v_add_u32 v22, 61440, v21')
        k('v_add_u32 v23, 122880, v21')
        stamp(k, st0)
        nb = nb_pre
        for st in range(NST):
            k.wait(self.btok[st])
            k('s_barrier')
            if nb < NST and nb - NG <= st - 1:
                if nb in self.rtok:
                    self.breg_write(nb, 21)
                else:
                    runall(k, self.dma_step(nb))
                nb += 1
        stamp(k, st0 + 3)

    def compute(self, own_tok, st0=0):
        k, NST, which, KT = self.k, self.NST, self.which, self.KT
        NG = len(self.groups)
        ABASE = WS_OC if which == 3 else WS_HC
        S_RT, S_CT, S_PAR = 44, 45, 50
        tile35(k, 44, 45, 46)
        self.set_rho(45)
        k('s_mov_b32 s50, 0')
        k(f's_mul_i32 s51, s{S_W4}, 5120')
        k('v_and_b32 v15, 15, v1')
        k('v_lshrrev_b32 v16, 4, v1')
        k('v_bfe_u32 v17, v1, 2, 2')
        k('v_lshl_add_u32 v18, v16, 3, v17')
        k('v_bfe_u32 v20, v1, 4, 1')
        k('v_lshlrev_b32 v20, 2, v20')
        k('v_xor_b32 v19, v18, v20')
        k('v_xor_b32 v22, 4, v19')
        k('v_and_b32 v21, 3, v1')
        RA = 24
        for hf, src in ((0, 19), (1, 22)):
            k(f'v_mul_u32_u24 v{RA+hf}, 160, v{src}')
            k(f'v_lshl_add_u32 v{RA+hf}, v21, 3, v{RA+hf}')
            k(f'v_add_u32 v{RA+hf}, s51, v{RA+hf}')
        QS = 61440
        for q in (1, 2):
            for i in range(2):
                k(f'v_add_u32 v{RA+2*q+i}, {q*QS}, v{RA+i}')
        k('v_lshlrev_b32 v2, 4, v1')
        k('v_lshlrev_b32 v3, 4, v15')
        k('v_lshl_add_u32 v3, v16, 15, v3')
        for tau in range(4):
            k(f's_add_u32 s46, s{S_W4}, {tau}')
            k('s_and_b32 s46, s46, 3')
            k('s_lshl_b32 s46, s46, 8')
            k(f'v_add_u32 v{4+tau}, s46, v3')
        k('s_lshl_b32 s53, s44, 10')
        k(f's_mul_i32 s54, s{S_W4}, {(KT//32)*32768}')
        k('s_add_u32 s53, s53, s54')
        k(f's_add_u32 s53, s53, {ABASE}')
        NW = 5
        AFR = 164
        atok = {}

        def aload(c, st, sreg):
            self.rot(c, st, sreg, 38, 4 * 32768)
            c(f's_add_u32 s{sreg}, s{sreg}, s53')
            t_ = None
            for t in range(4):
                t_ = c(f'buffer_load_dwordx4 {v(AFR+16*(st%NW)+4*t,4)}, v{4+t}, {WSR}, s{sreg} offen sc1')
            return t_
        RES = 244
        k(f's_lshl_b32 s46, s{S_RT}, 6')
        k(f's_lshl_b32 s47, s{S_W4}, 4')
        k('s_add_u32 s46, s46, s47')
        S_TK = 46
        k('v_add_u32 v12, s46, v15')
        if which == 3:
            k('v_mul_u32_u24 v13, 1280, v12')
            k('v_lshl_add_u32 v13, v16, 3, v13')
            k(f's_mul_i32 s47, s{S_CT}, 160')
            k(f's_lshl_b32 s48, s{S_PAR}, 5')
            k('s_add_u32 s48, s48, s47')
            k(f's_lshl_b32 s49, s{S_PAR}, 7')
            k('s_sub_u32 s49, 128, s49')
            k('s_add_u32 s49, s49, s47')
            for jt in range(4):
                k(f'buffer_load_dwordx2 {v(RES+2*jt,2)}, v13, s[{S_X}:{S_X+3}], s48 offen offset:{jt*32}')
            rtk = k(f'buffer_load_dwordx2 {v(RES+8,2)}, v13, s[{S_X}:{S_X+3}], s49 offen')
            tile4(k, 48, 49, 47)
            k('s_lshl_b32 s48, s48, 4')
            k('s_add_u32 s49, s49, s48')
            stamp(k, st0 - 1)
            k('s_barrier')
            rflag_store(k, WS_F3, 49, 8, 9)
            stamp(k, st0)
            if OPT.get('odelay', 0):
                k(f's_sleep {OPT.get("odelay")}')
        else:
            stamp(k, st0)
            k.wait(own_tok)
        stamp(k, st0 + 1)
        ACC, WF = 44, 124
        D = OPT.get('ad', 3)
        for st in range(D):
            atok[st] = aload(k, st, 54)
        rt = {}

        def reads(st):
            base = self.groups[st % NG]
            q, so = base // QS, base % QS
            b = st % 2
            ops = []
            for jt in range(5):
                for hf in range(2):
                    ops.append(lambda jt=jt, hf=hf: rt.__setitem__((st, jt), k(
                        f'ds_read_b64_tr_b16 {v(WF+20*b+4*jt+2*hf,2)}, v{RA+2*q+hf} offset:{so+jt*32}')))
            return ops
        if which == 5:
            k('s_barrier')
        runall(k, reads(0))
        na = D
        for st in range(NST):
            b = st % 2
            R0 = AFR + 16 * (st % NW)
            if which == 5 and OPT.get('p5st') and st >= 1:
                stamp(k, 12 + st)
            k.wait(atok[st])
            check_group(k, range(R0, R0 + 16), 14, lambda c, st=st: aload(c, st, 58))
            if st == 0:
                stamp(k, st0 + 2)
            if which == 5 and OPT.get('p5st') and st >= 1:
                stamp(k, st)
            mf = []
            for t in range(4):
                for jt in range(5):
                    acc = v(ACC + 20 * t + 4 * jt, 4)
                    c = '0' if st == 0 else acc
                    mf.append((lambda jt=jt: [rt[st, jt]],
                               f'v_mfma_f32_16x16x32_bf16 {acc}, {v(WF+20*b+4*jt,4)}, {v(R0+4*t,4)}, {c}'))
            rds = [[] for _ in range(20)]
            cnt = 0
            while na < NST and na <= st + NW - 1 and cnt < 2:
                def al(na=na):
                    self.rot(k, na, 54, 38, 4 * 32768)
                    k('s_add_u32 s54, s54, s53')
                rds[0 + 10 * cnt].append(al)
                for t in range(4):
                    rds[0 + 10 * cnt + 2 * t].append(lambda t=t, na=na: atok.__setitem__(na, k(
                        f'buffer_load_dwordx4 {v(AFR+16*(na%NW)+4*t,4)}, v{4+t}, {WSR}, s54 offen sc1')))
                na += 1
                cnt += 1
            if st + 1 < NST:
                if which == 5:
                    def bar():
                        k.wait_all(vm=False)
                        k('s_barrier')
                    rds[5].append(bar)
                for i, f in enumerate(reads(st + 1)):
                    rds[5 + i].append(f)
            roll_step(k, mf, rds, [])
        stamp(k, st0 + 3)
        for tau in range(1, 4):
            k(f's_add_u32 s47, s{S_W4}, {tau}')
            k('s_and_b32 s47, s47, 3')
            k('s_mul_i32 s47, s47, 15360')
            k(f'v_add_u32 v{17+tau}, s47, v2')
        k(f's_mul_i32 s47, s{S_W4}, 15360')
        k('v_add_u32 v21, s47, v2')
        k('s_barrier')
        for tau in range(1, 4):
            for jt in range(5):
                k(f'ds_write_b128 v{17+tau}, {v(ACC+20*tau+4*jt,4)} offset:{(tau-1)*5120+jt*1024}')
        k.wait_all(vm=False)
        k('s_barrier')
        S0, S1 = ACC, 124
        toks = {}
        for sidx in range(3):
            for jt in range(5):
                toks[sidx, jt] = k(f'ds_read_b128 {v(S1+20*sidx+4*jt,4)}, v21 offset:{sidx*5120+jt*1024}')
        for sidx in range(3):
            for jt in range(5):
                k.wait(toks[sidx, jt])
                for p in range(2):
                    r = 4 * jt + 2 * p
                    k(f'v_pk_add_f32 {v(S0+r,2)}, {v(S0+r,2)}, {v(S1+20*sidx+r,2)}')
        if which == 3:
            k('s_barrier')
            k.wait(rtk)
        stamp(k, st0 + 4)
        PK = 190
        for i in range(10):
            k(f'v_cvt_pk_bf16_f32 v{PK+i}, v{S0+2*i}, v{S0+2*i+1}')
        for i in range(10):
            k(f'v_lshlrev_b32 v{S0+2*i}, 16, v{PK+i}')
            k(f'v_and_b32 v{S0+2*i+1}, 0xffff0000, v{PK+i}')
            k(f'v_lshlrev_b32 v{S1+2*i}, 16, v{RES+i}')
            k(f'v_and_b32 v{S1+2*i+1}, 0xffff0000, v{RES+i}')
            k(f'v_pk_add_f32 {v(S0+2*i,2)}, {v(S0+2*i,2)}, {v(S1+2*i,2)}')
        if which == 3:
            PK = RES
        for i in range(10):
            k(f'v_cvt_pk_bf16_f32 v{PK+i}, v{S0+2*i}, v{S0+2*i+1}')
        if which == 3:
            k('v_lshlrev_b32 v13, 4, v12')
            k('v_lshrrev_b32 v14, 1, v16')
            k('v_lshl_add_u32 v13, v14, 15, v13')
            k('v_and_b32 v14, 1, v16')
            k('v_lshl_add_u32 v13, v14, 3, v13')
            k(f's_mul_i32 s47, s{S_CT}, 10')
            k(f's_lshl_b32 s48, s{S_PAR}, 1')
            k('s_add_u32 s48, s48, s47')
            k('s_lshl_b32 s48, s48, 15')
            k(f's_add_u32 s48, s48, {WS_H1}')
            k(f's_lshl_b32 s49, s{S_PAR}, 3')
            k('s_sub_u32 s49, 8, s49')
            k('s_add_u32 s49, s49, s47')
            k('s_lshl_b32 s49, s49, 15')
            k(f's_add_u32 s49, s49, {WS_H1}')
            for jt in range(4):
                k(f's_add_u32 s47, s48, {jt*65536}')
                k(f'buffer_store_dwordx2 {v(PK+2*jt,2)}, v13, {WSR}, s47 offen sc1')
            k(f'buffer_store_dwordx2 {v(PK+8,2)}, v13, {WSR}, s49 offen sc1')
            k('v_mov_b32 v152, 0')
            k('v_mov_b32 v153, 0')
            k('v_mov_b32 v154, 0x3f803f80')
            for i in range(10):
                k(f'v_dot2_f32_bf16 v152, v{PK+i}, v154, v152')
                k(f'v_dot2_f32_bf16 v153, v{PK+i}, v{PK+i}, v153')
            for r in (152, 153):
                xsum(k, r, 156, 157, 32)
                xsum(k, r, 156, 157, 16)
            k('v_lshlrev_b32 v14, 3, v12')
            k(f's_lshl_b32 s47, s{S_CT}, 14')
            k(f's_add_u32 s47, s47, {WS_HS}')
            k('s_mov_b64 exec, 0xffff')
            self.own = k(f'buffer_store_dwordx2 {v(152,2)}, v14, {WSR}, s47 offen sc1')
            k('s_mov_b64 exec, -1')
        else:
            P = 176
            k(f'v_mul_u32_u24 v13, {P}, v15')
            k('v_lshl_add_u32 v13, v16, 3, v13')
            k(f's_lshl_b32 s47, s{S_W4}, 12')
            k('s_add_u32 s47, s47, 65536')
            k('v_add_u32 v13, s47, v13')
            k(f's_lshl_b32 s48, s{S_PAR}, 5')
            k('v_add_u32 v14, s48, v13')
            k(f's_lshl_b32 s48, s{S_PAR}, 7')
            k('s_sub_u32 s48, 128, s48')
            k('v_add_u32 v13, s48, v13')
            for jt in range(4):
                k(f'ds_write_b64 v14, {v(PK+2*jt,2)} offset:{jt*32}')
            k(f'ds_write_b64 v13, {v(PK+8,2)}')
            k(f's_mul_i32 s48, s{S_CT}, 160')
            k(f's_mul_i32 s49, s{S_TK}, 1280')
            k('s_add_u32 s48, s48, s49')
            for it in range(3):
                k(f'v_add_u32 v17, {64*it}, v1')
                k('v_mul_u32_u24 v18, 6554, v17')
                k('v_lshrrev_b32 v18, 16, v18')
                k('v_mul_u32_u24 v19, 10, v18')
                k('v_sub_u32 v19, v17, v19')
                k(f'v_mul_u32_u24 v20, {P}, v18')
                k('v_lshl_add_u32 v20, v19, 4, v20')
                k(f'v_add_u32 v{160+it}, s47, v20')
                k('v_mul_u32_u24 v20, 1280, v18')
                k(f'v_lshl_add_u32 v{164+it}, v19, 4, v20')
            k.wait_all(vm=False)
            tl = [k(f'ds_read_b128 {v(168+4*it,4)}, v{160+it}') for it in range(3)]
            for it in range(3):
                k.wait(tl[it])
                if it == 2:
                    k('v_cmp_gt_u32 vcc, 32, v1')
                    k('s_mov_b64 exec, vcc')
                k(f'buffer_store_dwordx4 {v(168+4*it,4)}, v{164+it}, s[{S_OUT}:{S_OUT+3}], s48 offen sc1')
            k('s_mov_b64 exec, -1')


def p2_setup(k):
    LK, LV = 102400, 122880
    k(f's_and_b32 s45, s{S_I32}, 3')
    k(f's_lshl_b32 s44, s{S_X8}, 2')
    k('s_add_u32 s45, s45, s44')
    k(f's_lshr_b32 s44, s{S_I32}, 2')
    S_I, S_H = 44, 45
    k(f's_lshl_b32 s46, s{S_I}, 8')
    k('s_sub_u32 s47, s46, 256')
    k('s_max_i32 s47, s47, 0')
    k(f's_cmp_lt_u32 s{S_W4}, 2')
    k('s_cselect_b32 s48, s47, s46')
    k('s_mov_b32 s50, s48')
    k(f's_and_b32 s49, s{S_W4}, 1')
    k('s_lshl_b32 s49, s49, 7')
    k('s_add_u32 s48, s48, s49')
    k('s_lshl_b32 s48, s48, 3')
    k(f's_mul_i32 s49, s{S_H}, {5*16384}')
    k('s_add_u32 s48, s48, s49')
    k(f's_add_u32 s48, s48, {WS_KG}')
    k('v_lshlrev_b32 v2, 4, v1')
    k('s_lshr_b32 s50, s50, 3')
    k('s_mul_i32 s50, s50, 10240')
    k(f's_mul_i32 s49, s{S_H}, 320')
    k('s_add_u32 s50, s50, s49')
    k(f's_add_u32 s50, s50, {WS_VF}')
    k(f's_cmp_lt_u32 s{S_W}, 4')
    k('s_cselect_b32 s48, s48, s50')
    k('s_cselect_b64 s[96:97], -1, 0')
    k(f's_lshl_b32 s49, s{S_W4}, 10')
    k(f's_add_u32 s49, s49, {LK}')
    k(f's_mul_i32 s50, s{S_W4}, 5120')
    k(f's_add_u32 s50, s50, {LV}')
    k(f's_cmp_lt_u32 s{S_W}, 4')
    k('s_cselect_b32 s50, s49, s50')
    k('s_movk_i32 s56, 1024')
    k('s_cselect_b32 s56, 4096, s56')
    k(f's_and_b32 s49, s{S_W4}, 1')
    k('s_mul_i32 s49, s49, 320')
    for n in range(5):
        k(f'v_add_u32 v3, {n*64}, v1')
        k('v_add_u32 v3, s49, v3')
        k('v_mul_u32_u24 v4, 3277, v3')
        k('v_lshrrev_b32 v4, 16, v4')
        k('v_mul_u32_u24 v5, 20, v4')
        k('v_sub_u32 v5, v3, v5')
        k('v_mul_u32_u24 v4, 10240, v4')
        k(f'v_lshl_add_u32 v4, v5, 4, v4')
        k(f'v_add_u32 v5, {n*16384}, v2')
        k(f'v_cndmask_b32 v{6+n}, v4, v5, s[96:97]')
    k('v_and_b32 v12, 31, v1')
    k('v_lshrrev_b32 v13, 5, v1')
    k('v_lshlrev_b32 v14, 3, v12')
    k('v_lshl_add_u32 v15, v13, 15, v14')
    k(f's_lshl_b32 s51, s{S_W}, 5')
    k('s_add_u32 s51, s51, s46')
    S_Q0 = 51
    k('s_lshl_b32 s52, s51, 3')
    k(f's_mul_i32 s49, s{S_H}, {5*16384}')
    k('s_add_u32 s52, s52, s49')
    k(f's_add_u32 s52, s52, {WS_QG}')
    k('s_add_u32 s53, s52, 16384')
    k(f's_add_u32 s54, s52, {4*16384}')
    PM, NM, ONE, QF, KV, OACC, SB0 = 24, 32, 36, 40, 48, 72, 88
    k('v_lshlrev_b32 v3, 2, v13')
    for i in range(16):
        a_, b_ = i // 4, i % 4
        k(f'v_add_u32 v4, {8*a_+b_}, v3')
        k(f'v_cmp_le_u32 s[{64+2*i}:{65+2*i}], v4, v12')
    k('v_mov_b32 v5, 0xffff')
    k('v_mov_b32 v11, 0xffff0000')
    for p in range(8):
        k(f'v_cndmask_b32 v3, 0, v5, s[{64+4*p}:{65+4*p}]')
        k(f'v_cndmask_b32 v4, 0, v11, s[{66+4*p}:{67+4*p}]')
        k(f'v_or_b32 v{PM+p}, v3, v4')
    k('v_cmp_eq_u32 s[96:97], 1, v13')
    k('v_cmp_gt_u32 s[98:99], 20, v12')
    k('v_cmp_eq_u32 s[100:101], 0, v13')
    k(f's_lshl_b32 s49, s{S_W}, 8')
    k(f's_add_u32 s49, s49, {LK}')
    k('v_lshl_add_u32 v16, v13, 13, v14')
    k('v_add_u32 v16, s49, v16')
    k('v_add_u32 v17, s49, v14')
    k(f's_and_b32 s55, s{S_H}, 1')
    S_PI = 55
    k('v_bfe_u32 v3, v12, 3, 1')
    k('v_bfe_u32 v4, v12, 2, 1')
    k('v_and_b32 v5, 3, v12')
    k('v_lshl_add_u32 v18, v3, 2, v5')
    k('v_lshl_add_u32 v18, v4, 3, v18')
    k('s_lshl_b32 s49, s55, 2')
    k('v_add_u32 v18, s49, v18')
    k('s_lshl_b32 s49, s55, 4')
    k('s_sub_u32 s49, 16, s49')
    k('v_add_u32 v19, s49, v5')
    k('v_cmp_gt_u32 vcc, 16, v12')
    k('v_cndmask_b32 v18, v19, v18, vcc')
    k('v_mul_u32_u24 v19, 320, v13')
    k('v_lshl_add_u32 v18, v18, 4, v19')
    k(f's_mul_i32 s49, s{S_W}, 1280')
    k(f's_add_u32 s49, s49, {LV}')
    k('v_add_u32 v18, s49, v18')
    k('v_mov_b32 v19, 0')
    k('v_mov_b32 v4, 0x3f803f80')
    k('v_cmp_eq_u32 vcc, 20, v12')
    k('v_cndmask_b32 v19, v19, v4, vcc')
    k('v_cmp_eq_u32 vcc, 24, v12')
    k('v_cndmask_b32 v19, v19, v4, vcc')
    for b in range(3):
        k(f'v_mov_b32 v{KV+8*b+6}, 0')
        k(f'v_mov_b32 v{KV+8*b+7}, 0')
    k(f'v_mov_b32 v{QF+6}, 0')
    k(f'v_mov_b32 v{QF+7}, 0')
    k(f'v_cndmask_b32 v{ONE}, v4, 0, s[96:97]')
    for i in range(1, 4):
        k(f'v_mov_b32 v{ONE+i}, 0')
        k(f'v_mov_b32 v{NM+i}, 0')
    k('v_and_b32 v3, 15, v1')
    k(f's_mul_i32 s49, s{S_H}, 20')
    k('s_mov_b64 s[46:47], 0')
    for base, isq in ((0, True), (640, False), (1280, False)):
        for e in (0, 19):
            k(f's_add_u32 s60, s49, {base+e}')
            k('s_lshr_b32 s60, s60, 7')
            k('v_cmp_eq_u32 vcc, s60, v3')
            if isq:
                k('s_and_b64 vcc, vcc, s[96:97]')
            k('s_or_b64 s[46:47], s[46:47], vcc')
    k(f's_cmp_eq_u32 s{S_I}, 0')
    k('s_cselect_b32 s46, 0, s46')
    k(f's_lshl_b32 s49, s{S_I}, 7')
    k(f's_lshl_b32 s60, s{S_X8}, 10')
    k('s_add_u32 s49, s49, s60')
    k(f's_add_u32 s49, s49, {WS_F2 - 128}')
    k('v_lshlrev_b32 v3, 2, v1')


def emit_p2(k, g3):
    LK, LV = 102400, 122880
    S_I, S_H, S_Q0, S_PI = 44, 45, 51, 55
    PM, NM, ONE, QF, KV, OACC, SB0 = 24, 32, 36, 40, 48, 72, 88
    wflag_poll(k, 49, 3, 4, 46, 1, True)
    k('s_barrier')
    stamp(k, 12)
    k('s_mov_b32 m0, s50')
    for n in range(5):
        if n:
            k('s_add_u32 m0, m0, s56')
        k(f'buffer_load_dwordx4 v{6+n}, {WSR}, s48 offen sc1 lds')
    k(f'buffer_load_dwordx2 {v(QF,2)}, v15, {WSR}, s52 offen sc1')
    k(f'buffer_load_dwordx2 {v(QF+2,2)}, v15, {WSR}, s53 offen sc1')
    qt = k(f'buffer_load_dwordx2 {v(QF+4,2)}, v14, {WSR}, s54 offen sc1')
    k.wait(qt)
    k(f'v_cndmask_b32 v{QF+4}, v{QF+4}, 0, s[96:97]')
    k(f'v_cndmask_b32 v{QF+5}, v{QF+5}, 0, s[96:97]')
    k('s_barrier')
    if OPT.get('prio', 0):
        k(f's_cmp_ge_u32 s{S_W}, 4')
        k.outline('s_cbranch_scc1', lambda: k('s_setprio 1'))
    stamp(k, 13)
    pf, hc = [], []
    for i in range(4):
        k(f'v_mov_b32 v{244+i}, -1')
    tile4(k, 60, 61, 56)
    k('s_mul_i32 s61, s61, 12')
    k('s_lshl_b32 s61, s61, 15')
    k('s_lshl_b32 s60, s60, 11')
    k('s_add_u32 s56, s61, s60')
    k(f's_add_u32 s56, s56, {WS_HC}')
    for n in range(3):
        k(f's_mul_i32 s60, s{S_W}, 3')
        k(f's_add_u32 s60, s60, {n}')
        k('s_and_b32 s61, s60, 1')
        k('s_lshl_b32 s61, s61, 10')
        k('s_lshr_b32 s60, s60, 1')
        k('s_lshl_b32 s60, s60, 15')
        k('s_add_u32 s60, s60, s61')
        k('s_add_u32 s60, s60, s56')
        k(f'buffer_store_dwordx4 {v(244,4)}, v2, {WSR}, s60 offen sc1')
    if OPT.get('wgu', 2) == 2:
        k(f's_cmp_lt_u32 s{S_W}, 4')
        k.outline('s_cbranch_scc1', lambda: pf_wgu(k, 238, 239))

    def slot(i):
        return SB0 + 16 * i
    krd = {}

    def kreads(j):
        b = j % 3
        krd[j] = [k(f'ds_read_b64 {v(KV+8*b,2)}, v16 offset:{j*256}'),
                  k(f'ds_read_b64 {v(KV+8*b+2,2)}, v16 offset:{4096+j*256}'),
                  k(f'ds_read_b64 {v(KV+8*b+4,2)}, v17 offset:{16384+j*256}')]
    kreads(0)
    kreads(1)
    for j in range(9):
        b = j % 3
        d = v(slot(j), 16)
        k.wait(*krd[j])
        k(f'v_mfma_f32_32x32x16_bf16 {d}, {v(KV+8*b,4)}, {v(QF,4)}, 0')
        if j + 2 < 9:
            kreads(j + 2)
        k(f'v_mfma_f32_32x32x16_bf16 {d}, {v(KV+8*b+4,4)}, {v(QF+4,4)}, {d}')
    stamp(k, 14)
    lab = k.newlabel('P2_FIX')
    k(f's_cmp_lg_u32 s{S_I}, 0')
    k(f's_cbranch_scc1 {lab}')
    for jj in range(8):
        k(f's_cmp_ge_u32 s{S_W}, {8-jj}')
        k(f's_cbranch_scc1 {lab}')
        for i in range(16):
            k(f'v_mov_b32 v{slot(jj)+i}, {f32(-1e30)}')
    k.label(lab)
    for i in range(16):
        k(f'v_mov_b32 v{KV+i}, v19')
    M0, M1 = 20, 21
    ops = []
    regs = [slot(jj) + i for jj in (1, 2, 3, 4, 5, 6, 7, 0) for i in range(16)]
    for i in range(16):
        ops.append(f'v_cndmask_b32 v{slot(0)+i}, v{slot(0)+i}, v{slot(8)+i}, s[{64+2*i}:{65+2*i}]')
    ops += [f'v_max3_f32 v{M0}, v{regs[0]}, v{regs[1]}, v{regs[2]}',
            f'v_max3_f32 v{M1}, v{regs[3]}, v{regs[4]}, v{regs[5]}']
    i, t = 6, 0
    while i < 128:
        m = M0 if t % 2 == 0 else M1
        ops.append(f'v_max3_f32 v{m}, v{m}, v{regs[i]}, v{regs[i+1]}')
        i += 2
        t += 1
    ops += [f'v_max_f32 v{M0}, v{M0}, v{M1}',
            f'v_mov_b32 v{M1}, v{M0}',
            f'v_permlane32_swap_b32 v{M0}, v{M1}',
            f'v_max_f32 v{M0}, v{M0}, v{M1}',
            f'v_sub_f32 v{M0}, 0, v{M0}',
            f'v_cvt_pk_bf16_f32 v{M1}, v{M0}, v{M0}',
            f'v_lshlrev_b32 v{M1}, 16, v{M1}',
            f'v_sub_f32 v{M1}, v{M0}, v{M1}',
            f'v_cvt_pk_bf16_f32 v{NM}, v{M0}, v{M1}',
            f'v_cndmask_b32 v{NM}, v{NM}, 0, s[96:97]']
    spread(k, ops, pf[:2])
    pf = pf[2:]
    stamp(k, 15)
    vrd = {}
    nbuf = [0]

    def vreads(jkey):
        toks, bufs = [], []
        k('s_mov_b64 exec, s[98:99]')
        for m in range(2):
            bi = nbuf[0] % 4
            nbuf[0] += 1
            bufs.append(bi)
            toks.append(k(f'ds_read_b128 {v(KV+4*bi,4)}, v18 offset:{jkey*1280+m*640}'))
        k('s_mov_b64 exec, -1')
        vrd[jkey] = (toks, bufs)
    first = [True]
    oacc = v(OACC, 16)

    def pv_ops(jkey, preg):
        o = []
        for m in range(2):
            def f(m=m):
                toks, bufs = vrd[jkey]
                k.wait(toks[m])
                c = '0' if first[0] else oacc
                first[0] = False
                k(f'v_mfma_f32_32x32x16_bf16 {oacc}, {v(KV+4*bufs[m],4)}, {v(preg+4*m,4)}, {c}')
            o.append(f)
        return o

    def sub_op(jb):
        d = v(slot(jb), 16)
        return f'v_mfma_f32_32x32x16_bf16 {d}, {v(ONE,4)}, {v(NM,4)}, {d}'
    order = [1, 2, 3, 4, 5, 6, 7, 0]
    k(sub_op(order[0]))
    k(sub_op(order[1]))
    vreads(order[0])
    for n, jb in enumerate(order):
        base = slot(jb)
        val = [f'v_exp_f32 v{base+i}, v{base+i}' for i in range(16)]
        val += [f'v_cvt_pk_bf16_f32 v{base+p}, v{base+2*p}, v{base+2*p+1}' for p in range(8)]
        if jb == 0:
            val += [f'v_and_b32 v{base+8+p}, v{PM+p}, v{base+p}' for p in range(8)]
            val += [f'v_bfi_b32 v{base+p}, v{PM+p}, 0, v{base+p}' for p in range(8)]
        side = []
        if n >= 1:
            side += pv_ops(order[n - 1], slot(order[n - 1]))
        nxt = order[n + 1] if n + 1 < 8 else 8
        side.append(lambda nxt=nxt: vreads(nxt))
        if n + 2 < 8:
            side.append(sub_op(order[n + 2]))
        if pf:
            side.append(pf.pop(0))
        if hc and (n % 2 == 1 or OPT.get('wgulate')):
            side.insert(1, hc.pop(0))
        if OPT.get('wgulate') and pf:
            side.append(pf.pop(0))
        spread(k, val, side)
    tail = pv_ops(0, slot(0)) + pv_ops(8, slot(0) + 8)
    addr = [f's_lshr_b32 s49, s{S_H}, 1', 's_mul_i32 s49, s49, 5', f's_mul_i32 s52, s{S_PI}, 3',
            's_add_u32 s52, s52, s49', 's_lshl_b32 s52, s52, 15', f's_add_u32 s52, s52, {WS_OC}',
            f's_lshl_b32 s53, s{S_Q0}, 4', 's_add_u32 s52, s52, s53', 's_add_u32 s54, s49, 2',
            's_lshl_b32 s54, s54, 15', f's_add_u32 s54, s54, {WS_OC}', 's_add_u32 s54, s54, s53',
            f's_lshl_b32 s49, s{S_PI}, 3', 's_add_u32 s54, s54, s49', 'v_lshlrev_b32 v22, 4, v12',
            'v_lshl_add_u32 v23, v13, 15, v22']
    ftok = flags_issue(k, WS_F2, 240, 237)
    spread(k, addr, tail)
    stamp(k, 18)
    T = OACC
    k(f'v_cndmask_b32 v{T+13}, v{T+12}, v{T+8}, s[96:97]')
    k(f'v_rcp_f32 v{T+14}, v{T+13}')
    for p in range(6):
        k(f'v_pk_mul_f32 {v(T+2*p,2)}, {v(T+2*p,2)}, {v(T+14,2)} op_sel_hi:[1,0]')
    for p in range(6):
        k(f'v_cvt_pk_bf16_f32 v{104+p}, v{T+2*p}, v{T+2*p+1}')
    k(f'buffer_store_dwordx4 {v(104,4)}, v23, {WSR}, s52 offen sc1')
    k('s_mov_b64 exec, s[100:101]')
    own = k(f'buffer_store_dwordx2 {v(108,2)}, v22, {WSR}, s54 offen sc1')
    k('s_mov_b64 exec, -1')
    k.wait_all(vm=False)
    k('s_setprio 0')
    flags_check(k, WS_F2, 240, 237, ftok)
    return own


class P4:
    BS = [102400, 126976, 0, 24576, 49152, 73728]

    def __init__(self, k):
        self.k = k
        self.stok = {}
        self.rtok = {}
        self.VB = 2

    def setup_dma(self, t0):
        k = self.k
        VB = self.VB
        tile4(k, 61, 60, 68)
        k('s_mul_i32 s76, s60, %d' % OPT.get('rot4', 3))
        k('s_add_u32 s76, s76, s61')
        k('s_mul_i32 s77, s76, 6554')
        k('s_lshr_b32 s77, s77, 16')
        k('s_mul_i32 s77, s77, 10')
        k('s_sub_u32 s76, s76, s77')
        k(f's_cmp_lt_u32 s{S_W4}, 2')
        k(f's_cselect_b32 s64, s{S_WG}, s{S_WU}')
        k(f's_cselect_b32 s65, s{S_WG+1}, s{S_WU+1}')
        k('s_mov_b32 s66, 1966080')
        k('s_mov_b32 s67, 0x00020000')
        k(f's_and_b32 s61, s{S_W4}, 1')
        k(f's_mul_i32 s61, s61, {32*3072}')
        k('s_mul_i32 s60, s60, 192')
        k('s_add_u32 s60, s60, s61')
        for n in range(3):
            k(f'v_add_u32 v{t0}, {n*64}, v1')
            k(f'v_mul_u32_u24 v{t0+1}, 5462, v{t0}')
            k(f'v_lshrrev_b32 v{t0+1}, 16, v{t0+1}')
            k(f'v_mul_u32_u24 v{t0+2}, 12, v{t0+1}')
            k(f'v_sub_u32 v{t0+2}, v{t0}, v{t0+2}')
            k(f'v_mul_u32_u24 v{t0+1}, 3072, v{t0+1}')
            k(f'v_lshl_add_u32 v{VB+n}, v{t0+2}, 4, v{t0+1}')
            k(f'v_add_u32 v{VB+n}, s60, v{VB+n}')
            if n:
                k(f'v_subrev_u32 v{VB+n}, {n*1024}, v{VB+n}')
        k(f's_mul_i32 s68, s{S_W4}, 6144')

    def sig(self, c, st, sreg, stmp):
        c(f's_add_u32 s{sreg}, s76, {st}')
        c(f's_sub_u32 s{stmp}, s{sreg}, 10')
        c(f's_cmp_ge_u32 s{sreg}, 10')
        c(f's_cselect_b32 s{sreg}, s{stmp}, s{sreg}')

    def dma_stage(self, st):
        k = self.k
        base = self.BS[st % 6]
        self.sig(k, st, 69, 77)
        k(f's_mul_i32 s69, s69, {64*3072}')
        for per in range(2):
            k(f's_add_u32 m0, s68, {base+per*3072}')
            if per:
                k(f's_add_u32 s69, s69, {16*3072}')
            for n in range(3):
                self.stok[st] = k(f'buffer_load_dwordx4 v{self.VB+n}, s[64:67], s69 offen offset:{n*1024} lds')

    BR = 124

    def breg_load(self, st):
        k = self.k
        r0 = self.BR + 24 * (st - 6)
        self.sig(k, st, 69, 77)
        k(f's_mul_i32 s69, s69, {64*3072}')
        for per in range(2):
            if per:
                k(f's_add_u32 s69, s69, {16*3072}')
            for n in range(3):
                self.rtok[st] = k(f'buffer_load_dwordx4 {v(r0+12*per+4*n,4)}, v{self.VB+n}, s[64:67], s69 offen offset:{n*1024}')

    def breg_write(self, st):
        k = self.k
        r0 = self.BR + 24 * (st - 6)
        base = self.BS[st % 6]
        reg, off = (47, base - 102400) if base >= 102400 else (46, base)
        assert off + 6144 < 65536
        k.wait(self.rtok[st])
        for i in range(6):
            self.stok[st] = k(f'ds_write_b128 v{reg}, {v(r0+4*i,4)} offset:{off+i*1024}')

    def pre_colsum(self):
        k = self.k
        CA = 60
        k('v_lshlrev_b32 v46, 4, v1')
        k('v_add_u32 v46, s68, v46')
        k('v_add_u32 v47, 102400, v46')
        k.wait(self.stok[0])
        tk = [k(f'ds_read_b128 {v(84+4*i,4)}, v47 offset:{i*1024}') for i in range(6)]
        for n in range(3):
            k.wait(tk[n], tk[n + 3])
            for p in range(4):
                k(f'v_lshlrev_b32 v{CA+8*n+2*p}, 16, v{84+4*n+p}')
                k(f'v_and_b32 v{CA+8*n+2*p+1}, 0xffff0000, v{84+4*n+p}')
                k(f'v_lshlrev_b32 v{28+2*(p%2)}, 16, v{96+4*n+p}')
                k(f'v_and_b32 v{29+2*(p%2)}, 0xffff0000, v{96+4*n+p}')
                k(f'v_pk_add_f32 {v(CA+8*n+2*p,2)}, {v(CA+8*n+2*p,2)}, {v(28+2*(p%2),2)}')

    def pre_colsum_write(self):
        k = self.k
        CA = 60
        k('v_lshlrev_b32 v16, 5, v1')
        k('v_add_u32 v16, s68, v16')
        k('v_add_u32 v16, 73728, v16')
        for n in range(3):
            k(f'ds_write_b128 v16, {v(CA+8*n,4)} offset:{n*2048}')
            k(f'ds_write_b128 v16, {v(CA+8*n+4,4)} offset:{n*2048+16}')
        k.wait_all(vm=False)

    def loader_setup(self, g5):
        k = self.k
        tile4(k, 44, 45, 46)
        g5.dma_setup(40)
        k('v_cmp_le_u32 vcc, 96, v0')
        k(f'v_mov_b32 v16, {12288-384}')
        k('v_cndmask_b32 v17, 0, v16, vcc')
        k('v_lshl_add_u32 v17, v0, 2, v17')
        k('v_add_u32 v17, 73728, v17')
        k(f'v_mov_b32 v16, {6144-384}')
        k('v_cndmask_b32 v18, 0, v16, vcc')
        k('v_lshl_add_u32 v18, v0, 2, v18')
        k('v_cmp_gt_u32 vcc, 192, v0')
        k('v_cndmask_b32 v19, 0, v18, vcc')
        k(f'v_mov_b32 v16, {OOB}')
        k('v_cndmask_b32 v18, v16, v18, vcc')
        k('s_mul_i32 s51, s45, 384')
        k(f's_add_u32 s51, s51, {WS_PCS}')
        k('s_mul_i32 s52, s44, 12288')
        k('s_add_u32 s52, s52, s51')
        k(f's_mov_b32 s47, {OOB}')
        k('s_cmp_lt_u32 s44, 10')
        k('s_cselect_b32 s52, s52, s47')

    def colsum_reduce(self):
        k = self.k
        rr = list(range(84, 116))
        for half in range(4):
            tk = []
            for r in range(8):
                x = (half % 2) * 8 + r
                tk.append(k(f'ds_read_b32 v{rr[8*half+r]}, v17 offset:{x*384+(half//2)*6144}'))
            k.wait(*tk)
        for stp in (16, 8, 4, 2, 1):
            for i in range(stp):
                k(f'v_add_f32 v{rr[i]}, v{rr[i]}, v{rr[i+stp]}')
        k(f'buffer_store_dword v{rr[0]}, v18, {WSR}, s52 offen sc1')

    def loader(self, g5):
        k = self.k

        def gather(c):
            t = None
            for r in range(10):
                c(f's_add_u32 s58, s51, {r*12288}')
                t = c(f'buffer_load_dword v{24+r}, v19, {WSR}, s58 offen sc1')
            return t
        T = {}
        g5regs = {2 + i: 60 + 20 * i for i in range(9)}
        k('v_lshlrev_b32 v12, 4, v1')
        k(f's_mul_i32 s46, s{S_W4}, 5120')
        k('v_add_u32 v21, s46, v12')
        k('v_add_u32 v22, 61440, v21')
        k('v_add_u32 v23, 122880, v21')
        for st in range(7):
            k.wait(self.stok[st])
            if st == 6:
                k.wait(self.stok[9])
            k.wait_all(vm=False)
            k('s_barrier')
            if st == 0:
                stamp(k, 32)
                self.colsum_reduce()
            if st == 1:
                self.dma_stage(5)
            if 1 <= st <= 4:
                self.dma_stage(st + 5)
            if st == 4:
                T['g'] = gather(k)
                pf_wd(k, 36, 37)
            if st == 5:
                k.wait(T['g'])
                check_group(k, range(24, 34), 11, gather, slp=8)
                for r in range(1, 10):
                    k(f'v_add_f32 v24, v24, v{24+r}')
                k('v_lshlrev_b32 v16, 2, v0')
                k(f'v_add_u32 v16, {XCH}, v16')
                k('ds_write_b32 v16, v24')
        stamp(k, 36)
        runall(k, g5.dma_step(0))
        runall(k, g5.dma_step(1))
        NR1 = OPT.get('nr1', 6)
        for s5 in range(2, 2 + NR1):
            g5.breg_load(s5, g5regs[s5])
        stamp(k, 38)
        cnt_wait(k, 38, 39, 1, 4, bound=200000)
        for s5 in range(2, 7):
            g5.breg_write(s5, 21)
        for s5 in range(2 + NR1, 11):
            g5.breg_load(s5, g5regs[s5])
        stamp(k, 39)

    def compute(self, own_tok):
        k = self.k
        tile4(k, 44, 45, 46)
        S_MT, S_FT, S_TOK = 44, 45, 46
        k('s_lshl_b32 s46, s44, 7')
        k(f's_lshl_b32 s47, s{S_W4}, 5')
        k('s_add_u32 s46, s46, s47')
        k('v_and_b32 v13, 31, v1')
        k('v_lshrrev_b32 v14, 5, v1')
        k('v_lshlrev_b32 v5, 4, v13')
        k('v_lshl_add_u32 v5, v14, 15, v5')
        k('v_bfe_u32 v15, v1, 2, 2')
        k('v_lshl_add_u32 v15, v14, 3, v15')
        k('v_mul_u32_u24 v15, 192, v15')
        k('v_bfe_u32 v16, v1, 4, 1')
        k('v_lshl_add_u32 v15, v16, 5, v15')
        k('v_and_b32 v16, 1, v1')
        k('v_lshl_add_u32 v15, v16, 4, v15')
        k('v_bfe_u32 v16, v1, 1, 1')
        k('v_lshl_add_u32 v6, v16, 3, v15')
        k('v_add_u32 v7, 49152, v6')
        k('v_add_u32 v8, 102400, v6')
        rbase = {0: (6, 0), 24576: (6, 24576), 49152: (7, 0), 73728: (7, 24576), 102400: (8, 0), 126976: (8, 24576)}
        k('s_mul_i32 s76, s45, %d' % OPT.get('rot4', 3))
        k('s_add_u32 s76, s76, s44')
        k('s_mul_i32 s77, s76, 6554')
        k('s_lshr_b32 s77, s77, 16')
        k('s_mul_i32 s77, s77, 10')
        k('s_sub_u32 s76, s76, s77')
        k('s_lshl_b32 s50, s46, 4')
        k(f's_add_u32 s50, s50, {WS_H1}')
        AFR = 180
        atok = {}

        def abase(c, st, sreg, stmp):
            self.sig(c, st, sreg, stmp)
            c(f's_lshl_b32 s{sreg}, s{sreg}, 18')
            c(f's_add_u32 s{sreg}, s{sreg}, s50')

        def aone(c, st, ks, sreg):
            if ks:
                c(f's_add_u32 s{sreg}, s{sreg}, 65536')
            return c(f'buffer_load_dwordx4 {v(AFR+16*(st%4)+4*ks,4)}, v5, {WSR}, s{sreg} offen sc1')

        def astage(c, st, sreg, stmp):
            abase(c, st, sreg, stmp)
            t = None
            for ks in range(4):
                t = aone(c, st, ks, sreg)
            return t
        k('v_lshlrev_b32 v9, 3, v13')
        k('v_lshl_add_u32 v9, v14, 16, v9')
        k(f's_lshl_b32 s51, s{S_TOK}, 3')
        k(f's_add_u32 s51, s51, {WS_HS}')
        HSR = 20

        def hsload(c):
            t = None
            for n in range(4):
                c(f's_add_u32 s58, s51, {n*16384}')
                t = c(f'buffer_load_dwordx2 {v(HSR+2*n,2)}, v9, {WSR}, s58 offen sc1')
            return t
        k('v_lshlrev_b32 v10, 5, v14')
        k(f'v_add_u32 v10, {XCH}, v10')
        ACC, WF = 36, 132

        def csload(p, base):
            t = None
            for mtx in range(2):
                for q in range(4):
                    off = mtx * 384 + p * 128 + (q // 2) * 64 + (q % 2) * 16
                    t = k(f'ds_read_b128 {v(base+16*mtx+4*q,4)}, v10 offset:{off}')
            return t
        rt = {}

        def reads(kk):
            st, ks = kk // 4, kk % 4
            reg, so = rbase[self.BS[st % 6]]
            b = kk % 2
            ops = [[] for _ in range(6)]
            for j in range(6):
                for hf in range(2):
                    off = so + (j // 3) * 12288 + ks * 3072 + hf * 768 + (j % 3) * 64
                    ops[j].append(lambda j=j, hf=hf, off=off: rt.__setitem__((kk, j), k(
                        f'ds_read_b64_tr_b16 {v(WF+24*b+4*j+2*hf,2)}, v{reg} offset:{off}')))
            return ops
        T = {}

        def stats():
            k.wait(T['hs'])
            check_group(k, range(HSR, HSR + 8), 11, hsload)
            for n in range(1, 4):
                k(f'v_pk_add_f32 {v(HSR,2)}, {v(HSR,2)}, {v(HSR+2*n,2)}')
            VSUM, VSQ = HSR, HSR + 1
            xsum(k, VSUM, 24, 25)
            xsum(k, VSQ, 24, 25)
            k(f'v_mul_f32 v{VSUM}, {f32(1.0/640)}, v{VSUM}')
            k(f'v_mul_f32 v{VSQ}, {f32(1.0/640)}, v{VSQ}')
            k(f'v_fma_f32 v{VSQ}, -v{VSUM}, v{VSUM}, v{VSQ}')
            k(f'v_max_f32 v{VSQ}, 0, v{VSQ}')
            rbf(k, 24, VSUM)
            k('v_sub_f32 v26, 0, v24')
            rbf(k, 25, VSQ)
            k(f'v_add_f32 v25, {f32(1e-5)}, v25')
            rbf(k, 25, 25)
            k('v_sqrt_f32 v25, v25')
            rbf(k, 25, 25)
            k('v_rcp_f32 v28, v25')
            k('v_mul_f32 v30, v25, v25')
        stamp(k, 30)
        k.wait(own_tok)
        stamp(k, 31)
        for st in range(3):
            atok[st] = astage(k, st, 49, 48)
        k('s_barrier')
        for l_ in reads(0):
            runall(k, l_)
        for kk in range(40):
            b = kk % 2
            st, ks = kk // 4, kk % 4
            R0 = AFR + 16 * (st % 4)
            if kk % 8 == 4:
                stamp(k, 33 + kk // 8)
            if ks == 0:
                k.wait(atok[st])
                check_group(k, range(R0, R0 + 16), 11, lambda c, st=st: astage(c, st, 58, 59))
                if kk == 0:
                    stamp(k, 32)
            fill, rds = [], []
            if st + 3 < 10:
                def al(st=st, ks=ks):
                    if ks == 0:
                        abase(k, st + 3, 49, 48)
                    atok[st + 3] = aone(k, st + 3, ks, 49)
                fill.append(al)
            if kk + 1 < 40:
                if (kk + 1) % 4 == 0 and kk < 24:
                    k.wait_all(vm=False)
                    k('s_barrier')
                rds = reads(kk + 1)
            else:
                k.wait_all(vm=False)
                k('v_mov_b32 v2, 1')
                k(f'v_mov_b32 v3, {XCNT+4}')
                k('s_mov_b64 exec, 1')
                k('ds_add_u32 v3, v2')
                k('s_mov_b64 exec, -1')
            if kk == 28:
                fill.append(lambda: T.__setitem__('hs', hsload(k)))
            if kk == 39:
                fill.append(lambda: T.__setitem__('f3', flags_issue(k, WS_F3, 16, 12)))
            if kk == 39:
                fill.append(lambda: T.__setitem__(('cs', 0), csload(0, 212)))
            if kk == 37:
                fill.append(stats)
            mf = []
            for j in range(6):
                acc = v(ACC + 16 * j, 16)
                c = '0' if kk == 0 else acc
                mf.append((lambda j=j: [rt[kk, j]],
                           f'v_mfma_f32_32x32x16_bf16 {acc}, {v(WF+24*b+4*j,4)}, {v(R0+4*ks,4)}, {c}'))
            roll_step(k, mf, rds, fill)
        stamp(k, 38)
        T['cs', 1] = csload(1, 132)
        c0 = -2.0 * math.sqrt(2.0 / math.pi) * math.log2(math.e)
        c1 = c0 * 0.044715
        k(f'v_mov_b32 v32, {f32(c0)}')
        k(f'v_mov_b32 v34, {f32(c1)}')
        k(f's_mul_i32 s54, s{S_FT}, {12*32768}')
        k(f's_lshl_b32 s55, s{S_TOK}, 4')
        k('s_add_u32 s54, s54, s55')
        k(f's_add_u32 s54, s54, {WS_HC}')
        T_, O = 164, 180
        csb = {0: 212, 1: 132, 2: 212}
        for p in range(3):
            G, U, CS = ACC + 16 * p, ACC + 16 * (3 + p), csb[p]
            k.wait(T['cs', p])
            for q in range(8):
                g2, u2 = v(G + 2 * q, 2), v(U + 2 * q, 2)
                k(f'v_pk_fma_f32 {g2}, {v(CS+2*q,2)}, {v(26,2)}, {g2} op_sel_hi:[1,0,1]')
                k(f'v_pk_fma_f32 {u2}, {v(CS+16+2*q,2)}, {v(26,2)}, {u2} op_sel_hi:[1,0,1]')
            if p == 0:
                T['cs', 2] = csload(2, 212)
            for q in range(8):
                g2, u2, t2 = v(G + 2 * q, 2), v(U + 2 * q, 2), v(T_ + 2 * q, 2)
                k(f'v_pk_mul_f32 {u2}, {u2}, {g2}')
                k(f'v_pk_mul_f32 {g2}, {g2}, {v(28,2)} op_sel_hi:[1,0]')
                k(f'v_pk_mul_f32 {t2}, {g2}, {g2}')
                k(f'v_pk_fma_f32 {t2}, {t2}, {v(34,2)}, {v(32,2)} op_sel_hi:[1,0,0]')
                k(f'v_pk_mul_f32 {t2}, {t2}, {g2}')
            for i in range(16):
                k(f'v_exp_f32 v{T_+i}, v{T_+i}')
            for q in range(8):
                t2 = v(T_ + 2 * q, 2)
                k(f'v_pk_fma_f32 {t2}, {t2}, {v(30,2)}, {v(30,2)} op_sel_hi:[1,0,0]')
            for i in range(16):
                k(f'v_rcp_f32 v{T_+i}, v{T_+i}')
            for q in range(8):
                k(f'v_pk_mul_f32 {v(U+2*q,2)}, {v(U+2*q,2)}, {v(T_+2*q,2)}')
            for q in range(8):
                k(f'v_cvt_pk_bf16_f32 v{O+8*(p%2)+q}, v{U+2*q}, v{U+2*q+1}')
            for hf2 in range(2):
                k(f's_add_u32 s55, s54, {(4*p+2*hf2)*32768}')
                self.own = k(f'buffer_store_dwordx4 {v(O+8*(p%2)+4*hf2,4)}, v5, {WSR}, s55 offen sc1')
        flags_check(k, WS_F3, 16, 12, T['f3'])
        stamp(k, 39)


def colsum_strip(k):
    lab = k.newlabel('CS_SKIP')
    k(f's_cmp_lg_u32 s{S_W4}, 0')
    k(f's_cbranch_scc1 {lab}')
    k(f's_cmp_ge_u32 s{S_I32}, 12')
    k(f's_cbranch_scc1 {lab}')
    sn = k.snap()
    k(f's_and_b32 s60, s{S_X8}, 1')
    k('s_cmp_eq_u32 s60, 0')
    k(f's_cselect_b32 s72, s{S_WG}, s{S_WU}')
    k(f's_cselect_b32 s73, s{S_WG+1}, s{S_WU+1}')
    k('s_mov_b32 s74, 1966080')
    k('s_mov_b32 s75, 0x00020000')
    k(f's_lshr_b32 s60, s{S_X8}, 1')
    k('s_mul_i32 s60, s60, 768')
    k(f's_lshl_b32 s61, s{S_I32}, 6')
    k('s_add_u32 s60, s60, s61')
    k('v_lshrrev_b32 v40, 2, v1')
    k('v_mul_u32_u24 v40, 3072, v40')
    k('v_and_b32 v41, 3, v1')
    k('v_lshl_add_u32 v40, v41, 4, v40')
    k('v_add_u32 v40, s60, v40')
    tk = []
    for n in range(40):
        k(f's_mov_b32 s61, {n*16*3072}')
        tk.append(k(f'buffer_load_dwordx4 {v(60+4*n,4)}, v40, s[72:75], s61 offen'))
    for i in range(8):
        k(f'v_mov_b32 v{44+i}, 0')
    for n in range(40):
        k.wait(tk[n])
        for p in range(4):
            k(f'v_lshlrev_b32 v{52+2*(p%2)}, 16, v{60+4*n+p}')
            k(f'v_and_b32 v{53+2*(p%2)}, 0xffff0000, v{60+4*n+p}')
            k(f'v_pk_add_f32 {v(44+2*p,2)}, {v(44+2*p,2)}, {v(52+2*(p%2),2)}')
    for i in range(8):
        xsum(k, 44 + i, 56, 57, 32)
        xsum(k, 44 + i, 56, 57, 16)
        k(f'v_add_f32_dpp v{44+i}, v{44+i}, v{44+i} row_ror:8 row_mask:0xf bank_mask:0xf')
        k(f'v_add_f32_dpp v{44+i}, v{44+i}, v{44+i} row_ror:4 row_mask:0xf bank_mask:0xf')
    strip_id(k, 60)
    k('s_lshl_b32 s60, s60, 2')
    k(f's_add_u32 s60, s60, {WS_CS}')
    k('v_lshlrev_b32 v41, 5, v41')
    k('s_mov_b64 exec, 0xf')
    k(f'buffer_store_dwordx4 {v(44,4)}, v41, {WSR}, s60 offen sc1')
    k(f'buffer_store_dwordx4 {v(48,4)}, v41, {WSR}, s60 offen offset:16 sc1')
    k('s_mov_b64 exec, -1')
    k.wait_all()
    k.restore(sn)
    k.label(lab)


def build():
    k = K()
    name = NAME + '_kernel'
    k.realend = 'K_END'
    k.raw('.p2align 8')
    k.raw(f'.globl {name}')
    k.raw(f'.type {name},@function')
    k.raw(f'{name}:')
    prologue(k)
    if STAMPS:
        k('v_writelane_b32 v255, s84, 60')
    if OPT.get('empty'):
        k('s_branch K_END')
    stamp(k, 0)
    g3 = G35(k, 3, [0, 20480, 40960, 61440, 81920], 232, 0)
    g5 = G35(k, 5, [49152, 69632, 90112, 110592, 131072, 0, 20480], 54, 70)
    p4 = P4(k)
    A3 = [102400, 118784, 135168]
    A5 = [61440, 77824, 143360]
    lab_l1, lab_p2, lab_l3, lab_fin = (k.newlabel(x) for x in ('L1', 'P2', 'L3', 'FIN'))
    k(f's_cmp_ge_u32 s{S_W}, 4')
    k(f's_cbranch_scc1 {lab_l1}')
    sn = k.snap()
    p1_compute(k)
    join(k)
    if OPT.get('wgu', 2) == 1:
        pf_wgu(k, 238, 239, 128)
    p2_setup(k)
    k(f's_branch {lab_p2}')
    k.label(lab_l1)
    k.restore(sn)
    p1_loader(k, g3)
    k.label(lab_p2)
    join(k)
    for st in range(5):
        g3.btok[st] = ('vm', 0)
    own = emit_p2(k, g3)
    k(f's_cmp_ge_u32 s{S_W}, 4')
    k(f's_cbranch_scc1 {lab_l3}')
    sn = k.snap()
    g3.compute(own, st0=20)
    p4.compute(g3.own)
    if not OPT.get('nop5'):
        g5.compute(p4.own, st0=40)
    k(f's_branch {lab_fin}')
    k.label(lab_l3)
    k.restore(sn)
    k('s_barrier')
    if OPT.get('wguL', 0):
        pf_wgu(k, 36, 37)
    p4.setup_dma(56)
    p4.dma_stage(0)
    p4.dma_stage(1)
    p4.loader_setup(g5)
    p4.pre_colsum()
    stamp(k, 23)
    k('s_barrier')
    k('s_barrier')
    k('s_barrier')
    stamp(k, 24)
    p4.dma_stage(2)
    p4.dma_stage(3)
    p4.dma_stage(4)
    p4.pre_colsum_write()
    stamp(k, 30)
    p4.loader(g5)
    if not OPT.get('nop5'):
        g5.loader(7, st0=40)
        k('s_barrier')
        k('s_barrier')
    k.label(lab_fin)
    join(k)
    stamp(k, 50)
    if STAMPS:
        k.wait_all()
        stamp(k, 51)
    stamp_flush(k)
    k.label(k.realend)
    k('s_endpgm')
    c = K()
    for f in k.cold:
        f(c)
    desc = f'''.section .rodata,"a"
.p2align 6
.amdhsa_kernel {name}
  .amdhsa_next_free_vgpr 256
  .amdhsa_next_free_sgpr 102
  .amdhsa_accum_offset 256
  .amdhsa_group_segment_fixed_size 0
  .amdhsa_kernarg_size 80
  .amdhsa_user_sgpr_count 2
  .amdhsa_user_sgpr_kernarg_segment_ptr 1
  .amdhsa_system_sgpr_workgroup_id_x 1
.end_amdhsa_kernel
'''
    return k.render() + c.render() + 'CODE_END:\n' + desc


def main():
    global STAMPS
    STAMPS = 'stamps' in sys.argv
    for a_ in sys.argv[2:]:
        if '=' in a_:
            kk, vv = a_.split('=')
            OPT[kk] = int(vv)
    head = open('cdna_kernels/%s.s.ref' % NAME).read().split('\n')
    hdr = [l for l in head if l.startswith(';') and '@launch' not in l and 'Override launch' not in l and 'grid=ceil' not in l]
    out = '\n'.join(hdr) + '\n'
    out += '; @launch grid=(256,1,1) block=(512,1,1) lds=163840\n'
    out += '.amdgcn_target "amdgcn-amd-amdhsa--gfx950"\n.text\n'
    out += build()
    path = sys.argv[1] if len(sys.argv) > 1 else 'cdna_kernels/%s.s' % NAME
    open(path, 'w').write(out)
    print('wrote', path, len(out), 'bytes')


if __name__ == '__main__':
    main()
```

```python
import math
import struct
import sys
from asmlib import K, v, a, s

NAME = 'sequential_preLN__sliding_block__glu_gated_geglu__prompt'

WS_QG = 0x0000000
WS_KG = 0x0280000
WS_VF = 0x0500000
WS_OC = 0x0780000
WS_H1 = 0x0A00000
WS_HC = 0x0C80000
WS_CS = 0x1280000
WS_F2 = 0x1288000
WS_F3 = 0x128A000
WS_F0 = 0x128C000
WS_PC = 0x1290000
WS_PS = 0x12A8000
WS_HS = 0x12D0000
WS_PCS = 0x1340000
WS_ST = 0x1300000
WS_SIZE = 0x1400000
OOB = 0x40000000

S_X, S_WQKV, S_WO, S_WG, S_WU, S_WD, S_OUT, S_WS, S_DBG = 4, 8, 12, 16, 20, 24, 28, 32, 36
S_NONCE = 3
S_W, S_X8, S_I32, S_W4 = 40, 41, 42, 43
S_BUD = 57
WSR = f's[{S_WS}:{S_WS+3}]'
OPT = {}
STAMPS = False
XCH = 159744
XNONCE = XCH + 3072
XCNT = XCH + 3080


def f32(x):
    return '0x%08x' % struct.unpack('<I', struct.pack('<f', x))[0]


def stamp(k, i):
    if not STAMPS:
        return
    k('s_memtime s[62:63]')
    k.wait_all(vm=False)
    k(f'v_writelane_b32 v255, s62, {i}')


def stamp_flush(k):
    if not STAMPS:
        return
    lab = k.newlabel('ST')
    k('s_memrealtime s[62:63]')
    k.wait_all()
    k('v_writelane_b32 v255, s62, 63')
    k(f'v_writelane_b32 v255, s{S_BUD}, 62')
    k(f's_cmp_lg_u32 s{S_W4}, 0')
    k(f's_cbranch_scc1 {lab}')
    k('v_lshlrev_b32 v254, 2, v1')
    k('s_lshl_b32 s62, s2, 9')
    k(f's_lshl_b32 s63, s{S_W}, 6')
    k('s_add_u32 s62, s62, s63')
    k(f's_add_u32 s62, s62, {WS_ST}')
    k(f'buffer_store_dword v255, v254, {WSR}, s62 offen')
    k.label(lab)


def run(k, f):
    return f() if callable(f) else k(f)


def runall(k, ops):
    for f in ops:
        run(k, f)


def roll_step(k, mf, rds, fill):
    n, nf, fi = len(mf), len(fill), 0
    for i, (wt, m) in enumerate(mf):
        k.wait(*wt())
        k(m)
        for f in (rds[i] if i < len(rds) else []):
            run(k, f)
        tgt = (nf * (i + 1) + n - 1) // n
        while fi < min(tgt, nf):
            run(k, fill[fi])
            fi += 1


def spread(k, main, side):
    n, nf = len(main), len(side)
    pos = {}
    for j in range(nf):
        pos.setdefault(int(j * n / max(nf, 1)), []).append(side[j])
    for i, m in enumerate(main):
        for f in pos.get(i, []):
            run(k, f)
        run(k, m)


def rbf(k, d, src):
    k(f'v_cvt_pk_bf16_f32 {v(d)}, {v(src)}, {v(src)}')
    k(f'v_lshlrev_b32 {v(d)}, 16, {v(d)}')


def xsum(k, r, t1, t2, which=32):
    k(f'v_mov_b32 {v(t1)}, {v(r)}')
    k(f'v_mov_b32 {v(t2)}, {v(r)}')
    k(f'v_permlane{which}_swap_b32 {v(t1)}, {v(t2)}')
    k(f'v_add_f32 {v(r)}, {v(t1)}, {v(t2)}')


def maxchain_ops(regs, t):
    regs = list(regs)
    ops = [f'v_max3_u32 v{t}, v{regs[0]}, v{regs[1]}, v{regs[2]}']
    i = 3
    while i < len(regs):
        if i + 1 < len(regs):
            ops.append(f'v_max3_u32 v{t}, v{t}, v{regs[i]}, v{regs[i+1]}')
            i += 2
        else:
            ops.append(f'v_max_u32 v{t}, v{t}, v{regs[i]}')
            i += 1
    return ops


def check_group(k, regs, t, reissue, slp=2):
    for o in maxchain_ops(regs, t):
        k(o)
    slow, back, loop = k.newlabel('SLOW'), k.newlabel('BACK'), k.newlabel('RETRY')
    k(f'v_cmp_eq_u32 vcc, -1, v{t}')
    k(f's_cbranch_vccnz {slow} ;nodrain')
    k.label(back)

    def cold(c):
        c.label(slow)
        c('s_nop 15')
        c.label(loop)
        c(f's_cmp_eq_u32 s{S_BUD}, 0')
        c(f's_cbranch_scc1 {back}')
        c(f's_sub_u32 s{S_BUD}, s{S_BUD}, 1')
        c(f's_sleep {slp}')
        reissue(c)
        c('s_waitcnt vmcnt(0)')
        for o in maxchain_ops(regs, t):
            c(o)
        c(f'v_cmp_eq_u32 vcc, -1, v{t}')
        c(f's_cbranch_vccnz {loop}')
        c(f's_branch {back}')
    k.cold.append(cold)


def nonce_issue(k, vr):
    k(f'v_mov_b32 v{vr+1}, 0')
    return k(f'buffer_load_dword v{vr}, v{vr+1}, s[{S_DBG}:{S_DBG+3}], 0 offen sc1')


def nonce_check(k, vr, tok):
    k.wait(tok)
    slow, back = k.newlabel('NSLOW'), k.newlabel('NBACK')
    k(f'v_readfirstlane_b32 s{S_NONCE}, v{vr}')
    k(f's_cmp_eq_u32 s{S_NONCE}, 0')
    k(f's_cbranch_scc1 {slow} ;nodrain')
    k.label(back)

    def cold(c):
        c.label(slow)
        c('s_nop 15')
        c(f's_cmp_eq_u32 s{S_BUD}, 0')
        c(f's_cbranch_scc1 {back}')
        c(f's_sub_u32 s{S_BUD}, s{S_BUD}, 1')
        c('s_sleep 4')
        c(f'buffer_load_dword v{vr}, v{vr+1}, s[{S_DBG}:{S_DBG+3}], 0 offen sc1')
        c('s_waitcnt vmcnt(0)')
        c(f'v_readfirstlane_b32 s{S_NONCE}, v{vr}')
        c(f's_cmp_eq_u32 s{S_NONCE}, 0')
        c(f's_cbranch_scc1 {slow}')
        c(f's_branch {back}')
    k.cold.append(cold)


def nonce_from_lds(k, t):
    k(f'v_mov_b32 v{t}, {XNONCE}')
    tk = k(f'ds_read_b32 v{t}, v{t}')
    k.wait(tk)
    k(f'v_readfirstlane_b32 s{S_NONCE}, v{t}')


def rflag_store(k, base, sidx, t1, t2, wave=0):
    k(f'v_mov_b32 v{t1}, s{S_NONCE}')
    k(f'v_lshlrev_b32 v{t2}, 10, v1')
    k(f's_lshl_b32 s60, s{sidx}, 2')
    k(f's_add_u32 s60, s60, {base}')
    k(f's_mov_b32 s61, {OOB}')
    k(f's_cmp_eq_u32 s{S_W}, {wave}')
    k('s_cselect_b32 s60, s60, s61')
    k('s_mov_b64 exec, 0xff')
    k(f'buffer_store_dword v{t1}, v{t2}, {WSR}, s60 offen sc1')
    k('s_mov_b64 exec, -1')


def wflag_store(k, base, sidx, t1, t2, cnt):
    k(f'v_mov_b32 v{t1}, 1')
    k(f'v_mov_b32 v{t2}, {XCNT+4*cnt}')
    k('s_mov_b64 exec, 1')
    tk = k(f'ds_add_rtn_u32 v{t1}, v{t2}, v{t1}')
    k('s_mov_b64 exec, -1')
    k(f's_lshl_b32 s60, s{sidx}, 2')
    k(f's_add_u32 s60, s60, {base}')
    k.wait(tk)
    k(f'v_readfirstlane_b32 s61, v{t1}')
    k(f'v_mov_b32 v{t1}, s{S_NONCE}')
    k(f'v_lshlrev_b32 v{t2}, 10, v1')
    k('s_cmp_eq_u32 s61, 3')
    k(f's_cselect_b32 s60, s60, {OOB}')
    k('s_mov_b64 exec, 0xff')
    k(f'buffer_store_dword v{t1}, v{t2}, {WSR}, s60 offen sc1')
    k('s_mov_b64 exec, -1')


def cnt_wait(k, t1, t2, cnt, target, bound=2000):
    loop, done = k.newlabel('CW'), k.newlabel('CD')
    k(f'v_mov_b32 v{t2}, {XCNT+4*cnt}')
    k(f's_mov_b32 s61, {bound}')
    k.label(loop)
    k.raw(f'    ds_read_b32 v{t1}, v{t2}')
    k.raw('    s_waitcnt lgkmcnt(0)')
    k(f'v_readfirstlane_b32 s60, v{t1}')
    k(f's_cmp_ge_u32 s60, {target}')
    k(f's_cbranch_scc1 {done}')
    k('s_sub_u32 s61, s61, 1')
    k('s_cmp_eq_u32 s61, 0')
    k(f's_cbranch_scc1 {done}')
    k('s_sleep 2')
    k(f's_branch {loop}')
    k.label(done)


def wflag_poll(k, sbase, va, vr, smask, width, only_wave0):
    loop, done = k.newlabel('POLL'), k.newlabel('PDONE')
    if only_wave0:
        k(f's_cmp_lg_u32 s{S_W}, 0')
        k(f's_cbranch_scc1 {done}')
    k.label(loop)
    if width == 4:
        k.raw(f'    buffer_load_dwordx4 {v(vr,4)}, v{va}, {WSR}, s{sbase} offen sc1')
        k.raw('    s_waitcnt vmcnt(0)')
        for i in range(4):
            k(f'v_xor_b32 v{vr+i}, s{S_NONCE}, v{vr+i}')
        k(f'v_or3_b32 v{vr}, v{vr}, v{vr+1}, v{vr+2}')
        k(f'v_or_b32 v{vr}, v{vr}, v{vr+3}')
        k(f'v_cmp_ne_u32 vcc, 0, v{vr}')
    else:
        k.raw(f'    buffer_load_dword v{vr}, v{va}, {WSR}, s{sbase} offen sc1')
        k.raw('    s_waitcnt vmcnt(0)')
        k(f'v_cmp_ne_u32 vcc, s{S_NONCE}, v{vr}')
    k(f's_and_b64 vcc, vcc, s[{smask}:{smask+1}]')
    k(f's_cbranch_scc0 {done}')
    k(f's_cmp_eq_u32 s{S_BUD}, 0')
    k(f's_cbranch_scc1 {done}')
    k(f's_sub_u32 s{S_BUD}, s{S_BUD}, 1')
    k(f's_sleep {OPT.get("psl", 1)}')
    k(f's_branch {loop}')
    k.label(done)


def rflag_poll(k, sbase, va, vr, smask):
    loop, done = k.newlabel('POLL'), k.newlabel('PDONE')
    k(f's_cmp_lg_u32 s{S_W}, 0')
    k(f's_cbranch_scc1 {done}')
    k.label(loop)
    k.raw(f'    buffer_load_dword v{vr}, v{va}, {WSR}, s{sbase} offen sc1')
    k.raw('    s_waitcnt vmcnt(0)')
    k(f'v_cmp_ne_u32 vcc, s{S_NONCE}, v{vr}')
    k(f's_and_b64 vcc, vcc, s[{smask}:{smask+1}]')
    k(f's_cbranch_scc0 {done}')
    k(f's_cmp_eq_u32 s{S_BUD}, 0')
    k(f's_cbranch_scc1 {done}')
    k(f's_sub_u32 s{S_BUD}, s{S_BUD}, 1')
    k(f's_branch {loop}')
    k.label(done)


def flags_issue(k, base, vr, va):
    k(f'v_lshlrev_b32 v{va}, 4, v1')
    k(f's_lshl_b32 s60, s{S_X8}, 10')
    k(f'v_add_u32 v{va}, s60, v{va}')
    k(f's_mov_b32 s60, {base}')
    return k(f'buffer_load_dwordx4 {v(vr,4)}, v{va}, {WSR}, s60 offen sc1')


def flags_check(k, base, vr, va, tok):
    k.wait(tok)
    slow, back = k.newlabel('FSLOW'), k.newlabel('FBACK')

    def cmpops(c):
        for i in range(4):
            c(f'v_xor_b32 v{vr+i}, s{S_NONCE}, v{vr+i}')
        c(f'v_or3_b32 v{vr}, v{vr}, v{vr+1}, v{vr+2}')
        c(f'v_or_b32 v{vr}, v{vr}, v{vr+3}')
        c(f'v_cmp_ne_u32 vcc, 0, v{vr}')
    cmpops(k)
    k(f's_cbranch_vccnz {slow} ;nodrain')
    k.label(back)

    def cold(c):
        c.label(slow)
        c('s_nop 15')
        c(f's_cmp_eq_u32 s{S_BUD}, 0')
        c(f's_cbranch_scc1 {back}')
        c(f's_sub_u32 s{S_BUD}, s{S_BUD}, 1')
        c('s_sleep 12')
        c(f's_mov_b32 s58, {base}')
        c(f'buffer_load_dwordx4 {v(vr,4)}, v{va}, {WSR}, s58 offen sc1')
        c('s_waitcnt vmcnt(0)')
        cmpops(c)
        c(f's_cbranch_vccnz {slow}')
        c(f's_branch {back}')
    k.cold.append(cold)


def join(k):
    k.reset_counters()
    k.vm_issued = 1
    k.lg_issued = 1


def prologue(k):
    k('s_cmp_ge_u32 s2, 256')
    k('s_cbranch_scc1 %s' % k.realend)
    if OPT.get('cpf', 1):
        k.raw('    s_getpc_b64 s[88:89]')
        k.raw('CODE_PC:')
        k.raw(f'    s_sub_u32 s88, s88, CODE_PC-{NAME}_kernel')
        k.raw('    s_subb_u32 s89, s89, 0')
        k.raw('    s_and_b32 s89, s89, 0xffff')
        k.raw(f'    s_mov_b32 s90, CODE_END-{NAME}_kernel')
        k.raw('    s_mov_b32 s91, 0x00020000')
        k('s_lshr_b32 s92, s2, 3')
        k('s_lshl_b32 s92, s92, 12')
        k('v_lshlrev_b32 v250, 7, v0')
        k('v_cmp_gt_u32 vcc, 32, v0')
        k(f'v_mov_b32 v251, {OOB}')
        k('v_cndmask_b32 v250, v251, v250, vcc')
        k('buffer_load_dword v251, v250, s[88:91], s92 offen')
    k('s_load_dwordx8 s[64:71], s[0:1], 0')
    k('s_load_dwordx8 s[72:79], s[0:1], 32')
    k('s_load_dwordx4 s[80:83], s[0:1], 64')
    k('s_memrealtime s[84:85]')
    k('v_and_b32 v1, 63, v0')
    k('v_lshrrev_b32 v2, 6, v0')
    k(f'v_readfirstlane_b32 s{S_W}, v2')
    k(f's_and_b32 s{S_X8}, s2, 7')
    k(f's_lshr_b32 s{S_I32}, s2, 3')
    k(f's_mov_b32 s{S_BUD}, {OPT.get("bud", 100000)}')
    k(f's_and_b32 s{S_W4}, s{S_W}, 3')
    k('v_and_b32 v0, 255, v0')
    k('v_mov_b32 v253, 0')
    k('s_waitcnt lgkmcnt(0)')
    for sr, src, size in ((S_X, 64, 2621440), (S_WQKV, 66, 2457600), (S_WO, 68, 819200), (S_WG, 72, 1966080),
                          (S_WU, 74, 1966080), (S_WD, 76, 1966080), (S_OUT, 78, 2621440), (S_WS, 82, WS_SIZE),
                          (S_DBG, 80, 256)):
        k(f's_mov_b32 s{sr}, s{src}')
        k(f's_and_b32 s{sr+1}, s{src+1}, 0xffff')
        k(f's_mov_b32 s{sr+2}, {size}')
        k(f's_mov_b32 s{sr+3}, 0x00020000')
    k(f's_or_b32 s60, s2, s{S_W}')
    k('s_cmp_eq_u32 s60, 0')
    k(f's_cselect_b32 s61, 0, 0x10000')
    k('s_or_b32 s60, s84, 1')
    k('v_mov_b32 v2, s60')
    k('v_mov_b32 v3, 0')
    k('s_mov_b64 exec, 1')
    k(f'buffer_store_dword v2, v3, s[{S_DBG}:{S_DBG+3}], s61 offen sc1')
    k('s_mov_b64 exec, -1')


def tile1(k):
    k(f's_and_b32 s47, s{S_X8}, 3')
    k(f's_lshr_b32 s46, s{S_X8}, 2')
    k('s_mul_i32 s46, s46, 30')
    k(f's_add_u32 s46, s46, s{S_I32}')
    k('s_lshr_b32 s44, s46, 2')
    k('s_and_b32 s46, s46, 3')
    k('s_lshl_b32 s47, s47, 2')
    k('s_add_u32 s45, s47, s46')
    k('s_add_u32 s56, s45, s44')
    for _ in range(2):
        k('s_sub_u32 s47, s56, 10')
        k('s_cmp_ge_u32 s56, 10')
        k('s_cselect_b32 s56, s47, s56')
    k('s_lshl_b32 s46, s45, 7')
    k(f's_lshl_b32 s47, s{S_W4}, 5')
    k('s_add_u32 s46, s46, s47')


def tile35(k, srt, sct, st):
    if OPT.get('m35', 0):
        k(f's_lshl_b32 s{st}, s{S_X8}, 2')
        k(f's_and_b32 s{srt}, s{S_I32}, 3')
        k(f's_add_u32 s{srt}, s{srt}, s{st}')
        k(f's_lshr_b32 s{sct}, s{S_I32}, 2')
        return
    k(f's_and_b32 s{st}, s{S_X8}, 3')
    k(f's_lshl_b32 s{st}, s{st}, 3')
    k(f's_and_b32 s{srt}, s{S_I32}, 7')
    k(f's_add_u32 s{srt}, s{srt}, s{st}')
    k(f's_lshr_b32 s{st}, s{S_X8}, 2')
    k(f's_lshl_b32 s{st}, s{st}, 2')
    k(f's_lshr_b32 s{sct}, s{S_I32}, 3')
    k(f's_add_u32 s{sct}, s{sct}, s{st}')


def tile4(k, smt, sft, st):
    if OPT.get('m4', 0):
        k(f's_and_b32 s{st}, s{S_X8}, 3')
        k(f's_lshl_b32 s{st}, s{st}, 2')
        k(f's_and_b32 s{smt}, s{S_I32}, 3')
        k(f's_add_u32 s{smt}, s{smt}, s{st}')
        k(f's_lshr_b32 s{st}, s{S_X8}, 2')
        k(f's_lshl_b32 s{st}, s{st}, 3')
        k(f's_lshr_b32 s{sft}, s{S_I32}, 2')
        k(f's_add_u32 s{sft}, s{sft}, s{st}')
        return
    k(f's_and_b32 s{st}, s{S_X8}, 1')
    k(f's_lshl_b32 s{st}, s{st}, 3')
    k(f's_and_b32 s{smt}, s{S_I32}, 7')
    k(f's_add_u32 s{smt}, s{smt}, s{st}')
    k(f's_lshr_b32 s{st}, s{S_X8}, 1')
    k(f's_lshl_b32 s{st}, s{st}, 2')
    k(f's_lshr_b32 s{sft}, s{S_I32}, 3')
    k(f's_add_u32 s{sft}, s{sft}, s{st}')


def strip_id(k, sd):
    k(f's_and_b32 s{sd}, s{S_X8}, 1')
    k(f's_mul_i32 s{sd}, s{sd}, 1536')
    k(f's_lshr_b32 s61, s{S_X8}, 1')
    k('s_mul_i32 s61, s61, 384')
    k(f's_add_u32 s{sd}, s{sd}, s61')
    k(f's_lshl_b32 s61, s{S_I32}, 5')
    k(f's_add_u32 s{sd}, s{sd}, s61')


def clear_ops(k, vs, va):
    ops = []

    def o1():
        k(f's_and_b32 s60, s{S_I32}, 3')
        k(f's_lshl_b32 s61, s{S_X8}, 2')
        k('s_add_u32 s60, s60, s61')
        k('s_and_b32 s65, s60, 1')
        k('s_lshr_b32 s60, s60, 1')
        k('s_mul_i32 s60, s60, 5')
        k('s_lshl_b32 s60, s60, 15')
        k(f's_lshr_b32 s61, s{S_I32}, 2')
        k('s_lshl_b32 s61, s61, 12')
        k('s_add_u32 s60, s60, s61')
        k(f's_lshl_b32 s61, s{S_W4}, 10')
        k('s_add_u32 s60, s60, s61')
        k(f's_add_u32 s64, s60, {WS_OC}')
        k(f's_mul_i32 s61, s65, {3*32768}')
        k('s_add_u32 s66, s64, s61')
        k(f'buffer_store_dwordx4 {v(vs,4)}, v{va}, {WSR}, s66 offen sc1')

    def o2():
        k('s_add_u32 s60, s66, 32768')
        k(f'buffer_store_dwordx4 {v(vs,4)}, v{va}, {WSR}, s60 offen sc1')

    def o3():
        k('s_lshl_b32 s61, s65, 3')
        k('s_add_u32 s60, s64, s61')
        k('s_add_u32 s60, s60, 65536')
        k(f'buffer_store_dwordx2 {v(vs,2)}, v{va}, {WSR}, s60 offen sc1')

    def h1():
        tile35(k, 60, 61, 64)
        k('s_lshl_b32 s67, s61, 14')
        k('s_lshl_b32 s64, s60, 9')
        k('s_add_u32 s67, s67, s64')
        k(f's_add_u32 s67, s67, {WS_HS}')
        k('s_mul_i32 s61, s61, 10')
        k(f's_add_u32 s61, s61, s{S_W4}')
        k('s_lshl_b32 s61, s61, 15')
        k('s_lshl_b32 s60, s60, 10')
        k('s_add_u32 s64, s61, s60')
        k(f's_add_u32 s64, s64, {WS_H1}')
        k(f'buffer_store_dwordx4 {v(vs,4)}, v{va}, {WSR}, s64 offen sc1')

    def h2():
        k(f's_add_u32 s60, s64, {4*32768}')
        k(f'buffer_store_dwordx4 {v(vs,4)}, v{va}, {WSR}, s60 offen sc1')

    def h3():
        k(f's_add_u32 s60, s64, {8*32768}')
        k(f's_mov_b32 s65, {OOB}')
        k(f's_cmp_lt_u32 s{S_W4}, 2')
        k('s_cselect_b32 s60, s60, s65')
        k(f'buffer_store_dwordx4 {v(vs,4)}, v{va}, {WSR}, s60 offen sc1')

    def h4():
        k(f's_cmp_eq_u32 s{S_W4}, 2')
        k('s_cselect_b32 s60, s67, s65')
        k(f'buffer_store_dwordx2 {v(vs,2)}, v{va+1}, {WSR}, s60 offen sc1')

    def c1():
        tile4(k, 60, 61, 64)
        k('s_mul_i32 s61, s61, 384')
        k('s_mul_i32 s64, s60, 12288')
        k('s_add_u32 s61, s61, s64')
        k(f's_mul_i32 s64, s{S_W4}, 6144')
        k('s_add_u32 s61, s61, s64')
        k(f's_add_u32 s61, s61, {WS_PCS}')
        k('s_cmp_lt_u32 s60, 10')
        k('s_cselect_b32 s61, s61, s65')
        k(f's_cmp_lt_u32 s{S_W4}, 2')
        k('s_cselect_b32 s61, s61, s65')
        k('s_mov_b64 exec, 0xffffff')
        k(f'buffer_store_dwordx4 {v(vs,4)}, v{va}, {WSR}, s61 offen sc1')
        k('s_mov_b64 exec, -1')
    return [o1, o2, o3, h1, h2, h3, h4, c1]


def sparse_prefetch(k, srd, rows_per_wg, lines, pitch, colshift, colmul, va, vd, toff=0):
    magic = {5: 13108, 6: 10923}[lines]
    k(f'v_subrev_u32 v{va}, {toff}, v0')
    k(f'v_cmp_gt_u32 vcc, {rows_per_wg*lines}, v{va}')
    k(f'v_mul_u32_u24 v{vd}, {magic}, v{va}')
    k(f'v_lshrrev_b32 v{vd}, 16, v{vd}')
    k(f'v_mul_u32_u24 v{vd}, {pitch-lines*128}, v{vd}')
    k(f'v_lshl_add_u32 v{va}, v{va}, 7, v{vd}')
    k(f'v_mov_b32 v{vd}, {OOB}')
    k(f'v_cndmask_b32 v{va}, v{vd}, v{va}, vcc')
    k(f's_mul_i32 s60, s{S_I32}, {rows_per_wg*pitch}')
    k(f's_lshr_b32 s61, s{S_X8}, {colshift}')
    k(f's_mul_i32 s61, s61, {colmul}')
    k('s_add_u32 s60, s60, s61')
    for sr in srd:
        k(f'buffer_load_dword v{vd}, v{va}, s[{sr}:{sr+3}], s60 offen')


def pf_wo(k, va, vd):
    sparse_prefetch(k, [S_WO], 20, 5, 1280, 2, 640, va, vd)


def pf_wd(k, va, vd):
    sparse_prefetch(k, [S_WD], 48, 5, 1280, 2, 640, va, vd)


def pf_wgu(k, va, vd, toff=0):
    sparse_prefetch(k, [S_WG, S_WU], 20, 6, 3072, 1, 768, va, vd, toff)


P1_R, P1_SLOT = 4, 32768


def p1_loader(k, g3):
    tile1(k)
    S_NT, S_TOK, S_LW, S_SIG = 44, 46, 48, 55
    lab_h, lab_e = k.newlabel('L_HELP'), k.newlabel('L_P1E')
    k(f's_cmp_ge_u32 s{S_I32}, 30')
    k(f's_cbranch_scc1 {lab_h}')
    k('s_cmp_ge_u32 s56, 5')
    k(f's_cselect_b32 s{S_SIG}, 5, 0')
    k('v_lshrrev_b32 v10, 3, v1')
    k(f'v_add_u32 v10, s{S_TOK}, v10')
    k('v_mul_u32_u24 v10, 1280, v10')
    k('v_and_b32 v11, 7, v1')
    k('v_lshrrev_b32 v12, 4, v1')
    k('v_xor_b32 v11, v11, v12')
    k('v_xor_b32 v13, 4, v11')
    k('v_lshl_add_u32 v2, v11, 4, v10')
    k('v_lshl_add_u32 v3, v13, 4, v10')
    k(f'v_add_u32 v3, {10240-1024}, v3')
    k(f'v_add_u32 v4, {2*(10240-1024)}, v2')
    k(f'v_add_u32 v5, {2*(10240-1024)}, v3')
    k(f's_lshl_b32 s47, s{S_W4}, 4')
    k('v_add_u32 v10, s47, v12')
    k('v_mul_u32_u24 v10, 3840, v10')
    k(f's_lshl_b32 s47, s{S_NT}, 8')
    k('v_add_u32 v10, s47, v10')
    k('v_bfe_u32 v11, v1, 2, 2')
    k('v_xor_b32 v11, v11, v12')
    k('v_lshl_add_u32 v10, v11, 6, v10')
    k('v_and_b32 v11, 3, v1')
    k('v_lshl_add_u32 v6, v11, 4, v10')
    for i in range(1, 4):
        k(f'v_add_u32 v{6+i}, {i*(4*3840-1024)}, v6')
    k(f's_lshl_b32 s{S_LW}, s{S_W4}, 12')
    tok = {}

    def issue(st):
        slot = st % P1_R
        k(f's_add_u32 m0, s{S_LW}, {slot*P1_SLOT}')
        k(f's_lshl_b32 s49, s{S_SIG}, 7')
        for i in range(4):
            k(f'buffer_load_dwordx4 v{2+i}, s[{S_X}:{S_X+3}], s49 offen offset:{i*1024} lds')
        k(f's_add_u32 m0, s{S_LW}, {slot*P1_SLOT+16384}')
        k(f's_mul_i32 s50, s{S_SIG}, {64*3840}')
        k(f's_add_u32 s{S_SIG}, s{S_SIG}, 1')
        k(f's_cmp_eq_u32 s{S_SIG}, 10')
        k(f's_cselect_b32 s{S_SIG}, 0, s{S_SIG}')
        for i in range(4):
            tok[st] = k(f'buffer_load_dwordx4 v{6+i}, s[{S_WQKV}:{S_WQKV+3}], s50 offen offset:{i*1024} lds')
    issue(0)
    issue(1)
    stamp(k, 1)
    k.wait(tok[0])
    k('s_barrier')
    stamp(k, 2)
    issue(2)
    issue(3)
    blk = k.capture(lambda: (g3.dma_setup(100), p2_setup(k)))
    nb_ = (len(blk) + 2) // 3
    for st in range(1, 10):
        k.wait(tok[st])
        k('s_barrier')
        if st + 3 < 10:
            issue(st + 3)
        if st == 6:
            stamp(k, 3)
            pf_wo(k, 120, 121)
        if 6 <= st <= 8:
            k.items.extend(blk[(st - 6) * nb_:(st - 5) * nb_])
    k(f's_branch {lab_e}')
    k.label(lab_h)
    for st in range(10):
        k('s_barrier')
    pf_wo(k, 120, 121)
    k.items.extend(blk)
    k.label(lab_e)
    join(k)
    nonce_from_lds(k, 122)
    stamp(k, 9)
    k('s_barrier')
    if OPT.get('wowait', 1):
        cnt_wait(k, 238, 239, 0, OPT.get('wowait', 1))
    stamp(k, 10)
    for st in range(5):
        runall(k, g3.dma_step(st))
    stamp(k, 11)


def p1_compute(k):
    tile1(k)
    S_NT, S_MT, S_TOK, S_LW, S_RHO = 44, 45, 46, 48, 56
    k(f's_lshl_b32 s{S_LW}, s{S_W4}, 12')
    for i in range(4):
        k(f'v_mov_b32 v{96+i}, -1')
    k('v_lshlrev_b32 v100, 4, v1')
    k('v_lshlrev_b32 v101, 3, v1')
    k('v_and_b32 v40, 31, v1')
    k('v_lshlrev_b32 v109, 3, v40')
    k('v_lshlrev_b32 v102, 2, v40')
    k(f's_lshl_b32 s51, s{S_RHO}, 14')
    k(f's_lshl_b32 s47, s{S_TOK}, 3')
    k('s_add_u32 s51, s51, s47')
    k(f's_add_u32 s51, s51, {WS_PS}')
    k(f's_mov_b32 s47, {OOB}')
    k(f's_cmp_lt_u32 s{S_NT}, 10')
    k('s_cselect_b32 s51, s51, s47')
    k(f's_mul_i32 s52, s{S_RHO}, 7680')
    k(f's_lshl_b32 s49, s{S_NT}, 9')
    k('s_add_u32 s52, s52, s49')
    k(f's_lshl_b32 s49, s{S_W4}, 7')
    k('s_add_u32 s52, s52, s49')
    k(f's_add_u32 s52, s52, {WS_PC}')
    k(f's_cmp_lt_u32 s{S_MT}, 10')
    k('s_cselect_b32 s52, s52, s47')
    k(f's_cmp_lt_u32 s{S_I32}, 30')
    k('s_cselect_b32 s51, s51, s47')
    k('s_cselect_b32 s52, s52, s47')
    k(f'buffer_store_dwordx2 {v(96,2)}, v109, {WSR}, s51 offen sc1')
    sctok = k(f'buffer_store_dword v96, v102, {WSR}, s52 offen sc1')
    NV = 252
    if OPT.get('tlb', 0) & 1:
        k('v_lshlrev_b32 v115, 20, v1')
        for n_, sr in enumerate((S_WS, S_WO, S_WG, S_WU, S_WD, S_OUT)):
            k(f's_cmp_eq_u32 s{S_W4}, {n_ % 4}')
            k(f's_cselect_b32 s60, 0, {OOB}')
            k(f'buffer_load_dword v{116+n_}, v115, s[{sr}:{sr+3}], s60 offen')
    if OPT.get('tlb', 0) & 2:
        k('v_and_b32 v115, 15, v1')
        k(f's_lshl_b32 s60, s{S_I32}, 4')
        k('v_add_u32 v115, s60, v115')
        k('v_lshlrev_b32 v115, 16, v115')
        k(f's_cmp_eq_u32 s{S_W4}, 1')
        k(f's_cselect_b32 s60, 0, {OOB}')
        k(f'buffer_load_dword v116, v115, {WSR}, s60 offen')
        k('v_and_b32 v115, 1, v1')
        k(f's_lshl_b32 s60, s{S_I32}, 1')
        k('v_add_u32 v115, s60, v115')
        k('v_lshlrev_b32 v115, 16, v115')
        for n_, sr in enumerate((S_WO, S_WG, S_WU, S_WD, S_OUT)):
            k(f's_cmp_eq_u32 s{S_W4}, {2 + n_ % 2}')
            k(f's_cselect_b32 s60, 0, {OOB}')
            k(f'buffer_load_dword v{117+n_}, v115, s[{sr}:{sr+3}], s60 offen')
    def warm():
        k('v_lshlrev_b32 v110, 7, v0')
        k(f's_and_b32 s60, s{S_X8}, 3')
        k('s_lshl_b32 s60, s60, 5')
        k(f's_add_u32 s60, s60, s{S_I32}')
        k('s_mul_i32 s60, s60, 20480')
        k('v_cmp_gt_u32 vcc, 160, v0')
        k(f'v_mov_b32 v111, {OOB}')
        k('v_cndmask_b32 v110, v111, v110, vcc')
        k(f'buffer_load_dword v111, v110, s[{S_X}:{S_X+3}], s60 offen')
        k('v_lshrrev_b32 v110, 4, v0')
        k('v_mul_u32_u24 v110, 3840, v110')
        k('v_and_b32 v112, 15, v0')
        k('v_lshl_add_u32 v110, v112, 7, v110')
        k(f's_mul_i32 s60, s{S_I32}, {20*3840}')
        k(f's_lshr_b32 s61, s{S_X8}, 2')
        k('s_mul_i32 s61, s61, 1792')
        k('s_add_u32 s60, s60, s61')
        k(f'buffer_load_dword v113, v110, s[{S_WQKV}:{S_WQKV+3}], s60 offen')
        k(f's_add_u32 s60, s60, {16*3840}')
        k(f's_mov_b32 s61, {OOB}')
        k(f's_cmp_eq_u32 s{S_W4}, 0')
        k('s_cselect_b32 s60, s60, s61')
        k(f'buffer_load_dword v114, v110, s[{S_WQKV}:{S_WQKV+3}], s60 offen')
    if OPT.get('warm', 0) == 1:
        warm()
    k('v_lshrrev_b32 v41, 5, v1')
    k('v_bfe_u32 v42, v1, 1, 3')
    k('v_xor_b32 v42, v42, v41')
    k('v_lshlrev_b32 v43, 7, v40')
    k('v_lshl_add_u32 v43, v42, 4, v43')
    k(f'v_add_u32 v10, s{S_LW}, v43')
    for ks in range(1, 4):
        k(f'v_xor_b32 v{10+ks}, {ks*32}, v10')
    k('v_bfe_u32 v42, v1, 2, 2')
    k('v_lshl_add_u32 v43, v41, 3, v42')
    k('v_lshlrev_b32 v43, 8, v43')
    k('v_bfe_u32 v44, v1, 4, 1')
    k('v_lshl_add_u32 v43, v44, 5, v43')
    k('v_and_b32 v44, 3, v1')
    k('v_lshl_add_u32 v43, v44, 3, v43')
    k('v_add_u32 v43, 16384, v43')
    for j in range(4):
        k(f's_add_u32 s49, s{S_W4}, {j}')
        k('s_and_b32 s49, s49, 3')
        k('v_xor_b32 v44, s49, v42')
        k(f'v_lshl_add_u32 v{14+j}, v44, 6, v43')
    for i in range(8):
        k(f'v_add_u32 v{18+i}, 65536, v{10+i}')
    VSUM, VSQ, VCS, VONE = 34, 35, 36, 37
    k(f'v_mov_b32 v{VSUM}, 0')
    k(f'v_mov_b32 v{VSQ}, 0')
    k(f'v_mov_b32 v{VCS}, 0')
    k(f'v_mov_b32 v{VONE}, 0x3f803f80')
    k('v_lshrrev_b32 v105, 5, v1')
    k(f'v_mul_u32_u24 v103, {5*16384}, v105')
    k('v_add_u32 v103, v103, v109')
    k(f'v_mul_u32_u24 v104, {5*7680}, v105')
    k('v_add_u32 v104, v104, v102')
    k(f's_lshl_b32 s53, s{S_TOK}, 3')
    k(f's_add_u32 s53, s53, {WS_PS}')
    k(f's_lshl_b32 s54, s{S_NT}, 9')
    k(f's_lshl_b32 s49, s{S_W4}, 7')
    k('s_add_u32 s54, s54, s49')
    k(f's_add_u32 s54, s54, {WS_PC}')
    k('s_sub_u32 s55, s56, 5')
    k('s_cmp_ge_u32 s56, 5')
    k('s_cselect_b32 s55, s55, s56')
    XF, WF, ACC = 40, 48, 128
    PR, PCR, FL = 232, 242, 248
    stamp(k, 1)
    def nonce_share():
        def blk():
            loop, done = k.newlabel('NL'), k.newlabel('ND')
            first = k.newlabel('NF')
            k(f's_branch {first}')
            k.label(loop)
            k.raw(f'    buffer_load_dword v{NV}, v{NV+1}, s[{S_DBG}:{S_DBG+3}], 0 offen sc1')
            k.label(first)
            k.raw('    s_waitcnt vmcnt(0)')
            k(f'v_readfirstlane_b32 s{S_NONCE}, v{NV}')
            k(f's_cmp_lg_u32 s{S_NONCE}, 0')
            k(f's_cbranch_scc1 {done}')
            k(f's_cmp_eq_u32 s{S_BUD}, 0')
            k(f's_cbranch_scc1 {done}')
            k(f's_sub_u32 s{S_BUD}, s{S_BUD}, 1')
            k('s_sleep 4')
            k(f's_branch {loop}')
            k.label(done)
            k(f'v_mov_b32 v{NV+1}, {XNONCE}')
            k.raw(f'    ds_write_b32 v{NV+1}, v{NV}')
            k.raw('    s_waitcnt lgkmcnt(0)')
        k(f's_cmp_eq_u32 s{S_W}, 0')
        k.outline('s_cbranch_scc1', blk)
        k.wait(sctok)

    def nonce_pre():
        def blk():
            k(f'v_mov_b32 v{NV+1}, 0')
            k.raw(f'    buffer_load_dword v{NV}, v{NV+1}, s[{S_DBG}:{S_DBG+3}], 0 offen sc1')
        k(f's_cmp_eq_u32 s{S_W}, 0')
        k.outline('s_cbranch_scc1', blk)

    def nonce_get():
        rflag_store(k, WS_F0, 2, 107, 108)
        nonce_from_lds(k, 107)
    k(f'v_mov_b32 v107, {XCNT}')
    k('v_mov_b32 v108, 0')
    k('ds_write_b32 v107, v108')
    k('ds_write_b32 v107, v108 offset:4')
    k.wait_all(vm=False)
    if OPT.get('warm', 0) == 3:
        k('s_sleep 20')
        warm()
    stamp(k, 2)
    k('s_barrier')
    nonce_pre()
    if OPT.get('warm', 0) == 2:
        warm()
    stamp(k, 3)
    lab_v, lab_h, lab_done = k.newlabel('P1_V'), k.newlabel('C_HELP'), k.newlabel('C_P1D')
    k(f's_cmp_ge_u32 s{S_I32}, 30')
    k(f's_cbranch_scc1 {lab_h}')
    k(f's_cmp_ge_u32 s{S_NT}, 10')
    k(f's_cbranch_scc1 {lab_v}')
    saved = k.snap()
    T = {}

    def part_loads(c):
        for n in range(5):
            c(f's_add_u32 s58, s53, {n*16384}')
            c(f'buffer_load_dwordx2 {v(PR+2*n,2)}, v103, {WSR}, s58 offen sc1')
        tok = None
        for n in range(5):
            c(f's_add_u32 s58, s54, {n*7680}')
            tok = c(f'buffer_load_dword v{PCR+n}, v104, {WSR}, s58 offen sc1')
        return tok

    def mainloop(transposed):
        rd = {}

        def reads(kk):
            st, ks = kk // 4, kk % 4
            slot = st % P1_R
            q, so = slot // 2, (slot % 2) * P1_SLOT
            b = kk % 2
            ops = [[] for _ in range(4)]
            ops[0].append(lambda: rd.__setitem__((kk, 'x'), k(
                f'ds_read_b128 {v(XF+4*b,4)}, v{10+8*q+ks} offset:{so}')))
            for j in range(4):
                for hf in range(2):
                    ops[j].append(lambda j=j, hf=hf: rd.__setitem__((kk, j), k(
                        f'ds_read_b64_tr_b16 {v(WF+16*b+4*j+2*hf,2)}, v{14+8*q+j} offset:{so+ks*4096+hf*1024}')))
            return ops
        for l_ in reads(0):
            runall(k, l_)
        clr = clear_ops(k, 96, 100)
        for kk in range(40):
            b = kk % 2
            if kk % 8 == 4:
                stamp(k, 4 + kk // 8)
            fill, rds = [], []
            if kk >= OPT.get('clr0', 31) and clr:
                fill.append(clr.pop(0))
            if kk + 1 < 40:
                if (kk + 1) % 4 == 0:
                    if kk == 7:
                        nonce_share()
                    k.wait_all(vm=False)
                    k('s_barrier')
                    if kk == 7:
                        nonce_get()
                rds = reads(kk + 1)
            if kk < 20:
                def dots(b=b, kk=kk):
                    for i in range(4):
                        k(f'v_dot2_f32_bf16 v{VSUM}, v{XF+4*b+i}, v{VONE}, v{VSUM}')
                        k(f'v_dot2_f32_bf16 v{VSQ}, v{XF+4*b+i}, v{XF+4*b+i}, v{VSQ}')
                        k(f'v_dot2_f32_bf16 v{VCS}, v{WF+16*b+i}, v{VONE}, v{VCS}')
                    if kk % 4 == 3:
                        xsum(k, VSUM, 80, 81)
                        xsum(k, VSQ, 80, 81)
                        xsum(k, VCS, 80, 81)
                        k.raw(f'    buffer_store_dwordx2 {v(VSUM,2)}, v109, {WSR}, s51 offen sc1')
                        k.raw(f'    buffer_store_dword v{VCS}, v102, {WSR}, s52 offen sc1')

                def g_(dots=dots, kk=kk):
                    k(f's_cmp_eq_u32 s55, {kk//4}')
                    k.outline('s_cbranch_scc1', dots)
                fill.append(g_)
            if kk == 22:
                fill.append(lambda: T.__setitem__('flags', flags_issue(k, WS_F0, FL, 106)))
            if kk == 30:
                def f():
                    flags_check(k, WS_F0, FL, 106, T['flags'])
                    T['part'] = part_loads(k)
                fill.append(f)
            if kk == 38:
                fill.append(lambda: finalize(transposed))
            mf = []
            for j in range(4):
                c = '0' if kk == 0 else v(ACC + 16 * j, 16)
                A_, B_ = v(WF + 16 * b + 4 * j, 4), v(XF + 4 * b, 4)
                if not transposed:
                    A_, B_ = B_, A_
                mf.append((lambda j=j: [rd[kk, 'x'], rd[kk, j]],
                           f'v_mfma_f32_32x32x16_bf16 {v(ACC+16*j,16)}, {A_}, {B_}, {c}'))
            roll_step(k, mf, rds, fill)

    def finalize(transposed):
        k.wait(T['part'])
        check_group(k, list(range(PR, PR + 10)) + list(range(PCR, PCR + 5)), 80, part_loads)
        for n in range(1, 5):
            k(f'v_pk_add_f32 {v(PR,2)}, {v(PR,2)}, {v(PR+2*n,2)}')
            k(f'v_add_f32 v{PCR}, v{PCR}, v{PCR+n}')
        xsum(k, PCR, 80, 81)
        k(f's_lshl_b32 s49, s{S_W4}, 7')
        k(f's_add_u32 s49, s49, {XCH}')
        k('v_add_u32 v82, s49, v102')
        k(f'ds_write_b32 v82, v{PCR}')
        vsum, vsq = PR, PR + 1
        xsum(k, vsum, 80, 81)
        xsum(k, vsq, 80, 81)
        k(f'v_mul_f32 v{vsum}, {f32(1.0/640)}, v{vsum}')
        k(f'v_mul_f32 v{vsq}, {f32(1.0/640)}, v{vsq}')
        k(f'v_fma_f32 v{vsq}, -v{vsum}, v{vsum}, v{vsq}')
        k(f'v_max_f32 v{vsq}, 0, v{vsq}')
        rbf(k, 80, vsum)
        rbf(k, 81, vsq)
        k(f'v_add_f32 v81, {f32(1e-5)}, v81')
        rbf(k, 81, 81)
        k('v_sqrt_f32 v81, v81')
        rbf(k, 81, 81)
        k('v_rcp_f32 v38, v81')
        if transposed:
            k(f's_mov_b32 s49, {f32(math.log2(math.e)/math.sqrt(20.0))}')
            k(f's_cmp_lt_u32 s{S_NT}, 5')
            k('s_cselect_b32 s49, s49, 1.0')
            k('v_mul_f32 v38, s49, v38')
        k('v_mul_f32 v39, v80, v38')
        k('v_sub_f32 v39, 0, v39')
        if not transposed:
            k(f's_lshl_b32 s49, s{S_W4}, 8')
            k(f's_add_u32 s49, s49, {XCH}')
            k('v_add_u32 v83, s49, v102')
            k('ds_write_b32 v83, v38 offset:1024')
            k('ds_write_b32 v83, v39 offset:1152')

    def fin():
        stamp(k, 10)
        k(f's_lshl_b32 s49, s{S_MT}, 4')
        k(f's_add_u32 s49, s49, s{S_NT}')
        k.wait_all()
        wflag_store(k, WS_F2, 49, 80, 81, 0)
        k(f's_branch {lab_done}')

    mainloop(True)
    stamp(k, 9)
    k.wait_all(vm=False)
    k('s_barrier')
    k(f's_lshl_b32 s49, s{S_TOK}, 3')
    k('v_add_u32 v84, s49, v109')
    k('v_lshl_add_u32 v84, v105, 14, v84')
    k('v_lshlrev_b32 v85, 4, v105')
    k(f'v_add_u32 v85, {XCH}, v85')
    toks = {}

    def csreads(j):
        k(f's_add_u32 s49, s{S_W4}, {j}')
        k('s_and_b32 s49, s49, 3')
        k('s_lshl_b32 s52, s49, 7')
        k('v_add_u32 v86, s52, v85')
        for a_ in range(4):
            toks[j, a_] = k(f'ds_read_b128 {v(192+16*(j%2)+4*a_,4)}, v86 offset:{a_*32}')
    csreads(0)
    csreads(1)
    for j in range(4):
        k(f's_add_u32 s49, s{S_W4}, {j}')
        k('s_and_b32 s49, s49, 3')
        k(f's_lshl_b32 s52, s{S_NT}, 5')
        k('s_lshl_b32 s53, s49, 3')
        k('s_add_u32 s52, s52, s53')
        k('s_lshl_b32 s52, s52, 14')
        C0 = 192 + 16 * (j % 2)
        for a_ in range(4):
            k.wait(toks[j, a_])
            r0 = ACC + 16 * j + 4 * a_
            for p in range(2):
                k(f'v_pk_mul_f32 {v(C0+4*a_+2*p,2)}, {v(C0+4*a_+2*p,2)}, {v(38,2)} op_sel:[0,1] op_sel_hi:[1,1]')
                k(f'v_pk_fma_f32 {v(r0+2*p,2)}, {v(r0+2*p,2)}, {v(38,2)}, {v(C0+4*a_+2*p,2)} op_sel_hi:[1,0,1]')
            k(f'v_cvt_pk_bf16_f32 v{112+2*a_}, v{r0}, v{r0+1}')
            k(f'v_cvt_pk_bf16_f32 v{113+2*a_}, v{r0+2}, v{r0+3}')
            k(f's_add_u32 s53, s52, {WS_QG + a_*32768}')
            k(f'buffer_store_dwordx2 {v(112+2*a_,2)}, v84, {WSR}, s53 offen sc1')
        if j + 2 < 4:
            csreads(j + 2)
    fin()
    k.label(lab_v)
    k.restore(saved)
    mainloop(False)
    stamp(k, 9)
    k.wait_all(vm=False)
    k('s_barrier')
    k(f's_lshl_b32 s49, s{S_W4}, 8')
    k(f's_add_u32 s49, s49, {XCH}')
    k('v_lshlrev_b32 v86, 4, v105')
    k('v_add_u32 v86, s49, v86')
    tl = []
    for a_ in range(4):
        tl.append(k(f'ds_read_b128 {v(192+4*a_,4)}, v86 offset:{1024+a_*32}'))
        tl.append(k(f'ds_read_b128 {v(208+4*a_,4)}, v86 offset:{1152+a_*32}'))
    for j in range(4):
        k(f's_add_u32 s52, s{S_W4}, {j}')
        k('s_and_b32 s52, s52, 3')
        k('s_lshl_b32 s52, s52, 7')
        k(f's_add_u32 s52, s52, {XCH}')
        k('v_add_u32 v87, s52, v102')
        tl.append(k(f'ds_read_b32 v{224+2*j}, v87'))
    k('v_mul_u32_u24 v84, 10240, v105')
    k('v_lshl_add_u32 v84, v102, 2, v84')
    k(f's_lshr_b32 s53, s{S_TOK}, 5')
    k('s_mul_i32 s53, s53, 40960')
    k(f's_sub_u32 s54, s{S_NT}, 10')
    k('s_lshl_b32 s54, s54, 11')
    k('s_add_u32 s53, s53, s54')
    k(f's_add_u32 s53, s53, {WS_VF}')
    k.wait(*tl)
    for j in range(4):
        k(f's_add_u32 s52, s{S_W4}, {j}')
        k('s_and_b32 s52, s52, 3')
        k('s_lshl_b32 s52, s52, 9')
        k('s_add_u32 s52, s52, s53')
        for m in range(2):
            for p in range(4):
                i = 8 * m + 2 * p
                r0 = ACC + 16 * j + i
                k(f'v_pk_mul_f32 {v(88+2*(p%2),2)}, {v(208+i,2)}, {v(224+2*j,2)} op_sel_hi:[1,0]')
                k(f'v_pk_fma_f32 {v(r0,2)}, {v(r0,2)}, {v(192+i,2)}, {v(88+2*(p%2),2)}')
                k(f'v_cvt_pk_bf16_f32 v{112+8*(j%2)+4*m+p}, v{r0}, v{r0+1}')
            k(f's_add_u32 s54, s52, {m*20480}')
            k(f'buffer_store_dwordx4 {v(112+8*(j%2)+4*m,4)}, v84, {WSR}, s54 offen sc1')
    fin()
    k.label(lab_h)
    k.restore(saved)
    nonce_share()
    k('s_barrier')
    nonce_get()
    for _ in range(8):
        k('s_barrier')
    runall(k, clear_ops(k, 96, 100))
    k('s_barrier')
    k(f's_lshl_b32 s49, s{S_X8}, 1')
    k(f's_add_u32 s49, s49, s{S_I32}')
    k('s_sub_u32 s49, s49, 30')
    k('s_lshl_b32 s49, s49, 4')
    k('s_add_u32 s49, s49, 15')
    k.wait_all()
    wflag_store(k, WS_F2, 49, 80, 81, 0)
    k.label(lab_done)


class G35:
    def __init__(self, k, which, groups, vb, sb):
        self.k = k
        self.which = which
        self.KT = 640 if which == 3 else 1536
        self.NST = self.KT // 128
        self.SB = S_WO if which == 3 else S_WD
        self.groups = groups
        self.vb = vb
        self.sb = sb
        self.btok = {}
        self.rtok = {}
        self.sr = 36 if which == 3 else 37

    def set_rho(self, sct):
        k = self.k
        sr = self.sr
        if not OPT.get('rot35', 1):
            k(f's_mov_b32 s{sr}, 0')
        elif self.which == 3:
            k(f's_sub_u32 s{sr}, s{sct}, 5')
            k(f's_cmp_ge_u32 s{sct}, 5')
            k(f's_cselect_b32 s{sr}, s{sr}, s{sct}')
        else:
            k(f's_mul_i32 s{sr}, s{sct}, 3')
            k(f's_lshr_b32 s{sr}, s{sr}, 1')

    def rot(self, c, st, sreg, stmp, mul, src=None):
        c(f's_add_u32 s{sreg}, s{self.sr if src is None else src}, {st}')
        c(f's_sub_u32 s{stmp}, s{sreg}, {self.NST}')
        c(f's_cmp_ge_u32 s{sreg}, {self.NST}')
        c(f's_cselect_b32 s{sreg}, s{stmp}, s{sreg}')
        c(f's_mul_i32 s{sreg}, s{sreg}, {mul}')

    def dma_setup(self, t0):
        k, vb, sb = self.k, self.vb, self.sb
        tile35(k, 61, 60, sb)
        self.set_rho(60)
        k('s_mul_i32 s60, s60, 160')
        k(f's_mul_i32 s{sb+1}, s{S_W4}, {(self.KT//4)*1280}')
        k(f's_add_u32 s60, s60, s{sb+1}')
        for n in range(5):
            k(f'v_add_u32 v{t0}, {64*n}, v1')
            k(f'v_mul_u32_u24 v{t0+1}, 6554, v{t0}')
            k(f'v_lshrrev_b32 v{t0+1}, 16, v{t0+1}')
            k(f'v_mul_u32_u24 v{t0+2}, 10, v{t0+1}')
            k(f'v_sub_u32 v{t0+2}, v{t0}, v{t0+2}')
            k(f'v_bfe_u32 v{t0+3}, v{t0+1}, 3, 1')
            k(f'v_lshlrev_b32 v{t0+3}, 2, v{t0+3}')
            k(f'v_xor_b32 v{t0+1}, v{t0+1}, v{t0+3}')
            k(f'v_mul_u32_u24 v{t0+1}, 1280, v{t0+1}')
            k(f'v_lshl_add_u32 v{vb+n}, v{t0+2}, 4, v{t0+1}')
            k(f'v_add_u32 v{vb+n}, s60, v{vb+n}')
            if 0 < n < 4:
                k(f'v_subrev_u32 v{vb+n}, {n*1024}, v{vb+n}')
        k(f's_mul_i32 s{sb}, s{S_W4}, 5120')

    def dma_step(self, st):
        k, vb, sb = self.k, self.vb, self.sb
        base = self.groups[st % len(self.groups)]
        SB = self.SB
        ops = []

        def f0():
            k(f's_add_u32 m0, s{sb}, {base}')
            self.rot(k, st, sb + 1, 38, 32 * 1280)
        ops.append(f0)
        for n in range(4):
            ops.append(lambda n=n: self.btok.__setitem__(st, k(
                f'buffer_load_dwordx4 v{vb+n}, s[{SB}:{SB+3}], s{sb+1} offen offset:{n*1024} lds')))
        ops.append(lambda: k(f's_add_u32 m0, s{sb}, {base+4096}'))
        ops.append(lambda: self.btok.__setitem__(st, k(
            f'buffer_load_dwordx4 v{vb+4}, s[{SB}:{SB+3}], s{sb+1} offen lds')))
        return ops

    def breg_load(self, st, r0):
        k, vb, sb, SB = self.k, self.vb, self.sb, self.SB
        self.rot(k, st, sb + 1, 38, 32 * 1280)
        for n in range(4):
            k(f'buffer_load_dwordx4 {v(r0+4*n,4)}, v{vb+n}, s[{SB}:{SB+3}], s{sb+1} offen offset:{n*1024}')
            if OPT.get('pace', 0):
                k(f's_sleep {OPT.get("pace")}')
        self.rtok[st] = (k(f'buffer_load_dwordx4 {v(r0+16,4)}, v{vb+4}, s[{SB}:{SB+3}], s{sb+1} offen'), r0)

    def breg_write(self, st, va):
        k = self.k
        tok, r0 = self.rtok[st]
        base = self.groups[st % len(self.groups)]
        q, so = base // 61440, base % 61440
        k.wait(tok)
        for n in range(5):
            self.btok[st] = k(f'ds_write_b128 v{va+q}, {v(r0+4*n,4)} offset:{so+n*1024}')

    def loader(self, nb_pre, st0=0):
        k, NST = self.k, self.NST
        NG = len(self.groups)
        k('v_lshlrev_b32 v12, 4, v1')
        k(f's_mul_i32 s46, s{S_W4}, 5120')
        k('v_add_u32 v21, s46, v12')
        k('v_add_u32 v22, 61440, v21')
        k('v_add_u32 v23, 122880, v21')
        stamp(k, st0)
        nb = nb_pre
        for st in range(NST):
            k.wait(self.btok[st])
            k('s_barrier')
            if nb < NST and nb - NG <= st - 1:
                if nb in self.rtok:
                    self.breg_write(nb, 21)
                else:
                    runall(k, self.dma_step(nb))
                nb += 1
        stamp(k, st0 + 3)

    def compute(self, own_tok, st0=0):
        k, NST, which, KT = self.k, self.NST, self.which, self.KT
        NG = len(self.groups)
        ABASE = WS_OC if which == 3 else WS_HC
        S_RT, S_CT, S_PAR = 44, 45, 50
        tile35(k, 44, 45, 46)
        self.set_rho(45)
        k('s_mov_b32 s50, 0')
        k(f's_mul_i32 s51, s{S_W4}, 5120')
        k('v_and_b32 v15, 15, v1')
        k('v_lshrrev_b32 v16, 4, v1')
        k('v_bfe_u32 v17, v1, 2, 2')
        k('v_lshl_add_u32 v18, v16, 3, v17')
        k('v_bfe_u32 v20, v1, 4, 1')
        k('v_lshlrev_b32 v20, 2, v20')
        k('v_xor_b32 v19, v18, v20')
        k('v_xor_b32 v22, 4, v19')
        k('v_and_b32 v21, 3, v1')
        RA = 24
        for hf, src in ((0, 19), (1, 22)):
            k(f'v_mul_u32_u24 v{RA+hf}, 160, v{src}')
            k(f'v_lshl_add_u32 v{RA+hf}, v21, 3, v{RA+hf}')
            k(f'v_add_u32 v{RA+hf}, s51, v{RA+hf}')
        QS = 61440
        for q in (1, 2):
            for i in range(2):
                k(f'v_add_u32 v{RA+2*q+i}, {q*QS}, v{RA+i}')
        k('v_lshlrev_b32 v2, 4, v1')
        k('v_lshlrev_b32 v3, 4, v15')
        k('v_lshl_add_u32 v3, v16, 15, v3')
        for tau in range(4):
            k(f's_add_u32 s46, s{S_W4}, {tau}')
            k('s_and_b32 s46, s46, 3')
            k('s_lshl_b32 s46, s46, 8')
            k(f'v_add_u32 v{4+tau}, s46, v3')
        k('s_lshl_b32 s53, s44, 10')
        k(f's_mul_i32 s54, s{S_W4}, {(KT//32)*32768}')
        k('s_add_u32 s53, s53, s54')
        k(f's_add_u32 s53, s53, {ABASE}')
        NW = 5
        AFR = 164
        atok = {}

        def aload(c, st, sreg):
            self.rot(c, st, sreg, 38, 4 * 32768)
            c(f's_add_u32 s{sreg}, s{sreg}, s53')
            t_ = None
            for t in range(4):
                t_ = c(f'buffer_load_dwordx4 {v(AFR+16*(st%NW)+4*t,4)}, v{4+t}, {WSR}, s{sreg} offen sc1')
            return t_
        RES = 244
        k(f's_lshl_b32 s46, s{S_RT}, 6')
        k(f's_lshl_b32 s47, s{S_W4}, 4')
        k('s_add_u32 s46, s46, s47')
        S_TK = 46
        k('v_add_u32 v12, s46, v15')
        if which == 3:
            k('v_mul_u32_u24 v13, 1280, v12')
            k('v_lshl_add_u32 v13, v16, 3, v13')
            k(f's_mul_i32 s47, s{S_CT}, 160')
            k(f's_lshl_b32 s48, s{S_PAR}, 5')
            k('s_add_u32 s48, s48, s47')
            k(f's_lshl_b32 s49, s{S_PAR}, 7')
            k('s_sub_u32 s49, 128, s49')
            k('s_add_u32 s49, s49, s47')
            for jt in range(4):
                k(f'buffer_load_dwordx2 {v(RES+2*jt,2)}, v13, s[{S_X}:{S_X+3}], s48 offen offset:{jt*32}')
            rtk = k(f'buffer_load_dwordx2 {v(RES+8,2)}, v13, s[{S_X}:{S_X+3}], s49 offen')
            tile4(k, 48, 49, 47)
            k('s_lshl_b32 s48, s48, 4')
            k('s_add_u32 s49, s49, s48')
            stamp(k, st0 - 1)
            k('s_barrier')
            rflag_store(k, WS_F3, 49, 8, 9)
            stamp(k, st0)
            if OPT.get('odelay', 0):
                k(f's_sleep {OPT.get("odelay")}')
        else:
            stamp(k, st0)
            k.wait(own_tok)
        stamp(k, st0 + 1)
        ACC, WF = 44, 124
        D = OPT.get('ad', 3)
        for st in range(D):
            atok[st] = aload(k, st, 54)
        rt = {}

        def reads(st):
            base = self.groups[st % NG]
            q, so = base // QS, base % QS
            b = st % 2
            ops = []
            for jt in range(5):
                for hf in range(2):
                    ops.append(lambda jt=jt, hf=hf: rt.__setitem__((st, jt), k(
                        f'ds_read_b64_tr_b16 {v(WF+20*b+4*jt+2*hf,2)}, v{RA+2*q+hf} offset:{so+jt*32}')))
            return ops
        if which == 5:
            k('s_barrier')
        runall(k, reads(0))
        na = D
        for st in range(NST):
            b = st % 2
            R0 = AFR + 16 * (st % NW)
            if which == 5 and OPT.get('p5st') and st >= 1:
                stamp(k, 12 + st)
            k.wait(atok[st])
            check_group(k, range(R0, R0 + 16), 14, lambda c, st=st: aload(c, st, 58))
            if st == 0:
                stamp(k, st0 + 2)
            if which == 5 and OPT.get('p5st') and st >= 1:
                stamp(k, st)
            mf = []
            for t in range(4):
                for jt in range(5):
                    acc = v(ACC + 20 * t + 4 * jt, 4)
                    c = '0' if st == 0 else acc
                    mf.append((lambda jt=jt: [rt[st, jt]],
                               f'v_mfma_f32_16x16x32_bf16 {acc}, {v(WF+20*b+4*jt,4)}, {v(R0+4*t,4)}, {c}'))
            rds = [[] for _ in range(20)]
            cnt = 0
            while na < NST and na <= st + NW - 1 and cnt < 2:
                def al(na=na):
                    self.rot(k, na, 54, 38, 4 * 32768)
                    k('s_add_u32 s54, s54, s53')
                rds[0 + 10 * cnt].append(al)
                for t in range(4):
                    rds[0 + 10 * cnt + 2 * t].append(lambda t=t, na=na: atok.__setitem__(na, k(
                        f'buffer_load_dwordx4 {v(AFR+16*(na%NW)+4*t,4)}, v{4+t}, {WSR}, s54 offen sc1')))
                na += 1
                cnt += 1
            if st + 1 < NST:
                if which == 5:
                    def bar():
                        k.wait_all(vm=False)
                        k('s_barrier')
                    rds[5].append(bar)
                for i, f in enumerate(reads(st + 1)):
                    rds[5 + i].append(f)
            roll_step(k, mf, rds, [])
        stamp(k, st0 + 3)
        for tau in range(1, 4):
            k(f's_add_u32 s47, s{S_W4}, {tau}')
            k('s_and_b32 s47, s47, 3')
            k('s_mul_i32 s47, s47, 15360')
            k(f'v_add_u32 v{17+tau}, s47, v2')
        k(f's_mul_i32 s47, s{S_W4}, 15360')
        k('v_add_u32 v21, s47, v2')
        k('s_barrier')
        for tau in range(1, 4):
            for jt in range(5):
                k(f'ds_write_b128 v{17+tau}, {v(ACC+20*tau+4*jt,4)} offset:{(tau-1)*5120+jt*1024}')
        k.wait_all(vm=False)
        k('s_barrier')
        S0, S1 = ACC, 124
        toks = {}
        for sidx in range(3):
            for jt in range(5):
                toks[sidx, jt] = k(f'ds_read_b128 {v(S1+20*sidx+4*jt,4)}, v21 offset:{sidx*5120+jt*1024}')
        for sidx in range(3):
            for jt in range(5):
                k.wait(toks[sidx, jt])
                for p in range(2):
                    r = 4 * jt + 2 * p
                    k(f'v_pk_add_f32 {v(S0+r,2)}, {v(S0+r,2)}, {v(S1+20*sidx+r,2)}')
        if which == 3:
            k('s_barrier')
            k.wait(rtk)
        stamp(k, st0 + 4)
        PK = 190
        for i in range(10):
            k(f'v_cvt_pk_bf16_f32 v{PK+i}, v{S0+2*i}, v{S0+2*i+1}')
        for i in range(10):
            k(f'v_lshlrev_b32 v{S0+2*i}, 16, v{PK+i}')
            k(f'v_and_b32 v{S0+2*i+1}, 0xffff0000, v{PK+i}')
            k(f'v_lshlrev_b32 v{S1+2*i}, 16, v{RES+i}')
            k(f'v_and_b32 v{S1+2*i+1}, 0xffff0000, v{RES+i}')
            k(f'v_pk_add_f32 {v(S0+2*i,2)}, {v(S0+2*i,2)}, {v(S1+2*i,2)}')
        if which == 3:
            PK = RES
        for i in range(10):
            k(f'v_cvt_pk_bf16_f32 v{PK+i}, v{S0+2*i}, v{S0+2*i+1}')
        if which == 3:
            k('v_lshlrev_b32 v13, 4, v12')
            k('v_lshrrev_b32 v14, 1, v16')
            k('v_lshl_add_u32 v13, v14, 15, v13')
            k('v_and_b32 v14, 1, v16')
            k('v_lshl_add_u32 v13, v14, 3, v13')
            k(f's_mul_i32 s47, s{S_CT}, 10')
            k(f's_lshl_b32 s48, s{S_PAR}, 1')
            k('s_add_u32 s48, s48, s47')
            k('s_lshl_b32 s48, s48, 15')
            k(f's_add_u32 s48, s48, {WS_H1}')
            k(f's_lshl_b32 s49, s{S_PAR}, 3')
            k('s_sub_u32 s49, 8, s49')
            k('s_add_u32 s49, s49, s47')
            k('s_lshl_b32 s49, s49, 15')
            k(f's_add_u32 s49, s49, {WS_H1}')
            for jt in range(4):
                k(f's_add_u32 s47, s48, {jt*65536}')
                k(f'buffer_store_dwordx2 {v(PK+2*jt,2)}, v13, {WSR}, s47 offen sc1')
            k(f'buffer_store_dwordx2 {v(PK+8,2)}, v13, {WSR}, s49 offen sc1')
            k('v_mov_b32 v152, 0')
            k('v_mov_b32 v153, 0')
            k('v_mov_b32 v154, 0x3f803f80')
            for i in range(10):
                k(f'v_dot2_f32_bf16 v152, v{PK+i}, v154, v152')
                k(f'v_dot2_f32_bf16 v153, v{PK+i}, v{PK+i}, v153')
            for r in (152, 153):
                xsum(k, r, 156, 157, 32)
                xsum(k, r, 156, 157, 16)
            k('v_lshlrev_b32 v14, 3, v12')
            k(f's_lshl_b32 s47, s{S_CT}, 14')
            k(f's_add_u32 s47, s47, {WS_HS}')
            k('s_mov_b64 exec, 0xffff')
            self.own = k(f'buffer_store_dwordx2 {v(152,2)}, v14, {WSR}, s47 offen sc1')
            k('s_mov_b64 exec, -1')
        else:
            P = 176
            k(f'v_mul_u32_u24 v13, {P}, v15')
            k('v_lshl_add_u32 v13, v16, 3, v13')
            k(f's_lshl_b32 s47, s{S_W4}, 12')
            k('s_add_u32 s47, s47, 65536')
            k('v_add_u32 v13, s47, v13')
            k(f's_lshl_b32 s48, s{S_PAR}, 5')
            k('v_add_u32 v14, s48, v13')
            k(f's_lshl_b32 s48, s{S_PAR}, 7')
            k('s_sub_u32 s48, 128, s48')
            k('v_add_u32 v13, s48, v13')
            for jt in range(4):
                k(f'ds_write_b64 v14, {v(PK+2*jt,2)} offset:{jt*32}')
            k(f'ds_write_b64 v13, {v(PK+8,2)}')
            k(f's_mul_i32 s48, s{S_CT}, 160')
            k(f's_mul_i32 s49, s{S_TK}, 1280')
            k('s_add_u32 s48, s48, s49')
            for it in range(3):
                k(f'v_add_u32 v17, {64*it}, v1')
                k('v_mul_u32_u24 v18, 6554, v17')
                k('v_lshrrev_b32 v18, 16, v18')
                k('v_mul_u32_u24 v19, 10, v18')
                k('v_sub_u32 v19, v17, v19')
                k(f'v_mul_u32_u24 v20, {P}, v18')
                k('v_lshl_add_u32 v20, v19, 4, v20')
                k(f'v_add_u32 v{160+it}, s47, v20')
                k('v_mul_u32_u24 v20, 1280, v18')
                k(f'v_lshl_add_u32 v{164+it}, v19, 4, v20')
            k.wait_all(vm=False)
            tl = [k(f'ds_read_b128 {v(168+4*it,4)}, v{160+it}') for it in range(3)]
            for it in range(3):
                k.wait(tl[it])
                if it == 2:
                    k('v_cmp_gt_u32 vcc, 32, v1')
                    k('s_mov_b64 exec, vcc')
                k(f'buffer_store_dwordx4 {v(168+4*it,4)}, v{164+it}, s[{S_OUT}:{S_OUT+3}], s48 offen sc1')
            k('s_mov_b64 exec, -1')


def p2_setup(k):
    LK, LV = 102400, 122880
    k(f's_and_b32 s45, s{S_I32}, 3')
    k(f's_lshl_b32 s44, s{S_X8}, 2')
    k('s_add_u32 s45, s45, s44')
    k(f's_lshr_b32 s44, s{S_I32}, 2')
    S_I, S_H = 44, 45
    k(f's_lshl_b32 s46, s{S_I}, 8')
    k('s_sub_u32 s47, s46, 256')
    k('s_max_i32 s47, s47, 0')
    k(f's_cmp_lt_u32 s{S_W4}, 2')
    k('s_cselect_b32 s48, s47, s46')
    k('s_mov_b32 s50, s48')
    k(f's_and_b32 s49, s{S_W4}, 1')
    k('s_lshl_b32 s49, s49, 7')
    k('s_add_u32 s48, s48, s49')
    k('s_lshl_b32 s48, s48, 3')
    k(f's_mul_i32 s49, s{S_H}, {5*16384}')
    k('s_add_u32 s48, s48, s49')
    k(f's_add_u32 s48, s48, {WS_KG}')
    k('v_lshlrev_b32 v2, 4, v1')
    k('s_lshr_b32 s50, s50, 3')
    k('s_mul_i32 s50, s50, 10240')
    k(f's_mul_i32 s49, s{S_H}, 320')
    k('s_add_u32 s50, s50, s49')
    k(f's_add_u32 s50, s50, {WS_VF}')
    k(f's_cmp_lt_u32 s{S_W}, 4')
    k('s_cselect_b32 s48, s48, s50')
    k('s_cselect_b64 s[96:97], -1, 0')
    k(f's_lshl_b32 s49, s{S_W4}, 10')
    k(f's_add_u32 s49, s49, {LK}')
    k(f's_mul_i32 s50, s{S_W4}, 5120')
    k(f's_add_u32 s50, s50, {LV}')
    k(f's_cmp_lt_u32 s{S_W}, 4')
    k('s_cselect_b32 s50, s49, s50')
    k('s_movk_i32 s56, 1024')
    k('s_cselect_b32 s56, 4096, s56')
    k(f's_and_b32 s49, s{S_W4}, 1')
    k('s_mul_i32 s49, s49, 320')
    for n in range(5):
        k(f'v_add_u32 v3, {n*64}, v1')
        k('v_add_u32 v3, s49, v3')
        k('v_mul_u32_u24 v4, 3277, v3')
        k('v_lshrrev_b32 v4, 16, v4')
        k('v_mul_u32_u24 v5, 20, v4')
        k('v_sub_u32 v5, v3, v5')
        k('v_mul_u32_u24 v4, 10240, v4')
        k(f'v_lshl_add_u32 v4, v5, 4, v4')
        k(f'v_add_u32 v5, {n*16384}, v2')
        k(f'v_cndmask_b32 v{6+n}, v4, v5, s[96:97]')
    k('v_and_b32 v12, 31, v1')
    k('v_lshrrev_b32 v13, 5, v1')
    k('v_lshlrev_b32 v14, 3, v12')
    k('v_lshl_add_u32 v15, v13, 15, v14')
    k(f's_lshl_b32 s51, s{S_W}, 5')
    k('s_add_u32 s51, s51, s46')
    S_Q0 = 51
    k('s_lshl_b32 s52, s51, 3')
    k(f's_mul_i32 s49, s{S_H}, {5*16384}')
    k('s_add_u32 s52, s52, s49')
    k(f's_add_u32 s52, s52, {WS_QG}')
    k('s_add_u32 s53, s52, 16384')
    k(f's_add_u32 s54, s52, {4*16384}')
    PM, NM, ONE, QF, KV, OACC, SB0 = 24, 32, 36, 40, 48, 72, 88
    k('v_lshlrev_b32 v3, 2, v13')
    for i in range(16):
        a_, b_ = i // 4, i % 4
        k(f'v_add_u32 v4, {8*a_+b_}, v3')
        k(f'v_cmp_le_u32 s[{64+2*i}:{65+2*i}], v4, v12')
    k('v_mov_b32 v5, 0xffff')
    k('v_mov_b32 v11, 0xffff0000')
    for p in range(8):
        k(f'v_cndmask_b32 v3, 0, v5, s[{64+4*p}:{65+4*p}]')
        k(f'v_cndmask_b32 v4, 0, v11, s[{66+4*p}:{67+4*p}]')
        k(f'v_or_b32 v{PM+p}, v3, v4')
    k('v_cmp_eq_u32 s[96:97], 1, v13')
    k('v_cmp_gt_u32 s[98:99], 20, v12')
    k('v_cmp_eq_u32 s[100:101], 0, v13')
    k(f's_lshl_b32 s49, s{S_W}, 8')
    k(f's_add_u32 s49, s49, {LK}')
    k('v_lshl_add_u32 v16, v13, 13, v14')
    k('v_add_u32 v16, s49, v16')
    k('v_add_u32 v17, s49, v14')
    k(f's_and_b32 s55, s{S_H}, 1')
    S_PI = 55
    k('v_bfe_u32 v3, v12, 3, 1')
    k('v_bfe_u32 v4, v12, 2, 1')
    k('v_and_b32 v5, 3, v12')
    k('v_lshl_add_u32 v18, v3, 2, v5')
    k('v_lshl_add_u32 v18, v4, 3, v18')
    k('s_lshl_b32 s49, s55, 2')
    k('v_add_u32 v18, s49, v18')
    k('s_lshl_b32 s49, s55, 4')
    k('s_sub_u32 s49, 16, s49')
    k('v_add_u32 v19, s49, v5')
    k('v_cmp_gt_u32 vcc, 16, v12')
    k('v_cndmask_b32 v18, v19, v18, vcc')
    k('v_mul_u32_u24 v19, 320, v13')
    k('v_lshl_add_u32 v18, v18, 4, v19')
    k(f's_mul_i32 s49, s{S_W}, 1280')
    k(f's_add_u32 s49, s49, {LV}')
    k('v_add_u32 v18, s49, v18')
    k('v_mov_b32 v19, 0')
    k('v_mov_b32 v4, 0x3f803f80')
    k('v_cmp_eq_u32 vcc, 20, v12')
    k('v_cndmask_b32 v19, v19, v4, vcc')
    k('v_cmp_eq_u32 vcc, 24, v12')
    k('v_cndmask_b32 v19, v19, v4, vcc')
    for b in range(3):
        k(f'v_mov_b32 v{KV+8*b+6}, 0')
        k(f'v_mov_b32 v{KV+8*b+7}, 0')
    k(f'v_mov_b32 v{QF+6}, 0')
    k(f'v_mov_b32 v{QF+7}, 0')
    k(f'v_cndmask_b32 v{ONE}, v4, 0, s[96:97]')
    for i in range(1, 4):
        k(f'v_mov_b32 v{ONE+i}, 0')
        k(f'v_mov_b32 v{NM+i}, 0')
    k('v_and_b32 v3, 15, v1')
    k(f's_mul_i32 s49, s{S_H}, 20')
    k('s_mov_b64 s[46:47], 0')
    for base, isq in ((0, True), (640, False), (1280, False)):
        for e in (0, 19):
            k(f's_add_u32 s60, s49, {base+e}')
            k('s_lshr_b32 s60, s60, 7')
            k('v_cmp_eq_u32 vcc, s60, v3')
            if isq:
                k('s_and_b64 vcc, vcc, s[96:97]')
            k('s_or_b64 s[46:47], s[46:47], vcc')
    k(f's_cmp_eq_u32 s{S_I}, 0')
    k('s_cselect_b32 s46, 0, s46')
    k(f's_lshl_b32 s49, s{S_I}, 7')
    k(f's_lshl_b32 s60, s{S_X8}, 10')
    k('s_add_u32 s49, s49, s60')
    k(f's_add_u32 s49, s49, {WS_F2 - 128}')
    k('v_lshlrev_b32 v3, 2, v1')


def emit_p2(k, g3):
    LK, LV = 102400, 122880
    S_I, S_H, S_Q0, S_PI = 44, 45, 51, 55
    PM, NM, ONE, QF, KV, OACC, SB0 = 24, 32, 36, 40, 48, 72, 88
    wflag_poll(k, 49, 3, 4, 46, 1, True)
    k('s_barrier')
    stamp(k, 12)
    k('s_mov_b32 m0, s50')
    for n in range(5):
        if n:
            k('s_add_u32 m0, m0, s56')
        k(f'buffer_load_dwordx4 v{6+n}, {WSR}, s48 offen sc1 lds')
    k(f'buffer_load_dwordx2 {v(QF,2)}, v15, {WSR}, s52 offen sc1')
    k(f'buffer_load_dwordx2 {v(QF+2,2)}, v15, {WSR}, s53 offen sc1')
    qt = k(f'buffer_load_dwordx2 {v(QF+4,2)}, v14, {WSR}, s54 offen sc1')
    k.wait(qt)
    k(f'v_cndmask_b32 v{QF+4}, v{QF+4}, 0, s[96:97]')
    k(f'v_cndmask_b32 v{QF+5}, v{QF+5}, 0, s[96:97]')
    k('s_barrier')
    if OPT.get('prio', 0):
        k(f's_cmp_ge_u32 s{S_W}, 4')
        k.outline('s_cbranch_scc1', lambda: k('s_setprio 1'))
    stamp(k, 13)
    pf, hc = [], []
    for i in range(4):
        k(f'v_mov_b32 v{244+i}, -1')
    tile4(k, 60, 61, 56)
    k('s_mul_i32 s61, s61, 12')
    k('s_lshl_b32 s61, s61, 15')
    k('s_lshl_b32 s60, s60, 11')
    k('s_add_u32 s56, s61, s60')
    k(f's_add_u32 s56, s56, {WS_HC}')
    for n in range(3):
        k(f's_mul_i32 s60, s{S_W}, 3')
        k(f's_add_u32 s60, s60, {n}')
        k('s_and_b32 s61, s60, 1')
        k('s_lshl_b32 s61, s61, 10')
        k('s_lshr_b32 s60, s60, 1')
        k('s_lshl_b32 s60, s60, 15')
        k('s_add_u32 s60, s60, s61')
        k('s_add_u32 s60, s60, s56')
        k(f'buffer_store_dwordx4 {v(244,4)}, v2, {WSR}, s60 offen sc1')
    if OPT.get('wgu', 2) == 2:
        k(f's_cmp_lt_u32 s{S_W}, 4')
        k.outline('s_cbranch_scc1', lambda: pf_wgu(k, 238, 239))

    def slot(i):
        return SB0 + 16 * i
    krd = {}

    def kreads(j):
        b = j % 3
        krd[j] = [k(f'ds_read_b64 {v(KV+8*b,2)}, v16 offset:{j*256}'),
                  k(f'ds_read_b64 {v(KV+8*b+2,2)}, v16 offset:{4096+j*256}'),
                  k(f'ds_read_b64 {v(KV+8*b+4,2)}, v17 offset:{16384+j*256}')]
    kreads(0)
    kreads(1)
    for j in range(9):
        b = j % 3
        d = v(slot(j), 16)
        k.wait(*krd[j])
        k(f'v_mfma_f32_32x32x16_bf16 {d}, {v(KV+8*b,4)}, {v(QF,4)}, 0')
        if j + 2 < 9:
            kreads(j + 2)
        k(f'v_mfma_f32_32x32x16_bf16 {d}, {v(KV+8*b+4,4)}, {v(QF+4,4)}, {d}')
    stamp(k, 14)
    lab = k.newlabel('P2_FIX')
    k(f's_cmp_lg_u32 s{S_I}, 0')
    k(f's_cbranch_scc1 {lab}')
    for jj in range(8):
        k(f's_cmp_ge_u32 s{S_W}, {8-jj}')
        k(f's_cbranch_scc1 {lab}')
        for i in range(16):
            k(f'v_mov_b32 v{slot(jj)+i}, {f32(-1e30)}')
    k.label(lab)
    for i in range(16):
        k(f'v_mov_b32 v{KV+i}, v19')
    M0, M1 = 20, 21
    ops = []
    regs = [slot(jj) + i for jj in (1, 2, 3, 4, 5, 6, 7, 0) for i in range(16)]
    for i in range(16):
        ops.append(f'v_cndmask_b32 v{slot(0)+i}, v{slot(0)+i}, v{slot(8)+i}, s[{64+2*i}:{65+2*i}]')
    ops += [f'v_max3_f32 v{M0}, v{regs[0]}, v{regs[1]}, v{regs[2]}',
            f'v_max3_f32 v{M1}, v{regs[3]}, v{regs[4]}, v{regs[5]}']
    i, t = 6, 0
    while i < 128:
        m = M0 if t % 2 == 0 else M1
        ops.append(f'v_max3_f32 v{m}, v{m}, v{regs[i]}, v{regs[i+1]}')
        i += 2
        t += 1
    ops += [f'v_max_f32 v{M0}, v{M0}, v{M1}',
            f'v_mov_b32 v{M1}, v{M0}',
            f'v_permlane32_swap_b32 v{M0}, v{M1}',
            f'v_max_f32 v{M0}, v{M0}, v{M1}',
            f'v_sub_f32 v{M0}, 0, v{M0}',
            f'v_cvt_pk_bf16_f32 v{M1}, v{M0}, v{M0}',
            f'v_lshlrev_b32 v{M1}, 16, v{M1}',
            f'v_sub_f32 v{M1}, v{M0}, v{M1}',
            f'v_cvt_pk_bf16_f32 v{NM}, v{M0}, v{M1}',
            f'v_cndmask_b32 v{NM}, v{NM}, 0, s[96:97]']
    spread(k, ops, pf[:2])
    pf = pf[2:]
    stamp(k, 15)
    vrd = {}
    nbuf = [0]

    def vreads(jkey):
        toks, bufs = [], []
        k('s_mov_b64 exec, s[98:99]')
        for m in range(2):
            bi = nbuf[0] % 4
            nbuf[0] += 1
            bufs.append(bi)
            toks.append(k(f'ds_read_b128 {v(KV+4*bi,4)}, v18 offset:{jkey*1280+m*640}'))
        k('s_mov_b64 exec, -1')
        vrd[jkey] = (toks, bufs)
    first = [True]
    oacc = v(OACC, 16)

    def pv_ops(jkey, preg):
        o = []
        for m in range(2):
            def f(m=m):
                toks, bufs = vrd[jkey]
                k.wait(toks[m])
                c = '0' if first[0] else oacc
                first[0] = False
                k(f'v_mfma_f32_32x32x16_bf16 {oacc}, {v(KV+4*bufs[m],4)}, {v(preg+4*m,4)}, {c}')
            o.append(f)
        return o

    def sub_op(jb):
        d = v(slot(jb), 16)
        return f'v_mfma_f32_32x32x16_bf16 {d}, {v(ONE,4)}, {v(NM,4)}, {d}'
    order = [1, 2, 3, 4, 5, 6, 7, 0]
    k(sub_op(order[0]))
    k(sub_op(order[1]))
    vreads(order[0])
    for n, jb in enumerate(order):
        base = slot(jb)
        val = [f'v_exp_f32 v{base+i}, v{base+i}' for i in range(16)]
        val += [f'v_cvt_pk_bf16_f32 v{base+p}, v{base+2*p}, v{base+2*p+1}' for p in range(8)]
        if jb == 0:
            val += [f'v_and_b32 v{base+8+p}, v{PM+p}, v{base+p}' for p in range(8)]
            val += [f'v_bfi_b32 v{base+p}, v{PM+p}, 0, v{base+p}' for p in range(8)]
        side = []
        if n >= 1:
            side += pv_ops(order[n - 1], slot(order[n - 1]))
        nxt = order[n + 1] if n + 1 < 8 else 8
        side.append(lambda nxt=nxt: vreads(nxt))
        if n + 2 < 8:
            side.append(sub_op(order[n + 2]))
        if pf:
            side.append(pf.pop(0))
        if hc and (n % 2 == 1 or OPT.get('wgulate')):
            side.insert(1, hc.pop(0))
        if OPT.get('wgulate') and pf:
            side.append(pf.pop(0))
        spread(k, val, side)
    tail = pv_ops(0, slot(0)) + pv_ops(8, slot(0) + 8)
    addr = [f's_lshr_b32 s49, s{S_H}, 1', 's_mul_i32 s49, s49, 5', f's_mul_i32 s52, s{S_PI}, 3',
            's_add_u32 s52, s52, s49', 's_lshl_b32 s52, s52, 15', f's_add_u32 s52, s52, {WS_OC}',
            f's_lshl_b32 s53, s{S_Q0}, 4', 's_add_u32 s52, s52, s53', 's_add_u32 s54, s49, 2',
            's_lshl_b32 s54, s54, 15', f's_add_u32 s54, s54, {WS_OC}', 's_add_u32 s54, s54, s53',
            f's_lshl_b32 s49, s{S_PI}, 3', 's_add_u32 s54, s54, s49', 'v_lshlrev_b32 v22, 4, v12',
            'v_lshl_add_u32 v23, v13, 15, v22']
    ftok = flags_issue(k, WS_F2, 240, 237)
    spread(k, addr, tail)
    stamp(k, 18)
    T = OACC
    k(f'v_cndmask_b32 v{T+13}, v{T+12}, v{T+8}, s[96:97]')
    k(f'v_rcp_f32 v{T+14}, v{T+13}')
    for p in range(6):
        k(f'v_pk_mul_f32 {v(T+2*p,2)}, {v(T+2*p,2)}, {v(T+14,2)} op_sel_hi:[1,0]')
    for p in range(6):
        k(f'v_cvt_pk_bf16_f32 v{104+p}, v{T+2*p}, v{T+2*p+1}')
    k(f'buffer_store_dwordx4 {v(104,4)}, v23, {WSR}, s52 offen sc1')
    k('s_mov_b64 exec, s[100:101]')
    own = k(f'buffer_store_dwordx2 {v(108,2)}, v22, {WSR}, s54 offen sc1')
    k('s_mov_b64 exec, -1')
    k.wait_all(vm=False)
    k('s_setprio 0')
    flags_check(k, WS_F2, 240, 237, ftok)
    return own


class P4:
    BS = [102400, 126976, 0, 24576, 49152, 73728]

    def __init__(self, k):
        self.k = k
        self.stok = {}
        self.rtok = {}
        self.VB = 2

    def setup_dma(self, t0):
        k = self.k
        VB = self.VB
        tile4(k, 61, 60, 68)
        k('s_mul_i32 s76, s60, %d' % OPT.get('rot4', 3))
        k('s_add_u32 s76, s76, s61')
        k('s_mul_i32 s77, s76, 6554')
        k('s_lshr_b32 s77, s77, 16')
        k('s_mul_i32 s77, s77, 10')
        k('s_sub_u32 s76, s76, s77')
        k(f's_cmp_lt_u32 s{S_W4}, 2')
        k(f's_cselect_b32 s64, s{S_WG}, s{S_WU}')
        k(f's_cselect_b32 s65, s{S_WG+1}, s{S_WU+1}')
        k('s_mov_b32 s66, 1966080')
        k('s_mov_b32 s67, 0x00020000')
        k(f's_and_b32 s61, s{S_W4}, 1')
        k(f's_mul_i32 s61, s61, {32*3072}')
        k('s_mul_i32 s60, s60, 192')
        k('s_add_u32 s60, s60, s61')
        for n in range(3):
            k(f'v_add_u32 v{t0}, {n*64}, v1')
            k(f'v_mul_u32_u24 v{t0+1}, 5462, v{t0}')
            k(f'v_lshrrev_b32 v{t0+1}, 16, v{t0+1}')
            k(f'v_mul_u32_u24 v{t0+2}, 12, v{t0+1}')
            k(f'v_sub_u32 v{t0+2}, v{t0}, v{t0+2}')
            k(f'v_mul_u32_u24 v{t0+1}, 3072, v{t0+1}')
            k(f'v_lshl_add_u32 v{VB+n}, v{t0+2}, 4, v{t0+1}')
            k(f'v_add_u32 v{VB+n}, s60, v{VB+n}')
            if n:
                k(f'v_subrev_u32 v{VB+n}, {n*1024}, v{VB+n}')
        k(f's_mul_i32 s68, s{S_W4}, 6144')

    def sig(self, c, st, sreg, stmp):
        c(f's_add_u32 s{sreg}, s76, {st}')
        c(f's_sub_u32 s{stmp}, s{sreg}, 10')
        c(f's_cmp_ge_u32 s{sreg}, 10')
        c(f's_cselect_b32 s{sreg}, s{stmp}, s{sreg}')

    def dma_stage(self, st):
        k = self.k
        base = self.BS[st % 6]
        self.sig(k, st, 69, 77)
        k(f's_mul_i32 s69, s69, {64*3072}')
        for per in range(2):
            k(f's_add_u32 m0, s68, {base+per*3072}')
            if per:
                k(f's_add_u32 s69, s69, {16*3072}')
            for n in range(3):
                self.stok[st] = k(f'buffer_load_dwordx4 v{self.VB+n}, s[64:67], s69 offen offset:{n*1024} lds')

    BR = 124

    def breg_load(self, st):
        k = self.k
        r0 = self.BR + 24 * (st - 6)
        self.sig(k, st, 69, 77)
        k(f's_mul_i32 s69, s69, {64*3072}')
        for per in range(2):
            if per:
                k(f's_add_u32 s69, s69, {16*3072}')
            for n in range(3):
                self.rtok[st] = k(f'buffer_load_dwordx4 {v(r0+12*per+4*n,4)}, v{self.VB+n}, s[64:67], s69 offen offset:{n*1024}')

    def breg_write(self, st):
        k = self.k
        r0 = self.BR + 24 * (st - 6)
        base = self.BS[st % 6]
        reg, off = (47, base - 102400) if base >= 102400 else (46, base)
        assert off + 6144 < 65536
        k.wait(self.rtok[st])
        for i in range(6):
            self.stok[st] = k(f'ds_write_b128 v{reg}, {v(r0+4*i,4)} offset:{off+i*1024}')

    def pre_colsum(self):
        k = self.k
        CA = 60
        k('v_lshlrev_b32 v46, 4, v1')
        k('v_add_u32 v46, s68, v46')
        k('v_add_u32 v47, 102400, v46')
        k.wait(self.stok[0])
        tk = [k(f'ds_read_b128 {v(84+4*i,4)}, v47 offset:{i*1024}') for i in range(6)]
        for n in range(3):
            k.wait(tk[n], tk[n + 3])
            for p in range(4):
                k(f'v_lshlrev_b32 v{CA+8*n+2*p}, 16, v{84+4*n+p}')
                k(f'v_and_b32 v{CA+8*n+2*p+1}, 0xffff0000, v{84+4*n+p}')
                k(f'v_lshlrev_b32 v{28+2*(p%2)}, 16, v{96+4*n+p}')
                k(f'v_and_b32 v{29+2*(p%2)}, 0xffff0000, v{96+4*n+p}')
                k(f'v_pk_add_f32 {v(CA+8*n+2*p,2)}, {v(CA+8*n+2*p,2)}, {v(28+2*(p%2),2)}')

    def pre_colsum_write(self):
        k = self.k
        CA = 60
        k('v_lshlrev_b32 v16, 5, v1')
        k('v_add_u32 v16, s68, v16')
        k('v_add_u32 v16, 73728, v16')
        for n in range(3):
            k(f'ds_write_b128 v16, {v(CA+8*n,4)} offset:{n*2048}')
            k(f'ds_write_b128 v16, {v(CA+8*n+4,4)} offset:{n*2048+16}')
        k.wait_all(vm=False)

    def loader_setup(self, g5):
        k = self.k
        tile4(k, 44, 45, 46)
        g5.dma_setup(40)
        k('v_cmp_le_u32 vcc, 96, v0')
        k(f'v_mov_b32 v16, {12288-384}')
        k('v_cndmask_b32 v17, 0, v16, vcc')
        k('v_lshl_add_u32 v17, v0, 2, v17')
        k('v_add_u32 v17, 73728, v17')
        k(f'v_mov_b32 v16, {6144-384}')
        k('v_cndmask_b32 v18, 0, v16, vcc')
        k('v_lshl_add_u32 v18, v0, 2, v18')
        k('v_cmp_gt_u32 vcc, 192, v0')
        k('v_cndmask_b32 v19, 0, v18, vcc')
        k(f'v_mov_b32 v16, {OOB}')
        k('v_cndmask_b32 v18, v16, v18, vcc')
        k('s_mul_i32 s51, s45, 384')
        k(f's_add_u32 s51, s51, {WS_PCS}')
        k('s_mul_i32 s52, s44, 12288')
        k('s_add_u32 s52, s52, s51')
        k(f's_mov_b32 s47, {OOB}')
        k('s_cmp_lt_u32 s44, 10')
        k('s_cselect_b32 s52, s52, s47')

    def colsum_reduce(self):
        k = self.k
        rr = list(range(84, 116))
        for half in range(4):
            tk = []
            for r in range(8):
                x = (half % 2) * 8 + r
                tk.append(k(f'ds_read_b32 v{rr[8*half+r]}, v17 offset:{x*384+(half//2)*6144}'))
            k.wait(*tk)
        for stp in (16, 8, 4, 2, 1):
            for i in range(stp):
                k(f'v_add_f32 v{rr[i]}, v{rr[i]}, v{rr[i+stp]}')
        k(f'buffer_store_dword v{rr[0]}, v18, {WSR}, s52 offen sc1')

    def loader(self, g5):
        k = self.k

        def gather(c):
            t = None
            for r in range(10):
                c(f's_add_u32 s58, s51, {r*12288}')
                t = c(f'buffer_load_dword v{24+r}, v19, {WSR}, s58 offen sc1')
            return t
        T = {}
        g5regs = {2 + i: 60 + 20 * i for i in range(9)}
        k('v_lshlrev_b32 v12, 4, v1')
        k(f's_mul_i32 s46, s{S_W4}, 5120')
        k('v_add_u32 v21, s46, v12')
        k('v_add_u32 v22, 61440, v21')
        k('v_add_u32 v23, 122880, v21')
        for st in range(7):
            k.wait(self.stok[st])
            if st == 6:
                k.wait(self.stok[9])
            k.wait_all(vm=False)
            k('s_barrier')
            if st == 0:
                stamp(k, 32)
                self.colsum_reduce()
            if st == 1:
                self.dma_stage(5)
            if 1 <= st <= 4:
                self.dma_stage(st + 5)
            if st == 4:
                T['g'] = gather(k)
                pf_wd(k, 36, 37)
            if st == 5:
                k.wait(T['g'])
                check_group(k, range(24, 34), 11, gather, slp=8)
                for r in range(1, 10):
                    k(f'v_add_f32 v24, v24, v{24+r}')
                k('v_lshlrev_b32 v16, 2, v0')
                k(f'v_add_u32 v16, {XCH}, v16')
                k('ds_write_b32 v16, v24')
        stamp(k, 36)
        runall(k, g5.dma_step(0))
        runall(k, g5.dma_step(1))
        NR1 = OPT.get('nr1', 6)
        for s5 in range(2, 2 + NR1):
            g5.breg_load(s5, g5regs[s5])
        stamp(k, 38)
        cnt_wait(k, 38, 39, 1, 4, bound=200000)
        for s5 in range(2, 7):
            g5.breg_write(s5, 21)
        for s5 in range(2 + NR1, 11):
            g5.breg_load(s5, g5regs[s5])
        stamp(k, 39)

    def compute(self, own_tok):
        k = self.k
        tile4(k, 44, 45, 46)
        S_MT, S_FT, S_TOK = 44, 45, 46
        k('s_lshl_b32 s46, s44, 7')
        k(f's_lshl_b32 s47, s{S_W4}, 5')
        k('s_add_u32 s46, s46, s47')
        k('v_and_b32 v13, 31, v1')
        k('v_lshrrev_b32 v14, 5, v1')
        k('v_lshlrev_b32 v5, 4, v13')
        k('v_lshl_add_u32 v5, v14, 15, v5')
        k('v_bfe_u32 v15, v1, 2, 2')
        k('v_lshl_add_u32 v15, v14, 3, v15')
        k('v_mul_u32_u24 v15, 192, v15')
        k('v_bfe_u32 v16, v1, 4, 1')
        k('v_lshl_add_u32 v15, v16, 5, v15')
        k('v_and_b32 v16, 1, v1')
        k('v_lshl_add_u32 v15, v16, 4, v15')
        k('v_bfe_u32 v16, v1, 1, 1')
        k('v_lshl_add_u32 v6, v16, 3, v15')
        k('v_add_u32 v7, 49152, v6')
        k('v_add_u32 v8, 102400, v6')
        rbase = {0: (6, 0), 24576: (6, 24576), 49152: (7, 0), 73728: (7, 24576), 102400: (8, 0), 126976: (8, 24576)}
        k('s_mul_i32 s76, s45, %d' % OPT.get('rot4', 3))
        k('s_add_u32 s76, s76, s44')
        k('s_mul_i32 s77, s76, 6554')
        k('s_lshr_b32 s77, s77, 16')
        k('s_mul_i32 s77, s77, 10')
        k('s_sub_u32 s76, s76, s77')
        k('s_lshl_b32 s50, s46, 4')
        k(f's_add_u32 s50, s50, {WS_H1}')
        AFR = 180
        atok = {}

        def abase(c, st, sreg, stmp):
            self.sig(c, st, sreg, stmp)
            c(f's_lshl_b32 s{sreg}, s{sreg}, 18')
            c(f's_add_u32 s{sreg}, s{sreg}, s50')

        def aone(c, st, ks, sreg):
            if ks:
                c(f's_add_u32 s{sreg}, s{sreg}, 65536')
            return c(f'buffer_load_dwordx4 {v(AFR+16*(st%4)+4*ks,4)}, v5, {WSR}, s{sreg} offen sc1')

        def astage(c, st, sreg, stmp):
            abase(c, st, sreg, stmp)
            t = None
            for ks in range(4):
                t = aone(c, st, ks, sreg)
            return t
        k('v_lshlrev_b32 v9, 3, v13')
        k('v_lshl_add_u32 v9, v14, 16, v9')
        k(f's_lshl_b32 s51, s{S_TOK}, 3')
        k(f's_add_u32 s51, s51, {WS_HS}')
        HSR = 20

        def hsload(c):
            t = None
            for n in range(4):
                c(f's_add_u32 s58, s51, {n*16384}')
                t = c(f'buffer_load_dwordx2 {v(HSR+2*n,2)}, v9, {WSR}, s58 offen sc1')
            return t
        k('v_lshlrev_b32 v10, 5, v14')
        k(f'v_add_u32 v10, {XCH}, v10')
        ACC, WF = 36, 132

        def csload(p, base):
            t = None
            for mtx in range(2):
                for q in range(4):
                    off = mtx * 384 + p * 128 + (q // 2) * 64 + (q % 2) * 16
                    t = k(f'ds_read_b128 {v(base+16*mtx+4*q,4)}, v10 offset:{off}')
            return t
        rt = {}

        def reads(kk):
            st, ks = kk // 4, kk % 4
            reg, so = rbase[self.BS[st % 6]]
            b = kk % 2
            ops = [[] for _ in range(6)]
            for j in range(6):
                for hf in range(2):
                    off = so + (j // 3) * 12288 + ks * 3072 + hf * 768 + (j % 3) * 64
                    ops[j].append(lambda j=j, hf=hf, off=off: rt.__setitem__((kk, j), k(
                        f'ds_read_b64_tr_b16 {v(WF+24*b+4*j+2*hf,2)}, v{reg} offset:{off}')))
            return ops
        T = {}

        def stats():
            k.wait(T['hs'])
            check_group(k, range(HSR, HSR + 8), 11, hsload)
            for n in range(1, 4):
                k(f'v_pk_add_f32 {v(HSR,2)}, {v(HSR,2)}, {v(HSR+2*n,2)}')
            VSUM, VSQ = HSR, HSR + 1
            xsum(k, VSUM, 24, 25)
            xsum(k, VSQ, 24, 25)
            k(f'v_mul_f32 v{VSUM}, {f32(1.0/640)}, v{VSUM}')
            k(f'v_mul_f32 v{VSQ}, {f32(1.0/640)}, v{VSQ}')
            k(f'v_fma_f32 v{VSQ}, -v{VSUM}, v{VSUM}, v{VSQ}')
            k(f'v_max_f32 v{VSQ}, 0, v{VSQ}')
            rbf(k, 24, VSUM)
            k('v_sub_f32 v26, 0, v24')
            rbf(k, 25, VSQ)
            k(f'v_add_f32 v25, {f32(1e-5)}, v25')
            rbf(k, 25, 25)
            k('v_sqrt_f32 v25, v25')
            rbf(k, 25, 25)
            k('v_rcp_f32 v28, v25')
            k('v_mul_f32 v30, v25, v25')
        stamp(k, 30)
        k.wait(own_tok)
        stamp(k, 31)
        for st in range(3):
            atok[st] = astage(k, st, 49, 48)
        k('s_barrier')
        for l_ in reads(0):
            runall(k, l_)
        for kk in range(40):
            b = kk % 2
            st, ks = kk // 4, kk % 4
            R0 = AFR + 16 * (st % 4)
            if kk % 8 == 4:
                stamp(k, 33 + kk // 8)
            if ks == 0:
                k.wait(atok[st])
                check_group(k, range(R0, R0 + 16), 11, lambda c, st=st: astage(c, st, 58, 59))
                if kk == 0:
                    stamp(k, 32)
            fill, rds = [], []
            if st + 3 < 10:
                def al(st=st, ks=ks):
                    if ks == 0:
                        abase(k, st + 3, 49, 48)
                    atok[st + 3] = aone(k, st + 3, ks, 49)
                fill.append(al)
            if kk + 1 < 40:
                if (kk + 1) % 4 == 0 and kk < 24:
                    k.wait_all(vm=False)
                    k('s_barrier')
                rds = reads(kk + 1)
            else:
                k.wait_all(vm=False)
                k('v_mov_b32 v2, 1')
                k(f'v_mov_b32 v3, {XCNT+4}')
                k('s_mov_b64 exec, 1')
                k('ds_add_u32 v3, v2')
                k('s_mov_b64 exec, -1')
            if kk == 28:
                fill.append(lambda: T.__setitem__('hs', hsload(k)))
            if kk == 39:
                fill.append(lambda: T.__setitem__('f3', flags_issue(k, WS_F3, 16, 12)))
            if kk == 39:
                fill.append(lambda: T.__setitem__(('cs', 0), csload(0, 212)))
            if kk == 37:
                fill.append(stats)
            mf = []
            for j in range(6):
                acc = v(ACC + 16 * j, 16)
                c = '0' if kk == 0 else acc
                mf.append((lambda j=j: [rt[kk, j]],
                           f'v_mfma_f32_32x32x16_bf16 {acc}, {v(WF+24*b+4*j,4)}, {v(R0+4*ks,4)}, {c}'))
            roll_step(k, mf, rds, fill)
        stamp(k, 38)
        T['cs', 1] = csload(1, 132)
        c0 = -2.0 * math.sqrt(2.0 / math.pi) * math.log2(math.e)
        c1 = c0 * 0.044715
        k(f'v_mov_b32 v32, {f32(c0)}')
        k(f'v_mov_b32 v34, {f32(c1)}')
        k(f's_mul_i32 s54, s{S_FT}, {12*32768}')
        k(f's_lshl_b32 s55, s{S_TOK}, 4')
        k('s_add_u32 s54, s54, s55')
        k(f's_add_u32 s54, s54, {WS_HC}')
        T_, O = 164, 180
        csb = {0: 212, 1: 132, 2: 212}
        for p in range(3):
            G, U, CS = ACC + 16 * p, ACC + 16 * (3 + p), csb[p]
            k.wait(T['cs', p])
            for q in range(8):
                g2, u2 = v(G + 2 * q, 2), v(U + 2 * q, 2)
                k(f'v_pk_fma_f32 {g2}, {v(CS+2*q,2)}, {v(26,2)}, {g2} op_sel_hi:[1,0,1]')
                k(f'v_pk_fma_f32 {u2}, {v(CS+16+2*q,2)}, {v(26,2)}, {u2} op_sel_hi:[1,0,1]')
            if p == 0:
                T['cs', 2] = csload(2, 212)
            for q in range(8):
                g2, u2, t2 = v(G + 2 * q, 2), v(U + 2 * q, 2), v(T_ + 2 * q, 2)
                k(f'v_pk_mul_f32 {u2}, {u2}, {g2}')
                k(f'v_pk_mul_f32 {g2}, {g2}, {v(28,2)} op_sel_hi:[1,0]')
                k(f'v_pk_mul_f32 {t2}, {g2}, {g2}')
                k(f'v_pk_fma_f32 {t2}, {t2}, {v(34,2)}, {v(32,2)} op_sel_hi:[1,0,0]')
                k(f'v_pk_mul_f32 {t2}, {t2}, {g2}')
            for i in range(16):
                k(f'v_exp_f32 v{T_+i}, v{T_+i}')
            for q in range(8):
                t2 = v(T_ + 2 * q, 2)
                k(f'v_pk_fma_f32 {t2}, {t2}, {v(30,2)}, {v(30,2)} op_sel_hi:[1,0,0]')
            for i in range(16):
                k(f'v_rcp_f32 v{T_+i}, v{T_+i}')
            for q in range(8):
                k(f'v_pk_mul_f32 {v(U+2*q,2)}, {v(U+2*q,2)}, {v(T_+2*q,2)}')
            for q in range(8):
                k(f'v_cvt_pk_bf16_f32 v{O+8*(p%2)+q}, v{U+2*q}, v{U+2*q+1}')
            for hf2 in range(2):
                k(f's_add_u32 s55, s54, {(4*p+2*hf2)*32768}')
                self.own = k(f'buffer_store_dwordx4 {v(O+8*(p%2)+4*hf2,4)}, v5, {WSR}, s55 offen sc1')
        flags_check(k, WS_F3, 16, 12, T['f3'])
        stamp(k, 39)


def colsum_strip(k):
    lab = k.newlabel('CS_SKIP')
    k(f's_cmp_lg_u32 s{S_W4}, 0')
    k(f's_cbranch_scc1 {lab}')
    k(f's_cmp_ge_u32 s{S_I32}, 12')
    k(f's_cbranch_scc1 {lab}')
    sn = k.snap()
    k(f's_and_b32 s60, s{S_X8}, 1')
    k('s_cmp_eq_u32 s60, 0')
    k(f's_cselect_b32 s72, s{S_WG}, s{S_WU}')
    k(f's_cselect_b32 s73, s{S_WG+1}, s{S_WU+1}')
    k('s_mov_b32 s74, 1966080')
    k('s_mov_b32 s75, 0x00020000')
    k(f's_lshr_b32 s60, s{S_X8}, 1')
    k('s_mul_i32 s60, s60, 768')
    k(f's_lshl_b32 s61, s{S_I32}, 6')
    k('s_add_u32 s60, s60, s61')
    k('v_lshrrev_b32 v40, 2, v1')
    k('v_mul_u32_u24 v40, 3072, v40')
    k('v_and_b32 v41, 3, v1')
    k('v_lshl_add_u32 v40, v41, 4, v40')
    k('v_add_u32 v40, s60, v40')
    tk = []
    for n in range(40):
        k(f's_mov_b32 s61, {n*16*3072}')
        tk.append(k(f'buffer_load_dwordx4 {v(60+4*n,4)}, v40, s[72:75], s61 offen'))
    for i in range(8):
        k(f'v_mov_b32 v{44+i}, 0')
    for n in range(40):
        k.wait(tk[n])
        for p in range(4):
            k(f'v_lshlrev_b32 v{52+2*(p%2)}, 16, v{60+4*n+p}')
            k(f'v_and_b32 v{53+2*(p%2)}, 0xffff0000, v{60+4*n+p}')
            k(f'v_pk_add_f32 {v(44+2*p,2)}, {v(44+2*p,2)}, {v(52+2*(p%2),2)}')
    for i in range(8):
        xsum(k, 44 + i, 56, 57, 32)
        xsum(k, 44 + i, 56, 57, 16)
        k(f'v_add_f32_dpp v{44+i}, v{44+i}, v{44+i} row_ror:8 row_mask:0xf bank_mask:0xf')
        k(f'v_add_f32_dpp v{44+i}, v{44+i}, v{44+i} row_ror:4 row_mask:0xf bank_mask:0xf')
    strip_id(k, 60)
    k('s_lshl_b32 s60, s60, 2')
    k(f's_add_u32 s60, s60, {WS_CS}')
    k('v_lshlrev_b32 v41, 5, v41')
    k('s_mov_b64 exec, 0xf')
    k(f'buffer_store_dwordx4 {v(44,4)}, v41, {WSR}, s60 offen sc1')
    k(f'buffer_store_dwordx4 {v(48,4)}, v41, {WSR}, s60 offen offset:16 sc1')
    k('s_mov_b64 exec, -1')
    k.wait_all()
    k.restore(sn)
    k.label(lab)


def build():
    k = K()
    name = NAME + '_kernel'
    k.realend = 'K_END'
    k.raw('.p2align 8')
    k.raw(f'.globl {name}')
    k.raw(f'.type {name},@function')
    k.raw(f'{name}:')
    prologue(k)
    if STAMPS:
        k('v_writelane_b32 v255, s84, 60')
    if OPT.get('empty'):
        k('s_branch K_END')
    stamp(k, 0)
    g3 = G35(k, 3, [0, 20480, 40960, 61440, 81920], 232, 0)
    g5 = G35(k, 5, [49152, 69632, 90112, 110592, 131072, 0, 20480], 54, 70)
    p4 = P4(k)
    A3 = [102400, 118784, 135168]
    A5 = [61440, 77824, 143360]
    lab_l1, lab_p2, lab_l3, lab_fin = (k.newlabel(x) for x in ('L1', 'P2', 'L3', 'FIN'))
    k(f's_cmp_ge_u32 s{S_W}, 4')
    k(f's_cbranch_scc1 {lab_l1}')
    sn = k.snap()
    p1_compute(k)
    join(k)
    if OPT.get('wgu', 2) == 1:
        pf_wgu(k, 238, 239, 128)
    p2_setup(k)
    k(f's_branch {lab_p2}')
    k.label(lab_l1)
    k.restore(sn)
    p1_loader(k, g3)
    k.label(lab_p2)
    join(k)
    for st in range(5):
        g3.btok[st] = ('vm', 0)
    own = emit_p2(k, g3)
    k(f's_cmp_ge_u32 s{S_W}, 4')
    k(f's_cbranch_scc1 {lab_l3}')
    sn = k.snap()
    g3.compute(own, st0=20)
    p4.compute(g3.own)
    if not OPT.get('nop5'):
        g5.compute(p4.own, st0=40)
    k(f's_branch {lab_fin}')
    k.label(lab_l3)
    k.restore(sn)
    k('s_barrier')
    if OPT.get('wguL', 0):
        pf_wgu(k, 36, 37)
    p4.setup_dma(56)
    p4.dma_stage(0)
    p4.dma_stage(1)
    p4.loader_setup(g5)
    p4.pre_colsum()
    stamp(k, 23)
    k('s_barrier')
    k('s_barrier')
    k('s_barrier')
    stamp(k, 24)
    p4.dma_stage(2)
    p4.dma_stage(3)
    p4.dma_stage(4)
    p4.pre_colsum_write()
    stamp(k, 30)
    p4.loader(g5)
    if not OPT.get('nop5'):
        g5.loader(7, st0=40)
        k('s_barrier')
        k('s_barrier')
    k.label(lab_fin)
    join(k)
    stamp(k, 50)
    if STAMPS:
        k.wait_all()
        stamp(k, 51)
    stamp_flush(k)
    k.label(k.realend)
    k('s_endpgm')
    c = K()
    for f in k.cold:
        f(c)
    desc = f'''.section .rodata,"a"
.p2align 6
.amdhsa_kernel {name}
  .amdhsa_next_free_vgpr 256
  .amdhsa_next_free_sgpr 102
  .amdhsa_accum_offset 256
  .amdhsa_group_segment_fixed_size 0
  .amdhsa_kernarg_size 80
  .amdhsa_user_sgpr_count 2
  .amdhsa_user_sgpr_kernarg_segment_ptr 1
  .amdhsa_system_sgpr_workgroup_id_x 1
.end_amdhsa_kernel
'''
    return k.render() + c.render() + 'CODE_END:\n' + desc


def main():
    global STAMPS
    STAMPS = 'stamps' in sys.argv
    for a_ in sys.argv[2:]:
        if '=' in a_:
            kk, vv = a_.split('=')
            OPT[kk] = int(vv)
    head = open('cdna_kernels/%s.s.ref' % NAME).read().split('\n')
    hdr = [l for l in head if l.startswith(';') and '@launch' not in l and 'Override launch' not in l and 'grid=ceil' not in l]
    out = '\n'.join(hdr) + '\n'
    out += '; @launch grid=(256,1,1) block=(512,1,1) lds=163840\n'
    out += '.amdgcn_target "amdgcn-amd-amdhsa--gfx950"\n.text\n'
    out += build()
    path = sys.argv[1] if len(sys.argv) > 1 else 'cdna_kernels/%s.s' % NAME
    open(path, 'w').write(out)
    print('wrote', path, len(out), 'bytes')


if __name__ == '__main__':
    main()
```

```python
import math
import struct
import sys
from asmlib import K, v, a, s

NAME = 'sequential_preLN__sliding_block__glu_gated_geglu__prompt'

WS_QG = 0x0000000
WS_KG = 0x0280000
WS_VF = 0x0500000
WS_OC = 0x0780000
WS_H1 = 0x0A00000
WS_HC = 0x0C80000
WS_CS = 0x1280000
WS_F2 = 0x1288000
WS_F3 = 0x128A000
WS_F0 = 0x128C000
WS_PC = 0x1290000
WS_PS = 0x12A8000
WS_HS = 0x12D0000
WS_PCS = 0x1340000
WS_ST = 0x1300000
WS_SIZE = 0x1400000
OOB = 0x40000000

S_X, S_WQKV, S_WO, S_WG, S_WU, S_WD, S_OUT, S_WS, S_DBG = 4, 8, 12, 16, 20, 24, 28, 32, 36
S_NONCE = 3
S_W, S_X8, S_I32, S_W4 = 40, 41, 42, 43
S_BUD = 57
WSR = f's[{S_WS}:{S_WS+3}]'
OPT = {}
STAMPS = False
XCH = 159744
XNONCE = XCH + 3072
XCNT = XCH + 3080


def f32(x):
    return '0x%08x' % struct.unpack('<I', struct.pack('<f', x))[0]


def stamp(k, i):
    if not STAMPS:
        return
    k('s_memtime s[62:63]')
    k.wait_all(vm=False)
    k(f'v_writelane_b32 v255, s62, {i}')


def stamp_flush(k):
    if not STAMPS:
        return
    lab = k.newlabel('ST')
    k('s_memrealtime s[62:63]')
    k.wait_all()
    k('v_writelane_b32 v255, s62, 63')
    k(f'v_writelane_b32 v255, s{S_BUD}, 62')
    k(f's_cmp_lg_u32 s{S_W4}, 0')
    k(f's_cbranch_scc1 {lab}')
    k('v_lshlrev_b32 v254, 2, v1')
    k('s_lshl_b32 s62, s2, 9')
    k(f's_lshl_b32 s63, s{S_W}, 6')
    k('s_add_u32 s62, s62, s63')
    k(f's_add_u32 s62, s62, {WS_ST}')
    k(f'buffer_store_dword v255, v254, {WSR}, s62 offen')
    k.label(lab)


def run(k, f):
    return f() if callable(f) else k(f)


def runall(k, ops):
    for f in ops:
        run(k, f)


def roll_step(k, mf, rds, fill):
    n, nf, fi = len(mf), len(fill), 0
    for i, (wt, m) in enumerate(mf):
        k.wait(*wt())
        k(m)
        for f in (rds[i] if i < len(rds) else []):
            run(k, f)
        tgt = (nf * (i + 1) + n - 1) // n
        while fi < min(tgt, nf):
            run(k, fill[fi])
            fi += 1


def spread(k, main, side):
    n, nf = len(main), len(side)
    pos = {}
    for j in range(nf):
        pos.setdefault(int(j * n / max(nf, 1)), []).append(side[j])
    for i, m in enumerate(main):
        for f in pos.get(i, []):
            run(k, f)
        run(k, m)


def rbf(k, d, src):
    k(f'v_cvt_pk_bf16_f32 {v(d)}, {v(src)}, {v(src)}')
    k(f'v_lshlrev_b32 {v(d)}, 16, {v(d)}')


def xsum(k, r, t1, t2, which=32):
    k(f'v_mov_b32 {v(t1)}, {v(r)}')
    k(f'v_mov_b32 {v(t2)}, {v(r)}')
    k(f'v_permlane{which}_swap_b32 {v(t1)}, {v(t2)}')
    k(f'v_add_f32 {v(r)}, {v(t1)}, {v(t2)}')


def maxchain_ops(regs, t):
    regs = list(regs)
    ops = [f'v_max3_u32 v{t}, v{regs[0]}, v{regs[1]}, v{regs[2]}']
    i = 3
    while i < len(regs):
        if i + 1 < len(regs):
            ops.append(f'v_max3_u32 v{t}, v{t}, v{regs[i]}, v{regs[i+1]}')
            i += 2
        else:
            ops.append(f'v_max_u32 v{t}, v{t}, v{regs[i]}')
            i += 1
    return ops


def check_group(k, regs, t, reissue, slp=2):
    for o in maxchain_ops(regs, t):
        k(o)
    slow, back, loop = k.newlabel('SLOW'), k.newlabel('BACK'), k.newlabel('RETRY')
    k(f'v_cmp_eq_u32 vcc, -1, v{t}')
    k(f's_cbranch_vccnz {slow} ;nodrain')
    k.label(back)

    def cold(c):
        c.label(slow)
        c('s_nop 15')
        c.label(loop)
        c(f's_cmp_eq_u32 s{S_BUD}, 0')
        c(f's_cbranch_scc1 {back}')
        c(f's_sub_u32 s{S_BUD}, s{S_BUD}, 1')
        c(f's_sleep {slp}')
        reissue(c)
        c('s_waitcnt vmcnt(0)')
        for o in maxchain_ops(regs, t):
            c(o)
        c(f'v_cmp_eq_u32 vcc, -1, v{t}')
        c(f's_cbranch_vccnz {loop}')
        c(f's_branch {back}')
    k.cold.append(cold)


def nonce_issue(k, vr):
    k(f'v_mov_b32 v{vr+1}, 0')
    return k(f'buffer_load_dword v{vr}, v{vr+1}, s[{S_DBG}:{S_DBG+3}], 0 offen sc1')


def nonce_check(k, vr, tok):
    k.wait(tok)
    slow, back = k.newlabel('NSLOW'), k.newlabel('NBACK')
    k(f'v_readfirstlane_b32 s{S_NONCE}, v{vr}')
    k(f's_cmp_eq_u32 s{S_NONCE}, 0')
    k(f's_cbranch_scc1 {slow} ;nodrain')
    k.label(back)

    def cold(c):
        c.label(slow)
        c('s_nop 15')
        c(f's_cmp_eq_u32 s{S_BUD}, 0')
        c(f's_cbranch_scc1 {back}')
        c(f's_sub_u32 s{S_BUD}, s{S_BUD}, 1')
        c('s_sleep 4')
        c(f'buffer_load_dword v{vr}, v{vr+1}, s[{S_DBG}:{S_DBG+3}], 0 offen sc1')
        c('s_waitcnt vmcnt(0)')
        c(f'v_readfirstlane_b32 s{S_NONCE}, v{vr}')
        c(f's_cmp_eq_u32 s{S_NONCE}, 0')
        c(f's_cbranch_scc1 {slow}')
        c(f's_branch {back}')
    k.cold.append(cold)


def nonce_from_lds(k, t):
    k(f'v_mov_b32 v{t}, {XNONCE}')
    tk = k(f'ds_read_b32 v{t}, v{t}')
    k.wait(tk)
    k(f'v_readfirstlane_b32 s{S_NONCE}, v{t}')


def rflag_store(k, base, sidx, t1, t2, wave=0):
    k(f'v_mov_b32 v{t1}, s{S_NONCE}')
    k(f'v_lshlrev_b32 v{t2}, 10, v1')
    k(f's_lshl_b32 s60, s{sidx}, 2')
    k(f's_add_u32 s60, s60, {base}')
    k(f's_mov_b32 s61, {OOB}')
    k(f's_cmp_eq_u32 s{S_W}, {wave}')
    k('s_cselect_b32 s60, s60, s61')
    k('s_mov_b64 exec, 0xff')
    k(f'buffer_store_dword v{t1}, v{t2}, {WSR}, s60 offen sc1')
    k('s_mov_b64 exec, -1')


def wflag_store(k, base, sidx, t1, t2, cnt):
    k(f'v_mov_b32 v{t1}, 1')
    k(f'v_mov_b32 v{t2}, {XCNT+4*cnt}')
    k('s_mov_b64 exec, 1')
    tk = k(f'ds_add_rtn_u32 v{t1}, v{t2}, v{t1}')
    k('s_mov_b64 exec, -1')
    k(f's_lshl_b32 s60, s{sidx}, 2')
    k(f's_add_u32 s60, s60, {base}')
    k.wait(tk)
    k(f'v_readfirstlane_b32 s61, v{t1}')
    k(f'v_mov_b32 v{t1}, s{S_NONCE}')
    k(f'v_lshlrev_b32 v{t2}, 10, v1')
    k('s_cmp_eq_u32 s61, 3')
    k(f's_cselect_b32 s60, s60, {OOB}')
    k('s_mov_b64 exec, 0xff')
    k(f'buffer_store_dword v{t1}, v{t2}, {WSR}, s60 offen sc1')
    k('s_mov_b64 exec, -1')


def cnt_wait(k, t1, t2, cnt, target, bound=2000):
    loop, done = k.newlabel('CW'), k.newlabel('CD')
    k(f'v_mov_b32 v{t2}, {XCNT+4*cnt}')
    k(f's_mov_b32 s61, {bound}')
    k.label(loop)
    k.raw(f'    ds_read_b32 v{t1}, v{t2}')
    k.raw('    s_waitcnt lgkmcnt(0)')
    k(f'v_readfirstlane_b32 s60, v{t1}')
    k(f's_cmp_ge_u32 s60, {target}')
    k(f's_cbranch_scc1 {done}')
    k('s_sub_u32 s61, s61, 1')
    k('s_cmp_eq_u32 s61, 0')
    k(f's_cbranch_scc1 {done}')
    k('s_sleep 2')
    k(f's_branch {loop}')
    k.label(done)


def wflag_poll(k, sbase, va, vr, smask, width, only_wave0):
    loop, done = k.newlabel('POLL'), k.newlabel('PDONE')
    if only_wave0:
        k(f's_cmp_lg_u32 s{S_W}, 0')
        k(f's_cbranch_scc1 {done}')
    k.label(loop)
    if width == 4:
        k.raw(f'    buffer_load_dwordx4 {v(vr,4)}, v{va}, {WSR}, s{sbase} offen sc1')
        k.raw('    s_waitcnt vmcnt(0)')
        for i in range(4):
            k(f'v_xor_b32 v{vr+i}, s{S_NONCE}, v{vr+i}')
        k(f'v_or3_b32 v{vr}, v{vr}, v{vr+1}, v{vr+2}')
        k(f'v_or_b32 v{vr}, v{vr}, v{vr+3}')
        k(f'v_cmp_ne_u32 vcc, 0, v{vr}')
    else:
        k.raw(f'    buffer_load_dword v{vr}, v{va}, {WSR}, s{sbase} offen sc1')
        k.raw('    s_waitcnt vmcnt(0)')
        k(f'v_cmp_ne_u32 vcc, s{S_NONCE}, v{vr}')
    k(f's_and_b64 vcc, vcc, s[{smask}:{smask+1}]')
    k(f's_cbranch_scc0 {done}')
    k(f's_cmp_eq_u32 s{S_BUD}, 0')
    k(f's_cbranch_scc1 {done}')
    k(f's_sub_u32 s{S_BUD}, s{S_BUD}, 1')
    k(f's_sleep {OPT.get("psl", 1)}')
    k(f's_branch {loop}')
    k.label(done)


def rflag_poll(k, sbase, va, vr, smask):
    loop, done = k.newlabel('POLL'), k.newlabel('PDONE')
    k(f's_cmp_lg_u32 s{S_W}, 0')
    k(f's_cbranch_scc1 {done}')
    k.label(loop)
    k.raw(f'    buffer_load_dword v{vr}, v{va}, {WSR}, s{sbase} offen sc1')
    k.raw('    s_waitcnt vmcnt(0)')
    k(f'v_cmp_ne_u32 vcc, s{S_NONCE}, v{vr}')
    k(f's_and_b64 vcc, vcc, s[{smask}:{smask+1}]')
    k(f's_cbranch_scc0 {done}')
    k(f's_cmp_eq_u32 s{S_BUD}, 0')
    k(f's_cbranch_scc1 {done}')
    k(f's_sub_u32 s{S_BUD}, s{S_BUD}, 1')
    k(f's_branch {loop}')
    k.label(done)


def flags_issue(k, base, vr, va):
    k(f'v_lshlrev_b32 v{va}, 4, v1')
    k(f's_lshl_b32 s60, s{S_X8}, 10')
    k(f'v_add_u32 v{va}, s60, v{va}')
    k(f's_mov_b32 s60, {base}')
    return k(f'buffer_load_dwordx4 {v(vr,4)}, v{va}, {WSR}, s60 offen sc1')


def flags_check(k, base, vr, va, tok):
    k.wait(tok)
    slow, back = k.newlabel('FSLOW'), k.newlabel('FBACK')

    def cmpops(c):
        for i in range(4):
            c(f'v_xor_b32 v{vr+i}, s{S_NONCE}, v{vr+i}')
        c(f'v_or3_b32 v{vr}, v{vr}, v{vr+1}, v{vr+2}')
        c(f'v_or_b32 v{vr}, v{vr}, v{vr+3}')
        c(f'v_cmp_ne_u32 vcc, 0, v{vr}')
    cmpops(k)
    k(f's_cbranch_vccnz {slow} ;nodrain')
    k.label(back)

    def cold(c):
        c.label(slow)
        c('s_nop 15')
        c(f's_cmp_eq_u32 s{S_BUD}, 0')
        c(f's_cbranch_scc1 {back}')
        c(f's_sub_u32 s{S_BUD}, s{S_BUD}, 1')
        c('s_sleep 12')
        c(f's_mov_b32 s58, {base}')
        c(f'buffer_load_dwordx4 {v(vr,4)}, v{va}, {WSR}, s58 offen sc1')
        c('s_waitcnt vmcnt(0)')
        cmpops(c)
        c(f's_cbranch_vccnz {slow}')
        c(f's_branch {back}')
    k.cold.append(cold)


def join(k):
    k.reset_counters()
    k.vm_issued = 1
    k.lg_issued = 1


def prologue(k):
    k('s_cmp_ge_u32 s2, 256')
    k('s_cbranch_scc1 %s' % k.realend)
    if OPT.get('cpf', 1):
        k.raw('    s_getpc_b64 s[88:89]')
        k.raw('CODE_PC:')
        k.raw(f'    s_sub_u32 s88, s88, CODE_PC-{NAME}_kernel')
        k.raw('    s_subb_u32 s89, s89, 0')
        k.raw('    s_and_b32 s89, s89, 0xffff')
        k.raw(f'    s_mov_b32 s90, CODE_END-{NAME}_kernel')
        k.raw('    s_mov_b32 s91, 0x00020000')
        k('s_lshr_b32 s92, s2, 3')
        k('s_lshl_b32 s92, s92, 12')
        k('v_lshlrev_b32 v250, 7, v0')
        k('v_cmp_gt_u32 vcc, 32, v0')
        k(f'v_mov_b32 v251, {OOB}')
        k('v_cndmask_b32 v250, v251, v250, vcc')
        k('buffer_load_dword v251, v250, s[88:91], s92 offen')
    k('s_load_dwordx8 s[64:71], s[0:1], 0')
    k('s_load_dwordx8 s[72:79], s[0:1], 32')
    k('s_load_dwordx4 s[80:83], s[0:1], 64')
    k('s_memrealtime s[84:85]')
    k('v_and_b32 v1, 63, v0')
    k('v_lshrrev_b32 v2, 6, v0')
    k(f'v_readfirstlane_b32 s{S_W}, v2')
    k(f's_and_b32 s{S_X8}, s2, 7')
    k(f's_lshr_b32 s{S_I32}, s2, 3')
    k(f's_mov_b32 s{S_BUD}, {OPT.get("bud", 100000)}')
    k(f's_and_b32 s{S_W4}, s{S_W}, 3')
    k('v_and_b32 v0, 255, v0')
    k('v_mov_b32 v253, 0')
    k('s_waitcnt lgkmcnt(0)')
    for sr, src, size in ((S_X, 64, 2621440), (S_WQKV, 66, 2457600), (S_WO, 68, 819200), (S_WG, 72, 1966080),
                          (S_WU, 74, 1966080), (S_WD, 76, 1966080), (S_OUT, 78, 2621440), (S_WS, 82, WS_SIZE),
                          (S_DBG, 80, 256)):
        k(f's_mov_b32 s{sr}, s{src}')
        k(f's_and_b32 s{sr+1}, s{src+1}, 0xffff')
        k(f's_mov_b32 s{sr+2}, {size}')
        k(f's_mov_b32 s{sr+3}, 0x00020000')
    k(f's_or_b32 s60, s2, s{S_W}')
    k('s_cmp_eq_u32 s60, 0')
    k(f's_cselect_b32 s61, 0, 0x10000')
    k('s_or_b32 s60, s84, 1')
    k('v_mov_b32 v2, s60')
    k('v_mov_b32 v3, 0')
    k('s_mov_b64 exec, 1')
    k(f'buffer_store_dword v2, v3, s[{S_DBG}:{S_DBG+3}], s61 offen sc1')
    k('s_mov_b64 exec, -1')


def tile1(k):
    k(f's_and_b32 s47, s{S_X8}, 3')
    k(f's_lshr_b32 s46, s{S_X8}, 2')
    k('s_mul_i32 s46, s46, 30')
    k(f's_add_u32 s46, s46, s{S_I32}')
    k('s_lshr_b32 s44, s46, 2')
    k('s_and_b32 s46, s46, 3')
    k('s_lshl_b32 s47, s47, 2')
    k('s_add_u32 s45, s47, s46')
    k('s_add_u32 s56, s45, s44')
    for _ in range(2):
        k('s_sub_u32 s47, s56, 10')
        k('s_cmp_ge_u32 s56, 10')
        k('s_cselect_b32 s56, s47, s56')
    k('s_lshl_b32 s46, s45, 7')
    k(f's_lshl_b32 s47, s{S_W4}, 5')
    k('s_add_u32 s46, s46, s47')


def tile35(k, srt, sct, st):
    if OPT.get('m35', 0):
        k(f's_lshl_b32 s{st}, s{S_X8}, 2')
        k(f's_and_b32 s{srt}, s{S_I32}, 3')
        k(f's_add_u32 s{srt}, s{srt}, s{st}')
        k(f's_lshr_b32 s{sct}, s{S_I32}, 2')
        return
    k(f's_and_b32 s{st}, s{S_X8}, 3')
    k(f's_lshl_b32 s{st}, s{st}, 3')
    k(f's_and_b32 s{srt}, s{S_I32}, 7')
    k(f's_add_u32 s{srt}, s{srt}, s{st}')
    k(f's_lshr_b32 s{st}, s{S_X8}, 2')
    k(f's_lshl_b32 s{st}, s{st}, 2')
    k(f's_lshr_b32 s{sct}, s{S_I32}, 3')
    k(f's_add_u32 s{sct}, s{sct}, s{st}')


def tile4(k, smt, sft, st):
    if OPT.get('m4', 0):
        k(f's_and_b32 s{st}, s{S_X8}, 3')
        k(f's_lshl_b32 s{st}, s{st}, 2')
        k(f's_and_b32 s{smt}, s{S_I32}, 3')
        k(f's_add_u32 s{smt}, s{smt}, s{st}')
        k(f's_lshr_b32 s{st}, s{S_X8}, 2')
        k(f's_lshl_b32 s{st}, s{st}, 3')
        k(f's_lshr_b32 s{sft}, s{S_I32}, 2')
        k(f's_add_u32 s{sft}, s{sft}, s{st}')
        return
    k(f's_and_b32 s{st}, s{S_X8}, 1')
    k(f's_lshl_b32 s{st}, s{st}, 3')
    k(f's_and_b32 s{smt}, s{S_I32}, 7')
    k(f's_add_u32 s{smt}, s{smt}, s{st}')
    k(f's_lshr_b32 s{st}, s{S_X8}, 1')
    k(f's_lshl_b32 s{st}, s{st}, 2')
    k(f's_lshr_b32 s{sft}, s{S_I32}, 3')
    k(f's_add_u32 s{sft}, s{sft}, s{st}')


def strip_id(k, sd):
    k(f's_and_b32 s{sd}, s{S_X8}, 1')
    k(f's_mul_i32 s{sd}, s{sd}, 1536')
    k(f's_lshr_b32 s61, s{S_X8}, 1')
    k('s_mul_i32 s61, s61, 384')
    k(f's_add_u32 s{sd}, s{sd}, s61')
    k(f's_lshl_b32 s61, s{S_I32}, 5')
    k(f's_add_u32 s{sd}, s{sd}, s61')


def clear_ops(k, vs, va):
    ops = []

    def o1():
        k(f's_and_b32 s60, s{S_I32}, 3')
        k(f's_lshl_b32 s61, s{S_X8}, 2')
        k('s_add_u32 s60, s60, s61')
        k('s_and_b32 s65, s60, 1')
        k('s_lshr_b32 s60, s60, 1')
        k('s_mul_i32 s60, s60, 5')
        k('s_lshl_b32 s60, s60, 15')
        k(f's_lshr_b32 s61, s{S_I32}, 2')
        k('s_lshl_b32 s61, s61, 12')
        k('s_add_u32 s60, s60, s61')
        k(f's_lshl_b32 s61, s{S_W4}, 10')
        k('s_add_u32 s60, s60, s61')
        k(f's_add_u32 s64, s60, {WS_OC}')
        k(f's_mul_i32 s61, s65, {3*32768}')
        k('s_add_u32 s66, s64, s61')
        k(f'buffer_store_dwordx4 {v(vs,4)}, v{va}, {WSR}, s66 offen sc1')

    def o2():
        k('s_add_u32 s60, s66, 32768')
        k(f'buffer_store_dwordx4 {v(vs,4)}, v{va}, {WSR}, s60 offen sc1')

    def o3():
        k('s_lshl_b32 s61, s65, 3')
        k('s_add_u32 s60, s64, s61')
        k('s_add_u32 s60, s60, 65536')
        k(f'buffer_store_dwordx2 {v(vs,2)}, v{va}, {WSR}, s60 offen sc1')

    def h1():
        tile35(k, 60, 61, 64)
        k('s_lshl_b32 s67, s61, 14')
        k('s_lshl_b32 s64, s60, 9')
        k('s_add_u32 s67, s67, s64')
        k(f's_add_u32 s67, s67, {WS_HS}')
        k('s_mul_i32 s61, s61, 10')
        k(f's_add_u32 s61, s61, s{S_W4}')
        k('s_lshl_b32 s61, s61, 15')
        k('s_lshl_b32 s60, s60, 10')
        k('s_add_u32 s64, s61, s60')
        k(f's_add_u32 s64, s64, {WS_H1}')
        k(f'buffer_store_dwordx4 {v(vs,4)}, v{va}, {WSR}, s64 offen sc1')

    def h2():
        k(f's_add_u32 s60, s64, {4*32768}')
        k(f'buffer_store_dwordx4 {v(vs,4)}, v{va}, {WSR}, s60 offen sc1')

    def h3():
        k(f's_add_u32 s60, s64, {8*32768}')
        k(f's_mov_b32 s65, {OOB}')
        k(f's_cmp_lt_u32 s{S_W4}, 2')
        k('s_cselect_b32 s60, s60, s65')
        k(f'buffer_store_dwordx4 {v(vs,4)}, v{va}, {WSR}, s60 offen sc1')

    def h4():
        k(f's_cmp_eq_u32 s{S_W4}, 2')
        k('s_cselect_b32 s60, s67, s65')
        k(f'buffer_store_dwordx2 {v(vs,2)}, v{va+1}, {WSR}, s60 offen sc1')

    def c1():
        tile4(k, 60, 61, 64)
        k('s_mul_i32 s61, s61, 384')
        k('s_mul_i32 s64, s60, 12288')
        k('s_add_u32 s61, s61, s64')
        k(f's_mul_i32 s64, s{S_W4}, 6144')
        k('s_add_u32 s61, s61, s64')
        k(f's_add_u32 s61, s61, {WS_PCS}')
        k('s_cmp_lt_u32 s60, 10')
        k('s_cselect_b32 s61, s61, s65')
        k(f's_cmp_lt_u32 s{S_W4}, 2')
        k('s_cselect_b32 s61, s61, s65')
        k('s_mov_b64 exec, 0xffffff')
        k(f'buffer_store_dwordx4 {v(vs,4)}, v{va}, {WSR}, s61 offen sc1')
        k('s_mov_b64 exec, -1')
    return [o1, o2, o3, h1, h2, h3, h4, c1]


def sparse_prefetch(k, srd, rows_per_wg, lines, pitch, colshift, colmul, va, vd, toff=0):
    magic = {5: 13108, 6: 10923}[lines]
    k(f'v_subrev_u32 v{va}, {toff}, v0')
    k(f'v_cmp_gt_u32 vcc, {rows_per_wg*lines}, v{va}')
    k(f'v_mul_u32_u24 v{vd}, {magic}, v{va}')
    k(f'v_lshrrev_b32 v{vd}, 16, v{vd}')
    k(f'v_mul_u32_u24 v{vd}, {pitch-lines*128}, v{vd}')
    k(f'v_lshl_add_u32 v{va}, v{va}, 7, v{vd}')
    k(f'v_mov_b32 v{vd}, {OOB}')
    k(f'v_cndmask_b32 v{va}, v{vd}, v{va}, vcc')
    k(f's_mul_i32 s60, s{S_I32}, {rows_per_wg*pitch}')
    k(f's_lshr_b32 s61, s{S_X8}, {colshift}')
    k(f's_mul_i32 s61, s61, {colmul}')
    k('s_add_u32 s60, s60, s61')
    for sr in srd:
        k(f'buffer_load_dword v{vd}, v{va}, s[{sr}:{sr+3}], s60 offen')


def pf_wo(k, va, vd):
    sparse_prefetch(k, [S_WO], 20, 5, 1280, 2, 640, va, vd)


def pf_wd(k, va, vd):
    sparse_prefetch(k, [S_WD], 48, 5, 1280, 2, 640, va, vd)


def pf_wgu(k, va, vd, toff=0):
    sparse_prefetch(k, [S_WG, S_WU], 20, 6, 3072, 1, 768, va, vd, toff)


P1_R, P1_SLOT = 4, 32768


def p1_dma(k, S_SIG, sa, sb_):
    S_NT, S_TOK, S_LW = 44, 46, 48
    k('s_cmp_ge_u32 s56, 5')
    k(f's_cselect_b32 s{S_SIG}, 5, 0')
    k('v_lshrrev_b32 v10, 3, v1')
    k(f'v_add_u32 v10, s{S_TOK}, v10')
    k('v_mul_u32_u24 v10, 1280, v10')
    k('v_and_b32 v11, 7, v1')
    k('v_lshrrev_b32 v12, 4, v1')
    k('v_xor_b32 v11, v11, v12')
    k('v_xor_b32 v13, 4, v11')
    k('v_lshl_add_u32 v2, v11, 4, v10')
    k('v_lshl_add_u32 v3, v13, 4, v10')
    k(f'v_add_u32 v3, {10240-1024}, v3')
    k(f'v_add_u32 v4, {2*(10240-1024)}, v2')
    k(f'v_add_u32 v5, {2*(10240-1024)}, v3')
    k(f's_lshl_b32 s47, s{S_W4}, 4')
    k('v_add_u32 v10, s47, v12')
    k('v_mul_u32_u24 v10, 3840, v10')
    k(f's_lshl_b32 s47, s{S_NT}, 8')
    k('v_add_u32 v10, s47, v10')
    k('v_bfe_u32 v11, v1, 2, 2')
    k('v_xor_b32 v11, v11, v12')
    k('v_lshl_add_u32 v10, v11, 6, v10')
    k('v_and_b32 v11, 3, v1')
    k('v_lshl_add_u32 v6, v11, 4, v10')
    for i in range(1, 4):
        k(f'v_add_u32 v{6+i}, {i*(4*3840-1024)}, v6')
    k(f's_lshl_b32 s{S_LW}, s{S_W4}, 12')
    tok = {}

    def issue(st):
        slot = st % P1_R
        k(f's_add_u32 m0, s{S_LW}, {slot*P1_SLOT}')
        k(f's_lshl_b32 s{sa}, s{S_SIG}, 7')
        for i in range(4):
            k(f'buffer_load_dwordx4 v{2+i}, s[{S_X}:{S_X+3}], s{sa} offen offset:{i*1024} lds')
        k(f's_add_u32 m0, s{S_LW}, {slot*P1_SLOT+16384}')
        k(f's_mul_i32 s{sb_}, s{S_SIG}, {64*3840}')
        k(f's_add_u32 s{S_SIG}, s{S_SIG}, 1')
        k(f's_cmp_eq_u32 s{S_SIG}, 10')
        k(f's_cselect_b32 s{S_SIG}, 0, s{S_SIG}')
        for i in range(4):
            tok[st] = k(f'buffer_load_dwordx4 v{6+i}, s[{S_WQKV}:{S_WQKV+3}], s{sb_} offen offset:{i*1024} lds')
    return tok, issue


def p1_loader(k, g3):
    tile1(k)
    S_NT, S_TOK, S_LW, S_SIG = 44, 46, 48, 55
    lab_h, lab_e = k.newlabel('L_HELP'), k.newlabel('L_P1E')
    k(f's_cmp_ge_u32 s{S_I32}, 30')
    k(f's_cbranch_scc1 {lab_h}')
    tok, issue = p1_dma(k, S_SIG, 49, 50)
    issue(0)
    issue(1)
    stamp(k, 1)
    k.wait(tok[0])
    k('s_barrier')
    stamp(k, 2)
    if OPT.get('cdma', 0):
        k(f's_add_u32 s{S_SIG}, s{S_SIG}, 2')
        tok[2] = tok[3] = tok[1]
    else:
        issue(2)
        issue(3)
    blk = k.capture(lambda: (g3.dma_setup(100), p2_setup(k)))
    nb_ = (len(blk) + 2) // 3
    for st in range(1, 10):
        k.wait(tok[st])
        k('s_barrier')
        if st + 3 < 10:
            issue(st + 3)
        if st == 6:
            stamp(k, 3)
            pf_wo(k, 120, 121)
        if 6 <= st <= 8:
            k.items.extend(blk[(st - 6) * nb_:(st - 5) * nb_])
    k(f's_branch {lab_e}')
    k.label(lab_h)
    for st in range(10):
        k('s_barrier')
    pf_wo(k, 120, 121)
    k.items.extend(blk)
    k.label(lab_e)
    join(k)
    nonce_from_lds(k, 122)
    stamp(k, 9)
    k('s_barrier')
    if OPT.get('wowait', 1):
        cnt_wait(k, 238, 239, 0, OPT.get('wowait', 1))
    stamp(k, 10)
    for st in range(5):
        runall(k, g3.dma_step(st))
    stamp(k, 11)


def p1_compute(k):
    tile1(k)
    S_NT, S_MT, S_TOK, S_LW, S_RHO = 44, 45, 46, 48, 56
    k(f's_lshl_b32 s{S_LW}, s{S_W4}, 12')
    ctok = {}
    if OPT.get('cdma', 0):
        lab_nd = k.newlabel('NODMA')
        k(f's_cmp_ge_u32 s{S_I32}, 30')
        k(f's_cbranch_scc1 {lab_nd}')
        ctok, cissue = p1_dma(k, 55, 49, 50)
        k('s_add_u32 s55, s55, 2')
        cissue(2)
        cissue(3)
        k.label(lab_nd)
    for i in range(4):
        k(f'v_mov_b32 v{96+i}, -1')
    k('v_lshlrev_b32 v100, 4, v1')
    k('v_lshlrev_b32 v101, 3, v1')
    k('v_and_b32 v40, 31, v1')
    k('v_lshlrev_b32 v109, 3, v40')
    k('v_lshlrev_b32 v102, 2, v40')
    k(f's_lshl_b32 s51, s{S_RHO}, 14')
    k(f's_lshl_b32 s47, s{S_TOK}, 3')
    k('s_add_u32 s51, s51, s47')
    k(f's_add_u32 s51, s51, {WS_PS}')
    k(f's_mov_b32 s47, {OOB}')
    k(f's_cmp_lt_u32 s{S_NT}, 10')
    k('s_cselect_b32 s51, s51, s47')
    k(f's_mul_i32 s52, s{S_RHO}, 7680')
    k(f's_lshl_b32 s49, s{S_NT}, 9')
    k('s_add_u32 s52, s52, s49')
    k(f's_lshl_b32 s49, s{S_W4}, 7')
    k('s_add_u32 s52, s52, s49')
    k(f's_add_u32 s52, s52, {WS_PC}')
    k(f's_cmp_lt_u32 s{S_MT}, 10')
    k('s_cselect_b32 s52, s52, s47')
    k(f's_cmp_lt_u32 s{S_I32}, 30')
    k('s_cselect_b32 s51, s51, s47')
    k('s_cselect_b32 s52, s52, s47')
    k(f'buffer_store_dwordx2 {v(96,2)}, v109, {WSR}, s51 offen sc1')
    sctok = k(f'buffer_store_dword v96, v102, {WSR}, s52 offen sc1')
    if OPT.get('qclr', 0):
        k(f's_lshl_b32 s60, s{S_NT}, 5')
        k(f's_lshl_b32 s61, s{S_W4}, 3')
        k('s_add_u32 s60, s60, s61')
        k('s_lshl_b32 s60, s60, 14')
        k(f's_lshl_b32 s61, s{S_MT}, 10')
        k('s_add_u32 s64, s60, s61')
        k(f's_lshr_b32 s60, s{S_TOK}, 5')
        k('s_mul_i32 s60, s60, 40960')
        k(f's_sub_u32 s61, s{S_NT}, 10')
        k('s_lshl_b32 s61, s61, 11')
        k('s_add_u32 s65, s60, s61')
        k(f's_cmp_lt_u32 s{S_I32}, 30')
        k(f's_cselect_b32 s64, s64, {OOB}')
        k(f's_cselect_b32 s65, s65, {OOB}')
        for n in range(8):
            k(f's_add_u32 s60, s64, {WS_QG + n*16384}')
            k(f's_add_u32 s61, s65, {WS_VF + (n//2)*10240 + (n%2)*1024}')
            k(f's_cmp_lt_u32 s{S_NT}, 10')
            k('s_cselect_b32 s60, s60, s61')
            if OPT.get('qclr') == 2:
                k('s_sleep 4')
            sctok = k(f'buffer_store_dwordx4 {v(96,4)}, v100, {WSR}, s60 offen sc1')
    NV = 252
    if OPT.get('tlb', 0) & 1:
        k('v_lshlrev_b32 v115, 20, v1')
        for n_, sr in enumerate((S_WS, S_WO, S_WG, S_WU, S_WD, S_OUT)):
            k(f's_cmp_eq_u32 s{S_W4}, {n_ % 4}')
            k(f's_cselect_b32 s60, 0, {OOB}')
            k(f'buffer_load_dword v{116+n_}, v115, s[{sr}:{sr+3}], s60 offen')
    if OPT.get('tlb', 0) & 2:
        k('v_and_b32 v115, 15, v1')
        k(f's_lshl_b32 s60, s{S_I32}, 4')
        k('v_add_u32 v115, s60, v115')
        k('v_lshlrev_b32 v115, 16, v115')
        k(f's_cmp_eq_u32 s{S_W4}, 1')
        k(f's_cselect_b32 s60, 0, {OOB}')
        k(f'buffer_load_dword v116, v115, {WSR}, s60 offen')
        k('v_and_b32 v115, 1, v1')
        k(f's_lshl_b32 s60, s{S_I32}, 1')
        k('v_add_u32 v115, s60, v115')
        k('v_lshlrev_b32 v115, 16, v115')
        for n_, sr in enumerate((S_WO, S_WG, S_WU, S_WD, S_OUT)):
            k(f's_cmp_eq_u32 s{S_W4}, {2 + n_ % 2}')
            k(f's_cselect_b32 s60, 0, {OOB}')
            k(f'buffer_load_dword v{117+n_}, v115, s[{sr}:{sr+3}], s60 offen')
    def warm():
        k('v_lshlrev_b32 v110, 7, v0')
        k(f's_and_b32 s60, s{S_X8}, 3')
        k('s_lshl_b32 s60, s60, 5')
        k(f's_add_u32 s60, s60, s{S_I32}')
        k('s_mul_i32 s60, s60, 20480')
        k('v_cmp_gt_u32 vcc, 160, v0')
        k(f'v_mov_b32 v111, {OOB}')
        k('v_cndmask_b32 v110, v111, v110, vcc')
        k(f'buffer_load_dword v111, v110, s[{S_X}:{S_X+3}], s60 offen')
        k('v_lshrrev_b32 v110, 4, v0')
        k('v_mul_u32_u24 v110, 3840, v110')
        k('v_and_b32 v112, 15, v0')
        k('v_lshl_add_u32 v110, v112, 7, v110')
        k(f's_mul_i32 s60, s{S_I32}, {20*3840}')
        k(f's_lshr_b32 s61, s{S_X8}, 2')
        k('s_mul_i32 s61, s61, 1792')
        k('s_add_u32 s60, s60, s61')
        k(f'buffer_load_dword v113, v110, s[{S_WQKV}:{S_WQKV+3}], s60 offen')
        k(f's_add_u32 s60, s60, {16*3840}')
        k(f's_mov_b32 s61, {OOB}')
        k(f's_cmp_eq_u32 s{S_W4}, 0')
        k('s_cselect_b32 s60, s60, s61')
        k(f'buffer_load_dword v114, v110, s[{S_WQKV}:{S_WQKV+3}], s60 offen')
    if OPT.get('warm', 0) == 1:
        warm()
    k('v_lshrrev_b32 v41, 5, v1')
    k('v_bfe_u32 v42, v1, 1, 3')
    k('v_xor_b32 v42, v42, v41')
    k('v_lshlrev_b32 v43, 7, v40')
    k('v_lshl_add_u32 v43, v42, 4, v43')
    k(f'v_add_u32 v10, s{S_LW}, v43')
    for ks in range(1, 4):
        k(f'v_xor_b32 v{10+ks}, {ks*32}, v10')
    k('v_bfe_u32 v42, v1, 2, 2')
    k('v_lshl_add_u32 v43, v41, 3, v42')
    k('v_lshlrev_b32 v43, 8, v43')
    k('v_bfe_u32 v44, v1, 4, 1')
    k('v_lshl_add_u32 v43, v44, 5, v43')
    k('v_and_b32 v44, 3, v1')
    k('v_lshl_add_u32 v43, v44, 3, v43')
    k('v_add_u32 v43, 16384, v43')
    for j in range(4):
        k(f's_add_u32 s49, s{S_W4}, {j}')
        k('s_and_b32 s49, s49, 3')
        k('v_xor_b32 v44, s49, v42')
        k(f'v_lshl_add_u32 v{14+j}, v44, 6, v43')
    for i in range(8):
        k(f'v_add_u32 v{18+i}, 65536, v{10+i}')
    VSUM, VSQ, VCS, VONE = 34, 35, 36, 37
    k(f'v_mov_b32 v{VSUM}, 0')
    k(f'v_mov_b32 v{VSQ}, 0')
    k(f'v_mov_b32 v{VCS}, 0')
    k(f'v_mov_b32 v{VONE}, 0x3f803f80')
    k('v_lshrrev_b32 v105, 5, v1')
    k(f'v_mul_u32_u24 v103, {5*16384}, v105')
    k('v_add_u32 v103, v103, v109')
    k(f'v_mul_u32_u24 v104, {5*7680}, v105')
    k('v_add_u32 v104, v104, v102')
    k(f's_lshl_b32 s53, s{S_TOK}, 3')
    k(f's_add_u32 s53, s53, {WS_PS}')
    k(f's_lshl_b32 s54, s{S_NT}, 9')
    k(f's_lshl_b32 s49, s{S_W4}, 7')
    k('s_add_u32 s54, s54, s49')
    k(f's_add_u32 s54, s54, {WS_PC}')
    k('s_sub_u32 s55, s56, 5')
    k('s_cmp_ge_u32 s56, 5')
    k('s_cselect_b32 s55, s55, s56')
    XF, WF, ACC = 40, 48, 128
    PR, PCR, FL = 232, 242, 248
    stamp(k, 1)
    def nonce_share():
        def blk():
            loop, done = k.newlabel('NL'), k.newlabel('ND')
            first = k.newlabel('NF')
            k(f's_branch {first}')
            k.label(loop)
            k.raw(f'    buffer_load_dword v{NV}, v{NV+1}, s[{S_DBG}:{S_DBG+3}], 0 offen sc1')
            k.label(first)
            k.raw('    s_waitcnt vmcnt(0)')
            k(f'v_readfirstlane_b32 s{S_NONCE}, v{NV}')
            k(f's_cmp_lg_u32 s{S_NONCE}, 0')
            k(f's_cbranch_scc1 {done}')
            k(f's_cmp_eq_u32 s{S_BUD}, 0')
            k(f's_cbranch_scc1 {done}')
            k(f's_sub_u32 s{S_BUD}, s{S_BUD}, 1')
            k('s_sleep 4')
            k(f's_branch {loop}')
            k.label(done)
            k(f'v_mov_b32 v{NV+1}, {XNONCE}')
            k.raw(f'    ds_write_b32 v{NV+1}, v{NV}')
            k.raw('    s_waitcnt lgkmcnt(0)')
        k(f's_cmp_eq_u32 s{S_W}, 0')
        k.outline('s_cbranch_scc1', blk)
        k.wait(sctok)

    def nonce_pre():
        def blk():
            k(f'v_mov_b32 v{NV+1}, 0')
            k.raw(f'    buffer_load_dword v{NV}, v{NV+1}, s[{S_DBG}:{S_DBG+3}], 0 offen sc1')
        k(f's_cmp_eq_u32 s{S_W}, 0')
        k.outline('s_cbranch_scc1', blk)

    def nonce_get():
        rflag_store(k, WS_F0, 2, 107, 108)
        nonce_from_lds(k, 107)
    k(f'v_mov_b32 v107, {XCNT}')
    k('v_mov_b32 v108, 0')
    k('ds_write_b32 v107, v108')
    k('ds_write_b32 v107, v108 offset:4')
    k.wait_all(vm=False)
    if OPT.get('warm', 0) == 3:
        k('s_sleep 20')
        warm()
    stamp(k, 2)
    k('s_barrier')
    nonce_pre()
    if OPT.get('warm', 0) == 2:
        warm()
    stamp(k, 3)
    lab_v, lab_h, lab_done = k.newlabel('P1_V'), k.newlabel('C_HELP'), k.newlabel('C_P1D')
    k(f's_cmp_ge_u32 s{S_I32}, 30')
    k(f's_cbranch_scc1 {lab_h}')
    k(f's_cmp_ge_u32 s{S_NT}, 10')
    k(f's_cbranch_scc1 {lab_v}')
    saved = k.snap()
    T = {}

    def part_loads(c):
        for n in range(5):
            c(f's_add_u32 s58, s53, {n*16384}')
            c(f'buffer_load_dwordx2 {v(PR+2*n,2)}, v103, {WSR}, s58 offen sc1')
        tok = None
        for n in range(5):
            c(f's_add_u32 s58, s54, {n*7680}')
            tok = c(f'buffer_load_dword v{PCR+n}, v104, {WSR}, s58 offen sc1')
        return tok

    def mainloop(transposed):
        rd = {}

        def reads(kk):
            st, ks = kk // 4, kk % 4
            slot = st % P1_R
            q, so = slot // 2, (slot % 2) * P1_SLOT
            b = kk % 2
            ops = [[] for _ in range(4)]
            ops[0].append(lambda: rd.__setitem__((kk, 'x'), k(
                f'ds_read_b128 {v(XF+4*b,4)}, v{10+8*q+ks} offset:{so}')))
            for j in range(4):
                for hf in range(2):
                    ops[j].append(lambda j=j, hf=hf: rd.__setitem__((kk, j), k(
                        f'ds_read_b64_tr_b16 {v(WF+16*b+4*j+2*hf,2)}, v{14+8*q+j} offset:{so+ks*4096+hf*1024}')))
            return ops
        for l_ in reads(0):
            runall(k, l_)
        clr = clear_ops(k, 96, 100)
        for kk in range(40):
            b = kk % 2
            if kk % 8 == 4:
                stamp(k, 4 + kk // 8)
            fill, rds = [], []
            if kk >= OPT.get('clr0', 31) and clr:
                fill.append(clr.pop(0))
            if kk + 1 < 40:
                if (kk + 1) % 4 == 0:
                    if kk == 7:
                        nonce_share()
                    if (kk + 1) // 4 in ctok:
                        k.wait(ctok[(kk + 1) // 4])
                    k.wait_all(vm=False)
                    k('s_barrier')
                    if kk == 7:
                        nonce_get()
                rds = reads(kk + 1)
            if kk < 20:
                def dots(b=b, kk=kk):
                    for i in range(4):
                        k(f'v_dot2_f32_bf16 v{VSUM}, v{XF+4*b+i}, v{VONE}, v{VSUM}')
                        k(f'v_dot2_f32_bf16 v{VSQ}, v{XF+4*b+i}, v{XF+4*b+i}, v{VSQ}')
                        k(f'v_dot2_f32_bf16 v{VCS}, v{WF+16*b+i}, v{VONE}, v{VCS}')
                    if kk % 4 == 3:
                        xsum(k, VSUM, 80, 81)
                        xsum(k, VSQ, 80, 81)
                        xsum(k, VCS, 80, 81)
                        k.raw(f'    buffer_store_dwordx2 {v(VSUM,2)}, v109, {WSR}, s51 offen sc1')
                        k.raw(f'    buffer_store_dword v{VCS}, v102, {WSR}, s52 offen sc1')

                def g_(dots=dots, kk=kk):
                    k(f's_cmp_eq_u32 s55, {kk//4}')
                    k.outline('s_cbranch_scc1', dots)
                fill.append(g_)
            if kk == 22:
                fill.append(lambda: T.__setitem__('flags', flags_issue(k, WS_F0, FL, 106)))
            if kk == 30:
                def f():
                    flags_check(k, WS_F0, FL, 106, T['flags'])
                    T['part'] = part_loads(k)
                fill.append(f)
            if kk == 38:
                fill.append(lambda: finalize(transposed))
            mf = []
            for j in range(4):
                c = '0' if kk == 0 else v(ACC + 16 * j, 16)
                A_, B_ = v(WF + 16 * b + 4 * j, 4), v(XF + 4 * b, 4)
                if not transposed:
                    A_, B_ = B_, A_
                mf.append((lambda j=j: [rd[kk, 'x'], rd[kk, j]],
                           f'v_mfma_f32_32x32x16_bf16 {v(ACC+16*j,16)}, {A_}, {B_}, {c}'))
            roll_step(k, mf, rds, fill)

    def finalize(transposed):
        k.wait(T['part'])
        check_group(k, list(range(PR, PR + 10)) + list(range(PCR, PCR + 5)), 80, part_loads)
        for n in range(1, 5):
            k(f'v_pk_add_f32 {v(PR,2)}, {v(PR,2)}, {v(PR+2*n,2)}')
            k(f'v_add_f32 v{PCR}, v{PCR}, v{PCR+n}')
        xsum(k, PCR, 80, 81)
        k(f's_lshl_b32 s49, s{S_W4}, 7')
        k(f's_add_u32 s49, s49, {XCH}')
        k('v_add_u32 v82, s49, v102')
        k(f'ds_write_b32 v82, v{PCR}')
        vsum, vsq = PR, PR + 1
        xsum(k, vsum, 80, 81)
        xsum(k, vsq, 80, 81)
        k(f'v_mul_f32 v{vsum}, {f32(1.0/640)}, v{vsum}')
        k(f'v_mul_f32 v{vsq}, {f32(1.0/640)}, v{vsq}')
        k(f'v_fma_f32 v{vsq}, -v{vsum}, v{vsum}, v{vsq}')
        k(f'v_max_f32 v{vsq}, 0, v{vsq}')
        rbf(k, 80, vsum)
        rbf(k, 81, vsq)
        k(f'v_add_f32 v81, {f32(1e-5)}, v81')
        rbf(k, 81, 81)
        k('v_sqrt_f32 v81, v81')
        rbf(k, 81, 81)
        k('v_rcp_f32 v38, v81')
        if transposed:
            k(f's_mov_b32 s49, {f32(math.log2(math.e)/math.sqrt(20.0))}')
            k(f's_cmp_lt_u32 s{S_NT}, 5')
            k('s_cselect_b32 s49, s49, 1.0')
            k('v_mul_f32 v38, s49, v38')
        k('v_mul_f32 v39, v80, v38')
        k('v_sub_f32 v39, 0, v39')
        if not transposed:
            k(f's_lshl_b32 s49, s{S_W4}, 8')
            k(f's_add_u32 s49, s49, {XCH}')
            k('v_add_u32 v83, s49, v102')
            k('ds_write_b32 v83, v38 offset:1024')
            k('ds_write_b32 v83, v39 offset:1152')

    def fin():
        stamp(k, 10)
        k(f's_lshl_b32 s49, s{S_MT}, 4')
        k(f's_add_u32 s49, s49, s{S_NT}')
        k.wait_all()
        wflag_store(k, WS_F2, 49, 80, 81, 0)
        k(f's_branch {lab_done}')

    mainloop(True)
    stamp(k, 9)
    k.wait_all(vm=False)
    k('s_barrier')
    k(f's_lshl_b32 s49, s{S_TOK}, 3')
    k('v_add_u32 v84, s49, v109')
    k('v_lshl_add_u32 v84, v105, 14, v84')
    k('v_lshlrev_b32 v85, 4, v105')
    k(f'v_add_u32 v85, {XCH}, v85')
    toks = {}

    def csreads(j):
        k(f's_add_u32 s49, s{S_W4}, {j}')
        k('s_and_b32 s49, s49, 3')
        k('s_lshl_b32 s52, s49, 7')
        k('v_add_u32 v86, s52, v85')
        for a_ in range(4):
            toks[j, a_] = k(f'ds_read_b128 {v(192+16*(j%2)+4*a_,4)}, v86 offset:{a_*32}')
    csreads(0)
    csreads(1)
    for j in range(4):
        k(f's_add_u32 s49, s{S_W4}, {j}')
        k('s_and_b32 s49, s49, 3')
        k(f's_lshl_b32 s52, s{S_NT}, 5')
        k('s_lshl_b32 s53, s49, 3')
        k('s_add_u32 s52, s52, s53')
        k('s_lshl_b32 s52, s52, 14')
        C0 = 192 + 16 * (j % 2)
        for a_ in range(4):
            k.wait(toks[j, a_])
            r0 = ACC + 16 * j + 4 * a_
            for p in range(2):
                k(f'v_pk_mul_f32 {v(C0+4*a_+2*p,2)}, {v(C0+4*a_+2*p,2)}, {v(38,2)} op_sel:[0,1] op_sel_hi:[1,1]')
                k(f'v_pk_fma_f32 {v(r0+2*p,2)}, {v(r0+2*p,2)}, {v(38,2)}, {v(C0+4*a_+2*p,2)} op_sel_hi:[1,0,1]')
            k(f'v_cvt_pk_bf16_f32 v{112+2*a_}, v{r0}, v{r0+1}')
            k(f'v_cvt_pk_bf16_f32 v{113+2*a_}, v{r0+2}, v{r0+3}')
            k(f's_add_u32 s53, s52, {WS_QG + a_*32768}')
            k(f'buffer_store_dwordx2 {v(112+2*a_,2)}, v84, {WSR}, s53 offen sc1')
        if j + 2 < 4:
            csreads(j + 2)
    fin()
    k.label(lab_v)
    k.restore(saved)
    mainloop(False)
    stamp(k, 9)
    k.wait_all(vm=False)
    k('s_barrier')
    k(f's_lshl_b32 s49, s{S_W4}, 8')
    k(f's_add_u32 s49, s49, {XCH}')
    k('v_lshlrev_b32 v86, 4, v105')
    k('v_add_u32 v86, s49, v86')
    tl = []
    for a_ in range(4):
        tl.append(k(f'ds_read_b128 {v(192+4*a_,4)}, v86 offset:{1024+a_*32}'))
        tl.append(k(f'ds_read_b128 {v(208+4*a_,4)}, v86 offset:{1152+a_*32}'))
    for j in range(4):
        k(f's_add_u32 s52, s{S_W4}, {j}')
        k('s_and_b32 s52, s52, 3')
        k('s_lshl_b32 s52, s52, 7')
        k(f's_add_u32 s52, s52, {XCH}')
        k('v_add_u32 v87, s52, v102')
        tl.append(k(f'ds_read_b32 v{224+2*j}, v87'))
    k('v_mul_u32_u24 v84, 10240, v105')
    k('v_lshl_add_u32 v84, v102, 2, v84')
    k(f's_lshr_b32 s53, s{S_TOK}, 5')
    k('s_mul_i32 s53, s53, 40960')
    k(f's_sub_u32 s54, s{S_NT}, 10')
    k('s_lshl_b32 s54, s54, 11')
    k('s_add_u32 s53, s53, s54')
    k(f's_add_u32 s53, s53, {WS_VF}')
    k.wait(*tl)
    for j in range(4):
        k(f's_add_u32 s52, s{S_W4}, {j}')
        k('s_and_b32 s52, s52, 3')
        k('s_lshl_b32 s52, s52, 9')
        k('s_add_u32 s52, s52, s53')
        for m in range(2):
            for p in range(4):
                i = 8 * m + 2 * p
                r0 = ACC + 16 * j + i
                k(f'v_pk_mul_f32 {v(88+2*(p%2),2)}, {v(208+i,2)}, {v(224+2*j,2)} op_sel_hi:[1,0]')
                k(f'v_pk_fma_f32 {v(r0,2)}, {v(r0,2)}, {v(192+i,2)}, {v(88+2*(p%2),2)}')
                k(f'v_cvt_pk_bf16_f32 v{112+8*(j%2)+4*m+p}, v{r0}, v{r0+1}')
            k(f's_add_u32 s54, s52, {m*20480}')
            k(f'buffer_store_dwordx4 {v(112+8*(j%2)+4*m,4)}, v84, {WSR}, s54 offen sc1')
    fin()
    k.label(lab_h)
    k.restore(saved)
    nonce_share()
    k('s_barrier')
    nonce_get()
    for _ in range(8):
        k('s_barrier')
    runall(k, clear_ops(k, 96, 100))
    k('s_barrier')
    k(f's_lshl_b32 s49, s{S_X8}, 1')
    k(f's_add_u32 s49, s49, s{S_I32}')
    k('s_sub_u32 s49, s49, 30')
    k('s_lshl_b32 s49, s49, 4')
    k('s_add_u32 s49, s49, 15')
    k.wait_all()
    wflag_store(k, WS_F2, 49, 80, 81, 0)
    k.label(lab_done)


class G35:
    def __init__(self, k, which, groups, vb, sb):
        self.k = k
        self.which = which
        self.KT = 640 if which == 3 else 1536
        self.NST = self.KT // 128
        self.SB = S_WO if which == 3 else S_WD
        self.groups = groups
        self.vb = vb
        self.sb = sb
        self.btok = {}
        self.rtok = {}
        self.sr = 36 if which == 3 else 37

    def set_rho(self, sct):
        k = self.k
        sr = self.sr
        if not OPT.get('rot35', 1):
            k(f's_mov_b32 s{sr}, 0')
        elif self.which == 3:
            k(f's_sub_u32 s{sr}, s{sct}, 5')
            k(f's_cmp_ge_u32 s{sct}, 5')
            k(f's_cselect_b32 s{sr}, s{sr}, s{sct}')
        else:
            k(f's_mul_i32 s{sr}, s{sct}, 3')
            k(f's_lshr_b32 s{sr}, s{sr}, 1')

    def rot(self, c, st, sreg, stmp, mul, src=None):
        c(f's_add_u32 s{sreg}, s{self.sr if src is None else src}, {st}')
        c(f's_sub_u32 s{stmp}, s{sreg}, {self.NST}')
        c(f's_cmp_ge_u32 s{sreg}, {self.NST}')
        c(f's_cselect_b32 s{sreg}, s{stmp}, s{sreg}')
        c(f's_mul_i32 s{sreg}, s{sreg}, {mul}')

    def dma_setup(self, t0):
        k, vb, sb = self.k, self.vb, self.sb
        tile35(k, 61, 60, sb)
        self.set_rho(60)
        k('s_mul_i32 s60, s60, 160')
        k(f's_mul_i32 s{sb+1}, s{S_W4}, {(self.KT//4)*1280}')
        k(f's_add_u32 s60, s60, s{sb+1}')
        for n in range(5):
            k(f'v_add_u32 v{t0}, {64*n}, v1')
            k(f'v_mul_u32_u24 v{t0+1}, 6554, v{t0}')
            k(f'v_lshrrev_b32 v{t0+1}, 16, v{t0+1}')
            k(f'v_mul_u32_u24 v{t0+2}, 10, v{t0+1}')
            k(f'v_sub_u32 v{t0+2}, v{t0}, v{t0+2}')
            k(f'v_bfe_u32 v{t0+3}, v{t0+1}, 3, 1')
            k(f'v_lshlrev_b32 v{t0+3}, 2, v{t0+3}')
            k(f'v_xor_b32 v{t0+1}, v{t0+1}, v{t0+3}')
            k(f'v_mul_u32_u24 v{t0+1}, 1280, v{t0+1}')
            k(f'v_lshl_add_u32 v{vb+n}, v{t0+2}, 4, v{t0+1}')
            k(f'v_add_u32 v{vb+n}, s60, v{vb+n}')
            if 0 < n < 4:
                k(f'v_subrev_u32 v{vb+n}, {n*1024}, v{vb+n}')
        k(f's_mul_i32 s{sb}, s{S_W4}, 5120')

    def dma_step(self, st):
        k, vb, sb = self.k, self.vb, self.sb
        base = self.groups[st % len(self.groups)]
        SB = self.SB
        ops = []

        def f0():
            k(f's_add_u32 m0, s{sb}, {base}')
            self.rot(k, st, sb + 1, 38, 32 * 1280)
        ops.append(f0)
        for n in range(4):
            ops.append(lambda n=n: self.btok.__setitem__(st, k(
                f'buffer_load_dwordx4 v{vb+n}, s[{SB}:{SB+3}], s{sb+1} offen offset:{n*1024} lds')))
        ops.append(lambda: k(f's_add_u32 m0, s{sb}, {base+4096}'))
        ops.append(lambda: self.btok.__setitem__(st, k(
            f'buffer_load_dwordx4 v{vb+4}, s[{SB}:{SB+3}], s{sb+1} offen lds')))
        return ops

    def breg_load(self, st, r0):
        k, vb, sb, SB = self.k, self.vb, self.sb, self.SB
        self.rot(k, st, sb + 1, 38, 32 * 1280)
        for n in range(4):
            k(f'buffer_load_dwordx4 {v(r0+4*n,4)}, v{vb+n}, s[{SB}:{SB+3}], s{sb+1} offen offset:{n*1024}')
            if OPT.get('pace', 0):
                k(f's_sleep {OPT.get("pace")}')
        self.rtok[st] = (k(f'buffer_load_dwordx4 {v(r0+16,4)}, v{vb+4}, s[{SB}:{SB+3}], s{sb+1} offen'), r0)

    def breg_write(self, st, va):
        k = self.k
        tok, r0 = self.rtok[st]
        base = self.groups[st % len(self.groups)]
        q, so = base // 61440, base % 61440
        k.wait(tok)
        for n in range(5):
            self.btok[st] = k(f'ds_write_b128 v{va+q}, {v(r0+4*n,4)} offset:{so+n*1024}')

    def loader(self, nb_pre, st0=0):
        k, NST = self.k, self.NST
        NG = len(self.groups)
        k('v_lshlrev_b32 v12, 4, v1')
        k(f's_mul_i32 s46, s{S_W4}, 5120')
        k('v_add_u32 v21, s46, v12')
        k('v_add_u32 v22, 61440, v21')
        k('v_add_u32 v23, 122880, v21')
        stamp(k, st0)
        nb = nb_pre
        for st in range(NST):
            k.wait(self.btok[st])
            k('s_barrier')
            if nb < NST and nb - NG <= st - 1:
                if nb in self.rtok:
                    self.breg_write(nb, 21)
                else:
                    runall(k, self.dma_step(nb))
                nb += 1
        stamp(k, st0 + 3)

    def compute(self, own_tok, st0=0):
        k, NST, which, KT = self.k, self.NST, self.which, self.KT
        NG = len(self.groups)
        ABASE = WS_OC if which == 3 else WS_HC
        S_RT, S_CT, S_PAR = 44, 45, 50
        tile35(k, 44, 45, 46)
        self.set_rho(45)
        k('s_mov_b32 s50, 0')
        k(f's_mul_i32 s51, s{S_W4}, 5120')
        k('v_and_b32 v15, 15, v1')
        k('v_lshrrev_b32 v16, 4, v1')
        k('v_bfe_u32 v17, v1, 2, 2')
        k('v_lshl_add_u32 v18, v16, 3, v17')
        k('v_bfe_u32 v20, v1, 4, 1')
        k('v_lshlrev_b32 v20, 2, v20')
        k('v_xor_b32 v19, v18, v20')
        k('v_xor_b32 v22, 4, v19')
        k('v_and_b32 v21, 3, v1')
        RA = 24
        for hf, src in ((0, 19), (1, 22)):
            k(f'v_mul_u32_u24 v{RA+hf}, 160, v{src}')
            k(f'v_lshl_add_u32 v{RA+hf}, v21, 3, v{RA+hf}')
            k(f'v_add_u32 v{RA+hf}, s51, v{RA+hf}')
        QS = 61440
        for q in (1, 2):
            for i in range(2):
                k(f'v_add_u32 v{RA+2*q+i}, {q*QS}, v{RA+i}')
        k('v_lshlrev_b32 v2, 4, v1')
        k('v_lshlrev_b32 v3, 4, v15')
        k('v_lshl_add_u32 v3, v16, 15, v3')
        for tau in range(4):
            k(f's_add_u32 s46, s{S_W4}, {tau}')
            k('s_and_b32 s46, s46, 3')
            k('s_lshl_b32 s46, s46, 8')
            k(f'v_add_u32 v{4+tau}, s46, v3')
        k('s_lshl_b32 s53, s44, 10')
        k(f's_mul_i32 s54, s{S_W4}, {(KT//32)*32768}')
        k('s_add_u32 s53, s53, s54')
        k(f's_add_u32 s53, s53, {ABASE}')
        NW = 5
        AFR = 164
        atok = {}

        def aload(c, st, sreg):
            self.rot(c, st, sreg, 38, 4 * 32768)
            c(f's_add_u32 s{sreg}, s{sreg}, s53')
            t_ = None
            for t in range(4):
                t_ = c(f'buffer_load_dwordx4 {v(AFR+16*(st%NW)+4*t,4)}, v{4+t}, {WSR}, s{sreg} offen sc1')
            return t_
        RES = 244
        k(f's_lshl_b32 s46, s{S_RT}, 6')
        k(f's_lshl_b32 s47, s{S_W4}, 4')
        k('s_add_u32 s46, s46, s47')
        S_TK = 46
        k('v_add_u32 v12, s46, v15')
        if which == 3:
            k('v_mul_u32_u24 v13, 1280, v12')
            k('v_lshl_add_u32 v13, v16, 3, v13')
            k(f's_mul_i32 s47, s{S_CT}, 160')
            k(f's_lshl_b32 s48, s{S_PAR}, 5')
            k('s_add_u32 s48, s48, s47')
            k(f's_lshl_b32 s49, s{S_PAR}, 7')
            k('s_sub_u32 s49, 128, s49')
            k('s_add_u32 s49, s49, s47')
            for jt in range(4):
                k(f'buffer_load_dwordx2 {v(RES+2*jt,2)}, v13, s[{S_X}:{S_X+3}], s48 offen offset:{jt*32}')
            rtk = k(f'buffer_load_dwordx2 {v(RES+8,2)}, v13, s[{S_X}:{S_X+3}], s49 offen')
            tile4(k, 48, 49, 47)
            k('s_lshl_b32 s48, s48, 4')
            k('s_add_u32 s49, s49, s48')
            stamp(k, st0 - 1)
            k('s_barrier')
            rflag_store(k, WS_F3, 49, 8, 9)
            stamp(k, st0)
            if OPT.get('odelay', 0):
                k(f's_sleep {OPT.get("odelay")}')
        else:
            stamp(k, st0)
            k.wait(own_tok)
        stamp(k, st0 + 1)
        ACC, WF = 44, 124
        D = OPT.get('ad', 3)
        for st in range(D):
            atok[st] = aload(k, st, 54)
        rt = {}

        def reads(st):
            base = self.groups[st % NG]
            q, so = base // QS, base % QS
            b = st % 2
            ops = []
            for jt in range(5):
                for hf in range(2):
                    ops.append(lambda jt=jt, hf=hf: rt.__setitem__((st, jt), k(
                        f'ds_read_b64_tr_b16 {v(WF+20*b+4*jt+2*hf,2)}, v{RA+2*q+hf} offset:{so+jt*32}')))
            return ops
        if which == 5:
            k('s_barrier')
        runall(k, reads(0))
        na = D
        for st in range(NST):
            b = st % 2
            R0 = AFR + 16 * (st % NW)
            if which == 5 and OPT.get('p5st') and st >= 1:
                stamp(k, 12 + st)
            k.wait(atok[st])
            check_group(k, range(R0, R0 + 16), 14, lambda c, st=st: aload(c, st, 58))
            if st == 0:
                stamp(k, st0 + 2)
            if which == 5 and OPT.get('p5st') and st >= 1:
                stamp(k, st)
            mf = []
            for t in range(4):
                for jt in range(5):
                    acc = v(ACC + 20 * t + 4 * jt, 4)
                    c = '0' if st == 0 else acc
                    mf.append((lambda jt=jt: [rt[st, jt]],
                               f'v_mfma_f32_16x16x32_bf16 {acc}, {v(WF+20*b+4*jt,4)}, {v(R0+4*t,4)}, {c}'))
            rds = [[] for _ in range(20)]
            cnt = 0
            while na < NST and na <= st + NW - 1 and cnt < 2:
                def al(na=na):
                    self.rot(k, na, 54, 38, 4 * 32768)
                    k('s_add_u32 s54, s54, s53')
                rds[0 + 10 * cnt].append(al)
                for t in range(4):
                    rds[0 + 10 * cnt + 2 * t].append(lambda t=t, na=na: atok.__setitem__(na, k(
                        f'buffer_load_dwordx4 {v(AFR+16*(na%NW)+4*t,4)}, v{4+t}, {WSR}, s54 offen sc1')))
                na += 1
                cnt += 1
            if st + 1 < NST:
                if which == 5:
                    def bar():
                        k.wait_all(vm=False)
                        k('s_barrier')
                    rds[5].append(bar)
                for i, f in enumerate(reads(st + 1)):
                    rds[5 + i].append(f)
            roll_step(k, mf, rds, [])
        stamp(k, st0 + 3)
        for tau in range(1, 4):
            k(f's_add_u32 s47, s{S_W4}, {tau}')
            k('s_and_b32 s47, s47, 3')
            k('s_mul_i32 s47, s47, 15360')
            k(f'v_add_u32 v{17+tau}, s47, v2')
        k(f's_mul_i32 s47, s{S_W4}, 15360')
        k('v_add_u32 v21, s47, v2')
        k('s_barrier')
        for tau in range(1, 4):
            for jt in range(5):
                k(f'ds_write_b128 v{17+tau}, {v(ACC+20*tau+4*jt,4)} offset:{(tau-1)*5120+jt*1024}')
        k.wait_all(vm=False)
        k('s_barrier')
        S0, S1 = ACC, 124
        toks = {}
        for sidx in range(3):
            for jt in range(5):
                toks[sidx, jt] = k(f'ds_read_b128 {v(S1+20*sidx+4*jt,4)}, v21 offset:{sidx*5120+jt*1024}')
        for sidx in range(3):
            for jt in range(5):
                k.wait(toks[sidx, jt])
                for p in range(2):
                    r = 4 * jt + 2 * p
                    k(f'v_pk_add_f32 {v(S0+r,2)}, {v(S0+r,2)}, {v(S1+20*sidx+r,2)}')
        if which == 3:
            k('s_barrier')
            k.wait(rtk)
        stamp(k, st0 + 4)
        PK = 190
        for i in range(10):
            k(f'v_cvt_pk_bf16_f32 v{PK+i}, v{S0+2*i}, v{S0+2*i+1}')
        for i in range(10):
            k(f'v_lshlrev_b32 v{S0+2*i}, 16, v{PK+i}')
            k(f'v_and_b32 v{S0+2*i+1}, 0xffff0000, v{PK+i}')
            k(f'v_lshlrev_b32 v{S1+2*i}, 16, v{RES+i}')
            k(f'v_and_b32 v{S1+2*i+1}, 0xffff0000, v{RES+i}')
            k(f'v_pk_add_f32 {v(S0+2*i,2)}, {v(S0+2*i,2)}, {v(S1+2*i,2)}')
        if which == 3:
            PK = RES
        for i in range(10):
            k(f'v_cvt_pk_bf16_f32 v{PK+i}, v{S0+2*i}, v{S0+2*i+1}')
        if which == 3:
            k('v_lshlrev_b32 v13, 4, v12')
            k('v_lshrrev_b32 v14, 1, v16')
            k('v_lshl_add_u32 v13, v14, 15, v13')
            k('v_and_b32 v14, 1, v16')
            k('v_lshl_add_u32 v13, v14, 3, v13')
            k(f's_mul_i32 s47, s{S_CT}, 10')
            k(f's_lshl_b32 s48, s{S_PAR}, 1')
            k('s_add_u32 s48, s48, s47')
            k('s_lshl_b32 s48, s48, 15')
            k(f's_add_u32 s48, s48, {WS_H1}')
            k(f's_lshl_b32 s49, s{S_PAR}, 3')
            k('s_sub_u32 s49, 8, s49')
            k('s_add_u32 s49, s49, s47')
            k('s_lshl_b32 s49, s49, 15')
            k(f's_add_u32 s49, s49, {WS_H1}')
            for jt in range(4):
                k(f's_add_u32 s47, s48, {jt*65536}')
                k(f'buffer_store_dwordx2 {v(PK+2*jt,2)}, v13, {WSR}, s47 offen sc1')
            k(f'buffer_store_dwordx2 {v(PK+8,2)}, v13, {WSR}, s49 offen sc1')
            k('v_mov_b32 v152, 0')
            k('v_mov_b32 v153, 0')
            k('v_mov_b32 v154, 0x3f803f80')
            for i in range(10):
                k(f'v_dot2_f32_bf16 v152, v{PK+i}, v154, v152')
                k(f'v_dot2_f32_bf16 v153, v{PK+i}, v{PK+i}, v153')
            for r in (152, 153):
                xsum(k, r, 156, 157, 32)
                xsum(k, r, 156, 157, 16)
            k('v_lshlrev_b32 v14, 3, v12')
            k(f's_lshl_b32 s47, s{S_CT}, 14')
            k(f's_add_u32 s47, s47, {WS_HS}')
            k('s_mov_b64 exec, 0xffff')
            self.own = k(f'buffer_store_dwordx2 {v(152,2)}, v14, {WSR}, s47 offen sc1')
            k('s_mov_b64 exec, -1')
        else:
            P = 176
            k(f'v_mul_u32_u24 v13, {P}, v15')
            k('v_lshl_add_u32 v13, v16, 3, v13')
            k(f's_lshl_b32 s47, s{S_W4}, 12')
            k('s_add_u32 s47, s47, 65536')
            k('v_add_u32 v13, s47, v13')
            k(f's_lshl_b32 s48, s{S_PAR}, 5')
            k('v_add_u32 v14, s48, v13')
            k(f's_lshl_b32 s48, s{S_PAR}, 7')
            k('s_sub_u32 s48, 128, s48')
            k('v_add_u32 v13, s48, v13')
            for jt in range(4):
                k(f'ds_write_b64 v14, {v(PK+2*jt,2)} offset:{jt*32}')
            k(f'ds_write_b64 v13, {v(PK+8,2)}')
            k(f's_mul_i32 s48, s{S_CT}, 160')
            k(f's_mul_i32 s49, s{S_TK}, 1280')
            k('s_add_u32 s48, s48, s49')
            for it in range(3):
                k(f'v_add_u32 v17, {64*it}, v1')
                k('v_mul_u32_u24 v18, 6554, v17')
                k('v_lshrrev_b32 v18, 16, v18')
                k('v_mul_u32_u24 v19, 10, v18')
                k('v_sub_u32 v19, v17, v19')
                k(f'v_mul_u32_u24 v20, {P}, v18')
                k('v_lshl_add_u32 v20, v19, 4, v20')
                k(f'v_add_u32 v{160+it}, s47, v20')
                k('v_mul_u32_u24 v20, 1280, v18')
                k(f'v_lshl_add_u32 v{164+it}, v19, 4, v20')
            k.wait_all(vm=False)
            tl = [k(f'ds_read_b128 {v(168+4*it,4)}, v{160+it}') for it in range(3)]
            for it in range(3):
                k.wait(tl[it])
                if it == 2:
                    k('v_cmp_gt_u32 vcc, 32, v1')
                    k('s_mov_b64 exec, vcc')
                k(f'buffer_store_dwordx4 {v(168+4*it,4)}, v{164+it}, s[{S_OUT}:{S_OUT+3}], s48 offen sc1')
            k('s_mov_b64 exec, -1')


def p2_setup(k):
    LK, LV = 102400, 122880
    k(f's_and_b32 s45, s{S_I32}, 3')
    k(f's_lshl_b32 s44, s{S_X8}, 2')
    k('s_add_u32 s45, s45, s44')
    k(f's_lshr_b32 s44, s{S_I32}, 2')
    S_I, S_H = 44, 45
    k(f's_lshl_b32 s46, s{S_I}, 8')
    k('s_sub_u32 s47, s46, 256')
    k('s_max_i32 s47, s47, 0')
    k(f's_cmp_lt_u32 s{S_W4}, 2')
    k('s_cselect_b32 s48, s47, s46')
    k('s_mov_b32 s50, s48')
    k(f's_and_b32 s49, s{S_W4}, 1')
    k('s_lshl_b32 s49, s49, 7')
    k('s_add_u32 s48, s48, s49')
    k('s_lshl_b32 s48, s48, 3')
    k(f's_mul_i32 s49, s{S_H}, {5*16384}')
    k('s_add_u32 s48, s48, s49')
    k(f's_add_u32 s48, s48, {WS_KG}')
    k('v_lshlrev_b32 v2, 4, v1')
    k('s_lshr_b32 s50, s50, 3')
    k('s_mul_i32 s50, s50, 10240')
    k(f's_mul_i32 s49, s{S_H}, 320')
    k('s_add_u32 s50, s50, s49')
    k(f's_add_u32 s50, s50, {WS_VF}')
    k(f's_cmp_lt_u32 s{S_W}, 4')
    k('s_cselect_b32 s48, s48, s50')
    k('s_cselect_b64 s[96:97], -1, 0')
    k(f's_lshl_b32 s49, s{S_W4}, 10')
    k(f's_add_u32 s49, s49, {LK}')
    k(f's_mul_i32 s50, s{S_W4}, 5120')
    k(f's_add_u32 s50, s50, {LV}')
    k(f's_cmp_lt_u32 s{S_W}, 4')
    k('s_cselect_b32 s50, s49, s50')
    k('s_movk_i32 s56, 1024')
    k('s_cselect_b32 s56, 4096, s56')
    k(f's_and_b32 s49, s{S_W4}, 1')
    k('s_mul_i32 s49, s49, 320')
    for n in range(5):
        k(f'v_add_u32 v3, {n*64}, v1')
        k('v_add_u32 v3, s49, v3')
        k('v_mul_u32_u24 v4, 3277, v3')
        k('v_lshrrev_b32 v4, 16, v4')
        k('v_mul_u32_u24 v5, 20, v4')
        k('v_sub_u32 v5, v3, v5')
        k('v_mul_u32_u24 v4, 10240, v4')
        k(f'v_lshl_add_u32 v4, v5, 4, v4')
        k(f'v_add_u32 v5, {n*16384}, v2')
        k(f'v_cndmask_b32 v{6+n}, v4, v5, s[96:97]')
    k('v_and_b32 v12, 31, v1')
    k('v_lshrrev_b32 v13, 5, v1')
    k('v_lshlrev_b32 v14, 3, v12')
    k('v_lshl_add_u32 v15, v13, 15, v14')
    k(f's_lshl_b32 s51, s{S_W}, 5')
    k('s_add_u32 s51, s51, s46')
    S_Q0 = 51
    k('s_lshl_b32 s52, s51, 3')
    k(f's_mul_i32 s49, s{S_H}, {5*16384}')
    k('s_add_u32 s52, s52, s49')
    k(f's_add_u32 s52, s52, {WS_QG}')
    k('s_add_u32 s53, s52, 16384')
    k(f's_add_u32 s54, s52, {4*16384}')
    PM, NM, ONE, QF, KV, OACC, SB0 = 24, 32, 36, 40, 48, 72, 88
    k('v_lshlrev_b32 v3, 2, v13')
    for i in range(16):
        a_, b_ = i // 4, i % 4
        k(f'v_add_u32 v4, {8*a_+b_}, v3')
        k(f'v_cmp_le_u32 s[{64+2*i}:{65+2*i}], v4, v12')
    k('v_mov_b32 v5, 0xffff')
    k('v_mov_b32 v11, 0xffff0000')
    for p in range(8):
        k(f'v_cndmask_b32 v3, 0, v5, s[{64+4*p}:{65+4*p}]')
        k(f'v_cndmask_b32 v4, 0, v11, s[{66+4*p}:{67+4*p}]')
        k(f'v_or_b32 v{PM+p}, v3, v4')
    k('v_cmp_eq_u32 s[96:97], 1, v13')
    k('v_cmp_gt_u32 s[98:99], 20, v12')
    k('v_cmp_eq_u32 s[100:101], 0, v13')
    k(f's_lshl_b32 s49, s{S_W}, 8')
    k(f's_add_u32 s49, s49, {LK}')
    k('v_lshl_add_u32 v16, v13, 13, v14')
    k('v_add_u32 v16, s49, v16')
    k('v_add_u32 v17, s49, v14')
    k(f's_and_b32 s55, s{S_H}, 1')
    S_PI = 55
    k('v_bfe_u32 v3, v12, 3, 1')
    k('v_bfe_u32 v4, v12, 2, 1')
    k('v_and_b32 v5, 3, v12')
    k('v_lshl_add_u32 v18, v3, 2, v5')
    k('v_lshl_add_u32 v18, v4, 3, v18')
    k('s_lshl_b32 s49, s55, 2')
    k('v_add_u32 v18, s49, v18')
    k('s_lshl_b32 s49, s55, 4')
    k('s_sub_u32 s49, 16, s49')
    k('v_add_u32 v19, s49, v5')
    k('v_cmp_gt_u32 vcc, 16, v12')
    k('v_cndmask_b32 v18, v19, v18, vcc')
    k('v_mul_u32_u24 v19, 320, v13')
    k('v_lshl_add_u32 v18, v18, 4, v19')
    k(f's_mul_i32 s49, s{S_W}, 1280')
    k(f's_add_u32 s49, s49, {LV}')
    k('v_add_u32 v18, s49, v18')
    k('v_mov_b32 v19, 0')
    k('v_mov_b32 v4, 0x3f803f80')
    k('v_cmp_eq_u32 vcc, 20, v12')
    k('v_cndmask_b32 v19, v19, v4, vcc')
    k('v_cmp_eq_u32 vcc, 24, v12')
    k('v_cndmask_b32 v19, v19, v4, vcc')
    for b in range(3):
        k(f'v_mov_b32 v{KV+8*b+6}, 0')
        k(f'v_mov_b32 v{KV+8*b+7}, 0')
    k(f'v_mov_b32 v{QF+6}, 0')
    k(f'v_mov_b32 v{QF+7}, 0')
    k(f'v_cndmask_b32 v{ONE}, v4, 0, s[96:97]')
    for i in range(1, 4):
        k(f'v_mov_b32 v{ONE+i}, 0')
        k(f'v_mov_b32 v{NM+i}, 0')
    k('v_and_b32 v3, 15, v1')
    k(f's_mul_i32 s49, s{S_H}, 20')
    k('s_mov_b64 s[46:47], 0')
    for base, isq in ((0, True), (640, False), (1280, False)):
        for e in (0, 19):
            k(f's_add_u32 s60, s49, {base+e}')
            k('s_lshr_b32 s60, s60, 7')
            k('v_cmp_eq_u32 vcc, s60, v3')
            if isq:
                k('s_and_b64 vcc, vcc, s[96:97]')
            k('s_or_b64 s[46:47], s[46:47], vcc')
    k(f's_cmp_eq_u32 s{S_I}, 0')
    k('s_cselect_b32 s46, 0, s46')
    k(f's_lshl_b32 s49, s{S_I}, 7')
    k(f's_lshl_b32 s60, s{S_X8}, 10')
    k('s_add_u32 s49, s49, s60')
    k(f's_add_u32 s49, s49, {WS_F2 - 128}')
    k('v_lshlrev_b32 v3, 2, v1')


def emit_p2(k, g3):
    LK, LV = 102400, 122880
    S_I, S_H, S_Q0, S_PI = 44, 45, 51, 55
    PM, NM, ONE, QF, KV, OACC, SB0 = 24, 32, 36, 40, 48, 72, 88
    wflag_poll(k, 49, 3, 4, 46, 1, True)
    k('s_barrier')
    stamp(k, 12)
    k('s_mov_b32 m0, s50')
    for n in range(5):
        if n:
            k('s_add_u32 m0, m0, s56')
        k(f'buffer_load_dwordx4 v{6+n}, {WSR}, s48 offen sc1 lds')
    k(f'buffer_load_dwordx2 {v(QF,2)}, v15, {WSR}, s52 offen sc1')
    k(f'buffer_load_dwordx2 {v(QF+2,2)}, v15, {WSR}, s53 offen sc1')
    qt = k(f'buffer_load_dwordx2 {v(QF+4,2)}, v14, {WSR}, s54 offen sc1')
    k.wait(qt)
    k(f'v_cndmask_b32 v{QF+4}, v{QF+4}, 0, s[96:97]')
    k(f'v_cndmask_b32 v{QF+5}, v{QF+5}, 0, s[96:97]')
    k('s_barrier')
    if OPT.get('prio', 0):
        k(f's_cmp_ge_u32 s{S_W}, 4')
        k.outline('s_cbranch_scc1', lambda: k('s_setprio 1'))
    stamp(k, 13)
    pf, hc = [], []
    for i in range(4):
        k(f'v_mov_b32 v{244+i}, -1')
    tile4(k, 60, 61, 56)
    k('s_mul_i32 s61, s61, 12')
    k('s_lshl_b32 s61, s61, 15')
    k('s_lshl_b32 s60, s60, 11')
    k('s_add_u32 s56, s61, s60')
    k(f's_add_u32 s56, s56, {WS_HC}')
    for n in range(3):
        k(f's_mul_i32 s60, s{S_W}, 3')
        k(f's_add_u32 s60, s60, {n}')
        k('s_and_b32 s61, s60, 1')
        k('s_lshl_b32 s61, s61, 10')
        k('s_lshr_b32 s60, s60, 1')
        k('s_lshl_b32 s60, s60, 15')
        k('s_add_u32 s60, s60, s61')
        k('s_add_u32 s60, s60, s56')
        k(f'buffer_store_dwordx4 {v(244,4)}, v2, {WSR}, s60 offen sc1')
    if OPT.get('wgu', 2) == 2:
        k(f's_cmp_lt_u32 s{S_W}, 4')
        k.outline('s_cbranch_scc1', lambda: pf_wgu(k, 238, 239))

    def slot(i):
        return SB0 + 16 * i
    krd = {}

    def kreads(j):
        b = j % 3
        krd[j] = [k(f'ds_read_b64 {v(KV+8*b,2)}, v16 offset:{j*256}'),
                  k(f'ds_read_b64 {v(KV+8*b+2,2)}, v16 offset:{4096+j*256}'),
                  k(f'ds_read_b64 {v(KV+8*b+4,2)}, v17 offset:{16384+j*256}')]
    kreads(0)
    kreads(1)
    for j in range(9):
        b = j % 3
        d = v(slot(j), 16)
        k.wait(*krd[j])
        k(f'v_mfma_f32_32x32x16_bf16 {d}, {v(KV+8*b,4)}, {v(QF,4)}, 0')
        if j + 2 < 9:
            kreads(j + 2)
        k(f'v_mfma_f32_32x32x16_bf16 {d}, {v(KV+8*b+4,4)}, {v(QF+4,4)}, {d}')
    stamp(k, 14)
    lab = k.newlabel('P2_FIX')
    k(f's_cmp_lg_u32 s{S_I}, 0')
    k(f's_cbranch_scc1 {lab}')
    for jj in range(8):
        k(f's_cmp_ge_u32 s{S_W}, {8-jj}')
        k(f's_cbranch_scc1 {lab}')
        for i in range(16):
            k(f'v_mov_b32 v{slot(jj)+i}, {f32(-1e30)}')
    k.label(lab)
    for i in range(16):
        k(f'v_mov_b32 v{KV+i}, v19')
    M0, M1 = 20, 21
    ops = []
    regs = [slot(jj) + i for jj in (1, 2, 3, 4, 5, 6, 7, 0) for i in range(16)]
    for i in range(16):
        ops.append(f'v_cndmask_b32 v{slot(0)+i}, v{slot(0)+i}, v{slot(8)+i}, s[{64+2*i}:{65+2*i}]')
    ops += [f'v_max3_f32 v{M0}, v{regs[0]}, v{regs[1]}, v{regs[2]}',
            f'v_max3_f32 v{M1}, v{regs[3]}, v{regs[4]}, v{regs[5]}']
    i, t = 6, 0
    while i < 128:
        m = M0 if t % 2 == 0 else M1
        ops.append(f'v_max3_f32 v{m}, v{m}, v{regs[i]}, v{regs[i+1]}')
        i += 2
        t += 1
    ops += [f'v_max_f32 v{M0}, v{M0}, v{M1}',
            f'v_mov_b32 v{M1}, v{M0}',
            f'v_permlane32_swap_b32 v{M0}, v{M1}',
            f'v_max_f32 v{M0}, v{M0}, v{M1}',
            f'v_sub_f32 v{M0}, 0, v{M0}',
            f'v_cvt_pk_bf16_f32 v{M1}, v{M0}, v{M0}',
            f'v_lshlrev_b32 v{M1}, 16, v{M1}',
            f'v_sub_f32 v{M1}, v{M0}, v{M1}',
            f'v_cvt_pk_bf16_f32 v{NM}, v{M0}, v{M1}',
            f'v_cndmask_b32 v{NM}, v{NM}, 0, s[96:97]']
    spread(k, ops, pf[:2])
    pf = pf[2:]
    stamp(k, 15)
    vrd = {}
    nbuf = [0]

    def vreads(jkey):
        toks, bufs = [], []
        k('s_mov_b64 exec, s[98:99]')
        for m in range(2):
            bi = nbuf[0] % 4
            nbuf[0] += 1
            bufs.append(bi)
            toks.append(k(f'ds_read_b128 {v(KV+4*bi,4)}, v18 offset:{jkey*1280+m*640}'))
        k('s_mov_b64 exec, -1')
        vrd[jkey] = (toks, bufs)
    first = [True]
    oacc = v(OACC, 16)

    def pv_ops(jkey, preg):
        o = []
        for m in range(2):
            def f(m=m):
                toks, bufs = vrd[jkey]
                k.wait(toks[m])
                c = '0' if first[0] else oacc
                first[0] = False
                k(f'v_mfma_f32_32x32x16_bf16 {oacc}, {v(KV+4*bufs[m],4)}, {v(preg+4*m,4)}, {c}')
            o.append(f)
        return o

    def sub_op(jb):
        d = v(slot(jb), 16)
        return f'v_mfma_f32_32x32x16_bf16 {d}, {v(ONE,4)}, {v(NM,4)}, {d}'
    order = [1, 2, 3, 4, 5, 6, 7, 0]
    k(sub_op(order[0]))
    k(sub_op(order[1]))
    vreads(order[0])
    for n, jb in enumerate(order):
        base = slot(jb)
        val = [f'v_exp_f32 v{base+i}, v{base+i}' for i in range(16)]
        val += [f'v_cvt_pk_bf16_f32 v{base+p}, v{base+2*p}, v{base+2*p+1}' for p in range(8)]
        if jb == 0:
            val += [f'v_and_b32 v{base+8+p}, v{PM+p}, v{base+p}' for p in range(8)]
            val += [f'v_bfi_b32 v{base+p}, v{PM+p}, 0, v{base+p}' for p in range(8)]
        side = []
        if n >= 1:
            side += pv_ops(order[n - 1], slot(order[n - 1]))
        nxt = order[n + 1] if n + 1 < 8 else 8
        side.append(lambda nxt=nxt: vreads(nxt))
        if n + 2 < 8:
            side.append(sub_op(order[n + 2]))
        if pf:
            side.append(pf.pop(0))
        if hc and (n % 2 == 1 or OPT.get('wgulate')):
            side.insert(1, hc.pop(0))
        if OPT.get('wgulate') and pf:
            side.append(pf.pop(0))
        spread(k, val, side)
    tail = pv_ops(0, slot(0)) + pv_ops(8, slot(0) + 8)
    addr = [f's_lshr_b32 s49, s{S_H}, 1', 's_mul_i32 s49, s49, 5', f's_mul_i32 s52, s{S_PI}, 3',
            's_add_u32 s52, s52, s49', 's_lshl_b32 s52, s52, 15', f's_add_u32 s52, s52, {WS_OC}',
            f's_lshl_b32 s53, s{S_Q0}, 4', 's_add_u32 s52, s52, s53', 's_add_u32 s54, s49, 2',
            's_lshl_b32 s54, s54, 15', f's_add_u32 s54, s54, {WS_OC}', 's_add_u32 s54, s54, s53',
            f's_lshl_b32 s49, s{S_PI}, 3', 's_add_u32 s54, s54, s49', 'v_lshlrev_b32 v22, 4, v12',
            'v_lshl_add_u32 v23, v13, 15, v22']
    ftok = flags_issue(k, WS_F2, 240, 237)
    spread(k, addr, tail)
    stamp(k, 18)
    T = OACC
    k(f'v_cndmask_b32 v{T+13}, v{T+12}, v{T+8}, s[96:97]')
    k(f'v_rcp_f32 v{T+14}, v{T+13}')
    for p in range(6):
        k(f'v_pk_mul_f32 {v(T+2*p,2)}, {v(T+2*p,2)}, {v(T+14,2)} op_sel_hi:[1,0]')
    for p in range(6):
        k(f'v_cvt_pk_bf16_f32 v{104+p}, v{T+2*p}, v{T+2*p+1}')
    k(f'buffer_store_dwordx4 {v(104,4)}, v23, {WSR}, s52 offen sc1')
    k('s_mov_b64 exec, s[100:101]')
    own = k(f'buffer_store_dwordx2 {v(108,2)}, v22, {WSR}, s54 offen sc1')
    k('s_mov_b64 exec, -1')
    k.wait_all(vm=False)
    k('s_setprio 0')
    flags_check(k, WS_F2, 240, 237, ftok)
    return own


class P4:
    BS = [102400, 126976, 0, 24576, 49152, 73728]

    def __init__(self, k):
        self.k = k
        self.stok = {}
        self.rtok = {}
        self.VB = 2

    def setup_dma(self, t0):
        k = self.k
        VB = self.VB
        tile4(k, 61, 60, 68)
        k('s_mul_i32 s76, s60, %d' % OPT.get('rot4', 3))
        k('s_add_u32 s76, s76, s61')
        k('s_mul_i32 s77, s76, 6554')
        k('s_lshr_b32 s77, s77, 16')
        k('s_mul_i32 s77, s77, 10')
        k('s_sub_u32 s76, s76, s77')
        k(f's_cmp_lt_u32 s{S_W4}, 2')
        k(f's_cselect_b32 s64, s{S_WG}, s{S_WU}')
        k(f's_cselect_b32 s65, s{S_WG+1}, s{S_WU+1}')
        k('s_mov_b32 s66, 1966080')
        k('s_mov_b32 s67, 0x00020000')
        k(f's_and_b32 s61, s{S_W4}, 1')
        k(f's_mul_i32 s61, s61, {32*3072}')
        k('s_mul_i32 s60, s60, 192')
        k('s_add_u32 s60, s60, s61')
        for n in range(3):
            k(f'v_add_u32 v{t0}, {n*64}, v1')
            k(f'v_mul_u32_u24 v{t0+1}, 5462, v{t0}')
            k(f'v_lshrrev_b32 v{t0+1}, 16, v{t0+1}')
            k(f'v_mul_u32_u24 v{t0+2}, 12, v{t0+1}')
            k(f'v_sub_u32 v{t0+2}, v{t0}, v{t0+2}')
            k(f'v_mul_u32_u24 v{t0+1}, 3072, v{t0+1}')
            k(f'v_lshl_add_u32 v{VB+n}, v{t0+2}, 4, v{t0+1}')
            k(f'v_add_u32 v{VB+n}, s60, v{VB+n}')
            if n:
                k(f'v_subrev_u32 v{VB+n}, {n*1024}, v{VB+n}')
        k(f's_mul_i32 s68, s{S_W4}, 6144')

    def sig(self, c, st, sreg, stmp):
        c(f's_add_u32 s{sreg}, s76, {st}')
        c(f's_sub_u32 s{stmp}, s{sreg}, 10')
        c(f's_cmp_ge_u32 s{sreg}, 10')
        c(f's_cselect_b32 s{sreg}, s{stmp}, s{sreg}')

    def dma_stage(self, st):
        k = self.k
        base = self.BS[st % 6]
        self.sig(k, st, 69, 77)
        k(f's_mul_i32 s69, s69, {64*3072}')
        for per in range(2):
            k(f's_add_u32 m0, s68, {base+per*3072}')
            if per:
                k(f's_add_u32 s69, s69, {16*3072}')
            for n in range(3):
                self.stok[st] = k(f'buffer_load_dwordx4 v{self.VB+n}, s[64:67], s69 offen offset:{n*1024} lds')

    BR = 124

    def breg_load(self, st):
        k = self.k
        r0 = self.BR + 24 * (st - 6)
        self.sig(k, st, 69, 77)
        k(f's_mul_i32 s69, s69, {64*3072}')
        for per in range(2):
            if per:
                k(f's_add_u32 s69, s69, {16*3072}')
            for n in range(3):
                self.rtok[st] = k(f'buffer_load_dwordx4 {v(r0+12*per+4*n,4)}, v{self.VB+n}, s[64:67], s69 offen offset:{n*1024}')

    def breg_write(self, st):
        k = self.k
        r0 = self.BR + 24 * (st - 6)
        base = self.BS[st % 6]
        reg, off = (47, base - 102400) if base >= 102400 else (46, base)
        assert off + 6144 < 65536
        k.wait(self.rtok[st])
        for i in range(6):
            self.stok[st] = k(f'ds_write_b128 v{reg}, {v(r0+4*i,4)} offset:{off+i*1024}')

    def pre_colsum(self):
        k = self.k
        CA = 60
        k('v_lshlrev_b32 v46, 4, v1')
        k('v_add_u32 v46, s68, v46')
        k('v_add_u32 v47, 102400, v46')
        k.wait(self.stok[0])
        tk = [k(f'ds_read_b128 {v(84+4*i,4)}, v47 offset:{i*1024}') for i in range(6)]
        for n in range(3):
            k.wait(tk[n], tk[n + 3])
            for p in range(4):
                k(f'v_lshlrev_b32 v{CA+8*n+2*p}, 16, v{84+4*n+p}')
                k(f'v_and_b32 v{CA+8*n+2*p+1}, 0xffff0000, v{84+4*n+p}')
                k(f'v_lshlrev_b32 v{28+2*(p%2)}, 16, v{96+4*n+p}')
                k(f'v_and_b32 v{29+2*(p%2)}, 0xffff0000, v{96+4*n+p}')
                k(f'v_pk_add_f32 {v(CA+8*n+2*p,2)}, {v(CA+8*n+2*p,2)}, {v(28+2*(p%2),2)}')

    def pre_colsum_write(self):
        k = self.k
        CA = 60
        k('v_lshlrev_b32 v16, 5, v1')
        k('v_add_u32 v16, s68, v16')
        k('v_add_u32 v16, 73728, v16')
        for n in range(3):
            k(f'ds_write_b128 v16, {v(CA+8*n,4)} offset:{n*2048}')
            k(f'ds_write_b128 v16, {v(CA+8*n+4,4)} offset:{n*2048+16}')
        k.wait_all(vm=False)

    def loader_setup(self, g5):
        k = self.k
        tile4(k, 44, 45, 46)
        g5.dma_setup(40)
        k('v_cmp_le_u32 vcc, 96, v0')
        k(f'v_mov_b32 v16, {12288-384}')
        k('v_cndmask_b32 v17, 0, v16, vcc')
        k('v_lshl_add_u32 v17, v0, 2, v17')
        k('v_add_u32 v17, 73728, v17')
        k(f'v_mov_b32 v16, {6144-384}')
        k('v_cndmask_b32 v18, 0, v16, vcc')
        k('v_lshl_add_u32 v18, v0, 2, v18')
        k('v_cmp_gt_u32 vcc, 192, v0')
        k('v_cndmask_b32 v19, 0, v18, vcc')
        k(f'v_mov_b32 v16, {OOB}')
        k('v_cndmask_b32 v18, v16, v18, vcc')
        k('s_mul_i32 s51, s45, 384')
        k(f's_add_u32 s51, s51, {WS_PCS}')
        k('s_mul_i32 s52, s44, 12288')
        k('s_add_u32 s52, s52, s51')
        k(f's_mov_b32 s47, {OOB}')
        k('s_cmp_lt_u32 s44, 10')
        k('s_cselect_b32 s52, s52, s47')

    def colsum_reduce(self):
        k = self.k
        rr = list(range(84, 116))
        for half in range(4):
            tk = []
            for r in range(8):
                x = (half % 2) * 8 + r
                tk.append(k(f'ds_read_b32 v{rr[8*half+r]}, v17 offset:{x*384+(half//2)*6144}'))
            k.wait(*tk)
        for stp in (16, 8, 4, 2, 1):
            for i in range(stp):
                k(f'v_add_f32 v{rr[i]}, v{rr[i]}, v{rr[i+stp]}')
        k(f'buffer_store_dword v{rr[0]}, v18, {WSR}, s52 offen sc1')

    def loader(self, g5):
        k = self.k

        def gather(c):
            t = None
            for r in range(10):
                c(f's_add_u32 s58, s51, {r*12288}')
                t = c(f'buffer_load_dword v{24+r}, v19, {WSR}, s58 offen sc1')
            return t
        T = {}
        g5regs = {2 + i: 60 + 20 * i for i in range(9)}
        k('v_lshlrev_b32 v12, 4, v1')
        k(f's_mul_i32 s46, s{S_W4}, 5120')
        k('v_add_u32 v21, s46, v12')
        k('v_add_u32 v22, 61440, v21')
        k('v_add_u32 v23, 122880, v21')
        for st in range(7):
            k.wait(self.stok[st])
            if st == 6:
                k.wait(self.stok[9])
            k.wait_all(vm=False)
            k('s_barrier')
            if st == 0:
                stamp(k, 32)
                self.colsum_reduce()
            if st == 1:
                self.dma_stage(5)
            if 1 <= st <= 4:
                self.dma_stage(st + 5)
            if st == 4:
                T['g'] = gather(k)
                pf_wd(k, 36, 37)
            if st == 5:
                k.wait(T['g'])
                check_group(k, range(24, 34), 11, gather, slp=8)
                for r in range(1, 10):
                    k(f'v_add_f32 v24, v24, v{24+r}')
                k('v_lshlrev_b32 v16, 2, v0')
                k(f'v_add_u32 v16, {XCH}, v16')
                k('ds_write_b32 v16, v24')
        stamp(k, 36)
        runall(k, g5.dma_step(0))
        runall(k, g5.dma_step(1))
        NR1 = OPT.get('nr1', 6)
        for s5 in range(2, 2 + NR1):
            g5.breg_load(s5, g5regs[s5])
        stamp(k, 38)
        cnt_wait(k, 38, 39, 1, 4, bound=200000)
        for s5 in range(2, 7):
            g5.breg_write(s5, 21)
        for s5 in range(2 + NR1, 11):
            g5.breg_load(s5, g5regs[s5])
        stamp(k, 39)

    def compute(self, own_tok):
        k = self.k
        tile4(k, 44, 45, 46)
        S_MT, S_FT, S_TOK = 44, 45, 46
        k('s_lshl_b32 s46, s44, 7')
        k(f's_lshl_b32 s47, s{S_W4}, 5')
        k('s_add_u32 s46, s46, s47')
        k('v_and_b32 v13, 31, v1')
        k('v_lshrrev_b32 v14, 5, v1')
        k('v_lshlrev_b32 v5, 4, v13')
        k('v_lshl_add_u32 v5, v14, 15, v5')
        k('v_bfe_u32 v15, v1, 2, 2')
        k('v_lshl_add_u32 v15, v14, 3, v15')
        k('v_mul_u32_u24 v15, 192, v15')
        k('v_bfe_u32 v16, v1, 4, 1')
        k('v_lshl_add_u32 v15, v16, 5, v15')
        k('v_and_b32 v16, 1, v1')
        k('v_lshl_add_u32 v15, v16, 4, v15')
        k('v_bfe_u32 v16, v1, 1, 1')
        k('v_lshl_add_u32 v6, v16, 3, v15')
        k('v_add_u32 v7, 49152, v6')
        k('v_add_u32 v8, 102400, v6')
        rbase = {0: (6, 0), 24576: (6, 24576), 49152: (7, 0), 73728: (7, 24576), 102400: (8, 0), 126976: (8, 24576)}
        k('s_mul_i32 s76, s45, %d' % OPT.get('rot4', 3))
        k('s_add_u32 s76, s76, s44')
        k('s_mul_i32 s77, s76, 6554')
        k('s_lshr_b32 s77, s77, 16')
        k('s_mul_i32 s77, s77, 10')
        k('s_sub_u32 s76, s76, s77')
        k('s_lshl_b32 s50, s46, 4')
        k(f's_add_u32 s50, s50, {WS_H1}')
        AFR = 180
        atok = {}

        def abase(c, st, sreg, stmp):
            self.sig(c, st, sreg, stmp)
            c(f's_lshl_b32 s{sreg}, s{sreg}, 18')
            c(f's_add_u32 s{sreg}, s{sreg}, s50')

        def aone(c, st, ks, sreg):
            if ks:
                c(f's_add_u32 s{sreg}, s{sreg}, 65536')
            return c(f'buffer_load_dwordx4 {v(AFR+16*(st%4)+4*ks,4)}, v5, {WSR}, s{sreg} offen sc1')

        def astage(c, st, sreg, stmp):
            abase(c, st, sreg, stmp)
            t = None
            for ks in range(4):
                t = aone(c, st, ks, sreg)
            return t
        k('v_lshlrev_b32 v9, 3, v13')
        k('v_lshl_add_u32 v9, v14, 16, v9')
        k(f's_lshl_b32 s51, s{S_TOK}, 3')
        k(f's_add_u32 s51, s51, {WS_HS}')
        HSR = 20

        def hsload(c):
            t = None
            for n in range(4):
                c(f's_add_u32 s58, s51, {n*16384}')
                t = c(f'buffer_load_dwordx2 {v(HSR+2*n,2)}, v9, {WSR}, s58 offen sc1')
            return t
        k('v_lshlrev_b32 v10, 5, v14')
        k(f'v_add_u32 v10, {XCH}, v10')
        ACC, WF = 36, 132

        def csload(p, base):
            t = None
            for mtx in range(2):
                for q in range(4):
                    off = mtx * 384 + p * 128 + (q // 2) * 64 + (q % 2) * 16
                    t = k(f'ds_read_b128 {v(base+16*mtx+4*q,4)}, v10 offset:{off}')
            return t
        rt = {}

        def reads(kk):
            st, ks = kk // 4, kk % 4
            reg, so = rbase[self.BS[st % 6]]
            b = kk % 2
            ops = [[] for _ in range(6)]
            for j in range(6):
                for hf in range(2):
                    off = so + (j // 3) * 12288 + ks * 3072 + hf * 768 + (j % 3) * 64
                    ops[j].append(lambda j=j, hf=hf, off=off: rt.__setitem__((kk, j), k(
                        f'ds_read_b64_tr_b16 {v(WF+24*b+4*j+2*hf,2)}, v{reg} offset:{off}')))
            return ops
        T = {}

        def stats():
            k.wait(T['hs'])
            check_group(k, range(HSR, HSR + 8), 11, hsload)
            for n in range(1, 4):
                k(f'v_pk_add_f32 {v(HSR,2)}, {v(HSR,2)}, {v(HSR+2*n,2)}')
            VSUM, VSQ = HSR, HSR + 1
            xsum(k, VSUM, 24, 25)
            xsum(k, VSQ, 24, 25)
            k(f'v_mul_f32 v{VSUM}, {f32(1.0/640)}, v{VSUM}')
            k(f'v_mul_f32 v{VSQ}, {f32(1.0/640)}, v{VSQ}')
            k(f'v_fma_f32 v{VSQ}, -v{VSUM}, v{VSUM}, v{VSQ}')
            k(f'v_max_f32 v{VSQ}, 0, v{VSQ}')
            rbf(k, 24, VSUM)
            k('v_sub_f32 v26, 0, v24')
            rbf(k, 25, VSQ)
            k(f'v_add_f32 v25, {f32(1e-5)}, v25')
            rbf(k, 25, 25)
            k('v_sqrt_f32 v25, v25')
            rbf(k, 25, 25)
            k('v_rcp_f32 v28, v25')
            k('v_mul_f32 v30, v25, v25')
        stamp(k, 30)
        k.wait(own_tok)
        stamp(k, 31)
        for st in range(3):
            atok[st] = astage(k, st, 49, 48)
        k('s_barrier')
        for l_ in reads(0):
            runall(k, l_)
        for kk in range(40):
            b = kk % 2
            st, ks = kk // 4, kk % 4
            R0 = AFR + 16 * (st % 4)
            if kk % 8 == 4:
                stamp(k, 33 + kk // 8)
            if ks == 0:
                k.wait(atok[st])
                check_group(k, range(R0, R0 + 16), 11, lambda c, st=st: astage(c, st, 58, 59))
                if kk == 0:
                    stamp(k, 32)
            fill, rds = [], []
            if st + 3 < 10:
                def al(st=st, ks=ks):
                    if ks == 0:
                        abase(k, st + 3, 49, 48)
                    atok[st + 3] = aone(k, st + 3, ks, 49)
                fill.append(al)
            if kk + 1 < 40:
                if (kk + 1) % 4 == 0 and kk < 24:
                    k.wait_all(vm=False)
                    k('s_barrier')
                rds = reads(kk + 1)
            else:
                k.wait_all(vm=False)
                k('v_mov_b32 v2, 1')
                k(f'v_mov_b32 v3, {XCNT+4}')
                k('s_mov_b64 exec, 1')
                k('ds_add_u32 v3, v2')
                k('s_mov_b64 exec, -1')
            if kk == 28:
                fill.append(lambda: T.__setitem__('hs', hsload(k)))
            if kk == 39:
                fill.append(lambda: T.__setitem__('f3', flags_issue(k, WS_F3, 16, 12)))
            if kk == 39:
                fill.append(lambda: T.__setitem__(('cs', 0), csload(0, 212)))
            if kk == 37:
                fill.append(stats)
            mf = []
            for j in range(6):
                acc = v(ACC + 16 * j, 16)
                c = '0' if kk == 0 else acc
                mf.append((lambda j=j: [rt[kk, j]],
                           f'v_mfma_f32_32x32x16_bf16 {acc}, {v(WF+24*b+4*j,4)}, {v(R0+4*ks,4)}, {c}'))
            roll_step(k, mf, rds, fill)
        stamp(k, 38)
        T['cs', 1] = csload(1, 132)
        c0 = -2.0 * math.sqrt(2.0 / math.pi) * math.log2(math.e)
        c1 = c0 * 0.044715
        k(f'v_mov_b32 v32, {f32(c0)}')
        k(f'v_mov_b32 v34, {f32(c1)}')
        k(f's_mul_i32 s54, s{S_FT}, {12*32768}')
        k(f's_lshl_b32 s55, s{S_TOK}, 4')
        k('s_add_u32 s54, s54, s55')
        k(f's_add_u32 s54, s54, {WS_HC}')
        T_, O = 164, 180
        csb = {0: 212, 1: 132, 2: 212}
        for p in range(3):
            G, U, CS = ACC + 16 * p, ACC + 16 * (3 + p), csb[p]
            k.wait(T['cs', p])
            for q in range(8):
                g2, u2 = v(G + 2 * q, 2), v(U + 2 * q, 2)
                k(f'v_pk_fma_f32 {g2}, {v(CS+2*q,2)}, {v(26,2)}, {g2} op_sel_hi:[1,0,1]')
                k(f'v_pk_fma_f32 {u2}, {v(CS+16+2*q,2)}, {v(26,2)}, {u2} op_sel_hi:[1,0,1]')
            if p == 0:
                T['cs', 2] = csload(2, 212)
            for q in range(8):
                g2, u2, t2 = v(G + 2 * q, 2), v(U + 2 * q, 2), v(T_ + 2 * q, 2)
                k(f'v_pk_mul_f32 {u2}, {u2}, {g2}')
                k(f'v_pk_mul_f32 {g2}, {g2}, {v(28,2)} op_sel_hi:[1,0]')
                k(f'v_pk_mul_f32 {t2}, {g2}, {g2}')
                k(f'v_pk_fma_f32 {t2}, {t2}, {v(34,2)}, {v(32,2)} op_sel_hi:[1,0,0]')
                k(f'v_pk_mul_f32 {t2}, {t2}, {g2}')
            for i in range(16):
                k(f'v_exp_f32 v{T_+i}, v{T_+i}')
            for q in range(8):
                t2 = v(T_ + 2 * q, 2)
                k(f'v_pk_fma_f32 {t2}, {t2}, {v(30,2)}, {v(30,2)} op_sel_hi:[1,0,0]')
            for i in range(16):
                k(f'v_rcp_f32 v{T_+i}, v{T_+i}')
            for q in range(8):
                k(f'v_pk_mul_f32 {v(U+2*q,2)}, {v(U+2*q,2)}, {v(T_+2*q,2)}')
            for q in range(8):
                k(f'v_cvt_pk_bf16_f32 v{O+8*(p%2)+q}, v{U+2*q}, v{U+2*q+1}')
            for hf2 in range(2):
                k(f's_add_u32 s55, s54, {(4*p+2*hf2)*32768}')
                self.own = k(f'buffer_store_dwordx4 {v(O+8*(p%2)+4*hf2,4)}, v5, {WSR}, s55 offen sc1')
        flags_check(k, WS_F3, 16, 12, T['f3'])
        stamp(k, 39)


def colsum_strip(k):
    lab = k.newlabel('CS_SKIP')
    k(f's_cmp_lg_u32 s{S_W4}, 0')
    k(f's_cbranch_scc1 {lab}')
    k(f's_cmp_ge_u32 s{S_I32}, 12')
    k(f's_cbranch_scc1 {lab}')
    sn = k.snap()
    k(f's_and_b32 s60, s{S_X8}, 1')
    k('s_cmp_eq_u32 s60, 0')
    k(f's_cselect_b32 s72, s{S_WG}, s{S_WU}')
    k(f's_cselect_b32 s73, s{S_WG+1}, s{S_WU+1}')
    k('s_mov_b32 s74, 1966080')
    k('s_mov_b32 s75, 0x00020000')
    k(f's_lshr_b32 s60, s{S_X8}, 1')
    k('s_mul_i32 s60, s60, 768')
    k(f's_lshl_b32 s61, s{S_I32}, 6')
    k('s_add_u32 s60, s60, s61')
    k('v_lshrrev_b32 v40, 2, v1')
    k('v_mul_u32_u24 v40, 3072, v40')
    k('v_and_b32 v41, 3, v1')
    k('v_lshl_add_u32 v40, v41, 4, v40')
    k('v_add_u32 v40, s60, v40')
    tk = []
    for n in range(40):
        k(f's_mov_b32 s61, {n*16*3072}')
        tk.append(k(f'buffer_load_dwordx4 {v(60+4*n,4)}, v40, s[72:75], s61 offen'))
    for i in range(8):
        k(f'v_mov_b32 v{44+i}, 0')
    for n in range(40):
        k.wait(tk[n])
        for p in range(4):
            k(f'v_lshlrev_b32 v{52+2*(p%2)}, 16, v{60+4*n+p}')
            k(f'v_and_b32 v{53+2*(p%2)}, 0xffff0000, v{60+4*n+p}')
            k(f'v_pk_add_f32 {v(44+2*p,2)}, {v(44+2*p,2)}, {v(52+2*(p%2),2)}')
    for i in range(8):
        xsum(k, 44 + i, 56, 57, 32)
        xsum(k, 44 + i, 56, 57, 16)
        k(f'v_add_f32_dpp v{44+i}, v{44+i}, v{44+i} row_ror:8 row_mask:0xf bank_mask:0xf')
        k(f'v_add_f32_dpp v{44+i}, v{44+i}, v{44+i} row_ror:4 row_mask:0xf bank_mask:0xf')
    strip_id(k, 60)
    k('s_lshl_b32 s60, s60, 2')
    k(f's_add_u32 s60, s60, {WS_CS}')
    k('v_lshlrev_b32 v41, 5, v41')
    k('s_mov_b64 exec, 0xf')
    k(f'buffer_store_dwordx4 {v(44,4)}, v41, {WSR}, s60 offen sc1')
    k(f'buffer_store_dwordx4 {v(48,4)}, v41, {WSR}, s60 offen offset:16 sc1')
    k('s_mov_b64 exec, -1')
    k.wait_all()
    k.restore(sn)
    k.label(lab)


def build():
    k = K()
    name = NAME + '_kernel'
    k.realend = 'K_END'
    k.raw('.p2align 8')
    k.raw(f'.globl {name}')
    k.raw(f'.type {name},@function')
    k.raw(f'{name}:')
    prologue(k)
    if STAMPS:
        k('v_writelane_b32 v255, s84, 60')
    if OPT.get('empty'):
        k('s_branch K_END')
    stamp(k, 0)
    g3 = G35(k, 3, [0, 20480, 40960, 61440, 81920], 232, 0)
    g5 = G35(k, 5, [49152, 69632, 90112, 110592, 131072, 0, 20480], 54, 70)
    p4 = P4(k)
    A3 = [102400, 118784, 135168]
    A5 = [61440, 77824, 143360]
    lab_l1, lab_p2, lab_l3, lab_fin = (k.newlabel(x) for x in ('L1', 'P2', 'L3', 'FIN'))
    k(f's_cmp_ge_u32 s{S_W}, 4')
    k(f's_cbranch_scc1 {lab_l1}')
    sn = k.snap()
    p1_compute(k)
    join(k)
    if OPT.get('wgu', 2) == 1:
        pf_wgu(k, 238, 239, 128)
    p2_setup(k)
    k(f's_branch {lab_p2}')
    k.label(lab_l1)
    k.restore(sn)
    p1_loader(k, g3)
    k.label(lab_p2)
    join(k)
    for st in range(5):
        g3.btok[st] = ('vm', 0)
    own = emit_p2(k, g3)
    k(f's_cmp_ge_u32 s{S_W}, 4')
    k(f's_cbranch_scc1 {lab_l3}')
    sn = k.snap()
    g3.compute(own, st0=20)
    p4.compute(g3.own)
    if not OPT.get('nop5'):
        g5.compute(p4.own, st0=40)
    k(f's_branch {lab_fin}')
    k.label(lab_l3)
    k.restore(sn)
    k('s_barrier')
    if OPT.get('wguL', 0):
        pf_wgu(k, 36, 37)
    p4.setup_dma(56)
    p4.dma_stage(0)
    p4.dma_stage(1)
    p4.loader_setup(g5)
    p4.pre_colsum()
    stamp(k, 23)
    k('s_barrier')
    k('s_barrier')
    k('s_barrier')
    stamp(k, 24)
    p4.dma_stage(2)
    p4.dma_stage(3)
    p4.dma_stage(4)
    p4.pre_colsum_write()
    stamp(k, 30)
    p4.loader(g5)
    if not OPT.get('nop5'):
        g5.loader(7, st0=40)
        k('s_barrier')
        k('s_barrier')
    k.label(lab_fin)
    join(k)
    stamp(k, 50)
    if STAMPS:
        k.wait_all()
        stamp(k, 51)
    stamp_flush(k)
    k.label(k.realend)
    k('s_endpgm')
    c = K()
    for f in k.cold:
        f(c)
    desc = f'''.section .rodata,"a"
.p2align 6
.amdhsa_kernel {name}
  .amdhsa_next_free_vgpr 256
  .amdhsa_next_free_sgpr 102
  .amdhsa_accum_offset 256
  .amdhsa_group_segment_fixed_size 0
  .amdhsa_kernarg_size 80
  .amdhsa_user_sgpr_count 2
  .amdhsa_user_sgpr_kernarg_segment_ptr 1
  .amdhsa_system_sgpr_workgroup_id_x 1
.end_amdhsa_kernel
'''
    return k.render() + c.render() + 'CODE_END:\n' + desc


def main():
    global STAMPS
    STAMPS = 'stamps' in sys.argv
    for a_ in sys.argv[2:]:
        if '=' in a_:
            kk, vv = a_.split('=')
            OPT[kk] = int(vv)
    head = open('cdna_kernels/%s.s.ref' % NAME).read().split('\n')
    hdr = [l for l in head if l.startswith(';') and '@launch' not in l and 'Override launch' not in l and 'grid=ceil' not in l]
    out = '\n'.join(hdr) + '\n'
    out += '; @launch grid=(256,1,1) block=(512,1,1) lds=163840\n'
    out += '.amdgcn_target "amdgcn-amd-amdhsa--gfx950"\n.text\n'
    out += build()
    path = sys.argv[1] if len(sys.argv) > 1 else 'cdna_kernels/%s.s' % NAME
    open(path, 'w').write(out)
    print('wrote', path, len(out), 'bytes')


if __name__ == '__main__':
    main()
```

```python
import math
import struct
import sys
from asmlib import K, v, a, s

NAME = 'sequential_preLN__sliding_block__glu_gated_geglu__prompt'

WS_QG = 0x0000000
WS_KG = 0x0280000
WS_VF = 0x0500000
WS_OC = 0x0780000
WS_H1 = 0x0A00000
WS_HC = 0x0C80000
WS_CS = 0x1280000
WS_F2 = 0x1288000
WS_F3 = 0x128A000
WS_F0 = 0x128C000
WS_PC = 0x1290000
WS_PS = 0x12A8000
WS_HS = 0x12D0000
WS_PCS = 0x1340000
WS_ST = 0x1300000
WS_SIZE = 0x1400000
OOB = 0x40000000

S_X, S_WQKV, S_WO, S_WG, S_WU, S_WD, S_OUT, S_WS, S_DBG = 4, 8, 12, 16, 20, 24, 28, 32, 36
S_NONCE = 3
S_W, S_X8, S_I32, S_W4 = 40, 41, 42, 43
S_BUD = 57
WSR = f's[{S_WS}:{S_WS+3}]'
OPT = {}
STAMPS = False
XCH = 159744
XNONCE = XCH + 3072
XCNT = XCH + 3080


def f32(x):
    return '0x%08x' % struct.unpack('<I', struct.pack('<f', x))[0]


def stamp(k, i):
    if not STAMPS:
        return
    k('s_memtime s[62:63]')
    k.wait_all(vm=False)
    k(f'v_writelane_b32 v255, s62, {i}')


def stamp_flush(k):
    if not STAMPS:
        return
    lab = k.newlabel('ST')
    k('s_memrealtime s[62:63]')
    k.wait_all()
    k('v_writelane_b32 v255, s62, 63')
    k(f'v_writelane_b32 v255, s{S_BUD}, 62')
    k(f's_cmp_lg_u32 s{S_W4}, 0')
    k(f's_cbranch_scc1 {lab}')
    k('v_lshlrev_b32 v254, 2, v1')
    k('s_lshl_b32 s62, s2, 9')
    k(f's_lshl_b32 s63, s{S_W}, 6')
    k('s_add_u32 s62, s62, s63')
    k(f's_add_u32 s62, s62, {WS_ST}')
    k(f'buffer_store_dword v255, v254, {WSR}, s62 offen')
    if OPT.get('dbgout'):
        k('s_cmp_lg_u32 s2, %d' % OPT.get('dbgout'))
        k(f's_cbranch_scc1 {lab}')
        k(f's_cmp_lg_u32 s{S_W}, 0')
        k(f's_cbranch_scc1 {lab}')
        k('v_readlane_b32 s64, v255, 58')
        k('v_readlane_b32 s65, v255, 59')
        k('s_mov_b32 s66, 256')
        k('s_mov_b32 s67, 0x00020000')
        k('v_readlane_b32 s70, v255, 0')
        k('v_readlane_b32 s71, v255, 60')
        sel = [3, 5, 9, 10, 12, 13, 18, 22, 24, 32, 38, 42, 43, 51]
        for i, st_ in enumerate(sel):
            k(f'v_readlane_b32 s68, v255, {st_}')
            k('s_sub_u32 s68, s68, s70')
            k(f'v_writelane_b32 v253, s68, {i+1}')
        k('v_readlane_b32 s68, v255, 63')
        k('s_sub_u32 s68, s68, s71')
        k('v_writelane_b32 v253, s68, 15')
        k('s_mov_b64 exec, 0xfffe')
        k('buffer_store_dword v253, v254, s[64:67], 0 offen')
        k('s_mov_b64 exec, -1')
    k.label(lab)


def run(k, f):
    return f() if callable(f) else k(f)


def runall(k, ops):
    for f in ops:
        run(k, f)


def roll_step(k, mf, rds, fill):
    n, nf, fi = len(mf), len(fill), 0
    for i, (wt, m) in enumerate(mf):
        k.wait(*wt())
        k(m)
        for f in (rds[i] if i < len(rds) else []):
            run(k, f)
        tgt = (nf * (i + 1) + n - 1) // n
        while fi < min(tgt, nf):
            run(k, fill[fi])
            fi += 1


def spread(k, main, side):
    n, nf = len(main), len(side)
    pos = {}
    for j in range(nf):
        pos.setdefault(int(j * n / max(nf, 1)), []).append(side[j])
    for i, m in enumerate(main):
        for f in pos.get(i, []):
            run(k, f)
        run(k, m)


def rbf(k, d, src):
    k(f'v_cvt_pk_bf16_f32 {v(d)}, {v(src)}, {v(src)}')
    k(f'v_lshlrev_b32 {v(d)}, 16, {v(d)}')


def xsum(k, r, t1, t2, which=32):
    k(f'v_mov_b32 {v(t1)}, {v(r)}')
    k(f'v_mov_b32 {v(t2)}, {v(r)}')
    k(f'v_permlane{which}_swap_b32 {v(t1)}, {v(t2)}')
    k(f'v_add_f32 {v(r)}, {v(t1)}, {v(t2)}')


def maxchain_ops(regs, t):
    regs = list(regs)
    ops = [f'v_max3_u32 v{t}, v{regs[0]}, v{regs[1]}, v{regs[2]}']
    i = 3
    while i < len(regs):
        if i + 1 < len(regs):
            ops.append(f'v_max3_u32 v{t}, v{t}, v{regs[i]}, v{regs[i+1]}')
            i += 2
        else:
            ops.append(f'v_max_u32 v{t}, v{t}, v{regs[i]}')
            i += 1
    return ops


def check_group(k, regs, t, reissue, slp=2):
    for o in maxchain_ops(regs, t):
        k(o)
    slow, back, loop = k.newlabel('SLOW'), k.newlabel('BACK'), k.newlabel('RETRY')
    k(f'v_cmp_eq_u32 vcc, -1, v{t}')
    k(f's_cbranch_vccnz {slow} ;nodrain')
    k.label(back)

    def cold(c):
        c.label(slow)
        c('s_nop 15')
        c.label(loop)
        c(f's_cmp_eq_u32 s{S_BUD}, 0')
        c(f's_cbranch_scc1 {back}')
        c(f's_sub_u32 s{S_BUD}, s{S_BUD}, 1')
        c(f's_sleep {slp}')
        reissue(c)
        c('s_waitcnt vmcnt(0)')
        for o in maxchain_ops(regs, t):
            c(o)
        c(f'v_cmp_eq_u32 vcc, -1, v{t}')
        c(f's_cbranch_vccnz {loop}')
        c(f's_branch {back}')
    k.cold.append(cold)


def nonce_issue(k, vr):
    k(f'v_mov_b32 v{vr+1}, 0')
    return k(f'buffer_load_dword v{vr}, v{vr+1}, s[{S_DBG}:{S_DBG+3}], 0 offen sc1')


def nonce_check(k, vr, tok):
    k.wait(tok)
    slow, back = k.newlabel('NSLOW'), k.newlabel('NBACK')
    k(f'v_readfirstlane_b32 s{S_NONCE}, v{vr}')
    k(f's_cmp_eq_u32 s{S_NONCE}, 0')
    k(f's_cbranch_scc1 {slow} ;nodrain')
    k.label(back)

    def cold(c):
        c.label(slow)
        c('s_nop 15')
        c(f's_cmp_eq_u32 s{S_BUD}, 0')
        c(f's_cbranch_scc1 {back}')
        c(f's_sub_u32 s{S_BUD}, s{S_BUD}, 1')
        c('s_sleep 4')
        c(f'buffer_load_dword v{vr}, v{vr+1}, s[{S_DBG}:{S_DBG+3}], 0 offen sc1')
        c('s_waitcnt vmcnt(0)')
        c(f'v_readfirstlane_b32 s{S_NONCE}, v{vr}')
        c(f's_cmp_eq_u32 s{S_NONCE}, 0')
        c(f's_cbranch_scc1 {slow}')
        c(f's_branch {back}')
    k.cold.append(cold)


def nonce_from_lds(k, t):
    k(f'v_mov_b32 v{t}, {XNONCE}')
    tk = k(f'ds_read_b32 v{t}, v{t}')
    k.wait(tk)
    k(f'v_readfirstlane_b32 s{S_NONCE}, v{t}')


def rflag_store(k, base, sidx, t1, t2, wave=0):
    k(f'v_mov_b32 v{t1}, s{S_NONCE}')
    k(f'v_lshlrev_b32 v{t2}, 10, v1')
    k(f's_lshl_b32 s60, s{sidx}, 2')
    k(f's_add_u32 s60, s60, {base}')
    k(f's_mov_b32 s61, {OOB}')
    k(f's_cmp_eq_u32 s{S_W}, {wave}')
    k('s_cselect_b32 s60, s60, s61')
    k('s_mov_b64 exec, 0xff')
    k(f'buffer_store_dword v{t1}, v{t2}, {WSR}, s60 offen sc1')
    k('s_mov_b64 exec, -1')


def wflag_store(k, base, sidx, t1, t2, cnt):
    k(f'v_mov_b32 v{t1}, 1')
    k(f'v_mov_b32 v{t2}, {XCNT+4*cnt}')
    k('s_mov_b64 exec, 1')
    tk = k(f'ds_add_rtn_u32 v{t1}, v{t2}, v{t1}')
    k('s_mov_b64 exec, -1')
    k(f's_lshl_b32 s60, s{sidx}, 2')
    k(f's_add_u32 s60, s60, {base}')
    k.wait(tk)
    k(f'v_readfirstlane_b32 s61, v{t1}')
    k(f'v_mov_b32 v{t1}, s{S_NONCE}')
    k(f'v_lshlrev_b32 v{t2}, 10, v1')
    k('s_cmp_eq_u32 s61, 3')
    k(f's_cselect_b32 s60, s60, {OOB}')
    k('s_mov_b64 exec, 0xff')
    k(f'buffer_store_dword v{t1}, v{t2}, {WSR}, s60 offen sc1')
    k('s_mov_b64 exec, -1')


def cnt_wait(k, t1, t2, cnt, target, bound=2000):
    loop, done = k.newlabel('CW'), k.newlabel('CD')
    k(f'v_mov_b32 v{t2}, {XCNT+4*cnt}')
    k(f's_mov_b32 s61, {bound}')
    k.label(loop)
    k.raw(f'    ds_read_b32 v{t1}, v{t2}')
    k.raw('    s_waitcnt lgkmcnt(0)')
    k(f'v_readfirstlane_b32 s60, v{t1}')
    k(f's_cmp_ge_u32 s60, {target}')
    k(f's_cbranch_scc1 {done}')
    k('s_sub_u32 s61, s61, 1')
    k('s_cmp_eq_u32 s61, 0')
    k(f's_cbranch_scc1 {done}')
    k('s_sleep 2')
    k(f's_branch {loop}')
    k.label(done)


def wflag_poll(k, sbase, va, vr, smask, width, only_wave0):
    loop, done = k.newlabel('POLL'), k.newlabel('PDONE')
    if only_wave0:
        k(f's_cmp_lg_u32 s{S_W}, 0')
        k(f's_cbranch_scc1 {done}')
    k.label(loop)
    if width == 4:
        k.raw(f'    buffer_load_dwordx4 {v(vr,4)}, v{va}, {WSR}, s{sbase} offen sc1')
        k.raw('    s_waitcnt vmcnt(0)')
        for i in range(4):
            k(f'v_xor_b32 v{vr+i}, s{S_NONCE}, v{vr+i}')
        k(f'v_or3_b32 v{vr}, v{vr}, v{vr+1}, v{vr+2}')
        k(f'v_or_b32 v{vr}, v{vr}, v{vr+3}')
        k(f'v_cmp_ne_u32 vcc, 0, v{vr}')
    else:
        k.raw(f'    buffer_load_dword v{vr}, v{va}, {WSR}, s{sbase} offen sc1')
        k.raw('    s_waitcnt vmcnt(0)')
        k(f'v_cmp_ne_u32 vcc, s{S_NONCE}, v{vr}')
    k(f's_and_b64 vcc, vcc, s[{smask}:{smask+1}]')
    k(f's_cbranch_scc0 {done}')
    k(f's_cmp_eq_u32 s{S_BUD}, 0')
    k(f's_cbranch_scc1 {done}')
    k(f's_sub_u32 s{S_BUD}, s{S_BUD}, 1')
    k(f's_sleep {OPT.get("psl", 1)}')
    k(f's_branch {loop}')
    k.label(done)


def rflag_poll(k, sbase, va, vr, smask):
    loop, done = k.newlabel('POLL'), k.newlabel('PDONE')
    k(f's_cmp_lg_u32 s{S_W}, 0')
    k(f's_cbranch_scc1 {done}')
    k.label(loop)
    k.raw(f'    buffer_load_dword v{vr}, v{va}, {WSR}, s{sbase} offen sc1')
    k.raw('    s_waitcnt vmcnt(0)')
    k(f'v_cmp_ne_u32 vcc, s{S_NONCE}, v{vr}')
    k(f's_and_b64 vcc, vcc, s[{smask}:{smask+1}]')
    k(f's_cbranch_scc0 {done}')
    k(f's_cmp_eq_u32 s{S_BUD}, 0')
    k(f's_cbranch_scc1 {done}')
    k(f's_sub_u32 s{S_BUD}, s{S_BUD}, 1')
    k(f's_branch {loop}')
    k.label(done)


def flags_issue(k, base, vr, va):
    k(f'v_lshlrev_b32 v{va}, 4, v1')
    k(f's_lshl_b32 s60, s{S_X8}, 10')
    k(f'v_add_u32 v{va}, s60, v{va}')
    k(f's_mov_b32 s60, {base}')
    return k(f'buffer_load_dwordx4 {v(vr,4)}, v{va}, {WSR}, s60 offen sc1')


def flags_check(k, base, vr, va, tok):
    k.wait(tok)
    slow, back = k.newlabel('FSLOW'), k.newlabel('FBACK')

    def cmpops(c):
        for i in range(4):
            c(f'v_xor_b32 v{vr+i}, s{S_NONCE}, v{vr+i}')
        c(f'v_or3_b32 v{vr}, v{vr}, v{vr+1}, v{vr+2}')
        c(f'v_or_b32 v{vr}, v{vr}, v{vr+3}')
        c(f'v_cmp_ne_u32 vcc, 0, v{vr}')
    cmpops(k)
    k(f's_cbranch_vccnz {slow} ;nodrain')
    k.label(back)

    def cold(c):
        c.label(slow)
        c('s_nop 15')
        c(f's_cmp_eq_u32 s{S_BUD}, 0')
        c(f's_cbranch_scc1 {back}')
        c(f's_sub_u32 s{S_BUD}, s{S_BUD}, 1')
        c('s_sleep 12')
        c(f's_mov_b32 s58, {base}')
        c(f'buffer_load_dwordx4 {v(vr,4)}, v{va}, {WSR}, s58 offen sc1')
        c('s_waitcnt vmcnt(0)')
        cmpops(c)
        c(f's_cbranch_vccnz {slow}')
        c(f's_branch {back}')
    k.cold.append(cold)


def join(k):
    k.reset_counters()
    k.vm_issued = 1
    k.lg_issued = 1


def prologue(k):
    k('s_cmp_ge_u32 s2, 256')
    k('s_cbranch_scc1 %s' % k.realend)
    if OPT.get('cpf', 1):
        k.raw('    s_getpc_b64 s[88:89]')
        k.raw('CODE_PC:')
        k.raw(f'    s_sub_u32 s88, s88, CODE_PC-{NAME}_kernel')
        k.raw('    s_subb_u32 s89, s89, 0')
        k.raw('    s_and_b32 s89, s89, 0xffff')
        k.raw(f'    s_mov_b32 s90, CODE_END-{NAME}_kernel')
        k.raw('    s_mov_b32 s91, 0x00020000')
        k('s_lshr_b32 s92, s2, 3')
        k('s_lshl_b32 s92, s92, 12')
        k('v_lshlrev_b32 v250, 7, v0')
        k('v_cmp_gt_u32 vcc, 32, v0')
        k(f'v_mov_b32 v251, {OOB}')
        k('v_cndmask_b32 v250, v251, v250, vcc')
        k('buffer_load_dword v251, v250, s[88:91], s92 offen')
    k('s_load_dwordx8 s[64:71], s[0:1], 0')
    k('s_load_dwordx8 s[72:79], s[0:1], 32')
    k('s_load_dwordx4 s[80:83], s[0:1], 64')
    k('s_memrealtime s[84:85]')
    k('v_and_b32 v1, 63, v0')
    k('v_lshrrev_b32 v2, 6, v0')
    k(f'v_readfirstlane_b32 s{S_W}, v2')
    k(f's_and_b32 s{S_X8}, s2, 7')
    k(f's_lshr_b32 s{S_I32}, s2, 3')
    k(f's_mov_b32 s{S_BUD}, {OPT.get("bud", 100000)}')
    k(f's_and_b32 s{S_W4}, s{S_W}, 3')
    k('v_and_b32 v0, 255, v0')
    k('v_mov_b32 v253, 0')
    k('s_waitcnt lgkmcnt(0)')
    for sr, src, size in ((S_X, 64, 2621440), (S_WQKV, 66, 2457600), (S_WO, 68, 819200), (S_WG, 72, 1966080),
                          (S_WU, 74, 1966080), (S_WD, 76, 1966080), (S_OUT, 78, 2621440), (S_WS, 82, WS_SIZE),
                          (S_DBG, 80, 256)):
        k(f's_mov_b32 s{sr}, s{src}')
        k(f's_and_b32 s{sr+1}, s{src+1}, 0xffff')
        k(f's_mov_b32 s{sr+2}, {size}')
        k(f's_mov_b32 s{sr+3}, 0x00020000')
    k(f's_or_b32 s60, s2, s{S_W}')
    k('s_cmp_eq_u32 s60, 0')
    k(f's_cselect_b32 s61, 0, 0x10000')
    k('s_or_b32 s60, s84, 1')
    k('v_mov_b32 v2, s60')
    k('v_mov_b32 v3, 0')
    k('s_mov_b64 exec, 1')
    k(f'buffer_store_dword v2, v3, s[{S_DBG}:{S_DBG+3}], s61 offen sc1')
    k('s_mov_b64 exec, -1')


def tile1(k):
    k(f's_and_b32 s47, s{S_X8}, 3')
    k(f's_lshr_b32 s46, s{S_X8}, 2')
    k('s_mul_i32 s46, s46, 30')
    k(f's_add_u32 s46, s46, s{S_I32}')
    k('s_lshr_b32 s44, s46, 2')
    k('s_and_b32 s46, s46, 3')
    k('s_lshl_b32 s47, s47, 2')
    k('s_add_u32 s45, s47, s46')
    k('s_add_u32 s56, s45, s44')
    for _ in range(2):
        k('s_sub_u32 s47, s56, 10')
        k('s_cmp_ge_u32 s56, 10')
        k('s_cselect_b32 s56, s47, s56')
    k('s_lshl_b32 s46, s45, 7')
    k(f's_lshl_b32 s47, s{S_W4}, 5')
    k('s_add_u32 s46, s46, s47')


def tile35(k, srt, sct, st):
    if OPT.get('m35', 0):
        k(f's_lshl_b32 s{st}, s{S_X8}, 2')
        k(f's_and_b32 s{srt}, s{S_I32}, 3')
        k(f's_add_u32 s{srt}, s{srt}, s{st}')
        k(f's_lshr_b32 s{sct}, s{S_I32}, 2')
        return
    k(f's_and_b32 s{st}, s{S_X8}, 3')
    k(f's_lshl_b32 s{st}, s{st}, 3')
    k(f's_and_b32 s{srt}, s{S_I32}, 7')
    k(f's_add_u32 s{srt}, s{srt}, s{st}')
    k(f's_lshr_b32 s{st}, s{S_X8}, 2')
    k(f's_lshl_b32 s{st}, s{st}, 2')
    k(f's_lshr_b32 s{sct}, s{S_I32}, 3')
    k(f's_add_u32 s{sct}, s{sct}, s{st}')


def tile4(k, smt, sft, st):
    if OPT.get('m4', 0):
        k(f's_and_b32 s{st}, s{S_X8}, 3')
        k(f's_lshl_b32 s{st}, s{st}, 2')
        k(f's_and_b32 s{smt}, s{S_I32}, 3')
        k(f's_add_u32 s{smt}, s{smt}, s{st}')
        k(f's_lshr_b32 s{st}, s{S_X8}, 2')
        k(f's_lshl_b32 s{st}, s{st}, 3')
        k(f's_lshr_b32 s{sft}, s{S_I32}, 2')
        k(f's_add_u32 s{sft}, s{sft}, s{st}')
        return
    k(f's_and_b32 s{st}, s{S_X8}, 1')
    k(f's_lshl_b32 s{st}, s{st}, 3')
    k(f's_and_b32 s{smt}, s{S_I32}, 7')
    k(f's_add_u32 s{smt}, s{smt}, s{st}')
    k(f's_lshr_b32 s{st}, s{S_X8}, 1')
    k(f's_lshl_b32 s{st}, s{st}, 2')
    k(f's_lshr_b32 s{sft}, s{S_I32}, 3')
    k(f's_add_u32 s{sft}, s{sft}, s{st}')


def strip_id(k, sd):
    k(f's_and_b32 s{sd}, s{S_X8}, 1')
    k(f's_mul_i32 s{sd}, s{sd}, 1536')
    k(f's_lshr_b32 s61, s{S_X8}, 1')
    k('s_mul_i32 s61, s61, 384')
    k(f's_add_u32 s{sd}, s{sd}, s61')
    k(f's_lshl_b32 s61, s{S_I32}, 5')
    k(f's_add_u32 s{sd}, s{sd}, s61')


def clear_ops(k, vs, va):
    ops = []

    def o1():
        k(f's_and_b32 s60, s{S_I32}, 3')
        k(f's_lshl_b32 s61, s{S_X8}, 2')
        k('s_add_u32 s60, s60, s61')
        k('s_and_b32 s65, s60, 1')
        k('s_lshr_b32 s60, s60, 1')
        k('s_mul_i32 s60, s60, 5')
        k('s_lshl_b32 s60, s60, 15')
        k(f's_lshr_b32 s61, s{S_I32}, 2')
        k('s_lshl_b32 s61, s61, 12')
        k('s_add_u32 s60, s60, s61')
        k(f's_lshl_b32 s61, s{S_W4}, 10')
        k('s_add_u32 s60, s60, s61')
        k(f's_add_u32 s64, s60, {WS_OC}')
        k(f's_mul_i32 s61, s65, {3*32768}')
        k('s_add_u32 s66, s64, s61')
        k(f'buffer_store_dwordx4 {v(vs,4)}, v{va}, {WSR}, s66 offen sc1')

    def o2():
        k('s_add_u32 s60, s66, 32768')
        k(f'buffer_store_dwordx4 {v(vs,4)}, v{va}, {WSR}, s60 offen sc1')

    def o3():
        k('s_lshl_b32 s61, s65, 3')
        k('s_add_u32 s60, s64, s61')
        k('s_add_u32 s60, s60, 65536')
        k(f'buffer_store_dwordx2 {v(vs,2)}, v{va}, {WSR}, s60 offen sc1')

    def h1():
        tile35(k, 60, 61, 64)
        k('s_lshl_b32 s67, s61, 14')
        k('s_lshl_b32 s64, s60, 9')
        k('s_add_u32 s67, s67, s64')
        k(f's_add_u32 s67, s67, {WS_HS}')
        k('s_mul_i32 s61, s61, 10')
        k(f's_add_u32 s61, s61, s{S_W4}')
        k('s_lshl_b32 s61, s61, 15')
        k('s_lshl_b32 s60, s60, 10')
        k('s_add_u32 s64, s61, s60')
        k(f's_add_u32 s64, s64, {WS_H1}')
        k(f'buffer_store_dwordx4 {v(vs,4)}, v{va}, {WSR}, s64 offen sc1')

    def h2():
        k(f's_add_u32 s60, s64, {4*32768}')
        k(f'buffer_store_dwordx4 {v(vs,4)}, v{va}, {WSR}, s60 offen sc1')

    def h3():
        k(f's_add_u32 s60, s64, {8*32768}')
        k(f's_mov_b32 s65, {OOB}')
        k(f's_cmp_lt_u32 s{S_W4}, 2')
        k('s_cselect_b32 s60, s60, s65')
        k(f'buffer_store_dwordx4 {v(vs,4)}, v{va}, {WSR}, s60 offen sc1')

    def h4():
        k(f's_cmp_eq_u32 s{S_W4}, 2')
        k('s_cselect_b32 s60, s67, s65')
        k(f'buffer_store_dwordx2 {v(vs,2)}, v{va+1}, {WSR}, s60 offen sc1')

    def c1():
        tile4(k, 60, 61, 64)
        k('s_mul_i32 s61, s61, 384')
        k('s_mul_i32 s64, s60, 12288')
        k('s_add_u32 s61, s61, s64')
        k(f's_mul_i32 s64, s{S_W4}, 6144')
        k('s_add_u32 s61, s61, s64')
        k(f's_add_u32 s61, s61, {WS_PCS}')
        k('s_cmp_lt_u32 s60, 10')
        k('s_cselect_b32 s61, s61, s65')
        k(f's_cmp_lt_u32 s{S_W4}, 2')
        k('s_cselect_b32 s61, s61, s65')
        k('s_mov_b64 exec, 0xffffff')
        k(f'buffer_store_dwordx4 {v(vs,4)}, v{va}, {WSR}, s61 offen sc1')
        k('s_mov_b64 exec, -1')
    return [o1, o2, o3, h1, h2, h3, h4, c1]


def sparse_prefetch(k, srd, rows_per_wg, lines, pitch, colshift, colmul, va, vd, toff=0):
    magic = {5: 13108, 6: 10923}[lines]
    k(f'v_subrev_u32 v{va}, {toff}, v0')
    k(f'v_cmp_gt_u32 vcc, {rows_per_wg*lines}, v{va}')
    k(f'v_mul_u32_u24 v{vd}, {magic}, v{va}')
    k(f'v_lshrrev_b32 v{vd}, 16, v{vd}')
    k(f'v_mul_u32_u24 v{vd}, {pitch-lines*128}, v{vd}')
    k(f'v_lshl_add_u32 v{va}, v{va}, 7, v{vd}')
    k(f'v_mov_b32 v{vd}, {OOB}')
    k(f'v_cndmask_b32 v{va}, v{vd}, v{va}, vcc')
    k(f's_mul_i32 s60, s{S_I32}, {rows_per_wg*pitch}')
    k(f's_lshr_b32 s61, s{S_X8}, {colshift}')
    k(f's_mul_i32 s61, s61, {colmul}')
    k('s_add_u32 s60, s60, s61')
    for sr in srd:
        k(f'buffer_load_dword v{vd}, v{va}, s[{sr}:{sr+3}], s60 offen')


def pf_wo(k, va, vd):
    sparse_prefetch(k, [S_WO], 20, 5, 1280, 2, 640, va, vd)


def pf_wd(k, va, vd):
    sparse_prefetch(k, [S_WD], 48, 5, 1280, 2, 640, va, vd)


def pf_wgu(k, va, vd, toff=0):
    sparse_prefetch(k, [S_WG, S_WU], 20, 6, 3072, 1, 768, va, vd, toff)


P1_R, P1_SLOT = 4, 32768


def p1_dma(k, S_SIG, sa, sb_):
    S_NT, S_TOK, S_LW = 44, 46, 48
    k('s_cmp_ge_u32 s56, 5')
    k(f's_cselect_b32 s{S_SIG}, 5, 0')
    k('v_lshrrev_b32 v10, 3, v1')
    k(f'v_add_u32 v10, s{S_TOK}, v10')
    k('v_mul_u32_u24 v10, 1280, v10')
    k('v_and_b32 v11, 7, v1')
    k('v_lshrrev_b32 v12, 4, v1')
    k('v_xor_b32 v11, v11, v12')
    k('v_xor_b32 v13, 4, v11')
    k('v_lshl_add_u32 v2, v11, 4, v10')
    k('v_lshl_add_u32 v3, v13, 4, v10')
    k(f'v_add_u32 v3, {10240-1024}, v3')
    k(f'v_add_u32 v4, {2*(10240-1024)}, v2')
    k(f'v_add_u32 v5, {2*(10240-1024)}, v3')
    k(f's_lshl_b32 s47, s{S_W4}, 4')
    k('v_add_u32 v10, s47, v12')
    k('v_mul_u32_u24 v10, 3840, v10')
    k(f's_lshl_b32 s47, s{S_NT}, 8')
    k('v_add_u32 v10, s47, v10')
    k('v_bfe_u32 v11, v1, 2, 2')
    k('v_xor_b32 v11, v11, v12')
    k('v_lshl_add_u32 v10, v11, 6, v10')
    k('v_and_b32 v11, 3, v1')
    k('v_lshl_add_u32 v6, v11, 4, v10')
    for i in range(1, 4):
        k(f'v_add_u32 v{6+i}, {i*(4*3840-1024)}, v6')
    k(f's_lshl_b32 s{S_LW}, s{S_W4}, 12')
    tok = {}

    def issue(st):
        slot = st % P1_R
        k(f's_add_u32 m0, s{S_LW}, {slot*P1_SLOT}')
        k(f's_lshl_b32 s{sa}, s{S_SIG}, 7')
        for i in range(4):
            k(f'buffer_load_dwordx4 v{2+i}, s[{S_X}:{S_X+3}], s{sa} offen offset:{i*1024} lds')
        k(f's_add_u32 m0, s{S_LW}, {slot*P1_SLOT+16384}')
        k(f's_mul_i32 s{sb_}, s{S_SIG}, {64*3840}')
        k(f's_add_u32 s{S_SIG}, s{S_SIG}, 1')
        k(f's_cmp_eq_u32 s{S_SIG}, 10')
        k(f's_cselect_b32 s{S_SIG}, 0, s{S_SIG}')
        for i in range(4):
            tok[st] = k(f'buffer_load_dwordx4 v{6+i}, s[{S_WQKV}:{S_WQKV+3}], s{sb_} offen offset:{i*1024} lds')
    return tok, issue


def p1_loader(k, g3):
    tile1(k)
    S_NT, S_TOK, S_LW, S_SIG = 44, 46, 48, 55
    lab_h, lab_e = k.newlabel('L_HELP'), k.newlabel('L_P1E')
    k(f's_cmp_ge_u32 s{S_I32}, 30')
    k(f's_cbranch_scc1 {lab_h}')
    tok, issue = p1_dma(k, S_SIG, 49, 50)
    issue(0)
    issue(1)
    stamp(k, 1)
    k.wait(tok[0])
    k('s_barrier')
    stamp(k, 2)
    if OPT.get('cdma', 0):
        k(f's_add_u32 s{S_SIG}, s{S_SIG}, 2')
        tok[2] = tok[3] = tok[1]
    else:
        issue(2)
        issue(3)
    blk = k.capture(lambda: (g3.dma_setup(100), p2_setup(k)))
    nb_ = (len(blk) + 2) // 3
    for st in range(1, 10):
        k.wait(tok[st])
        k('s_barrier')
        if st + 3 < 10:
            issue(st + 3)
        if st == 6:
            stamp(k, 3)
            pf_wo(k, 120, 121)
        if 6 <= st <= 8:
            k.items.extend(blk[(st - 6) * nb_:(st - 5) * nb_])
    k(f's_branch {lab_e}')
    k.label(lab_h)
    for st in range(10):
        k('s_barrier')
    pf_wo(k, 120, 121)
    k.items.extend(blk)
    k.label(lab_e)
    join(k)
    nonce_from_lds(k, 122)
    stamp(k, 9)
    k('s_barrier')
    if OPT.get('wowait', 1):
        cnt_wait(k, 238, 239, 0, OPT.get('wowait', 1))
    stamp(k, 10)
    for st in range(5):
        runall(k, g3.dma_step(st))
    stamp(k, 11)


def p1_compute(k):
    tile1(k)
    S_NT, S_MT, S_TOK, S_LW, S_RHO = 44, 45, 46, 48, 56
    k(f's_lshl_b32 s{S_LW}, s{S_W4}, 12')
    ctok = {}
    if OPT.get('cdma', 0):
        lab_nd = k.newlabel('NODMA')
        k(f's_cmp_ge_u32 s{S_I32}, 30')
        k(f's_cbranch_scc1 {lab_nd}')
        ctok, cissue = p1_dma(k, 55, 49, 50)
        k('s_add_u32 s55, s55, 2')
        cissue(2)
        cissue(3)
        k.label(lab_nd)
    for i in range(4):
        k(f'v_mov_b32 v{96+i}, -1')
    k('v_lshlrev_b32 v100, 4, v1')
    k('v_lshlrev_b32 v101, 3, v1')
    k('v_and_b32 v40, 31, v1')
    k('v_lshlrev_b32 v109, 3, v40')
    k('v_lshlrev_b32 v102, 2, v40')
    k(f's_lshl_b32 s51, s{S_RHO}, 14')
    k(f's_lshl_b32 s47, s{S_TOK}, 3')
    k('s_add_u32 s51, s51, s47')
    k(f's_add_u32 s51, s51, {WS_PS}')
    k(f's_mov_b32 s47, {OOB}')
    k(f's_cmp_lt_u32 s{S_NT}, 10')
    k('s_cselect_b32 s51, s51, s47')
    k(f's_mul_i32 s52, s{S_RHO}, 7680')
    k(f's_lshl_b32 s49, s{S_NT}, 9')
    k('s_add_u32 s52, s52, s49')
    k(f's_lshl_b32 s49, s{S_W4}, 7')
    k('s_add_u32 s52, s52, s49')
    k(f's_add_u32 s52, s52, {WS_PC}')
    k(f's_cmp_lt_u32 s{S_MT}, 10')
    k('s_cselect_b32 s52, s52, s47')
    k(f's_cmp_lt_u32 s{S_I32}, 30')
    k('s_cselect_b32 s51, s51, s47')
    k('s_cselect_b32 s52, s52, s47')
    k(f'buffer_store_dwordx2 {v(96,2)}, v109, {WSR}, s51 offen sc1')
    sctok = k(f'buffer_store_dword v96, v102, {WSR}, s52 offen sc1')
    if OPT.get('qclr', 0):
        k(f's_lshl_b32 s60, s{S_NT}, 5')
        k(f's_lshl_b32 s61, s{S_W4}, 3')
        k('s_add_u32 s60, s60, s61')
        k('s_lshl_b32 s60, s60, 14')
        k(f's_lshl_b32 s61, s{S_MT}, 10')
        k('s_add_u32 s64, s60, s61')
        k(f's_lshr_b32 s60, s{S_TOK}, 5')
        k('s_mul_i32 s60, s60, 40960')
        k(f's_sub_u32 s61, s{S_NT}, 10')
        k('s_lshl_b32 s61, s61, 11')
        k('s_add_u32 s65, s60, s61')
        k(f's_cmp_lt_u32 s{S_I32}, 30')
        k(f's_cselect_b32 s64, s64, {OOB}')
        k(f's_cselect_b32 s65, s65, {OOB}')
        for n in range(8):
            k(f's_add_u32 s60, s64, {WS_QG + n*16384}')
            k(f's_add_u32 s61, s65, {WS_VF + (n//2)*10240 + (n%2)*1024}')
            k(f's_cmp_lt_u32 s{S_NT}, 10')
            k('s_cselect_b32 s60, s60, s61')
            if OPT.get('qclr') == 2:
                k('s_sleep 4')
            sctok = k(f'buffer_store_dwordx4 {v(96,4)}, v100, {WSR}, s60 offen sc1')
    NV = 252
    if OPT.get('tlb', 0) & 1:
        k('v_lshlrev_b32 v115, 20, v1')
        for n_, sr in enumerate((S_WS, S_WO, S_WG, S_WU, S_WD, S_OUT)):
            k(f's_cmp_eq_u32 s{S_W4}, {n_ % 4}')
            k(f's_cselect_b32 s60, 0, {OOB}')
            k(f'buffer_load_dword v{116+n_}, v115, s[{sr}:{sr+3}], s60 offen')
    if OPT.get('tlb', 0) & 2:
        k('v_and_b32 v115, 15, v1')
        k(f's_lshl_b32 s60, s{S_I32}, 4')
        k('v_add_u32 v115, s60, v115')
        k('v_lshlrev_b32 v115, 16, v115')
        k(f's_cmp_eq_u32 s{S_W4}, 1')
        k(f's_cselect_b32 s60, 0, {OOB}')
        k(f'buffer_load_dword v116, v115, {WSR}, s60 offen')
        k('v_and_b32 v115, 1, v1')
        k(f's_lshl_b32 s60, s{S_I32}, 1')
        k('v_add_u32 v115, s60, v115')
        k('v_lshlrev_b32 v115, 16, v115')
        for n_, sr in enumerate((S_WO, S_WG, S_WU, S_WD, S_OUT)):
            k(f's_cmp_eq_u32 s{S_W4}, {2 + n_ % 2}')
            k(f's_cselect_b32 s60, 0, {OOB}')
            k(f'buffer_load_dword v{117+n_}, v115, s[{sr}:{sr+3}], s60 offen')
    def warm():
        k('v_lshlrev_b32 v110, 7, v0')
        k(f's_and_b32 s60, s{S_X8}, 3')
        k('s_lshl_b32 s60, s60, 5')
        k(f's_add_u32 s60, s60, s{S_I32}')
        k('s_mul_i32 s60, s60, 20480')
        k('v_cmp_gt_u32 vcc, 160, v0')
        k(f'v_mov_b32 v111, {OOB}')
        k('v_cndmask_b32 v110, v111, v110, vcc')
        k(f'buffer_load_dword v111, v110, s[{S_X}:{S_X+3}], s60 offen')
        k('v_lshrrev_b32 v110, 4, v0')
        k('v_mul_u32_u24 v110, 3840, v110')
        k('v_and_b32 v112, 15, v0')
        k('v_lshl_add_u32 v110, v112, 7, v110')
        k(f's_mul_i32 s60, s{S_I32}, {20*3840}')
        k(f's_lshr_b32 s61, s{S_X8}, 2')
        k('s_mul_i32 s61, s61, 1792')
        k('s_add_u32 s60, s60, s61')
        k(f'buffer_load_dword v113, v110, s[{S_WQKV}:{S_WQKV+3}], s60 offen')
        k(f's_add_u32 s60, s60, {16*3840}')
        k(f's_mov_b32 s61, {OOB}')
        k(f's_cmp_eq_u32 s{S_W4}, 0')
        k('s_cselect_b32 s60, s60, s61')
        k(f'buffer_load_dword v114, v110, s[{S_WQKV}:{S_WQKV+3}], s60 offen')
    if OPT.get('warm', 0) == 1:
        warm()
    k('v_lshrrev_b32 v41, 5, v1')
    k('v_bfe_u32 v42, v1, 1, 3')
    k('v_xor_b32 v42, v42, v41')
    k('v_lshlrev_b32 v43, 7, v40')
    k('v_lshl_add_u32 v43, v42, 4, v43')
    k(f'v_add_u32 v10, s{S_LW}, v43')
    for ks in range(1, 4):
        k(f'v_xor_b32 v{10+ks}, {ks*32}, v10')
    k('v_bfe_u32 v42, v1, 2, 2')
    k('v_lshl_add_u32 v43, v41, 3, v42')
    k('v_lshlrev_b32 v43, 8, v43')
    k('v_bfe_u32 v44, v1, 4, 1')
    k('v_lshl_add_u32 v43, v44, 5, v43')
    k('v_and_b32 v44, 3, v1')
    k('v_lshl_add_u32 v43, v44, 3, v43')
    k('v_add_u32 v43, 16384, v43')
    for j in range(4):
        k(f's_add_u32 s49, s{S_W4}, {j}')
        k('s_and_b32 s49, s49, 3')
        k('v_xor_b32 v44, s49, v42')
        k(f'v_lshl_add_u32 v{14+j}, v44, 6, v43')
    for i in range(8):
        k(f'v_add_u32 v{18+i}, 65536, v{10+i}')
    VSUM, VSQ, VCS, VONE = 34, 35, 36, 37
    k(f'v_mov_b32 v{VSUM}, 0')
    k(f'v_mov_b32 v{VSQ}, 0')
    k(f'v_mov_b32 v{VCS}, 0')
    k(f'v_mov_b32 v{VONE}, 0x3f803f80')
    k('v_lshrrev_b32 v105, 5, v1')
    k(f'v_mul_u32_u24 v103, {5*16384}, v105')
    k('v_add_u32 v103, v103, v109')
    k(f'v_mul_u32_u24 v104, {5*7680}, v105')
    k('v_add_u32 v104, v104, v102')
    k(f's_lshl_b32 s53, s{S_TOK}, 3')
    k(f's_add_u32 s53, s53, {WS_PS}')
    k(f's_lshl_b32 s54, s{S_NT}, 9')
    k(f's_lshl_b32 s49, s{S_W4}, 7')
    k('s_add_u32 s54, s54, s49')
    k(f's_add_u32 s54, s54, {WS_PC}')
    k('s_sub_u32 s55, s56, 5')
    k('s_cmp_ge_u32 s56, 5')
    k('s_cselect_b32 s55, s55, s56')
    XF, WF, ACC = 40, 48, 128
    PR, PCR, FL = 232, 242, 248
    stamp(k, 1)
    def nonce_share():
        def blk():
            loop, done = k.newlabel('NL'), k.newlabel('ND')
            first = k.newlabel('NF')
            k(f's_branch {first}')
            k.label(loop)
            k.raw(f'    buffer_load_dword v{NV}, v{NV+1}, s[{S_DBG}:{S_DBG+3}], 0 offen sc1')
            k.label(first)
            k.raw('    s_waitcnt vmcnt(0)')
            k(f'v_readfirstlane_b32 s{S_NONCE}, v{NV}')
            k(f's_cmp_lg_u32 s{S_NONCE}, 0')
            k(f's_cbranch_scc1 {done}')
            k(f's_cmp_eq_u32 s{S_BUD}, 0')
            k(f's_cbranch_scc1 {done}')
            k(f's_sub_u32 s{S_BUD}, s{S_BUD}, 1')
            k('s_sleep 4')
            k(f's_branch {loop}')
            k.label(done)
            k(f'v_mov_b32 v{NV+1}, {XNONCE}')
            k.raw(f'    ds_write_b32 v{NV+1}, v{NV}')
            k.raw('    s_waitcnt lgkmcnt(0)')
        k(f's_cmp_eq_u32 s{S_W}, 0')
        k.outline('s_cbranch_scc1', blk)
        k.wait(sctok)

    def nonce_pre():
        def blk():
            k(f'v_mov_b32 v{NV+1}, 0')
            k.raw(f'    buffer_load_dword v{NV}, v{NV+1}, s[{S_DBG}:{S_DBG+3}], 0 offen sc1')
        k(f's_cmp_eq_u32 s{S_W}, 0')
        k.outline('s_cbranch_scc1', blk)

    def nonce_get():
        rflag_store(k, WS_F0, 2, 107, 108)
        nonce_from_lds(k, 107)
    k(f'v_mov_b32 v107, {XCNT}')
    k('v_mov_b32 v108, 0')
    k('ds_write_b32 v107, v108')
    k('ds_write_b32 v107, v108 offset:4')
    k.wait_all(vm=False)
    if OPT.get('warm', 0) == 3:
        k('s_sleep 20')
        warm()
    stamp(k, 2)
    k('s_barrier')
    nonce_pre()
    if OPT.get('warm', 0) == 2:
        warm()
    stamp(k, 3)
    lab_v, lab_h, lab_done = k.newlabel('P1_V'), k.newlabel('C_HELP'), k.newlabel('C_P1D')
    k(f's_cmp_ge_u32 s{S_I32}, 30')
    k(f's_cbranch_scc1 {lab_h}')
    k(f's_cmp_ge_u32 s{S_NT}, 10')
    k(f's_cbranch_scc1 {lab_v}')
    saved = k.snap()
    T = {}

    def part_loads(c):
        for n in range(5):
            c(f's_add_u32 s58, s53, {n*16384}')
            c(f'buffer_load_dwordx2 {v(PR+2*n,2)}, v103, {WSR}, s58 offen sc1')
        tok = None
        for n in range(5):
            c(f's_add_u32 s58, s54, {n*7680}')
            tok = c(f'buffer_load_dword v{PCR+n}, v104, {WSR}, s58 offen sc1')
        return tok

    def mainloop(transposed):
        rd = {}

        def reads(kk):
            st, ks = kk // 4, kk % 4
            slot = st % P1_R
            q, so = slot // 2, (slot % 2) * P1_SLOT
            b = kk % 2
            ops = [[] for _ in range(4)]
            ops[0].append(lambda: rd.__setitem__((kk, 'x'), k(
                f'ds_read_b128 {v(XF+4*b,4)}, v{10+8*q+ks} offset:{so}')))
            for j in range(4):
                for hf in range(2):
                    ops[j].append(lambda j=j, hf=hf: rd.__setitem__((kk, j), k(
                        f'ds_read_b64_tr_b16 {v(WF+16*b+4*j+2*hf,2)}, v{14+8*q+j} offset:{so+ks*4096+hf*1024}')))
            return ops
        for l_ in reads(0):
            runall(k, l_)
        clr = clear_ops(k, 96, 100)
        for kk in range(40):
            b = kk % 2
            if kk % 8 == 4:
                stamp(k, 4 + kk // 8)
            fill, rds = [], []
            if kk >= OPT.get('clr0', 31) and clr:
                fill.append(clr.pop(0))
            if kk + 1 < 40:
                if (kk + 1) % 4 == 0:
                    if kk == 7:
                        nonce_share()
                    if (kk + 1) // 4 in ctok:
                        k.wait(ctok[(kk + 1) // 4])
                    k.wait_all(vm=False)
                    k('s_barrier')
                    if kk == 7:
                        nonce_get()
                rds = reads(kk + 1)
            if kk < 20:
                def dots(b=b, kk=kk):
                    for i in range(4):
                        k(f'v_dot2_f32_bf16 v{VSUM}, v{XF+4*b+i}, v{VONE}, v{VSUM}')
                        k(f'v_dot2_f32_bf16 v{VSQ}, v{XF+4*b+i}, v{XF+4*b+i}, v{VSQ}')
                        k(f'v_dot2_f32_bf16 v{VCS}, v{WF+16*b+i}, v{VONE}, v{VCS}')
                    if kk % 4 == 3:
                        xsum(k, VSUM, 80, 81)
                        xsum(k, VSQ, 80, 81)
                        xsum(k, VCS, 80, 81)
                        k.raw(f'    buffer_store_dwordx2 {v(VSUM,2)}, v109, {WSR}, s51 offen sc1')
                        k.raw(f'    buffer_store_dword v{VCS}, v102, {WSR}, s52 offen sc1')

                def g_(dots=dots, kk=kk):
                    k(f's_cmp_eq_u32 s55, {kk//4}')
                    k.outline('s_cbranch_scc1', dots)
                fill.append(g_)
            if kk == 22:
                fill.append(lambda: T.__setitem__('flags', flags_issue(k, WS_F0, FL, 106)))
            if kk == 30:
                def f():
                    flags_check(k, WS_F0, FL, 106, T['flags'])
                    T['part'] = part_loads(k)
                fill.append(f)
            if kk == 38:
                fill.append(lambda: finalize(transposed))
            mf = []
            for j in range(4):
                c = '0' if kk == 0 else v(ACC + 16 * j, 16)
                A_, B_ = v(WF + 16 * b + 4 * j, 4), v(XF + 4 * b, 4)
                if not transposed:
                    A_, B_ = B_, A_
                mf.append((lambda j=j: [rd[kk, 'x'], rd[kk, j]],
                           f'v_mfma_f32_32x32x16_bf16 {v(ACC+16*j,16)}, {A_}, {B_}, {c}'))
            roll_step(k, mf, rds, fill)

    def finalize(transposed):
        k.wait(T['part'])
        check_group(k, list(range(PR, PR + 10)) + list(range(PCR, PCR + 5)), 80, part_loads)
        for n in range(1, 5):
            k(f'v_pk_add_f32 {v(PR,2)}, {v(PR,2)}, {v(PR+2*n,2)}')
            k(f'v_add_f32 v{PCR}, v{PCR}, v{PCR+n}')
        xsum(k, PCR, 80, 81)
        k(f's_lshl_b32 s49, s{S_W4}, 7')
        k(f's_add_u32 s49, s49, {XCH}')
        k('v_add_u32 v82, s49, v102')
        k(f'ds_write_b32 v82, v{PCR}')
        vsum, vsq = PR, PR + 1
        xsum(k, vsum, 80, 81)
        xsum(k, vsq, 80, 81)
        k(f'v_mul_f32 v{vsum}, {f32(1.0/640)}, v{vsum}')
        k(f'v_mul_f32 v{vsq}, {f32(1.0/640)}, v{vsq}')
        k(f'v_fma_f32 v{vsq}, -v{vsum}, v{vsum}, v{vsq}')
        k(f'v_max_f32 v{vsq}, 0, v{vsq}')
        rbf(k, 80, vsum)
        rbf(k, 81, vsq)
        k(f'v_add_f32 v81, {f32(1e-5)}, v81')
        rbf(k, 81, 81)
        k('v_sqrt_f32 v81, v81')
        rbf(k, 81, 81)
        k('v_rcp_f32 v38, v81')
        if transposed:
            k(f's_mov_b32 s49, {f32(math.log2(math.e)/math.sqrt(20.0))}')
            k(f's_cmp_lt_u32 s{S_NT}, 5')
            k('s_cselect_b32 s49, s49, 1.0')
            k('v_mul_f32 v38, s49, v38')
        k('v_mul_f32 v39, v80, v38')
        k('v_sub_f32 v39, 0, v39')
        if not transposed:
            k(f's_lshl_b32 s49, s{S_W4}, 8')
            k(f's_add_u32 s49, s49, {XCH}')
            k('v_add_u32 v83, s49, v102')
            k('ds_write_b32 v83, v38 offset:1024')
            k('ds_write_b32 v83, v39 offset:1152')

    def fin():
        stamp(k, 10)
        k(f's_lshl_b32 s49, s{S_MT}, 4')
        k(f's_add_u32 s49, s49, s{S_NT}')
        k.wait_all()
        wflag_store(k, WS_F2, 49, 80, 81, 0)
        k(f's_branch {lab_done}')

    mainloop(True)
    stamp(k, 9)
    k.wait_all(vm=False)
    k('s_barrier')
    k(f's_lshl_b32 s49, s{S_TOK}, 3')
    k('v_add_u32 v84, s49, v109')
    k('v_lshl_add_u32 v84, v105, 14, v84')
    k('v_lshlrev_b32 v85, 4, v105')
    k(f'v_add_u32 v85, {XCH}, v85')
    toks = {}

    def csreads(j):
        k(f's_add_u32 s49, s{S_W4}, {j}')
        k('s_and_b32 s49, s49, 3')
        k('s_lshl_b32 s52, s49, 7')
        k('v_add_u32 v86, s52, v85')
        for a_ in range(4):
            toks[j, a_] = k(f'ds_read_b128 {v(192+16*(j%2)+4*a_,4)}, v86 offset:{a_*32}')
    csreads(0)
    csreads(1)
    for j in range(4):
        k(f's_add_u32 s49, s{S_W4}, {j}')
        k('s_and_b32 s49, s49, 3')
        k(f's_lshl_b32 s52, s{S_NT}, 5')
        k('s_lshl_b32 s53, s49, 3')
        k('s_add_u32 s52, s52, s53')
        k('s_lshl_b32 s52, s52, 14')
        C0 = 192 + 16 * (j % 2)
        for a_ in range(4):
            k.wait(toks[j, a_])
            r0 = ACC + 16 * j + 4 * a_
            for p in range(2):
                k(f'v_pk_mul_f32 {v(C0+4*a_+2*p,2)}, {v(C0+4*a_+2*p,2)}, {v(38,2)} op_sel:[0,1] op_sel_hi:[1,1]')
                k(f'v_pk_fma_f32 {v(r0+2*p,2)}, {v(r0+2*p,2)}, {v(38,2)}, {v(C0+4*a_+2*p,2)} op_sel_hi:[1,0,1]')
            k(f'v_cvt_pk_bf16_f32 v{112+2*a_}, v{r0}, v{r0+1}')
            k(f'v_cvt_pk_bf16_f32 v{113+2*a_}, v{r0+2}, v{r0+3}')
            k(f's_add_u32 s53, s52, {WS_QG + a_*32768}')
            k(f'buffer_store_dwordx2 {v(112+2*a_,2)}, v84, {WSR}, s53 offen sc1')
        if j + 2 < 4:
            csreads(j + 2)
    fin()
    k.label(lab_v)
    k.restore(saved)
    mainloop(False)
    stamp(k, 9)
    k.wait_all(vm=False)
    k('s_barrier')
    k(f's_lshl_b32 s49, s{S_W4}, 8')
    k(f's_add_u32 s49, s49, {XCH}')
    k('v_lshlrev_b32 v86, 4, v105')
    k('v_add_u32 v86, s49, v86')
    tl = []
    for a_ in range(4):
        tl.append(k(f'ds_read_b128 {v(192+4*a_,4)}, v86 offset:{1024+a_*32}'))
        tl.append(k(f'ds_read_b128 {v(208+4*a_,4)}, v86 offset:{1152+a_*32}'))
    for j in range(4):
        k(f's_add_u32 s52, s{S_W4}, {j}')
        k('s_and_b32 s52, s52, 3')
        k('s_lshl_b32 s52, s52, 7')
        k(f's_add_u32 s52, s52, {XCH}')
        k('v_add_u32 v87, s52, v102')
        tl.append(k(f'ds_read_b32 v{224+2*j}, v87'))
    k('v_mul_u32_u24 v84, 10240, v105')
    k('v_lshl_add_u32 v84, v102, 2, v84')
    k(f's_lshr_b32 s53, s{S_TOK}, 5')
    k('s_mul_i32 s53, s53, 40960')
    k(f's_sub_u32 s54, s{S_NT}, 10')
    k('s_lshl_b32 s54, s54, 11')
    k('s_add_u32 s53, s53, s54')
    k(f's_add_u32 s53, s53, {WS_VF}')
    k.wait(*tl)
    for j in range(4):
        k(f's_add_u32 s52, s{S_W4}, {j}')
        k('s_and_b32 s52, s52, 3')
        k('s_lshl_b32 s52, s52, 9')
        k('s_add_u32 s52, s52, s53')
        for m in range(2):
            for p in range(4):
                i = 8 * m + 2 * p
                r0 = ACC + 16 * j + i
                k(f'v_pk_mul_f32 {v(88+2*(p%2),2)}, {v(208+i,2)}, {v(224+2*j,2)} op_sel_hi:[1,0]')
                k(f'v_pk_fma_f32 {v(r0,2)}, {v(r0,2)}, {v(192+i,2)}, {v(88+2*(p%2),2)}')
                k(f'v_cvt_pk_bf16_f32 v{112+8*(j%2)+4*m+p}, v{r0}, v{r0+1}')
            k(f's_add_u32 s54, s52, {m*20480}')
            k(f'buffer_store_dwordx4 {v(112+8*(j%2)+4*m,4)}, v84, {WSR}, s54 offen sc1')
    fin()
    k.label(lab_h)
    k.restore(saved)
    nonce_share()
    k('s_barrier')
    nonce_get()
    for _ in range(8):
        k('s_barrier')
    runall(k, clear_ops(k, 96, 100))
    k('s_barrier')
    k(f's_lshl_b32 s49, s{S_X8}, 1')
    k(f's_add_u32 s49, s49, s{S_I32}')
    k('s_sub_u32 s49, s49, 30')
    k('s_lshl_b32 s49, s49, 4')
    k('s_add_u32 s49, s49, 15')
    k.wait_all()
    wflag_store(k, WS_F2, 49, 80, 81, 0)
    k.label(lab_done)


P5_BAR = (2, 4, 6, 8, 10)


class G35:
    def __init__(self, k, which, groups, vb, sb):
        self.k = k
        self.which = which
        self.KT = 640 if which == 3 else 1536
        self.NST = self.KT // 128
        self.SB = S_WO if which == 3 else S_WD
        self.groups = groups
        self.vb = vb
        self.sb = sb
        self.btok = {}
        self.rtok = {}
        self.sr = 36 if which == 3 else 37

    def set_rho(self, sct):
        k = self.k
        sr = self.sr
        if not OPT.get('rot35', 1):
            k(f's_mov_b32 s{sr}, 0')
        elif self.which == 3:
            k(f's_sub_u32 s{sr}, s{sct}, 5')
            k(f's_cmp_ge_u32 s{sct}, 5')
            k(f's_cselect_b32 s{sr}, s{sr}, s{sct}')
        else:
            k(f's_mul_i32 s{sr}, s{sct}, 3')
            k(f's_lshr_b32 s{sr}, s{sr}, 1')

    def rot(self, c, st, sreg, stmp, mul, src=None):
        c(f's_add_u32 s{sreg}, s{self.sr if src is None else src}, {st}')
        c(f's_sub_u32 s{stmp}, s{sreg}, {self.NST}')
        c(f's_cmp_ge_u32 s{sreg}, {self.NST}')
        c(f's_cselect_b32 s{sreg}, s{stmp}, s{sreg}')
        c(f's_mul_i32 s{sreg}, s{sreg}, {mul}')

    def dma_setup(self, t0):
        k, vb, sb = self.k, self.vb, self.sb
        tile35(k, 61, 60, sb)
        self.set_rho(60)
        k('s_mul_i32 s60, s60, 160')
        k(f's_mul_i32 s{sb+1}, s{S_W4}, {(self.KT//4)*1280}')
        k(f's_add_u32 s60, s60, s{sb+1}')
        for n in range(5):
            k(f'v_add_u32 v{t0}, {64*n}, v1')
            k(f'v_mul_u32_u24 v{t0+1}, 6554, v{t0}')
            k(f'v_lshrrev_b32 v{t0+1}, 16, v{t0+1}')
            k(f'v_mul_u32_u24 v{t0+2}, 10, v{t0+1}')
            k(f'v_sub_u32 v{t0+2}, v{t0}, v{t0+2}')
            k(f'v_bfe_u32 v{t0+3}, v{t0+1}, 3, 1')
            k(f'v_lshlrev_b32 v{t0+3}, 2, v{t0+3}')
            k(f'v_xor_b32 v{t0+1}, v{t0+1}, v{t0+3}')
            k(f'v_mul_u32_u24 v{t0+1}, 1280, v{t0+1}')
            k(f'v_lshl_add_u32 v{vb+n}, v{t0+2}, 4, v{t0+1}')
            k(f'v_add_u32 v{vb+n}, s60, v{vb+n}')
            if 0 < n < 4:
                k(f'v_subrev_u32 v{vb+n}, {n*1024}, v{vb+n}')
        k(f's_mul_i32 s{sb}, s{S_W4}, 5120')

    def dma_step(self, st):
        k, vb, sb = self.k, self.vb, self.sb
        base = self.groups[st % len(self.groups)]
        SB = self.SB
        ops = []

        def f0():
            k(f's_add_u32 m0, s{sb}, {base}')
            self.rot(k, st, sb + 1, 38, 32 * 1280)
        ops.append(f0)
        for n in range(4):
            ops.append(lambda n=n: self.btok.__setitem__(st, k(
                f'buffer_load_dwordx4 v{vb+n}, s[{SB}:{SB+3}], s{sb+1} offen offset:{n*1024} lds')))
        ops.append(lambda: k(f's_add_u32 m0, s{sb}, {base+4096}'))
        ops.append(lambda: self.btok.__setitem__(st, k(
            f'buffer_load_dwordx4 v{vb+4}, s[{SB}:{SB+3}], s{sb+1} offen lds')))
        return ops

    def breg_load(self, st, r0):
        k, vb, sb, SB = self.k, self.vb, self.sb, self.SB
        self.rot(k, st, sb + 1, 38, 32 * 1280)
        for n in range(4):
            k(f'buffer_load_dwordx4 {v(r0+4*n,4)}, v{vb+n}, s[{SB}:{SB+3}], s{sb+1} offen offset:{n*1024}')
            if OPT.get('pace', 0):
                k(f's_sleep {OPT.get("pace")}')
        self.rtok[st] = (k(f'buffer_load_dwordx4 {v(r0+16,4)}, v{vb+4}, s[{SB}:{SB+3}], s{sb+1} offen'), r0)

    def breg_write(self, st, va):
        k = self.k
        tok, r0 = self.rtok[st]
        base = self.groups[st % len(self.groups)]
        q, so = base // 61440, base % 61440
        k.wait(tok)
        for n in range(5):
            self.btok[st] = k(f'ds_write_b128 v{va+q}, {v(r0+4*n,4)} offset:{so+n*1024}')

    def loader(self, nb_pre, st0=0):
        k, NST = self.k, self.NST
        NG = len(self.groups)
        k('v_lshlrev_b32 v12, 4, v1')
        k(f's_mul_i32 s46, s{S_W4}, 5120')
        k('v_add_u32 v21, s46, v12')
        k('v_add_u32 v22, 61440, v21')
        k('v_add_u32 v23, 122880, v21')
        stamp(k, st0)
        k.wait(*[self.btok[s_] for s_ in range(7)])
        k('s_barrier')

        def put(nb):
            if nb in self.rtok:
                self.breg_write(nb, 21)
            else:
                runall(k, self.dma_step(nb))
        k('s_barrier')
        for nb in (7, 8, 9):
            put(nb)
        k('s_barrier')
        put(11)
        put(10)
        k.wait(self.btok[7], self.btok[8])
        k('s_barrier')
        k.wait(self.btok[9], self.btok[10])
        k('s_barrier')
        k.wait(self.btok[11])
        k('s_barrier')
        stamp(k, st0 + 3)

    def compute(self, own_tok, st0=0):
        k, NST, which, KT = self.k, self.NST, self.which, self.KT
        NG = len(self.groups)
        ABASE = WS_OC if which == 3 else WS_HC
        S_RT, S_CT, S_PAR = 44, 45, 50
        tile35(k, 44, 45, 46)
        self.set_rho(45)
        k('s_mov_b32 s50, 0')
        k(f's_mul_i32 s51, s{S_W4}, 5120')
        k('v_and_b32 v15, 15, v1')
        k('v_lshrrev_b32 v16, 4, v1')
        k('v_bfe_u32 v17, v1, 2, 2')
        k('v_lshl_add_u32 v18, v16, 3, v17')
        k('v_bfe_u32 v20, v1, 4, 1')
        k('v_lshlrev_b32 v20, 2, v20')
        k('v_xor_b32 v19, v18, v20')
        k('v_xor_b32 v22, 4, v19')
        k('v_and_b32 v21, 3, v1')
        RA = 24
        for hf, src in ((0, 19), (1, 22)):
            k(f'v_mul_u32_u24 v{RA+hf}, 160, v{src}')
            k(f'v_lshl_add_u32 v{RA+hf}, v21, 3, v{RA+hf}')
            k(f'v_add_u32 v{RA+hf}, s51, v{RA+hf}')
        QS = 61440
        for q in (1, 2):
            for i in range(2):
                k(f'v_add_u32 v{RA+2*q+i}, {q*QS}, v{RA+i}')
        k('v_lshlrev_b32 v2, 4, v1')
        k('v_lshlrev_b32 v3, 4, v15')
        k('v_lshl_add_u32 v3, v16, 15, v3')
        for tau in range(4):
            k(f's_add_u32 s46, s{S_W4}, {tau}')
            k('s_and_b32 s46, s46, 3')
            k('s_lshl_b32 s46, s46, 8')
            k(f'v_add_u32 v{4+tau}, s46, v3')
        k('s_lshl_b32 s53, s44, 10')
        k(f's_mul_i32 s54, s{S_W4}, {(KT//32)*32768}')
        k('s_add_u32 s53, s53, s54')
        k(f's_add_u32 s53, s53, {ABASE}')
        NW = 5
        AFR = 164
        atok = {}

        def aload(c, st, sreg):
            self.rot(c, st, sreg, 38, 4 * 32768)
            c(f's_add_u32 s{sreg}, s{sreg}, s53')
            t_ = None
            for t in range(4):
                t_ = c(f'buffer_load_dwordx4 {v(AFR+16*(st%NW)+4*t,4)}, v{4+t}, {WSR}, s{sreg} offen sc1')
            return t_
        RES = 244
        k(f's_lshl_b32 s46, s{S_RT}, 6')
        k(f's_lshl_b32 s47, s{S_W4}, 4')
        k('s_add_u32 s46, s46, s47')
        S_TK = 46
        k('v_add_u32 v12, s46, v15')
        if which == 3:
            k('v_mul_u32_u24 v13, 1280, v12')
            k('v_lshl_add_u32 v13, v16, 3, v13')
            k(f's_mul_i32 s47, s{S_CT}, 160')
            k(f's_lshl_b32 s48, s{S_PAR}, 5')
            k('s_add_u32 s48, s48, s47')
            k(f's_lshl_b32 s49, s{S_PAR}, 7')
            k('s_sub_u32 s49, 128, s49')
            k('s_add_u32 s49, s49, s47')
            for jt in range(4):
                k(f'buffer_load_dwordx2 {v(RES+2*jt,2)}, v13, s[{S_X}:{S_X+3}], s48 offen offset:{jt*32}')
            rtk = k(f'buffer_load_dwordx2 {v(RES+8,2)}, v13, s[{S_X}:{S_X+3}], s49 offen')
            tile4(k, 48, 49, 47)
            k('s_lshl_b32 s48, s48, 4')
            k('s_add_u32 s49, s49, s48')
            stamp(k, st0 - 1)
            k('s_barrier')
            rflag_store(k, WS_F3, 49, 8, 9)
            stamp(k, st0)
            if OPT.get('odelay', 0):
                k(f's_sleep {OPT.get("odelay")}')
        else:
            stamp(k, st0)
            k.wait(own_tok)
        stamp(k, st0 + 1)
        ACC, WF = 44, 124
        D = OPT.get('ad', 3)
        for st in range(D):
            atok[st] = aload(k, st, 54)
        rt = {}

        def reads(st):
            base = self.groups[st % NG]
            q, so = base // QS, base % QS
            b = st % 2
            ops = []
            for jt in range(5):
                for hf in range(2):
                    ops.append(lambda jt=jt, hf=hf: rt.__setitem__((st, jt), k(
                        f'ds_read_b64_tr_b16 {v(WF+20*b+4*jt+2*hf,2)}, v{RA+2*q+hf} offset:{so+jt*32}')))
            return ops
        if which == 5:
            k('s_barrier')
        runall(k, reads(0))
        na = D
        for st in range(NST):
            b = st % 2
            R0 = AFR + 16 * (st % NW)
            if which == 5 and OPT.get('p5st') and st >= 1:
                stamp(k, 12 + st)
            k.wait(atok[st])
            check_group(k, range(R0, R0 + 16), 14, lambda c, st=st: aload(c, st, 58))
            if st == 0:
                stamp(k, st0 + 2)
            if which == 5 and OPT.get('p5st') and st >= 1:
                stamp(k, st)
            mf = []
            for t in range(4):
                for jt in range(5):
                    acc = v(ACC + 20 * t + 4 * jt, 4)
                    c = '0' if st == 0 else acc
                    mf.append((lambda jt=jt: [rt[st, jt]],
                               f'v_mfma_f32_16x16x32_bf16 {acc}, {v(WF+20*b+4*jt,4)}, {v(R0+4*t,4)}, {c}'))
            rds = [[] for _ in range(20)]
            cnt = 0
            while na < NST and na <= st + NW - 1 and cnt < 2:
                def al(na=na):
                    self.rot(k, na, 54, 38, 4 * 32768)
                    k('s_add_u32 s54, s54, s53')
                rds[0 + 10 * cnt].append(al)
                for t in range(4):
                    rds[0 + 10 * cnt + 2 * t].append(lambda t=t, na=na: atok.__setitem__(na, k(
                        f'buffer_load_dwordx4 {v(AFR+16*(na%NW)+4*t,4)}, v{4+t}, {WSR}, s54 offen sc1')))
                na += 1
                cnt += 1
            if st + 1 < NST:
                if which == 5 and st in P5_BAR:
                    def bar():
                        k.wait_all(vm=False)
                        k('s_barrier')
                    rds[5].append(bar)
                for i, f in enumerate(reads(st + 1)):
                    rds[5 + i].append(f)
            roll_step(k, mf, rds, [])
        stamp(k, st0 + 3)
        for tau in range(1, 4):
            k(f's_add_u32 s47, s{S_W4}, {tau}')
            k('s_and_b32 s47, s47, 3')
            k('s_mul_i32 s47, s47, 15360')
            k(f'v_add_u32 v{17+tau}, s47, v2')
        k(f's_mul_i32 s47, s{S_W4}, 15360')
        k('v_add_u32 v21, s47, v2')
        if which == 3:
            k('s_barrier')
        for tau in range(1, 4):
            for jt in range(5):
                k(f'ds_write_b128 v{17+tau}, {v(ACC+20*tau+4*jt,4)} offset:{(tau-1)*5120+jt*1024}')
        k.wait_all(vm=False)
        k('s_barrier')
        S0, S1 = ACC, 124
        toks = {}
        for sidx in range(3):
            for jt in range(5):
                toks[sidx, jt] = k(f'ds_read_b128 {v(S1+20*sidx+4*jt,4)}, v21 offset:{sidx*5120+jt*1024}')
        for sidx in range(3):
            for jt in range(5):
                k.wait(toks[sidx, jt])
                for p in range(2):
                    r = 4 * jt + 2 * p
                    k(f'v_pk_add_f32 {v(S0+r,2)}, {v(S0+r,2)}, {v(S1+20*sidx+r,2)}')
        if which == 3:
            k('s_barrier')
            k.wait(rtk)
        stamp(k, st0 + 4)
        PK = 190
        for i in range(10):
            k(f'v_cvt_pk_bf16_f32 v{PK+i}, v{S0+2*i}, v{S0+2*i+1}')
        for i in range(10):
            k(f'v_lshlrev_b32 v{S0+2*i}, 16, v{PK+i}')
            k(f'v_and_b32 v{S0+2*i+1}, 0xffff0000, v{PK+i}')
            k(f'v_lshlrev_b32 v{S1+2*i}, 16, v{RES+i}')
            k(f'v_and_b32 v{S1+2*i+1}, 0xffff0000, v{RES+i}')
            k(f'v_pk_add_f32 {v(S0+2*i,2)}, {v(S0+2*i,2)}, {v(S1+2*i,2)}')
        if which == 3:
            PK = RES
        for i in range(10):
            k(f'v_cvt_pk_bf16_f32 v{PK+i}, v{S0+2*i}, v{S0+2*i+1}')
        if which == 3:
            k('v_lshlrev_b32 v13, 4, v12')
            k('v_lshrrev_b32 v14, 1, v16')
            k('v_lshl_add_u32 v17, v14, 15, v13')
            k('v_and_b32 v14, 1, v16')
            k('v_lshl_add_u32 v18, v14, 16, v17')
            k('v_lshl_add_u32 v13, v14, 3, v17')
            k(f's_mul_i32 s48, s{S_CT}, 10')
            k('s_lshl_b32 s48, s48, 15')
            k(f's_add_u32 s48, s48, {WS_H1}')
            for i in range(8):
                k(f'v_mov_b32 v{200+i}, v{PK+i}')
            for pr in range(2):
                for d in range(2):
                    k(f'v_permlane16_swap_b32 v{200+4*pr+d}, v{200+4*pr+2+d}')
                k(f's_add_u32 s47, s48, {pr*4*32768}')
                k(f'buffer_store_dwordx4 {v(200+4*pr,4)}, v18, {WSR}, s47 offen sc1')
            k(f's_add_u32 s47, s48, {8*32768}')
            k(f'buffer_store_dwordx2 {v(PK+8,2)}, v13, {WSR}, s47 offen sc1')
            k('v_mov_b32 v152, 0')
            k('v_mov_b32 v153, 0')
            k('v_mov_b32 v154, 0x3f803f80')
            for i in range(10):
                k(f'v_dot2_f32_bf16 v152, v{PK+i}, v154, v152')
                k(f'v_dot2_f32_bf16 v153, v{PK+i}, v{PK+i}, v153')
            for r in (152, 153):
                xsum(k, r, 156, 157, 32)
                xsum(k, r, 156, 157, 16)
            k('v_lshlrev_b32 v14, 3, v12')
            k(f's_lshl_b32 s47, s{S_CT}, 14')
            k(f's_add_u32 s47, s47, {WS_HS}')
            k('s_mov_b64 exec, 0xffff')
            self.own = k(f'buffer_store_dwordx2 {v(152,2)}, v14, {WSR}, s47 offen sc1')
            k('s_mov_b64 exec, -1')
        else:
            P = 176
            k(f'v_mul_u32_u24 v13, {P}, v15')
            k('v_lshl_add_u32 v13, v16, 3, v13')
            k(f's_lshl_b32 s47, s{S_W4}, 12')
            k('s_add_u32 s47, s47, 65536')
            k('v_add_u32 v13, s47, v13')
            k(f's_lshl_b32 s48, s{S_PAR}, 5')
            k('v_add_u32 v14, s48, v13')
            k(f's_lshl_b32 s48, s{S_PAR}, 7')
            k('s_sub_u32 s48, 128, s48')
            k('v_add_u32 v13, s48, v13')
            for jt in range(4):
                k(f'ds_write_b64 v14, {v(PK+2*jt,2)} offset:{jt*32}')
            k(f'ds_write_b64 v13, {v(PK+8,2)}')
            k(f's_mul_i32 s48, s{S_CT}, 160')
            k(f's_mul_i32 s49, s{S_TK}, 1280')
            k('s_add_u32 s48, s48, s49')
            for it in range(3):
                k(f'v_add_u32 v17, {64*it}, v1')
                k('v_mul_u32_u24 v18, 6554, v17')
                k('v_lshrrev_b32 v18, 16, v18')
                k('v_mul_u32_u24 v19, 10, v18')
                k('v_sub_u32 v19, v17, v19')
                k(f'v_mul_u32_u24 v20, {P}, v18')
                k('v_lshl_add_u32 v20, v19, 4, v20')
                k(f'v_add_u32 v{160+it}, s47, v20')
                k('v_mul_u32_u24 v20, 1280, v18')
                k(f'v_lshl_add_u32 v{164+it}, v19, 4, v20')
            k.wait_all(vm=False)
            tl = [k(f'ds_read_b128 {v(168+4*it,4)}, v{160+it}') for it in range(3)]
            for it in range(3):
                k.wait(tl[it])
                if it == 2:
                    k('v_cmp_gt_u32 vcc, 32, v1')
                    k('s_mov_b64 exec, vcc')
                k(f'buffer_store_dwordx4 {v(168+4*it,4)}, v{164+it}, s[{S_OUT}:{S_OUT+3}], s48 offen sc1')
            k('s_mov_b64 exec, -1')


def p2_setup(k):
    LK, LV = 102400, 122880
    k(f's_and_b32 s45, s{S_I32}, 3')
    k(f's_lshl_b32 s44, s{S_X8}, 2')
    k('s_add_u32 s45, s45, s44')
    k(f's_lshr_b32 s44, s{S_I32}, 2')
    S_I, S_H = 44, 45
    k(f's_lshl_b32 s46, s{S_I}, 8')
    k('s_sub_u32 s47, s46, 256')
    k('s_max_i32 s47, s47, 0')
    k(f's_cmp_lt_u32 s{S_W4}, 2')
    k('s_cselect_b32 s48, s47, s46')
    k('s_mov_b32 s50, s48')
    k(f's_and_b32 s49, s{S_W4}, 1')
    k('s_lshl_b32 s49, s49, 7')
    k('s_add_u32 s48, s48, s49')
    k('s_lshl_b32 s48, s48, 3')
    k(f's_mul_i32 s49, s{S_H}, {5*16384}')
    k('s_add_u32 s48, s48, s49')
    k(f's_add_u32 s48, s48, {WS_KG}')
    k('v_lshlrev_b32 v2, 4, v1')
    k('s_lshr_b32 s50, s50, 3')
    k('s_mul_i32 s50, s50, 10240')
    k(f's_mul_i32 s49, s{S_H}, 320')
    k('s_add_u32 s50, s50, s49')
    k(f's_add_u32 s50, s50, {WS_VF}')
    k(f's_cmp_lt_u32 s{S_W}, 4')
    k('s_cselect_b32 s48, s48, s50')
    k('s_cselect_b64 s[96:97], -1, 0')
    k(f's_lshl_b32 s49, s{S_W4}, 10')
    k(f's_add_u32 s49, s49, {LK}')
    k(f's_mul_i32 s50, s{S_W4}, 5120')
    k(f's_add_u32 s50, s50, {LV}')
    k(f's_cmp_lt_u32 s{S_W}, 4')
    k('s_cselect_b32 s50, s49, s50')
    k('s_movk_i32 s56, 1024')
    k('s_cselect_b32 s56, 4096, s56')
    k(f's_and_b32 s49, s{S_W4}, 1')
    k('s_mul_i32 s49, s49, 320')
    for n in range(5):
        k(f'v_add_u32 v3, {n*64}, v1')
        k('v_add_u32 v3, s49, v3')
        k('v_mul_u32_u24 v4, 3277, v3')
        k('v_lshrrev_b32 v4, 16, v4')
        k('v_mul_u32_u24 v5, 20, v4')
        k('v_sub_u32 v5, v3, v5')
        k('v_mul_u32_u24 v4, 10240, v4')
        k(f'v_lshl_add_u32 v4, v5, 4, v4')
        k(f'v_add_u32 v5, {n*16384}, v2')
        k(f'v_cndmask_b32 v{6+n}, v4, v5, s[96:97]')
    k('v_and_b32 v12, 31, v1')
    k('v_lshrrev_b32 v13, 5, v1')
    k('v_lshlrev_b32 v14, 3, v12')
    k('v_lshl_add_u32 v15, v13, 15, v14')
    k(f's_lshl_b32 s51, s{S_W}, 5')
    k('s_add_u32 s51, s51, s46')
    S_Q0 = 51
    k('s_lshl_b32 s52, s51, 3')
    k(f's_mul_i32 s49, s{S_H}, {5*16384}')
    k('s_add_u32 s52, s52, s49')
    k(f's_add_u32 s52, s52, {WS_QG}')
    k('s_add_u32 s53, s52, 16384')
    k(f's_add_u32 s54, s52, {4*16384}')
    PM, NM, ONE, QF, KV, OACC, SB0 = 24, 32, 36, 40, 48, 72, 88
    k('v_lshlrev_b32 v3, 2, v13')
    for i in range(16):
        a_, b_ = i // 4, i % 4
        k(f'v_add_u32 v4, {8*a_+b_}, v3')
        k(f'v_cmp_le_u32 s[{64+2*i}:{65+2*i}], v4, v12')
    k('v_mov_b32 v5, 0xffff')
    k('v_mov_b32 v11, 0xffff0000')
    for p in range(8):
        k(f'v_cndmask_b32 v3, 0, v5, s[{64+4*p}:{65+4*p}]')
        k(f'v_cndmask_b32 v4, 0, v11, s[{66+4*p}:{67+4*p}]')
        k(f'v_or_b32 v{PM+p}, v3, v4')
    k('v_cmp_eq_u32 s[96:97], 1, v13')
    k('v_cmp_gt_u32 s[98:99], 20, v12')
    k('v_cmp_eq_u32 s[100:101], 0, v13')
    k(f's_lshl_b32 s49, s{S_W}, 8')
    k(f's_add_u32 s49, s49, {LK}')
    k('v_lshl_add_u32 v16, v13, 13, v14')
    k('v_add_u32 v16, s49, v16')
    k('v_add_u32 v17, s49, v14')
    k(f's_and_b32 s55, s{S_H}, 1')
    S_PI = 55
    k('v_bfe_u32 v3, v12, 3, 1')
    k('v_bfe_u32 v4, v12, 2, 1')
    k('v_and_b32 v5, 3, v12')
    k('v_lshl_add_u32 v18, v3, 2, v5')
    k('v_lshl_add_u32 v18, v4, 3, v18')
    k('s_lshl_b32 s49, s55, 2')
    k('v_add_u32 v18, s49, v18')
    k('s_lshl_b32 s49, s55, 4')
    k('s_sub_u32 s49, 16, s49')
    k('v_add_u32 v19, s49, v5')
    k('v_cmp_gt_u32 vcc, 16, v12')
    k('v_cndmask_b32 v18, v19, v18, vcc')
    k('v_mul_u32_u24 v19, 320, v13')
    k('v_lshl_add_u32 v18, v18, 4, v19')
    k(f's_mul_i32 s49, s{S_W}, 1280')
    k(f's_add_u32 s49, s49, {LV}')
    k('v_add_u32 v18, s49, v18')
    k('v_mov_b32 v19, 0')
    k('v_mov_b32 v4, 0x3f803f80')
    k('v_cmp_eq_u32 vcc, 20, v12')
    k('v_cndmask_b32 v19, v19, v4, vcc')
    k('v_cmp_eq_u32 vcc, 24, v12')
    k('v_cndmask_b32 v19, v19, v4, vcc')
    for b in range(3):
        k(f'v_mov_b32 v{KV+8*b+6}, 0')
        k(f'v_mov_b32 v{KV+8*b+7}, 0')
    k(f'v_mov_b32 v{QF+6}, 0')
    k(f'v_mov_b32 v{QF+7}, 0')
    k(f'v_cndmask_b32 v{ONE}, v4, 0, s[96:97]')
    for i in range(1, 4):
        k(f'v_mov_b32 v{ONE+i}, 0')
        k(f'v_mov_b32 v{NM+i}, 0')
    k('v_and_b32 v3, 15, v1')
    k(f's_mul_i32 s49, s{S_H}, 20')
    k('s_mov_b64 s[46:47], 0')
    for base, isq in ((0, True), (640, False), (1280, False)):
        for e in (0, 19):
            k(f's_add_u32 s60, s49, {base+e}')
            k('s_lshr_b32 s60, s60, 7')
            k('v_cmp_eq_u32 vcc, s60, v3')
            if isq:
                k('s_and_b64 vcc, vcc, s[96:97]')
            k('s_or_b64 s[46:47], s[46:47], vcc')
    k(f's_cmp_eq_u32 s{S_I}, 0')
    k('s_cselect_b32 s46, 0, s46')
    k(f's_lshl_b32 s49, s{S_I}, 7')
    k(f's_lshl_b32 s60, s{S_X8}, 10')
    k('s_add_u32 s49, s49, s60')
    k(f's_add_u32 s49, s49, {WS_F2 - 128}')
    k('v_lshlrev_b32 v3, 2, v1')


def emit_p2(k, g3):
    LK, LV = 102400, 122880
    S_I, S_H, S_Q0, S_PI = 44, 45, 51, 55
    PM, NM, ONE, QF, KV, OACC, SB0 = 24, 32, 36, 40, 48, 72, 88
    wflag_poll(k, 49, 3, 4, 46, 1, True)
    k('s_barrier')
    stamp(k, 12)
    k('s_mov_b32 m0, s50')
    for n in range(5):
        if n:
            k('s_add_u32 m0, m0, s56')
        k(f'buffer_load_dwordx4 v{6+n}, {WSR}, s48 offen sc1 lds')
    k(f'buffer_load_dwordx2 {v(QF,2)}, v15, {WSR}, s52 offen sc1')
    k(f'buffer_load_dwordx2 {v(QF+2,2)}, v15, {WSR}, s53 offen sc1')
    qt = k(f'buffer_load_dwordx2 {v(QF+4,2)}, v14, {WSR}, s54 offen sc1')
    k.wait(qt)
    k(f'v_cndmask_b32 v{QF+4}, v{QF+4}, 0, s[96:97]')
    k(f'v_cndmask_b32 v{QF+5}, v{QF+5}, 0, s[96:97]')
    k('s_barrier')
    if OPT.get('prio', 0):
        k(f's_cmp_ge_u32 s{S_W}, 4')
        k.outline('s_cbranch_scc1', lambda: k('s_setprio 1'))
    stamp(k, 13)
    pf, hc = [], []
    for i in range(4):
        k(f'v_mov_b32 v{244+i}, -1')
    tile4(k, 60, 61, 56)
    k('s_mul_i32 s61, s61, 12')
    k('s_lshl_b32 s61, s61, 15')
    k('s_lshl_b32 s60, s60, 11')
    k('s_add_u32 s56, s61, s60')
    k(f's_add_u32 s56, s56, {WS_HC}')
    for n in range(3):
        k(f's_mul_i32 s60, s{S_W}, 3')
        k(f's_add_u32 s60, s60, {n}')
        k('s_and_b32 s61, s60, 1')
        k('s_lshl_b32 s61, s61, 10')
        k('s_lshr_b32 s60, s60, 1')
        k('s_lshl_b32 s60, s60, 15')
        k('s_add_u32 s60, s60, s61')
        k('s_add_u32 s60, s60, s56')
        k(f'buffer_store_dwordx4 {v(244,4)}, v2, {WSR}, s60 offen sc1')
    if OPT.get('wgu', 2) == 2:
        k(f's_cmp_lt_u32 s{S_W}, 4')
        k.outline('s_cbranch_scc1', lambda: pf_wgu(k, 238, 239))

    def slot(i):
        return SB0 + 16 * i
    krd = {}

    def kreads(j):
        b = j % 3
        krd[j] = [k(f'ds_read_b64 {v(KV+8*b,2)}, v16 offset:{j*256}'),
                  k(f'ds_read_b64 {v(KV+8*b+2,2)}, v16 offset:{4096+j*256}'),
                  k(f'ds_read_b64 {v(KV+8*b+4,2)}, v17 offset:{16384+j*256}')]
    kreads(0)
    kreads(1)
    for j in range(9):
        b = j % 3
        d = v(slot(j), 16)
        k.wait(*krd[j])
        k(f'v_mfma_f32_32x32x16_bf16 {d}, {v(KV+8*b,4)}, {v(QF,4)}, 0')
        if j + 2 < 9:
            kreads(j + 2)
        k(f'v_mfma_f32_32x32x16_bf16 {d}, {v(KV+8*b+4,4)}, {v(QF+4,4)}, {d}')
    stamp(k, 14)
    lab = k.newlabel('P2_FIX')
    k(f's_cmp_lg_u32 s{S_I}, 0')
    k(f's_cbranch_scc1 {lab}')
    for jj in range(8):
        k(f's_cmp_ge_u32 s{S_W}, {8-jj}')
        k(f's_cbranch_scc1 {lab}')
        for i in range(16):
            k(f'v_mov_b32 v{slot(jj)+i}, {f32(-1e30)}')
    k.label(lab)
    for i in range(16):
        k(f'v_mov_b32 v{KV+i}, v19')
    M0, M1 = 20, 21
    ops = []
    regs = [slot(jj) + i for jj in (1, 2, 3, 4, 5, 6, 7, 0) for i in range(16)]
    for i in range(16):
        ops.append(f'v_cndmask_b32 v{slot(0)+i}, v{slot(0)+i}, v{slot(8)+i}, s[{64+2*i}:{65+2*i}]')
    ops += [f'v_max3_f32 v{M0}, v{regs[0]}, v{regs[1]}, v{regs[2]}',
            f'v_max3_f32 v{M1}, v{regs[3]}, v{regs[4]}, v{regs[5]}']
    i, t = 6, 0
    while i < 128:
        m = M0 if t % 2 == 0 else M1
        ops.append(f'v_max3_f32 v{m}, v{m}, v{regs[i]}, v{regs[i+1]}')
        i += 2
        t += 1
    ops += [f'v_max_f32 v{M0}, v{M0}, v{M1}',
            f'v_mov_b32 v{M1}, v{M0}',
            f'v_permlane32_swap_b32 v{M0}, v{M1}',
            f'v_max_f32 v{M0}, v{M0}, v{M1}',
            f'v_sub_f32 v{M0}, 0, v{M0}',
            f'v_cvt_pk_bf16_f32 v{M1}, v{M0}, v{M0}',
            f'v_lshlrev_b32 v{M1}, 16, v{M1}',
            f'v_sub_f32 v{M1}, v{M0}, v{M1}',
            f'v_cvt_pk_bf16_f32 v{NM}, v{M0}, v{M1}',
            f'v_cndmask_b32 v{NM}, v{NM}, 0, s[96:97]']
    spread(k, ops, pf[:2])
    pf = pf[2:]
    stamp(k, 15)
    vrd = {}
    nbuf = [0]

    def vreads(jkey):
        toks, bufs = [], []
        k('s_mov_b64 exec, s[98:99]')
        for m in range(2):
            bi = nbuf[0] % 4
            nbuf[0] += 1
            bufs.append(bi)
            toks.append(k(f'ds_read_b128 {v(KV+4*bi,4)}, v18 offset:{jkey*1280+m*640}'))
        k('s_mov_b64 exec, -1')
        vrd[jkey] = (toks, bufs)
    first = [True]
    oacc = v(OACC, 16)

    def pv_ops(jkey, preg):
        o = []
        for m in range(2):
            def f(m=m):
                toks, bufs = vrd[jkey]
                k.wait(toks[m])
                c = '0' if first[0] else oacc
                first[0] = False
                k(f'v_mfma_f32_32x32x16_bf16 {oacc}, {v(KV+4*bufs[m],4)}, {v(preg+4*m,4)}, {c}')
            o.append(f)
        return o

    def sub_op(jb):
        d = v(slot(jb), 16)
        return f'v_mfma_f32_32x32x16_bf16 {d}, {v(ONE,4)}, {v(NM,4)}, {d}'
    order = [1, 2, 3, 4, 5, 6, 7, 0]
    k(sub_op(order[0]))
    k(sub_op(order[1]))
    vreads(order[0])
    for n, jb in enumerate(order):
        base = slot(jb)
        val = [f'v_exp_f32 v{base+i}, v{base+i}' for i in range(16)]
        val += [f'v_cvt_pk_bf16_f32 v{base+p}, v{base+2*p}, v{base+2*p+1}' for p in range(8)]
        if jb == 0:
            val += [f'v_and_b32 v{base+8+p}, v{PM+p}, v{base+p}' for p in range(8)]
            val += [f'v_bfi_b32 v{base+p}, v{PM+p}, 0, v{base+p}' for p in range(8)]
        side = []
        if n >= 1:
            side += pv_ops(order[n - 1], slot(order[n - 1]))
        nxt = order[n + 1] if n + 1 < 8 else 8
        side.append(lambda nxt=nxt: vreads(nxt))
        if n + 2 < 8:
            side.append(sub_op(order[n + 2]))
        if pf:
            side.append(pf.pop(0))
        if hc and (n % 2 == 1 or OPT.get('wgulate')):
            side.insert(1, hc.pop(0))
        if OPT.get('wgulate') and pf:
            side.append(pf.pop(0))
        spread(k, val, side)
    tail = pv_ops(0, slot(0)) + pv_ops(8, slot(0) + 8)
    addr = [f's_lshr_b32 s49, s{S_H}, 1', 's_mul_i32 s49, s49, 5', f's_mul_i32 s52, s{S_PI}, 3',
            's_add_u32 s52, s52, s49', 's_lshl_b32 s52, s52, 15', f's_add_u32 s52, s52, {WS_OC}',
            f's_lshl_b32 s53, s{S_Q0}, 4', 's_add_u32 s52, s52, s53', 's_add_u32 s54, s49, 2',
            's_lshl_b32 s54, s54, 15', f's_add_u32 s54, s54, {WS_OC}', 's_add_u32 s54, s54, s53',
            f's_lshl_b32 s49, s{S_PI}, 3', 's_add_u32 s54, s54, s49', 'v_lshlrev_b32 v22, 4, v12',
            'v_lshl_add_u32 v23, v13, 15, v22']
    ftok = flags_issue(k, WS_F2, 240, 237)
    spread(k, addr, tail)
    stamp(k, 18)
    T = OACC
    k(f'v_cndmask_b32 v{T+13}, v{T+12}, v{T+8}, s[96:97]')
    k(f'v_rcp_f32 v{T+14}, v{T+13}')
    for p in range(6):
        k(f'v_pk_mul_f32 {v(T+2*p,2)}, {v(T+2*p,2)}, {v(T+14,2)} op_sel_hi:[1,0]')
    for p in range(6):
        k(f'v_cvt_pk_bf16_f32 v{104+p}, v{T+2*p}, v{T+2*p+1}')
    k(f'buffer_store_dwordx4 {v(104,4)}, v23, {WSR}, s52 offen sc1')
    k('s_mov_b64 exec, s[100:101]')
    own = k(f'buffer_store_dwordx2 {v(108,2)}, v22, {WSR}, s54 offen sc1')
    k('s_mov_b64 exec, -1')
    k.wait_all(vm=False)
    k('s_setprio 0')
    flags_check(k, WS_F2, 240, 237, ftok)
    return own


class P4:
    BS = [102400, 126976, 0, 24576, 49152, 73728]

    def __init__(self, k):
        self.k = k
        self.stok = {}
        self.rtok = {}
        self.VB = 2

    def setup_dma(self, t0):
        k = self.k
        VB = self.VB
        tile4(k, 61, 60, 68)
        k('s_mul_i32 s76, s60, %d' % OPT.get('rot4', 3))
        k('s_add_u32 s76, s76, s61')
        k('s_mul_i32 s77, s76, 6554')
        k('s_lshr_b32 s77, s77, 16')
        k('s_mul_i32 s77, s77, 10')
        k('s_sub_u32 s76, s76, s77')
        k(f's_cmp_lt_u32 s{S_W4}, 2')
        k(f's_cselect_b32 s64, s{S_WG}, s{S_WU}')
        k(f's_cselect_b32 s65, s{S_WG+1}, s{S_WU+1}')
        k('s_mov_b32 s66, 1966080')
        k('s_mov_b32 s67, 0x00020000')
        k(f's_and_b32 s61, s{S_W4}, 1')
        k(f's_mul_i32 s61, s61, {32*3072}')
        k('s_mul_i32 s60, s60, 192')
        k('s_add_u32 s60, s60, s61')
        for n in range(3):
            k(f'v_add_u32 v{t0}, {n*64}, v1')
            k(f'v_mul_u32_u24 v{t0+1}, 5462, v{t0}')
            k(f'v_lshrrev_b32 v{t0+1}, 16, v{t0+1}')
            k(f'v_mul_u32_u24 v{t0+2}, 12, v{t0+1}')
            k(f'v_sub_u32 v{t0+2}, v{t0}, v{t0+2}')
            k(f'v_mul_u32_u24 v{t0+1}, 3072, v{t0+1}')
            k(f'v_lshl_add_u32 v{VB+n}, v{t0+2}, 4, v{t0+1}')
            k(f'v_add_u32 v{VB+n}, s60, v{VB+n}')
            if n:
                k(f'v_subrev_u32 v{VB+n}, {n*1024}, v{VB+n}')
        k(f's_mul_i32 s68, s{S_W4}, 6144')

    def sig(self, c, st, sreg, stmp):
        c(f's_add_u32 s{sreg}, s76, {st}')
        c(f's_sub_u32 s{stmp}, s{sreg}, 10')
        c(f's_cmp_ge_u32 s{sreg}, 10')
        c(f's_cselect_b32 s{sreg}, s{stmp}, s{sreg}')

    def dma_stage(self, st):
        k = self.k
        base = self.BS[st % 6]
        self.sig(k, st, 69, 77)
        k(f's_mul_i32 s69, s69, {64*3072}')
        for per in range(2):
            k(f's_add_u32 m0, s68, {base+per*3072}')
            if per:
                k(f's_add_u32 s69, s69, {16*3072}')
            for n in range(3):
                self.stok[st] = k(f'buffer_load_dwordx4 v{self.VB+n}, s[64:67], s69 offen offset:{n*1024} lds')

    BR = 124

    def breg_load(self, st):
        k = self.k
        r0 = self.BR + 24 * (st - 6)
        self.sig(k, st, 69, 77)
        k(f's_mul_i32 s69, s69, {64*3072}')
        for per in range(2):
            if per:
                k(f's_add_u32 s69, s69, {16*3072}')
            for n in range(3):
                self.rtok[st] = k(f'buffer_load_dwordx4 {v(r0+12*per+4*n,4)}, v{self.VB+n}, s[64:67], s69 offen offset:{n*1024}')

    def breg_write(self, st):
        k = self.k
        r0 = self.BR + 24 * (st - 6)
        base = self.BS[st % 6]
        reg, off = (47, base - 102400) if base >= 102400 else (46, base)
        assert off + 6144 < 65536
        k.wait(self.rtok[st])
        for i in range(6):
            self.stok[st] = k(f'ds_write_b128 v{reg}, {v(r0+4*i,4)} offset:{off+i*1024}')

    def pre_colsum(self):
        k = self.k
        CA = 60
        k('v_lshlrev_b32 v46, 4, v1')
        k('v_add_u32 v46, s68, v46')
        k('v_add_u32 v47, 102400, v46')
        k.wait(self.stok[0])
        tk = [k(f'ds_read_b128 {v(84+4*i,4)}, v47 offset:{i*1024}') for i in range(6)]
        for n in range(3):
            k.wait(tk[n], tk[n + 3])
            for p in range(4):
                k(f'v_lshlrev_b32 v{CA+8*n+2*p}, 16, v{84+4*n+p}')
                k(f'v_and_b32 v{CA+8*n+2*p+1}, 0xffff0000, v{84+4*n+p}')
                k(f'v_lshlrev_b32 v{28+2*(p%2)}, 16, v{96+4*n+p}')
                k(f'v_and_b32 v{29+2*(p%2)}, 0xffff0000, v{96+4*n+p}')
                k(f'v_pk_add_f32 {v(CA+8*n+2*p,2)}, {v(CA+8*n+2*p,2)}, {v(28+2*(p%2),2)}')

    def pre_colsum_write(self):
        k = self.k
        CA = 60
        k('v_lshlrev_b32 v16, 5, v1')
        k('v_add_u32 v16, s68, v16')
        k('v_add_u32 v16, 73728, v16')
        for n in range(3):
            k(f'ds_write_b128 v16, {v(CA+8*n,4)} offset:{n*2048}')
            k(f'ds_write_b128 v16, {v(CA+8*n+4,4)} offset:{n*2048+16}')
        k.wait_all(vm=False)

    def loader_setup(self, g5):
        k = self.k
        tile4(k, 44, 45, 46)
        g5.dma_setup(40)
        k('v_cmp_le_u32 vcc, 96, v0')
        k(f'v_mov_b32 v16, {12288-384}')
        k('v_cndmask_b32 v17, 0, v16, vcc')
        k('v_lshl_add_u32 v17, v0, 2, v17')
        k('v_add_u32 v17, 73728, v17')
        k(f'v_mov_b32 v16, {6144-384}')
        k('v_cndmask_b32 v18, 0, v16, vcc')
        k('v_lshl_add_u32 v18, v0, 2, v18')
        k('v_cmp_gt_u32 vcc, 192, v0')
        k('v_cndmask_b32 v19, 0, v18, vcc')
        k(f'v_mov_b32 v16, {OOB}')
        k('v_cndmask_b32 v18, v16, v18, vcc')
        k('s_mul_i32 s51, s45, 384')
        k(f's_add_u32 s51, s51, {WS_PCS}')
        k('s_mul_i32 s52, s44, 12288')
        k('s_add_u32 s52, s52, s51')
        k(f's_mov_b32 s47, {OOB}')
        k('s_cmp_lt_u32 s44, 10')
        k('s_cselect_b32 s52, s52, s47')

    def colsum_reduce(self):
        k = self.k
        rr = list(range(84, 116))
        for half in range(4):
            tk = []
            for r in range(8):
                x = (half % 2) * 8 + r
                tk.append(k(f'ds_read_b32 v{rr[8*half+r]}, v17 offset:{x*384+(half//2)*6144}'))
            k.wait(*tk)
        for stp in (16, 8, 4, 2, 1):
            for i in range(stp):
                k(f'v_add_f32 v{rr[i]}, v{rr[i]}, v{rr[i+stp]}')
        k(f'buffer_store_dword v{rr[0]}, v18, {WSR}, s52 offen sc1')

    def loader(self, g5):
        k = self.k

        def gather(c):
            t = None
            for r in range(10):
                c(f's_add_u32 s58, s51, {r*12288}')
                t = c(f'buffer_load_dword v{24+r}, v19, {WSR}, s58 offen sc1')
            return t
        T = {}
        g5regs = {2 + i: 60 + 20 * i for i in range(9)}
        k('v_lshlrev_b32 v12, 4, v1')
        k(f's_mul_i32 s46, s{S_W4}, 5120')
        k('v_add_u32 v21, s46, v12')
        k('v_add_u32 v22, 61440, v21')
        k('v_add_u32 v23, 122880, v21')
        for st in range(7):
            k.wait(self.stok[st])
            if st == 6:
                k.wait(self.stok[9])
            k.wait_all(vm=False)
            k('s_barrier')
            if st == 0:
                stamp(k, 32)
                self.colsum_reduce()
            if st == 1:
                self.dma_stage(5)
            if 1 <= st <= 4:
                self.dma_stage(st + 5)
            if st == 4:
                T['g'] = gather(k)
                pf_wd(k, 36, 37)
            if st == 5:
                k.wait(T['g'])
                check_group(k, range(24, 34), 11, gather, slp=8)
                for r in range(1, 10):
                    k(f'v_add_f32 v24, v24, v{24+r}')
                k('v_lshlrev_b32 v16, 2, v0')
                k(f'v_add_u32 v16, {XCH}, v16')
                k('ds_write_b32 v16, v24')
        stamp(k, 36)
        runall(k, g5.dma_step(0))
        runall(k, g5.dma_step(1))
        NR1 = OPT.get('nr1', 6)
        for s5 in range(2, 2 + NR1):
            g5.breg_load(s5, g5regs[s5])
        stamp(k, 38)
        cnt_wait(k, 38, 39, 1, 4, bound=200000)
        for s5 in range(2, 7):
            g5.breg_write(s5, 21)
        for s5 in range(2 + NR1, 11):
            g5.breg_load(s5, g5regs[s5])
        stamp(k, 39)

    def compute(self, own_tok):
        k = self.k
        tile4(k, 44, 45, 46)
        S_MT, S_FT, S_TOK = 44, 45, 46
        k('s_lshl_b32 s46, s44, 7')
        k(f's_lshl_b32 s47, s{S_W4}, 5')
        k('s_add_u32 s46, s46, s47')
        k('v_and_b32 v13, 31, v1')
        k('v_lshrrev_b32 v14, 5, v1')
        k('v_lshlrev_b32 v5, 4, v13')
        k('v_lshl_add_u32 v5, v14, 15, v5')
        k('v_bfe_u32 v15, v1, 2, 2')
        k('v_lshl_add_u32 v15, v14, 3, v15')
        k('v_mul_u32_u24 v15, 192, v15')
        k('v_bfe_u32 v16, v1, 4, 1')
        k('v_lshl_add_u32 v15, v16, 5, v15')
        k('v_and_b32 v16, 1, v1')
        k('v_lshl_add_u32 v15, v16, 4, v15')
        k('v_bfe_u32 v16, v1, 1, 1')
        k('v_lshl_add_u32 v6, v16, 3, v15')
        k('v_add_u32 v7, 49152, v6')
        k('v_add_u32 v8, 102400, v6')
        rbase = {0: (6, 0), 24576: (6, 24576), 49152: (7, 0), 73728: (7, 24576), 102400: (8, 0), 126976: (8, 24576)}
        k('s_mul_i32 s76, s45, %d' % OPT.get('rot4', 3))
        k('s_add_u32 s76, s76, s44')
        k('s_mul_i32 s77, s76, 6554')
        k('s_lshr_b32 s77, s77, 16')
        k('s_mul_i32 s77, s77, 10')
        k('s_sub_u32 s76, s76, s77')
        k('s_lshl_b32 s50, s46, 4')
        k(f's_add_u32 s50, s50, {WS_H1}')
        AFR = 180
        atok = {}

        def abase(c, st, sreg, stmp):
            self.sig(c, st, sreg, stmp)
            c(f's_lshl_b32 s{sreg}, s{sreg}, 18')
            c(f's_add_u32 s{sreg}, s{sreg}, s50')

        def aone(c, st, ks, sreg):
            if ks:
                c(f's_add_u32 s{sreg}, s{sreg}, 65536')
            return c(f'buffer_load_dwordx4 {v(AFR+16*(st%4)+4*ks,4)}, v5, {WSR}, s{sreg} offen sc1')

        def astage(c, st, sreg, stmp):
            abase(c, st, sreg, stmp)
            t = None
            for ks in range(4):
                t = aone(c, st, ks, sreg)
            return t
        k('v_lshlrev_b32 v9, 3, v13')
        k('v_lshl_add_u32 v9, v14, 16, v9')
        k(f's_lshl_b32 s51, s{S_TOK}, 3')
        k(f's_add_u32 s51, s51, {WS_HS}')
        HSR = 20

        def hsload(c):
            t = None
            for n in range(4):
                c(f's_add_u32 s58, s51, {n*16384}')
                t = c(f'buffer_load_dwordx2 {v(HSR+2*n,2)}, v9, {WSR}, s58 offen sc1')
            return t
        k('v_lshlrev_b32 v10, 5, v14')
        k(f'v_add_u32 v10, {XCH}, v10')
        ACC, WF = 36, 132

        def csload(p, base):
            t = None
            for mtx in range(2):
                for q in range(4):
                    off = mtx * 384 + p * 128 + (q // 2) * 64 + (q % 2) * 16
                    t = k(f'ds_read_b128 {v(base+16*mtx+4*q,4)}, v10 offset:{off}')
            return t
        rt = {}

        def reads(kk):
            st, ks = kk // 4, kk % 4
            reg, so = rbase[self.BS[st % 6]]
            b = kk % 2
            ops = [[] for _ in range(6)]
            for j in range(6):
                for hf in range(2):
                    off = so + (j // 3) * 12288 + ks * 3072 + hf * 768 + (j % 3) * 64
                    ops[j].append(lambda j=j, hf=hf, off=off: rt.__setitem__((kk, j), k(
                        f'ds_read_b64_tr_b16 {v(WF+24*b+4*j+2*hf,2)}, v{reg} offset:{off}')))
            return ops
        T = {}

        def stats():
            k.wait(T['hs'])
            check_group(k, range(HSR, HSR + 8), 11, hsload)
            for n in range(1, 4):
                k(f'v_pk_add_f32 {v(HSR,2)}, {v(HSR,2)}, {v(HSR+2*n,2)}')
            VSUM, VSQ = HSR, HSR + 1
            xsum(k, VSUM, 24, 25)
            xsum(k, VSQ, 24, 25)
            k(f'v_mul_f32 v{VSUM}, {f32(1.0/640)}, v{VSUM}')
            k(f'v_mul_f32 v{VSQ}, {f32(1.0/640)}, v{VSQ}')
            k(f'v_fma_f32 v{VSQ}, -v{VSUM}, v{VSUM}, v{VSQ}')
            k(f'v_max_f32 v{VSQ}, 0, v{VSQ}')
            rbf(k, 24, VSUM)
            k('v_sub_f32 v26, 0, v24')
            rbf(k, 25, VSQ)
            k(f'v_add_f32 v25, {f32(1e-5)}, v25')
            rbf(k, 25, 25)
            k('v_sqrt_f32 v25, v25')
            rbf(k, 25, 25)
            k('v_rcp_f32 v28, v25')
            k('v_mul_f32 v30, v25, v25')
        stamp(k, 30)
        k.wait(own_tok)
        stamp(k, 31)
        for st in range(3):
            atok[st] = astage(k, st, 49, 48)
        k('s_barrier')
        for l_ in reads(0):
            runall(k, l_)
        for kk in range(40):
            b = kk % 2
            st, ks = kk // 4, kk % 4
            R0 = AFR + 16 * (st % 4)
            if kk % 8 == 4:
                stamp(k, 33 + kk // 8)
            if ks == 0:
                k.wait(atok[st])
                check_group(k, range(R0, R0 + 16), 11, lambda c, st=st: astage(c, st, 58, 59))
                if kk == 0:
                    stamp(k, 32)
            fill, rds = [], []
            if st + 3 < 10:
                def al(st=st, ks=ks):
                    if ks == 0:
                        abase(k, st + 3, 49, 48)
                    atok[st + 3] = aone(k, st + 3, ks, 49)
                fill.append(al)
            if kk + 1 < 40:
                if (kk + 1) % 4 == 0 and kk < 24:
                    k.wait_all(vm=False)
                    k('s_barrier')
                rds = reads(kk + 1)
            else:
                k.wait_all(vm=False)
                k('v_mov_b32 v2, 1')
                k(f'v_mov_b32 v3, {XCNT+4}')
                k('s_mov_b64 exec, 1')
                k('ds_add_u32 v3, v2')
                k('s_mov_b64 exec, -1')
            if kk == 28:
                fill.append(lambda: T.__setitem__('hs', hsload(k)))
            if kk == 39:
                fill.append(lambda: T.__setitem__('f3', flags_issue(k, WS_F3, 16, 12)))
            if kk == 39:
                fill.append(lambda: T.__setitem__(('cs', 0), csload(0, 212)))
            if kk == 37:
                fill.append(stats)
            mf = []
            for j in range(6):
                acc = v(ACC + 16 * j, 16)
                c = '0' if kk == 0 else acc
                mf.append((lambda j=j: [rt[kk, j]],
                           f'v_mfma_f32_32x32x16_bf16 {acc}, {v(WF+24*b+4*j,4)}, {v(R0+4*ks,4)}, {c}'))
            roll_step(k, mf, rds, fill)
        stamp(k, 38)
        T['cs', 1] = csload(1, 132)
        c0 = -2.0 * math.sqrt(2.0 / math.pi) * math.log2(math.e)
        c1 = c0 * 0.044715
        k(f'v_mov_b32 v32, {f32(c0)}')
        k(f'v_mov_b32 v34, {f32(c1)}')
        k(f's_mul_i32 s54, s{S_FT}, {12*32768}')
        k(f's_lshl_b32 s55, s{S_TOK}, 4')
        k('s_add_u32 s54, s54, s55')
        k(f's_add_u32 s54, s54, {WS_HC}')
        T_, O = 164, 180
        csb = {0: 212, 1: 132, 2: 212}
        for p in range(3):
            G, U, CS = ACC + 16 * p, ACC + 16 * (3 + p), csb[p]
            k.wait(T['cs', p])
            for q in range(8):
                g2, u2 = v(G + 2 * q, 2), v(U + 2 * q, 2)
                k(f'v_pk_fma_f32 {g2}, {v(CS+2*q,2)}, {v(26,2)}, {g2} op_sel_hi:[1,0,1]')
                k(f'v_pk_fma_f32 {u2}, {v(CS+16+2*q,2)}, {v(26,2)}, {u2} op_sel_hi:[1,0,1]')
            if p == 0:
                T['cs', 2] = csload(2, 212)
            for q in range(8):
                g2, u2, t2 = v(G + 2 * q, 2), v(U + 2 * q, 2), v(T_ + 2 * q, 2)
                k(f'v_pk_mul_f32 {u2}, {u2}, {g2}')
                k(f'v_pk_mul_f32 {g2}, {g2}, {v(28,2)} op_sel_hi:[1,0]')
                k(f'v_pk_mul_f32 {t2}, {g2}, {g2}')
                k(f'v_pk_fma_f32 {t2}, {t2}, {v(34,2)}, {v(32,2)} op_sel_hi:[1,0,0]')
                k(f'v_pk_mul_f32 {t2}, {t2}, {g2}')
            for i in range(16):
                k(f'v_exp_f32 v{T_+i}, v{T_+i}')
            for q in range(8):
                t2 = v(T_ + 2 * q, 2)
                k(f'v_pk_fma_f32 {t2}, {t2}, {v(30,2)}, {v(30,2)} op_sel_hi:[1,0,0]')
            for i in range(16):
                k(f'v_rcp_f32 v{T_+i}, v{T_+i}')
            for q in range(8):
                k(f'v_pk_mul_f32 {v(U+2*q,2)}, {v(U+2*q,2)}, {v(T_+2*q,2)}')
            for q in range(8):
                k(f'v_cvt_pk_bf16_f32 v{O+8*(p%2)+q}, v{U+2*q}, v{U+2*q+1}')
            for hf2 in range(2):
                k(f's_add_u32 s55, s54, {(4*p+2*hf2)*32768}')
                self.own = k(f'buffer_store_dwordx4 {v(O+8*(p%2)+4*hf2,4)}, v5, {WSR}, s55 offen sc1')
        flags_check(k, WS_F3, 16, 12, T['f3'])
        stamp(k, 39)


def colsum_strip(k):
    lab = k.newlabel('CS_SKIP')
    k(f's_cmp_lg_u32 s{S_W4}, 0')
    k(f's_cbranch_scc1 {lab}')
    k(f's_cmp_ge_u32 s{S_I32}, 12')
    k(f's_cbranch_scc1 {lab}')
    sn = k.snap()
    k(f's_and_b32 s60, s{S_X8}, 1')
    k('s_cmp_eq_u32 s60, 0')
    k(f's_cselect_b32 s72, s{S_WG}, s{S_WU}')
    k(f's_cselect_b32 s73, s{S_WG+1}, s{S_WU+1}')
    k('s_mov_b32 s74, 1966080')
    k('s_mov_b32 s75, 0x00020000')
    k(f's_lshr_b32 s60, s{S_X8}, 1')
    k('s_mul_i32 s60, s60, 768')
    k(f's_lshl_b32 s61, s{S_I32}, 6')
    k('s_add_u32 s60, s60, s61')
    k('v_lshrrev_b32 v40, 2, v1')
    k('v_mul_u32_u24 v40, 3072, v40')
    k('v_and_b32 v41, 3, v1')
    k('v_lshl_add_u32 v40, v41, 4, v40')
    k('v_add_u32 v40, s60, v40')
    tk = []
    for n in range(40):
        k(f's_mov_b32 s61, {n*16*3072}')
        tk.append(k(f'buffer_load_dwordx4 {v(60+4*n,4)}, v40, s[72:75], s61 offen'))
    for i in range(8):
        k(f'v_mov_b32 v{44+i}, 0')
    for n in range(40):
        k.wait(tk[n])
        for p in range(4):
            k(f'v_lshlrev_b32 v{52+2*(p%2)}, 16, v{60+4*n+p}')
            k(f'v_and_b32 v{53+2*(p%2)}, 0xffff0000, v{60+4*n+p}')
            k(f'v_pk_add_f32 {v(44+2*p,2)}, {v(44+2*p,2)}, {v(52+2*(p%2),2)}')
    for i in range(8):
        xsum(k, 44 + i, 56, 57, 32)
        xsum(k, 44 + i, 56, 57, 16)
        k(f'v_add_f32_dpp v{44+i}, v{44+i}, v{44+i} row_ror:8 row_mask:0xf bank_mask:0xf')
        k(f'v_add_f32_dpp v{44+i}, v{44+i}, v{44+i} row_ror:4 row_mask:0xf bank_mask:0xf')
    strip_id(k, 60)
    k('s_lshl_b32 s60, s60, 2')
    k(f's_add_u32 s60, s60, {WS_CS}')
    k('v_lshlrev_b32 v41, 5, v41')
    k('s_mov_b64 exec, 0xf')
    k(f'buffer_store_dwordx4 {v(44,4)}, v41, {WSR}, s60 offen sc1')
    k(f'buffer_store_dwordx4 {v(48,4)}, v41, {WSR}, s60 offen offset:16 sc1')
    k('s_mov_b64 exec, -1')
    k.wait_all()
    k.restore(sn)
    k.label(lab)


def build():
    k = K()
    name = NAME + '_kernel'
    k.realend = 'K_END'
    k.raw('.p2align 8')
    k.raw(f'.globl {name}')
    k.raw(f'.type {name},@function')
    k.raw(f'{name}:')
    prologue(k)
    if STAMPS:
        k('v_writelane_b32 v255, s84, 60')
        k('v_writelane_b32 v255, s36, 58')
        k('v_writelane_b32 v255, s37, 59')
    if OPT.get('empty'):
        k('s_branch K_END')
    stamp(k, 0)
    g3 = G35(k, 3, [0, 20480, 40960, 61440, 81920], 232, 0)
    g5 = G35(k, 5, [49152, 69632, 90112, 110592, 131072, 0, 20480], 54, 70)
    p4 = P4(k)
    A3 = [102400, 118784, 135168]
    A5 = [61440, 77824, 143360]
    lab_l1, lab_p2, lab_l3, lab_fin = (k.newlabel(x) for x in ('L1', 'P2', 'L3', 'FIN'))
    k(f's_cmp_ge_u32 s{S_W}, 4')
    k(f's_cbranch_scc1 {lab_l1}')
    sn = k.snap()
    p1_compute(k)
    join(k)
    if OPT.get('wgu', 2) == 1:
        pf_wgu(k, 238, 239, 128)
    p2_setup(k)
    k(f's_branch {lab_p2}')
    k.label(lab_l1)
    k.restore(sn)
    p1_loader(k, g3)
    k.label(lab_p2)
    join(k)
    for st in range(5):
        g3.btok[st] = ('vm', 0)
    own = emit_p2(k, g3)
    k(f's_cmp_ge_u32 s{S_W}, 4')
    k(f's_cbranch_scc1 {lab_l3}')
    sn = k.snap()
    g3.compute(own, st0=20)
    p4.compute(g3.own)
    if not OPT.get('nop5'):
        g5.compute(p4.own, st0=40)
    k(f's_branch {lab_fin}')
    k.label(lab_l3)
    k.restore(sn)
    k('s_barrier')
    if OPT.get('wguL', 0):
        pf_wgu(k, 36, 37)
    p4.setup_dma(56)
    p4.dma_stage(0)
    p4.dma_stage(1)
    p4.loader_setup(g5)
    p4.pre_colsum()
    stamp(k, 23)
    k('s_barrier')
    k('s_barrier')
    k('s_barrier')
    stamp(k, 24)
    p4.dma_stage(2)
    p4.dma_stage(3)
    p4.dma_stage(4)
    p4.pre_colsum_write()
    stamp(k, 30)
    p4.loader(g5)
    if not OPT.get('nop5'):
        g5.loader(7, st0=40)
        k('s_barrier')
    k.label(lab_fin)
    join(k)
    stamp(k, 50)
    if STAMPS:
        k.wait_all()
        stamp(k, 51)
    stamp_flush(k)
    k.label(k.realend)
    k('s_endpgm')
    c = K()
    for f in k.cold:
        f(c)
    desc = f'''.section .rodata,"a"
.p2align 6
.amdhsa_kernel {name}
  .amdhsa_next_free_vgpr 256
  .amdhsa_next_free_sgpr 102
  .amdhsa_accum_offset 256
  .amdhsa_group_segment_fixed_size 0
  .amdhsa_kernarg_size 80
  .amdhsa_user_sgpr_count 2
  .amdhsa_user_sgpr_kernarg_segment_ptr 1
  .amdhsa_system_sgpr_workgroup_id_x 1
.end_amdhsa_kernel
'''
    return k.render() + c.render() + 'CODE_END:\n' + desc


def main():
    global STAMPS
    STAMPS = 'stamps' in sys.argv
    for a_ in sys.argv[2:]:
        if '=' in a_:
            kk, vv = a_.split('=')
            OPT[kk] = int(vv)
    head = open('cdna_kernels/%s.s.ref' % NAME).read().split('\n')
    hdr = [l for l in head if l.startswith(';') and '@launch' not in l and 'Override launch' not in l and 'grid=ceil' not in l]
    out = '\n'.join(hdr) + '\n'
    out += '; @launch grid=(256,1,1) block=(512,1,1) lds=163840\n'
    out += '.amdgcn_target "amdgcn-amd-amdhsa--gfx950"\n.text\n'
    out += build()
    path = sys.argv[1] if len(sys.argv) > 1 else 'cdna_kernels/%s.s' % NAME
    open(path, 'w').write(out)
    print('wrote', path, len(out), 'bytes')


if __name__ == '__main__':
    main()
```

```python
import math
import struct
import sys
from asmlib import K, v, a, s

NAME = 'sequential_preLN__sliding_block__glu_gated_geglu__prompt'

WS_QG = 0x0000000
WS_KG = 0x0280000
WS_VF = 0x0500000
WS_OC = 0x0780000
WS_H1 = 0x0A00000
WS_HC = 0x0C80000
WS_CS = 0x1280000
WS_F2 = 0x1288000
WS_F3 = 0x128A000
WS_F0 = 0x128C000
WS_PC = 0x1290000
WS_PS = 0x12A8000
WS_HS = 0x12D0000
WS_PCS = 0x1340000
WS_ST = 0x1300000
WS_SIZE = 0x1400000
OOB = 0x40000000

S_X, S_WQKV, S_WO, S_WG, S_WU, S_WD, S_OUT, S_WS, S_DBG = 4, 8, 12, 16, 20, 24, 28, 32, 36
S_NONCE = 3
S_W, S_X8, S_I32, S_W4 = 40, 41, 42, 43
S_BUD = 57
WSR = f's[{S_WS}:{S_WS+3}]'
OPT = {}
STAMPS = False
XCH = 159744
XNONCE = XCH + 3072
XCNT = XCH + 3080


def f32(x):
    return '0x%08x' % struct.unpack('<I', struct.pack('<f', x))[0]


def stamp(k, i):
    if not STAMPS:
        return
    k('s_memtime s[62:63]')
    k.wait_all(vm=False)
    k(f'v_writelane_b32 v255, s62, {i}')


def stamp_flush(k):
    if not STAMPS:
        return
    lab = k.newlabel('ST')
    k('s_memrealtime s[62:63]')
    k.wait_all()
    k('v_writelane_b32 v255, s62, 63')
    k(f'v_writelane_b32 v255, s{S_BUD}, 62')
    k(f's_cmp_lg_u32 s{S_W4}, 0')
    k(f's_cbranch_scc1 {lab}')
    k('v_lshlrev_b32 v254, 2, v1')
    k('s_lshl_b32 s62, s2, 9')
    k(f's_lshl_b32 s63, s{S_W}, 6')
    k('s_add_u32 s62, s62, s63')
    k(f's_add_u32 s62, s62, {WS_ST}')
    k(f'buffer_store_dword v255, v254, {WSR}, s62 offen')
    k.label(lab)


def run(k, f):
    return f() if callable(f) else k(f)


def runall(k, ops):
    for f in ops:
        run(k, f)


def roll_step(k, mf, rds, fill):
    n, nf, fi = len(mf), len(fill), 0
    for i, (wt, m) in enumerate(mf):
        k.wait(*wt())
        k(m)
        for f in (rds[i] if i < len(rds) else []):
            run(k, f)
        tgt = (nf * (i + 1) + n - 1) // n
        while fi < min(tgt, nf):
            run(k, fill[fi])
            fi += 1


def spread(k, main, side):
    n, nf = len(main), len(side)
    pos = {}
    for j in range(nf):
        pos.setdefault(int(j * n / max(nf, 1)), []).append(side[j])
    for i, m in enumerate(main):
        for f in pos.get(i, []):
            run(k, f)
        run(k, m)


def rbf(k, d, src):
    k(f'v_cvt_pk_bf16_f32 {v(d)}, {v(src)}, {v(src)}')
    k(f'v_lshlrev_b32 {v(d)}, 16, {v(d)}')


def xsum(k, r, t1, t2, which=32):
    k(f'v_mov_b32 {v(t1)}, {v(r)}')
    k(f'v_mov_b32 {v(t2)}, {v(r)}')
    k(f'v_permlane{which}_swap_b32 {v(t1)}, {v(t2)}')
    k(f'v_add_f32 {v(r)}, {v(t1)}, {v(t2)}')


def maxchain_ops(regs, t):
    regs = list(regs)
    ops = [f'v_max3_u32 v{t}, v{regs[0]}, v{regs[1]}, v{regs[2]}']
    i = 3
    while i < len(regs):
        if i + 1 < len(regs):
            ops.append(f'v_max3_u32 v{t}, v{t}, v{regs[i]}, v{regs[i+1]}')
            i += 2
        else:
            ops.append(f'v_max_u32 v{t}, v{t}, v{regs[i]}')
            i += 1
    return ops


def check_group(k, regs, t, reissue, slp=2):
    for o in maxchain_ops(regs, t):
        k(o)
    slow, back, loop = k.newlabel('SLOW'), k.newlabel('BACK'), k.newlabel('RETRY')
    k(f'v_cmp_eq_u32 vcc, -1, v{t}')
    k(f's_cbranch_vccnz {slow} ;nodrain')
    k.label(back)

    def cold(c):
        c.label(slow)
        c('s_nop 15')
        c.label(loop)
        c(f's_cmp_eq_u32 s{S_BUD}, 0')
        c(f's_cbranch_scc1 {back}')
        c(f's_sub_u32 s{S_BUD}, s{S_BUD}, 1')
        c(f's_sleep {slp}')
        reissue(c)
        c('s_waitcnt vmcnt(0)')
        for o in maxchain_ops(regs, t):
            c(o)
        c(f'v_cmp_eq_u32 vcc, -1, v{t}')
        c(f's_cbranch_vccnz {loop}')
        c(f's_branch {back}')
    k.cold.append(cold)


def nonce_issue(k, vr):
    k(f'v_mov_b32 v{vr+1}, 0')
    return k(f'buffer_load_dword v{vr}, v{vr+1}, s[{S_DBG}:{S_DBG+3}], 0 offen sc1')


def nonce_check(k, vr, tok):
    k.wait(tok)
    slow, back = k.newlabel('NSLOW'), k.newlabel('NBACK')
    k(f'v_readfirstlane_b32 s{S_NONCE}, v{vr}')
    k(f's_cmp_eq_u32 s{S_NONCE}, 0')
    k(f's_cbranch_scc1 {slow} ;nodrain')
    k.label(back)

    def cold(c):
        c.label(slow)
        c('s_nop 15')
        c(f's_cmp_eq_u32 s{S_BUD}, 0')
        c(f's_cbranch_scc1 {back}')
        c(f's_sub_u32 s{S_BUD}, s{S_BUD}, 1')
        c('s_sleep 4')
        c(f'buffer_load_dword v{vr}, v{vr+1}, s[{S_DBG}:{S_DBG+3}], 0 offen sc1')
        c('s_waitcnt vmcnt(0)')
        c(f'v_readfirstlane_b32 s{S_NONCE}, v{vr}')
        c(f's_cmp_eq_u32 s{S_NONCE}, 0')
        c(f's_cbranch_scc1 {slow}')
        c(f's_branch {back}')
    k.cold.append(cold)


def nonce_from_lds(k, t):
    k(f'v_mov_b32 v{t}, {XNONCE}')
    tk = k(f'ds_read_b32 v{t}, v{t}')
    k.wait(tk)
    k(f'v_readfirstlane_b32 s{S_NONCE}, v{t}')


def rflag_store(k, base, sidx, t1, t2, wave=0):
    k(f'v_mov_b32 v{t1}, s{S_NONCE}')
    k(f'v_lshlrev_b32 v{t2}, 10, v1')
    k(f's_lshl_b32 s60, s{sidx}, 2')
    k(f's_add_u32 s60, s60, {base}')
    k(f's_mov_b32 s61, {OOB}')
    k(f's_cmp_eq_u32 s{S_W}, {wave}')
    k('s_cselect_b32 s60, s60, s61')
    k('s_mov_b64 exec, 0xff')
    k(f'buffer_store_dword v{t1}, v{t2}, {WSR}, s60 offen sc1')
    k('s_mov_b64 exec, -1')


def wflag_store(k, base, sidx, t1, t2, cnt):
    k(f'v_mov_b32 v{t1}, 1')
    k(f'v_mov_b32 v{t2}, {XCNT+4*cnt}')
    k('s_mov_b64 exec, 1')
    tk = k(f'ds_add_rtn_u32 v{t1}, v{t2}, v{t1}')
    k('s_mov_b64 exec, -1')
    k(f's_lshl_b32 s60, s{sidx}, 2')
    k(f's_add_u32 s60, s60, {base}')
    k.wait(tk)
    k(f'v_readfirstlane_b32 s61, v{t1}')
    k(f'v_mov_b32 v{t1}, s{S_NONCE}')
    k(f'v_lshlrev_b32 v{t2}, 10, v1')
    k('s_cmp_eq_u32 s61, 3')
    k(f's_cselect_b32 s60, s60, {OOB}')
    k('s_mov_b64 exec, 0xff')
    k(f'buffer_store_dword v{t1}, v{t2}, {WSR}, s60 offen sc1')
    k('s_mov_b64 exec, -1')


def cnt_wait(k, t1, t2, cnt, target, bound=2000):
    loop, done = k.newlabel('CW'), k.newlabel('CD')
    k(f'v_mov_b32 v{t2}, {XCNT+4*cnt}')
    k(f's_mov_b32 s61, {bound}')
    k.label(loop)
    k.raw(f'    ds_read_b32 v{t1}, v{t2}')
    k.raw('    s_waitcnt lgkmcnt(0)')
    k(f'v_readfirstlane_b32 s60, v{t1}')
    k(f's_cmp_ge_u32 s60, {target}')
    k(f's_cbranch_scc1 {done}')
    k('s_sub_u32 s61, s61, 1')
    k('s_cmp_eq_u32 s61, 0')
    k(f's_cbranch_scc1 {done}')
    k('s_sleep 2')
    k(f's_branch {loop}')
    k.label(done)


def wflag_poll(k, sbase, va, vr, smask, width, only_wave0):
    loop, done = k.newlabel('POLL'), k.newlabel('PDONE')
    if only_wave0:
        k(f's_cmp_lg_u32 s{S_W}, 0')
        k(f's_cbranch_scc1 {done}')
    k.label(loop)
    if width == 4:
        k.raw(f'    buffer_load_dwordx4 {v(vr,4)}, v{va}, {WSR}, s{sbase} offen sc1')
        k.raw('    s_waitcnt vmcnt(0)')
        for i in range(4):
            k(f'v_xor_b32 v{vr+i}, s{S_NONCE}, v{vr+i}')
        k(f'v_or3_b32 v{vr}, v{vr}, v{vr+1}, v{vr+2}')
        k(f'v_or_b32 v{vr}, v{vr}, v{vr+3}')
        k(f'v_cmp_ne_u32 vcc, 0, v{vr}')
    else:
        k.raw(f'    buffer_load_dword v{vr}, v{va}, {WSR}, s{sbase} offen sc1')
        k.raw('    s_waitcnt vmcnt(0)')
        k(f'v_cmp_ne_u32 vcc, s{S_NONCE}, v{vr}')
    k(f's_and_b64 vcc, vcc, s[{smask}:{smask+1}]')
    k(f's_cbranch_scc0 {done}')
    k(f's_cmp_eq_u32 s{S_BUD}, 0')
    k(f's_cbranch_scc1 {done}')
    k(f's_sub_u32 s{S_BUD}, s{S_BUD}, 1')
    k(f's_sleep {OPT.get("psl", 1)}')
    k(f's_branch {loop}')
    k.label(done)


def rflag_poll(k, sbase, va, vr, smask):
    loop, done = k.newlabel('POLL'), k.newlabel('PDONE')
    k(f's_cmp_lg_u32 s{S_W}, 0')
    k(f's_cbranch_scc1 {done}')
    k.label(loop)
    k.raw(f'    buffer_load_dword v{vr}, v{va}, {WSR}, s{sbase} offen sc1')
    k.raw('    s_waitcnt vmcnt(0)')
    k(f'v_cmp_ne_u32 vcc, s{S_NONCE}, v{vr}')
    k(f's_and_b64 vcc, vcc, s[{smask}:{smask+1}]')
    k(f's_cbranch_scc0 {done}')
    k(f's_cmp_eq_u32 s{S_BUD}, 0')
    k(f's_cbranch_scc1 {done}')
    k(f's_sub_u32 s{S_BUD}, s{S_BUD}, 1')
    k(f's_branch {loop}')
    k.label(done)


def flags_issue(k, base, vr, va):
    k(f'v_lshlrev_b32 v{va}, 4, v1')
    k(f's_lshl_b32 s60, s{S_X8}, 10')
    k(f'v_add_u32 v{va}, s60, v{va}')
    k(f's_mov_b32 s60, {base}')
    return k(f'buffer_load_dwordx4 {v(vr,4)}, v{va}, {WSR}, s60 offen sc1')


def flags_check(k, base, vr, va, tok):
    k.wait(tok)
    slow, back = k.newlabel('FSLOW'), k.newlabel('FBACK')

    def cmpops(c):
        for i in range(4):
            c(f'v_xor_b32 v{vr+i}, s{S_NONCE}, v{vr+i}')
        c(f'v_or3_b32 v{vr}, v{vr}, v{vr+1}, v{vr+2}')
        c(f'v_or_b32 v{vr}, v{vr}, v{vr+3}')
        c(f'v_cmp_ne_u32 vcc, 0, v{vr}')
    cmpops(k)
    k(f's_cbranch_vccnz {slow} ;nodrain')
    k.label(back)

    def cold(c):
        c.label(slow)
        c('s_nop 15')
        c(f's_cmp_eq_u32 s{S_BUD}, 0')
        c(f's_cbranch_scc1 {back}')
        c(f's_sub_u32 s{S_BUD}, s{S_BUD}, 1')
        c('s_sleep 12')
        c(f's_mov_b32 s58, {base}')
        c(f'buffer_load_dwordx4 {v(vr,4)}, v{va}, {WSR}, s58 offen sc1')
        c('s_waitcnt vmcnt(0)')
        cmpops(c)
        c(f's_cbranch_vccnz {slow}')
        c(f's_branch {back}')
    k.cold.append(cold)


def join(k):
    k.reset_counters()
    k.vm_issued = 1
    k.lg_issued = 1


def prologue(k):
    k('s_cmp_ge_u32 s2, 256')
    k('s_cbranch_scc1 %s' % k.realend)
    if OPT.get('cpf', 1):
        k.raw('    s_getpc_b64 s[88:89]')
        k.raw('CODE_PC:')
        k.raw(f'    s_sub_u32 s88, s88, CODE_PC-{NAME}_kernel')
        k.raw('    s_subb_u32 s89, s89, 0')
        k.raw('    s_and_b32 s89, s89, 0xffff')
        k.raw(f'    s_mov_b32 s90, CODE_END-{NAME}_kernel')
        k.raw('    s_mov_b32 s91, 0x00020000')
        k('s_lshr_b32 s92, s2, 3')
        k('s_lshl_b32 s92, s92, 12')
        k('v_lshlrev_b32 v250, 7, v0')
        k('v_cmp_gt_u32 vcc, 32, v0')
        k(f'v_mov_b32 v251, {OOB}')
        k('v_cndmask_b32 v250, v251, v250, vcc')
        k('buffer_load_dword v251, v250, s[88:91], s92 offen')
    k('s_load_dwordx8 s[64:71], s[0:1], 0')
    k('s_load_dwordx8 s[72:79], s[0:1], 32')
    k('s_load_dwordx4 s[80:83], s[0:1], 64')
    k('s_memrealtime s[84:85]')
    k('v_and_b32 v1, 63, v0')
    k('v_lshrrev_b32 v2, 6, v0')
    k(f'v_readfirstlane_b32 s{S_W}, v2')
    k(f's_and_b32 s{S_X8}, s2, 7')
    k(f's_lshr_b32 s{S_I32}, s2, 3')
    k(f's_mov_b32 s{S_BUD}, {OPT.get("bud", 100000)}')
    k(f's_and_b32 s{S_W4}, s{S_W}, 3')
    k('v_and_b32 v0, 255, v0')
    k('v_mov_b32 v253, 0')
    k('s_waitcnt lgkmcnt(0)')
    for sr, src, size in ((S_X, 64, 2621440), (S_WQKV, 66, 2457600), (S_WO, 68, 819200), (S_WG, 72, 1966080),
                          (S_WU, 74, 1966080), (S_WD, 76, 1966080), (S_OUT, 78, 2621440), (S_WS, 82, WS_SIZE),
                          (S_DBG, 80, 256)):
        k(f's_mov_b32 s{sr}, s{src}')
        k(f's_and_b32 s{sr+1}, s{src+1}, 0xffff')
        k(f's_mov_b32 s{sr+2}, {size}')
        k(f's_mov_b32 s{sr+3}, 0x00020000')
    k(f's_or_b32 s60, s2, s{S_W}')
    k('s_cmp_eq_u32 s60, 0')
    k(f's_cselect_b32 s61, 0, 0x10000')
    k('s_or_b32 s60, s84, 1')
    k('v_mov_b32 v2, s60')
    k('v_mov_b32 v3, 0')
    k('s_mov_b64 exec, 1')
    k(f'buffer_store_dword v2, v3, s[{S_DBG}:{S_DBG+3}], s61 offen sc1')
    k('s_mov_b64 exec, -1')


def tile1(k):
    k(f's_and_b32 s47, s{S_X8}, 3')
    k(f's_lshr_b32 s46, s{S_X8}, 2')
    k('s_mul_i32 s46, s46, 30')
    k(f's_add_u32 s46, s46, s{S_I32}')
    k('s_lshr_b32 s44, s46, 2')
    k('s_and_b32 s46, s46, 3')
    k('s_lshl_b32 s47, s47, 2')
    k('s_add_u32 s45, s47, s46')
    k('s_add_u32 s56, s45, s44')
    for _ in range(2):
        k('s_sub_u32 s47, s56, 10')
        k('s_cmp_ge_u32 s56, 10')
        k('s_cselect_b32 s56, s47, s56')
    k('s_lshl_b32 s46, s45, 7')
    k(f's_lshl_b32 s47, s{S_W4}, 5')
    k('s_add_u32 s46, s46, s47')


def tile35(k, srt, sct, st):
    if OPT.get('m35', 0):
        k(f's_lshl_b32 s{st}, s{S_X8}, 2')
        k(f's_and_b32 s{srt}, s{S_I32}, 3')
        k(f's_add_u32 s{srt}, s{srt}, s{st}')
        k(f's_lshr_b32 s{sct}, s{S_I32}, 2')
        return
    k(f's_and_b32 s{st}, s{S_X8}, 3')
    k(f's_lshl_b32 s{st}, s{st}, 3')
    k(f's_and_b32 s{srt}, s{S_I32}, 7')
    k(f's_add_u32 s{srt}, s{srt}, s{st}')
    k(f's_lshr_b32 s{st}, s{S_X8}, 2')
    k(f's_lshl_b32 s{st}, s{st}, 2')
    k(f's_lshr_b32 s{sct}, s{S_I32}, 3')
    k(f's_add_u32 s{sct}, s{sct}, s{st}')


def tile4(k, smt, sft, st):
    if OPT.get('m4', 0):
        k(f's_and_b32 s{st}, s{S_X8}, 3')
        k(f's_lshl_b32 s{st}, s{st}, 2')
        k(f's_and_b32 s{smt}, s{S_I32}, 3')
        k(f's_add_u32 s{smt}, s{smt}, s{st}')
        k(f's_lshr_b32 s{st}, s{S_X8}, 2')
        k(f's_lshl_b32 s{st}, s{st}, 3')
        k(f's_lshr_b32 s{sft}, s{S_I32}, 2')
        k(f's_add_u32 s{sft}, s{sft}, s{st}')
        return
    k(f's_and_b32 s{st}, s{S_X8}, 1')
    k(f's_lshl_b32 s{st}, s{st}, 3')
    k(f's_and_b32 s{smt}, s{S_I32}, 7')
    k(f's_add_u32 s{smt}, s{smt}, s{st}')
    k(f's_lshr_b32 s{st}, s{S_X8}, 1')
    k(f's_lshl_b32 s{st}, s{st}, 2')
    k(f's_lshr_b32 s{sft}, s{S_I32}, 3')
    k(f's_add_u32 s{sft}, s{sft}, s{st}')


def strip_id(k, sd):
    k(f's_and_b32 s{sd}, s{S_X8}, 1')
    k(f's_mul_i32 s{sd}, s{sd}, 1536')
    k(f's_lshr_b32 s61, s{S_X8}, 1')
    k('s_mul_i32 s61, s61, 384')
    k(f's_add_u32 s{sd}, s{sd}, s61')
    k(f's_lshl_b32 s61, s{S_I32}, 5')
    k(f's_add_u32 s{sd}, s{sd}, s61')


def clear_ops(k, vs, va):
    ops = []

    def o1():
        k(f's_and_b32 s60, s{S_I32}, 3')
        k(f's_lshl_b32 s61, s{S_X8}, 2')
        k('s_add_u32 s60, s60, s61')
        k('s_and_b32 s65, s60, 1')
        k('s_lshr_b32 s60, s60, 1')
        k('s_mul_i32 s60, s60, 5')
        k('s_lshl_b32 s60, s60, 15')
        k(f's_lshr_b32 s61, s{S_I32}, 2')
        k('s_lshl_b32 s61, s61, 12')
        k('s_add_u32 s60, s60, s61')
        k(f's_lshl_b32 s61, s{S_W4}, 10')
        k('s_add_u32 s60, s60, s61')
        k(f's_add_u32 s64, s60, {WS_OC}')
        k(f's_mul_i32 s61, s65, {3*32768}')
        k('s_add_u32 s66, s64, s61')
        k(f'buffer_store_dwordx4 {v(vs,4)}, v{va}, {WSR}, s66 offen sc1')

    def o2():
        k('s_add_u32 s60, s66, 32768')
        k(f'buffer_store_dwordx4 {v(vs,4)}, v{va}, {WSR}, s60 offen sc1')

    def o3():
        k('s_lshl_b32 s61, s65, 3')
        k('s_add_u32 s60, s64, s61')
        k('s_add_u32 s60, s60, 65536')
        k(f'buffer_store_dwordx2 {v(vs,2)}, v{va}, {WSR}, s60 offen sc1')

    def h1():
        tile35(k, 60, 61, 64)
        k('s_lshl_b32 s67, s61, 14')
        k('s_lshl_b32 s64, s60, 9')
        k('s_add_u32 s67, s67, s64')
        k(f's_add_u32 s67, s67, {WS_HS}')
        k('s_mul_i32 s61, s61, 10')
        k(f's_add_u32 s61, s61, s{S_W4}')
        k('s_lshl_b32 s61, s61, 15')
        k('s_lshl_b32 s60, s60, 10')
        k('s_add_u32 s64, s61, s60')
        k(f's_add_u32 s64, s64, {WS_H1}')
        k(f'buffer_store_dwordx4 {v(vs,4)}, v{va}, {WSR}, s64 offen sc1')

    def h2():
        k(f's_add_u32 s60, s64, {4*32768}')
        k(f'buffer_store_dwordx4 {v(vs,4)}, v{va}, {WSR}, s60 offen sc1')

    def h3():
        k(f's_add_u32 s60, s64, {8*32768}')
        k(f's_mov_b32 s65, {OOB}')
        k(f's_cmp_lt_u32 s{S_W4}, 2')
        k('s_cselect_b32 s60, s60, s65')
        k(f'buffer_store_dwordx4 {v(vs,4)}, v{va}, {WSR}, s60 offen sc1')

    def h4():
        k(f's_cmp_eq_u32 s{S_W4}, 2')
        k('s_cselect_b32 s60, s67, s65')
        k(f'buffer_store_dwordx2 {v(vs,2)}, v{va+1}, {WSR}, s60 offen sc1')

    def c1():
        tile4(k, 60, 61, 64)
        k('s_mul_i32 s61, s61, 384')
        k('s_mul_i32 s64, s60, 12288')
        k('s_add_u32 s61, s61, s64')
        k(f's_mul_i32 s64, s{S_W4}, 6144')
        k('s_add_u32 s61, s61, s64')
        k(f's_add_u32 s61, s61, {WS_PCS}')
        k('s_cmp_lt_u32 s60, 10')
        k('s_cselect_b32 s61, s61, s65')
        k(f's_cmp_lt_u32 s{S_W4}, 2')
        k('s_cselect_b32 s61, s61, s65')
        k('s_mov_b64 exec, 0xffffff')
        k(f'buffer_store_dwordx4 {v(vs,4)}, v{va}, {WSR}, s61 offen sc1')
        k('s_mov_b64 exec, -1')
    return [o1, o2, o3, h1, h2, h3, h4, c1]


def sparse_prefetch(k, srd, rows_per_wg, lines, pitch, colshift, colmul, va, vd, toff=0):
    magic = {5: 13108, 6: 10923}[lines]
    k(f'v_subrev_u32 v{va}, {toff}, v0')
    k(f'v_cmp_gt_u32 vcc, {rows_per_wg*lines}, v{va}')
    k(f'v_mul_u32_u24 v{vd}, {magic}, v{va}')
    k(f'v_lshrrev_b32 v{vd}, 16, v{vd}')
    k(f'v_mul_u32_u24 v{vd}, {pitch-lines*128}, v{vd}')
    k(f'v_lshl_add_u32 v{va}, v{va}, 7, v{vd}')
    k(f'v_mov_b32 v{vd}, {OOB}')
    k(f'v_cndmask_b32 v{va}, v{vd}, v{va}, vcc')
    k(f's_mul_i32 s60, s{S_I32}, {rows_per_wg*pitch}')
    k(f's_lshr_b32 s61, s{S_X8}, {colshift}')
    k(f's_mul_i32 s61, s61, {colmul}')
    k('s_add_u32 s60, s60, s61')
    for sr in srd:
        k(f'buffer_load_dword v{vd}, v{va}, s[{sr}:{sr+3}], s60 offen')


def pf_wo(k, va, vd):
    sparse_prefetch(k, [S_WO], 20, 5, 1280, 2, 640, va, vd)


def pf_wd(k, va, vd):
    sparse_prefetch(k, [S_WD], 48, 5, 1280, 2, 640, va, vd)


def pf_wgu(k, va, vd, toff=0):
    sparse_prefetch(k, [S_WG, S_WU], 20, 6, 3072, 1, 768, va, vd, toff)


P1_R, P1_SLOT = 4, 32768


def p1_dma(k, S_SIG, sa, sb_):
    S_NT, S_TOK, S_LW = 44, 46, 48
    k('s_cmp_ge_u32 s56, 5')
    k(f's_cselect_b32 s{S_SIG}, 5, 0')
    k('v_lshrrev_b32 v10, 3, v1')
    k(f'v_add_u32 v10, s{S_TOK}, v10')
    k('v_mul_u32_u24 v10, 1280, v10')
    k('v_and_b32 v11, 7, v1')
    k('v_lshrrev_b32 v12, 4, v1')
    k('v_xor_b32 v11, v11, v12')
    k('v_xor_b32 v13, 4, v11')
    k('v_lshl_add_u32 v2, v11, 4, v10')
    k('v_lshl_add_u32 v3, v13, 4, v10')
    k(f'v_add_u32 v3, {10240-1024}, v3')
    k(f'v_add_u32 v4, {2*(10240-1024)}, v2')
    k(f'v_add_u32 v5, {2*(10240-1024)}, v3')
    k(f's_lshl_b32 s47, s{S_W4}, 4')
    k('v_add_u32 v10, s47, v12')
    k('v_mul_u32_u24 v10, 3840, v10')
    k(f's_lshl_b32 s47, s{S_NT}, 8')
    k('v_add_u32 v10, s47, v10')
    k('v_bfe_u32 v11, v1, 2, 2')
    k('v_xor_b32 v11, v11, v12')
    k('v_lshl_add_u32 v10, v11, 6, v10')
    k('v_and_b32 v11, 3, v1')
    k('v_lshl_add_u32 v6, v11, 4, v10')
    for i in range(1, 4):
        k(f'v_add_u32 v{6+i}, {i*(4*3840-1024)}, v6')
    k(f's_lshl_b32 s{S_LW}, s{S_W4}, 12')
    tok = {}

    def issue(st):
        slot = st % P1_R
        k(f's_add_u32 m0, s{S_LW}, {slot*P1_SLOT}')
        k(f's_lshl_b32 s{sa}, s{S_SIG}, 7')
        for i in range(4):
            k(f'buffer_load_dwordx4 v{2+i}, s[{S_X}:{S_X+3}], s{sa} offen offset:{i*1024} lds')
        k(f's_add_u32 m0, s{S_LW}, {slot*P1_SLOT+16384}')
        k(f's_mul_i32 s{sb_}, s{S_SIG}, {64*3840}')
        k(f's_add_u32 s{S_SIG}, s{S_SIG}, 1')
        k(f's_cmp_eq_u32 s{S_SIG}, 10')
        k(f's_cselect_b32 s{S_SIG}, 0, s{S_SIG}')
        for i in range(4):
            tok[st] = k(f'buffer_load_dwordx4 v{6+i}, s[{S_WQKV}:{S_WQKV+3}], s{sb_} offen offset:{i*1024} lds')
    return tok, issue


def p1_loader(k, g3):
    tile1(k)
    S_NT, S_TOK, S_LW, S_SIG = 44, 46, 48, 55
    lab_h, lab_e = k.newlabel('L_HELP'), k.newlabel('L_P1E')
    k(f's_cmp_ge_u32 s{S_I32}, 30')
    k(f's_cbranch_scc1 {lab_h}')
    tok, issue = p1_dma(k, S_SIG, 49, 50)
    issue(0)
    issue(1)
    stamp(k, 1)
    k.wait(tok[0])
    k('s_barrier')
    stamp(k, 2)
    if OPT.get('cdma', 0):
        k(f's_add_u32 s{S_SIG}, s{S_SIG}, 2')
        tok[2] = tok[3] = tok[1]
    else:
        issue(2)
        issue(3)
    blk = k.capture(lambda: (g3.dma_setup(100), p2_setup(k)))
    nb_ = (len(blk) + 2) // 3
    for st in range(1, 10):
        k.wait(tok[st])
        k('s_barrier')
        if st + 3 < 10:
            issue(st + 3)
        if st == 6:
            stamp(k, 3)
            pf_wo(k, 120, 121)
        if 6 <= st <= 8:
            k.items.extend(blk[(st - 6) * nb_:(st - 5) * nb_])
    k(f's_branch {lab_e}')
    k.label(lab_h)
    for st in range(10):
        k('s_barrier')
    pf_wo(k, 120, 121)
    k.items.extend(blk)
    k.label(lab_e)
    join(k)
    nonce_from_lds(k, 122)
    stamp(k, 9)
    k('s_barrier')
    if OPT.get('wowait', 1):
        cnt_wait(k, 238, 239, 0, OPT.get('wowait', 1))
    stamp(k, 10)
    for st in range(5):
        runall(k, g3.dma_step(st))
    stamp(k, 11)


def p1_compute(k):
    tile1(k)
    S_NT, S_MT, S_TOK, S_LW, S_RHO = 44, 45, 46, 48, 56
    k(f's_lshl_b32 s{S_LW}, s{S_W4}, 12')
    ctok = {}
    if OPT.get('cdma', 0):
        lab_nd = k.newlabel('NODMA')
        k(f's_cmp_ge_u32 s{S_I32}, 30')
        k(f's_cbranch_scc1 {lab_nd}')
        ctok, cissue = p1_dma(k, 55, 49, 50)
        k('s_add_u32 s55, s55, 2')
        cissue(2)
        cissue(3)
        k.label(lab_nd)
    for i in range(4):
        k(f'v_mov_b32 v{96+i}, -1')
    k('v_lshlrev_b32 v100, 4, v1')
    k('v_lshlrev_b32 v101, 3, v1')
    k('v_and_b32 v40, 31, v1')
    k('v_lshlrev_b32 v109, 3, v40')
    k('v_lshlrev_b32 v102, 2, v40')
    k(f's_lshl_b32 s51, s{S_RHO}, 14')
    k(f's_lshl_b32 s47, s{S_TOK}, 3')
    k('s_add_u32 s51, s51, s47')
    k(f's_add_u32 s51, s51, {WS_PS}')
    k(f's_mov_b32 s47, {OOB}')
    k(f's_cmp_lt_u32 s{S_NT}, 10')
    k('s_cselect_b32 s51, s51, s47')
    k(f's_mul_i32 s52, s{S_RHO}, 7680')
    k(f's_lshl_b32 s49, s{S_NT}, 9')
    k('s_add_u32 s52, s52, s49')
    k(f's_lshl_b32 s49, s{S_W4}, 7')
    k('s_add_u32 s52, s52, s49')
    k(f's_add_u32 s52, s52, {WS_PC}')
    k(f's_cmp_lt_u32 s{S_MT}, 10')
    k('s_cselect_b32 s52, s52, s47')
    k(f's_cmp_lt_u32 s{S_I32}, 30')
    k('s_cselect_b32 s51, s51, s47')
    k('s_cselect_b32 s52, s52, s47')
    k(f'buffer_store_dwordx2 {v(96,2)}, v109, {WSR}, s51 offen sc1')
    sctok = k(f'buffer_store_dword v96, v102, {WSR}, s52 offen sc1')
    if OPT.get('qclr', 0):
        k(f's_lshl_b32 s60, s{S_NT}, 5')
        k(f's_lshl_b32 s61, s{S_W4}, 3')
        k('s_add_u32 s60, s60, s61')
        k('s_lshl_b32 s60, s60, 14')
        k(f's_lshl_b32 s61, s{S_MT}, 10')
        k('s_add_u32 s64, s60, s61')
        k(f's_lshr_b32 s60, s{S_TOK}, 5')
        k('s_mul_i32 s60, s60, 40960')
        k(f's_sub_u32 s61, s{S_NT}, 10')
        k('s_lshl_b32 s61, s61, 11')
        k('s_add_u32 s65, s60, s61')
        k(f's_cmp_lt_u32 s{S_I32}, 30')
        k(f's_cselect_b32 s64, s64, {OOB}')
        k(f's_cselect_b32 s65, s65, {OOB}')
        for n in range(8):
            k(f's_add_u32 s60, s64, {WS_QG + n*16384}')
            k(f's_add_u32 s61, s65, {WS_VF + (n//2)*10240 + (n%2)*1024}')
            k(f's_cmp_lt_u32 s{S_NT}, 10')
            k('s_cselect_b32 s60, s60, s61')
            if OPT.get('qclr') == 2:
                k('s_sleep 4')
            sctok = k(f'buffer_store_dwordx4 {v(96,4)}, v100, {WSR}, s60 offen sc1')
    NV = 252
    if OPT.get('tlb', 0) & 1:
        k('v_lshlrev_b32 v115, 20, v1')
        for n_, sr in enumerate((S_WS, S_WO, S_WG, S_WU, S_WD, S_OUT)):
            k(f's_cmp_eq_u32 s{S_W4}, {n_ % 4}')
            k(f's_cselect_b32 s60, 0, {OOB}')
            k(f'buffer_load_dword v{116+n_}, v115, s[{sr}:{sr+3}], s60 offen')
    if OPT.get('tlb', 0) & 2:
        k('v_and_b32 v115, 15, v1')
        k(f's_lshl_b32 s60, s{S_I32}, 4')
        k('v_add_u32 v115, s60, v115')
        k('v_lshlrev_b32 v115, 16, v115')
        k(f's_cmp_eq_u32 s{S_W4}, 1')
        k(f's_cselect_b32 s60, 0, {OOB}')
        k(f'buffer_load_dword v116, v115, {WSR}, s60 offen')
        k('v_and_b32 v115, 1, v1')
        k(f's_lshl_b32 s60, s{S_I32}, 1')
        k('v_add_u32 v115, s60, v115')
        k('v_lshlrev_b32 v115, 16, v115')
        for n_, sr in enumerate((S_WO, S_WG, S_WU, S_WD, S_OUT)):
            k(f's_cmp_eq_u32 s{S_W4}, {2 + n_ % 2}')
            k(f's_cselect_b32 s60, 0, {OOB}')
            k(f'buffer_load_dword v{117+n_}, v115, s[{sr}:{sr+3}], s60 offen')
    def warm():
        k('v_lshlrev_b32 v110, 7, v0')
        k(f's_and_b32 s60, s{S_X8}, 3')
        k('s_lshl_b32 s60, s60, 5')
        k(f's_add_u32 s60, s60, s{S_I32}')
        k('s_mul_i32 s60, s60, 20480')
        k('v_cmp_gt_u32 vcc, 160, v0')
        k(f'v_mov_b32 v111, {OOB}')
        k('v_cndmask_b32 v110, v111, v110, vcc')
        k(f'buffer_load_dword v111, v110, s[{S_X}:{S_X+3}], s60 offen')
        k('v_lshrrev_b32 v110, 4, v0')
        k('v_mul_u32_u24 v110, 3840, v110')
        k('v_and_b32 v112, 15, v0')
        k('v_lshl_add_u32 v110, v112, 7, v110')
        k(f's_mul_i32 s60, s{S_I32}, {20*3840}')
        k(f's_lshr_b32 s61, s{S_X8}, 2')
        k('s_mul_i32 s61, s61, 1792')
        k('s_add_u32 s60, s60, s61')
        k(f'buffer_load_dword v113, v110, s[{S_WQKV}:{S_WQKV+3}], s60 offen')
        k(f's_add_u32 s60, s60, {16*3840}')
        k(f's_mov_b32 s61, {OOB}')
        k(f's_cmp_eq_u32 s{S_W4}, 0')
        k('s_cselect_b32 s60, s60, s61')
        k(f'buffer_load_dword v114, v110, s[{S_WQKV}:{S_WQKV+3}], s60 offen')
    if OPT.get('warm', 0) == 1:
        warm()
    k('v_lshrrev_b32 v41, 5, v1')
    k('v_bfe_u32 v42, v1, 1, 3')
    k('v_xor_b32 v42, v42, v41')
    k('v_lshlrev_b32 v43, 7, v40')
    k('v_lshl_add_u32 v43, v42, 4, v43')
    k(f'v_add_u32 v10, s{S_LW}, v43')
    for ks in range(1, 4):
        k(f'v_xor_b32 v{10+ks}, {ks*32}, v10')
    k('v_bfe_u32 v42, v1, 2, 2')
    k('v_lshl_add_u32 v43, v41, 3, v42')
    k('v_lshlrev_b32 v43, 8, v43')
    k('v_bfe_u32 v44, v1, 4, 1')
    k('v_lshl_add_u32 v43, v44, 5, v43')
    k('v_and_b32 v44, 3, v1')
    k('v_lshl_add_u32 v43, v44, 3, v43')
    k('v_add_u32 v43, 16384, v43')
    for j in range(4):
        k(f's_add_u32 s49, s{S_W4}, {j}')
        k('s_and_b32 s49, s49, 3')
        k('v_xor_b32 v44, s49, v42')
        k(f'v_lshl_add_u32 v{14+j}, v44, 6, v43')
    for i in range(8):
        k(f'v_add_u32 v{18+i}, 65536, v{10+i}')
    VSUM, VSQ, VCS, VONE = 34, 35, 36, 37
    k(f'v_mov_b32 v{VSUM}, 0')
    k(f'v_mov_b32 v{VSQ}, 0')
    k(f'v_mov_b32 v{VCS}, 0')
    k(f'v_mov_b32 v{VONE}, 0x3f803f80')
    k('v_lshrrev_b32 v105, 5, v1')
    k(f'v_mul_u32_u24 v103, {5*16384}, v105')
    k('v_add_u32 v103, v103, v109')
    k(f'v_mul_u32_u24 v104, {5*7680}, v105')
    k('v_add_u32 v104, v104, v102')
    k(f's_lshl_b32 s53, s{S_TOK}, 3')
    k(f's_add_u32 s53, s53, {WS_PS}')
    k(f's_lshl_b32 s54, s{S_NT}, 9')
    k(f's_lshl_b32 s49, s{S_W4}, 7')
    k('s_add_u32 s54, s54, s49')
    k(f's_add_u32 s54, s54, {WS_PC}')
    k('s_sub_u32 s55, s56, 5')
    k('s_cmp_ge_u32 s56, 5')
    k('s_cselect_b32 s55, s55, s56')
    XF, WF, ACC = 40, 48, 128
    PR, PCR, FL = 232, 242, 248
    stamp(k, 1)
    def nonce_share():
        def blk():
            loop, done = k.newlabel('NL'), k.newlabel('ND')
            first = k.newlabel('NF')
            k(f's_branch {first}')
            k.label(loop)
            k.raw(f'    buffer_load_dword v{NV}, v{NV+1}, s[{S_DBG}:{S_DBG+3}], 0 offen sc1')
            k.label(first)
            k.raw('    s_waitcnt vmcnt(0)')
            k(f'v_readfirstlane_b32 s{S_NONCE}, v{NV}')
            k(f's_cmp_lg_u32 s{S_NONCE}, 0')
            k(f's_cbranch_scc1 {done}')
            k(f's_cmp_eq_u32 s{S_BUD}, 0')
            k(f's_cbranch_scc1 {done}')
            k(f's_sub_u32 s{S_BUD}, s{S_BUD}, 1')
            k('s_sleep 4')
            k(f's_branch {loop}')
            k.label(done)
            k(f'v_mov_b32 v{NV+1}, {XNONCE}')
            k.raw(f'    ds_write_b32 v{NV+1}, v{NV}')
            k.raw('    s_waitcnt lgkmcnt(0)')
        k(f's_cmp_eq_u32 s{S_W}, 0')
        k.outline('s_cbranch_scc1', blk)
        k.wait(sctok)

    def nonce_pre():
        def blk():
            k(f'v_mov_b32 v{NV+1}, 0')
            k.raw(f'    buffer_load_dword v{NV}, v{NV+1}, s[{S_DBG}:{S_DBG+3}], 0 offen sc1')
        k(f's_cmp_eq_u32 s{S_W}, 0')
        k.outline('s_cbranch_scc1', blk)

    def nonce_get():
        rflag_store(k, WS_F0, 2, 107, 108)
        nonce_from_lds(k, 107)
    k(f'v_mov_b32 v107, {XCNT}')
    k('v_mov_b32 v108, 0')
    k('ds_write_b32 v107, v108')
    k('ds_write_b32 v107, v108 offset:4')
    k.wait_all(vm=False)
    if OPT.get('warm', 0) == 3:
        k('s_sleep 20')
        warm()
    stamp(k, 2)
    k('s_barrier')
    nonce_pre()
    if OPT.get('warm', 0) == 2:
        warm()
    stamp(k, 3)
    lab_v, lab_h, lab_done = k.newlabel('P1_V'), k.newlabel('C_HELP'), k.newlabel('C_P1D')
    k(f's_cmp_ge_u32 s{S_I32}, 30')
    k(f's_cbranch_scc1 {lab_h}')
    k(f's_cmp_ge_u32 s{S_NT}, 10')
    k(f's_cbranch_scc1 {lab_v}')
    saved = k.snap()
    T = {}

    def part_loads(c):
        for n in range(5):
            c(f's_add_u32 s58, s53, {n*16384}')
            c(f'buffer_load_dwordx2 {v(PR+2*n,2)}, v103, {WSR}, s58 offen sc1')
        tok = None
        for n in range(5):
            c(f's_add_u32 s58, s54, {n*7680}')
            tok = c(f'buffer_load_dword v{PCR+n}, v104, {WSR}, s58 offen sc1')
        return tok

    def mainloop(transposed):
        rd = {}

        def reads(kk):
            st, ks = kk // 4, kk % 4
            slot = st % P1_R
            q, so = slot // 2, (slot % 2) * P1_SLOT
            b = kk % 2
            ops = [[] for _ in range(4)]
            ops[0].append(lambda: rd.__setitem__((kk, 'x'), k(
                f'ds_read_b128 {v(XF+4*b,4)}, v{10+8*q+ks} offset:{so}')))
            for j in range(4):
                for hf in range(2):
                    ops[j].append(lambda j=j, hf=hf: rd.__setitem__((kk, j), k(
                        f'ds_read_b64_tr_b16 {v(WF+16*b+4*j+2*hf,2)}, v{14+8*q+j} offset:{so+ks*4096+hf*1024}')))
            return ops
        for l_ in reads(0):
            runall(k, l_)
        clr = clear_ops(k, 96, 100)
        for kk in range(40):
            b = kk % 2
            if kk % 8 == 4:
                stamp(k, 4 + kk // 8)
            fill, rds = [], []
            if kk >= OPT.get('clr0', 31) and clr:
                fill.append(clr.pop(0))
            if kk + 1 < 40:
                if (kk + 1) % 4 == 0:
                    if kk == 7:
                        nonce_share()
                    if (kk + 1) // 4 in ctok:
                        k.wait(ctok[(kk + 1) // 4])
                    k.wait_all(vm=False)
                    k('s_barrier')
                    if kk == 7:
                        nonce_get()
                rds = reads(kk + 1)
            if kk < 20:
                def dots(b=b, kk=kk):
                    for i in range(4):
                        k(f'v_dot2_f32_bf16 v{VSUM}, v{XF+4*b+i}, v{VONE}, v{VSUM}')
                        k(f'v_dot2_f32_bf16 v{VSQ}, v{XF+4*b+i}, v{XF+4*b+i}, v{VSQ}')
                        k(f'v_dot2_f32_bf16 v{VCS}, v{WF+16*b+i}, v{VONE}, v{VCS}')
                    if kk % 4 == 3:
                        xsum(k, VSUM, 80, 81)
                        xsum(k, VSQ, 80, 81)
                        xsum(k, VCS, 80, 81)
                        k.raw(f'    buffer_store_dwordx2 {v(VSUM,2)}, v109, {WSR}, s51 offen sc1')
                        k.raw(f'    buffer_store_dword v{VCS}, v102, {WSR}, s52 offen sc1')

                def g_(dots=dots, kk=kk):
                    k(f's_cmp_eq_u32 s55, {kk//4}')
                    k.outline('s_cbranch_scc1', dots)
                fill.append(g_)
            if kk == 22:
                fill.append(lambda: T.__setitem__('flags', flags_issue(k, WS_F0, FL, 106)))
            if kk == 30:
                def f():
                    flags_check(k, WS_F0, FL, 106, T['flags'])
                    T['part'] = part_loads(k)
                fill.append(f)
            if kk == 38:
                fill.append(lambda: finalize(transposed))
            mf = []
            for j in range(4):
                c = '0' if kk == 0 else v(ACC + 16 * j, 16)
                A_, B_ = v(WF + 16 * b + 4 * j, 4), v(XF + 4 * b, 4)
                if not transposed:
                    A_, B_ = B_, A_
                mf.append((lambda j=j: [rd[kk, 'x'], rd[kk, j]],
                           f'v_mfma_f32_32x32x16_bf16 {v(ACC+16*j,16)}, {A_}, {B_}, {c}'))
            roll_step(k, mf, rds, fill)

    def finalize(transposed):
        k.wait(T['part'])
        check_group(k, list(range(PR, PR + 10)) + list(range(PCR, PCR + 5)), 80, part_loads)
        for n in range(1, 5):
            k(f'v_pk_add_f32 {v(PR,2)}, {v(PR,2)}, {v(PR+2*n,2)}')
            k(f'v_add_f32 v{PCR}, v{PCR}, v{PCR+n}')
        xsum(k, PCR, 80, 81)
        k(f's_lshl_b32 s49, s{S_W4}, 7')
        k(f's_add_u32 s49, s49, {XCH}')
        k('v_add_u32 v82, s49, v102')
        k(f'ds_write_b32 v82, v{PCR}')
        vsum, vsq = PR, PR + 1
        xsum(k, vsum, 80, 81)
        xsum(k, vsq, 80, 81)
        k(f'v_mul_f32 v{vsum}, {f32(1.0/640)}, v{vsum}')
        k(f'v_mul_f32 v{vsq}, {f32(1.0/640)}, v{vsq}')
        k(f'v_fma_f32 v{vsq}, -v{vsum}, v{vsum}, v{vsq}')
        k(f'v_max_f32 v{vsq}, 0, v{vsq}')
        rbf(k, 80, vsum)
        rbf(k, 81, vsq)
        k(f'v_add_f32 v81, {f32(1e-5)}, v81')
        rbf(k, 81, 81)
        k('v_sqrt_f32 v81, v81')
        rbf(k, 81, 81)
        k('v_rcp_f32 v38, v81')
        if transposed:
            k(f's_mov_b32 s49, {f32(math.log2(math.e)/math.sqrt(20.0))}')
            k(f's_cmp_lt_u32 s{S_NT}, 5')
            k('s_cselect_b32 s49, s49, 1.0')
            k('v_mul_f32 v38, s49, v38')
        k('v_mul_f32 v39, v80, v38')
        k('v_sub_f32 v39, 0, v39')
        if not transposed:
            k(f's_lshl_b32 s49, s{S_W4}, 8')
            k(f's_add_u32 s49, s49, {XCH}')
            k('v_add_u32 v83, s49, v102')
            k('ds_write_b32 v83, v38 offset:1024')
            k('ds_write_b32 v83, v39 offset:1152')

    def fin():
        stamp(k, 10)
        k(f's_lshl_b32 s49, s{S_MT}, 4')
        k(f's_add_u32 s49, s49, s{S_NT}')
        k.wait_all()
        wflag_store(k, WS_F2, 49, 80, 81, 0)
        k(f's_branch {lab_done}')

    mainloop(True)
    stamp(k, 9)
    k.wait_all(vm=False)
    k('s_barrier')
    k(f's_lshl_b32 s49, s{S_TOK}, 3')
    k('v_add_u32 v84, s49, v109')
    k('v_lshl_add_u32 v84, v105, 14, v84')
    k('v_lshlrev_b32 v85, 4, v105')
    k(f'v_add_u32 v85, {XCH}, v85')
    toks = {}

    def csreads(j):
        k(f's_add_u32 s49, s{S_W4}, {j}')
        k('s_and_b32 s49, s49, 3')
        k('s_lshl_b32 s52, s49, 7')
        k('v_add_u32 v86, s52, v85')
        for a_ in range(4):
            toks[j, a_] = k(f'ds_read_b128 {v(192+16*(j%2)+4*a_,4)}, v86 offset:{a_*32}')
    csreads(0)
    csreads(1)
    for j in range(4):
        k(f's_add_u32 s49, s{S_W4}, {j}')
        k('s_and_b32 s49, s49, 3')
        k(f's_lshl_b32 s52, s{S_NT}, 5')
        k('s_lshl_b32 s53, s49, 3')
        k('s_add_u32 s52, s52, s53')
        k('s_lshl_b32 s52, s52, 14')
        C0 = 192 + 16 * (j % 2)
        for a_ in range(4):
            k.wait(toks[j, a_])
            r0 = ACC + 16 * j + 4 * a_
            for p in range(2):
                k(f'v_pk_mul_f32 {v(C0+4*a_+2*p,2)}, {v(C0+4*a_+2*p,2)}, {v(38,2)} op_sel:[0,1] op_sel_hi:[1,1]')
                k(f'v_pk_fma_f32 {v(r0+2*p,2)}, {v(r0+2*p,2)}, {v(38,2)}, {v(C0+4*a_+2*p,2)} op_sel_hi:[1,0,1]')
            k(f'v_cvt_pk_bf16_f32 v{112+2*a_}, v{r0}, v{r0+1}')
            k(f'v_cvt_pk_bf16_f32 v{113+2*a_}, v{r0+2}, v{r0+3}')
            k(f's_add_u32 s53, s52, {WS_QG + a_*32768}')
            k(f'buffer_store_dwordx2 {v(112+2*a_,2)}, v84, {WSR}, s53 offen sc1')
        if j + 2 < 4:
            csreads(j + 2)
    fin()
    k.label(lab_v)
    k.restore(saved)
    mainloop(False)
    stamp(k, 9)
    k.wait_all(vm=False)
    k('s_barrier')
    k(f's_lshl_b32 s49, s{S_W4}, 8')
    k(f's_add_u32 s49, s49, {XCH}')
    k('v_lshlrev_b32 v86, 4, v105')
    k('v_add_u32 v86, s49, v86')
    tl = []
    for a_ in range(4):
        tl.append(k(f'ds_read_b128 {v(192+4*a_,4)}, v86 offset:{1024+a_*32}'))
        tl.append(k(f'ds_read_b128 {v(208+4*a_,4)}, v86 offset:{1152+a_*32}'))
    for j in range(4):
        k(f's_add_u32 s52, s{S_W4}, {j}')
        k('s_and_b32 s52, s52, 3')
        k('s_lshl_b32 s52, s52, 7')
        k(f's_add_u32 s52, s52, {XCH}')
        k('v_add_u32 v87, s52, v102')
        tl.append(k(f'ds_read_b32 v{224+2*j}, v87'))
    k('v_mul_u32_u24 v84, 10240, v105')
    k('v_lshl_add_u32 v84, v102, 2, v84')
    k(f's_lshr_b32 s53, s{S_TOK}, 5')
    k('s_mul_i32 s53, s53, 40960')
    k(f's_sub_u32 s54, s{S_NT}, 10')
    k('s_lshl_b32 s54, s54, 11')
    k('s_add_u32 s53, s53, s54')
    k(f's_add_u32 s53, s53, {WS_VF}')
    k.wait(*tl)
    for j in range(4):
        k(f's_add_u32 s52, s{S_W4}, {j}')
        k('s_and_b32 s52, s52, 3')
        k('s_lshl_b32 s52, s52, 9')
        k('s_add_u32 s52, s52, s53')
        for m in range(2):
            for p in range(4):
                i = 8 * m + 2 * p
                r0 = ACC + 16 * j + i
                k(f'v_pk_mul_f32 {v(88+2*(p%2),2)}, {v(208+i,2)}, {v(224+2*j,2)} op_sel_hi:[1,0]')
                k(f'v_pk_fma_f32 {v(r0,2)}, {v(r0,2)}, {v(192+i,2)}, {v(88+2*(p%2),2)}')
                k(f'v_cvt_pk_bf16_f32 v{112+8*(j%2)+4*m+p}, v{r0}, v{r0+1}')
            k(f's_add_u32 s54, s52, {m*20480}')
            k(f'buffer_store_dwordx4 {v(112+8*(j%2)+4*m,4)}, v84, {WSR}, s54 offen sc1')
    fin()
    k.label(lab_h)
    k.restore(saved)
    nonce_share()
    k('s_barrier')
    nonce_get()
    for _ in range(8):
        k('s_barrier')
    runall(k, clear_ops(k, 96, 100))
    k('s_barrier')
    k(f's_lshl_b32 s49, s{S_X8}, 1')
    k(f's_add_u32 s49, s49, s{S_I32}')
    k('s_sub_u32 s49, s49, 30')
    k('s_lshl_b32 s49, s49, 4')
    k('s_add_u32 s49, s49, 15')
    k.wait_all()
    wflag_store(k, WS_F2, 49, 80, 81, 0)
    k.label(lab_done)


P5_BAR = (2, 4, 6, 8, 10)


class G35:
    def __init__(self, k, which, groups, vb, sb):
        self.k = k
        self.which = which
        self.KT = 640 if which == 3 else 1536
        self.NST = self.KT // 128
        self.SB = S_WO if which == 3 else S_WD
        self.groups = groups
        self.vb = vb
        self.sb = sb
        self.btok = {}
        self.rtok = {}
        self.sr = 36 if which == 3 else 37

    def set_rho(self, sct):
        k = self.k
        sr = self.sr
        if not OPT.get('rot35', 1):
            k(f's_mov_b32 s{sr}, 0')
        elif self.which == 3:
            k(f's_sub_u32 s{sr}, s{sct}, 5')
            k(f's_cmp_ge_u32 s{sct}, 5')
            k(f's_cselect_b32 s{sr}, s{sr}, s{sct}')
        else:
            k(f's_mul_i32 s{sr}, s{sct}, 3')
            k(f's_lshr_b32 s{sr}, s{sr}, 1')

    def rot(self, c, st, sreg, stmp, mul, src=None):
        c(f's_add_u32 s{sreg}, s{self.sr if src is None else src}, {st}')
        c(f's_sub_u32 s{stmp}, s{sreg}, {self.NST}')
        c(f's_cmp_ge_u32 s{sreg}, {self.NST}')
        c(f's_cselect_b32 s{sreg}, s{stmp}, s{sreg}')
        c(f's_mul_i32 s{sreg}, s{sreg}, {mul}')

    def dma_setup(self, t0):
        k, vb, sb = self.k, self.vb, self.sb
        tile35(k, 61, 60, sb)
        self.set_rho(60)
        k('s_mul_i32 s60, s60, 160')
        k(f's_mul_i32 s{sb+1}, s{S_W4}, {(self.KT//4)*1280}')
        k(f's_add_u32 s60, s60, s{sb+1}')
        for n in range(5):
            k(f'v_add_u32 v{t0}, {64*n}, v1')
            k(f'v_mul_u32_u24 v{t0+1}, 6554, v{t0}')
            k(f'v_lshrrev_b32 v{t0+1}, 16, v{t0+1}')
            k(f'v_mul_u32_u24 v{t0+2}, 10, v{t0+1}')
            k(f'v_sub_u32 v{t0+2}, v{t0}, v{t0+2}')
            k(f'v_bfe_u32 v{t0+3}, v{t0+1}, 3, 1')
            k(f'v_lshlrev_b32 v{t0+3}, 2, v{t0+3}')
            k(f'v_xor_b32 v{t0+1}, v{t0+1}, v{t0+3}')
            k(f'v_mul_u32_u24 v{t0+1}, 1280, v{t0+1}')
            k(f'v_lshl_add_u32 v{vb+n}, v{t0+2}, 4, v{t0+1}')
            k(f'v_add_u32 v{vb+n}, s60, v{vb+n}')
            if 0 < n < 4:
                k(f'v_subrev_u32 v{vb+n}, {n*1024}, v{vb+n}')
        k(f's_mul_i32 s{sb}, s{S_W4}, 5120')

    def dma_step(self, st):
        k, vb, sb = self.k, self.vb, self.sb
        base = self.groups[st % len(self.groups)]
        SB = self.SB
        ops = []

        def f0():
            k(f's_add_u32 m0, s{sb}, {base}')
            self.rot(k, st, sb + 1, 38, 32 * 1280)
        ops.append(f0)
        for n in range(4):
            ops.append(lambda n=n: self.btok.__setitem__(st, k(
                f'buffer_load_dwordx4 v{vb+n}, s[{SB}:{SB+3}], s{sb+1} offen offset:{n*1024} lds')))
        ops.append(lambda: k(f's_add_u32 m0, s{sb}, {base+4096}'))
        ops.append(lambda: self.btok.__setitem__(st, k(
            f'buffer_load_dwordx4 v{vb+4}, s[{SB}:{SB+3}], s{sb+1} offen lds')))
        return ops

    def breg_load(self, st, r0):
        k, vb, sb, SB = self.k, self.vb, self.sb, self.SB
        self.rot(k, st, sb + 1, 38, 32 * 1280)
        for n in range(4):
            k(f'buffer_load_dwordx4 {v(r0+4*n,4)}, v{vb+n}, s[{SB}:{SB+3}], s{sb+1} offen offset:{n*1024}')
            if OPT.get('pace', 0):
                k(f's_sleep {OPT.get("pace")}')
        self.rtok[st] = (k(f'buffer_load_dwordx4 {v(r0+16,4)}, v{vb+4}, s[{SB}:{SB+3}], s{sb+1} offen'), r0)

    def breg_write(self, st, va):
        k = self.k
        tok, r0 = self.rtok[st]
        base = self.groups[st % len(self.groups)]
        q, so = base // 61440, base % 61440
        k.wait(tok)
        for n in range(5):
            self.btok[st] = k(f'ds_write_b128 v{va+q}, {v(r0+4*n,4)} offset:{so+n*1024}')

    def loader(self, nb_pre, st0=0):
        k, NST = self.k, self.NST
        NG = len(self.groups)
        k('v_lshlrev_b32 v12, 4, v1')
        k(f's_mul_i32 s46, s{S_W4}, 5120')
        k('v_add_u32 v21, s46, v12')
        k('v_add_u32 v22, 61440, v21')
        k('v_add_u32 v23, 122880, v21')
        stamp(k, st0)
        k.wait(*[self.btok[s_] for s_ in range(7)])
        k('s_barrier')

        def put(nb):
            if nb in self.rtok:
                self.breg_write(nb, 21)
            else:
                runall(k, self.dma_step(nb))
        k('s_barrier')
        for nb in (7, 8, 9):
            put(nb)
        k('s_barrier')
        put(11)
        put(10)
        k.wait(self.btok[7], self.btok[8])
        k('s_barrier')
        k.wait(self.btok[9], self.btok[10])
        k('s_barrier')
        k.wait(self.btok[11])
        k('s_barrier')
        stamp(k, st0 + 3)

    def compute(self, own_tok, st0=0):
        k, NST, which, KT = self.k, self.NST, self.which, self.KT
        NG = len(self.groups)
        ABASE = WS_OC if which == 3 else WS_HC
        S_RT, S_CT, S_PAR = 44, 45, 50
        tile35(k, 44, 45, 46)
        self.set_rho(45)
        k('s_mov_b32 s50, 0')
        k(f's_mul_i32 s51, s{S_W4}, 5120')
        k('v_and_b32 v15, 15, v1')
        k('v_lshrrev_b32 v16, 4, v1')
        k('v_bfe_u32 v17, v1, 2, 2')
        k('v_lshl_add_u32 v18, v16, 3, v17')
        k('v_bfe_u32 v20, v1, 4, 1')
        k('v_lshlrev_b32 v20, 2, v20')
        k('v_xor_b32 v19, v18, v20')
        k('v_xor_b32 v22, 4, v19')
        k('v_and_b32 v21, 3, v1')
        RA = 24
        for hf, src in ((0, 19), (1, 22)):
            k(f'v_mul_u32_u24 v{RA+hf}, 160, v{src}')
            k(f'v_lshl_add_u32 v{RA+hf}, v21, 3, v{RA+hf}')
            k(f'v_add_u32 v{RA+hf}, s51, v{RA+hf}')
        QS = 61440
        for q in (1, 2):
            for i in range(2):
                k(f'v_add_u32 v{RA+2*q+i}, {q*QS}, v{RA+i}')
        k('v_lshlrev_b32 v2, 4, v1')
        k('v_lshlrev_b32 v3, 4, v15')
        k('v_lshl_add_u32 v3, v16, 15, v3')
        for tau in range(4):
            k(f's_add_u32 s46, s{S_W4}, {tau}')
            k('s_and_b32 s46, s46, 3')
            k('s_lshl_b32 s46, s46, 8')
            k(f'v_add_u32 v{4+tau}, s46, v3')
        k('s_lshl_b32 s53, s44, 10')
        k(f's_mul_i32 s54, s{S_W4}, {(KT//32)*32768}')
        k('s_add_u32 s53, s53, s54')
        k(f's_add_u32 s53, s53, {ABASE}')
        NW = 5
        AFR = 164
        atok = {}

        def aload(c, st, sreg):
            self.rot(c, st, sreg, 38, 4 * 32768)
            c(f's_add_u32 s{sreg}, s{sreg}, s53')
            t_ = None
            for t in range(4):
                t_ = c(f'buffer_load_dwordx4 {v(AFR+16*(st%NW)+4*t,4)}, v{4+t}, {WSR}, s{sreg} offen sc1')
            return t_
        RES = 244
        k(f's_lshl_b32 s46, s{S_RT}, 6')
        k(f's_lshl_b32 s47, s{S_W4}, 4')
        k('s_add_u32 s46, s46, s47')
        S_TK = 46
        k('v_add_u32 v12, s46, v15')
        if which == 3:
            k('v_mul_u32_u24 v13, 1280, v12')
            k('v_lshl_add_u32 v13, v16, 3, v13')
            k(f's_mul_i32 s47, s{S_CT}, 160')
            k(f's_lshl_b32 s48, s{S_PAR}, 5')
            k('s_add_u32 s48, s48, s47')
            k(f's_lshl_b32 s49, s{S_PAR}, 7')
            k('s_sub_u32 s49, 128, s49')
            k('s_add_u32 s49, s49, s47')
            for jt in range(4):
                k(f'buffer_load_dwordx2 {v(RES+2*jt,2)}, v13, s[{S_X}:{S_X+3}], s48 offen offset:{jt*32}')
            rtk = k(f'buffer_load_dwordx2 {v(RES+8,2)}, v13, s[{S_X}:{S_X+3}], s49 offen')
            tile4(k, 48, 49, 47)
            k('s_lshl_b32 s48, s48, 4')
            k('s_add_u32 s49, s49, s48')
            stamp(k, st0 - 1)
            k('s_barrier')
            rflag_store(k, WS_F3, 49, 8, 9)
            stamp(k, st0)
            if OPT.get('odelay', 0):
                k(f's_sleep {OPT.get("odelay")}')
        else:
            stamp(k, st0)
            k.wait(own_tok)
        stamp(k, st0 + 1)
        ACC, WF = 44, 124
        D = OPT.get('ad', 3)
        for st in range(D):
            atok[st] = aload(k, st, 54)
        rt = {}

        def reads(st):
            base = self.groups[st % NG]
            q, so = base // QS, base % QS
            b = st % 2
            ops = []
            for jt in range(5):
                for hf in range(2):
                    ops.append(lambda jt=jt, hf=hf: rt.__setitem__((st, jt), k(
                        f'ds_read_b64_tr_b16 {v(WF+20*b+4*jt+2*hf,2)}, v{RA+2*q+hf} offset:{so+jt*32}')))
            return ops
        if which == 5:
            k('s_barrier')
        runall(k, reads(0))
        na = D
        for st in range(NST):
            b = st % 2
            R0 = AFR + 16 * (st % NW)
            if which == 5 and OPT.get('p5st') and st >= 1:
                stamp(k, 12 + st)
            k.wait(atok[st])
            check_group(k, range(R0, R0 + 16), 14, lambda c, st=st: aload(c, st, 58))
            if st == 0:
                stamp(k, st0 + 2)
            if which == 5 and OPT.get('p5st') and st >= 1:
                stamp(k, st)
            mf = []
            for t in range(4):
                for jt in range(5):
                    acc = v(ACC + 20 * t + 4 * jt, 4)
                    c = '0' if st == 0 else acc
                    mf.append((lambda jt=jt: [rt[st, jt]],
                               f'v_mfma_f32_16x16x32_bf16 {acc}, {v(WF+20*b+4*jt,4)}, {v(R0+4*t,4)}, {c}'))
            rds = [[] for _ in range(20)]
            cnt = 0
            while na < NST and na <= st + NW - 1 and cnt < 2:
                def al(na=na):
                    self.rot(k, na, 54, 38, 4 * 32768)
                    k('s_add_u32 s54, s54, s53')
                rds[0 + 10 * cnt].append(al)
                for t in range(4):
                    rds[0 + 10 * cnt + 2 * t].append(lambda t=t, na=na: atok.__setitem__(na, k(
                        f'buffer_load_dwordx4 {v(AFR+16*(na%NW)+4*t,4)}, v{4+t}, {WSR}, s54 offen sc1')))
                na += 1
                cnt += 1
            if st + 1 < NST:
                if which == 5 and st in P5_BAR:
                    def bar():
                        k.wait_all(vm=False)
                        k('s_barrier')
                    rds[5].append(bar)
                for i, f in enumerate(reads(st + 1)):
                    rds[5 + i].append(f)
            roll_step(k, mf, rds, [])
        stamp(k, st0 + 3)
        for tau in range(1, 4):
            k(f's_add_u32 s47, s{S_W4}, {tau}')
            k('s_and_b32 s47, s47, 3')
            k('s_mul_i32 s47, s47, 15360')
            k(f'v_add_u32 v{17+tau}, s47, v2')
        k(f's_mul_i32 s47, s{S_W4}, 15360')
        k('v_add_u32 v21, s47, v2')
        if which == 3:
            k('s_barrier')
        for tau in range(1, 4):
            for jt in range(5):
                k(f'ds_write_b128 v{17+tau}, {v(ACC+20*tau+4*jt,4)} offset:{(tau-1)*5120+jt*1024}')
        k.wait_all(vm=False)
        k('s_barrier')
        S0, S1 = ACC, 124
        toks = {}
        for sidx in range(3):
            for jt in range(5):
                toks[sidx, jt] = k(f'ds_read_b128 {v(S1+20*sidx+4*jt,4)}, v21 offset:{sidx*5120+jt*1024}')
        for sidx in range(3):
            for jt in range(5):
                k.wait(toks[sidx, jt])
                for p in range(2):
                    r = 4 * jt + 2 * p
                    k(f'v_pk_add_f32 {v(S0+r,2)}, {v(S0+r,2)}, {v(S1+20*sidx+r,2)}')
        if which == 3:
            k('s_barrier')
            k.wait(rtk)
        stamp(k, st0 + 4)
        PK = 190
        for i in range(10):
            k(f'v_cvt_pk_bf16_f32 v{PK+i}, v{S0+2*i}, v{S0+2*i+1}')
        for i in range(10):
            k(f'v_lshlrev_b32 v{S0+2*i}, 16, v{PK+i}')
            k(f'v_and_b32 v{S0+2*i+1}, 0xffff0000, v{PK+i}')
            k(f'v_lshlrev_b32 v{S1+2*i}, 16, v{RES+i}')
            k(f'v_and_b32 v{S1+2*i+1}, 0xffff0000, v{RES+i}')
            k(f'v_pk_add_f32 {v(S0+2*i,2)}, {v(S0+2*i,2)}, {v(S1+2*i,2)}')
        if which == 3:
            PK = RES
        for i in range(10):
            k(f'v_cvt_pk_bf16_f32 v{PK+i}, v{S0+2*i}, v{S0+2*i+1}')
        if which == 3:
            k('v_lshlrev_b32 v13, 4, v12')
            k('v_lshrrev_b32 v14, 1, v16')
            k('v_lshl_add_u32 v17, v14, 15, v13')
            k('v_and_b32 v14, 1, v16')
            k('v_lshl_add_u32 v18, v14, 16, v17')
            k('v_lshl_add_u32 v13, v14, 3, v17')
            k(f's_mul_i32 s48, s{S_CT}, 10')
            k('s_lshl_b32 s48, s48, 15')
            k(f's_add_u32 s48, s48, {WS_H1}')
            for i in range(8):
                k(f'v_mov_b32 v{200+i}, v{PK+i}')
            for pr in range(2):
                for d in range(2):
                    k(f'v_permlane16_swap_b32 v{200+4*pr+d}, v{200+4*pr+2+d}')
                k(f's_add_u32 s47, s48, {pr*4*32768}')
                k(f'buffer_store_dwordx4 {v(200+4*pr,4)}, v18, {WSR}, s47 offen sc1')
            k(f's_add_u32 s47, s48, {8*32768}')
            k(f'buffer_store_dwordx2 {v(PK+8,2)}, v13, {WSR}, s47 offen sc1')
            k('v_mov_b32 v152, 0')
            k('v_mov_b32 v153, 0')
            k('v_mov_b32 v154, 0x3f803f80')
            for i in range(10):
                k(f'v_dot2_f32_bf16 v152, v{PK+i}, v154, v152')
                k(f'v_dot2_f32_bf16 v153, v{PK+i}, v{PK+i}, v153')
            for r in (152, 153):
                xsum(k, r, 156, 157, 32)
                xsum(k, r, 156, 157, 16)
            k('v_lshlrev_b32 v14, 3, v12')
            k(f's_lshl_b32 s47, s{S_CT}, 14')
            k(f's_add_u32 s47, s47, {WS_HS}')
            k('s_mov_b64 exec, 0xffff')
            self.own = k(f'buffer_store_dwordx2 {v(152,2)}, v14, {WSR}, s47 offen sc1')
            k('s_mov_b64 exec, -1')
        else:
            P = 176
            k(f'v_mul_u32_u24 v13, {P}, v15')
            k('v_lshl_add_u32 v13, v16, 3, v13')
            k(f's_lshl_b32 s47, s{S_W4}, 12')
            k('s_add_u32 s47, s47, 65536')
            k('v_add_u32 v13, s47, v13')
            k(f's_lshl_b32 s48, s{S_PAR}, 5')
            k('v_add_u32 v14, s48, v13')
            k(f's_lshl_b32 s48, s{S_PAR}, 7')
            k('s_sub_u32 s48, 128, s48')
            k('v_add_u32 v13, s48, v13')
            for jt in range(4):
                k(f'ds_write_b64 v14, {v(PK+2*jt,2)} offset:{jt*32}')
            k(f'ds_write_b64 v13, {v(PK+8,2)}')
            k(f's_mul_i32 s48, s{S_CT}, 160')
            k(f's_mul_i32 s49, s{S_TK}, 1280')
            k('s_add_u32 s48, s48, s49')
            for it in range(3):
                k(f'v_add_u32 v17, {64*it}, v1')
                k('v_mul_u32_u24 v18, 6554, v17')
                k('v_lshrrev_b32 v18, 16, v18')
                k('v_mul_u32_u24 v19, 10, v18')
                k('v_sub_u32 v19, v17, v19')
                k(f'v_mul_u32_u24 v20, {P}, v18')
                k('v_lshl_add_u32 v20, v19, 4, v20')
                k(f'v_add_u32 v{160+it}, s47, v20')
                k('v_mul_u32_u24 v20, 1280, v18')
                k(f'v_lshl_add_u32 v{164+it}, v19, 4, v20')
            k.wait_all(vm=False)
            tl = [k(f'ds_read_b128 {v(168+4*it,4)}, v{160+it}') for it in range(3)]
            for it in range(3):
                k.wait(tl[it])
                if it == 2:
                    k('v_cmp_gt_u32 vcc, 32, v1')
                    k('s_mov_b64 exec, vcc')
                k(f'buffer_store_dwordx4 {v(168+4*it,4)}, v{164+it}, s[{S_OUT}:{S_OUT+3}], s48 offen sc1')
            k('s_mov_b64 exec, -1')


def p2_setup(k):
    LK, LV = 102400, 122880
    k(f's_and_b32 s45, s{S_I32}, 3')
    k(f's_lshl_b32 s44, s{S_X8}, 2')
    k('s_add_u32 s45, s45, s44')
    k(f's_lshr_b32 s44, s{S_I32}, 2')
    S_I, S_H = 44, 45
    k(f's_lshl_b32 s46, s{S_I}, 8')
    k('s_sub_u32 s47, s46, 256')
    k('s_max_i32 s47, s47, 0')
    k(f's_cmp_lt_u32 s{S_W4}, 2')
    k('s_cselect_b32 s48, s47, s46')
    k('s_mov_b32 s50, s48')
    k(f's_and_b32 s49, s{S_W4}, 1')
    k('s_lshl_b32 s49, s49, 7')
    k('s_add_u32 s48, s48, s49')
    k('s_lshl_b32 s48, s48, 3')
    k(f's_mul_i32 s49, s{S_H}, {5*16384}')
    k('s_add_u32 s48, s48, s49')
    k(f's_add_u32 s48, s48, {WS_KG}')
    k('v_lshlrev_b32 v2, 4, v1')
    k('s_lshr_b32 s50, s50, 3')
    k('s_mul_i32 s50, s50, 10240')
    k(f's_mul_i32 s49, s{S_H}, 320')
    k('s_add_u32 s50, s50, s49')
    k(f's_add_u32 s50, s50, {WS_VF}')
    k(f's_cmp_lt_u32 s{S_W}, 4')
    k('s_cselect_b32 s48, s48, s50')
    k('s_cselect_b64 s[96:97], -1, 0')
    k(f's_lshl_b32 s49, s{S_W4}, 10')
    k(f's_add_u32 s49, s49, {LK}')
    k(f's_mul_i32 s50, s{S_W4}, 5120')
    k(f's_add_u32 s50, s50, {LV}')
    k(f's_cmp_lt_u32 s{S_W}, 4')
    k('s_cselect_b32 s50, s49, s50')
    k('s_movk_i32 s56, 1024')
    k('s_cselect_b32 s56, 4096, s56')
    k(f's_and_b32 s49, s{S_W4}, 1')
    k('s_mul_i32 s49, s49, 320')
    for n in range(5):
        k(f'v_add_u32 v3, {n*64}, v1')
        k('v_add_u32 v3, s49, v3')
        k('v_mul_u32_u24 v4, 3277, v3')
        k('v_lshrrev_b32 v4, 16, v4')
        k('v_mul_u32_u24 v5, 20, v4')
        k('v_sub_u32 v5, v3, v5')
        k('v_mul_u32_u24 v4, 10240, v4')
        k(f'v_lshl_add_u32 v4, v5, 4, v4')
        k(f'v_add_u32 v5, {n*16384}, v2')
        k(f'v_cndmask_b32 v{6+n}, v4, v5, s[96:97]')
    k('v_and_b32 v12, 31, v1')
    k('v_lshrrev_b32 v13, 5, v1')
    k('v_lshlrev_b32 v14, 3, v12')
    k('v_lshl_add_u32 v15, v13, 15, v14')
    k(f's_lshl_b32 s51, s{S_W}, 5')
    k('s_add_u32 s51, s51, s46')
    S_Q0 = 51
    k('s_lshl_b32 s52, s51, 3')
    k(f's_mul_i32 s49, s{S_H}, {5*16384}')
    k('s_add_u32 s52, s52, s49')
    k(f's_add_u32 s52, s52, {WS_QG}')
    k('s_add_u32 s53, s52, 16384')
    k(f's_add_u32 s54, s52, {4*16384}')
    PM, NM, ONE, QF, KV, OACC, SB0 = 24, 32, 36, 40, 48, 72, 88
    k('v_lshlrev_b32 v3, 2, v13')
    for i in range(16):
        a_, b_ = i // 4, i % 4
        k(f'v_add_u32 v4, {8*a_+b_}, v3')
        k(f'v_cmp_le_u32 s[{64+2*i}:{65+2*i}], v4, v12')
    k('v_mov_b32 v5, 0xffff')
    k('v_mov_b32 v11, 0xffff0000')
    for p in range(8):
        k(f'v_cndmask_b32 v3, 0, v5, s[{64+4*p}:{65+4*p}]')
        k(f'v_cndmask_b32 v4, 0, v11, s[{66+4*p}:{67+4*p}]')
        k(f'v_or_b32 v{PM+p}, v3, v4')
    k('v_cmp_eq_u32 s[96:97], 1, v13')
    k('v_cmp_gt_u32 s[98:99], 20, v12')
    k('v_cmp_eq_u32 s[100:101], 0, v13')
    k(f's_lshl_b32 s49, s{S_W}, 8')
    k(f's_add_u32 s49, s49, {LK}')
    k('v_lshl_add_u32 v16, v13, 13, v14')
    k('v_add_u32 v16, s49, v16')
    k('v_add_u32 v17, s49, v14')
    k(f's_and_b32 s55, s{S_H}, 1')
    S_PI = 55
    k('v_bfe_u32 v3, v12, 3, 1')
    k('v_bfe_u32 v4, v12, 2, 1')
    k('v_and_b32 v5, 3, v12')
    k('v_lshl_add_u32 v18, v3, 2, v5')
    k('v_lshl_add_u32 v18, v4, 3, v18')
    k('s_lshl_b32 s49, s55, 2')
    k('v_add_u32 v18, s49, v18')
    k('s_lshl_b32 s49, s55, 4')
    k('s_sub_u32 s49, 16, s49')
    k('v_add_u32 v19, s49, v5')
    k('v_cmp_gt_u32 vcc, 16, v12')
    k('v_cndmask_b32 v18, v19, v18, vcc')
    k('v_mul_u32_u24 v19, 320, v13')
    k('v_lshl_add_u32 v18, v18, 4, v19')
    k(f's_mul_i32 s49, s{S_W}, 1280')
    k(f's_add_u32 s49, s49, {LV}')
    k('v_add_u32 v18, s49, v18')
    k('v_mov_b32 v19, 0')
    k('v_mov_b32 v4, 0x3f803f80')
    k('v_cmp_eq_u32 vcc, 20, v12')
    k('v_cndmask_b32 v19, v19, v4, vcc')
    k('v_cmp_eq_u32 vcc, 24, v12')
    k('v_cndmask_b32 v19, v19, v4, vcc')
    for b in range(3):
        k(f'v_mov_b32 v{KV+8*b+6}, 0')
        k(f'v_mov_b32 v{KV+8*b+7}, 0')
    k(f'v_mov_b32 v{QF+6}, 0')
    k(f'v_mov_b32 v{QF+7}, 0')
    k(f'v_cndmask_b32 v{ONE}, v4, 0, s[96:97]')
    for i in range(1, 4):
        k(f'v_mov_b32 v{ONE+i}, 0')
        k(f'v_mov_b32 v{NM+i}, 0')
    k('v_and_b32 v3, 15, v1')
    k(f's_mul_i32 s49, s{S_H}, 20')
    k('s_mov_b64 s[46:47], 0')
    for base, isq in ((0, True), (640, False), (1280, False)):
        for e in (0, 19):
            k(f's_add_u32 s60, s49, {base+e}')
            k('s_lshr_b32 s60, s60, 7')
            k('v_cmp_eq_u32 vcc, s60, v3')
            if isq:
                k('s_and_b64 vcc, vcc, s[96:97]')
            k('s_or_b64 s[46:47], s[46:47], vcc')
    k(f's_cmp_eq_u32 s{S_I}, 0')
    k('s_cselect_b32 s46, 0, s46')
    k(f's_lshl_b32 s49, s{S_I}, 7')
    k(f's_lshl_b32 s60, s{S_X8}, 10')
    k('s_add_u32 s49, s49, s60')
    k(f's_add_u32 s49, s49, {WS_F2 - 128}')
    k('v_lshlrev_b32 v3, 2, v1')


def emit_p2(k, g3):
    LK, LV = 102400, 122880
    S_I, S_H, S_Q0, S_PI = 44, 45, 51, 55
    PM, NM, ONE, QF, KV, OACC, SB0 = 24, 32, 36, 40, 48, 72, 88
    wflag_poll(k, 49, 3, 4, 46, 1, True)
    k('s_barrier')
    stamp(k, 12)
    k('s_mov_b32 m0, s50')
    for n in range(5):
        if n:
            k('s_add_u32 m0, m0, s56')
        k(f'buffer_load_dwordx4 v{6+n}, {WSR}, s48 offen sc1 lds')
    k(f'buffer_load_dwordx2 {v(QF,2)}, v15, {WSR}, s52 offen sc1')
    k(f'buffer_load_dwordx2 {v(QF+2,2)}, v15, {WSR}, s53 offen sc1')
    qt = k(f'buffer_load_dwordx2 {v(QF+4,2)}, v14, {WSR}, s54 offen sc1')
    k.wait(qt)
    k(f'v_cndmask_b32 v{QF+4}, v{QF+4}, 0, s[96:97]')
    k(f'v_cndmask_b32 v{QF+5}, v{QF+5}, 0, s[96:97]')
    k('s_barrier')
    if OPT.get('prio', 0):
        k(f's_cmp_ge_u32 s{S_W}, 4')
        k.outline('s_cbranch_scc1', lambda: k('s_setprio 1'))
    stamp(k, 13)
    pf, hc = [], []
    for i in range(4):
        k(f'v_mov_b32 v{244+i}, -1')
    tile4(k, 60, 61, 56)
    k('s_mul_i32 s61, s61, 12')
    k('s_lshl_b32 s61, s61, 15')
    k('s_lshl_b32 s60, s60, 11')
    k('s_add_u32 s56, s61, s60')
    k(f's_add_u32 s56, s56, {WS_HC}')
    for n in range(3):
        k(f's_mul_i32 s60, s{S_W}, 3')
        k(f's_add_u32 s60, s60, {n}')
        k('s_and_b32 s61, s60, 1')
        k('s_lshl_b32 s61, s61, 10')
        k('s_lshr_b32 s60, s60, 1')
        k('s_lshl_b32 s60, s60, 15')
        k('s_add_u32 s60, s60, s61')
        k('s_add_u32 s60, s60, s56')
        k(f'buffer_store_dwordx4 {v(244,4)}, v2, {WSR}, s60 offen sc1')
    if OPT.get('wgu', 2) == 2:
        k(f's_cmp_lt_u32 s{S_W}, 4')
        k.outline('s_cbranch_scc1', lambda: pf_wgu(k, 238, 239))

    def slot(i):
        return SB0 + 16 * i
    krd = {}

    def kreads(j):
        b = j % 3
        krd[j] = [k(f'ds_read_b64 {v(KV+8*b,2)}, v16 offset:{j*256}'),
                  k(f'ds_read_b64 {v(KV+8*b+2,2)}, v16 offset:{4096+j*256}'),
                  k(f'ds_read_b64 {v(KV+8*b+4,2)}, v17 offset:{16384+j*256}')]
    kreads(0)
    kreads(1)
    for j in range(9):
        b = j % 3
        d = v(slot(j), 16)
        k.wait(*krd[j])
        k(f'v_mfma_f32_32x32x16_bf16 {d}, {v(KV+8*b,4)}, {v(QF,4)}, 0')
        if j + 2 < 9:
            kreads(j + 2)
        k(f'v_mfma_f32_32x32x16_bf16 {d}, {v(KV+8*b+4,4)}, {v(QF+4,4)}, {d}')
    stamp(k, 14)
    lab = k.newlabel('P2_FIX')
    k(f's_cmp_lg_u32 s{S_I}, 0')
    k(f's_cbranch_scc1 {lab}')
    for jj in range(8):
        k(f's_cmp_ge_u32 s{S_W}, {8-jj}')
        k(f's_cbranch_scc1 {lab}')
        for i in range(16):
            k(f'v_mov_b32 v{slot(jj)+i}, {f32(-1e30)}')
    k.label(lab)
    for i in range(16):
        k(f'v_mov_b32 v{KV+i}, v19')
    M0, M1 = 20, 21
    ops = []
    regs = [slot(jj) + i for jj in (1, 2, 3, 4, 5, 6, 7, 0) for i in range(16)]
    for i in range(16):
        ops.append(f'v_cndmask_b32 v{slot(0)+i}, v{slot(0)+i}, v{slot(8)+i}, s[{64+2*i}:{65+2*i}]')
    ops += [f'v_max3_f32 v{M0}, v{regs[0]}, v{regs[1]}, v{regs[2]}',
            f'v_max3_f32 v{M1}, v{regs[3]}, v{regs[4]}, v{regs[5]}']
    i, t = 6, 0
    while i < 128:
        m = M0 if t % 2 == 0 else M1
        ops.append(f'v_max3_f32 v{m}, v{m}, v{regs[i]}, v{regs[i+1]}')
        i += 2
        t += 1
    ops += [f'v_max_f32 v{M0}, v{M0}, v{M1}',
            f'v_mov_b32 v{M1}, v{M0}',
            f'v_permlane32_swap_b32 v{M0}, v{M1}',
            f'v_max_f32 v{M0}, v{M0}, v{M1}',
            f'v_sub_f32 v{M0}, 0, v{M0}',
            f'v_cvt_pk_bf16_f32 v{M1}, v{M0}, v{M0}',
            f'v_lshlrev_b32 v{M1}, 16, v{M1}',
            f'v_sub_f32 v{M1}, v{M0}, v{M1}',
            f'v_cvt_pk_bf16_f32 v{NM}, v{M0}, v{M1}',
            f'v_cndmask_b32 v{NM}, v{NM}, 0, s[96:97]']
    spread(k, ops, pf[:2])
    pf = pf[2:]
    stamp(k, 15)
    vrd = {}
    nbuf = [0]

    def vreads(jkey):
        toks, bufs = [], []
        k('s_mov_b64 exec, s[98:99]')
        for m in range(2):
            bi = nbuf[0] % 4
            nbuf[0] += 1
            bufs.append(bi)
            toks.append(k(f'ds_read_b128 {v(KV+4*bi,4)}, v18 offset:{jkey*1280+m*640}'))
        k('s_mov_b64 exec, -1')
        vrd[jkey] = (toks, bufs)
    first = [True]
    oacc = v(OACC, 16)

    def pv_ops(jkey, preg):
        o = []
        for m in range(2):
            def f(m=m):
                toks, bufs = vrd[jkey]
                k.wait(toks[m])
                c = '0' if first[0] else oacc
                first[0] = False
                k(f'v_mfma_f32_32x32x16_bf16 {oacc}, {v(KV+4*bufs[m],4)}, {v(preg+4*m,4)}, {c}')
            o.append(f)
        return o

    def sub_op(jb):
        d = v(slot(jb), 16)
        return f'v_mfma_f32_32x32x16_bf16 {d}, {v(ONE,4)}, {v(NM,4)}, {d}'
    order = [1, 2, 3, 4, 5, 6, 7, 0]
    k(sub_op(order[0]))
    k(sub_op(order[1]))
    vreads(order[0])
    for n, jb in enumerate(order):
        base = slot(jb)
        val = [f'v_exp_f32 v{base+i}, v{base+i}' for i in range(16)]
        val += [f'v_cvt_pk_bf16_f32 v{base+p}, v{base+2*p}, v{base+2*p+1}' for p in range(8)]
        if jb == 0:
            val += [f'v_and_b32 v{base+8+p}, v{PM+p}, v{base+p}' for p in range(8)]
            val += [f'v_bfi_b32 v{base+p}, v{PM+p}, 0, v{base+p}' for p in range(8)]
        side = []
        if n >= 1:
            side += pv_ops(order[n - 1], slot(order[n - 1]))
        nxt = order[n + 1] if n + 1 < 8 else 8
        side.append(lambda nxt=nxt: vreads(nxt))
        if n + 2 < 8:
            side.append(sub_op(order[n + 2]))
        if pf:
            side.append(pf.pop(0))
        if hc and (n % 2 == 1 or OPT.get('wgulate')):
            side.insert(1, hc.pop(0))
        if OPT.get('wgulate') and pf:
            side.append(pf.pop(0))
        spread(k, val, side)
    tail = pv_ops(0, slot(0)) + pv_ops(8, slot(0) + 8)
    addr = [f's_lshr_b32 s49, s{S_H}, 1', 's_mul_i32 s49, s49, 5', f's_mul_i32 s52, s{S_PI}, 3',
            's_add_u32 s52, s52, s49', 's_lshl_b32 s52, s52, 15', f's_add_u32 s52, s52, {WS_OC}',
            f's_lshl_b32 s53, s{S_Q0}, 4', 's_add_u32 s52, s52, s53', 's_add_u32 s54, s49, 2',
            's_lshl_b32 s54, s54, 15', f's_add_u32 s54, s54, {WS_OC}', 's_add_u32 s54, s54, s53',
            f's_lshl_b32 s49, s{S_PI}, 3', 's_add_u32 s54, s54, s49', 'v_lshlrev_b32 v22, 4, v12',
            'v_lshl_add_u32 v23, v13, 15, v22']
    ftok = flags_issue(k, WS_F2, 240, 237)
    spread(k, addr, tail)
    stamp(k, 18)
    T = OACC
    k(f'v_cndmask_b32 v{T+13}, v{T+12}, v{T+8}, s[96:97]')
    k(f'v_rcp_f32 v{T+14}, v{T+13}')
    for p in range(6):
        k(f'v_pk_mul_f32 {v(T+2*p,2)}, {v(T+2*p,2)}, {v(T+14,2)} op_sel_hi:[1,0]')
    for p in range(6):
        k(f'v_cvt_pk_bf16_f32 v{104+p}, v{T+2*p}, v{T+2*p+1}')
    k(f'buffer_store_dwordx4 {v(104,4)}, v23, {WSR}, s52 offen sc1')
    k('s_mov_b64 exec, s[100:101]')
    own = k(f'buffer_store_dwordx2 {v(108,2)}, v22, {WSR}, s54 offen sc1')
    k('s_mov_b64 exec, -1')
    k.wait_all(vm=False)
    k('s_setprio 0')
    flags_check(k, WS_F2, 240, 237, ftok)
    return own


class P4:
    BS = [102400, 126976, 0, 24576, 49152, 73728]

    def __init__(self, k):
        self.k = k
        self.stok = {}
        self.rtok = {}
        self.VB = 2

    def setup_dma(self, t0):
        k = self.k
        VB = self.VB
        tile4(k, 61, 60, 68)
        k('s_mul_i32 s76, s60, %d' % OPT.get('rot4', 3))
        k('s_add_u32 s76, s76, s61')
        k('s_mul_i32 s77, s76, 6554')
        k('s_lshr_b32 s77, s77, 16')
        k('s_mul_i32 s77, s77, 10')
        k('s_sub_u32 s76, s76, s77')
        k(f's_cmp_lt_u32 s{S_W4}, 2')
        k(f's_cselect_b32 s64, s{S_WG}, s{S_WU}')
        k(f's_cselect_b32 s65, s{S_WG+1}, s{S_WU+1}')
        k('s_mov_b32 s66, 1966080')
        k('s_mov_b32 s67, 0x00020000')
        k(f's_and_b32 s61, s{S_W4}, 1')
        k(f's_mul_i32 s61, s61, {32*3072}')
        k('s_mul_i32 s60, s60, 192')
        k('s_add_u32 s60, s60, s61')
        for n in range(3):
            k(f'v_add_u32 v{t0}, {n*64}, v1')
            k(f'v_mul_u32_u24 v{t0+1}, 5462, v{t0}')
            k(f'v_lshrrev_b32 v{t0+1}, 16, v{t0+1}')
            k(f'v_mul_u32_u24 v{t0+2}, 12, v{t0+1}')
            k(f'v_sub_u32 v{t0+2}, v{t0}, v{t0+2}')
            k(f'v_mul_u32_u24 v{t0+1}, 3072, v{t0+1}')
            k(f'v_lshl_add_u32 v{VB+n}, v{t0+2}, 4, v{t0+1}')
            k(f'v_add_u32 v{VB+n}, s60, v{VB+n}')
            if n:
                k(f'v_subrev_u32 v{VB+n}, {n*1024}, v{VB+n}')
        k(f's_mul_i32 s68, s{S_W4}, 6144')

    def sig(self, c, st, sreg, stmp):
        c(f's_add_u32 s{sreg}, s76, {st}')
        c(f's_sub_u32 s{stmp}, s{sreg}, 10')
        c(f's_cmp_ge_u32 s{sreg}, 10')
        c(f's_cselect_b32 s{sreg}, s{stmp}, s{sreg}')

    def dma_stage(self, st):
        k = self.k
        base = self.BS[st % 6]
        self.sig(k, st, 69, 77)
        k(f's_mul_i32 s69, s69, {64*3072}')
        for per in range(2):
            k(f's_add_u32 m0, s68, {base+per*3072}')
            if per:
                k(f's_add_u32 s69, s69, {16*3072}')
            for n in range(3):
                self.stok[st] = k(f'buffer_load_dwordx4 v{self.VB+n}, s[64:67], s69 offen offset:{n*1024} lds')

    BR = 124

    def breg_load(self, st):
        k = self.k
        r0 = self.BR + 24 * (st - 6)
        self.sig(k, st, 69, 77)
        k(f's_mul_i32 s69, s69, {64*3072}')
        for per in range(2):
            if per:
                k(f's_add_u32 s69, s69, {16*3072}')
            for n in range(3):
                self.rtok[st] = k(f'buffer_load_dwordx4 {v(r0+12*per+4*n,4)}, v{self.VB+n}, s[64:67], s69 offen offset:{n*1024}')

    def breg_write(self, st):
        k = self.k
        r0 = self.BR + 24 * (st - 6)
        base = self.BS[st % 6]
        reg, off = (47, base - 102400) if base >= 102400 else (46, base)
        assert off + 6144 < 65536
        k.wait(self.rtok[st])
        for i in range(6):
            self.stok[st] = k(f'ds_write_b128 v{reg}, {v(r0+4*i,4)} offset:{off+i*1024}')

    def pre_colsum(self):
        k = self.k
        CA = 60
        k('v_lshlrev_b32 v46, 4, v1')
        k('v_add_u32 v46, s68, v46')
        k('v_add_u32 v47, 102400, v46')
        k.wait(self.stok[0])
        tk = [k(f'ds_read_b128 {v(84+4*i,4)}, v47 offset:{i*1024}') for i in range(6)]
        for n in range(3):
            k.wait(tk[n], tk[n + 3])
            for p in range(4):
                k(f'v_lshlrev_b32 v{CA+8*n+2*p}, 16, v{84+4*n+p}')
                k(f'v_and_b32 v{CA+8*n+2*p+1}, 0xffff0000, v{84+4*n+p}')
                k(f'v_lshlrev_b32 v{28+2*(p%2)}, 16, v{96+4*n+p}')
                k(f'v_and_b32 v{29+2*(p%2)}, 0xffff0000, v{96+4*n+p}')
                k(f'v_pk_add_f32 {v(CA+8*n+2*p,2)}, {v(CA+8*n+2*p,2)}, {v(28+2*(p%2),2)}')

    def pre_colsum_write(self):
        k = self.k
        CA = 60
        k('v_lshlrev_b32 v16, 5, v1')
        k('v_add_u32 v16, s68, v16')
        k('v_add_u32 v16, 73728, v16')
        for n in range(3):
            k(f'ds_write_b128 v16, {v(CA+8*n,4)} offset:{n*2048}')
            k(f'ds_write_b128 v16, {v(CA+8*n+4,4)} offset:{n*2048+16}')
        k.wait_all(vm=False)

    def loader_setup(self, g5):
        k = self.k
        tile4(k, 44, 45, 46)
        g5.dma_setup(40)
        k('v_cmp_le_u32 vcc, 96, v0')
        k(f'v_mov_b32 v16, {12288-384}')
        k('v_cndmask_b32 v17, 0, v16, vcc')
        k('v_lshl_add_u32 v17, v0, 2, v17')
        k('v_add_u32 v17, 73728, v17')
        k(f'v_mov_b32 v16, {6144-384}')
        k('v_cndmask_b32 v18, 0, v16, vcc')
        k('v_lshl_add_u32 v18, v0, 2, v18')
        k('v_cmp_gt_u32 vcc, 192, v0')
        k('v_cndmask_b32 v19, 0, v18, vcc')
        k(f'v_mov_b32 v16, {OOB}')
        k('v_cndmask_b32 v18, v16, v18, vcc')
        k('s_mul_i32 s51, s45, 384')
        k(f's_add_u32 s51, s51, {WS_PCS}')
        k('s_mul_i32 s52, s44, 12288')
        k('s_add_u32 s52, s52, s51')
        k(f's_mov_b32 s47, {OOB}')
        k('s_cmp_lt_u32 s44, 10')
        k('s_cselect_b32 s52, s52, s47')

    def colsum_reduce(self):
        k = self.k
        rr = list(range(84, 116))
        for half in range(4):
            tk = []
            for r in range(8):
                x = (half % 2) * 8 + r
                tk.append(k(f'ds_read_b32 v{rr[8*half+r]}, v17 offset:{x*384+(half//2)*6144}'))
            k.wait(*tk)
        for stp in (16, 8, 4, 2, 1):
            for i in range(stp):
                k(f'v_add_f32 v{rr[i]}, v{rr[i]}, v{rr[i+stp]}')
        k(f'buffer_store_dword v{rr[0]}, v18, {WSR}, s52 offen sc1')

    def loader(self, g5):
        k = self.k

        def gather(c):
            t = None
            for r in range(10):
                c(f's_add_u32 s58, s51, {r*12288}')
                t = c(f'buffer_load_dword v{24+r}, v19, {WSR}, s58 offen sc1')
            return t
        T = {}
        g5regs = {2 + i: 60 + 20 * i for i in range(9)}
        k('v_lshlrev_b32 v12, 4, v1')
        k(f's_mul_i32 s46, s{S_W4}, 5120')
        k('v_add_u32 v21, s46, v12')
        k('v_add_u32 v22, 61440, v21')
        k('v_add_u32 v23, 122880, v21')
        for st in range(7):
            k.wait(self.stok[st])
            if st == 6:
                k.wait(self.stok[9])
            k.wait_all(vm=False)
            k('s_barrier')
            if st == 0:
                stamp(k, 32)
                self.colsum_reduce()
            if st == 1:
                self.dma_stage(5)
            if 1 <= st <= 4:
                self.dma_stage(st + 5)
            if st == 4:
                T['g'] = gather(k)
                pf_wd(k, 36, 37)
            if st == 5:
                k.wait(T['g'])
                check_group(k, range(24, 34), 11, gather, slp=8)
                for r in range(1, 10):
                    k(f'v_add_f32 v24, v24, v{24+r}')
                k('v_lshlrev_b32 v16, 2, v0')
                k(f'v_add_u32 v16, {XCH}, v16')
                k('ds_write_b32 v16, v24')
        stamp(k, 36)
        runall(k, g5.dma_step(0))
        runall(k, g5.dma_step(1))
        NR1 = OPT.get('nr1', 6)
        for s5 in range(2, 2 + NR1):
            g5.breg_load(s5, g5regs[s5])
        stamp(k, 38)
        cnt_wait(k, 38, 39, 1, 4, bound=200000)
        for s5 in range(2, 7):
            g5.breg_write(s5, 21)
        for s5 in range(2 + NR1, 11):
            g5.breg_load(s5, g5regs[s5])
        stamp(k, 39)

    def compute(self, own_tok):
        k = self.k
        tile4(k, 44, 45, 46)
        S_MT, S_FT, S_TOK = 44, 45, 46
        k('s_lshl_b32 s46, s44, 7')
        k(f's_lshl_b32 s47, s{S_W4}, 5')
        k('s_add_u32 s46, s46, s47')
        k('v_and_b32 v13, 31, v1')
        k('v_lshrrev_b32 v14, 5, v1')
        k('v_lshlrev_b32 v5, 4, v13')
        k('v_lshl_add_u32 v5, v14, 15, v5')
        k('v_bfe_u32 v15, v1, 2, 2')
        k('v_lshl_add_u32 v15, v14, 3, v15')
        k('v_mul_u32_u24 v15, 192, v15')
        k('v_bfe_u32 v16, v1, 4, 1')
        k('v_lshl_add_u32 v15, v16, 5, v15')
        k('v_and_b32 v16, 1, v1')
        k('v_lshl_add_u32 v15, v16, 4, v15')
        k('v_bfe_u32 v16, v1, 1, 1')
        k('v_lshl_add_u32 v6, v16, 3, v15')
        k('v_add_u32 v7, 49152, v6')
        k('v_add_u32 v8, 102400, v6')
        rbase = {0: (6, 0), 24576: (6, 24576), 49152: (7, 0), 73728: (7, 24576), 102400: (8, 0), 126976: (8, 24576)}
        k('s_mul_i32 s76, s45, %d' % OPT.get('rot4', 3))
        k('s_add_u32 s76, s76, s44')
        k('s_mul_i32 s77, s76, 6554')
        k('s_lshr_b32 s77, s77, 16')
        k('s_mul_i32 s77, s77, 10')
        k('s_sub_u32 s76, s76, s77')
        k('s_lshl_b32 s50, s46, 4')
        k(f's_add_u32 s50, s50, {WS_H1}')
        AFR = 180
        atok = {}

        def abase(c, st, sreg, stmp):
            self.sig(c, st, sreg, stmp)
            c(f's_lshl_b32 s{sreg}, s{sreg}, 18')
            c(f's_add_u32 s{sreg}, s{sreg}, s50')

        def aone(c, st, ks, sreg):
            if ks:
                c(f's_add_u32 s{sreg}, s{sreg}, 65536')
            return c(f'buffer_load_dwordx4 {v(AFR+16*(st%4)+4*ks,4)}, v5, {WSR}, s{sreg} offen sc1')

        def astage(c, st, sreg, stmp):
            abase(c, st, sreg, stmp)
            t = None
            for ks in range(4):
                t = aone(c, st, ks, sreg)
            return t
        k('v_lshlrev_b32 v9, 3, v13')
        k('v_lshl_add_u32 v9, v14, 16, v9')
        k(f's_lshl_b32 s51, s{S_TOK}, 3')
        k(f's_add_u32 s51, s51, {WS_HS}')
        HSR = 20

        def hsload(c):
            t = None
            for n in range(4):
                c(f's_add_u32 s58, s51, {n*16384}')
                t = c(f'buffer_load_dwordx2 {v(HSR+2*n,2)}, v9, {WSR}, s58 offen sc1')
            return t
        k('v_lshlrev_b32 v10, 5, v14')
        k(f'v_add_u32 v10, {XCH}, v10')
        ACC, WF = 36, 132

        def csload(p, base):
            t = None
            for mtx in range(2):
                for q in range(4):
                    off = mtx * 384 + p * 128 + (q // 2) * 64 + (q % 2) * 16
                    t = k(f'ds_read_b128 {v(base+16*mtx+4*q,4)}, v10 offset:{off}')
            return t
        rt = {}

        def reads(kk):
            st, ks = kk // 4, kk % 4
            reg, so = rbase[self.BS[st % 6]]
            b = kk % 2
            ops = [[] for _ in range(6)]
            for j in range(6):
                for hf in range(2):
                    off = so + (j // 3) * 12288 + ks * 3072 + hf * 768 + (j % 3) * 64
                    ops[j].append(lambda j=j, hf=hf, off=off: rt.__setitem__((kk, j), k(
                        f'ds_read_b64_tr_b16 {v(WF+24*b+4*j+2*hf,2)}, v{reg} offset:{off}')))
            return ops
        T = {}

        def stats():
            k.wait(T['hs'])
            check_group(k, range(HSR, HSR + 8), 11, hsload)
            for n in range(1, 4):
                k(f'v_pk_add_f32 {v(HSR,2)}, {v(HSR,2)}, {v(HSR+2*n,2)}')
            VSUM, VSQ = HSR, HSR + 1
            xsum(k, VSUM, 24, 25)
            xsum(k, VSQ, 24, 25)
            k(f'v_mul_f32 v{VSUM}, {f32(1.0/640)}, v{VSUM}')
            k(f'v_mul_f32 v{VSQ}, {f32(1.0/640)}, v{VSQ}')
            k(f'v_fma_f32 v{VSQ}, -v{VSUM}, v{VSUM}, v{VSQ}')
            k(f'v_max_f32 v{VSQ}, 0, v{VSQ}')
            rbf(k, 24, VSUM)
            k('v_sub_f32 v26, 0, v24')
            rbf(k, 25, VSQ)
            k(f'v_add_f32 v25, {f32(1e-5)}, v25')
            rbf(k, 25, 25)
            k('v_sqrt_f32 v25, v25')
            rbf(k, 25, 25)
            k('v_rcp_f32 v28, v25')
            k('v_mul_f32 v30, v25, v25')
        stamp(k, 30)
        k.wait(own_tok)
        stamp(k, 31)
        for st in range(3):
            atok[st] = astage(k, st, 49, 48)
        k('s_barrier')
        for l_ in reads(0):
            runall(k, l_)
        for kk in range(40):
            b = kk % 2
            st, ks = kk // 4, kk % 4
            R0 = AFR + 16 * (st % 4)
            if kk % 8 == 4:
                stamp(k, 33 + kk // 8)
            if ks == 0:
                k.wait(atok[st])
                check_group(k, range(R0, R0 + 16), 11, lambda c, st=st: astage(c, st, 58, 59))
                if kk == 0:
                    stamp(k, 32)
            fill, rds = [], []
            if st + 3 < 10:
                def al(st=st, ks=ks):
                    if ks == 0:
                        abase(k, st + 3, 49, 48)
                    atok[st + 3] = aone(k, st + 3, ks, 49)
                fill.append(al)
            if kk + 1 < 40:
                if (kk + 1) % 4 == 0 and kk < 24:
                    k.wait_all(vm=False)
                    k('s_barrier')
                rds = reads(kk + 1)
            else:
                k.wait_all(vm=False)
                k('v_mov_b32 v2, 1')
                k(f'v_mov_b32 v3, {XCNT+4}')
                k('s_mov_b64 exec, 1')
                k('ds_add_u32 v3, v2')
                k('s_mov_b64 exec, -1')
            if kk == 28:
                fill.append(lambda: T.__setitem__('hs', hsload(k)))
            if kk == 39:
                fill.append(lambda: T.__setitem__('f3', flags_issue(k, WS_F3, 16, 12)))
            if kk == 39:
                fill.append(lambda: T.__setitem__(('cs', 0), csload(0, 212)))
            if kk == 37:
                fill.append(stats)
            mf = []
            for j in range(6):
                acc = v(ACC + 16 * j, 16)
                c = '0' if kk == 0 else acc
                mf.append((lambda j=j: [rt[kk, j]],
                           f'v_mfma_f32_32x32x16_bf16 {acc}, {v(WF+24*b+4*j,4)}, {v(R0+4*ks,4)}, {c}'))
            roll_step(k, mf, rds, fill)
        stamp(k, 38)
        T['cs', 1] = csload(1, 132)
        c0 = -2.0 * math.sqrt(2.0 / math.pi) * math.log2(math.e)
        c1 = c0 * 0.044715
        k(f'v_mov_b32 v32, {f32(c0)}')
        k(f'v_mov_b32 v34, {f32(c1)}')
        k(f's_mul_i32 s54, s{S_FT}, {12*32768}')
        k(f's_lshl_b32 s55, s{S_TOK}, 4')
        k('s_add_u32 s54, s54, s55')
        k(f's_add_u32 s54, s54, {WS_HC}')
        T_, O = 164, 180
        csb = {0: 212, 1: 132, 2: 212}
        for p in range(3):
            G, U, CS = ACC + 16 * p, ACC + 16 * (3 + p), csb[p]
            k.wait(T['cs', p])
            for q in range(8):
                g2, u2 = v(G + 2 * q, 2), v(U + 2 * q, 2)
                k(f'v_pk_fma_f32 {g2}, {v(CS+2*q,2)}, {v(26,2)}, {g2} op_sel_hi:[1,0,1]')
                k(f'v_pk_fma_f32 {u2}, {v(CS+16+2*q,2)}, {v(26,2)}, {u2} op_sel_hi:[1,0,1]')
            if p == 0:
                T['cs', 2] = csload(2, 212)
            for q in range(8):
                g2, u2, t2 = v(G + 2 * q, 2), v(U + 2 * q, 2), v(T_ + 2 * q, 2)
                k(f'v_pk_mul_f32 {u2}, {u2}, {g2}')
                k(f'v_pk_mul_f32 {g2}, {g2}, {v(28,2)} op_sel_hi:[1,0]')
                k(f'v_pk_mul_f32 {t2}, {g2}, {g2}')
                k(f'v_pk_fma_f32 {t2}, {t2}, {v(34,2)}, {v(32,2)} op_sel_hi:[1,0,0]')
                k(f'v_pk_mul_f32 {t2}, {t2}, {g2}')
            for i in range(16):
                k(f'v_exp_f32 v{T_+i}, v{T_+i}')
            for q in range(8):
                t2 = v(T_ + 2 * q, 2)
                k(f'v_pk_fma_f32 {t2}, {t2}, {v(30,2)}, {v(30,2)} op_sel_hi:[1,0,0]')
            for i in range(16):
                k(f'v_rcp_f32 v{T_+i}, v{T_+i}')
            for q in range(8):
                k(f'v_pk_mul_f32 {v(U+2*q,2)}, {v(U+2*q,2)}, {v(T_+2*q,2)}')
            for q in range(8):
                k(f'v_cvt_pk_bf16_f32 v{O+8*(p%2)+q}, v{U+2*q}, v{U+2*q+1}')
            for hf2 in range(2):
                k(f's_add_u32 s55, s54, {(4*p+2*hf2)*32768}')
                self.own = k(f'buffer_store_dwordx4 {v(O+8*(p%2)+4*hf2,4)}, v5, {WSR}, s55 offen sc1')
        flags_check(k, WS_F3, 16, 12, T['f3'])
        stamp(k, 39)


def colsum_strip(k):
    lab = k.newlabel('CS_SKIP')
    k(f's_cmp_lg_u32 s{S_W4}, 0')
    k(f's_cbranch_scc1 {lab}')
    k(f's_cmp_ge_u32 s{S_I32}, 12')
    k(f's_cbranch_scc1 {lab}')
    sn = k.snap()
    k(f's_and_b32 s60, s{S_X8}, 1')
    k('s_cmp_eq_u32 s60, 0')
    k(f's_cselect_b32 s72, s{S_WG}, s{S_WU}')
    k(f's_cselect_b32 s73, s{S_WG+1}, s{S_WU+1}')
    k('s_mov_b32 s74, 1966080')
    k('s_mov_b32 s75, 0x00020000')
    k(f's_lshr_b32 s60, s{S_X8}, 1')
    k('s_mul_i32 s60, s60, 768')
    k(f's_lshl_b32 s61, s{S_I32}, 6')
    k('s_add_u32 s60, s60, s61')
    k('v_lshrrev_b32 v40, 2, v1')
    k('v_mul_u32_u24 v40, 3072, v40')
    k('v_and_b32 v41, 3, v1')
    k('v_lshl_add_u32 v40, v41, 4, v40')
    k('v_add_u32 v40, s60, v40')
    tk = []
    for n in range(40):
        k(f's_mov_b32 s61, {n*16*3072}')
        tk.append(k(f'buffer_load_dwordx4 {v(60+4*n,4)}, v40, s[72:75], s61 offen'))
    for i in range(8):
        k(f'v_mov_b32 v{44+i}, 0')
    for n in range(40):
        k.wait(tk[n])
        for p in range(4):
            k(f'v_lshlrev_b32 v{52+2*(p%2)}, 16, v{60+4*n+p}')
            k(f'v_and_b32 v{53+2*(p%2)}, 0xffff0000, v{60+4*n+p}')
            k(f'v_pk_add_f32 {v(44+2*p,2)}, {v(44+2*p,2)}, {v(52+2*(p%2),2)}')
    for i in range(8):
        xsum(k, 44 + i, 56, 57, 32)
        xsum(k, 44 + i, 56, 57, 16)
        k(f'v_add_f32_dpp v{44+i}, v{44+i}, v{44+i} row_ror:8 row_mask:0xf bank_mask:0xf')
        k(f'v_add_f32_dpp v{44+i}, v{44+i}, v{44+i} row_ror:4 row_mask:0xf bank_mask:0xf')
    strip_id(k, 60)
    k('s_lshl_b32 s60, s60, 2')
    k(f's_add_u32 s60, s60, {WS_CS}')
    k('v_lshlrev_b32 v41, 5, v41')
    k('s_mov_b64 exec, 0xf')
    k(f'buffer_store_dwordx4 {v(44,4)}, v41, {WSR}, s60 offen sc1')
    k(f'buffer_store_dwordx4 {v(48,4)}, v41, {WSR}, s60 offen offset:16 sc1')
    k('s_mov_b64 exec, -1')
    k.wait_all()
    k.restore(sn)
    k.label(lab)


def build():
    k = K()
    name = NAME + '_kernel'
    k.realend = 'K_END'
    k.raw('.p2align 8')
    k.raw(f'.globl {name}')
    k.raw(f'.type {name},@function')
    k.raw(f'{name}:')
    prologue(k)
    if STAMPS:
        k('v_writelane_b32 v255, s84, 60')
    if OPT.get('empty'):
        k('s_branch K_END')
    stamp(k, 0)
    g3 = G35(k, 3, [0, 20480, 40960, 61440, 81920], 232, 0)
    g5 = G35(k, 5, [49152, 69632, 90112, 110592, 131072, 0, 20480], 54, 70)
    p4 = P4(k)
    A3 = [102400, 118784, 135168]
    A5 = [61440, 77824, 143360]
    lab_l1, lab_p2, lab_l3, lab_fin = (k.newlabel(x) for x in ('L1', 'P2', 'L3', 'FIN'))
    k(f's_cmp_ge_u32 s{S_W}, 4')
    k(f's_cbranch_scc1 {lab_l1}')
    sn = k.snap()
    p1_compute(k)
    join(k)
    if OPT.get('wgu', 2) == 1:
        pf_wgu(k, 238, 239, 128)
    p2_setup(k)
    k(f's_branch {lab_p2}')
    k.label(lab_l1)
    k.restore(sn)
    p1_loader(k, g3)
    k.label(lab_p2)
    join(k)
    for st in range(5):
        g3.btok[st] = ('vm', 0)
    own = emit_p2(k, g3)
    k(f's_cmp_ge_u32 s{S_W}, 4')
    k(f's_cbranch_scc1 {lab_l3}')
    sn = k.snap()
    g3.compute(own, st0=20)
    p4.compute(g3.own)
    if not OPT.get('nop5'):
        g5.compute(p4.own, st0=40)
    k(f's_branch {lab_fin}')
    k.label(lab_l3)
    k.restore(sn)
    k('s_barrier')
    if OPT.get('wguL', 0):
        pf_wgu(k, 36, 37)
    p4.setup_dma(56)
    p4.dma_stage(0)
    p4.dma_stage(1)
    p4.loader_setup(g5)
    p4.pre_colsum()
    stamp(k, 23)
    k('s_barrier')
    k('s_barrier')
    k('s_barrier')
    stamp(k, 24)
    p4.dma_stage(2)
    p4.dma_stage(3)
    p4.dma_stage(4)
    p4.pre_colsum_write()
    stamp(k, 30)
    p4.loader(g5)
    if not OPT.get('nop5'):
        g5.loader(7, st0=40)
        k('s_barrier')
    k.label(lab_fin)
    join(k)
    stamp(k, 50)
    if STAMPS:
        k.wait_all()
        stamp(k, 51)
    stamp_flush(k)
    k.label(k.realend)
    k('s_endpgm')
    c = K()
    for f in k.cold:
        f(c)
    desc = f'''.section .rodata,"a"
.p2align 6
.amdhsa_kernel {name}
  .amdhsa_next_free_vgpr 256
  .amdhsa_next_free_sgpr 102
  .amdhsa_accum_offset 256
  .amdhsa_group_segment_fixed_size 0
  .amdhsa_kernarg_size 80
  .amdhsa_user_sgpr_count 2
  .amdhsa_user_sgpr_kernarg_segment_ptr 1
  .amdhsa_system_sgpr_workgroup_id_x 1
.end_amdhsa_kernel
'''
    return k.render() + c.render() + 'CODE_END:\n' + desc


def main():
    global STAMPS
    STAMPS = 'stamps' in sys.argv
    for a_ in sys.argv[2:]:
        if '=' in a_:
            kk, vv = a_.split('=')
            OPT[kk] = int(vv)
    head = open('cdna_kernels/%s.s.ref' % NAME).read().split('\n')
    hdr = [l for l in head if l.startswith(';') and '@launch' not in l and 'Override launch' not in l and 'grid=ceil' not in l]
    out = '\n'.join(hdr) + '\n'
    out += '; @launch grid=(256,1,1) block=(512,1,1) lds=163840\n'
    out += '.amdgcn_target "amdgcn-amd-amdhsa--gfx950"\n.text\n'
    out += build()
    path = sys.argv[1] if len(sys.argv) > 1 else 'cdna_kernels/%s.s' % NAME
    open(path, 'w').write(out)
    print('wrote', path, len(out), 'bytes')


if __name__ == '__main__':
    main()
```

```python
import math
import struct
import sys
from asmlib import K, v, a, s

NAME = 'sequential_preLN__sliding_block__glu_gated_geglu__prompt'

WS_QG = 0x0000000
WS_KG = 0x0280000
WS_VF = 0x0500000
WS_OC = 0x0780000
WS_H1 = 0x0A00000
WS_HC = 0x0C80000
WS_CS = 0x1280000
WS_F2 = 0x1288000
WS_F3 = 0x128A000
WS_F0 = 0x128C000
WS_PC = 0x1290000
WS_PS = 0x12A8000
WS_HS = 0x12D0000
WS_PCS = 0x1340000
WS_ST = 0x1300000
WS_SIZE = 0x1400000
OOB = 0x40000000

S_X, S_WQKV, S_WO, S_WG, S_WU, S_WD, S_OUT, S_WS, S_DBG = 4, 8, 12, 16, 20, 24, 28, 32, 36
S_NONCE = 3
S_W, S_X8, S_I32, S_W4 = 40, 41, 42, 43
S_BUD = 57
WSR = f's[{S_WS}:{S_WS+3}]'
OPT = {}
STAMPS = False
XCH = 159744
XNONCE = XCH + 3072
XCNT = XCH + 3080


def f32(x):
    return '0x%08x' % struct.unpack('<I', struct.pack('<f', x))[0]


def stamp(k, i):
    if not STAMPS:
        return
    k('s_memtime s[62:63]')
    k.wait_all(vm=False)
    k(f'v_writelane_b32 v255, s62, {i}')


def stamp_flush(k):
    if not STAMPS:
        return
    lab = k.newlabel('ST')
    k('s_memrealtime s[62:63]')
    k.wait_all()
    k('v_writelane_b32 v255, s62, 63')
    k(f'v_writelane_b32 v255, s{S_BUD}, 62')
    k(f's_cmp_lg_u32 s{S_W4}, 0')
    k(f's_cbranch_scc1 {lab}')
    k('v_lshlrev_b32 v254, 2, v1')
    k('s_lshl_b32 s62, s2, 9')
    k(f's_lshl_b32 s63, s{S_W}, 6')
    k('s_add_u32 s62, s62, s63')
    k(f's_add_u32 s62, s62, {WS_ST}')
    k(f'buffer_store_dword v255, v254, {WSR}, s62 offen')
    if OPT.get('dbgout'):
        k('s_cmp_lg_u32 s2, %d' % OPT.get('dbgout'))
        k(f's_cbranch_scc1 {lab}')
        k(f's_cmp_lg_u32 s{S_W}, 0')
        k(f's_cbranch_scc1 {lab}')
        k('v_readlane_b32 s64, v255, 58')
        k('v_readlane_b32 s65, v255, 59')
        k('s_mov_b32 s66, 256')
        k('s_mov_b32 s67, 0x00020000')
        k('v_readlane_b32 s70, v255, 0')
        k('v_readlane_b32 s71, v255, 60')
        sel = [3, 5, 9, 10, 12, 13, 18, 22, 24, 32, 38, 42, 43, 51]
        for i, st_ in enumerate(sel):
            k(f'v_readlane_b32 s68, v255, {st_}')
            k('s_sub_u32 s68, s68, s70')
            k(f'v_writelane_b32 v253, s68, {i+1}')
        k('v_readlane_b32 s68, v255, 63')
        k('s_sub_u32 s68, s68, s71')
        k('v_writelane_b32 v253, s68, 15')
        k('s_mov_b64 exec, 0xfffe')
        k('buffer_store_dword v253, v254, s[64:67], 0 offen')
        k('s_mov_b64 exec, -1')
    k.label(lab)


def run(k, f):
    return f() if callable(f) else k(f)


def runall(k, ops):
    for f in ops:
        run(k, f)


def roll_step(k, mf, rds, fill):
    n, nf, fi = len(mf), len(fill), 0
    for i, (wt, m) in enumerate(mf):
        k.wait(*wt())
        k(m)
        for f in (rds[i] if i < len(rds) else []):
            run(k, f)
        tgt = (nf * (i + 1) + n - 1) // n
        while fi < min(tgt, nf):
            run(k, fill[fi])
            fi += 1


def spread(k, main, side):
    n, nf = len(main), len(side)
    pos = {}
    for j in range(nf):
        pos.setdefault(int(j * n / max(nf, 1)), []).append(side[j])
    for i, m in enumerate(main):
        for f in pos.get(i, []):
            run(k, f)
        run(k, m)


def rbf(k, d, src):
    k(f'v_cvt_pk_bf16_f32 {v(d)}, {v(src)}, {v(src)}')
    k(f'v_lshlrev_b32 {v(d)}, 16, {v(d)}')


def xsum(k, r, t1, t2, which=32):
    k(f'v_mov_b32 {v(t1)}, {v(r)}')
    k(f'v_mov_b32 {v(t2)}, {v(r)}')
    k(f'v_permlane{which}_swap_b32 {v(t1)}, {v(t2)}')
    k(f'v_add_f32 {v(r)}, {v(t1)}, {v(t2)}')


def maxchain_ops(regs, t):
    regs = list(regs)
    ops = [f'v_max3_u32 v{t}, v{regs[0]}, v{regs[1]}, v{regs[2]}']
    i = 3
    while i < len(regs):
        if i + 1 < len(regs):
            ops.append(f'v_max3_u32 v{t}, v{t}, v{regs[i]}, v{regs[i+1]}')
            i += 2
        else:
            ops.append(f'v_max_u32 v{t}, v{t}, v{regs[i]}')
            i += 1
    return ops


def check_group(k, regs, t, reissue, slp=None):
    slp = slp or OPT.get('rslp', 2)
    for o in maxchain_ops(regs, t):
        k(o)
    slow, back, loop = k.newlabel('SLOW'), k.newlabel('BACK'), k.newlabel('RETRY')
    k(f'v_cmp_eq_u32 vcc, -1, v{t}')
    k(f's_cbranch_vccnz {slow} ;nodrain')
    k.label(back)

    def cold(c):
        c.label(slow)
        c('s_nop 15')
        c.label(loop)
        c(f's_cmp_eq_u32 s{S_BUD}, 0')
        c(f's_cbranch_scc1 {back}')
        c(f's_sub_u32 s{S_BUD}, s{S_BUD}, 1')
        c(f's_sleep {slp}')
        reissue(c)
        c('s_waitcnt vmcnt(0)')
        for o in maxchain_ops(regs, t):
            c(o)
        c(f'v_cmp_eq_u32 vcc, -1, v{t}')
        c(f's_cbranch_vccnz {loop}')
        c(f's_branch {back}')
    k.cold.append(cold)


def nonce_issue(k, vr):
    k(f'v_mov_b32 v{vr+1}, 0')
    return k(f'buffer_load_dword v{vr}, v{vr+1}, s[{S_DBG}:{S_DBG+3}], 0 offen sc1')


def nonce_check(k, vr, tok):
    k.wait(tok)
    slow, back = k.newlabel('NSLOW'), k.newlabel('NBACK')
    k(f'v_readfirstlane_b32 s{S_NONCE}, v{vr}')
    k(f's_cmp_eq_u32 s{S_NONCE}, 0')
    k(f's_cbranch_scc1 {slow} ;nodrain')
    k.label(back)

    def cold(c):
        c.label(slow)
        c('s_nop 15')
        c(f's_cmp_eq_u32 s{S_BUD}, 0')
        c(f's_cbranch_scc1 {back}')
        c(f's_sub_u32 s{S_BUD}, s{S_BUD}, 1')
        c('s_sleep 4')
        c(f'buffer_load_dword v{vr}, v{vr+1}, s[{S_DBG}:{S_DBG+3}], 0 offen sc1')
        c('s_waitcnt vmcnt(0)')
        c(f'v_readfirstlane_b32 s{S_NONCE}, v{vr}')
        c(f's_cmp_eq_u32 s{S_NONCE}, 0')
        c(f's_cbranch_scc1 {slow}')
        c(f's_branch {back}')
    k.cold.append(cold)


def nonce_from_lds(k, t):
    k(f'v_mov_b32 v{t}, {XNONCE}')
    tk = k(f'ds_read_b32 v{t}, v{t}')
    k.wait(tk)
    k(f'v_readfirstlane_b32 s{S_NONCE}, v{t}')


def rflag_store(k, base, sidx, t1, t2, wave=0):
    k(f'v_mov_b32 v{t1}, s{S_NONCE}')
    k(f'v_lshlrev_b32 v{t2}, 10, v1')
    k(f's_lshl_b32 s60, s{sidx}, 2')
    k(f's_add_u32 s60, s60, {base}')
    k(f's_mov_b32 s61, {OOB}')
    k(f's_cmp_eq_u32 s{S_W}, {wave}')
    k('s_cselect_b32 s60, s60, s61')
    k('s_mov_b64 exec, 0xff')
    k(f'buffer_store_dword v{t1}, v{t2}, {WSR}, s60 offen sc1')
    k('s_mov_b64 exec, -1')


def wflag_store(k, base, sidx, t1, t2, cnt):
    k(f'v_mov_b32 v{t1}, 1')
    k(f'v_mov_b32 v{t2}, {XCNT+4*cnt}')
    k('s_mov_b64 exec, 1')
    tk = k(f'ds_add_rtn_u32 v{t1}, v{t2}, v{t1}')
    k('s_mov_b64 exec, -1')
    k(f's_lshl_b32 s60, s{sidx}, 2')
    k(f's_add_u32 s60, s60, {base}')
    k.wait(tk)
    k(f'v_readfirstlane_b32 s61, v{t1}')
    k(f'v_mov_b32 v{t1}, s{S_NONCE}')
    k(f'v_lshlrev_b32 v{t2}, 10, v1')
    k('s_cmp_eq_u32 s61, 3')
    k(f's_cselect_b32 s60, s60, {OOB}')
    k('s_mov_b64 exec, 0xff')
    k(f'buffer_store_dword v{t1}, v{t2}, {WSR}, s60 offen sc1')
    k('s_mov_b64 exec, -1')


def cnt_wait(k, t1, t2, cnt, target, bound=2000):
    loop, done = k.newlabel('CW'), k.newlabel('CD')
    k(f'v_mov_b32 v{t2}, {XCNT+4*cnt}')
    k(f's_mov_b32 s61, {bound}')
    k.label(loop)
    k.raw(f'    ds_read_b32 v{t1}, v{t2}')
    k.raw('    s_waitcnt lgkmcnt(0)')
    k(f'v_readfirstlane_b32 s60, v{t1}')
    k(f's_cmp_ge_u32 s60, {target}')
    k(f's_cbranch_scc1 {done}')
    k('s_sub_u32 s61, s61, 1')
    k('s_cmp_eq_u32 s61, 0')
    k(f's_cbranch_scc1 {done}')
    k('s_sleep 2')
    k(f's_branch {loop}')
    k.label(done)


def wflag_poll(k, sbase, va, vr, smask, width, only_wave0):
    loop, done = k.newlabel('POLL'), k.newlabel('PDONE')
    if only_wave0:
        k(f's_cmp_lg_u32 s{S_W}, 0')
        k(f's_cbranch_scc1 {done}')
    k.label(loop)
    if width == 4:
        k.raw(f'    buffer_load_dwordx4 {v(vr,4)}, v{va}, {WSR}, s{sbase} offen sc1')
        k.raw('    s_waitcnt vmcnt(0)')
        for i in range(4):
            k(f'v_xor_b32 v{vr+i}, s{S_NONCE}, v{vr+i}')
        k(f'v_or3_b32 v{vr}, v{vr}, v{vr+1}, v{vr+2}')
        k(f'v_or_b32 v{vr}, v{vr}, v{vr+3}')
        k(f'v_cmp_ne_u32 vcc, 0, v{vr}')
    else:
        k.raw(f'    buffer_load_dword v{vr}, v{va}, {WSR}, s{sbase} offen sc1')
        k.raw('    s_waitcnt vmcnt(0)')
        k(f'v_cmp_ne_u32 vcc, s{S_NONCE}, v{vr}')
    k(f's_and_b64 vcc, vcc, s[{smask}:{smask+1}]')
    k(f's_cbranch_scc0 {done}')
    k(f's_cmp_eq_u32 s{S_BUD}, 0')
    k(f's_cbranch_scc1 {done}')
    k(f's_sub_u32 s{S_BUD}, s{S_BUD}, 1')
    k(f's_sleep {OPT.get("psl", 1)}')
    k(f's_branch {loop}')
    k.label(done)


def probe(k, sbase, va, vr):
    loop, done = k.newlabel('PRB'), k.newlabel('PRD')
    k.label(loop)
    k.raw(f'    buffer_load_dword v{vr}, v{va}, {WSR}, s{sbase} offen sc1')
    k.raw('    s_waitcnt vmcnt(0)')
    k(f'v_cmp_eq_u32 vcc, -1, v{vr}')
    k(f's_cbranch_vccz {done}')
    k(f's_cmp_eq_u32 s{S_BUD}, 0')
    k(f's_cbranch_scc1 {done}')
    k(f's_sub_u32 s{S_BUD}, s{S_BUD}, 1')
    k(f's_sleep {OPT.get("prs", 2)}')
    k(f's_branch {loop}')
    k.label(done)


def rflag_poll(k, sbase, va, vr, smask):
    loop, done = k.newlabel('POLL'), k.newlabel('PDONE')
    k(f's_cmp_lg_u32 s{S_W}, 0')
    k(f's_cbranch_scc1 {done}')
    k.label(loop)
    k.raw(f'    buffer_load_dword v{vr}, v{va}, {WSR}, s{sbase} offen sc1')
    k.raw('    s_waitcnt vmcnt(0)')
    k(f'v_cmp_ne_u32 vcc, s{S_NONCE}, v{vr}')
    k(f's_and_b64 vcc, vcc, s[{smask}:{smask+1}]')
    k(f's_cbranch_scc0 {done}')
    k(f's_cmp_eq_u32 s{S_BUD}, 0')
    k(f's_cbranch_scc1 {done}')
    k(f's_sub_u32 s{S_BUD}, s{S_BUD}, 1')
    k(f's_branch {loop}')
    k.label(done)


def flags_issue(k, base, vr, va):
    k(f'v_lshlrev_b32 v{va}, 4, v1')
    k(f's_lshl_b32 s60, s{S_X8}, 10')
    k(f'v_add_u32 v{va}, s60, v{va}')
    k(f's_mov_b32 s60, {base}')
    return k(f'buffer_load_dwordx4 {v(vr,4)}, v{va}, {WSR}, s60 offen sc1')


def flags_check(k, base, vr, va, tok):
    k.wait(tok)
    slow, back = k.newlabel('FSLOW'), k.newlabel('FBACK')

    def cmpops(c):
        for i in range(4):
            c(f'v_xor_b32 v{vr+i}, s{S_NONCE}, v{vr+i}')
        c(f'v_or3_b32 v{vr}, v{vr}, v{vr+1}, v{vr+2}')
        c(f'v_or_b32 v{vr}, v{vr}, v{vr+3}')
        c(f'v_cmp_ne_u32 vcc, 0, v{vr}')
    cmpops(k)
    k(f's_cbranch_vccnz {slow} ;nodrain')
    k.label(back)

    def cold(c):
        c.label(slow)
        c('s_nop 15')
        c(f's_cmp_eq_u32 s{S_BUD}, 0')
        c(f's_cbranch_scc1 {back}')
        c(f's_sub_u32 s{S_BUD}, s{S_BUD}, 1')
        c('s_sleep 12')
        c(f's_mov_b32 s58, {base}')
        c(f'buffer_load_dwordx4 {v(vr,4)}, v{va}, {WSR}, s58 offen sc1')
        c('s_waitcnt vmcnt(0)')
        cmpops(c)
        c(f's_cbranch_vccnz {slow}')
        c(f's_branch {back}')
    k.cold.append(cold)


def join(k):
    k.reset_counters()
    k.vm_issued = 1
    k.lg_issued = 1


def prologue(k):
    k('s_cmp_ge_u32 s2, 256')
    k('s_cbranch_scc1 %s' % k.realend)
    if OPT.get('cpf', 1):
        k.raw('    s_getpc_b64 s[88:89]')
        k.raw('CODE_PC:')
        k.raw(f'    s_sub_u32 s88, s88, CODE_PC-{NAME}_kernel')
        k.raw('    s_subb_u32 s89, s89, 0')
        k.raw('    s_and_b32 s89, s89, 0xffff')
        k.raw(f'    s_mov_b32 s90, CODE_END-{NAME}_kernel')
        k.raw('    s_mov_b32 s91, 0x00020000')
        k('s_lshr_b32 s92, s2, 3')
        k('s_lshl_b32 s92, s92, 12')
        k('v_lshlrev_b32 v250, 7, v0')
        k('v_cmp_gt_u32 vcc, 32, v0')
        k(f'v_mov_b32 v251, {OOB}')
        k('v_cndmask_b32 v250, v251, v250, vcc')
        k('buffer_load_dword v251, v250, s[88:91], s92 offen')
    k('s_load_dwordx8 s[64:71], s[0:1], 0')
    k('s_load_dwordx8 s[72:79], s[0:1], 32')
    k('s_load_dwordx4 s[80:83], s[0:1], 64')
    k('s_memrealtime s[84:85]')
    k('v_and_b32 v1, 63, v0')
    k('v_lshrrev_b32 v2, 6, v0')
    k(f'v_readfirstlane_b32 s{S_W}, v2')
    k(f's_and_b32 s{S_X8}, s2, 7')
    k(f's_lshr_b32 s{S_I32}, s2, 3')
    k(f's_mov_b32 s{S_BUD}, {OPT.get("bud", 100000)}')
    k(f's_and_b32 s{S_W4}, s{S_W}, 3')
    k('v_and_b32 v0, 255, v0')
    k('v_mov_b32 v253, 0')
    k('s_waitcnt lgkmcnt(0)')
    for sr, src, size in ((S_X, 64, 2621440), (S_WQKV, 66, 2457600), (S_WO, 68, 819200), (S_WG, 72, 1966080),
                          (S_WU, 74, 1966080), (S_WD, 76, 1966080), (S_OUT, 78, 2621440), (S_WS, 82, WS_SIZE),
                          (S_DBG, 80, 256)):
        k(f's_mov_b32 s{sr}, s{src}')
        k(f's_and_b32 s{sr+1}, s{src+1}, 0xffff')
        k(f's_mov_b32 s{sr+2}, {size}')
        k(f's_mov_b32 s{sr+3}, 0x00020000')
    k(f's_or_b32 s60, s2, s{S_W}')
    k('s_cmp_eq_u32 s60, 0')
    k(f's_cselect_b32 s61, 0, 0x10000')
    k('s_or_b32 s60, s84, 1')
    k('v_mov_b32 v2, s60')
    k('v_mov_b32 v3, 0')
    k('s_mov_b64 exec, 1')
    k(f'buffer_store_dword v2, v3, s[{S_DBG}:{S_DBG+3}], s61 offen sc1')
    k('s_mov_b64 exec, -1')


def tile1(k):
    k(f's_and_b32 s47, s{S_X8}, 3')
    k(f's_lshr_b32 s46, s{S_X8}, 2')
    k('s_mul_i32 s46, s46, 30')
    k(f's_add_u32 s46, s46, s{S_I32}')
    k('s_lshr_b32 s44, s46, 2')
    k('s_and_b32 s46, s46, 3')
    k('s_lshl_b32 s47, s47, 2')
    k('s_add_u32 s45, s47, s46')
    k('s_add_u32 s56, s45, s44')
    for _ in range(2):
        k('s_sub_u32 s47, s56, 10')
        k('s_cmp_ge_u32 s56, 10')
        k('s_cselect_b32 s56, s47, s56')
    k('s_lshl_b32 s46, s45, 7')
    k(f's_lshl_b32 s47, s{S_W4}, 5')
    k('s_add_u32 s46, s46, s47')


def tile35(k, srt, sct, st):
    if OPT.get('m35', 0):
        k(f's_lshl_b32 s{st}, s{S_X8}, 2')
        k(f's_and_b32 s{srt}, s{S_I32}, 3')
        k(f's_add_u32 s{srt}, s{srt}, s{st}')
        k(f's_lshr_b32 s{sct}, s{S_I32}, 2')
        return
    k(f's_and_b32 s{st}, s{S_X8}, 3')
    k(f's_lshl_b32 s{st}, s{st}, 3')
    k(f's_and_b32 s{srt}, s{S_I32}, 7')
    k(f's_add_u32 s{srt}, s{srt}, s{st}')
    k(f's_lshr_b32 s{st}, s{S_X8}, 2')
    k(f's_lshl_b32 s{st}, s{st}, 2')
    k(f's_lshr_b32 s{sct}, s{S_I32}, 3')
    k(f's_add_u32 s{sct}, s{sct}, s{st}')


def tile4(k, smt, sft, st):
    if OPT.get('m4', 0):
        k(f's_and_b32 s{st}, s{S_X8}, 3')
        k(f's_lshl_b32 s{st}, s{st}, 2')
        k(f's_and_b32 s{smt}, s{S_I32}, 3')
        k(f's_add_u32 s{smt}, s{smt}, s{st}')
        k(f's_lshr_b32 s{st}, s{S_X8}, 2')
        k(f's_lshl_b32 s{st}, s{st}, 3')
        k(f's_lshr_b32 s{sft}, s{S_I32}, 2')
        k(f's_add_u32 s{sft}, s{sft}, s{st}')
        return
    k(f's_and_b32 s{st}, s{S_X8}, 1')
    k(f's_lshl_b32 s{st}, s{st}, 3')
    k(f's_and_b32 s{smt}, s{S_I32}, 7')
    k(f's_add_u32 s{smt}, s{smt}, s{st}')
    k(f's_lshr_b32 s{st}, s{S_X8}, 1')
    k(f's_lshl_b32 s{st}, s{st}, 2')
    k(f's_lshr_b32 s{sft}, s{S_I32}, 3')
    k(f's_add_u32 s{sft}, s{sft}, s{st}')


def strip_id(k, sd):
    k(f's_and_b32 s{sd}, s{S_X8}, 1')
    k(f's_mul_i32 s{sd}, s{sd}, 1536')
    k(f's_lshr_b32 s61, s{S_X8}, 1')
    k('s_mul_i32 s61, s61, 384')
    k(f's_add_u32 s{sd}, s{sd}, s61')
    k(f's_lshl_b32 s61, s{S_I32}, 5')
    k(f's_add_u32 s{sd}, s{sd}, s61')


def clear_ops(k, vs, va):
    ops = []

    def o1():
        k(f's_and_b32 s60, s{S_I32}, 3')
        k(f's_lshl_b32 s61, s{S_X8}, 2')
        k('s_add_u32 s60, s60, s61')
        k('s_and_b32 s65, s60, 1')
        k('s_lshr_b32 s60, s60, 1')
        k('s_mul_i32 s60, s60, 5')
        k('s_lshl_b32 s60, s60, 15')
        k(f's_lshr_b32 s61, s{S_I32}, 2')
        k('s_lshl_b32 s61, s61, 12')
        k('s_add_u32 s60, s60, s61')
        k(f's_lshl_b32 s61, s{S_W4}, 10')
        k('s_add_u32 s60, s60, s61')
        k(f's_add_u32 s64, s60, {WS_OC}')
        k(f's_mul_i32 s61, s65, {3*32768}')
        k('s_add_u32 s66, s64, s61')
        k(f'buffer_store_dwordx4 {v(vs,4)}, v{va}, {WSR}, s66 offen sc1')

    def o2():
        k('s_add_u32 s60, s66, 32768')
        k(f'buffer_store_dwordx4 {v(vs,4)}, v{va}, {WSR}, s60 offen sc1')

    def o3():
        k('s_lshl_b32 s61, s65, 3')
        k('s_add_u32 s60, s64, s61')
        k('s_add_u32 s60, s60, 65536')
        k(f'buffer_store_dwordx2 {v(vs,2)}, v{va}, {WSR}, s60 offen sc1')

    def h1():
        tile35(k, 60, 61, 64)
        k('s_lshl_b32 s67, s61, 14')
        k('s_lshl_b32 s64, s60, 9')
        k('s_add_u32 s67, s67, s64')
        k(f's_add_u32 s67, s67, {WS_HS}')
        k('s_mul_i32 s61, s61, 10')
        k(f's_add_u32 s61, s61, s{S_W4}')
        k('s_lshl_b32 s61, s61, 15')
        k('s_lshl_b32 s60, s60, 10')
        k('s_add_u32 s64, s61, s60')
        k(f's_add_u32 s64, s64, {WS_H1}')
        k(f'buffer_store_dwordx4 {v(vs,4)}, v{va}, {WSR}, s64 offen sc1')

    def h2():
        k(f's_add_u32 s60, s64, {4*32768}')
        k(f'buffer_store_dwordx4 {v(vs,4)}, v{va}, {WSR}, s60 offen sc1')

    def h3():
        k(f's_add_u32 s60, s64, {8*32768}')
        k(f's_mov_b32 s65, {OOB}')
        k(f's_cmp_lt_u32 s{S_W4}, 2')
        k('s_cselect_b32 s60, s60, s65')
        k(f'buffer_store_dwordx4 {v(vs,4)}, v{va}, {WSR}, s60 offen sc1')

    def h4():
        k(f's_cmp_eq_u32 s{S_W4}, 2')
        k('s_cselect_b32 s60, s67, s65')
        k(f'buffer_store_dwordx2 {v(vs,2)}, v{va+1}, {WSR}, s60 offen sc1')

    def c1():
        tile4(k, 60, 61, 64)
        k('s_mul_i32 s61, s61, 384')
        k('s_mul_i32 s64, s60, 12288')
        k('s_add_u32 s61, s61, s64')
        k(f's_mul_i32 s64, s{S_W4}, 6144')
        k('s_add_u32 s61, s61, s64')
        k(f's_add_u32 s61, s61, {WS_PCS}')
        k('s_cmp_lt_u32 s60, 10')
        k('s_cselect_b32 s61, s61, s65')
        k(f's_cmp_lt_u32 s{S_W4}, 2')
        k('s_cselect_b32 s61, s61, s65')
        k('s_mov_b64 exec, 0xffffff')
        k(f'buffer_store_dwordx4 {v(vs,4)}, v{va}, {WSR}, s61 offen sc1')
        k('s_mov_b64 exec, -1')
    return [o1, o2, o3, h1, h2, h3, h4, c1]


def sparse_prefetch(k, srd, rows_per_wg, lines, pitch, colshift, colmul, va, vd, toff=0):
    magic = {5: 13108, 6: 10923}[lines]
    k(f'v_subrev_u32 v{va}, {toff}, v0')
    k(f'v_cmp_gt_u32 vcc, {rows_per_wg*lines}, v{va}')
    k(f'v_mul_u32_u24 v{vd}, {magic}, v{va}')
    k(f'v_lshrrev_b32 v{vd}, 16, v{vd}')
    k(f'v_mul_u32_u24 v{vd}, {pitch-lines*128}, v{vd}')
    k(f'v_lshl_add_u32 v{va}, v{va}, 7, v{vd}')
    k(f'v_mov_b32 v{vd}, {OOB}')
    k(f'v_cndmask_b32 v{va}, v{vd}, v{va}, vcc')
    k(f's_mul_i32 s60, s{S_I32}, {rows_per_wg*pitch}')
    k(f's_lshr_b32 s61, s{S_X8}, {colshift}')
    k(f's_mul_i32 s61, s61, {colmul}')
    k('s_add_u32 s60, s60, s61')
    for sr in srd:
        k(f'buffer_load_dword v{vd}, v{va}, s[{sr}:{sr+3}], s60 offen')


def pf_wo(k, va, vd):
    sparse_prefetch(k, [S_WO], 20, 5, 1280, 2, 640, va, vd)


def pf_wd(k, va, vd):
    sparse_prefetch(k, [S_WD], 48, 5, 1280, 2, 640, va, vd)


def pf_wgu(k, va, vd, toff=0):
    sparse_prefetch(k, [S_WG, S_WU], 20, 6, 3072, 1, 768, va, vd, toff)


P1_R, P1_SLOT = 4, 32768


def p1_dma(k, S_SIG, sa, sb_):
    S_NT, S_TOK, S_LW = 44, 46, 48
    k('s_cmp_ge_u32 s56, 5')
    k(f's_cselect_b32 s{S_SIG}, 5, 0')
    k('v_lshrrev_b32 v10, 3, v1')
    k(f'v_add_u32 v10, s{S_TOK}, v10')
    k('v_mul_u32_u24 v10, 1280, v10')
    k('v_and_b32 v11, 7, v1')
    k('v_lshrrev_b32 v12, 4, v1')
    k('v_xor_b32 v11, v11, v12')
    k('v_xor_b32 v13, 4, v11')
    k('v_lshl_add_u32 v2, v11, 4, v10')
    k('v_lshl_add_u32 v3, v13, 4, v10')
    k(f'v_add_u32 v3, {10240-1024}, v3')
    k(f'v_add_u32 v4, {2*(10240-1024)}, v2')
    k(f'v_add_u32 v5, {2*(10240-1024)}, v3')
    k(f's_lshl_b32 s47, s{S_W4}, 4')
    k('v_add_u32 v10, s47, v12')
    k('v_mul_u32_u24 v10, 3840, v10')
    k(f's_lshl_b32 s47, s{S_NT}, 8')
    k('v_add_u32 v10, s47, v10')
    k('v_bfe_u32 v11, v1, 2, 2')
    k('v_xor_b32 v11, v11, v12')
    k('v_lshl_add_u32 v10, v11, 6, v10')
    k('v_and_b32 v11, 3, v1')
    k('v_lshl_add_u32 v6, v11, 4, v10')
    for i in range(1, 4):
        k(f'v_add_u32 v{6+i}, {i*(4*3840-1024)}, v6')
    k(f's_lshl_b32 s{S_LW}, s{S_W4}, 12')
    tok = {}

    def issue(st):
        slot = st % P1_R
        k(f's_add_u32 m0, s{S_LW}, {slot*P1_SLOT}')
        k(f's_lshl_b32 s{sa}, s{S_SIG}, 7')
        for i in range(4):
            k(f'buffer_load_dwordx4 v{2+i}, s[{S_X}:{S_X+3}], s{sa} offen offset:{i*1024} lds')
        k(f's_add_u32 m0, s{S_LW}, {slot*P1_SLOT+16384}')
        k(f's_mul_i32 s{sb_}, s{S_SIG}, {64*3840}')
        k(f's_add_u32 s{S_SIG}, s{S_SIG}, 1')
        k(f's_cmp_eq_u32 s{S_SIG}, 10')
        k(f's_cselect_b32 s{S_SIG}, 0, s{S_SIG}')
        for i in range(4):
            tok[st] = k(f'buffer_load_dwordx4 v{6+i}, s[{S_WQKV}:{S_WQKV+3}], s{sb_} offen offset:{i*1024} lds')
    return tok, issue


def p1_loader(k, g3):
    tile1(k)
    S_NT, S_TOK, S_LW, S_SIG = 44, 46, 48, 55
    lab_h, lab_e = k.newlabel('L_HELP'), k.newlabel('L_P1E')
    k(f's_cmp_ge_u32 s{S_I32}, 30')
    k(f's_cbranch_scc1 {lab_h}')
    tok, issue = p1_dma(k, S_SIG, 49, 50)
    issue(0)
    issue(1)
    stamp(k, 1)
    k.wait(tok[0])
    k('s_barrier')
    stamp(k, 2)
    if OPT.get('cdma', 0):
        k(f's_add_u32 s{S_SIG}, s{S_SIG}, 2')
        tok[2] = tok[3] = tok[1]
    else:
        issue(2)
        issue(3)
    blk = k.capture(lambda: (g3.dma_setup(100), p2_setup(k)))
    nb_ = (len(blk) + 2) // 3
    for st in range(1, 10):
        k.wait(tok[st])
        k('s_barrier')
        if st + 3 < 10:
            issue(st + 3)
        if st == 6:
            stamp(k, 3)
            pf_wo(k, 120, 121)
        if 6 <= st <= 8:
            k.items.extend(blk[(st - 6) * nb_:(st - 5) * nb_])
    k(f's_branch {lab_e}')
    k.label(lab_h)
    for st in range(10):
        k('s_barrier')
    pf_wo(k, 120, 121)
    k.items.extend(blk)
    k.label(lab_e)
    join(k)
    nonce_from_lds(k, 122)
    stamp(k, 9)
    k('s_barrier')
    if OPT.get('wowait', 1):
        cnt_wait(k, 238, 239, 0, OPT.get('wowait', 1))
    stamp(k, 10)
    for st in range(5):
        runall(k, g3.dma_step(st))
    stamp(k, 11)


def p1_compute(k):
    tile1(k)
    S_NT, S_MT, S_TOK, S_LW, S_RHO = 44, 45, 46, 48, 56
    k(f's_lshl_b32 s{S_LW}, s{S_W4}, 12')
    ctok = {}
    if OPT.get('cdma', 0):
        lab_nd = k.newlabel('NODMA')
        k(f's_cmp_ge_u32 s{S_I32}, 30')
        k(f's_cbranch_scc1 {lab_nd}')
        ctok, cissue = p1_dma(k, 55, 49, 50)
        k('s_add_u32 s55, s55, 2')
        cissue(2)
        cissue(3)
        k.label(lab_nd)
    for i in range(4):
        k(f'v_mov_b32 v{96+i}, -1')
    k('v_lshlrev_b32 v100, 4, v1')
    k('v_lshlrev_b32 v101, 3, v1')
    k('v_and_b32 v40, 31, v1')
    k('v_lshlrev_b32 v109, 3, v40')
    k('v_lshlrev_b32 v102, 2, v40')
    k(f's_lshl_b32 s51, s{S_RHO}, 14')
    k(f's_lshl_b32 s47, s{S_TOK}, 3')
    k('s_add_u32 s51, s51, s47')
    k(f's_add_u32 s51, s51, {WS_PS}')
    k(f's_mov_b32 s47, {OOB}')
    k(f's_cmp_lt_u32 s{S_NT}, 10')
    k('s_cselect_b32 s51, s51, s47')
    k(f's_mul_i32 s52, s{S_RHO}, 7680')
    k(f's_lshl_b32 s49, s{S_NT}, 9')
    k('s_add_u32 s52, s52, s49')
    k(f's_lshl_b32 s49, s{S_W4}, 7')
    k('s_add_u32 s52, s52, s49')
    k(f's_add_u32 s52, s52, {WS_PC}')
    k(f's_cmp_lt_u32 s{S_MT}, 10')
    k('s_cselect_b32 s52, s52, s47')
    k(f's_cmp_lt_u32 s{S_I32}, 30')
    k('s_cselect_b32 s51, s51, s47')
    k('s_cselect_b32 s52, s52, s47')
    k(f'buffer_store_dwordx2 {v(96,2)}, v109, {WSR}, s51 offen sc1')
    sctok = k(f'buffer_store_dword v96, v102, {WSR}, s52 offen sc1')
    if OPT.get('qclr', 0):
        k(f's_lshl_b32 s60, s{S_NT}, 5')
        k(f's_lshl_b32 s61, s{S_W4}, 3')
        k('s_add_u32 s60, s60, s61')
        k('s_lshl_b32 s60, s60, 14')
        k(f's_lshl_b32 s61, s{S_MT}, 10')
        k('s_add_u32 s64, s60, s61')
        k(f's_lshr_b32 s60, s{S_TOK}, 5')
        k('s_mul_i32 s60, s60, 40960')
        k(f's_sub_u32 s61, s{S_NT}, 10')
        k('s_lshl_b32 s61, s61, 11')
        k('s_add_u32 s65, s60, s61')
        k(f's_cmp_lt_u32 s{S_I32}, 30')
        k(f's_cselect_b32 s64, s64, {OOB}')
        k(f's_cselect_b32 s65, s65, {OOB}')
        for n in range(8):
            k(f's_add_u32 s60, s64, {WS_QG + n*16384}')
            k(f's_add_u32 s61, s65, {WS_VF + (n//2)*10240 + (n%2)*1024}')
            k(f's_cmp_lt_u32 s{S_NT}, 10')
            k('s_cselect_b32 s60, s60, s61')
            if OPT.get('qclr') == 2:
                k('s_sleep 4')
            sctok = k(f'buffer_store_dwordx4 {v(96,4)}, v100, {WSR}, s60 offen sc1')
    NV = 252
    if OPT.get('tlb', 0) & 1:
        k('v_lshlrev_b32 v115, 20, v1')
        for n_, sr in enumerate((S_WS, S_WO, S_WG, S_WU, S_WD, S_OUT)):
            k(f's_cmp_eq_u32 s{S_W4}, {n_ % 4}')
            k(f's_cselect_b32 s60, 0, {OOB}')
            k(f'buffer_load_dword v{116+n_}, v115, s[{sr}:{sr+3}], s60 offen')
    if OPT.get('tlb', 0) & 2:
        k('v_and_b32 v115, 15, v1')
        k(f's_lshl_b32 s60, s{S_I32}, 4')
        k('v_add_u32 v115, s60, v115')
        k('v_lshlrev_b32 v115, 16, v115')
        k(f's_cmp_eq_u32 s{S_W4}, 1')
        k(f's_cselect_b32 s60, 0, {OOB}')
        k(f'buffer_load_dword v116, v115, {WSR}, s60 offen')
        k('v_and_b32 v115, 1, v1')
        k(f's_lshl_b32 s60, s{S_I32}, 1')
        k('v_add_u32 v115, s60, v115')
        k('v_lshlrev_b32 v115, 16, v115')
        for n_, sr in enumerate((S_WO, S_WG, S_WU, S_WD, S_OUT)):
            k(f's_cmp_eq_u32 s{S_W4}, {2 + n_ % 2}')
            k(f's_cselect_b32 s60, 0, {OOB}')
            k(f'buffer_load_dword v{117+n_}, v115, s[{sr}:{sr+3}], s60 offen')
    def warm():
        k('v_lshlrev_b32 v110, 7, v0')
        k(f's_and_b32 s60, s{S_X8}, 3')
        k('s_lshl_b32 s60, s60, 5')
        k(f's_add_u32 s60, s60, s{S_I32}')
        k('s_mul_i32 s60, s60, 20480')
        k('v_cmp_gt_u32 vcc, 160, v0')
        k(f'v_mov_b32 v111, {OOB}')
        k('v_cndmask_b32 v110, v111, v110, vcc')
        k(f'buffer_load_dword v111, v110, s[{S_X}:{S_X+3}], s60 offen')
        k('v_lshrrev_b32 v110, 4, v0')
        k('v_mul_u32_u24 v110, 3840, v110')
        k('v_and_b32 v112, 15, v0')
        k('v_lshl_add_u32 v110, v112, 7, v110')
        k(f's_mul_i32 s60, s{S_I32}, {20*3840}')
        k(f's_lshr_b32 s61, s{S_X8}, 2')
        k('s_mul_i32 s61, s61, 1792')
        k('s_add_u32 s60, s60, s61')
        k(f'buffer_load_dword v113, v110, s[{S_WQKV}:{S_WQKV+3}], s60 offen')
        k(f's_add_u32 s60, s60, {16*3840}')
        k(f's_mov_b32 s61, {OOB}')
        k(f's_cmp_eq_u32 s{S_W4}, 0')
        k('s_cselect_b32 s60, s60, s61')
        k(f'buffer_load_dword v114, v110, s[{S_WQKV}:{S_WQKV+3}], s60 offen')
    if OPT.get('warm', 0) == 1:
        warm()
    k('v_lshrrev_b32 v41, 5, v1')
    k('v_bfe_u32 v42, v1, 1, 3')
    k('v_xor_b32 v42, v42, v41')
    k('v_lshlrev_b32 v43, 7, v40')
    k('v_lshl_add_u32 v43, v42, 4, v43')
    k(f'v_add_u32 v10, s{S_LW}, v43')
    for ks in range(1, 4):
        k(f'v_xor_b32 v{10+ks}, {ks*32}, v10')
    k('v_bfe_u32 v42, v1, 2, 2')
    k('v_lshl_add_u32 v43, v41, 3, v42')
    k('v_lshlrev_b32 v43, 8, v43')
    k('v_bfe_u32 v44, v1, 4, 1')
    k('v_lshl_add_u32 v43, v44, 5, v43')
    k('v_and_b32 v44, 3, v1')
    k('v_lshl_add_u32 v43, v44, 3, v43')
    k('v_add_u32 v43, 16384, v43')
    for j in range(4):
        k(f's_add_u32 s49, s{S_W4}, {j}')
        k('s_and_b32 s49, s49, 3')
        k('v_xor_b32 v44, s49, v42')
        k(f'v_lshl_add_u32 v{14+j}, v44, 6, v43')
    for i in range(8):
        k(f'v_add_u32 v{18+i}, 65536, v{10+i}')
    VSUM, VSQ, VCS, VONE = 34, 35, 36, 37
    k(f'v_mov_b32 v{VSUM}, 0')
    k(f'v_mov_b32 v{VSQ}, 0')
    k(f'v_mov_b32 v{VCS}, 0')
    k(f'v_mov_b32 v{VONE}, 0x3f803f80')
    k('v_lshrrev_b32 v105, 5, v1')
    k(f'v_mul_u32_u24 v103, {5*16384}, v105')
    k('v_add_u32 v103, v103, v109')
    k(f'v_mul_u32_u24 v104, {5*7680}, v105')
    k('v_add_u32 v104, v104, v102')
    k(f's_lshl_b32 s53, s{S_TOK}, 3')
    k(f's_add_u32 s53, s53, {WS_PS}')
    k(f's_lshl_b32 s54, s{S_NT}, 9')
    k(f's_lshl_b32 s49, s{S_W4}, 7')
    k('s_add_u32 s54, s54, s49')
    k(f's_add_u32 s54, s54, {WS_PC}')
    k('s_sub_u32 s55, s56, 5')
    k('s_cmp_ge_u32 s56, 5')
    k('s_cselect_b32 s55, s55, s56')
    XF, WF, ACC = 40, 48, 128
    PR, PCR, FL = 232, 242, 248
    stamp(k, 1)
    def nonce_share():
        def blk():
            loop, done = k.newlabel('NL'), k.newlabel('ND')
            first = k.newlabel('NF')
            k(f's_branch {first}')
            k.label(loop)
            k.raw(f'    buffer_load_dword v{NV}, v{NV+1}, s[{S_DBG}:{S_DBG+3}], 0 offen sc1')
            k.label(first)
            k.raw('    s_waitcnt vmcnt(0)')
            k(f'v_readfirstlane_b32 s{S_NONCE}, v{NV}')
            k(f's_cmp_lg_u32 s{S_NONCE}, 0')
            k(f's_cbranch_scc1 {done}')
            k(f's_cmp_eq_u32 s{S_BUD}, 0')
            k(f's_cbranch_scc1 {done}')
            k(f's_sub_u32 s{S_BUD}, s{S_BUD}, 1')
            k('s_sleep 4')
            k(f's_branch {loop}')
            k.label(done)
            k(f'v_mov_b32 v{NV+1}, {XNONCE}')
            k.raw(f'    ds_write_b32 v{NV+1}, v{NV}')
            k.raw('    s_waitcnt lgkmcnt(0)')
        k(f's_cmp_eq_u32 s{S_W}, 0')
        k.outline('s_cbranch_scc1', blk)
        k.wait(sctok)

    def nonce_pre():
        def blk():
            k(f'v_mov_b32 v{NV+1}, 0')
            k.raw(f'    buffer_load_dword v{NV}, v{NV+1}, s[{S_DBG}:{S_DBG+3}], 0 offen sc1')
        k(f's_cmp_eq_u32 s{S_W}, 0')
        k.outline('s_cbranch_scc1', blk)

    def nonce_get():
        rflag_store(k, WS_F0, 2, 107, 108)
        nonce_from_lds(k, 107)
    k(f'v_mov_b32 v107, {XCNT}')
    k('v_mov_b32 v108, 0')
    k('ds_write_b32 v107, v108')
    k('ds_write_b32 v107, v108 offset:4')
    k.wait_all(vm=False)
    if OPT.get('warm', 0) == 3:
        k('s_sleep 20')
        warm()
    stamp(k, 2)
    k('s_barrier')
    nonce_pre()
    if OPT.get('warm', 0) == 2:
        warm()
    stamp(k, 3)
    lab_v, lab_h, lab_done = k.newlabel('P1_V'), k.newlabel('C_HELP'), k.newlabel('C_P1D')
    k(f's_cmp_ge_u32 s{S_I32}, 30')
    k(f's_cbranch_scc1 {lab_h}')
    k(f's_cmp_ge_u32 s{S_NT}, 10')
    k(f's_cbranch_scc1 {lab_v}')
    saved = k.snap()
    T = {}

    def part_loads(c):
        for n in range(5):
            c(f's_add_u32 s58, s53, {n*16384}')
            c(f'buffer_load_dwordx2 {v(PR+2*n,2)}, v103, {WSR}, s58 offen sc1')
        tok = None
        for n in range(5):
            c(f's_add_u32 s58, s54, {n*7680}')
            tok = c(f'buffer_load_dword v{PCR+n}, v104, {WSR}, s58 offen sc1')
        return tok

    def mainloop(transposed):
        rd = {}

        def reads(kk):
            st, ks = kk // 4, kk % 4
            slot = st % P1_R
            q, so = slot // 2, (slot % 2) * P1_SLOT
            b = kk % 2
            ops = [[] for _ in range(4)]
            ops[0].append(lambda: rd.__setitem__((kk, 'x'), k(
                f'ds_read_b128 {v(XF+4*b,4)}, v{10+8*q+ks} offset:{so}')))
            for j in range(4):
                for hf in range(2):
                    ops[j].append(lambda j=j, hf=hf: rd.__setitem__((kk, j), k(
                        f'ds_read_b64_tr_b16 {v(WF+16*b+4*j+2*hf,2)}, v{14+8*q+j} offset:{so+ks*4096+hf*1024}')))
            return ops
        for l_ in reads(0):
            runall(k, l_)
        clr = clear_ops(k, 96, 100)
        for kk in range(40):
            b = kk % 2
            if kk % 8 == 4:
                stamp(k, 4 + kk // 8)
            fill, rds = [], []
            if kk >= OPT.get('clr0', 31) and clr:
                fill.append(clr.pop(0))
            if kk + 1 < 40:
                if (kk + 1) % 4 == 0:
                    if kk == 7:
                        nonce_share()
                    if (kk + 1) // 4 in ctok:
                        k.wait(ctok[(kk + 1) // 4])
                    k.wait_all(vm=False)
                    k('s_barrier')
                    if kk == 7:
                        nonce_get()
                rds = reads(kk + 1)
            if kk < 20:
                def dots(b=b, kk=kk):
                    for i in range(4):
                        k(f'v_dot2_f32_bf16 v{VSUM}, v{XF+4*b+i}, v{VONE}, v{VSUM}')
                        k(f'v_dot2_f32_bf16 v{VSQ}, v{XF+4*b+i}, v{XF+4*b+i}, v{VSQ}')
                        k(f'v_dot2_f32_bf16 v{VCS}, v{WF+16*b+i}, v{VONE}, v{VCS}')
                    if kk % 4 == 3:
                        xsum(k, VSUM, 80, 81)
                        xsum(k, VSQ, 80, 81)
                        xsum(k, VCS, 80, 81)
                        k.raw(f'    buffer_store_dwordx2 {v(VSUM,2)}, v109, {WSR}, s51 offen sc1')
                        k.raw(f'    buffer_store_dword v{VCS}, v102, {WSR}, s52 offen sc1')

                def g_(dots=dots, kk=kk):
                    k(f's_cmp_eq_u32 s55, {kk//4}')
                    k.outline('s_cbranch_scc1', dots)
                fill.append(g_)
            if kk == 22:
                fill.append(lambda: T.__setitem__('flags', flags_issue(k, WS_F0, FL, 106)))
            if kk == 30:
                def f():
                    flags_check(k, WS_F0, FL, 106, T['flags'])
                    T['part'] = part_loads(k)
                fill.append(f)
            if kk == 38:
                fill.append(lambda: finalize(transposed))
            mf = []
            for j in range(4):
                c = '0' if kk == 0 else v(ACC + 16 * j, 16)
                A_, B_ = v(WF + 16 * b + 4 * j, 4), v(XF + 4 * b, 4)
                if not transposed:
                    A_, B_ = B_, A_
                mf.append((lambda j=j: [rd[kk, 'x'], rd[kk, j]],
                           f'v_mfma_f32_32x32x16_bf16 {v(ACC+16*j,16)}, {A_}, {B_}, {c}'))
            roll_step(k, mf, rds, fill)

    def finalize(transposed):
        k.wait(T['part'])
        check_group(k, list(range(PR, PR + 10)) + list(range(PCR, PCR + 5)), 80, part_loads)
        for n in range(1, 5):
            k(f'v_pk_add_f32 {v(PR,2)}, {v(PR,2)}, {v(PR+2*n,2)}')
            k(f'v_add_f32 v{PCR}, v{PCR}, v{PCR+n}')
        xsum(k, PCR, 80, 81)
        k(f's_lshl_b32 s49, s{S_W4}, 7')
        k(f's_add_u32 s49, s49, {XCH}')
        k('v_add_u32 v82, s49, v102')
        k(f'ds_write_b32 v82, v{PCR}')
        vsum, vsq = PR, PR + 1
        xsum(k, vsum, 80, 81)
        xsum(k, vsq, 80, 81)
        k(f'v_mul_f32 v{vsum}, {f32(1.0/640)}, v{vsum}')
        k(f'v_mul_f32 v{vsq}, {f32(1.0/640)}, v{vsq}')
        k(f'v_fma_f32 v{vsq}, -v{vsum}, v{vsum}, v{vsq}')
        k(f'v_max_f32 v{vsq}, 0, v{vsq}')
        rbf(k, 80, vsum)
        rbf(k, 81, vsq)
        k(f'v_add_f32 v81, {f32(1e-5)}, v81')
        rbf(k, 81, 81)
        k('v_sqrt_f32 v81, v81')
        rbf(k, 81, 81)
        k('v_rcp_f32 v38, v81')
        if transposed:
            k(f's_mov_b32 s49, {f32(math.log2(math.e)/math.sqrt(20.0))}')
            k(f's_cmp_lt_u32 s{S_NT}, 5')
            k('s_cselect_b32 s49, s49, 1.0')
            k('v_mul_f32 v38, s49, v38')
        k('v_mul_f32 v39, v80, v38')
        k('v_sub_f32 v39, 0, v39')
        if not transposed:
            k(f's_lshl_b32 s49, s{S_W4}, 8')
            k(f's_add_u32 s49, s49, {XCH}')
            k('v_add_u32 v83, s49, v102')
            k('ds_write_b32 v83, v38 offset:1024')
            k('ds_write_b32 v83, v39 offset:1152')

    def fin():
        stamp(k, 10)
        k(f's_lshl_b32 s49, s{S_MT}, 4')
        k(f's_add_u32 s49, s49, s{S_NT}')
        k.wait_all()
        wflag_store(k, WS_F2, 49, 80, 81, 0)
        k(f's_branch {lab_done}')

    mainloop(True)
    stamp(k, 9)
    k.wait_all(vm=False)
    k('s_barrier')
    k(f's_lshl_b32 s49, s{S_TOK}, 3')
    k('v_add_u32 v84, s49, v109')
    k('v_lshl_add_u32 v84, v105, 14, v84')
    k('v_lshlrev_b32 v85, 4, v105')
    k(f'v_add_u32 v85, {XCH}, v85')
    toks = {}

    def csreads(j):
        k(f's_add_u32 s49, s{S_W4}, {j}')
        k('s_and_b32 s49, s49, 3')
        k('s_lshl_b32 s52, s49, 7')
        k('v_add_u32 v86, s52, v85')
        for a_ in range(4):
            toks[j, a_] = k(f'ds_read_b128 {v(192+16*(j%2)+4*a_,4)}, v86 offset:{a_*32}')
    csreads(0)
    csreads(1)
    for j in range(4):
        k(f's_add_u32 s49, s{S_W4}, {j}')
        k('s_and_b32 s49, s49, 3')
        k(f's_lshl_b32 s52, s{S_NT}, 5')
        k('s_lshl_b32 s53, s49, 3')
        k('s_add_u32 s52, s52, s53')
        k('s_lshl_b32 s52, s52, 14')
        C0 = 192 + 16 * (j % 2)
        for a_ in range(4):
            k.wait(toks[j, a_])
            r0 = ACC + 16 * j + 4 * a_
            for p in range(2):
                k(f'v_pk_mul_f32 {v(C0+4*a_+2*p,2)}, {v(C0+4*a_+2*p,2)}, {v(38,2)} op_sel:[0,1] op_sel_hi:[1,1]')
                k(f'v_pk_fma_f32 {v(r0+2*p,2)}, {v(r0+2*p,2)}, {v(38,2)}, {v(C0+4*a_+2*p,2)} op_sel_hi:[1,0,1]')
            k(f'v_cvt_pk_bf16_f32 v{112+2*a_}, v{r0}, v{r0+1}')
            k(f'v_cvt_pk_bf16_f32 v{113+2*a_}, v{r0+2}, v{r0+3}')
            k(f's_add_u32 s53, s52, {WS_QG + a_*32768}')
            k(f'buffer_store_dwordx2 {v(112+2*a_,2)}, v84, {WSR}, s53 offen sc1')
        if j + 2 < 4:
            csreads(j + 2)
    fin()
    k.label(lab_v)
    k.restore(saved)
    mainloop(False)
    stamp(k, 9)
    k.wait_all(vm=False)
    k('s_barrier')
    k(f's_lshl_b32 s49, s{S_W4}, 8')
    k(f's_add_u32 s49, s49, {XCH}')
    k('v_lshlrev_b32 v86, 4, v105')
    k('v_add_u32 v86, s49, v86')
    tl = []
    for a_ in range(4):
        tl.append(k(f'ds_read_b128 {v(192+4*a_,4)}, v86 offset:{1024+a_*32}'))
        tl.append(k(f'ds_read_b128 {v(208+4*a_,4)}, v86 offset:{1152+a_*32}'))
    for j in range(4):
        k(f's_add_u32 s52, s{S_W4}, {j}')
        k('s_and_b32 s52, s52, 3')
        k('s_lshl_b32 s52, s52, 7')
        k(f's_add_u32 s52, s52, {XCH}')
        k('v_add_u32 v87, s52, v102')
        tl.append(k(f'ds_read_b32 v{224+2*j}, v87'))
    k('v_mul_u32_u24 v84, 10240, v105')
    k('v_lshl_add_u32 v84, v102, 2, v84')
    k(f's_lshr_b32 s53, s{S_TOK}, 5')
    k('s_mul_i32 s53, s53, 40960')
    k(f's_sub_u32 s54, s{S_NT}, 10')
    k('s_lshl_b32 s54, s54, 11')
    k('s_add_u32 s53, s53, s54')
    k(f's_add_u32 s53, s53, {WS_VF}')
    k.wait(*tl)
    for j in range(4):
        k(f's_add_u32 s52, s{S_W4}, {j}')
        k('s_and_b32 s52, s52, 3')
        k('s_lshl_b32 s52, s52, 9')
        k('s_add_u32 s52, s52, s53')
        for m in range(2):
            for p in range(4):
                i = 8 * m + 2 * p
                r0 = ACC + 16 * j + i
                k(f'v_pk_mul_f32 {v(88+2*(p%2),2)}, {v(208+i,2)}, {v(224+2*j,2)} op_sel_hi:[1,0]')
                k(f'v_pk_fma_f32 {v(r0,2)}, {v(r0,2)}, {v(192+i,2)}, {v(88+2*(p%2),2)}')
                k(f'v_cvt_pk_bf16_f32 v{112+8*(j%2)+4*m+p}, v{r0}, v{r0+1}')
            k(f's_add_u32 s54, s52, {m*20480}')
            k(f'buffer_store_dwordx4 {v(112+8*(j%2)+4*m,4)}, v84, {WSR}, s54 offen sc1')
    fin()
    k.label(lab_h)
    k.restore(saved)
    nonce_share()
    k('s_barrier')
    nonce_get()
    for _ in range(8):
        k('s_barrier')
    runall(k, clear_ops(k, 96, 100))
    k('s_barrier')
    k(f's_lshl_b32 s49, s{S_X8}, 1')
    k(f's_add_u32 s49, s49, s{S_I32}')
    k('s_sub_u32 s49, s49, 30')
    k('s_lshl_b32 s49, s49, 4')
    k('s_add_u32 s49, s49, 15')
    k.wait_all()
    wflag_store(k, WS_F2, 49, 80, 81, 0)
    k.label(lab_done)


P5_BAR = (2, 4, 6, 8, 10)


class G35:
    def __init__(self, k, which, groups, vb, sb):
        self.k = k
        self.which = which
        self.KT = 640 if which == 3 else 1536
        self.NST = self.KT // 128
        self.SB = S_WO if which == 3 else S_WD
        self.groups = groups
        self.vb = vb
        self.sb = sb
        self.btok = {}
        self.rtok = {}
        self.sr = 36 if which == 3 else 37

    def set_rho(self, sct):
        k = self.k
        sr = self.sr
        if not OPT.get('rot35', 1):
            k(f's_mov_b32 s{sr}, 0')
        elif self.which == 3:
            k(f's_sub_u32 s{sr}, s{sct}, 5')
            k(f's_cmp_ge_u32 s{sct}, 5')
            k(f's_cselect_b32 s{sr}, s{sr}, s{sct}')
        else:
            k(f's_mul_i32 s{sr}, s{sct}, 3')
            k(f's_lshr_b32 s{sr}, s{sr}, 1')

    def rot(self, c, st, sreg, stmp, mul, src=None):
        c(f's_add_u32 s{sreg}, s{self.sr if src is None else src}, {st}')
        c(f's_sub_u32 s{stmp}, s{sreg}, {self.NST}')
        c(f's_cmp_ge_u32 s{sreg}, {self.NST}')
        c(f's_cselect_b32 s{sreg}, s{stmp}, s{sreg}')
        c(f's_mul_i32 s{sreg}, s{sreg}, {mul}')

    def dma_setup(self, t0):
        k, vb, sb = self.k, self.vb, self.sb
        tile35(k, 61, 60, sb)
        self.set_rho(60)
        k('s_mul_i32 s60, s60, 160')
        k(f's_mul_i32 s{sb+1}, s{S_W4}, {(self.KT//4)*1280}')
        k(f's_add_u32 s60, s60, s{sb+1}')
        for n in range(5):
            k(f'v_add_u32 v{t0}, {64*n}, v1')
            k(f'v_mul_u32_u24 v{t0+1}, 6554, v{t0}')
            k(f'v_lshrrev_b32 v{t0+1}, 16, v{t0+1}')
            k(f'v_mul_u32_u24 v{t0+2}, 10, v{t0+1}')
            k(f'v_sub_u32 v{t0+2}, v{t0}, v{t0+2}')
            k(f'v_bfe_u32 v{t0+3}, v{t0+1}, 3, 1')
            k(f'v_lshlrev_b32 v{t0+3}, 2, v{t0+3}')
            k(f'v_xor_b32 v{t0+1}, v{t0+1}, v{t0+3}')
            k(f'v_mul_u32_u24 v{t0+1}, 1280, v{t0+1}')
            k(f'v_lshl_add_u32 v{vb+n}, v{t0+2}, 4, v{t0+1}')
            k(f'v_add_u32 v{vb+n}, s60, v{vb+n}')
            if 0 < n < 4:
                k(f'v_subrev_u32 v{vb+n}, {n*1024}, v{vb+n}')
        k(f's_mul_i32 s{sb}, s{S_W4}, 5120')

    def dma_step(self, st):
        k, vb, sb = self.k, self.vb, self.sb
        base = self.groups[st % len(self.groups)]
        SB = self.SB
        ops = []

        def f0():
            k(f's_add_u32 m0, s{sb}, {base}')
            self.rot(k, st, sb + 1, 38, 32 * 1280)
        ops.append(f0)
        for n in range(4):
            ops.append(lambda n=n: self.btok.__setitem__(st, k(
                f'buffer_load_dwordx4 v{vb+n}, s[{SB}:{SB+3}], s{sb+1} offen offset:{n*1024} lds')))
        ops.append(lambda: k(f's_add_u32 m0, s{sb}, {base+4096}'))
        ops.append(lambda: self.btok.__setitem__(st, k(
            f'buffer_load_dwordx4 v{vb+4}, s[{SB}:{SB+3}], s{sb+1} offen lds')))
        return ops

    def breg_load(self, st, r0):
        k, vb, sb, SB = self.k, self.vb, self.sb, self.SB
        self.rot(k, st, sb + 1, 38, 32 * 1280)
        for n in range(4):
            k(f'buffer_load_dwordx4 {v(r0+4*n,4)}, v{vb+n}, s[{SB}:{SB+3}], s{sb+1} offen offset:{n*1024}')
            if OPT.get('pace', 0):
                k(f's_sleep {OPT.get("pace")}')
        self.rtok[st] = (k(f'buffer_load_dwordx4 {v(r0+16,4)}, v{vb+4}, s[{SB}:{SB+3}], s{sb+1} offen'), r0)

    def breg_write(self, st, va):
        k = self.k
        tok, r0 = self.rtok[st]
        base = self.groups[st % len(self.groups)]
        q, so = base // 61440, base % 61440
        k.wait(tok)
        for n in range(5):
            self.btok[st] = k(f'ds_write_b128 v{va+q}, {v(r0+4*n,4)} offset:{so+n*1024}')

    def loader(self, nb_pre, st0=0):
        k, NST = self.k, self.NST
        NG = len(self.groups)
        k('v_lshlrev_b32 v12, 4, v1')
        k(f's_mul_i32 s46, s{S_W4}, 5120')
        k('v_add_u32 v21, s46, v12')
        k('v_add_u32 v22, 61440, v21')
        k('v_add_u32 v23, 122880, v21')
        stamp(k, st0)
        k.wait(*[self.btok[s_] for s_ in range(7)])
        k('s_barrier')

        def put(nb):
            if nb in self.rtok:
                self.breg_write(nb, 21)
            else:
                runall(k, self.dma_step(nb))
        k('s_barrier')
        for nb in (7, 8, 9):
            put(nb)
        k('s_barrier')
        put(11)
        put(10)
        k.wait(self.btok[7], self.btok[8])
        k('s_barrier')
        k.wait(self.btok[9], self.btok[10])
        k('s_barrier')
        k.wait(self.btok[11])
        k('s_barrier')
        stamp(k, st0 + 3)

    def compute(self, own_tok, st0=0):
        k, NST, which, KT = self.k, self.NST, self.which, self.KT
        NG = len(self.groups)
        ABASE = WS_OC if which == 3 else WS_HC
        S_RT, S_CT, S_PAR = 44, 45, 50
        tile35(k, 44, 45, 46)
        self.set_rho(45)
        k('s_mov_b32 s50, 0')
        k(f's_mul_i32 s51, s{S_W4}, 5120')
        k('v_and_b32 v15, 15, v1')
        k('v_lshrrev_b32 v16, 4, v1')
        k('v_bfe_u32 v17, v1, 2, 2')
        k('v_lshl_add_u32 v18, v16, 3, v17')
        k('v_bfe_u32 v20, v1, 4, 1')
        k('v_lshlrev_b32 v20, 2, v20')
        k('v_xor_b32 v19, v18, v20')
        k('v_xor_b32 v22, 4, v19')
        k('v_and_b32 v21, 3, v1')
        RA = 24
        for hf, src in ((0, 19), (1, 22)):
            k(f'v_mul_u32_u24 v{RA+hf}, 160, v{src}')
            k(f'v_lshl_add_u32 v{RA+hf}, v21, 3, v{RA+hf}')
            k(f'v_add_u32 v{RA+hf}, s51, v{RA+hf}')
        QS = 61440
        for q in (1, 2):
            for i in range(2):
                k(f'v_add_u32 v{RA+2*q+i}, {q*QS}, v{RA+i}')
        k('v_lshlrev_b32 v2, 4, v1')
        k('v_lshlrev_b32 v3, 4, v15')
        k('v_lshl_add_u32 v3, v16, 15, v3')
        for tau in range(4):
            k(f's_add_u32 s46, s{S_W4}, {tau}')
            k('s_and_b32 s46, s46, 3')
            k('s_lshl_b32 s46, s46, 8')
            k(f'v_add_u32 v{4+tau}, s46, v3')
        k('s_lshl_b32 s53, s44, 10')
        k(f's_mul_i32 s54, s{S_W4}, {(KT//32)*32768}')
        k('s_add_u32 s53, s53, s54')
        k(f's_add_u32 s53, s53, {ABASE}')
        NW = 5
        AFR = 164
        atok = {}

        def aload(c, st, sreg):
            self.rot(c, st, sreg, 38, 4 * 32768)
            c(f's_add_u32 s{sreg}, s{sreg}, s53')
            t_ = None
            for t in range(4):
                t_ = c(f'buffer_load_dwordx4 {v(AFR+16*(st%NW)+4*t,4)}, v{4+t}, {WSR}, s{sreg} offen sc1')
            return t_
        RES = 244
        XG = [0, 20480, 40960] if which == 3 else [0, 20480, 49152]
        k('v_add_u32 v30, s51, v2')
        for tau in range(1, 4):
            k(f's_sub_u32 s47, s{S_W4}, {tau}')
            k('s_and_b32 s47, s47, 3')
            k('s_mul_i32 s47, s47, 5120')
            k(f'v_add_u32 v{30+tau}, s47, v2')
        k(f's_lshl_b32 s46, s{S_RT}, 6')
        k(f's_lshl_b32 s47, s{S_W4}, 4')
        k('s_add_u32 s46, s46, s47')
        S_TK = 46
        k('v_add_u32 v12, s46, v15')
        if which == 3:
            k('v_lshlrev_b32 v34, 4, v12')
            k('v_lshrrev_b32 v14, 1, v16')
            k('v_lshl_add_u32 v35, v14, 15, v34')
            k('v_and_b32 v14, 1, v16')
            k('v_lshl_add_u32 v36, v14, 16, v35')
            k('v_lshl_add_u32 v34, v14, 3, v35')
            k('v_lshlrev_b32 v37, 3, v12')
            k('v_mov_b32 v38, 0x3f803f80')
        else:
            P = 176
            k(f'v_mul_u32_u24 v34, {P}, v15')
            k('v_lshl_add_u32 v34, v16, 3, v34')
            k(f's_lshl_b32 s47, s{S_W4}, 12')
            k('s_add_u32 s47, s47, 90112')
            k('v_add_u32 v34, s47, v34')
            for it in range(3):
                k(f'v_add_u32 v17, {64*it}, v1')
                k('v_mul_u32_u24 v18, 6554, v17')
                k('v_lshrrev_b32 v18, 16, v18')
                k('v_mul_u32_u24 v19, 10, v18')
                k('v_sub_u32 v19, v17, v19')
                k(f'v_mul_u32_u24 v20, {P}, v18')
                k('v_lshl_add_u32 v20, v19, 4, v20')
                k(f'v_add_u32 v{35+it}, s47, v20')
                k('v_mul_u32_u24 v20, 1280, v18')
                k(f'v_lshl_add_u32 v{38+it}, v19, 4, v20')
        if which == 3:
            k('v_mul_u32_u24 v13, 1280, v12')
            k('v_lshl_add_u32 v13, v16, 3, v13')
            k(f's_mul_i32 s47, s{S_CT}, 160')
            k(f's_lshl_b32 s48, s{S_PAR}, 5')
            k('s_add_u32 s48, s48, s47')
            k(f's_lshl_b32 s49, s{S_PAR}, 7')
            k('s_sub_u32 s49, 128, s49')
            k('s_add_u32 s49, s49, s47')
            for jt in range(4):
                k(f'buffer_load_dwordx2 {v(RES+2*jt,2)}, v13, s[{S_X}:{S_X+3}], s48 offen offset:{jt*32}')
            rtk = k(f'buffer_load_dwordx2 {v(RES+8,2)}, v13, s[{S_X}:{S_X+3}], s49 offen')
            k('v_bfe_u32 v10, v1, 1, 2')
            k(f'v_mul_u32_u24 v10, {5*32768}, v10')
            k('v_and_b32 v11, 1, v1')
            k('v_lshl_add_u32 v10, v11, 3, v10')
            k('v_bfe_u32 v11, v1, 3, 1')
            k('v_lshl_add_u32 v10, v11, 9, v10')
            k(f's_add_u32 s55, s53, {2*32768 + 31*16}')
            tile4(k, 48, 49, 47)
            k('s_lshl_b32 s48, s48, 4')
            k('s_add_u32 s49, s49, s48')
            stamp(k, st0 - 1)
            k('s_barrier')
            rflag_store(k, WS_F3, 49, 8, 9)
            stamp(k, st0)
            if OPT.get('odelay', 0):
                k(f's_sleep {OPT.get("odelay")}')
            if OPT.get('probe', 0) & 1:
                probe(k, 55, 10, 11)
        else:
            stamp(k, st0)
            k.wait(own_tok)
            if OPT.get('Hdelay', 0):
                k(f's_sleep {OPT.get("Hdelay")}')
            if OPT.get('probe', 0) & 4:
                k('v_and_b32 v10, 3, v1')
                k(f'v_mul_u32_u24 v10, {12*32768}, v10')
                k('v_bfe_u32 v11, v1, 2, 1')
                k('v_lshl_add_u32 v10, v11, 9, v10')
                k(f's_add_u32 s55, s53, {11*32768 + 31*16}')
                probe(k, 55, 10, 11)
        stamp(k, st0 + 1)
        ACC, WF = 44, 124
        D = OPT.get('ad', 1)
        for st in range(D):
            atok[st] = aload(k, st, 54)
        rt = {}

        def reads(st):
            base = self.groups[st % NG]
            q, so = base // QS, base % QS
            b = st % 2
            ops = []
            for jt in range(5):
                for hf in range(2):
                    ops.append(lambda jt=jt, hf=hf: rt.__setitem__((st, jt), k(
                        f'ds_read_b64_tr_b16 {v(WF+20*b+4*jt+2*hf,2)}, v{RA+2*q+hf} offset:{so+jt*32}')))
            return ops
        if which == 5:
            k('s_barrier')
        runall(k, reads(0))
        if which == 3:
            k.wait(rtk)
        for i in range(10):
            k(f'v_lshlrev_b32 v{ACC+2*i}, 16, v{RES+i}')
            k(f'v_and_b32 v{ACC+2*i+1}, 0xffff0000, v{RES+i}')
        na = D
        for st in range(NST):
            b = st % 2
            R0 = AFR + 16 * (st % NW)
            if which == 5 and OPT.get('p5st') and st >= 1:
                stamp(k, 12 + st)
            k.wait(atok[st])
            hi = na if OPT.get('rall', 1) else st + 1
            check_group(k, range(R0, R0 + 16), 14, lambda c, st=st, hi=hi: [aload(c, s_, 58) for s_ in range(st, hi)])
            if st == 0:
                stamp(k, st0 + 2)
            if which == 5 and OPT.get('p5st') and st >= 1:
                stamp(k, st)
            mf = []
            for t in ((1, 2, 3, 0) if st == NST - 1 else range(4)):
                for jt in range(5):
                    acc = v(ACC + 20 * t + 4 * jt, 4)
                    c = '0' if (st == 0 and t != 0) else acc
                    mf.append((lambda jt=jt: [rt[st, jt]],
                               f'v_mfma_f32_16x16x32_bf16 {acc}, {v(WF+20*b+4*jt,4)}, {v(R0+4*t,4)}, {c}'))
            rds = [[] for _ in range(20)]
            cnt = 0
            while na < NST and na <= st + NW - 1 and cnt < 2:
                def al(na=na):
                    self.rot(k, na, 54, 38, 4 * 32768)
                    k('s_add_u32 s54, s54, s53')
                rds[0 + 10 * cnt].append(al)
                for t in range(4):
                    rds[0 + 10 * cnt + 2 * t].append(lambda t=t, na=na: atok.__setitem__(na, k(
                        f'buffer_load_dwordx4 {v(AFR+16*(na%NW)+4*t,4)}, v{4+t}, {WSR}, s54 offen sc1')))
                na += 1
                cnt += 1
            if st + 1 < NST:
                if which == 5 and st in P5_BAR:
                    def bar():
                        k.wait_all(vm=False)
                        k('s_barrier')
                    rds[5].append(bar)
                for i, f in enumerate(reads(st + 1)):
                    rds[5 + i].append(f)
            if st == NST - 1:
                for tau in range(1, 3):
                    for jt in range(5):
                        rds[5 * tau + 4 + jt if tau == 1 else 14 + jt].append(
                            f'ds_write_b128 v30, {v(ACC+20*tau+4*jt,4)} offset:{XG[tau-1]+jt*1024}')
            roll_step(k, mf, rds, [])
        stamp(k, st0 + 3)
        for jt in range(5):
            k(f'ds_write_b128 v30, {v(ACC+60+4*jt,4)} offset:{XG[2]+jt*1024}')
        if which == 3:
            k(f's_mul_i32 s48, s{S_CT}, 10')
            k('s_lshl_b32 s48, s48, 15')
            k(f's_add_u32 s48, s48, {WS_H1}')
            k(f's_lshl_b32 s49, s{S_CT}, 14')
            k(f's_add_u32 s49, s49, {WS_HS}')
            k('v_mov_b32 v40, 0')
            k('v_mov_b32 v41, 0')
        else:
            k(f's_mul_i32 s48, s{S_CT}, 160')
            k(f's_mul_i32 s49, s{S_TK}, 1280')
            k('s_add_u32 s48, s48, s49')
        k.wait_all(vm=False)
        k('s_barrier')
        S0, S1 = ACC, 124
        toks = {}
        for jt in range(5):
            for sidx in range(3):
                toks[sidx, jt] = k(f'ds_read_b128 {v(S1+20*sidx+4*jt,4)}, v{31+sidx} offset:{XG[sidx]+jt*1024}')
        PK = RES if which == 3 else 190
        for jt in range(5):
            k.wait(toks[2, jt])
            for p in range(2):
                r = 4 * jt + 2 * p
                k(f'v_pk_add_f32 {v(S1+r,2)}, {v(S1+r,2)}, {v(S1+20+r,2)}')
                k(f'v_pk_add_f32 {v(S0+r,2)}, {v(S0+r,2)}, {v(S1+40+r,2)}')
            for p in range(2):
                r = 4 * jt + 2 * p
                k(f'v_pk_add_f32 {v(S0+r,2)}, {v(S0+r,2)}, {v(S1+r,2)}')
            for p in range(2):
                r = 4 * jt + 2 * p
                k(f'v_cvt_pk_bf16_f32 v{PK+2*jt+p}, v{S0+r}, v{S0+r+1}')
            if which == 3:
                if jt < 4:
                    for p in range(2):
                        k(f'v_mov_b32 v{200+2*jt+p}, v{PK+2*jt+p}')
                if jt in (1, 3):
                    pr = jt // 2
                    for d in range(2):
                        k(f'v_permlane16_swap_b32 v{200+4*pr+d}, v{200+4*pr+2+d}')
                    k(f's_add_u32 s47, s48, {pr*4*32768}')
                    k(f'buffer_store_dwordx4 {v(200+4*pr,4)}, v36, {WSR}, s47 offen sc1')
                if jt == 4:
                    k(f's_add_u32 s47, s48, {8*32768}')
                    k(f'buffer_store_dwordx2 {v(PK+8,2)}, v34, {WSR}, s47 offen sc1')
            else:
                k(f'ds_write_b64 v34, {v(PK+2*jt,2)} offset:{jt*32}')
        stamp(k, st0 + 4)
        if which == 3:
            for i in range(10):
                k(f'v_dot2_f32_bf16 v40, v{PK+i}, v38, v40')
                k(f'v_dot2_f32_bf16 v41, v{PK+i}, v{PK+i}, v41')
            for r in (40, 41):
                xsum(k, r, 156, 157, 32)
                xsum(k, r, 156, 157, 16)
            k('s_mov_b64 exec, 0xffff')
            self.own = k(f'buffer_store_dwordx2 {v(40,2)}, v37, {WSR}, s49 offen sc1')
            k('s_mov_b64 exec, -1')
            k('s_barrier')
        else:
            k.wait_all(vm=False)
            tl = [k(f'ds_read_b128 {v(168+4*it,4)}, v{35+it}') for it in range(3)]
            for it in range(3):
                k.wait(tl[it])
                if it == 2:
                    k('v_cmp_gt_u32 vcc, 32, v1')
                    k('s_mov_b64 exec, vcc')
                k(f'buffer_store_dwordx4 {v(168+4*it,4)}, v{38+it}, s[{S_OUT}:{S_OUT+3}], s48 offen sc1')
            k('s_mov_b64 exec, -1')


def p2_setup(k):
    LK, LV = 102400, 122880
    k(f's_and_b32 s45, s{S_I32}, 3')
    k(f's_lshl_b32 s44, s{S_X8}, 2')
    k('s_add_u32 s45, s45, s44')
    k(f's_lshr_b32 s44, s{S_I32}, 2')
    S_I, S_H = 44, 45
    k(f's_lshl_b32 s46, s{S_I}, 8')
    k('s_sub_u32 s47, s46, 256')
    k('s_max_i32 s47, s47, 0')
    k(f's_cmp_lt_u32 s{S_W4}, 2')
    k('s_cselect_b32 s48, s47, s46')
    k('s_mov_b32 s50, s48')
    k(f's_and_b32 s49, s{S_W4}, 1')
    k('s_lshl_b32 s49, s49, 7')
    k('s_add_u32 s48, s48, s49')
    k('s_lshl_b32 s48, s48, 3')
    k(f's_mul_i32 s49, s{S_H}, {5*16384}')
    k('s_add_u32 s48, s48, s49')
    k(f's_add_u32 s48, s48, {WS_KG}')
    k('v_lshlrev_b32 v2, 4, v1')
    k('s_lshr_b32 s50, s50, 3')
    k('s_mul_i32 s50, s50, 10240')
    k(f's_mul_i32 s49, s{S_H}, 320')
    k('s_add_u32 s50, s50, s49')
    k(f's_add_u32 s50, s50, {WS_VF}')
    k(f's_cmp_lt_u32 s{S_W}, 4')
    k('s_cselect_b32 s48, s48, s50')
    k('s_cselect_b64 s[96:97], -1, 0')
    k(f's_lshl_b32 s49, s{S_W4}, 10')
    k(f's_add_u32 s49, s49, {LK}')
    k(f's_mul_i32 s50, s{S_W4}, 5120')
    k(f's_add_u32 s50, s50, {LV}')
    k(f's_cmp_lt_u32 s{S_W}, 4')
    k('s_cselect_b32 s50, s49, s50')
    k('s_movk_i32 s56, 1024')
    k('s_cselect_b32 s56, 4096, s56')
    k(f's_and_b32 s49, s{S_W4}, 1')
    k('s_mul_i32 s49, s49, 320')
    for n in range(5):
        k(f'v_add_u32 v3, {n*64}, v1')
        k('v_add_u32 v3, s49, v3')
        k('v_mul_u32_u24 v4, 3277, v3')
        k('v_lshrrev_b32 v4, 16, v4')
        k('v_mul_u32_u24 v5, 20, v4')
        k('v_sub_u32 v5, v3, v5')
        k('v_mul_u32_u24 v4, 10240, v4')
        k(f'v_lshl_add_u32 v4, v5, 4, v4')
        k(f'v_add_u32 v5, {n*16384}, v2')
        k(f'v_cndmask_b32 v{6+n}, v4, v5, s[96:97]')
    k('v_and_b32 v12, 31, v1')
    k('v_lshrrev_b32 v13, 5, v1')
    k('v_lshlrev_b32 v14, 3, v12')
    k('v_lshl_add_u32 v15, v13, 15, v14')
    k(f's_lshl_b32 s51, s{S_W}, 5')
    k('s_add_u32 s51, s51, s46')
    S_Q0 = 51
    k('s_lshl_b32 s52, s51, 3')
    k(f's_mul_i32 s49, s{S_H}, {5*16384}')
    k('s_add_u32 s52, s52, s49')
    k(f's_add_u32 s52, s52, {WS_QG}')
    k('s_add_u32 s53, s52, 16384')
    k(f's_add_u32 s54, s52, {4*16384}')
    PM, NM, ONE, QF, KV, OACC, SB0 = 24, 32, 36, 40, 48, 72, 88
    k('v_lshlrev_b32 v3, 2, v13')
    for i in range(16):
        a_, b_ = i // 4, i % 4
        k(f'v_add_u32 v4, {8*a_+b_}, v3')
        k(f'v_cmp_le_u32 s[{64+2*i}:{65+2*i}], v4, v12')
    k('v_mov_b32 v5, 0xffff')
    k('v_mov_b32 v11, 0xffff0000')
    for p in range(8):
        k(f'v_cndmask_b32 v3, 0, v5, s[{64+4*p}:{65+4*p}]')
        k(f'v_cndmask_b32 v4, 0, v11, s[{66+4*p}:{67+4*p}]')
        k(f'v_or_b32 v{PM+p}, v3, v4')
    k('v_cmp_eq_u32 s[96:97], 1, v13')
    k('v_cmp_gt_u32 s[98:99], 20, v12')
    k('v_cmp_eq_u32 s[100:101], 0, v13')
    k(f's_lshl_b32 s49, s{S_W}, 8')
    k(f's_add_u32 s49, s49, {LK}')
    k('v_lshl_add_u32 v16, v13, 13, v14')
    k('v_add_u32 v16, s49, v16')
    k('v_add_u32 v17, s49, v14')
    k(f's_and_b32 s55, s{S_H}, 1')
    S_PI = 55
    k('v_bfe_u32 v3, v12, 3, 1')
    k('v_bfe_u32 v4, v12, 2, 1')
    k('v_and_b32 v5, 3, v12')
    k('v_lshl_add_u32 v18, v3, 2, v5')
    k('v_lshl_add_u32 v18, v4, 3, v18')
    k('s_lshl_b32 s49, s55, 2')
    k('v_add_u32 v18, s49, v18')
    k('s_lshl_b32 s49, s55, 4')
    k('s_sub_u32 s49, 16, s49')
    k('v_add_u32 v19, s49, v5')
    k('v_cmp_gt_u32 vcc, 16, v12')
    k('v_cndmask_b32 v18, v19, v18, vcc')
    k('v_mul_u32_u24 v19, 320, v13')
    k('v_lshl_add_u32 v18, v18, 4, v19')
    k(f's_mul_i32 s49, s{S_W}, 1280')
    k(f's_add_u32 s49, s49, {LV}')
    k('v_add_u32 v18, s49, v18')
    k('v_mov_b32 v19, 0')
    k('v_mov_b32 v4, 0x3f803f80')
    k('v_cmp_eq_u32 vcc, 20, v12')
    k('v_cndmask_b32 v19, v19, v4, vcc')
    k('v_cmp_eq_u32 vcc, 24, v12')
    k('v_cndmask_b32 v19, v19, v4, vcc')
    for b in range(3):
        k(f'v_mov_b32 v{KV+8*b+6}, 0')
        k(f'v_mov_b32 v{KV+8*b+7}, 0')
    k(f'v_mov_b32 v{QF+6}, 0')
    k(f'v_mov_b32 v{QF+7}, 0')
    k(f'v_cndmask_b32 v{ONE}, v4, 0, s[96:97]')
    for i in range(1, 4):
        k(f'v_mov_b32 v{ONE+i}, 0')
        k(f'v_mov_b32 v{NM+i}, 0')
    k('v_and_b32 v3, 15, v1')
    k(f's_mul_i32 s49, s{S_H}, 20')
    k('s_mov_b64 s[46:47], 0')
    for base, isq in ((0, True), (640, False), (1280, False)):
        for e in (0, 19):
            k(f's_add_u32 s60, s49, {base+e}')
            k('s_lshr_b32 s60, s60, 7')
            k('v_cmp_eq_u32 vcc, s60, v3')
            if isq:
                k('s_and_b64 vcc, vcc, s[96:97]')
            k('s_or_b64 s[46:47], s[46:47], vcc')
    k(f's_cmp_eq_u32 s{S_I}, 0')
    k('s_cselect_b32 s46, 0, s46')
    k(f's_lshl_b32 s49, s{S_I}, 7')
    k(f's_lshl_b32 s60, s{S_X8}, 10')
    k('s_add_u32 s49, s49, s60')
    k(f's_add_u32 s49, s49, {WS_F2 - 128}')
    k('v_lshlrev_b32 v3, 2, v1')


def emit_p2(k, g3):
    LK, LV = 102400, 122880
    S_I, S_H, S_Q0, S_PI = 44, 45, 51, 55
    PM, NM, ONE, QF, KV, OACC, SB0 = 24, 32, 36, 40, 48, 72, 88
    wflag_poll(k, 49, 3, 4, 46, 1, True)
    k('s_barrier')
    stamp(k, 12)
    k('s_mov_b32 m0, s50')
    for n in range(5):
        if n:
            k('s_add_u32 m0, m0, s56')
        k(f'buffer_load_dwordx4 v{6+n}, {WSR}, s48 offen sc1 lds')
    k(f'buffer_load_dwordx2 {v(QF,2)}, v15, {WSR}, s52 offen sc1')
    k(f'buffer_load_dwordx2 {v(QF+2,2)}, v15, {WSR}, s53 offen sc1')
    qt = k(f'buffer_load_dwordx2 {v(QF+4,2)}, v14, {WSR}, s54 offen sc1')
    k.wait(qt)
    k(f'v_cndmask_b32 v{QF+4}, v{QF+4}, 0, s[96:97]')
    k(f'v_cndmask_b32 v{QF+5}, v{QF+5}, 0, s[96:97]')
    k('s_barrier')
    if OPT.get('prio', 0):
        k(f's_cmp_ge_u32 s{S_W}, 4')
        k.outline('s_cbranch_scc1', lambda: k('s_setprio 1'))
    stamp(k, 13)
    pf, hc = [], []
    for i in range(4):
        k(f'v_mov_b32 v{244+i}, -1')
    tile4(k, 60, 61, 56)
    k('s_mul_i32 s61, s61, 12')
    k('s_lshl_b32 s61, s61, 15')
    k('s_lshl_b32 s60, s60, 11')
    k('s_add_u32 s56, s61, s60')
    k(f's_add_u32 s56, s56, {WS_HC}')
    for n in range(3):
        k(f's_mul_i32 s60, s{S_W}, 3')
        k(f's_add_u32 s60, s60, {n}')
        k('s_and_b32 s61, s60, 1')
        k('s_lshl_b32 s61, s61, 10')
        k('s_lshr_b32 s60, s60, 1')
        k('s_lshl_b32 s60, s60, 15')
        k('s_add_u32 s60, s60, s61')
        k('s_add_u32 s60, s60, s56')
        k(f'buffer_store_dwordx4 {v(244,4)}, v2, {WSR}, s60 offen sc1')
    if OPT.get('wgu', 2) == 2:
        k(f's_cmp_lt_u32 s{S_W}, 4')
        k.outline('s_cbranch_scc1', lambda: pf_wgu(k, 238, 239))

    def slot(i):
        return SB0 + 16 * i
    krd = {}

    def kreads(j):
        b = j % 3
        krd[j] = [k(f'ds_read_b64 {v(KV+8*b,2)}, v16 offset:{j*256}'),
                  k(f'ds_read_b64 {v(KV+8*b+2,2)}, v16 offset:{4096+j*256}'),
                  k(f'ds_read_b64 {v(KV+8*b+4,2)}, v17 offset:{16384+j*256}')]
    kreads(0)
    kreads(1)
    for j in range(9):
        b = j % 3
        d = v(slot(j), 16)
        k.wait(*krd[j])
        k(f'v_mfma_f32_32x32x16_bf16 {d}, {v(KV+8*b,4)}, {v(QF,4)}, 0')
        if j + 2 < 9:
            kreads(j + 2)
        k(f'v_mfma_f32_32x32x16_bf16 {d}, {v(KV+8*b+4,4)}, {v(QF+4,4)}, {d}')
    stamp(k, 14)
    lab = k.newlabel('P2_FIX')
    k(f's_cmp_lg_u32 s{S_I}, 0')
    k(f's_cbranch_scc1 {lab}')
    for jj in range(8):
        k(f's_cmp_ge_u32 s{S_W}, {8-jj}')
        k(f's_cbranch_scc1 {lab}')
        for i in range(16):
            k(f'v_mov_b32 v{slot(jj)+i}, {f32(-1e30)}')
    k.label(lab)
    for i in range(16):
        k(f'v_mov_b32 v{KV+i}, v19')
    M0, M1 = 20, 21
    ops = []
    regs = [slot(jj) + i for jj in (1, 2, 3, 4, 5, 6, 7, 0) for i in range(16)]
    for i in range(16):
        ops.append(f'v_cndmask_b32 v{slot(0)+i}, v{slot(0)+i}, v{slot(8)+i}, s[{64+2*i}:{65+2*i}]')
    ops += [f'v_max3_f32 v{M0}, v{regs[0]}, v{regs[1]}, v{regs[2]}',
            f'v_max3_f32 v{M1}, v{regs[3]}, v{regs[4]}, v{regs[5]}']
    i, t = 6, 0
    while i < 128:
        m = M0 if t % 2 == 0 else M1
        ops.append(f'v_max3_f32 v{m}, v{m}, v{regs[i]}, v{regs[i+1]}')
        i += 2
        t += 1
    ops += [f'v_max_f32 v{M0}, v{M0}, v{M1}',
            f'v_mov_b32 v{M1}, v{M0}',
            f'v_permlane32_swap_b32 v{M0}, v{M1}',
            f'v_max_f32 v{M0}, v{M0}, v{M1}',
            f'v_sub_f32 v{M0}, 0, v{M0}',
            f'v_cvt_pk_bf16_f32 v{M1}, v{M0}, v{M0}',
            f'v_lshlrev_b32 v{M1}, 16, v{M1}',
            f'v_sub_f32 v{M1}, v{M0}, v{M1}',
            f'v_cvt_pk_bf16_f32 v{NM}, v{M0}, v{M1}',
            f'v_cndmask_b32 v{NM}, v{NM}, 0, s[96:97]']
    spread(k, ops, pf[:2])
    pf = pf[2:]
    stamp(k, 15)
    vrd = {}
    nbuf = [0]

    def vreads(jkey):
        toks, bufs = [], []
        k('s_mov_b64 exec, s[98:99]')
        for m in range(2):
            bi = nbuf[0] % 4
            nbuf[0] += 1
            bufs.append(bi)
            toks.append(k(f'ds_read_b128 {v(KV+4*bi,4)}, v18 offset:{jkey*1280+m*640}'))
        k('s_mov_b64 exec, -1')
        vrd[jkey] = (toks, bufs)
    first = [True]
    oacc = v(OACC, 16)

    def pv_ops(jkey, preg):
        o = []
        for m in range(2):
            def f(m=m):
                toks, bufs = vrd[jkey]
                k.wait(toks[m])
                c = '0' if first[0] else oacc
                first[0] = False
                k(f'v_mfma_f32_32x32x16_bf16 {oacc}, {v(KV+4*bufs[m],4)}, {v(preg+4*m,4)}, {c}')
            o.append(f)
        return o

    def sub_op(jb):
        d = v(slot(jb), 16)
        return f'v_mfma_f32_32x32x16_bf16 {d}, {v(ONE,4)}, {v(NM,4)}, {d}'
    order = [1, 2, 3, 4, 5, 6, 7, 0]
    k(sub_op(order[0]))
    k(sub_op(order[1]))
    vreads(order[0])
    for n, jb in enumerate(order):
        base = slot(jb)
        val = [f'v_exp_f32 v{base+i}, v{base+i}' for i in range(16)]
        val += [f'v_cvt_pk_bf16_f32 v{base+p}, v{base+2*p}, v{base+2*p+1}' for p in range(8)]
        if jb == 0:
            val += [f'v_and_b32 v{base+8+p}, v{PM+p}, v{base+p}' for p in range(8)]
            val += [f'v_bfi_b32 v{base+p}, v{PM+p}, 0, v{base+p}' for p in range(8)]
        side = []
        if n >= 1:
            side += pv_ops(order[n - 1], slot(order[n - 1]))
        nxt = order[n + 1] if n + 1 < 8 else 8
        side.append(lambda nxt=nxt: vreads(nxt))
        if n + 2 < 8:
            side.append(sub_op(order[n + 2]))
        if pf:
            side.append(pf.pop(0))
        if hc and (n % 2 == 1 or OPT.get('wgulate')):
            side.insert(1, hc.pop(0))
        if OPT.get('wgulate') and pf:
            side.append(pf.pop(0))
        spread(k, val, side)
    tail = pv_ops(0, slot(0)) + pv_ops(8, slot(0) + 8)
    addr = [f's_lshr_b32 s49, s{S_H}, 1', 's_mul_i32 s49, s49, 5', f's_mul_i32 s52, s{S_PI}, 3',
            's_add_u32 s52, s52, s49', 's_lshl_b32 s52, s52, 15', f's_add_u32 s52, s52, {WS_OC}',
            f's_lshl_b32 s53, s{S_Q0}, 4', 's_add_u32 s52, s52, s53', 's_add_u32 s54, s49, 2',
            's_lshl_b32 s54, s54, 15', f's_add_u32 s54, s54, {WS_OC}', 's_add_u32 s54, s54, s53',
            f's_lshl_b32 s49, s{S_PI}, 3', 's_add_u32 s54, s54, s49', 'v_lshlrev_b32 v22, 4, v12',
            'v_lshl_add_u32 v23, v13, 15, v22']
    ftok = flags_issue(k, WS_F2, 240, 237)
    spread(k, addr, tail)
    stamp(k, 18)
    T = OACC
    k(f'v_cndmask_b32 v{T+13}, v{T+12}, v{T+8}, s[96:97]')
    k(f'v_rcp_f32 v{T+14}, v{T+13}')
    for p in range(6):
        k(f'v_pk_mul_f32 {v(T+2*p,2)}, {v(T+2*p,2)}, {v(T+14,2)} op_sel_hi:[1,0]')
    for p in range(6):
        k(f'v_cvt_pk_bf16_f32 v{104+p}, v{T+2*p}, v{T+2*p+1}')
    k(f'buffer_store_dwordx4 {v(104,4)}, v23, {WSR}, s52 offen sc1')
    k('s_mov_b64 exec, s[100:101]')
    own = k(f'buffer_store_dwordx2 {v(108,2)}, v22, {WSR}, s54 offen sc1')
    k('s_mov_b64 exec, -1')
    k.wait_all(vm=False)
    k('s_setprio 0')
    flags_check(k, WS_F2, 240, 237, ftok)
    return own


class P4:
    BS = [102400, 126976, 0, 24576, 49152, 73728]

    def __init__(self, k):
        self.k = k
        self.stok = {}
        self.rtok = {}
        self.VB = 2

    def setup_dma(self, t0):
        k = self.k
        VB = self.VB
        tile4(k, 61, 60, 68)
        k('s_mul_i32 s76, s60, %d' % OPT.get('rot4', 3))
        k('s_add_u32 s76, s76, s61')
        k('s_mul_i32 s77, s76, 6554')
        k('s_lshr_b32 s77, s77, 16')
        k('s_mul_i32 s77, s77, 10')
        k('s_sub_u32 s76, s76, s77')
        k(f's_cmp_lt_u32 s{S_W4}, 2')
        k(f's_cselect_b32 s64, s{S_WG}, s{S_WU}')
        k(f's_cselect_b32 s65, s{S_WG+1}, s{S_WU+1}')
        k('s_mov_b32 s66, 1966080')
        k('s_mov_b32 s67, 0x00020000')
        k(f's_and_b32 s61, s{S_W4}, 1')
        k(f's_mul_i32 s61, s61, {32*3072}')
        k('s_mul_i32 s60, s60, 192')
        k('s_add_u32 s60, s60, s61')
        for n in range(3):
            k(f'v_add_u32 v{t0}, {n*64}, v1')
            k(f'v_mul_u32_u24 v{t0+1}, 5462, v{t0}')
            k(f'v_lshrrev_b32 v{t0+1}, 16, v{t0+1}')
            k(f'v_mul_u32_u24 v{t0+2}, 12, v{t0+1}')
            k(f'v_sub_u32 v{t0+2}, v{t0}, v{t0+2}')
            k(f'v_mul_u32_u24 v{t0+1}, 3072, v{t0+1}')
            k(f'v_lshl_add_u32 v{VB+n}, v{t0+2}, 4, v{t0+1}')
            k(f'v_add_u32 v{VB+n}, s60, v{VB+n}')
            if n:
                k(f'v_subrev_u32 v{VB+n}, {n*1024}, v{VB+n}')
        k(f's_mul_i32 s68, s{S_W4}, 6144')

    def sig(self, c, st, sreg, stmp):
        c(f's_add_u32 s{sreg}, s76, {st}')
        c(f's_sub_u32 s{stmp}, s{sreg}, 10')
        c(f's_cmp_ge_u32 s{sreg}, 10')
        c(f's_cselect_b32 s{sreg}, s{stmp}, s{sreg}')

    def dma_stage(self, st):
        k = self.k
        base = self.BS[st % 6]
        self.sig(k, st, 69, 77)
        k(f's_mul_i32 s69, s69, {64*3072}')
        for per in range(2):
            k(f's_add_u32 m0, s68, {base+per*3072}')
            if per:
                k(f's_add_u32 s69, s69, {16*3072}')
            for n in range(3):
                self.stok[st] = k(f'buffer_load_dwordx4 v{self.VB+n}, s[64:67], s69 offen offset:{n*1024} lds')

    BR = 124

    def breg_load(self, st):
        k = self.k
        r0 = self.BR + 24 * (st - 6)
        self.sig(k, st, 69, 77)
        k(f's_mul_i32 s69, s69, {64*3072}')
        for per in range(2):
            if per:
                k(f's_add_u32 s69, s69, {16*3072}')
            for n in range(3):
                self.rtok[st] = k(f'buffer_load_dwordx4 {v(r0+12*per+4*n,4)}, v{self.VB+n}, s[64:67], s69 offen offset:{n*1024}')

    def breg_write(self, st):
        k = self.k
        r0 = self.BR + 24 * (st - 6)
        base = self.BS[st % 6]
        reg, off = (47, base - 102400) if base >= 102400 else (46, base)
        assert off + 6144 < 65536
        k.wait(self.rtok[st])
        for i in range(6):
            self.stok[st] = k(f'ds_write_b128 v{reg}, {v(r0+4*i,4)} offset:{off+i*1024}')

    def pre_colsum(self):
        k = self.k
        CA = 60
        k('v_lshlrev_b32 v46, 4, v1')
        k('v_add_u32 v46, s68, v46')
        k('v_add_u32 v47, 102400, v46')
        k.wait(self.stok[0])
        tk = [k(f'ds_read_b128 {v(84+4*i,4)}, v47 offset:{i*1024}') for i in range(6)]
        for n in range(3):
            k.wait(tk[n], tk[n + 3])
            for p in range(4):
                k(f'v_lshlrev_b32 v{CA+8*n+2*p}, 16, v{84+4*n+p}')
                k(f'v_and_b32 v{CA+8*n+2*p+1}, 0xffff0000, v{84+4*n+p}')
                k(f'v_lshlrev_b32 v{28+2*(p%2)}, 16, v{96+4*n+p}')
                k(f'v_and_b32 v{29+2*(p%2)}, 0xffff0000, v{96+4*n+p}')
                k(f'v_pk_add_f32 {v(CA+8*n+2*p,2)}, {v(CA+8*n+2*p,2)}, {v(28+2*(p%2),2)}')

    def pre_colsum_write(self):
        k = self.k
        CA = 60
        k('v_lshlrev_b32 v16, 5, v1')
        k('v_add_u32 v16, s68, v16')
        k('v_add_u32 v16, 73728, v16')
        for n in range(3):
            k(f'ds_write_b128 v16, {v(CA+8*n,4)} offset:{n*2048}')
            k(f'ds_write_b128 v16, {v(CA+8*n+4,4)} offset:{n*2048+16}')
        k.wait_all(vm=False)

    def loader_setup(self, g5):
        k = self.k
        tile4(k, 44, 45, 46)
        g5.dma_setup(40)
        k('v_cmp_le_u32 vcc, 96, v0')
        k(f'v_mov_b32 v16, {12288-384}')
        k('v_cndmask_b32 v17, 0, v16, vcc')
        k('v_lshl_add_u32 v17, v0, 2, v17')
        k('v_add_u32 v17, 73728, v17')
        k(f'v_mov_b32 v16, {6144-384}')
        k('v_cndmask_b32 v18, 0, v16, vcc')
        k('v_lshl_add_u32 v18, v0, 2, v18')
        k('v_cmp_gt_u32 vcc, 192, v0')
        k('v_cndmask_b32 v19, 0, v18, vcc')
        k(f'v_mov_b32 v16, {OOB}')
        k('v_cndmask_b32 v18, v16, v18, vcc')
        k('s_mul_i32 s51, s45, 384')
        k(f's_add_u32 s51, s51, {WS_PCS}')
        k('s_mul_i32 s52, s44, 12288')
        k('s_add_u32 s52, s52, s51')
        k(f's_mov_b32 s47, {OOB}')
        k('s_cmp_lt_u32 s44, 10')
        k('s_cselect_b32 s52, s52, s47')

    def colsum_reduce(self):
        k = self.k
        rr = list(range(84, 116))
        for half in range(4):
            tk = []
            for r in range(8):
                x = (half % 2) * 8 + r
                tk.append(k(f'ds_read_b32 v{rr[8*half+r]}, v17 offset:{x*384+(half//2)*6144}'))
            k.wait(*tk)
        for stp in (16, 8, 4, 2, 1):
            for i in range(stp):
                k(f'v_add_f32 v{rr[i]}, v{rr[i]}, v{rr[i+stp]}')
        k(f'buffer_store_dword v{rr[0]}, v18, {WSR}, s52 offen sc1')

    def loader(self, g5):
        k = self.k

        def gather(c):
            t = None
            for r in range(10):
                c(f's_add_u32 s58, s51, {r*12288}')
                t = c(f'buffer_load_dword v{24+r}, v19, {WSR}, s58 offen sc1')
            return t
        T = {}
        g5regs = {2 + i: 60 + 20 * i for i in range(9)}
        k('v_lshlrev_b32 v12, 4, v1')
        k(f's_mul_i32 s46, s{S_W4}, 5120')
        k('v_add_u32 v21, s46, v12')
        k('v_add_u32 v22, 61440, v21')
        k('v_add_u32 v23, 122880, v21')
        for st in range(7):
            k.wait(self.stok[st])
            if st == 6:
                k.wait(self.stok[9])
            k.wait_all(vm=False)
            k('s_barrier')
            if st == 0:
                stamp(k, 32)
                self.colsum_reduce()
            if st == 1:
                self.dma_stage(5)
            if 1 <= st <= 4:
                self.dma_stage(st + 5)
            if st == 4:
                T['g'] = gather(k)
                pf_wd(k, 36, 37)
            if st == 5:
                k.wait(T['g'])
                check_group(k, range(24, 34), 11, gather, slp=8)
                for r in range(1, 10):
                    k(f'v_add_f32 v24, v24, v{24+r}')
                k('v_lshlrev_b32 v16, 2, v0')
                k(f'v_add_u32 v16, {XCH}, v16')
                k('ds_write_b32 v16, v24')
        stamp(k, 36)
        runall(k, g5.dma_step(0))
        runall(k, g5.dma_step(1))
        NR1 = OPT.get('nr1', 6)
        for s5 in range(2, 2 + NR1):
            g5.breg_load(s5, g5regs[s5])
        stamp(k, 38)
        cnt_wait(k, 38, 39, 1, 4, bound=200000)
        for s5 in range(2, 7):
            g5.breg_write(s5, 21)
        for s5 in range(2 + NR1, 11):
            g5.breg_load(s5, g5regs[s5])
        stamp(k, 39)

    def compute(self, own_tok):
        k = self.k
        tile4(k, 44, 45, 46)
        S_MT, S_FT, S_TOK = 44, 45, 46
        k('s_lshl_b32 s46, s44, 7')
        k(f's_lshl_b32 s47, s{S_W4}, 5')
        k('s_add_u32 s46, s46, s47')
        k('v_and_b32 v13, 31, v1')
        k('v_lshrrev_b32 v14, 5, v1')
        k('v_lshlrev_b32 v5, 4, v13')
        k('v_lshl_add_u32 v5, v14, 15, v5')
        k('v_bfe_u32 v15, v1, 2, 2')
        k('v_lshl_add_u32 v15, v14, 3, v15')
        k('v_mul_u32_u24 v15, 192, v15')
        k('v_bfe_u32 v16, v1, 4, 1')
        k('v_lshl_add_u32 v15, v16, 5, v15')
        k('v_and_b32 v16, 1, v1')
        k('v_lshl_add_u32 v15, v16, 4, v15')
        k('v_bfe_u32 v16, v1, 1, 1')
        k('v_lshl_add_u32 v6, v16, 3, v15')
        k('v_add_u32 v7, 49152, v6')
        k('v_add_u32 v8, 102400, v6')
        rbase = {0: (6, 0), 24576: (6, 24576), 49152: (7, 0), 73728: (7, 24576), 102400: (8, 0), 126976: (8, 24576)}
        k('s_mul_i32 s76, s45, %d' % OPT.get('rot4', 3))
        k('s_add_u32 s76, s76, s44')
        k('s_mul_i32 s77, s76, 6554')
        k('s_lshr_b32 s77, s77, 16')
        k('s_mul_i32 s77, s77, 10')
        k('s_sub_u32 s76, s76, s77')
        k('s_lshl_b32 s50, s46, 4')
        k(f's_add_u32 s50, s50, {WS_H1}')
        AFR = 180
        atok = {}

        def abase(c, st, sreg, stmp):
            self.sig(c, st, sreg, stmp)
            c(f's_lshl_b32 s{sreg}, s{sreg}, 18')
            c(f's_add_u32 s{sreg}, s{sreg}, s50')

        def aone(c, st, ks, sreg):
            if ks:
                c(f's_add_u32 s{sreg}, s{sreg}, 65536')
            return c(f'buffer_load_dwordx4 {v(AFR+16*(st%4)+4*ks,4)}, v5, {WSR}, s{sreg} offen sc1')

        def astage(c, st, sreg, stmp):
            abase(c, st, sreg, stmp)
            t = None
            for ks in range(4):
                t = aone(c, st, ks, sreg)
            return t
        k('v_lshlrev_b32 v9, 3, v13')
        k('v_lshl_add_u32 v9, v14, 16, v9')
        k(f's_lshl_b32 s51, s{S_TOK}, 3')
        k(f's_add_u32 s51, s51, {WS_HS}')
        HSR = 20

        def hsload(c):
            t = None
            for n in range(4):
                c(f's_add_u32 s58, s51, {n*16384}')
                t = c(f'buffer_load_dwordx2 {v(HSR+2*n,2)}, v9, {WSR}, s58 offen sc1')
            return t
        k('v_lshlrev_b32 v10, 5, v14')
        k(f'v_add_u32 v10, {XCH}, v10')
        ACC, WF = 36, 132

        def csload(p, base):
            t = None
            for mtx in range(2):
                for q in range(4):
                    off = mtx * 384 + p * 128 + (q // 2) * 64 + (q % 2) * 16
                    t = k(f'ds_read_b128 {v(base+16*mtx+4*q,4)}, v10 offset:{off}')
            return t
        rt = {}

        def reads(kk):
            st, ks = kk // 4, kk % 4
            reg, so = rbase[self.BS[st % 6]]
            b = kk % 2
            ops = [[] for _ in range(6)]
            for j in range(6):
                for hf in range(2):
                    off = so + (j // 3) * 12288 + ks * 3072 + hf * 768 + (j % 3) * 64
                    ops[j].append(lambda j=j, hf=hf, off=off: rt.__setitem__((kk, j), k(
                        f'ds_read_b64_tr_b16 {v(WF+24*b+4*j+2*hf,2)}, v{reg} offset:{off}')))
            return ops
        T = {}

        def stats():
            k.wait(T['hs'])
            check_group(k, range(HSR, HSR + 8), 11, hsload)
            for n in range(1, 4):
                k(f'v_pk_add_f32 {v(HSR,2)}, {v(HSR,2)}, {v(HSR+2*n,2)}')
            VSUM, VSQ = HSR, HSR + 1
            xsum(k, VSUM, 24, 25)
            xsum(k, VSQ, 24, 25)
            k(f'v_mul_f32 v{VSUM}, {f32(1.0/640)}, v{VSUM}')
            k(f'v_mul_f32 v{VSQ}, {f32(1.0/640)}, v{VSQ}')
            k(f'v_fma_f32 v{VSQ}, -v{VSUM}, v{VSUM}, v{VSQ}')
            k(f'v_max_f32 v{VSQ}, 0, v{VSQ}')
            rbf(k, 24, VSUM)
            k('v_sub_f32 v26, 0, v24')
            rbf(k, 25, VSQ)
            k(f'v_add_f32 v25, {f32(1e-5)}, v25')
            rbf(k, 25, 25)
            k('v_sqrt_f32 v25, v25')
            rbf(k, 25, 25)
            k('v_rcp_f32 v28, v25')
            k('v_mul_f32 v30, v25, v25')
        stamp(k, 30)
        k.wait(own_tok)
        if OPT.get('hdelay', 0):
            k(f's_sleep {OPT.get("hdelay")}')
        if OPT.get('probe', 0) & 2:
            k('v_and_b32 v2, 7, v1')
            k('v_lshlrev_b32 v2, 14, v2')
            k('v_bfe_u32 v3, v1, 3, 1')
            k('v_lshl_add_u32 v2, v3, 7, v2')
            probe(k, 51, 2, 3)
        stamp(k, 31)
        D4 = OPT.get('ad4', 1)
        for st in range(D4):
            atok[st] = astage(k, st, 49, 48)
        k('s_barrier')
        for l_ in reads(0):
            runall(k, l_)
        for kk in range(40):
            b = kk % 2
            st, ks = kk // 4, kk % 4
            R0 = AFR + 16 * (st % 4)
            if kk % 8 == 4:
                stamp(k, 33 + kk // 8)
            if ks == 0:
                k.wait(atok[st])
                hi = min(st + 3, 10) if OPT.get('rall', 1) else st + 1
                if st == 0:
                    hi = D4
                check_group(k, range(R0, R0 + 16), 11, lambda c, st=st, hi=hi: [astage(c, s_, 58, 59) for s_ in range(st, hi)])
                if kk == 0:
                    stamp(k, 32)
                    for s_ in range(D4, 3):
                        atok[s_] = astage(k, s_, 49, 48)
            fill, rds = [], []
            if st + 3 < 10:
                def al(st=st, ks=ks):
                    if ks == 0:
                        abase(k, st + 3, 49, 48)
                    atok[st + 3] = aone(k, st + 3, ks, 49)
                fill.append(al)
            if kk + 1 < 40:
                if (kk + 1) % 4 == 0 and kk < 24:
                    k.wait_all(vm=False)
                    k('s_barrier')
                rds = reads(kk + 1)
            else:
                k.wait_all(vm=False)
                k('v_mov_b32 v2, 1')
                k(f'v_mov_b32 v3, {XCNT+4}')
                k('s_mov_b64 exec, 1')
                k('ds_add_u32 v3, v2')
                k('s_mov_b64 exec, -1')
            if kk == 28:
                fill.append(lambda: T.__setitem__('hs', hsload(k)))
            if kk == 39:
                fill.append(lambda: T.__setitem__('f3', flags_issue(k, WS_F3, 16, 12)))
            if kk == 39:
                fill.append(lambda: T.__setitem__(('cs', 0), csload(0, 212)))
            if kk == 37:
                fill.append(stats)
            mf = []
            for j in range(6):
                acc = v(ACC + 16 * j, 16)
                c = '0' if kk == 0 else acc
                mf.append((lambda j=j: [rt[kk, j]],
                           f'v_mfma_f32_32x32x16_bf16 {acc}, {v(WF+24*b+4*j,4)}, {v(R0+4*ks,4)}, {c}'))
            roll_step(k, mf, rds, fill)
        stamp(k, 38)
        T['cs', 1] = csload(1, 132)
        c0 = -2.0 * math.sqrt(2.0 / math.pi) * math.log2(math.e)
        c1 = c0 * 0.044715
        k(f'v_mov_b32 v32, {f32(c0)}')
        k(f'v_mov_b32 v34, {f32(c1)}')
        k(f's_mul_i32 s54, s{S_FT}, {12*32768}')
        k(f's_lshl_b32 s55, s{S_TOK}, 4')
        k('s_add_u32 s54, s54, s55')
        k(f's_add_u32 s54, s54, {WS_HC}')
        T_, O = 164, 180
        csb = {0: 212, 1: 132, 2: 212}
        for p in range(3):
            G, U, CS = ACC + 16 * p, ACC + 16 * (3 + p), csb[p]
            k.wait(T['cs', p])
            for q in range(8):
                g2, u2 = v(G + 2 * q, 2), v(U + 2 * q, 2)
                k(f'v_pk_fma_f32 {g2}, {v(CS+2*q,2)}, {v(26,2)}, {g2} op_sel_hi:[1,0,1]')
                k(f'v_pk_fma_f32 {u2}, {v(CS+16+2*q,2)}, {v(26,2)}, {u2} op_sel_hi:[1,0,1]')
            if p == 0:
                T['cs', 2] = csload(2, 212)
            for q in range(8):
                g2, u2, t2 = v(G + 2 * q, 2), v(U + 2 * q, 2), v(T_ + 2 * q, 2)
                k(f'v_pk_mul_f32 {u2}, {u2}, {g2}')
                k(f'v_pk_mul_f32 {g2}, {g2}, {v(28,2)} op_sel_hi:[1,0]')
                k(f'v_pk_mul_f32 {t2}, {g2}, {g2}')
                k(f'v_pk_fma_f32 {t2}, {t2}, {v(34,2)}, {v(32,2)} op_sel_hi:[1,0,0]')
                k(f'v_pk_mul_f32 {t2}, {t2}, {g2}')
            for i in range(16):
                k(f'v_exp_f32 v{T_+i}, v{T_+i}')
            for q in range(8):
                t2 = v(T_ + 2 * q, 2)
                k(f'v_pk_fma_f32 {t2}, {t2}, {v(30,2)}, {v(30,2)} op_sel_hi:[1,0,0]')
            for i in range(16):
                k(f'v_rcp_f32 v{T_+i}, v{T_+i}')
            for q in range(8):
                k(f'v_pk_mul_f32 {v(U+2*q,2)}, {v(U+2*q,2)}, {v(T_+2*q,2)}')
            for q in range(8):
                k(f'v_cvt_pk_bf16_f32 v{O+8*(p%2)+q}, v{U+2*q}, v{U+2*q+1}')
            for hf2 in range(2):
                k(f's_add_u32 s55, s54, {(4*p+2*hf2)*32768}')
                self.own = k(f'buffer_store_dwordx4 {v(O+8*(p%2)+4*hf2,4)}, v5, {WSR}, s55 offen sc1')
        flags_check(k, WS_F3, 16, 12, T['f3'])
        stamp(k, 39)


def colsum_strip(k):
    lab = k.newlabel('CS_SKIP')
    k(f's_cmp_lg_u32 s{S_W4}, 0')
    k(f's_cbranch_scc1 {lab}')
    k(f's_cmp_ge_u32 s{S_I32}, 12')
    k(f's_cbranch_scc1 {lab}')
    sn = k.snap()
    k(f's_and_b32 s60, s{S_X8}, 1')
    k('s_cmp_eq_u32 s60, 0')
    k(f's_cselect_b32 s72, s{S_WG}, s{S_WU}')
    k(f's_cselect_b32 s73, s{S_WG+1}, s{S_WU+1}')
    k('s_mov_b32 s74, 1966080')
    k('s_mov_b32 s75, 0x00020000')
    k(f's_lshr_b32 s60, s{S_X8}, 1')
    k('s_mul_i32 s60, s60, 768')
    k(f's_lshl_b32 s61, s{S_I32}, 6')
    k('s_add_u32 s60, s60, s61')
    k('v_lshrrev_b32 v40, 2, v1')
    k('v_mul_u32_u24 v40, 3072, v40')
    k('v_and_b32 v41, 3, v1')
    k('v_lshl_add_u32 v40, v41, 4, v40')
    k('v_add_u32 v40, s60, v40')
    tk = []
    for n in range(40):
        k(f's_mov_b32 s61, {n*16*3072}')
        tk.append(k(f'buffer_load_dwordx4 {v(60+4*n,4)}, v40, s[72:75], s61 offen'))
    for i in range(8):
        k(f'v_mov_b32 v{44+i}, 0')
    for n in range(40):
        k.wait(tk[n])
        for p in range(4):
            k(f'v_lshlrev_b32 v{52+2*(p%2)}, 16, v{60+4*n+p}')
            k(f'v_and_b32 v{53+2*(p%2)}, 0xffff0000, v{60+4*n+p}')
            k(f'v_pk_add_f32 {v(44+2*p,2)}, {v(44+2*p,2)}, {v(52+2*(p%2),2)}')
    for i in range(8):
        xsum(k, 44 + i, 56, 57, 32)
        xsum(k, 44 + i, 56, 57, 16)
        k(f'v_add_f32_dpp v{44+i}, v{44+i}, v{44+i} row_ror:8 row_mask:0xf bank_mask:0xf')
        k(f'v_add_f32_dpp v{44+i}, v{44+i}, v{44+i} row_ror:4 row_mask:0xf bank_mask:0xf')
    strip_id(k, 60)
    k('s_lshl_b32 s60, s60, 2')
    k(f's_add_u32 s60, s60, {WS_CS}')
    k('v_lshlrev_b32 v41, 5, v41')
    k('s_mov_b64 exec, 0xf')
    k(f'buffer_store_dwordx4 {v(44,4)}, v41, {WSR}, s60 offen sc1')
    k(f'buffer_store_dwordx4 {v(48,4)}, v41, {WSR}, s60 offen offset:16 sc1')
    k('s_mov_b64 exec, -1')
    k.wait_all()
    k.restore(sn)
    k.label(lab)


def build():
    k = K()
    name = NAME + '_kernel'
    k.realend = 'K_END'
    k.raw('.p2align 8')
    k.raw(f'.globl {name}')
    k.raw(f'.type {name},@function')
    k.raw(f'{name}:')
    prologue(k)
    if STAMPS:
        k('v_writelane_b32 v255, s84, 60')
        k('v_writelane_b32 v255, s36, 58')
        k('v_writelane_b32 v255, s37, 59')
    if OPT.get('empty'):
        k('s_branch K_END')
    stamp(k, 0)
    g3 = G35(k, 3, [0, 20480, 40960, 61440, 81920], 232, 0)
    g5 = G35(k, 5, [49152, 69632, 90112, 110592, 131072, 0, 20480], 54, 70)
    p4 = P4(k)
    A3 = [102400, 118784, 135168]
    A5 = [61440, 77824, 143360]
    lab_l1, lab_p2, lab_l3, lab_fin = (k.newlabel(x) for x in ('L1', 'P2', 'L3', 'FIN'))
    k(f's_cmp_ge_u32 s{S_W}, 4')
    k(f's_cbranch_scc1 {lab_l1}')
    sn = k.snap()
    p1_compute(k)
    join(k)
    if OPT.get('wgu', 2) == 1:
        pf_wgu(k, 238, 239, 128)
    p2_setup(k)
    k(f's_branch {lab_p2}')
    k.label(lab_l1)
    k.restore(sn)
    p1_loader(k, g3)
    k.label(lab_p2)
    join(k)
    for st in range(5):
        g3.btok[st] = ('vm', 0)
    own = emit_p2(k, g3)
    k(f's_cmp_ge_u32 s{S_W}, 4')
    k(f's_cbranch_scc1 {lab_l3}')
    sn = k.snap()
    g3.compute(own, st0=20)
    p4.compute(g3.own)
    if not OPT.get('nop5'):
        g5.compute(p4.own, st0=40)
    k(f's_branch {lab_fin}')
    k.label(lab_l3)
    k.restore(sn)
    k('s_barrier')
    if OPT.get('wguL', 0):
        pf_wgu(k, 36, 37)
    p4.setup_dma(56)
    p4.dma_stage(0)
    p4.dma_stage(1)
    p4.loader_setup(g5)
    p4.pre_colsum()
    stamp(k, 23)
    k('s_barrier')
    k('s_barrier')
    stamp(k, 24)
    p4.dma_stage(2)
    p4.dma_stage(3)
    p4.dma_stage(4)
    p4.pre_colsum_write()
    stamp(k, 30)
    p4.loader(g5)
    if not OPT.get('nop5'):
        g5.loader(7, st0=40)
        k('s_barrier')
    k.label(lab_fin)
    join(k)
    stamp(k, 50)
    if STAMPS:
        k.wait_all()
        stamp(k, 51)
    stamp_flush(k)
    k.label(k.realend)
    k('s_endpgm')
    c = K()
    for f in k.cold:
        f(c)
    desc = f'''.section .rodata,"a"
.p2align 6
.amdhsa_kernel {name}
  .amdhsa_next_free_vgpr 256
  .amdhsa_next_free_sgpr 102
  .amdhsa_accum_offset 256
  .amdhsa_group_segment_fixed_size 0
  .amdhsa_kernarg_size 80
  .amdhsa_user_sgpr_count 2
  .amdhsa_user_sgpr_kernarg_segment_ptr 1
  .amdhsa_system_sgpr_workgroup_id_x 1
.end_amdhsa_kernel
'''
    return k.render() + c.render() + 'CODE_END:\n' + desc


def main():
    global STAMPS
    STAMPS = 'stamps' in sys.argv
    for a_ in sys.argv[2:]:
        if '=' in a_:
            kk, vv = a_.split('=')
            OPT[kk] = int(vv)
    head = open('cdna_kernels/%s.s.ref' % NAME).read().split('\n')
    hdr = [l for l in head if l.startswith(';') and '@launch' not in l and 'Override launch' not in l and 'grid=ceil' not in l]
    out = '\n'.join(hdr) + '\n'
    out += '; @launch grid=(256,1,1) block=(512,1,1) lds=163840\n'
    out += '.amdgcn_target "amdgcn-amd-amdhsa--gfx950"\n.text\n'
    out += build()
    path = sys.argv[1] if len(sys.argv) > 1 else 'cdna_kernels/%s.s' % NAME
    open(path, 'w').write(out)
    print('wrote', path, len(out), 'bytes')


if __name__ == '__main__':
    main()
```

```python
import math
import struct
import sys
from asmlib import K, v, a, s

NAME = 'sequential_preLN__sliding_block__glu_gated_geglu__prompt'

WS_QG = 0x0000000
WS_KG = 0x0280000
WS_VF = 0x0500000
WS_OC = 0x0780000
WS_H1 = 0x0A00000
WS_HC = 0x0C80000
WS_CS = 0x1280000
WS_F2 = 0x1288000
WS_F3 = 0x128A000
WS_F0 = 0x128C000
WS_PC = 0x1290000
WS_PS = 0x12A8000
WS_HS = 0x12D0000
WS_PCS = 0x1340000
WS_ST = 0x1300000
WS_SIZE = 0x1400000
OOB = 0x40000000

S_X, S_WQKV, S_WO, S_WG, S_WU, S_WD, S_OUT, S_WS, S_DBG = 4, 8, 12, 16, 20, 24, 28, 32, 36
S_NONCE = 3
S_W, S_X8, S_I32, S_W4 = 40, 41, 42, 43
S_BUD = 57
WSR = f's[{S_WS}:{S_WS+3}]'
OPT = {}
STAMPS = False
XCH = 159744
XNONCE = XCH + 3072
XCNT = XCH + 3080


def f32(x):
    return '0x%08x' % struct.unpack('<I', struct.pack('<f', x))[0]


def stamp(k, i):
    if not STAMPS:
        return
    k('s_memtime s[62:63]')
    k.wait_all(vm=False)
    k(f'v_writelane_b32 v255, s62, {i}')


def stamp_flush(k):
    if not STAMPS:
        return
    lab = k.newlabel('ST')
    k('s_memrealtime s[62:63]')
    k.wait_all()
    k('v_writelane_b32 v255, s62, 63')
    k(f'v_writelane_b32 v255, s{S_BUD}, 62')
    k(f's_cmp_lg_u32 s{S_W4}, 0')
    k(f's_cbranch_scc1 {lab}')
    k('v_lshlrev_b32 v254, 2, v1')
    k('s_lshl_b32 s62, s2, 9')
    k(f's_lshl_b32 s63, s{S_W}, 6')
    k('s_add_u32 s62, s62, s63')
    k(f's_add_u32 s62, s62, {WS_ST}')
    k(f'buffer_store_dword v255, v254, {WSR}, s62 offen')
    if OPT.get('dbgout'):
        k('s_cmp_lg_u32 s2, %d' % OPT.get('dbgout'))
        k(f's_cbranch_scc1 {lab}')
        k(f's_cmp_lg_u32 s{S_W}, 0')
        k(f's_cbranch_scc1 {lab}')
        k('v_readlane_b32 s64, v255, 58')
        k('v_readlane_b32 s65, v255, 59')
        k('s_mov_b32 s66, 256')
        k('s_mov_b32 s67, 0x00020000')
        k('v_readlane_b32 s70, v255, 0')
        k('v_readlane_b32 s71, v255, 60')
        sel = [3, 5, 9, 10, 12, 13, 18, 22, 24, 32, 38, 42, 43, 51]
        for i, st_ in enumerate(sel):
            k(f'v_readlane_b32 s68, v255, {st_}')
            k('s_sub_u32 s68, s68, s70')
            k(f'v_writelane_b32 v253, s68, {i+1}')
        k('v_readlane_b32 s68, v255, 63')
        k('s_sub_u32 s68, s68, s71')
        k('v_writelane_b32 v253, s68, 15')
        k('s_mov_b64 exec, 0xfffe')
        k('buffer_store_dword v253, v254, s[64:67], 0 offen')
        k('s_mov_b64 exec, -1')
    k.label(lab)


def run(k, f):
    return f() if callable(f) else k(f)


def runall(k, ops):
    for f in ops:
        run(k, f)


def roll_step(k, mf, rds, fill):
    n, nf, fi = len(mf), len(fill), 0
    for i, (wt, m) in enumerate(mf):
        k.wait(*wt())
        k(m)
        for f in (rds[i] if i < len(rds) else []):
            run(k, f)
        tgt = (nf * (i + 1) + n - 1) // n
        while fi < min(tgt, nf):
            run(k, fill[fi])
            fi += 1


def spread(k, main, side):
    n, nf = len(main), len(side)
    pos = {}
    for j in range(nf):
        pos.setdefault(int(j * n / max(nf, 1)), []).append(side[j])
    for i, m in enumerate(main):
        for f in pos.get(i, []):
            run(k, f)
        run(k, m)


def rbf(k, d, src):
    k(f'v_cvt_pk_bf16_f32 {v(d)}, {v(src)}, {v(src)}')
    k(f'v_lshlrev_b32 {v(d)}, 16, {v(d)}')


def xsum(k, r, t1, t2, which=32):
    k(f'v_mov_b32 {v(t1)}, {v(r)}')
    k(f'v_mov_b32 {v(t2)}, {v(r)}')
    k(f'v_permlane{which}_swap_b32 {v(t1)}, {v(t2)}')
    k(f'v_add_f32 {v(r)}, {v(t1)}, {v(t2)}')


def maxchain_ops(regs, t):
    regs = list(regs)
    ops = [f'v_max3_u32 v{t}, v{regs[0]}, v{regs[1]}, v{regs[2]}']
    i = 3
    while i < len(regs):
        if i + 1 < len(regs):
            ops.append(f'v_max3_u32 v{t}, v{t}, v{regs[i]}, v{regs[i+1]}')
            i += 2
        else:
            ops.append(f'v_max_u32 v{t}, v{t}, v{regs[i]}')
            i += 1
    return ops


def check_group(k, regs, t, reissue, slp=None, pre=False):
    slp = slp or OPT.get('rslp', 2)
    if not pre:
        for o in maxchain_ops(regs, t):
            k(o)
    slow, back, loop = k.newlabel('SLOW'), k.newlabel('BACK'), k.newlabel('RETRY')
    k(f'v_cmp_eq_u32 vcc, -1, v{t}')
    k(f's_cbranch_vccnz {slow} ;nodrain')
    k.label(back)

    def cold(c):
        c.label(slow)
        c('s_nop 15')
        c.label(loop)
        c(f's_cmp_eq_u32 s{S_BUD}, 0')
        c(f's_cbranch_scc1 {back}')
        c(f's_sub_u32 s{S_BUD}, s{S_BUD}, 1')
        c(f's_sleep {slp}')
        reissue(c)
        c('s_waitcnt vmcnt(0)')
        for o in maxchain_ops(regs, t):
            c(o)
        c(f'v_cmp_eq_u32 vcc, -1, v{t}')
        c(f's_cbranch_vccnz {loop}')
        c(f's_branch {back}')
    k.cold.append(cold)


def nonce_issue(k, vr):
    k(f'v_mov_b32 v{vr+1}, 0')
    return k(f'buffer_load_dword v{vr}, v{vr+1}, s[{S_DBG}:{S_DBG+3}], 0 offen sc1')


def nonce_check(k, vr, tok):
    k.wait(tok)
    slow, back = k.newlabel('NSLOW'), k.newlabel('NBACK')
    k(f'v_readfirstlane_b32 s{S_NONCE}, v{vr}')
    k(f's_cmp_eq_u32 s{S_NONCE}, 0')
    k(f's_cbranch_scc1 {slow} ;nodrain')
    k.label(back)

    def cold(c):
        c.label(slow)
        c('s_nop 15')
        c(f's_cmp_eq_u32 s{S_BUD}, 0')
        c(f's_cbranch_scc1 {back}')
        c(f's_sub_u32 s{S_BUD}, s{S_BUD}, 1')
        c('s_sleep 4')
        c(f'buffer_load_dword v{vr}, v{vr+1}, s[{S_DBG}:{S_DBG+3}], 0 offen sc1')
        c('s_waitcnt vmcnt(0)')
        c(f'v_readfirstlane_b32 s{S_NONCE}, v{vr}')
        c(f's_cmp_eq_u32 s{S_NONCE}, 0')
        c(f's_cbranch_scc1 {slow}')
        c(f's_branch {back}')
    k.cold.append(cold)


def nonce_from_lds(k, t):
    k(f'v_mov_b32 v{t}, {XNONCE}')
    tk = k(f'ds_read_b32 v{t}, v{t}')
    k.wait(tk)
    k(f'v_readfirstlane_b32 s{S_NONCE}, v{t}')


def rflag_store(k, base, sidx, t1, t2, wave=0):
    k(f'v_mov_b32 v{t1}, s{S_NONCE}')
    k(f'v_lshlrev_b32 v{t2}, 10, v1')
    k(f's_lshl_b32 s60, s{sidx}, 2')
    k(f's_add_u32 s60, s60, {base}')
    k(f's_mov_b32 s61, {OOB}')
    k(f's_cmp_eq_u32 s{S_W}, {wave}')
    k('s_cselect_b32 s60, s60, s61')
    k('s_mov_b64 exec, 0xff')
    k(f'buffer_store_dword v{t1}, v{t2}, {WSR}, s60 offen sc1')
    k('s_mov_b64 exec, -1')


def wflag_store(k, base, sidx, t1, t2, cnt):
    k(f'v_mov_b32 v{t1}, 1')
    k(f'v_mov_b32 v{t2}, {XCNT+4*cnt}')
    k('s_mov_b64 exec, 1')
    tk = k(f'ds_add_rtn_u32 v{t1}, v{t2}, v{t1}')
    k('s_mov_b64 exec, -1')
    k(f's_lshl_b32 s60, s{sidx}, 2')
    k(f's_add_u32 s60, s60, {base}')
    k.wait(tk)
    k(f'v_readfirstlane_b32 s61, v{t1}')
    k(f'v_mov_b32 v{t1}, s{S_NONCE}')
    k(f'v_lshlrev_b32 v{t2}, 10, v1')
    k('s_cmp_eq_u32 s61, 3')
    k(f's_cselect_b32 s60, s60, {OOB}')
    k('s_mov_b64 exec, 0xff')
    k(f'buffer_store_dword v{t1}, v{t2}, {WSR}, s60 offen sc1')
    k('s_mov_b64 exec, -1')


def cnt_wait(k, t1, t2, cnt, target, bound=2000):
    loop, done = k.newlabel('CW'), k.newlabel('CD')
    k(f'v_mov_b32 v{t2}, {XCNT+4*cnt}')
    k(f's_mov_b32 s61, {bound}')
    k.label(loop)
    k.raw(f'    ds_read_b32 v{t1}, v{t2}')
    k.raw('    s_waitcnt lgkmcnt(0)')
    k(f'v_readfirstlane_b32 s60, v{t1}')
    k(f's_cmp_ge_u32 s60, {target}')
    k(f's_cbranch_scc1 {done}')
    k('s_sub_u32 s61, s61, 1')
    k('s_cmp_eq_u32 s61, 0')
    k(f's_cbranch_scc1 {done}')
    k('s_sleep 2')
    k(f's_branch {loop}')
    k.label(done)


def wflag_poll(k, sbase, va, vr, smask, width, only_wave0):
    loop, done = k.newlabel('POLL'), k.newlabel('PDONE')
    if only_wave0:
        k(f's_cmp_lg_u32 s{S_W}, 0')
        k(f's_cbranch_scc1 {done}')
    k.label(loop)
    if width == 4:
        k.raw(f'    buffer_load_dwordx4 {v(vr,4)}, v{va}, {WSR}, s{sbase} offen sc1')
        k.raw('    s_waitcnt vmcnt(0)')
        for i in range(4):
            k(f'v_xor_b32 v{vr+i}, s{S_NONCE}, v{vr+i}')
        k(f'v_or3_b32 v{vr}, v{vr}, v{vr+1}, v{vr+2}')
        k(f'v_or_b32 v{vr}, v{vr}, v{vr+3}')
        k(f'v_cmp_ne_u32 vcc, 0, v{vr}')
    else:
        k.raw(f'    buffer_load_dword v{vr}, v{va}, {WSR}, s{sbase} offen sc1')
        k.raw('    s_waitcnt vmcnt(0)')
        k(f'v_cmp_ne_u32 vcc, s{S_NONCE}, v{vr}')
    k(f's_and_b64 vcc, vcc, s[{smask}:{smask+1}]')
    k(f's_cbranch_scc0 {done}')
    k(f's_cmp_eq_u32 s{S_BUD}, 0')
    k(f's_cbranch_scc1 {done}')
    k(f's_sub_u32 s{S_BUD}, s{S_BUD}, 1')
    k(f's_sleep {OPT.get("psl", 1)}')
    k(f's_branch {loop}')
    k.label(done)


def probe(k, sbase, va, vr):
    loop, done = k.newlabel('PRB'), k.newlabel('PRD')
    k.label(loop)
    k.raw(f'    buffer_load_dword v{vr}, v{va}, {WSR}, s{sbase} offen sc1')
    k.raw('    s_waitcnt vmcnt(0)')
    k(f'v_cmp_eq_u32 vcc, -1, v{vr}')
    k(f's_cbranch_vccz {done}')
    k(f's_cmp_eq_u32 s{S_BUD}, 0')
    k(f's_cbranch_scc1 {done}')
    k(f's_sub_u32 s{S_BUD}, s{S_BUD}, 1')
    k(f's_sleep {OPT.get("prs", 2)}')
    k(f's_branch {loop}')
    k.label(done)


def rflag_poll(k, sbase, va, vr, smask):
    loop, done = k.newlabel('POLL'), k.newlabel('PDONE')
    k(f's_cmp_lg_u32 s{S_W}, 0')
    k(f's_cbranch_scc1 {done}')
    k.label(loop)
    k.raw(f'    buffer_load_dword v{vr}, v{va}, {WSR}, s{sbase} offen sc1')
    k.raw('    s_waitcnt vmcnt(0)')
    k(f'v_cmp_ne_u32 vcc, s{S_NONCE}, v{vr}')
    k(f's_and_b64 vcc, vcc, s[{smask}:{smask+1}]')
    k(f's_cbranch_scc0 {done}')
    k(f's_cmp_eq_u32 s{S_BUD}, 0')
    k(f's_cbranch_scc1 {done}')
    k(f's_sub_u32 s{S_BUD}, s{S_BUD}, 1')
    k(f's_branch {loop}')
    k.label(done)


def flags_issue(k, base, vr, va):
    k(f'v_lshlrev_b32 v{va}, 4, v1')
    k(f's_lshl_b32 s60, s{S_X8}, 10')
    k(f'v_add_u32 v{va}, s60, v{va}')
    k(f's_mov_b32 s60, {base}')
    return k(f'buffer_load_dwordx4 {v(vr,4)}, v{va}, {WSR}, s60 offen sc1')


def flags_check(k, base, vr, va, tok):
    k.wait(tok)
    slow, back = k.newlabel('FSLOW'), k.newlabel('FBACK')

    def cmpops(c):
        for i in range(4):
            c(f'v_xor_b32 v{vr+i}, s{S_NONCE}, v{vr+i}')
        c(f'v_or3_b32 v{vr}, v{vr}, v{vr+1}, v{vr+2}')
        c(f'v_or_b32 v{vr}, v{vr}, v{vr+3}')
        c(f'v_cmp_ne_u32 vcc, 0, v{vr}')
    cmpops(k)
    k(f's_cbranch_vccnz {slow} ;nodrain')
    k.label(back)

    def cold(c):
        c.label(slow)
        c('s_nop 15')
        c(f's_cmp_eq_u32 s{S_BUD}, 0')
        c(f's_cbranch_scc1 {back}')
        c(f's_sub_u32 s{S_BUD}, s{S_BUD}, 1')
        c('s_sleep 12')
        c(f's_mov_b32 s58, {base}')
        c(f'buffer_load_dwordx4 {v(vr,4)}, v{va}, {WSR}, s58 offen sc1')
        c('s_waitcnt vmcnt(0)')
        cmpops(c)
        c(f's_cbranch_vccnz {slow}')
        c(f's_branch {back}')
    k.cold.append(cold)


def join(k):
    k.reset_counters()
    k.vm_issued = 1
    k.lg_issued = 1


def prologue(k):
    k('s_cmp_ge_u32 s2, 256')
    k('s_cbranch_scc1 %s' % k.realend)
    if OPT.get('cpf', 1):
        k.raw('    s_getpc_b64 s[88:89]')
        k.raw('CODE_PC:')
        k.raw(f'    s_sub_u32 s88, s88, CODE_PC-{NAME}_kernel')
        k.raw('    s_subb_u32 s89, s89, 0')
        k.raw('    s_and_b32 s89, s89, 0xffff')
        k.raw(f'    s_mov_b32 s90, CODE_END-{NAME}_kernel')
        k.raw('    s_mov_b32 s91, 0x00020000')
        k('s_lshr_b32 s92, s2, 3')
        k('s_lshl_b32 s92, s92, 12')
        k('v_lshlrev_b32 v250, 7, v0')
        k('v_cmp_gt_u32 vcc, 32, v0')
        k(f'v_mov_b32 v251, {OOB}')
        k('v_cndmask_b32 v250, v251, v250, vcc')
        k('buffer_load_dword v251, v250, s[88:91], s92 offen')
    k('s_load_dwordx8 s[64:71], s[0:1], 0')
    k('s_load_dwordx8 s[72:79], s[0:1], 32')
    k('s_load_dwordx4 s[80:83], s[0:1], 64')
    k('s_memrealtime s[84:85]')
    k('v_and_b32 v1, 63, v0')
    k('v_lshrrev_b32 v2, 6, v0')
    k(f'v_readfirstlane_b32 s{S_W}, v2')
    k(f's_and_b32 s{S_X8}, s2, 7')
    k(f's_lshr_b32 s{S_I32}, s2, 3')
    k(f's_mov_b32 s{S_BUD}, {OPT.get("bud", 100000)}')
    k(f's_and_b32 s{S_W4}, s{S_W}, 3')
    k('v_and_b32 v0, 255, v0')
    k('v_mov_b32 v253, 0')
    k('s_waitcnt lgkmcnt(0)')
    for sr, src, size in ((S_X, 64, 2621440), (S_WQKV, 66, 2457600), (S_WO, 68, 819200), (S_WG, 72, 1966080),
                          (S_WU, 74, 1966080), (S_WD, 76, 1966080), (S_OUT, 78, 2621440), (S_WS, 82, WS_SIZE),
                          (S_DBG, 80, 256)):
        k(f's_mov_b32 s{sr}, s{src}')
        k(f's_and_b32 s{sr+1}, s{src+1}, 0xffff')
        k(f's_mov_b32 s{sr+2}, {size}')
        k(f's_mov_b32 s{sr+3}, 0x00020000')
    k(f's_or_b32 s60, s2, s{S_W}')
    k('s_cmp_eq_u32 s60, 0')
    k(f's_cselect_b32 s61, 0, 0x10000')
    k('s_or_b32 s60, s84, 1')
    k('v_mov_b32 v2, s60')
    k('v_mov_b32 v3, 0')
    k('s_mov_b64 exec, 1')
    k(f'buffer_store_dword v2, v3, s[{S_DBG}:{S_DBG+3}], s61 offen sc1')
    k('s_mov_b64 exec, -1')


def tile1(k):
    k(f's_and_b32 s47, s{S_X8}, 3')
    k(f's_lshr_b32 s46, s{S_X8}, 2')
    k('s_mul_i32 s46, s46, 30')
    k(f's_add_u32 s46, s46, s{S_I32}')
    k('s_lshr_b32 s44, s46, 2')
    k('s_and_b32 s46, s46, 3')
    k('s_lshl_b32 s47, s47, 2')
    k('s_add_u32 s45, s47, s46')
    k('s_add_u32 s56, s45, s44')
    for _ in range(2):
        k('s_sub_u32 s47, s56, 10')
        k('s_cmp_ge_u32 s56, 10')
        k('s_cselect_b32 s56, s47, s56')
    k('s_lshl_b32 s46, s45, 7')
    k(f's_lshl_b32 s47, s{S_W4}, 5')
    k('s_add_u32 s46, s46, s47')


def tile35(k, srt, sct, st):
    if OPT.get('m35', 0):
        k(f's_lshl_b32 s{st}, s{S_X8}, 2')
        k(f's_and_b32 s{srt}, s{S_I32}, 3')
        k(f's_add_u32 s{srt}, s{srt}, s{st}')
        k(f's_lshr_b32 s{sct}, s{S_I32}, 2')
        return
    k(f's_and_b32 s{st}, s{S_X8}, 3')
    k(f's_lshl_b32 s{st}, s{st}, 3')
    k(f's_and_b32 s{srt}, s{S_I32}, 7')
    k(f's_add_u32 s{srt}, s{srt}, s{st}')
    k(f's_lshr_b32 s{st}, s{S_X8}, 2')
    k(f's_lshl_b32 s{st}, s{st}, 2')
    k(f's_lshr_b32 s{sct}, s{S_I32}, 3')
    k(f's_add_u32 s{sct}, s{sct}, s{st}')


def tile4(k, smt, sft, st):
    if OPT.get('m4', 0):
        k(f's_and_b32 s{st}, s{S_X8}, 3')
        k(f's_lshl_b32 s{st}, s{st}, 2')
        k(f's_and_b32 s{smt}, s{S_I32}, 3')
        k(f's_add_u32 s{smt}, s{smt}, s{st}')
        k(f's_lshr_b32 s{st}, s{S_X8}, 2')
        k(f's_lshl_b32 s{st}, s{st}, 3')
        k(f's_lshr_b32 s{sft}, s{S_I32}, 2')
        k(f's_add_u32 s{sft}, s{sft}, s{st}')
        return
    k(f's_and_b32 s{st}, s{S_X8}, 1')
    k(f's_lshl_b32 s{st}, s{st}, 3')
    k(f's_and_b32 s{smt}, s{S_I32}, 7')
    k(f's_add_u32 s{smt}, s{smt}, s{st}')
    k(f's_lshr_b32 s{st}, s{S_X8}, 1')
    k(f's_lshl_b32 s{st}, s{st}, 2')
    k(f's_lshr_b32 s{sft}, s{S_I32}, 3')
    k(f's_add_u32 s{sft}, s{sft}, s{st}')


def strip_id(k, sd):
    k(f's_and_b32 s{sd}, s{S_X8}, 1')
    k(f's_mul_i32 s{sd}, s{sd}, 1536')
    k(f's_lshr_b32 s61, s{S_X8}, 1')
    k('s_mul_i32 s61, s61, 384')
    k(f's_add_u32 s{sd}, s{sd}, s61')
    k(f's_lshl_b32 s61, s{S_I32}, 5')
    k(f's_add_u32 s{sd}, s{sd}, s61')


def clear_ops(k, vs, va):
    ops = []

    def o1():
        k(f's_and_b32 s60, s{S_I32}, 3')
        k(f's_lshl_b32 s61, s{S_X8}, 2')
        k('s_add_u32 s60, s60, s61')
        k('s_and_b32 s65, s60, 1')
        k('s_lshr_b32 s60, s60, 1')
        k('s_mul_i32 s60, s60, 5')
        k('s_lshl_b32 s60, s60, 15')
        k(f's_lshr_b32 s61, s{S_I32}, 2')
        k('s_lshl_b32 s61, s61, 12')
        k('s_add_u32 s60, s60, s61')
        k(f's_lshl_b32 s61, s{S_W4}, 10')
        k('s_add_u32 s60, s60, s61')
        k(f's_add_u32 s64, s60, {WS_OC}')
        k(f's_mul_i32 s61, s65, {3*32768}')
        k('s_add_u32 s66, s64, s61')
        k(f'buffer_store_dwordx4 {v(vs,4)}, v{va}, {WSR}, s66 offen sc1')

    def o2():
        k('s_add_u32 s60, s66, 32768')
        k(f'buffer_store_dwordx4 {v(vs,4)}, v{va}, {WSR}, s60 offen sc1')

    def o3():
        k('s_lshl_b32 s61, s65, 3')
        k('s_add_u32 s60, s64, s61')
        k('s_add_u32 s60, s60, 65536')
        k(f'buffer_store_dwordx2 {v(vs,2)}, v{va}, {WSR}, s60 offen sc1')

    def h1():
        tile35(k, 60, 61, 64)
        k('s_lshl_b32 s67, s61, 14')
        k('s_lshl_b32 s64, s60, 9')
        k('s_add_u32 s67, s67, s64')
        k(f's_add_u32 s67, s67, {WS_HS}')
        k('s_mul_i32 s61, s61, 10')
        k(f's_add_u32 s61, s61, s{S_W4}')
        k('s_lshl_b32 s61, s61, 15')
        k('s_lshl_b32 s60, s60, 10')
        k('s_add_u32 s64, s61, s60')
        k(f's_add_u32 s64, s64, {WS_H1}')
        k(f'buffer_store_dwordx4 {v(vs,4)}, v{va}, {WSR}, s64 offen sc1')

    def h2():
        k(f's_add_u32 s60, s64, {4*32768}')
        k(f'buffer_store_dwordx4 {v(vs,4)}, v{va}, {WSR}, s60 offen sc1')

    def h3():
        k(f's_add_u32 s60, s64, {8*32768}')
        k(f's_mov_b32 s65, {OOB}')
        k(f's_cmp_lt_u32 s{S_W4}, 2')
        k('s_cselect_b32 s60, s60, s65')
        k(f'buffer_store_dwordx4 {v(vs,4)}, v{va}, {WSR}, s60 offen sc1')

    def h4():
        k(f's_cmp_eq_u32 s{S_W4}, 2')
        k('s_cselect_b32 s60, s67, s65')
        k(f'buffer_store_dwordx2 {v(vs,2)}, v{va+1}, {WSR}, s60 offen sc1')

    def c1():
        tile4(k, 60, 61, 64)
        k('s_mul_i32 s61, s61, 384')
        k('s_mul_i32 s64, s60, 12288')
        k('s_add_u32 s61, s61, s64')
        k(f's_mul_i32 s64, s{S_W4}, 6144')
        k('s_add_u32 s61, s61, s64')
        k(f's_add_u32 s61, s61, {WS_PCS}')
        k('s_cmp_lt_u32 s60, 10')
        k('s_cselect_b32 s61, s61, s65')
        k(f's_cmp_lt_u32 s{S_W4}, 2')
        k('s_cselect_b32 s61, s61, s65')
        k('s_mov_b64 exec, 0xffffff')
        k(f'buffer_store_dwordx4 {v(vs,4)}, v{va}, {WSR}, s61 offen sc1')
        k('s_mov_b64 exec, -1')
    return [o1, o2, o3, h1, h2, h3, h4, c1]


def sparse_prefetch(k, srd, rows_per_wg, lines, pitch, colshift, colmul, va, vd, toff=0):
    magic = {5: 13108, 6: 10923}[lines]
    k(f'v_subrev_u32 v{va}, {toff}, v0')
    k(f'v_cmp_gt_u32 vcc, {rows_per_wg*lines}, v{va}')
    k(f'v_mul_u32_u24 v{vd}, {magic}, v{va}')
    k(f'v_lshrrev_b32 v{vd}, 16, v{vd}')
    k(f'v_mul_u32_u24 v{vd}, {pitch-lines*128}, v{vd}')
    k(f'v_lshl_add_u32 v{va}, v{va}, 7, v{vd}')
    k(f'v_mov_b32 v{vd}, {OOB}')
    k(f'v_cndmask_b32 v{va}, v{vd}, v{va}, vcc')
    k(f's_mul_i32 s60, s{S_I32}, {rows_per_wg*pitch}')
    k(f's_lshr_b32 s61, s{S_X8}, {colshift}')
    k(f's_mul_i32 s61, s61, {colmul}')
    k('s_add_u32 s60, s60, s61')
    for sr in srd:
        k(f'buffer_load_dword v{vd}, v{va}, s[{sr}:{sr+3}], s60 offen')


def pf_wo(k, va, vd):
    sparse_prefetch(k, [S_WO], 20, 5, 1280, 2, 640, va, vd)


def pf_wd(k, va, vd):
    sparse_prefetch(k, [S_WD], 48, 5, 1280, 2, 640, va, vd)


def pf_wgu(k, va, vd, toff=0):
    sparse_prefetch(k, [S_WG, S_WU], 20, 6, 3072, 1, 768, va, vd, toff)


P1_R, P1_SLOT = 4, 32768


def p1_dma(k, S_SIG, sa, sb_):
    S_NT, S_TOK, S_LW = 44, 46, 48
    k('s_cmp_ge_u32 s56, 5')
    k(f's_cselect_b32 s{S_SIG}, 5, 0')
    k('v_lshrrev_b32 v10, 3, v1')
    k(f'v_add_u32 v10, s{S_TOK}, v10')
    k('v_mul_u32_u24 v10, 1280, v10')
    k('v_and_b32 v11, 7, v1')
    k('v_lshrrev_b32 v12, 4, v1')
    k('v_xor_b32 v11, v11, v12')
    k('v_xor_b32 v13, 4, v11')
    k('v_lshl_add_u32 v2, v11, 4, v10')
    k('v_lshl_add_u32 v3, v13, 4, v10')
    k(f'v_add_u32 v3, {10240-1024}, v3')
    k(f'v_add_u32 v4, {2*(10240-1024)}, v2')
    k(f'v_add_u32 v5, {2*(10240-1024)}, v3')
    k(f's_lshl_b32 s47, s{S_W4}, 4')
    k('v_add_u32 v10, s47, v12')
    k('v_mul_u32_u24 v10, 3840, v10')
    k(f's_lshl_b32 s47, s{S_NT}, 8')
    k('v_add_u32 v10, s47, v10')
    k('v_bfe_u32 v11, v1, 2, 2')
    k('v_xor_b32 v11, v11, v12')
    k('v_lshl_add_u32 v10, v11, 6, v10')
    k('v_and_b32 v11, 3, v1')
    k('v_lshl_add_u32 v6, v11, 4, v10')
    for i in range(1, 4):
        k(f'v_add_u32 v{6+i}, {i*(4*3840-1024)}, v6')
    k(f's_lshl_b32 s{S_LW}, s{S_W4}, 12')
    tok = {}

    def issue(st):
        slot = st % P1_R
        k(f's_add_u32 m0, s{S_LW}, {slot*P1_SLOT}')
        k(f's_lshl_b32 s{sa}, s{S_SIG}, 7')
        for i in range(4):
            k(f'buffer_load_dwordx4 v{2+i}, s[{S_X}:{S_X+3}], s{sa} offen offset:{i*1024} lds')
        k(f's_add_u32 m0, s{S_LW}, {slot*P1_SLOT+16384}')
        k(f's_mul_i32 s{sb_}, s{S_SIG}, {64*3840}')
        k(f's_add_u32 s{S_SIG}, s{S_SIG}, 1')
        k(f's_cmp_eq_u32 s{S_SIG}, 10')
        k(f's_cselect_b32 s{S_SIG}, 0, s{S_SIG}')
        for i in range(4):
            tok[st] = k(f'buffer_load_dwordx4 v{6+i}, s[{S_WQKV}:{S_WQKV+3}], s{sb_} offen offset:{i*1024} lds')
    return tok, issue


def p1_loader(k, g3):
    tile1(k)
    S_NT, S_TOK, S_LW, S_SIG = 44, 46, 48, 55
    lab_h, lab_e = k.newlabel('L_HELP'), k.newlabel('L_P1E')
    k(f's_cmp_ge_u32 s{S_I32}, 30')
    k(f's_cbranch_scc1 {lab_h}')
    tok, issue = p1_dma(k, S_SIG, 49, 50)
    issue(0)
    issue(1)
    stamp(k, 1)
    k.wait(tok[0])
    k('s_barrier')
    stamp(k, 2)
    if OPT.get('cdma', 0):
        k(f's_add_u32 s{S_SIG}, s{S_SIG}, 2')
        tok[2] = tok[3] = tok[1]
    else:
        issue(2)
        issue(3)
    blk = k.capture(lambda: (g3.dma_setup(100), p2_setup(k)))
    nb_ = (len(blk) + 2) // 3
    for st in range(1, 10):
        k.wait(tok[st])
        k('s_barrier')
        if st + 3 < 10:
            issue(st + 3)
        if st == 6:
            stamp(k, 3)
            pf_wo(k, 120, 121)
        if 6 <= st <= 8:
            k.items.extend(blk[(st - 6) * nb_:(st - 5) * nb_])
    k(f's_branch {lab_e}')
    k.label(lab_h)
    for st in range(10):
        k('s_barrier')
    pf_wo(k, 120, 121)
    k.items.extend(blk)
    k.label(lab_e)
    join(k)
    nonce_from_lds(k, 122)
    stamp(k, 9)
    k('s_barrier')
    if OPT.get('wowait', 1):
        cnt_wait(k, 238, 239, 0, OPT.get('wowait', 1))
    stamp(k, 10)
    for st in range(5):
        runall(k, g3.dma_step(st))
    stamp(k, 11)


def p1_compute(k):
    tile1(k)
    S_NT, S_MT, S_TOK, S_LW, S_RHO = 44, 45, 46, 48, 56
    k(f's_lshl_b32 s{S_LW}, s{S_W4}, 12')
    ctok = {}
    if OPT.get('cdma', 0):
        lab_nd = k.newlabel('NODMA')
        k(f's_cmp_ge_u32 s{S_I32}, 30')
        k(f's_cbranch_scc1 {lab_nd}')
        ctok, cissue = p1_dma(k, 55, 49, 50)
        k('s_add_u32 s55, s55, 2')
        cissue(2)
        cissue(3)
        k.label(lab_nd)
    for i in range(4):
        k(f'v_mov_b32 v{96+i}, -1')
    k('v_lshlrev_b32 v100, 4, v1')
    k('v_lshlrev_b32 v101, 3, v1')
    k('v_and_b32 v40, 31, v1')
    k('v_lshlrev_b32 v109, 3, v40')
    k('v_lshlrev_b32 v102, 2, v40')
    k(f's_lshl_b32 s51, s{S_RHO}, 14')
    k(f's_lshl_b32 s47, s{S_TOK}, 3')
    k('s_add_u32 s51, s51, s47')
    k(f's_add_u32 s51, s51, {WS_PS}')
    k(f's_mov_b32 s47, {OOB}')
    k(f's_cmp_lt_u32 s{S_NT}, 10')
    k('s_cselect_b32 s51, s51, s47')
    k(f's_mul_i32 s52, s{S_RHO}, 7680')
    k(f's_lshl_b32 s49, s{S_NT}, 9')
    k('s_add_u32 s52, s52, s49')
    k(f's_lshl_b32 s49, s{S_W4}, 7')
    k('s_add_u32 s52, s52, s49')
    k(f's_add_u32 s52, s52, {WS_PC}')
    k(f's_cmp_lt_u32 s{S_MT}, 10')
    k('s_cselect_b32 s52, s52, s47')
    k(f's_cmp_lt_u32 s{S_I32}, 30')
    k('s_cselect_b32 s51, s51, s47')
    k('s_cselect_b32 s52, s52, s47')
    k(f'buffer_store_dwordx2 {v(96,2)}, v109, {WSR}, s51 offen sc1')
    sctok = k(f'buffer_store_dword v96, v102, {WSR}, s52 offen sc1')
    if OPT.get('qclr', 0):
        k(f's_lshl_b32 s60, s{S_NT}, 5')
        k(f's_lshl_b32 s61, s{S_W4}, 3')
        k('s_add_u32 s60, s60, s61')
        k('s_lshl_b32 s60, s60, 14')
        k(f's_lshl_b32 s61, s{S_MT}, 10')
        k('s_add_u32 s64, s60, s61')
        k(f's_lshr_b32 s60, s{S_TOK}, 5')
        k('s_mul_i32 s60, s60, 40960')
        k(f's_sub_u32 s61, s{S_NT}, 10')
        k('s_lshl_b32 s61, s61, 11')
        k('s_add_u32 s65, s60, s61')
        k(f's_cmp_lt_u32 s{S_I32}, 30')
        k(f's_cselect_b32 s64, s64, {OOB}')
        k(f's_cselect_b32 s65, s65, {OOB}')
        for n in range(8):
            k(f's_add_u32 s60, s64, {WS_QG + n*16384}')
            k(f's_add_u32 s61, s65, {WS_VF + (n//2)*10240 + (n%2)*1024}')
            k(f's_cmp_lt_u32 s{S_NT}, 10')
            k('s_cselect_b32 s60, s60, s61')
            if OPT.get('qclr') == 2:
                k('s_sleep 4')
            sctok = k(f'buffer_store_dwordx4 {v(96,4)}, v100, {WSR}, s60 offen sc1')
    NV = 252
    if OPT.get('tlb', 0) & 1:
        k('v_lshlrev_b32 v115, 20, v1')
        for n_, sr in enumerate((S_WS, S_WO, S_WG, S_WU, S_WD, S_OUT)):
            k(f's_cmp_eq_u32 s{S_W4}, {n_ % 4}')
            k(f's_cselect_b32 s60, 0, {OOB}')
            k(f'buffer_load_dword v{116+n_}, v115, s[{sr}:{sr+3}], s60 offen')
    if OPT.get('tlb', 0) & 2:
        k('v_and_b32 v115, 15, v1')
        k(f's_lshl_b32 s60, s{S_I32}, 4')
        k('v_add_u32 v115, s60, v115')
        k('v_lshlrev_b32 v115, 16, v115')
        k(f's_cmp_eq_u32 s{S_W4}, 1')
        k(f's_cselect_b32 s60, 0, {OOB}')
        k(f'buffer_load_dword v116, v115, {WSR}, s60 offen')
        k('v_and_b32 v115, 1, v1')
        k(f's_lshl_b32 s60, s{S_I32}, 1')
        k('v_add_u32 v115, s60, v115')
        k('v_lshlrev_b32 v115, 16, v115')
        for n_, sr in enumerate((S_WO, S_WG, S_WU, S_WD, S_OUT)):
            k(f's_cmp_eq_u32 s{S_W4}, {2 + n_ % 2}')
            k(f's_cselect_b32 s60, 0, {OOB}')
            k(f'buffer_load_dword v{117+n_}, v115, s[{sr}:{sr+3}], s60 offen')
    def warm():
        k('v_lshlrev_b32 v110, 7, v0')
        k(f's_and_b32 s60, s{S_X8}, 3')
        k('s_lshl_b32 s60, s60, 5')
        k(f's_add_u32 s60, s60, s{S_I32}')
        k('s_mul_i32 s60, s60, 20480')
        k('v_cmp_gt_u32 vcc, 160, v0')
        k(f'v_mov_b32 v111, {OOB}')
        k('v_cndmask_b32 v110, v111, v110, vcc')
        k(f'buffer_load_dword v111, v110, s[{S_X}:{S_X+3}], s60 offen')
        k('v_lshrrev_b32 v110, 4, v0')
        k('v_mul_u32_u24 v110, 3840, v110')
        k('v_and_b32 v112, 15, v0')
        k('v_lshl_add_u32 v110, v112, 7, v110')
        k(f's_mul_i32 s60, s{S_I32}, {20*3840}')
        k(f's_lshr_b32 s61, s{S_X8}, 2')
        k('s_mul_i32 s61, s61, 1792')
        k('s_add_u32 s60, s60, s61')
        k(f'buffer_load_dword v113, v110, s[{S_WQKV}:{S_WQKV+3}], s60 offen')
        k(f's_add_u32 s60, s60, {16*3840}')
        k(f's_mov_b32 s61, {OOB}')
        k(f's_cmp_eq_u32 s{S_W4}, 0')
        k('s_cselect_b32 s60, s60, s61')
        k(f'buffer_load_dword v114, v110, s[{S_WQKV}:{S_WQKV+3}], s60 offen')
    if OPT.get('warm', 0) == 1:
        warm()
    k('v_lshrrev_b32 v41, 5, v1')
    k('v_bfe_u32 v42, v1, 1, 3')
    k('v_xor_b32 v42, v42, v41')
    k('v_lshlrev_b32 v43, 7, v40')
    k('v_lshl_add_u32 v43, v42, 4, v43')
    k(f'v_add_u32 v10, s{S_LW}, v43')
    for ks in range(1, 4):
        k(f'v_xor_b32 v{10+ks}, {ks*32}, v10')
    k('v_bfe_u32 v42, v1, 2, 2')
    k('v_lshl_add_u32 v43, v41, 3, v42')
    k('v_lshlrev_b32 v43, 8, v43')
    k('v_bfe_u32 v44, v1, 4, 1')
    k('v_lshl_add_u32 v43, v44, 5, v43')
    k('v_and_b32 v44, 3, v1')
    k('v_lshl_add_u32 v43, v44, 3, v43')
    k('v_add_u32 v43, 16384, v43')
    for j in range(4):
        k(f's_add_u32 s49, s{S_W4}, {j}')
        k('s_and_b32 s49, s49, 3')
        k('v_xor_b32 v44, s49, v42')
        k(f'v_lshl_add_u32 v{14+j}, v44, 6, v43')
    for i in range(8):
        k(f'v_add_u32 v{18+i}, 65536, v{10+i}')
    VSUM, VSQ, VCS, VONE = 34, 35, 36, 37
    k(f'v_mov_b32 v{VSUM}, 0')
    k(f'v_mov_b32 v{VSQ}, 0')
    k(f'v_mov_b32 v{VCS}, 0')
    k(f'v_mov_b32 v{VONE}, 0x3f803f80')
    k('v_lshrrev_b32 v105, 5, v1')
    k(f'v_mul_u32_u24 v103, {5*16384}, v105')
    k('v_add_u32 v103, v103, v109')
    k(f'v_mul_u32_u24 v104, {5*7680}, v105')
    k('v_add_u32 v104, v104, v102')
    k(f's_lshl_b32 s53, s{S_TOK}, 3')
    k(f's_add_u32 s53, s53, {WS_PS}')
    k(f's_lshl_b32 s54, s{S_NT}, 9')
    k(f's_lshl_b32 s49, s{S_W4}, 7')
    k('s_add_u32 s54, s54, s49')
    k(f's_add_u32 s54, s54, {WS_PC}')
    k('s_sub_u32 s55, s56, 5')
    k('s_cmp_ge_u32 s56, 5')
    k('s_cselect_b32 s55, s55, s56')
    XF, WF, ACC = 40, 48, 128
    PR, PCR, FL = 232, 242, 248
    stamp(k, 1)
    def nonce_share():
        def blk():
            loop, done = k.newlabel('NL'), k.newlabel('ND')
            first = k.newlabel('NF')
            k(f's_branch {first}')
            k.label(loop)
            k.raw(f'    buffer_load_dword v{NV}, v{NV+1}, s[{S_DBG}:{S_DBG+3}], 0 offen sc1')
            k.label(first)
            k.raw('    s_waitcnt vmcnt(0)')
            k(f'v_readfirstlane_b32 s{S_NONCE}, v{NV}')
            k(f's_cmp_lg_u32 s{S_NONCE}, 0')
            k(f's_cbranch_scc1 {done}')
            k(f's_cmp_eq_u32 s{S_BUD}, 0')
            k(f's_cbranch_scc1 {done}')
            k(f's_sub_u32 s{S_BUD}, s{S_BUD}, 1')
            k('s_sleep 4')
            k(f's_branch {loop}')
            k.label(done)
            k(f'v_mov_b32 v{NV+1}, {XNONCE}')
            k.raw(f'    ds_write_b32 v{NV+1}, v{NV}')
            k.raw('    s_waitcnt lgkmcnt(0)')
        k(f's_cmp_eq_u32 s{S_W}, 0')
        k.outline('s_cbranch_scc1', blk)
        k.wait(sctok)

    def nonce_pre():
        def blk():
            k(f'v_mov_b32 v{NV+1}, 0')
            k.raw(f'    buffer_load_dword v{NV}, v{NV+1}, s[{S_DBG}:{S_DBG+3}], 0 offen sc1')
        k(f's_cmp_eq_u32 s{S_W}, 0')
        k.outline('s_cbranch_scc1', blk)

    def nonce_get():
        rflag_store(k, WS_F0, 2, 107, 108)
        nonce_from_lds(k, 107)
    k(f'v_mov_b32 v107, {XCNT}')
    k('v_mov_b32 v108, 0')
    k('ds_write_b32 v107, v108')
    k('ds_write_b32 v107, v108 offset:4')
    k.wait_all(vm=False)
    if OPT.get('warm', 0) == 3:
        k('s_sleep 20')
        warm()
    stamp(k, 2)
    k('s_barrier')
    nonce_pre()
    if OPT.get('warm', 0) == 2:
        warm()
    stamp(k, 3)
    lab_v, lab_h, lab_done = k.newlabel('P1_V'), k.newlabel('C_HELP'), k.newlabel('C_P1D')
    k(f's_cmp_ge_u32 s{S_I32}, 30')
    k(f's_cbranch_scc1 {lab_h}')
    k(f's_cmp_ge_u32 s{S_NT}, 10')
    k(f's_cbranch_scc1 {lab_v}')
    saved = k.snap()
    T = {}

    def part_loads(c):
        for n in range(5):
            c(f's_add_u32 s58, s53, {n*16384}')
            c(f'buffer_load_dwordx2 {v(PR+2*n,2)}, v103, {WSR}, s58 offen sc1')
        tok = None
        for n in range(5):
            c(f's_add_u32 s58, s54, {n*7680}')
            tok = c(f'buffer_load_dword v{PCR+n}, v104, {WSR}, s58 offen sc1')
        return tok

    PRE = {}

    def mainloop(transposed):
        rd = {}

        def reads(kk):
            st, ks = kk // 4, kk % 4
            slot = st % P1_R
            q, so = slot // 2, (slot % 2) * P1_SLOT
            b = kk % 2
            ops = [[] for _ in range(4)]
            ops[0].append(lambda: rd.__setitem__((kk, 'x'), k(
                f'ds_read_b128 {v(XF+4*b,4)}, v{10+8*q+ks} offset:{so}')))
            for j in range(4):
                for hf in range(2):
                    ops[j].append(lambda j=j, hf=hf: rd.__setitem__((kk, j), k(
                        f'ds_read_b64_tr_b16 {v(WF+16*b+4*j+2*hf,2)}, v{14+8*q+j} offset:{so+ks*4096+hf*1024}')))
            return ops
        for l_ in reads(0):
            runall(k, l_)
        clr = clear_ops(k, 96, 100)
        for kk in range(40):
            b = kk % 2
            if kk % 8 == 4:
                stamp(k, 4 + kk // 8)
            fill, rds = [], []
            if kk >= OPT.get('clr0', 28) and kk != 34 and clr:
                fill.append(clr.pop(0))
            if kk + 1 < 40:
                if (kk + 1) % 4 == 0:
                    if kk == 7:
                        nonce_share()
                    if (kk + 1) // 4 in ctok:
                        k.wait(ctok[(kk + 1) // 4])
                    k.wait_all(vm=False)
                    k('s_barrier')
                    if kk == 7:
                        nonce_get()
                rds = reads(kk + 1)
            if kk < 20:
                def dots(b=b, kk=kk):
                    for i in range(4):
                        k(f'v_dot2_f32_bf16 v{VSUM}, v{XF+4*b+i}, v{VONE}, v{VSUM}')
                        k(f'v_dot2_f32_bf16 v{VSQ}, v{XF+4*b+i}, v{XF+4*b+i}, v{VSQ}')
                        k(f'v_dot2_f32_bf16 v{VCS}, v{WF+16*b+i}, v{VONE}, v{VCS}')
                    if kk % 4 == 3:
                        xsum(k, VSUM, 80, 81)
                        xsum(k, VSQ, 80, 81)
                        xsum(k, VCS, 80, 81)
                        k.raw(f'    buffer_store_dwordx2 {v(VSUM,2)}, v109, {WSR}, s51 offen sc1')
                        k.raw(f'    buffer_store_dword v{VCS}, v102, {WSR}, s52 offen sc1')

                def g_(dots=dots, kk=kk):
                    k(f's_cmp_eq_u32 s55, {kk//4}')
                    k.outline('s_cbranch_scc1', dots)
                fill.append(g_)
            if kk == 20:
                fill.append(lambda: T.__setitem__('flags', flags_issue(k, WS_F0, FL, 106)))
            if kk == OPT.get('pl', 27):
                def f():
                    flags_check(k, WS_F0, FL, 106, T['flags'])
                    T['part'] = part_loads(k)
                fill.append(f)
            if kk == 34:
                fill.append(lambda: finalize(transposed))
            fill += PRE.get(kk, [])
            mf = []
            for j in range(4):
                c = '0' if kk == 0 else v(ACC + 16 * j, 16)
                A_, B_ = v(WF + 16 * b + 4 * j, 4), v(XF + 4 * b, 4)
                if not transposed:
                    A_, B_ = B_, A_
                mf.append((lambda j=j: [rd[kk, 'x'], rd[kk, j]],
                           f'v_mfma_f32_32x32x16_bf16 {v(ACC+16*j,16)}, {A_}, {B_}, {c}'))
            roll_step(k, mf, rds, fill)

    def finalize(transposed):
        k.wait(T['part'])
        check_group(k, list(range(PR, PR + 10)) + list(range(PCR, PCR + 5)), 80, part_loads)
        for n in range(1, 5):
            k(f'v_pk_add_f32 {v(PR,2)}, {v(PR,2)}, {v(PR+2*n,2)}')
            k(f'v_add_f32 v{PCR}, v{PCR}, v{PCR+n}')
        xsum(k, PCR, 80, 81)
        k(f's_lshl_b32 s49, s{S_W4}, 7')
        k(f's_add_u32 s49, s49, {XCH}')
        k('v_add_u32 v82, s49, v102')
        k(f'ds_write_b32 v82, v{PCR}')
        vsum, vsq = PR, PR + 1
        xsum(k, vsum, 80, 81)
        xsum(k, vsq, 80, 81)
        k(f'v_mul_f32 v{vsum}, {f32(1.0/640)}, v{vsum}')
        k(f'v_mul_f32 v{vsq}, {f32(1.0/640)}, v{vsq}')
        k(f'v_fma_f32 v{vsq}, -v{vsum}, v{vsum}, v{vsq}')
        k(f'v_max_f32 v{vsq}, 0, v{vsq}')
        rbf(k, 80, vsum)
        rbf(k, 81, vsq)
        k(f'v_add_f32 v81, {f32(1e-5)}, v81')
        rbf(k, 81, 81)
        k('v_sqrt_f32 v81, v81')
        rbf(k, 81, 81)
        k('v_rcp_f32 v38, v81')
        if transposed:
            k(f's_mov_b32 s49, {f32(math.log2(math.e)/math.sqrt(20.0))}')
            k(f's_cmp_lt_u32 s{S_NT}, 5')
            k('s_cselect_b32 s49, s49, 1.0')
            k('v_mul_f32 v38, s49, v38')
        k('v_mul_f32 v39, v80, v38')
        k('v_sub_f32 v39, 0, v39')
        if not transposed:
            k(f's_lshl_b32 s49, s{S_W4}, 8')
            k(f's_add_u32 s49, s49, {XCH}')
            k('v_add_u32 v83, s49, v102')
            k('ds_write_b32 v83, v38 offset:1024')
            k('ds_write_b32 v83, v39 offset:1152')

    def fin():
        stamp(k, 10)
        k(f's_lshl_b32 s49, s{S_MT}, 4')
        k(f's_add_u32 s49, s49, s{S_NT}')
        k.wait_all()
        wflag_store(k, WS_F2, 49, 80, 81, 0)
        k(f's_branch {lab_done}')

    toks = {}
    CB = {0: 192, 1: 208, 2: 48, 3: 64}

    def csreads(j):
        k(f's_add_u32 s49, s{S_W4}, {j}')
        k('s_and_b32 s49, s49, 3')
        k('s_lshl_b32 s52, s49, 7')
        k('v_add_u32 v86, s52, v85')
        for a_ in range(4):
            toks[j, a_] = k(f'ds_read_b128 {v(CB[j]+4*a_,4)}, v86 offset:{a_*32}')

    def csmul(j):
        k.wait(toks[j, 3])
        for q in range(8):
            k(f'v_pk_mul_f32 {v(CB[j]+2*q,2)}, {v(CB[j]+2*q,2)}, {v(38,2)} op_sel:[0,1] op_sel_hi:[1,1]')

    def pre_qk():
        k(f's_lshl_b32 s49, s{S_TOK}, 3')
        k('v_add_u32 v84, s49, v109')
        k('v_lshl_add_u32 v84, v105, 14, v84')
        k('v_lshlrev_b32 v85, 4, v105')
        k(f'v_add_u32 v85, {XCH}, v85')
        csreads(0)
        csreads(1)
    PRE.clear()
    PRE.update({36: [pre_qk], 37: [lambda: csmul(0)], 38: [lambda: csmul(1)]})
    mainloop(True)
    stamp(k, 9)
    k('s_barrier')
    csreads(2)
    csreads(3)
    for j in range(4):
        k(f's_add_u32 s49, s{S_W4}, {j}')
        k('s_and_b32 s49, s49, 3')
        k(f's_lshl_b32 s52, s{S_NT}, 5')
        k('s_lshl_b32 s53, s49, 3')
        k('s_add_u32 s52, s52, s53')
        k('s_lshl_b32 s52, s52, 14')
        if j >= 2:
            csmul(j)
        C0 = CB[j]
        for a_ in range(4):
            r0 = ACC + 16 * j + 4 * a_
            for p in range(2):
                k(f'v_pk_fma_f32 {v(r0+2*p,2)}, {v(r0+2*p,2)}, {v(38,2)}, {v(C0+4*a_+2*p,2)} op_sel_hi:[1,0,1]')
            k(f'v_cvt_pk_bf16_f32 v{112+2*a_}, v{r0}, v{r0+1}')
            k(f'v_cvt_pk_bf16_f32 v{113+2*a_}, v{r0+2}, v{r0+3}')
            k(f's_add_u32 s53, s52, {WS_QG + a_*32768}')
            k(f'buffer_store_dwordx2 {v(112+2*a_,2)}, v84, {WSR}, s53 offen sc1')
    fin()
    k.label(lab_v)
    k.restore(saved)
    tl = []

    def pre_v():
        k(f's_lshl_b32 s49, s{S_W4}, 8')
        k(f's_add_u32 s49, s49, {XCH}')
        k('v_lshlrev_b32 v86, 4, v105')
        k('v_add_u32 v86, s49, v86')
        for a_ in range(4):
            tl.append(k(f'ds_read_b128 {v(192+4*a_,4)}, v86 offset:{1024+a_*32}'))

    def pre_v2():
        for a_ in range(4):
            tl.append(k(f'ds_read_b128 {v(208+4*a_,4)}, v86 offset:{1152+a_*32}'))

    def pre_v3():
        for j in range(4):
            k(f's_add_u32 s52, s{S_W4}, {j}')
            k('s_and_b32 s52, s52, 3')
            k('s_lshl_b32 s52, s52, 7')
            k(f's_add_u32 s52, s52, {XCH}')
            k('v_add_u32 v87, s52, v102')
            tl.append(k(f'ds_read_b32 v{224+2*j}, v87'))
        k('v_mul_u32_u24 v84, 10240, v105')
        k('v_lshl_add_u32 v84, v102, 2, v84')
        k(f's_lshr_b32 s53, s{S_TOK}, 5')
        k('s_mul_i32 s53, s53, 40960')
        k(f's_sub_u32 s54, s{S_NT}, 10')
        k('s_lshl_b32 s54, s54, 11')
        k('s_add_u32 s53, s53, s54')
        k(f's_add_u32 s53, s53, {WS_VF}')
    PRE.clear()
    PRE.update({36: [pre_v], 37: [pre_v2], 38: [pre_v3]})
    mainloop(False)
    stamp(k, 9)
    k.wait(*tl)
    k('s_barrier')
    for j in range(4):
        k(f's_add_u32 s52, s{S_W4}, {j}')
        k('s_and_b32 s52, s52, 3')
        k('s_lshl_b32 s52, s52, 9')
        k('s_add_u32 s52, s52, s53')
        for m in range(2):
            for p in range(4):
                i = 8 * m + 2 * p
                r0 = ACC + 16 * j + i
                k(f'v_pk_mul_f32 {v(88+2*(p%2),2)}, {v(208+i,2)}, {v(224+2*j,2)} op_sel_hi:[1,0]')
                k(f'v_pk_fma_f32 {v(r0,2)}, {v(r0,2)}, {v(192+i,2)}, {v(88+2*(p%2),2)}')
                k(f'v_cvt_pk_bf16_f32 v{112+8*(j%2)+4*m+p}, v{r0}, v{r0+1}')
            k(f's_add_u32 s54, s52, {m*20480}')
            k(f'buffer_store_dwordx4 {v(112+8*(j%2)+4*m,4)}, v84, {WSR}, s54 offen sc1')
    fin()
    k.label(lab_h)
    k.restore(saved)
    nonce_share()
    k('s_barrier')
    nonce_get()
    for _ in range(8):
        k('s_barrier')
    runall(k, clear_ops(k, 96, 100))
    k('s_barrier')
    k(f's_lshl_b32 s49, s{S_X8}, 1')
    k(f's_add_u32 s49, s49, s{S_I32}')
    k('s_sub_u32 s49, s49, 30')
    k('s_lshl_b32 s49, s49, 4')
    k('s_add_u32 s49, s49, 15')
    k.wait_all()
    wflag_store(k, WS_F2, 49, 80, 81, 0)
    k.label(lab_done)


P5_BAR = (2, 4, 6, 8, 10)


class G35:
    def __init__(self, k, which, groups, vb, sb):
        self.k = k
        self.which = which
        self.KT = 640 if which == 3 else 1536
        self.NST = self.KT // 128
        self.SB = S_WO if which == 3 else S_WD
        self.groups = groups
        self.vb = vb
        self.sb = sb
        self.btok = {}
        self.rtok = {}
        self.sr = 36 if which == 3 else 37

    def set_rho(self, sct):
        k = self.k
        sr = self.sr
        if not OPT.get('rot35', 1):
            k(f's_mov_b32 s{sr}, 0')
        elif self.which == 3:
            k(f's_sub_u32 s{sr}, s{sct}, 5')
            k(f's_cmp_ge_u32 s{sct}, 5')
            k(f's_cselect_b32 s{sr}, s{sr}, s{sct}')
        else:
            k(f's_mul_i32 s{sr}, s{sct}, 3')
            k(f's_lshr_b32 s{sr}, s{sr}, 1')

    def rot(self, c, st, sreg, stmp, mul, src=None):
        c(f's_add_u32 s{sreg}, s{self.sr if src is None else src}, {st}')
        c(f's_sub_u32 s{stmp}, s{sreg}, {self.NST}')
        c(f's_cmp_ge_u32 s{sreg}, {self.NST}')
        c(f's_cselect_b32 s{sreg}, s{stmp}, s{sreg}')
        c(f's_mul_i32 s{sreg}, s{sreg}, {mul}')

    def dma_setup(self, t0):
        k, vb, sb = self.k, self.vb, self.sb
        tile35(k, 61, 60, sb)
        self.set_rho(60)
        k('s_mul_i32 s60, s60, 160')
        k(f's_mul_i32 s{sb+1}, s{S_W4}, {(self.KT//4)*1280}')
        k(f's_add_u32 s60, s60, s{sb+1}')
        for n in range(5):
            k(f'v_add_u32 v{t0}, {64*n}, v1')
            k(f'v_mul_u32_u24 v{t0+1}, 6554, v{t0}')
            k(f'v_lshrrev_b32 v{t0+1}, 16, v{t0+1}')
            k(f'v_mul_u32_u24 v{t0+2}, 10, v{t0+1}')
            k(f'v_sub_u32 v{t0+2}, v{t0}, v{t0+2}')
            k(f'v_bfe_u32 v{t0+3}, v{t0+1}, 3, 1')
            k(f'v_lshlrev_b32 v{t0+3}, 2, v{t0+3}')
            k(f'v_xor_b32 v{t0+1}, v{t0+1}, v{t0+3}')
            k(f'v_mul_u32_u24 v{t0+1}, 1280, v{t0+1}')
            k(f'v_lshl_add_u32 v{vb+n}, v{t0+2}, 4, v{t0+1}')
            k(f'v_add_u32 v{vb+n}, s60, v{vb+n}')
            if 0 < n < 4:
                k(f'v_subrev_u32 v{vb+n}, {n*1024}, v{vb+n}')
        k(f's_mul_i32 s{sb}, s{S_W4}, 5120')

    def dma_step(self, st):
        k, vb, sb = self.k, self.vb, self.sb
        base = self.groups[st % len(self.groups)]
        SB = self.SB
        ops = []

        def f0():
            k(f's_add_u32 m0, s{sb}, {base}')
            self.rot(k, st, sb + 1, 38, 32 * 1280)
        ops.append(f0)
        for n in range(4):
            ops.append(lambda n=n: self.btok.__setitem__(st, k(
                f'buffer_load_dwordx4 v{vb+n}, s[{SB}:{SB+3}], s{sb+1} offen offset:{n*1024} lds')))
        ops.append(lambda: k(f's_add_u32 m0, s{sb}, {base+4096}'))
        ops.append(lambda: self.btok.__setitem__(st, k(
            f'buffer_load_dwordx4 v{vb+4}, s[{SB}:{SB+3}], s{sb+1} offen lds')))
        return ops

    def breg_load(self, st, r0):
        k, vb, sb, SB = self.k, self.vb, self.sb, self.SB
        self.rot(k, st, sb + 1, 38, 32 * 1280)
        for n in range(4):
            k(f'buffer_load_dwordx4 {v(r0+4*n,4)}, v{vb+n}, s[{SB}:{SB+3}], s{sb+1} offen offset:{n*1024}')
            if OPT.get('pace', 0):
                k(f's_sleep {OPT.get("pace")}')
        self.rtok[st] = (k(f'buffer_load_dwordx4 {v(r0+16,4)}, v{vb+4}, s[{SB}:{SB+3}], s{sb+1} offen'), r0)

    def breg_write(self, st, va):
        k = self.k
        tok, r0 = self.rtok[st]
        base = self.groups[st % len(self.groups)]
        q, so = base // 61440, base % 61440
        k.wait(tok)
        for n in range(5):
            self.btok[st] = k(f'ds_write_b128 v{va+q}, {v(r0+4*n,4)} offset:{so+n*1024}')

    def loader(self, nb_pre, st0=0):
        k, NST = self.k, self.NST
        NG = len(self.groups)
        k('v_lshlrev_b32 v12, 4, v1')
        k(f's_mul_i32 s46, s{S_W4}, 5120')
        k('v_add_u32 v21, s46, v12')
        k('v_add_u32 v22, 61440, v21')
        k('v_add_u32 v23, 122880, v21')
        stamp(k, st0)
        k.wait(*[self.btok[s_] for s_ in range(7)])
        k('s_barrier')

        def put(nb):
            if nb in self.rtok:
                self.breg_write(nb, 21)
            else:
                runall(k, self.dma_step(nb))
        k('s_barrier')
        for nb in (7, 8, 9):
            put(nb)
        k('s_barrier')
        put(11)
        put(10)
        k.wait(self.btok[7], self.btok[8])
        k('s_barrier')
        k.wait(self.btok[9], self.btok[10])
        k('s_barrier')
        k.wait(self.btok[11])
        k('s_barrier')
        stamp(k, st0 + 3)

    def compute(self, own_tok, st0=0):
        k, NST, which, KT = self.k, self.NST, self.which, self.KT
        NG = len(self.groups)
        ABASE = WS_OC if which == 3 else WS_HC
        S_RT, S_CT, S_PAR = 44, 45, 50
        tile35(k, 44, 45, 46)
        self.set_rho(45)
        k('s_mov_b32 s50, 0')
        k(f's_mul_i32 s51, s{S_W4}, 5120')
        k('v_and_b32 v15, 15, v1')
        k('v_lshrrev_b32 v16, 4, v1')
        k('v_bfe_u32 v17, v1, 2, 2')
        k('v_lshl_add_u32 v18, v16, 3, v17')
        k('v_bfe_u32 v20, v1, 4, 1')
        k('v_lshlrev_b32 v20, 2, v20')
        k('v_xor_b32 v19, v18, v20')
        k('v_xor_b32 v22, 4, v19')
        k('v_and_b32 v21, 3, v1')
        RA = 24
        for hf, src in ((0, 19), (1, 22)):
            k(f'v_mul_u32_u24 v{RA+hf}, 160, v{src}')
            k(f'v_lshl_add_u32 v{RA+hf}, v21, 3, v{RA+hf}')
            k(f'v_add_u32 v{RA+hf}, s51, v{RA+hf}')
        QS = 61440
        for q in (1, 2):
            for i in range(2):
                k(f'v_add_u32 v{RA+2*q+i}, {q*QS}, v{RA+i}')
        k('v_lshlrev_b32 v2, 4, v1')
        k('v_lshlrev_b32 v3, 4, v15')
        k('v_lshl_add_u32 v3, v16, 15, v3')
        for tau in range(4):
            k(f's_add_u32 s46, s{S_W4}, {tau}')
            k('s_and_b32 s46, s46, 3')
            k('s_lshl_b32 s46, s46, 8')
            k(f'v_add_u32 v{4+tau}, s46, v3')
        k('s_lshl_b32 s53, s44, 10')
        k(f's_mul_i32 s54, s{S_W4}, {(KT//32)*32768}')
        k('s_add_u32 s53, s53, s54')
        k(f's_add_u32 s53, s53, {ABASE}')
        NW = 5
        AFR = 164
        atok = {}

        def aload(c, st, sreg):
            self.rot(c, st, sreg, 38, 4 * 32768)
            c(f's_add_u32 s{sreg}, s{sreg}, s53')
            t_ = None
            for t in range(4):
                t_ = c(f'buffer_load_dwordx4 {v(AFR+16*(st%NW)+4*t,4)}, v{4+t}, {WSR}, s{sreg} offen sc1')
            return t_
        RES = 244
        XG = [0, 20480, 40960] if which == 3 else [0, 20480, 49152]
        k('v_add_u32 v30, s51, v2')
        for tau in range(1, 4):
            k(f's_sub_u32 s47, s{S_W4}, {tau}')
            k('s_and_b32 s47, s47, 3')
            k('s_mul_i32 s47, s47, 5120')
            k(f'v_add_u32 v{30+tau}, s47, v2')
        k(f's_lshl_b32 s46, s{S_RT}, 6')
        k(f's_lshl_b32 s47, s{S_W4}, 4')
        k('s_add_u32 s46, s46, s47')
        S_TK = 46
        k('v_add_u32 v12, s46, v15')
        if which == 3:
            k('v_lshlrev_b32 v34, 4, v12')
            k('v_lshrrev_b32 v14, 1, v16')
            k('v_lshl_add_u32 v35, v14, 15, v34')
            k('v_and_b32 v14, 1, v16')
            k('v_lshl_add_u32 v36, v14, 16, v35')
            k('v_lshl_add_u32 v34, v14, 3, v35')
            k('v_lshlrev_b32 v37, 3, v12')
            k('v_mov_b32 v38, 0x3f803f80')
        else:
            P = 176
            k(f'v_mul_u32_u24 v34, {P}, v15')
            k('v_lshl_add_u32 v34, v16, 3, v34')
            k(f's_lshl_b32 s47, s{S_W4}, 12')
            k('s_add_u32 s47, s47, 90112')
            k('v_add_u32 v34, s47, v34')
            for it in range(3):
                k(f'v_add_u32 v17, {64*it}, v1')
                k('v_mul_u32_u24 v18, 6554, v17')
                k('v_lshrrev_b32 v18, 16, v18')
                k('v_mul_u32_u24 v19, 10, v18')
                k('v_sub_u32 v19, v17, v19')
                k(f'v_mul_u32_u24 v20, {P}, v18')
                k('v_lshl_add_u32 v20, v19, 4, v20')
                k(f'v_add_u32 v{35+it}, s47, v20')
                k('v_mul_u32_u24 v20, 1280, v18')
                k(f'v_lshl_add_u32 v{38+it}, v19, 4, v20')
        if which == 3:
            k('v_mul_u32_u24 v13, 1280, v12')
            k('v_lshl_add_u32 v13, v16, 3, v13')
            k(f's_mul_i32 s47, s{S_CT}, 160')
            k(f's_lshl_b32 s48, s{S_PAR}, 5')
            k('s_add_u32 s48, s48, s47')
            k(f's_lshl_b32 s49, s{S_PAR}, 7')
            k('s_sub_u32 s49, 128, s49')
            k('s_add_u32 s49, s49, s47')
            for jt in range(4):
                k(f'buffer_load_dwordx2 {v(RES+2*jt,2)}, v13, s[{S_X}:{S_X+3}], s48 offen offset:{jt*32}')
            rtk = k(f'buffer_load_dwordx2 {v(RES+8,2)}, v13, s[{S_X}:{S_X+3}], s49 offen')
            k('v_bfe_u32 v10, v1, 1, 2')
            k(f'v_mul_u32_u24 v10, {5*32768}, v10')
            k('v_and_b32 v11, 1, v1')
            k('v_lshl_add_u32 v10, v11, 3, v10')
            k('v_bfe_u32 v11, v1, 3, 1')
            k('v_lshl_add_u32 v10, v11, 9, v10')
            k(f's_add_u32 s55, s53, {2*32768 + 31*16}')
            tile4(k, 48, 49, 47)
            k('s_lshl_b32 s48, s48, 4')
            k('s_add_u32 s49, s49, s48')
            stamp(k, st0 - 1)
            k('s_barrier')
            rflag_store(k, WS_F3, 49, 8, 9)
            stamp(k, st0)
            if OPT.get('odelay', 0):
                k(f's_sleep {OPT.get("odelay")}')
            if OPT.get('probe', 0) & 1:
                probe(k, 55, 10, 11)
        else:
            stamp(k, st0)
            k.wait(own_tok)
            if OPT.get('Hdelay', 0):
                k(f's_sleep {OPT.get("Hdelay")}')
            if OPT.get('probe', 0) & 4:
                k('v_and_b32 v10, 3, v1')
                k(f'v_mul_u32_u24 v10, {12*32768}, v10')
                k('v_bfe_u32 v11, v1, 2, 1')
                k('v_lshl_add_u32 v10, v11, 9, v10')
                k(f's_add_u32 s55, s53, {11*32768 + 31*16}')
                probe(k, 55, 10, 11)
        stamp(k, st0 + 1)
        ACC, WF = 44, 124
        D = OPT.get('ad', 1)
        for st in range(D):
            atok[st] = aload(k, st, 54)
        rt = {}

        def reads(st):
            base = self.groups[st % NG]
            q, so = base // QS, base % QS
            b = st % 2
            ops = []
            for jt in range(5):
                for hf in range(2):
                    ops.append(lambda jt=jt, hf=hf: rt.__setitem__((st, jt), k(
                        f'ds_read_b64_tr_b16 {v(WF+20*b+4*jt+2*hf,2)}, v{RA+2*q+hf} offset:{so+jt*32}')))
            return ops
        if which == 5:
            k('s_barrier')
        runall(k, reads(0))
        if which == 3:
            k.wait(rtk)
        for i in range(10):
            k(f'v_lshlrev_b32 v{ACC+2*i}, 16, v{RES+i}')
            k(f'v_and_b32 v{ACC+2*i+1}, 0xffff0000, v{RES+i}')
        na = D
        for st in range(NST):
            b = st % 2
            R0 = AFR + 16 * (st % NW)
            if which == 5 and OPT.get('p5st') and st >= 1:
                stamp(k, 12 + st)
            k.wait(atok[st])
            hi = na if OPT.get('rall', 1) else st + 1
            check_group(k, range(R0, R0 + 16), 14, lambda c, st=st, hi=hi: [aload(c, s_, 58) for s_ in range(st, hi)],
                        pre=(st >= 2))
            if st == 0:
                stamp(k, st0 + 2)
            if which == 5 and OPT.get('p5st') and st >= 1:
                stamp(k, st)
            mf = []
            for t in ((1, 2, 3, 0) if st == NST - 1 else range(4)):
                for jt in range(5):
                    acc = v(ACC + 20 * t + 4 * jt, 4)
                    c = '0' if (st == 0 and t != 0) else acc
                    mf.append((lambda jt=jt: [rt[st, jt]],
                               f'v_mfma_f32_16x16x32_bf16 {acc}, {v(WF+20*b+4*jt,4)}, {v(R0+4*t,4)}, {c}'))
            rds = [[] for _ in range(20)]
            cnt = 0
            while na < NST and na <= st + NW - 1 and cnt < 2:
                def al(na=na):
                    self.rot(k, na, 54, 38, 4 * 32768)
                    k('s_add_u32 s54, s54, s53')
                rds[0 + 10 * cnt].append(al)
                for t in range(4):
                    rds[0 + 10 * cnt + 2 * t].append(lambda t=t, na=na: atok.__setitem__(na, k(
                        f'buffer_load_dwordx4 {v(AFR+16*(na%NW)+4*t,4)}, v{4+t}, {WSR}, s54 offen sc1')))
                na += 1
                cnt += 1
            if st + 1 < NST:
                if which == 5 and st in P5_BAR:
                    def bar():
                        k.wait_all(vm=False)
                        k('s_barrier')
                    rds[5].append(bar)
                for i, f in enumerate(reads(st + 1)):
                    rds[5 + i].append(f)
            if 1 <= st < NST - 1:
                R1 = AFR + 16 * ((st + 1) % NW)
                rds[15].append(lambda st=st: k.wait(atok[st + 1]))
                for i_, o_ in enumerate(maxchain_ops(range(R1, R1 + 16), 14)):
                    rds[15 + i_ // 2].append(o_)
            if st == NST - 1:
                for tau in range(1, 3):
                    for jt in range(5):
                        rds[5 * tau + 4 + jt if tau == 1 else 14 + jt].append(
                            f'ds_write_b128 v30, {v(ACC+20*tau+4*jt,4)} offset:{XG[tau-1]+jt*1024}')
            roll_step(k, mf, rds, [])
        stamp(k, st0 + 3)
        for jt in range(5):
            k(f'ds_write_b128 v30, {v(ACC+60+4*jt,4)} offset:{XG[2]+jt*1024}')
        if which == 3:
            k(f's_mul_i32 s48, s{S_CT}, 10')
            k('s_lshl_b32 s48, s48, 15')
            k(f's_add_u32 s48, s48, {WS_H1}')
            k(f's_lshl_b32 s49, s{S_CT}, 14')
            k(f's_add_u32 s49, s49, {WS_HS}')
            k('v_mov_b32 v40, 0')
            k('v_mov_b32 v41, 0')
        else:
            k(f's_mul_i32 s48, s{S_CT}, 160')
            k(f's_mul_i32 s49, s{S_TK}, 1280')
            k('s_add_u32 s48, s48, s49')
        k.wait_all(vm=False)
        k('s_barrier')
        S0, S1 = ACC, 124
        toks = {}
        for jt in range(5):
            for sidx in range(3):
                toks[sidx, jt] = k(f'ds_read_b128 {v(S1+20*sidx+4*jt,4)}, v{31+sidx} offset:{XG[sidx]+jt*1024}')
        PK = RES if which == 3 else 190
        for jt in range(5):
            k.wait(toks[2, jt])
            for p in range(2):
                r = 4 * jt + 2 * p
                k(f'v_pk_add_f32 {v(S1+r,2)}, {v(S1+r,2)}, {v(S1+20+r,2)}')
                k(f'v_pk_add_f32 {v(S0+r,2)}, {v(S0+r,2)}, {v(S1+40+r,2)}')
            for p in range(2):
                r = 4 * jt + 2 * p
                k(f'v_pk_add_f32 {v(S0+r,2)}, {v(S0+r,2)}, {v(S1+r,2)}')
            for p in range(2):
                r = 4 * jt + 2 * p
                k(f'v_cvt_pk_bf16_f32 v{PK+2*jt+p}, v{S0+r}, v{S0+r+1}')
            if which == 3:
                if jt < 4:
                    for p in range(2):
                        k(f'v_mov_b32 v{200+2*jt+p}, v{PK+2*jt+p}')
                if jt in (1, 3):
                    pr = jt // 2
                    for d in range(2):
                        k(f'v_permlane16_swap_b32 v{200+4*pr+d}, v{200+4*pr+2+d}')
                    k(f's_add_u32 s47, s48, {pr*4*32768}')
                    k(f'buffer_store_dwordx4 {v(200+4*pr,4)}, v36, {WSR}, s47 offen sc1')
                if jt == 4:
                    k(f's_add_u32 s47, s48, {8*32768}')
                    k(f'buffer_store_dwordx2 {v(PK+8,2)}, v34, {WSR}, s47 offen sc1')
            else:
                k(f'ds_write_b64 v34, {v(PK+2*jt,2)} offset:{jt*32}')
        stamp(k, st0 + 4)
        if which == 3:
            for i in range(10):
                k(f'v_dot2_f32_bf16 v40, v{PK+i}, v38, v40')
                k(f'v_dot2_f32_bf16 v41, v{PK+i}, v{PK+i}, v41')
            for r in (40, 41):
                xsum(k, r, 156, 157, 32)
                xsum(k, r, 156, 157, 16)
            k('s_mov_b64 exec, 0xffff')
            self.own = k(f'buffer_store_dwordx2 {v(40,2)}, v37, {WSR}, s49 offen sc1')
            k('s_mov_b64 exec, -1')
            k('s_barrier')
        else:
            k.wait_all(vm=False)
            tl = [k(f'ds_read_b128 {v(168+4*it,4)}, v{35+it}') for it in range(3)]
            for it in range(3):
                k.wait(tl[it])
                if it == 2:
                    k('v_cmp_gt_u32 vcc, 32, v1')
                    k('s_mov_b64 exec, vcc')
                k(f'buffer_store_dwordx4 {v(168+4*it,4)}, v{38+it}, s[{S_OUT}:{S_OUT+3}], s48 offen sc1')
            k('s_mov_b64 exec, -1')


def p2_setup(k):
    LK, LV = 102400, 122880
    k(f's_and_b32 s45, s{S_I32}, 3')
    k(f's_lshl_b32 s44, s{S_X8}, 2')
    k('s_add_u32 s45, s45, s44')
    k(f's_lshr_b32 s44, s{S_I32}, 2')
    S_I, S_H = 44, 45
    k(f's_lshl_b32 s46, s{S_I}, 8')
    k('s_sub_u32 s47, s46, 256')
    k('s_max_i32 s47, s47, 0')
    k(f's_cmp_lt_u32 s{S_W4}, 2')
    k('s_cselect_b32 s48, s47, s46')
    k('s_mov_b32 s50, s48')
    k(f's_and_b32 s49, s{S_W4}, 1')
    k('s_lshl_b32 s49, s49, 7')
    k('s_add_u32 s48, s48, s49')
    k('s_lshl_b32 s48, s48, 3')
    k(f's_mul_i32 s49, s{S_H}, {5*16384}')
    k('s_add_u32 s48, s48, s49')
    k(f's_add_u32 s48, s48, {WS_KG}')
    k('v_lshlrev_b32 v2, 4, v1')
    k('s_lshr_b32 s50, s50, 3')
    k('s_mul_i32 s50, s50, 10240')
    k(f's_mul_i32 s49, s{S_H}, 320')
    k('s_add_u32 s50, s50, s49')
    k(f's_add_u32 s50, s50, {WS_VF}')
    k(f's_cmp_lt_u32 s{S_W}, 4')
    k('s_cselect_b32 s48, s48, s50')
    k('s_cselect_b64 s[96:97], -1, 0')
    k(f's_lshl_b32 s49, s{S_W4}, 10')
    k(f's_add_u32 s49, s49, {LK}')
    k(f's_mul_i32 s50, s{S_W4}, 5120')
    k(f's_add_u32 s50, s50, {LV}')
    k(f's_cmp_lt_u32 s{S_W}, 4')
    k('s_cselect_b32 s50, s49, s50')
    k('s_movk_i32 s56, 1024')
    k('s_cselect_b32 s56, 4096, s56')
    k(f's_and_b32 s49, s{S_W4}, 1')
    k('s_mul_i32 s49, s49, 320')
    for n in range(5):
        k(f'v_add_u32 v3, {n*64}, v1')
        k('v_add_u32 v3, s49, v3')
        k('v_mul_u32_u24 v4, 3277, v3')
        k('v_lshrrev_b32 v4, 16, v4')
        k('v_mul_u32_u24 v5, 20, v4')
        k('v_sub_u32 v5, v3, v5')
        k('v_mul_u32_u24 v4, 10240, v4')
        k(f'v_lshl_add_u32 v4, v5, 4, v4')
        k(f'v_add_u32 v5, {n*16384}, v2')
        k(f'v_cndmask_b32 v{6+n}, v4, v5, s[96:97]')
    k('v_and_b32 v12, 31, v1')
    k('v_lshrrev_b32 v13, 5, v1')
    k('v_lshlrev_b32 v14, 3, v12')
    k('v_lshl_add_u32 v15, v13, 15, v14')
    k(f's_lshl_b32 s51, s{S_W}, 5')
    k('s_add_u32 s51, s51, s46')
    S_Q0 = 51
    k('s_lshl_b32 s52, s51, 3')
    k(f's_mul_i32 s49, s{S_H}, {5*16384}')
    k('s_add_u32 s52, s52, s49')
    k(f's_add_u32 s52, s52, {WS_QG}')
    k('s_add_u32 s53, s52, 16384')
    k(f's_add_u32 s54, s52, {4*16384}')
    PM, NM, ONE, QF, KV, OACC, SB0 = 24, 32, 36, 40, 48, 72, 88
    k('v_lshlrev_b32 v3, 2, v13')
    for i in range(16):
        a_, b_ = i // 4, i % 4
        k(f'v_add_u32 v4, {8*a_+b_}, v3')
        k(f'v_cmp_le_u32 s[{64+2*i}:{65+2*i}], v4, v12')
    k('v_mov_b32 v5, 0xffff')
    k('v_mov_b32 v11, 0xffff0000')
    for p in range(8):
        k(f'v_cndmask_b32 v3, 0, v5, s[{64+4*p}:{65+4*p}]')
        k(f'v_cndmask_b32 v4, 0, v11, s[{66+4*p}:{67+4*p}]')
        k(f'v_or_b32 v{PM+p}, v3, v4')
    k('v_cmp_eq_u32 s[96:97], 1, v13')
    k('v_cmp_gt_u32 s[98:99], 20, v12')
    k('v_cmp_eq_u32 s[100:101], 0, v13')
    k(f's_lshl_b32 s49, s{S_W}, 8')
    k(f's_add_u32 s49, s49, {LK}')
    k('v_lshl_add_u32 v16, v13, 13, v14')
    k('v_add_u32 v16, s49, v16')
    k('v_add_u32 v17, s49, v14')
    k(f's_and_b32 s55, s{S_H}, 1')
    S_PI = 55
    k('v_bfe_u32 v3, v12, 3, 1')
    k('v_bfe_u32 v4, v12, 2, 1')
    k('v_and_b32 v5, 3, v12')
    k('v_lshl_add_u32 v18, v3, 2, v5')
    k('v_lshl_add_u32 v18, v4, 3, v18')
    k('s_lshl_b32 s49, s55, 2')
    k('v_add_u32 v18, s49, v18')
    k('s_lshl_b32 s49, s55, 4')
    k('s_sub_u32 s49, 16, s49')
    k('v_add_u32 v19, s49, v5')
    k('v_cmp_gt_u32 vcc, 16, v12')
    k('v_cndmask_b32 v18, v19, v18, vcc')
    k('v_mul_u32_u24 v19, 320, v13')
    k('v_lshl_add_u32 v18, v18, 4, v19')
    k(f's_mul_i32 s49, s{S_W}, 1280')
    k(f's_add_u32 s49, s49, {LV}')
    k('v_add_u32 v18, s49, v18')
    k('v_mov_b32 v19, 0')
    k('v_mov_b32 v4, 0x3f803f80')
    k('v_cmp_eq_u32 vcc, 20, v12')
    k('v_cndmask_b32 v19, v19, v4, vcc')
    k('v_cmp_eq_u32 vcc, 24, v12')
    k('v_cndmask_b32 v19, v19, v4, vcc')
    for b in range(3):
        k(f'v_mov_b32 v{KV+8*b+6}, 0')
        k(f'v_mov_b32 v{KV+8*b+7}, 0')
    k(f'v_mov_b32 v{QF+6}, 0')
    k(f'v_mov_b32 v{QF+7}, 0')
    k(f'v_cndmask_b32 v{ONE}, v4, 0, s[96:97]')
    for i in range(1, 4):
        k(f'v_mov_b32 v{ONE+i}, 0')
        k(f'v_mov_b32 v{NM+i}, 0')
    k('v_and_b32 v3, 15, v1')
    k(f's_mul_i32 s49, s{S_H}, 20')
    k('s_mov_b64 s[46:47], 0')
    for base, isq in ((0, True), (640, False), (1280, False)):
        for e in (0, 19):
            k(f's_add_u32 s60, s49, {base+e}')
            k('s_lshr_b32 s60, s60, 7')
            k('v_cmp_eq_u32 vcc, s60, v3')
            if isq:
                k('s_and_b64 vcc, vcc, s[96:97]')
            k('s_or_b64 s[46:47], s[46:47], vcc')
    k(f's_cmp_eq_u32 s{S_I}, 0')
    k('s_cselect_b32 s46, 0, s46')
    k(f's_lshl_b32 s49, s{S_I}, 7')
    k(f's_lshl_b32 s60, s{S_X8}, 10')
    k('s_add_u32 s49, s49, s60')
    k(f's_add_u32 s49, s49, {WS_F2 - 128}')
    k('v_lshlrev_b32 v3, 2, v1')


def emit_p2(k, g3):
    LK, LV = 102400, 122880
    S_I, S_H, S_Q0, S_PI = 44, 45, 51, 55
    PM, NM, ONE, QF, KV, OACC, SB0 = 24, 32, 36, 40, 48, 72, 88
    wflag_poll(k, 49, 3, 4, 46, 1, True)
    k('s_barrier')
    stamp(k, 12)
    k('s_mov_b32 m0, s50')
    for n in range(5):
        if n:
            k('s_add_u32 m0, m0, s56')
        k(f'buffer_load_dwordx4 v{6+n}, {WSR}, s48 offen sc1 lds')
    k(f'buffer_load_dwordx2 {v(QF,2)}, v15, {WSR}, s52 offen sc1')
    k(f'buffer_load_dwordx2 {v(QF+2,2)}, v15, {WSR}, s53 offen sc1')
    qt = k(f'buffer_load_dwordx2 {v(QF+4,2)}, v14, {WSR}, s54 offen sc1')
    k.wait(qt)
    k(f'v_cndmask_b32 v{QF+4}, v{QF+4}, 0, s[96:97]')
    k(f'v_cndmask_b32 v{QF+5}, v{QF+5}, 0, s[96:97]')
    k('s_barrier')
    if OPT.get('prio', 0):
        k(f's_cmp_ge_u32 s{S_W}, 4')
        k.outline('s_cbranch_scc1', lambda: k('s_setprio 1'))
    stamp(k, 13)
    hc = []

    def hc0():
        for i in range(4):
            k(f'v_mov_b32 v{244+i}, -1')
        tile4(k, 60, 61, 56)
        k('s_mul_i32 s61, s61, 12')
        k('s_lshl_b32 s61, s61, 15')
        k('s_lshl_b32 s60, s60, 11')
        k('s_add_u32 s56, s61, s60')
        k(f's_add_u32 s56, s56, {WS_HC}')

    def hcn(n):
        def f():
            k(f's_mul_i32 s60, s{S_W}, 3')
            k(f's_add_u32 s60, s60, {n}')
            k('s_and_b32 s61, s60, 1')
            k('s_lshl_b32 s61, s61, 10')
            k('s_lshr_b32 s60, s60, 1')
            k('s_lshl_b32 s60, s60, 15')
            k('s_add_u32 s60, s60, s61')
            k('s_add_u32 s60, s60, s56')
            k(f'buffer_store_dwordx4 {v(244,4)}, v2, {WSR}, s60 offen sc1')
        return f
    T2 = {}

    def wg_():
        k(f's_cmp_lt_u32 s{S_W}, 4')
        k.outline('s_cbranch_scc1', lambda: pf_wgu(k, 238, 239))
    sside = [hc0, hcn(0), hcn(1), hcn(2)]
    if OPT.get('wgu', 2) == 2:
        sside.append(wg_)
    pf = [lambda: T2.__setitem__('f', flags_issue(k, WS_F2, 240, 237))]

    def slot(i):
        return SB0 + 16 * i
    krd = {}

    def kreads(j):
        b = j % 3
        krd[j] = [k(f'ds_read_b64 {v(KV+8*b,2)}, v16 offset:{j*256}'),
                  k(f'ds_read_b64 {v(KV+8*b+2,2)}, v16 offset:{4096+j*256}'),
                  k(f'ds_read_b64 {v(KV+8*b+4,2)}, v17 offset:{16384+j*256}')]
    kreads(0)
    kreads(1)
    for j in range(9):
        b = j % 3
        d = v(slot(j), 16)
        k.wait(*krd[j])
        k(f'v_mfma_f32_32x32x16_bf16 {d}, {v(KV+8*b,4)}, {v(QF,4)}, 0')
        if j + 2 < 9:
            kreads(j + 2)
        k(f'v_mfma_f32_32x32x16_bf16 {d}, {v(KV+8*b+4,4)}, {v(QF+4,4)}, {d}')
        if sside:
            sside.pop(0)()
    stamp(k, 14)
    lab = k.newlabel('P2_FIX')
    k(f's_cmp_lg_u32 s{S_I}, 0')
    k(f's_cbranch_scc1 {lab}')
    for jj in range(8):
        k(f's_cmp_ge_u32 s{S_W}, {8-jj}')
        k(f's_cbranch_scc1 {lab}')
        for i in range(16):
            k(f'v_mov_b32 v{slot(jj)+i}, {f32(-1e30)}')
    k.label(lab)
    for i in range(16):
        k(f'v_mov_b32 v{KV+i}, v19')
    M0, M1 = 20, 21
    ops = []
    regs = [slot(jj) + i for jj in (1, 2, 3, 4, 5, 6, 7, 0) for i in range(16)]
    for i in range(16):
        ops.append(f'v_cndmask_b32 v{slot(0)+i}, v{slot(0)+i}, v{slot(8)+i}, s[{64+2*i}:{65+2*i}]')
    ops += [f'v_max3_f32 v{M0}, v{regs[0]}, v{regs[1]}, v{regs[2]}',
            f'v_max3_f32 v{M1}, v{regs[3]}, v{regs[4]}, v{regs[5]}']
    i, t = 6, 0
    while i < 128:
        m = M0 if t % 2 == 0 else M1
        ops.append(f'v_max3_f32 v{m}, v{m}, v{regs[i]}, v{regs[i+1]}')
        i += 2
        t += 1
    ops += [f'v_max_f32 v{M0}, v{M0}, v{M1}',
            f'v_mov_b32 v{M1}, v{M0}',
            f'v_permlane32_swap_b32 v{M0}, v{M1}',
            f'v_max_f32 v{M0}, v{M0}, v{M1}',
            f'v_sub_f32 v{M0}, 0, v{M0}',
            f'v_cvt_pk_bf16_f32 v{M1}, v{M0}, v{M0}',
            f'v_lshlrev_b32 v{M1}, 16, v{M1}',
            f'v_sub_f32 v{M1}, v{M0}, v{M1}',
            f'v_cvt_pk_bf16_f32 v{NM}, v{M0}, v{M1}',
            f'v_cndmask_b32 v{NM}, v{NM}, 0, s[96:97]']
    spread(k, ops, pf[:2])
    pf = pf[2:]
    stamp(k, 15)
    vrd = {}
    nbuf = [0]

    def vreads(jkey):
        toks, bufs = [], []
        k('s_mov_b64 exec, s[98:99]')
        for m in range(2):
            bi = nbuf[0] % 4
            nbuf[0] += 1
            bufs.append(bi)
            toks.append(k(f'ds_read_b128 {v(KV+4*bi,4)}, v18 offset:{jkey*1280+m*640}'))
        k('s_mov_b64 exec, -1')
        vrd[jkey] = (toks, bufs)
    first = [True]
    oacc = v(OACC, 16)

    def pv_ops(jkey, preg):
        o = []
        for m in range(2):
            def f(m=m):
                toks, bufs = vrd[jkey]
                k.wait(toks[m])
                c = '0' if first[0] else oacc
                first[0] = False
                k(f'v_mfma_f32_32x32x16_bf16 {oacc}, {v(KV+4*bufs[m],4)}, {v(preg+4*m,4)}, {c}')
            o.append(f)
        return o

    def sub_op(jb):
        d = v(slot(jb), 16)
        return f'v_mfma_f32_32x32x16_bf16 {d}, {v(ONE,4)}, {v(NM,4)}, {d}'
    order = [1, 2, 3, 4, 5, 6, 7, 0]
    k(sub_op(order[0]))
    k(sub_op(order[1]))
    vreads(order[0])
    for n, jb in enumerate(order):
        base = slot(jb)
        val = [f'v_exp_f32 v{base+i}, v{base+i}' for i in range(16)]
        val += [f'v_cvt_pk_bf16_f32 v{base+p}, v{base+2*p}, v{base+2*p+1}' for p in range(8)]
        if jb == 0:
            val += [f'v_and_b32 v{base+8+p}, v{PM+p}, v{base+p}' for p in range(8)]
            val += [f'v_bfi_b32 v{base+p}, v{PM+p}, 0, v{base+p}' for p in range(8)]
        side = []
        if n >= 1:
            side += pv_ops(order[n - 1], slot(order[n - 1]))
        nxt = order[n + 1] if n + 1 < 8 else 8
        side.append(lambda nxt=nxt: vreads(nxt))
        if n + 2 < 8:
            side.append(sub_op(order[n + 2]))
        if pf:
            side.append(pf.pop(0))
        if hc and (n % 2 == 1 or OPT.get('wgulate')):
            side.insert(1, hc.pop(0))
        if OPT.get('wgulate') and pf:
            side.append(pf.pop(0))
        spread(k, val, side)
    tail = pv_ops(0, slot(0)) + pv_ops(8, slot(0) + 8)
    addr = [f's_lshr_b32 s49, s{S_H}, 1', 's_mul_i32 s49, s49, 5', f's_mul_i32 s52, s{S_PI}, 3',
            's_add_u32 s52, s52, s49', 's_lshl_b32 s52, s52, 15', f's_add_u32 s52, s52, {WS_OC}',
            f's_lshl_b32 s53, s{S_Q0}, 4', 's_add_u32 s52, s52, s53', 's_add_u32 s54, s49, 2',
            's_lshl_b32 s54, s54, 15', f's_add_u32 s54, s54, {WS_OC}', 's_add_u32 s54, s54, s53',
            f's_lshl_b32 s49, s{S_PI}, 3', 's_add_u32 s54, s54, s49', 'v_lshlrev_b32 v22, 4, v12',
            'v_lshl_add_u32 v23, v13, 15, v22']
    ftok = T2['f']
    spread(k, addr, tail)
    stamp(k, 18)
    T = OACC
    k(f'v_cndmask_b32 v{T+13}, v{T+12}, v{T+8}, s[96:97]')
    k(f'v_rcp_f32 v{T+14}, v{T+13}')
    for p in range(6):
        k(f'v_pk_mul_f32 {v(T+2*p,2)}, {v(T+2*p,2)}, {v(T+14,2)} op_sel_hi:[1,0]')
    for p in range(6):
        k(f'v_cvt_pk_bf16_f32 v{104+p}, v{T+2*p}, v{T+2*p+1}')
    k(f'buffer_store_dwordx4 {v(104,4)}, v23, {WSR}, s52 offen sc1')
    k('s_mov_b64 exec, s[100:101]')
    own = k(f'buffer_store_dwordx2 {v(108,2)}, v22, {WSR}, s54 offen sc1')
    k('s_mov_b64 exec, -1')
    k.wait_all(vm=False)
    k('s_setprio 0')
    flags_check(k, WS_F2, 240, 237, ftok)
    return own


class P4:
    BS = [102400, 126976, 0, 24576, 49152, 73728]

    def __init__(self, k):
        self.k = k
        self.stok = {}
        self.rtok = {}
        self.VB = 2

    def setup_dma(self, t0):
        k = self.k
        VB = self.VB
        tile4(k, 61, 60, 68)
        k('s_mul_i32 s76, s60, %d' % OPT.get('rot4', 3))
        k('s_add_u32 s76, s76, s61')
        k('s_mul_i32 s77, s76, 6554')
        k('s_lshr_b32 s77, s77, 16')
        k('s_mul_i32 s77, s77, 10')
        k('s_sub_u32 s76, s76, s77')
        k(f's_cmp_lt_u32 s{S_W4}, 2')
        k(f's_cselect_b32 s64, s{S_WG}, s{S_WU}')
        k(f's_cselect_b32 s65, s{S_WG+1}, s{S_WU+1}')
        k('s_mov_b32 s66, 1966080')
        k('s_mov_b32 s67, 0x00020000')
        k(f's_and_b32 s61, s{S_W4}, 1')
        k(f's_mul_i32 s61, s61, {32*3072}')
        k('s_mul_i32 s60, s60, 192')
        k('s_add_u32 s60, s60, s61')
        for n in range(3):
            k(f'v_add_u32 v{t0}, {n*64}, v1')
            k(f'v_mul_u32_u24 v{t0+1}, 5462, v{t0}')
            k(f'v_lshrrev_b32 v{t0+1}, 16, v{t0+1}')
            k(f'v_mul_u32_u24 v{t0+2}, 12, v{t0+1}')
            k(f'v_sub_u32 v{t0+2}, v{t0}, v{t0+2}')
            k(f'v_mul_u32_u24 v{t0+1}, 3072, v{t0+1}')
            k(f'v_lshl_add_u32 v{VB+n}, v{t0+2}, 4, v{t0+1}')
            k(f'v_add_u32 v{VB+n}, s60, v{VB+n}')
            if n:
                k(f'v_subrev_u32 v{VB+n}, {n*1024}, v{VB+n}')
        k(f's_mul_i32 s68, s{S_W4}, 6144')

    def sig(self, c, st, sreg, stmp):
        c(f's_add_u32 s{sreg}, s76, {st}')
        c(f's_sub_u32 s{stmp}, s{sreg}, 10')
        c(f's_cmp_ge_u32 s{sreg}, 10')
        c(f's_cselect_b32 s{sreg}, s{stmp}, s{sreg}')

    def dma_stage(self, st):
        k = self.k
        base = self.BS[st % 6]
        self.sig(k, st, 69, 77)
        k(f's_mul_i32 s69, s69, {64*3072}')
        for per in range(2):
            k(f's_add_u32 m0, s68, {base+per*3072}')
            if per:
                k(f's_add_u32 s69, s69, {16*3072}')
            for n in range(3):
                self.stok[st] = k(f'buffer_load_dwordx4 v{self.VB+n}, s[64:67], s69 offen offset:{n*1024} lds')

    BR = 124

    def breg_load(self, st):
        k = self.k
        r0 = self.BR + 24 * (st - 6)
        self.sig(k, st, 69, 77)
        k(f's_mul_i32 s69, s69, {64*3072}')
        for per in range(2):
            if per:
                k(f's_add_u32 s69, s69, {16*3072}')
            for n in range(3):
                self.rtok[st] = k(f'buffer_load_dwordx4 {v(r0+12*per+4*n,4)}, v{self.VB+n}, s[64:67], s69 offen offset:{n*1024}')

    def breg_write(self, st):
        k = self.k
        r0 = self.BR + 24 * (st - 6)
        base = self.BS[st % 6]
        reg, off = (47, base - 102400) if base >= 102400 else (46, base)
        assert off + 6144 < 65536
        k.wait(self.rtok[st])
        for i in range(6):
            self.stok[st] = k(f'ds_write_b128 v{reg}, {v(r0+4*i,4)} offset:{off+i*1024}')

    def pre_colsum(self):
        k = self.k
        CA = 60
        k('v_lshlrev_b32 v46, 4, v1')
        k('v_add_u32 v46, s68, v46')
        k('v_add_u32 v47, 102400, v46')
        k.wait(self.stok[0])
        tk = [k(f'ds_read_b128 {v(84+4*i,4)}, v47 offset:{i*1024}') for i in range(6)]
        for n in range(3):
            k.wait(tk[n], tk[n + 3])
            for p in range(4):
                k(f'v_lshlrev_b32 v{CA+8*n+2*p}, 16, v{84+4*n+p}')
                k(f'v_and_b32 v{CA+8*n+2*p+1}, 0xffff0000, v{84+4*n+p}')
                k(f'v_lshlrev_b32 v{28+2*(p%2)}, 16, v{96+4*n+p}')
                k(f'v_and_b32 v{29+2*(p%2)}, 0xffff0000, v{96+4*n+p}')
                k(f'v_pk_add_f32 {v(CA+8*n+2*p,2)}, {v(CA+8*n+2*p,2)}, {v(28+2*(p%2),2)}')

    def pre_colsum_write(self):
        k = self.k
        CA = 60
        k('v_lshlrev_b32 v16, 5, v1')
        k('v_add_u32 v16, s68, v16')
        k('v_add_u32 v16, 73728, v16')
        for n in range(3):
            k(f'ds_write_b128 v16, {v(CA+8*n,4)} offset:{n*2048}')
            k(f'ds_write_b128 v16, {v(CA+8*n+4,4)} offset:{n*2048+16}')
        k.wait_all(vm=False)

    def loader_setup(self, g5):
        k = self.k
        tile4(k, 44, 45, 46)
        g5.dma_setup(40)
        k('v_cmp_le_u32 vcc, 96, v0')
        k(f'v_mov_b32 v16, {12288-384}')
        k('v_cndmask_b32 v17, 0, v16, vcc')
        k('v_lshl_add_u32 v17, v0, 2, v17')
        k('v_add_u32 v17, 73728, v17')
        k(f'v_mov_b32 v16, {6144-384}')
        k('v_cndmask_b32 v18, 0, v16, vcc')
        k('v_lshl_add_u32 v18, v0, 2, v18')
        k('v_cmp_gt_u32 vcc, 192, v0')
        k('v_cndmask_b32 v19, 0, v18, vcc')
        k(f'v_mov_b32 v16, {OOB}')
        k('v_cndmask_b32 v18, v16, v18, vcc')
        k('s_mul_i32 s51, s45, 384')
        k(f's_add_u32 s51, s51, {WS_PCS}')
        k('s_mul_i32 s52, s44, 12288')
        k('s_add_u32 s52, s52, s51')
        k(f's_mov_b32 s47, {OOB}')
        k('s_cmp_lt_u32 s44, 10')
        k('s_cselect_b32 s52, s52, s47')

    def colsum_reduce(self):
        k = self.k
        rr = list(range(84, 116))
        for half in range(4):
            tk = []
            for r in range(8):
                x = (half % 2) * 8 + r
                tk.append(k(f'ds_read_b32 v{rr[8*half+r]}, v17 offset:{x*384+(half//2)*6144}'))
            k.wait(*tk)
        for stp in (16, 8, 4, 2, 1):
            for i in range(stp):
                k(f'v_add_f32 v{rr[i]}, v{rr[i]}, v{rr[i+stp]}')
        k(f'buffer_store_dword v{rr[0]}, v18, {WSR}, s52 offen sc1')

    def loader(self, g5):
        k = self.k

        def gather(c):
            t = None
            for r in range(10):
                c(f's_add_u32 s58, s51, {r*12288}')
                t = c(f'buffer_load_dword v{24+r}, v19, {WSR}, s58 offen sc1')
            return t
        T = {}
        g5regs = {2 + i: 60 + 20 * i for i in range(9)}
        k('v_lshlrev_b32 v12, 4, v1')
        k(f's_mul_i32 s46, s{S_W4}, 5120')
        k('v_add_u32 v21, s46, v12')
        k('v_add_u32 v22, 61440, v21')
        k('v_add_u32 v23, 122880, v21')
        for st in range(7):
            k.wait(self.stok[st])
            if st == 6:
                k.wait(self.stok[9])
            k.wait_all(vm=False)
            k('s_barrier')
            if st == 0:
                stamp(k, 32)
                self.colsum_reduce()
            if st == 1:
                self.dma_stage(5)
            if 1 <= st <= 4:
                self.dma_stage(st + 5)
            if st == 4:
                T['g'] = gather(k)
                pf_wd(k, 36, 37)
            if st == 5:
                k.wait(T['g'])
                check_group(k, range(24, 34), 11, gather, slp=8)
                for r in range(1, 10):
                    k(f'v_add_f32 v24, v24, v{24+r}')
                k('v_lshlrev_b32 v16, 2, v0')
                k(f'v_add_u32 v16, {XCH}, v16')
                k('ds_write_b32 v16, v24')
        stamp(k, 36)
        runall(k, g5.dma_step(0))
        runall(k, g5.dma_step(1))
        NR1 = OPT.get('nr1', 6)
        for s5 in range(2, 2 + NR1):
            g5.breg_load(s5, g5regs[s5])
        stamp(k, 38)
        cnt_wait(k, 38, 39, 1, 4, bound=200000)
        for s5 in range(2, 7):
            g5.breg_write(s5, 21)
        for s5 in range(2 + NR1, 11):
            g5.breg_load(s5, g5regs[s5])
        stamp(k, 39)

    def compute(self, own_tok):
        k = self.k
        tile4(k, 44, 45, 46)
        S_MT, S_FT, S_TOK = 44, 45, 46
        k('s_lshl_b32 s46, s44, 7')
        k(f's_lshl_b32 s47, s{S_W4}, 5')
        k('s_add_u32 s46, s46, s47')
        k('v_and_b32 v13, 31, v1')
        k('v_lshrrev_b32 v14, 5, v1')
        k('v_lshlrev_b32 v5, 4, v13')
        k('v_lshl_add_u32 v5, v14, 15, v5')
        k('v_bfe_u32 v15, v1, 2, 2')
        k('v_lshl_add_u32 v15, v14, 3, v15')
        k('v_mul_u32_u24 v15, 192, v15')
        k('v_bfe_u32 v16, v1, 4, 1')
        k('v_lshl_add_u32 v15, v16, 5, v15')
        k('v_and_b32 v16, 1, v1')
        k('v_lshl_add_u32 v15, v16, 4, v15')
        k('v_bfe_u32 v16, v1, 1, 1')
        k('v_lshl_add_u32 v6, v16, 3, v15')
        k('v_add_u32 v7, 49152, v6')
        k('v_add_u32 v8, 102400, v6')
        rbase = {0: (6, 0), 24576: (6, 24576), 49152: (7, 0), 73728: (7, 24576), 102400: (8, 0), 126976: (8, 24576)}
        k('s_mul_i32 s76, s45, %d' % OPT.get('rot4', 3))
        k('s_add_u32 s76, s76, s44')
        k('s_mul_i32 s77, s76, 6554')
        k('s_lshr_b32 s77, s77, 16')
        k('s_mul_i32 s77, s77, 10')
        k('s_sub_u32 s76, s76, s77')
        k('s_lshl_b32 s50, s46, 4')
        k(f's_add_u32 s50, s50, {WS_H1}')
        AFR = 180
        atok = {}

        def abase(c, st, sreg, stmp):
            self.sig(c, st, sreg, stmp)
            c(f's_lshl_b32 s{sreg}, s{sreg}, 18')
            c(f's_add_u32 s{sreg}, s{sreg}, s50')

        def aone(c, st, ks, sreg):
            if ks:
                c(f's_add_u32 s{sreg}, s{sreg}, 65536')
            return c(f'buffer_load_dwordx4 {v(AFR+16*(st%4)+4*ks,4)}, v5, {WSR}, s{sreg} offen sc1')

        def astage(c, st, sreg, stmp):
            abase(c, st, sreg, stmp)
            t = None
            for ks in range(4):
                t = aone(c, st, ks, sreg)
            return t
        k('v_lshlrev_b32 v9, 3, v13')
        k('v_lshl_add_u32 v9, v14, 16, v9')
        k(f's_lshl_b32 s51, s{S_TOK}, 3')
        k(f's_add_u32 s51, s51, {WS_HS}')
        HSR = 20

        def hsload(c):
            t = None
            for n in range(4):
                c(f's_add_u32 s58, s51, {n*16384}')
                t = c(f'buffer_load_dwordx2 {v(HSR+2*n,2)}, v9, {WSR}, s58 offen sc1')
            return t
        k('v_lshlrev_b32 v10, 5, v14')
        k(f'v_add_u32 v10, {XCH}, v10')
        ACC, WF = 36, 132

        def csload(p, base):
            t = None
            for mtx in range(2):
                for q in range(4):
                    off = mtx * 384 + p * 128 + (q // 2) * 64 + (q % 2) * 16
                    t = k(f'ds_read_b128 {v(base+16*mtx+4*q,4)}, v10 offset:{off}')
            return t
        rt = {}

        def reads(kk):
            st, ks = kk // 4, kk % 4
            reg, so = rbase[self.BS[st % 6]]
            b = kk % 2
            ops = [[] for _ in range(6)]
            for j in range(6):
                for hf in range(2):
                    off = so + (j // 3) * 12288 + ks * 3072 + hf * 768 + (j % 3) * 64
                    ops[j].append(lambda j=j, hf=hf, off=off: rt.__setitem__((kk, j), k(
                        f'ds_read_b64_tr_b16 {v(WF+24*b+4*j+2*hf,2)}, v{reg} offset:{off}')))
            return ops
        T = {}

        def stats():
            k.wait(T['hs'])
            check_group(k, range(HSR, HSR + 8), 11, hsload)
            for n in range(1, 4):
                k(f'v_pk_add_f32 {v(HSR,2)}, {v(HSR,2)}, {v(HSR+2*n,2)}')
            VSUM, VSQ = HSR, HSR + 1
            xsum(k, VSUM, 24, 25)
            xsum(k, VSQ, 24, 25)
            k(f'v_mul_f32 v{VSUM}, {f32(1.0/640)}, v{VSUM}')
            k(f'v_mul_f32 v{VSQ}, {f32(1.0/640)}, v{VSQ}')
            k(f'v_fma_f32 v{VSQ}, -v{VSUM}, v{VSUM}, v{VSQ}')
            k(f'v_max_f32 v{VSQ}, 0, v{VSQ}')
            rbf(k, 24, VSUM)
            k('v_sub_f32 v26, 0, v24')
            rbf(k, 25, VSQ)
            k(f'v_add_f32 v25, {f32(1e-5)}, v25')
            rbf(k, 25, 25)
            k('v_sqrt_f32 v25, v25')
            rbf(k, 25, 25)
            k('v_rcp_f32 v28, v25')
            k('v_mul_f32 v30, v25, v25')
        stamp(k, 30)
        k.wait(own_tok)
        if OPT.get('hdelay', 0):
            k(f's_sleep {OPT.get("hdelay")}')
        if OPT.get('probe', 0) & 2:
            k('v_and_b32 v2, 7, v1')
            k('v_lshlrev_b32 v2, 14, v2')
            k('v_bfe_u32 v3, v1, 3, 1')
            k('v_lshl_add_u32 v2, v3, 7, v2')
            probe(k, 51, 2, 3)
        stamp(k, 31)
        D4 = OPT.get('ad4', 1)
        for st in range(D4):
            atok[st] = astage(k, st, 49, 48)
        k('s_barrier')
        for l_ in reads(0):
            runall(k, l_)
        for kk in range(40):
            b = kk % 2
            st, ks = kk // 4, kk % 4
            R0 = AFR + 16 * (st % 4)
            if kk % 8 == 4:
                stamp(k, 33 + kk // 8)
            if ks == 0:
                k.wait(atok[st])
                hi = min(st + 3, 10) if OPT.get('rall', 1) else st + 1
                if st == 0:
                    hi = D4
                check_group(k, range(R0, R0 + 16), 4, lambda c, st=st, hi=hi: [astage(c, s_, 58, 59) for s_ in range(st, hi)],
                            pre=(st >= 1))
                if kk == 0:
                    stamp(k, 32)
                    for s_ in range(D4, 3):
                        atok[s_] = astage(k, s_, 49, 48)
            fill, rds = [], []
            if st + 3 < 10:
                def al(st=st, ks=ks):
                    if ks == 0:
                        abase(k, st + 3, 49, 48)
                    atok[st + 3] = aone(k, st + 3, ks, 49)
                fill.append(al)
            if kk + 1 < 40:
                if (kk + 1) % 4 == 0 and kk < 24:
                    k.wait_all(vm=False)
                    k('s_barrier')
                rds = reads(kk + 1)
            else:
                k.wait_all(vm=False)
                k('v_mov_b32 v2, 1')
                k(f'v_mov_b32 v3, {XCNT+4}')
                k('s_mov_b64 exec, 1')
                k('ds_add_u32 v3, v2')
                k('s_mov_b64 exec, -1')
            if ks == 3 and st + 1 < 10:
                R1 = AFR + 16 * ((st + 1) % 4)
                fill.append(lambda st=st: k.wait(atok[st + 1]))
                fill += maxchain_ops(range(R1, R1 + 16), 4)
            if kk == 28:
                fill.append(lambda: T.__setitem__('hs', hsload(k)))
            if kk == 39:
                fill.append(lambda: T.__setitem__('f3', flags_issue(k, WS_F3, 16, 12)))
            if kk == 39:
                fill.append(lambda: T.__setitem__(('cs', 0), csload(0, 212)))
            if kk == 37:
                fill.append(stats)
            mf = []
            for j in range(6):
                acc = v(ACC + 16 * j, 16)
                c = '0' if kk == 0 else acc
                mf.append((lambda j=j: [rt[kk, j]],
                           f'v_mfma_f32_32x32x16_bf16 {acc}, {v(WF+24*b+4*j,4)}, {v(R0+4*ks,4)}, {c}'))
            roll_step(k, mf, rds, fill)
        stamp(k, 38)
        T['cs', 1] = csload(1, 132)
        c0 = -2.0 * math.sqrt(2.0 / math.pi) * math.log2(math.e)
        c1 = c0 * 0.044715
        k(f'v_mov_b32 v32, {f32(c0)}')
        k(f'v_mov_b32 v34, {f32(c1)}')
        k(f's_mul_i32 s54, s{S_FT}, {12*32768}')
        k(f's_lshl_b32 s55, s{S_TOK}, 4')
        k('s_add_u32 s54, s54, s55')
        k(f's_add_u32 s54, s54, {WS_HC}')
        T_, O = 164, 180
        csb = {0: 212, 1: 132, 2: 212}
        for p in range(3):
            G, U, CS = ACC + 16 * p, ACC + 16 * (3 + p), csb[p]
            k.wait(T['cs', p])
            for q in range(8):
                g2, u2 = v(G + 2 * q, 2), v(U + 2 * q, 2)
                k(f'v_pk_fma_f32 {g2}, {v(CS+2*q,2)}, {v(26,2)}, {g2} op_sel_hi:[1,0,1]')
                k(f'v_pk_fma_f32 {u2}, {v(CS+16+2*q,2)}, {v(26,2)}, {u2} op_sel_hi:[1,0,1]')
            if p == 0:
                T['cs', 2] = csload(2, 212)
            for q in range(8):
                g2, u2, t2 = v(G + 2 * q, 2), v(U + 2 * q, 2), v(T_ + 2 * q, 2)
                k(f'v_pk_mul_f32 {u2}, {u2}, {g2}')
                k(f'v_pk_mul_f32 {g2}, {g2}, {v(28,2)} op_sel_hi:[1,0]')
                k(f'v_pk_mul_f32 {t2}, {g2}, {g2}')
                k(f'v_pk_fma_f32 {t2}, {t2}, {v(34,2)}, {v(32,2)} op_sel_hi:[1,0,0]')
                k(f'v_pk_mul_f32 {t2}, {t2}, {g2}')
            for i in range(16):
                k(f'v_exp_f32 v{T_+i}, v{T_+i}')
            for q in range(8):
                t2 = v(T_ + 2 * q, 2)
                k(f'v_pk_fma_f32 {t2}, {t2}, {v(30,2)}, {v(30,2)} op_sel_hi:[1,0,0]')
            for i in range(16):
                k(f'v_rcp_f32 v{T_+i}, v{T_+i}')
            for q in range(8):
                k(f'v_pk_mul_f32 {v(U+2*q,2)}, {v(U+2*q,2)}, {v(T_+2*q,2)}')
            for q in range(8):
                k(f'v_cvt_pk_bf16_f32 v{O+8*(p%2)+q}, v{U+2*q}, v{U+2*q+1}')
            for hf2 in range(2):
                k(f's_add_u32 s55, s54, {(4*p+2*hf2)*32768}')
                self.own = k(f'buffer_store_dwordx4 {v(O+8*(p%2)+4*hf2,4)}, v5, {WSR}, s55 offen sc1')
        flags_check(k, WS_F3, 16, 12, T['f3'])
        stamp(k, 39)


def colsum_strip(k):
    lab = k.newlabel('CS_SKIP')
    k(f's_cmp_lg_u32 s{S_W4}, 0')
    k(f's_cbranch_scc1 {lab}')
    k(f's_cmp_ge_u32 s{S_I32}, 12')
    k(f's_cbranch_scc1 {lab}')
    sn = k.snap()
    k(f's_and_b32 s60, s{S_X8}, 1')
    k('s_cmp_eq_u32 s60, 0')
    k(f's_cselect_b32 s72, s{S_WG}, s{S_WU}')
    k(f's_cselect_b32 s73, s{S_WG+1}, s{S_WU+1}')
    k('s_mov_b32 s74, 1966080')
    k('s_mov_b32 s75, 0x00020000')
    k(f's_lshr_b32 s60, s{S_X8}, 1')
    k('s_mul_i32 s60, s60, 768')
    k(f's_lshl_b32 s61, s{S_I32}, 6')
    k('s_add_u32 s60, s60, s61')
    k('v_lshrrev_b32 v40, 2, v1')
    k('v_mul_u32_u24 v40, 3072, v40')
    k('v_and_b32 v41, 3, v1')
    k('v_lshl_add_u32 v40, v41, 4, v40')
    k('v_add_u32 v40, s60, v40')
    tk = []
    for n in range(40):
        k(f's_mov_b32 s61, {n*16*3072}')
        tk.append(k(f'buffer_load_dwordx4 {v(60+4*n,4)}, v40, s[72:75], s61 offen'))
    for i in range(8):
        k(f'v_mov_b32 v{44+i}, 0')
    for n in range(40):
        k.wait(tk[n])
        for p in range(4):
            k(f'v_lshlrev_b32 v{52+2*(p%2)}, 16, v{60+4*n+p}')
            k(f'v_and_b32 v{53+2*(p%2)}, 0xffff0000, v{60+4*n+p}')
            k(f'v_pk_add_f32 {v(44+2*p,2)}, {v(44+2*p,2)}, {v(52+2*(p%2),2)}')
    for i in range(8):
        xsum(k, 44 + i, 56, 57, 32)
        xsum(k, 44 + i, 56, 57, 16)
        k(f'v_add_f32_dpp v{44+i}, v{44+i}, v{44+i} row_ror:8 row_mask:0xf bank_mask:0xf')
        k(f'v_add_f32_dpp v{44+i}, v{44+i}, v{44+i} row_ror:4 row_mask:0xf bank_mask:0xf')
    strip_id(k, 60)
    k('s_lshl_b32 s60, s60, 2')
    k(f's_add_u32 s60, s60, {WS_CS}')
    k('v_lshlrev_b32 v41, 5, v41')
    k('s_mov_b64 exec, 0xf')
    k(f'buffer_store_dwordx4 {v(44,4)}, v41, {WSR}, s60 offen sc1')
    k(f'buffer_store_dwordx4 {v(48,4)}, v41, {WSR}, s60 offen offset:16 sc1')
    k('s_mov_b64 exec, -1')
    k.wait_all()
    k.restore(sn)
    k.label(lab)


def build():
    k = K()
    name = NAME + '_kernel'
    k.realend = 'K_END'
    k.raw('.p2align 8')
    k.raw(f'.globl {name}')
    k.raw(f'.type {name},@function')
    k.raw(f'{name}:')
    prologue(k)
    if STAMPS:
        k('v_writelane_b32 v255, s84, 60')
        k('v_writelane_b32 v255, s36, 58')
        k('v_writelane_b32 v255, s37, 59')
    if OPT.get('empty'):
        k('s_branch K_END')
    stamp(k, 0)
    g3 = G35(k, 3, [0, 20480, 40960, 61440, 81920], 232, 0)
    g5 = G35(k, 5, [49152, 69632, 90112, 110592, 131072, 0, 20480], 54, 70)
    p4 = P4(k)
    A3 = [102400, 118784, 135168]
    A5 = [61440, 77824, 143360]
    lab_l1, lab_p2, lab_l3, lab_fin = (k.newlabel(x) for x in ('L1', 'P2', 'L3', 'FIN'))
    k(f's_cmp_ge_u32 s{S_W}, 4')
    k(f's_cbranch_scc1 {lab_l1}')
    sn = k.snap()
    p1_compute(k)
    join(k)
    if OPT.get('wgu', 2) == 1:
        pf_wgu(k, 238, 239, 128)
    p2_setup(k)
    k(f's_branch {lab_p2}')
    k.label(lab_l1)
    k.restore(sn)
    p1_loader(k, g3)
    k.label(lab_p2)
    join(k)
    for st in range(5):
        g3.btok[st] = ('vm', 0)
    own = emit_p2(k, g3)
    k(f's_cmp_ge_u32 s{S_W}, 4')
    k(f's_cbranch_scc1 {lab_l3}')
    sn = k.snap()
    g3.compute(own, st0=20)
    p4.compute(g3.own)
    if not OPT.get('nop5'):
        g5.compute(p4.own, st0=40)
    k(f's_branch {lab_fin}')
    k.label(lab_l3)
    k.restore(sn)
    k('s_barrier')
    if OPT.get('wguL', 0):
        pf_wgu(k, 36, 37)
    p4.setup_dma(56)
    p4.dma_stage(0)
    p4.dma_stage(1)
    p4.loader_setup(g5)
    p4.pre_colsum()
    stamp(k, 23)
    k('s_barrier')
    k('s_barrier')
    stamp(k, 24)
    p4.dma_stage(2)
    p4.dma_stage(3)
    p4.dma_stage(4)
    p4.pre_colsum_write()
    stamp(k, 30)
    p4.loader(g5)
    if not OPT.get('nop5'):
        g5.loader(7, st0=40)
        k('s_barrier')
    k.label(lab_fin)
    join(k)
    stamp(k, 50)
    if STAMPS:
        k.wait_all()
        stamp(k, 51)
    stamp_flush(k)
    k.label(k.realend)
    k('s_endpgm')
    c = K()
    for f in k.cold:
        f(c)
    desc = f'''.section .rodata,"a"
.p2align 6
.amdhsa_kernel {name}
  .amdhsa_next_free_vgpr 256
  .amdhsa_next_free_sgpr 102
  .amdhsa_accum_offset 256
  .amdhsa_group_segment_fixed_size 0
  .amdhsa_kernarg_size 80
  .amdhsa_user_sgpr_count 2
  .amdhsa_user_sgpr_kernarg_segment_ptr 1
  .amdhsa_system_sgpr_workgroup_id_x 1
.end_amdhsa_kernel
'''
    return k.render() + c.render() + 'CODE_END:\n' + desc


def main():
    global STAMPS
    STAMPS = 'stamps' in sys.argv
    for a_ in sys.argv[2:]:
        if '=' in a_:
            kk, vv = a_.split('=')
            OPT[kk] = int(vv)
    head = open('cdna_kernels/%s.s.ref' % NAME).read().split('\n')
    hdr = [l for l in head if l.startswith(';') and '@launch' not in l and 'Override launch' not in l and 'grid=ceil' not in l]
    out = '\n'.join(hdr) + '\n'
    out += '; @launch grid=(256,1,1) block=(512,1,1) lds=163840\n'
    out += '.amdgcn_target "amdgcn-amd-amdhsa--gfx950"\n.text\n'
    out += build()
    path = sys.argv[1] if len(sys.argv) > 1 else 'cdna_kernels/%s.s' % NAME
    open(path, 'w').write(out)
    print('wrote', path, len(out), 'bytes')


if __name__ == '__main__':
    main()
```

```python
import math
import struct
import sys
from asmlib import K, v, a, s

NAME = 'sequential_preLN__sliding_block__glu_gated_geglu__prompt'

WS_QG = 0x0000000
WS_KG = 0x0280000
WS_VF = 0x0500000
WS_OC = 0x0780000
WS_H1 = 0x0A00000
WS_HC = 0x0C80000
WS_CS = 0x1280000
WS_F2 = 0x1288000
WS_F3 = 0x128A000
WS_F0 = 0x128C000
WS_PC = 0x1290000
WS_PS = 0x12A8000
WS_HS = 0x12D0000
WS_PCS = 0x1340000
WS_ST = 0x1300000
WS_SIZE = 0x1400000
OOB = 0x40000000

S_X, S_WQKV, S_WO, S_WG, S_WU, S_WD, S_OUT, S_WS, S_DBG = 4, 8, 12, 16, 20, 24, 28, 32, 36
S_NONCE = 3
S_W, S_X8, S_I32, S_W4 = 40, 41, 42, 43
S_BUD = 57
WSR = f's[{S_WS}:{S_WS+3}]'
OPT = {}
STAMPS = False
XCH = 159744
XNONCE = XCH + 3072
XCNT = XCH + 3080


def f32(x):
    return '0x%08x' % struct.unpack('<I', struct.pack('<f', x))[0]


def stamp(k, i):
    if not STAMPS:
        return
    k('s_memtime s[62:63]')
    k.wait_all(vm=False)
    k(f'v_writelane_b32 v255, s62, {i}')


def stamp_flush(k):
    if not STAMPS:
        return
    lab = k.newlabel('ST')
    k('s_memrealtime s[62:63]')
    k.wait_all()
    k('v_writelane_b32 v255, s62, 63')
    k(f'v_writelane_b32 v255, s{S_BUD}, 62')
    k(f's_cmp_lg_u32 s{S_W4}, 0')
    k(f's_cbranch_scc1 {lab}')
    k('v_lshlrev_b32 v254, 2, v1')
    k('s_lshl_b32 s62, s2, 9')
    k(f's_lshl_b32 s63, s{S_W}, 6')
    k('s_add_u32 s62, s62, s63')
    k(f's_add_u32 s62, s62, {WS_ST}')
    k(f'buffer_store_dword v255, v254, {WSR}, s62 offen')
    if OPT.get('dbgout'):
        k('s_cmp_lg_u32 s2, %d' % OPT.get('dbgout'))
        k(f's_cbranch_scc1 {lab}')
        k(f's_cmp_lg_u32 s{S_W}, 0')
        k(f's_cbranch_scc1 {lab}')
        k('v_readlane_b32 s64, v255, 58')
        k('v_readlane_b32 s65, v255, 59')
        k('s_mov_b32 s66, 256')
        k('s_mov_b32 s67, 0x00020000')
        k('v_readlane_b32 s70, v255, 0')
        k('v_readlane_b32 s71, v255, 60')
        sel = [3, 5, 9, 10, 12, 13, 18, 22, 24, 32, 38, 42, 43, 51]
        for i, st_ in enumerate(sel):
            k(f'v_readlane_b32 s68, v255, {st_}')
            k('s_sub_u32 s68, s68, s70')
            k(f'v_writelane_b32 v253, s68, {i+1}')
        k('v_readlane_b32 s68, v255, 63')
        k('s_sub_u32 s68, s68, s71')
        k('v_writelane_b32 v253, s68, 15')
        k('s_mov_b64 exec, 0xfffe')
        k('buffer_store_dword v253, v254, s[64:67], 0 offen')
        k('s_mov_b64 exec, -1')
    k.label(lab)


def run(k, f):
    return f() if callable(f) else k(f)


def runall(k, ops):
    for f in ops:
        run(k, f)


def roll_step(k, mf, rds, fill):
    n, nf, fi = len(mf), len(fill), 0
    for i, (wt, m) in enumerate(mf):
        k.wait(*wt())
        k(m)
        for f in (rds[i] if i < len(rds) else []):
            run(k, f)
        tgt = (nf * (i + 1) + n - 1) // n
        while fi < min(tgt, nf):
            run(k, fill[fi])
            fi += 1


def spread(k, main, side):
    n, nf = len(main), len(side)
    pos = {}
    for j in range(nf):
        pos.setdefault(int(j * n / max(nf, 1)), []).append(side[j])
    for i, m in enumerate(main):
        for f in pos.get(i, []):
            run(k, f)
        run(k, m)


def rbf(k, d, src):
    k(f'v_cvt_pk_bf16_f32 {v(d)}, {v(src)}, {v(src)}')
    k(f'v_lshlrev_b32 {v(d)}, 16, {v(d)}')


def xsum(k, r, t1, t2, which=32):
    k(f'v_mov_b32 {v(t1)}, {v(r)}')
    k(f'v_mov_b32 {v(t2)}, {v(r)}')
    k(f'v_permlane{which}_swap_b32 {v(t1)}, {v(t2)}')
    k(f'v_add_f32 {v(r)}, {v(t1)}, {v(t2)}')


def maxchain_ops(regs, t):
    regs = list(regs)
    ops = [f'v_max3_u32 v{t}, v{regs[0]}, v{regs[1]}, v{regs[2]}']
    i = 3
    while i < len(regs):
        if i + 1 < len(regs):
            ops.append(f'v_max3_u32 v{t}, v{t}, v{regs[i]}, v{regs[i+1]}')
            i += 2
        else:
            ops.append(f'v_max_u32 v{t}, v{t}, v{regs[i]}')
            i += 1
    return ops


def check_group(k, regs, t, reissue, slp=None, pre=False):
    slp = slp or OPT.get('rslp', 2)
    if not pre:
        for o in maxchain_ops(regs, t):
            k(o)
    slow, back, loop = k.newlabel('SLOW'), k.newlabel('BACK'), k.newlabel('RETRY')
    k(f'v_cmp_eq_u32 vcc, -1, v{t}')
    k(f's_cbranch_vccnz {slow} ;nodrain')
    k.label(back)

    def cold(c):
        c.label(slow)
        c('s_nop 15')
        c.label(loop)
        c(f's_cmp_eq_u32 s{S_BUD}, 0')
        c(f's_cbranch_scc1 {back}')
        c(f's_sub_u32 s{S_BUD}, s{S_BUD}, 1')
        c(f's_sleep {slp}')
        reissue(c)
        c('s_waitcnt vmcnt(0)')
        for o in maxchain_ops(regs, t):
            c(o)
        c(f'v_cmp_eq_u32 vcc, -1, v{t}')
        c(f's_cbranch_vccnz {loop}')
        c(f's_branch {back}')
    k.cold.append(cold)


def nonce_issue(k, vr):
    k(f'v_mov_b32 v{vr+1}, 0')
    return k(f'buffer_load_dword v{vr}, v{vr+1}, s[{S_DBG}:{S_DBG+3}], 0 offen sc1')


def nonce_check(k, vr, tok):
    k.wait(tok)
    slow, back = k.newlabel('NSLOW'), k.newlabel('NBACK')
    k(f'v_readfirstlane_b32 s{S_NONCE}, v{vr}')
    k(f's_cmp_eq_u32 s{S_NONCE}, 0')
    k(f's_cbranch_scc1 {slow} ;nodrain')
    k.label(back)

    def cold(c):
        c.label(slow)
        c('s_nop 15')
        c(f's_cmp_eq_u32 s{S_BUD}, 0')
        c(f's_cbranch_scc1 {back}')
        c(f's_sub_u32 s{S_BUD}, s{S_BUD}, 1')
        c('s_sleep 4')
        c(f'buffer_load_dword v{vr}, v{vr+1}, s[{S_DBG}:{S_DBG+3}], 0 offen sc1')
        c('s_waitcnt vmcnt(0)')
        c(f'v_readfirstlane_b32 s{S_NONCE}, v{vr}')
        c(f's_cmp_eq_u32 s{S_NONCE}, 0')
        c(f's_cbranch_scc1 {slow}')
        c(f's_branch {back}')
    k.cold.append(cold)


def nonce_from_lds(k, t):
    k(f'v_mov_b32 v{t}, {XNONCE}')
    tk = k(f'ds_read_b32 v{t}, v{t}')
    k.wait(tk)
    k(f'v_readfirstlane_b32 s{S_NONCE}, v{t}')


def rflag_store(k, base, sidx, t1, t2, wave=0):
    k(f'v_mov_b32 v{t1}, s{S_NONCE}')
    k(f'v_lshlrev_b32 v{t2}, 10, v1')
    k(f's_lshl_b32 s60, s{sidx}, 2')
    k(f's_add_u32 s60, s60, {base}')
    k(f's_mov_b32 s61, {OOB}')
    k(f's_cmp_eq_u32 s{S_W}, {wave}')
    k('s_cselect_b32 s60, s60, s61')
    k('s_mov_b64 exec, 0xff')
    k(f'buffer_store_dword v{t1}, v{t2}, {WSR}, s60 offen sc1')
    k('s_mov_b64 exec, -1')


def wflag_store(k, base, sidx, t1, t2, cnt):
    k(f'v_mov_b32 v{t1}, 1')
    k(f'v_mov_b32 v{t2}, {XCNT+4*cnt}')
    k('s_mov_b64 exec, 1')
    tk = k(f'ds_add_rtn_u32 v{t1}, v{t2}, v{t1}')
    k('s_mov_b64 exec, -1')
    k(f's_lshl_b32 s60, s{sidx}, 2')
    k(f's_add_u32 s60, s60, {base}')
    k.wait(tk)
    k(f'v_readfirstlane_b32 s61, v{t1}')
    k(f'v_mov_b32 v{t1}, s{S_NONCE}')
    k(f'v_lshlrev_b32 v{t2}, 10, v1')
    k('s_cmp_eq_u32 s61, 3')
    k(f's_cselect_b32 s60, s60, {OOB}')
    k('s_mov_b64 exec, 0xff')
    k(f'buffer_store_dword v{t1}, v{t2}, {WSR}, s60 offen sc1')
    k('s_mov_b64 exec, -1')


def cnt_wait(k, t1, t2, cnt, target, bound=2000):
    loop, done = k.newlabel('CW'), k.newlabel('CD')
    k(f'v_mov_b32 v{t2}, {XCNT+4*cnt}')
    k(f's_mov_b32 s61, {bound}')
    k.label(loop)
    k.raw(f'    ds_read_b32 v{t1}, v{t2}')
    k.raw('    s_waitcnt lgkmcnt(0)')
    k(f'v_readfirstlane_b32 s60, v{t1}')
    k(f's_cmp_ge_u32 s60, {target}')
    k(f's_cbranch_scc1 {done}')
    k('s_sub_u32 s61, s61, 1')
    k('s_cmp_eq_u32 s61, 0')
    k(f's_cbranch_scc1 {done}')
    k('s_sleep 2')
    k(f's_branch {loop}')
    k.label(done)


def wflag_poll(k, sbase, va, vr, smask, width, only_wave0):
    loop, done = k.newlabel('POLL'), k.newlabel('PDONE')
    if only_wave0:
        k(f's_cmp_lg_u32 s{S_W}, 0')
        k(f's_cbranch_scc1 {done}')
    k.label(loop)
    if width == 4:
        k.raw(f'    buffer_load_dwordx4 {v(vr,4)}, v{va}, {WSR}, s{sbase} offen sc1')
        k.raw('    s_waitcnt vmcnt(0)')
        for i in range(4):
            k(f'v_xor_b32 v{vr+i}, s{S_NONCE}, v{vr+i}')
        k(f'v_or3_b32 v{vr}, v{vr}, v{vr+1}, v{vr+2}')
        k(f'v_or_b32 v{vr}, v{vr}, v{vr+3}')
        k(f'v_cmp_ne_u32 vcc, 0, v{vr}')
    else:
        k.raw(f'    buffer_load_dword v{vr}, v{va}, {WSR}, s{sbase} offen sc1')
        k.raw('    s_waitcnt vmcnt(0)')
        k(f'v_cmp_ne_u32 vcc, s{S_NONCE}, v{vr}')
    k(f's_and_b64 vcc, vcc, s[{smask}:{smask+1}]')
    k(f's_cbranch_scc0 {done}')
    k(f's_cmp_eq_u32 s{S_BUD}, 0')
    k(f's_cbranch_scc1 {done}')
    k(f's_sub_u32 s{S_BUD}, s{S_BUD}, 1')
    k(f's_sleep {OPT.get("psl", 1)}')
    k(f's_branch {loop}')
    k.label(done)


def probe(k, sbase, va, vr):
    loop, done = k.newlabel('PRB'), k.newlabel('PRD')
    k.label(loop)
    k.raw(f'    buffer_load_dword v{vr}, v{va}, {WSR}, s{sbase} offen sc1')
    k.raw('    s_waitcnt vmcnt(0)')
    k(f'v_cmp_eq_u32 vcc, -1, v{vr}')
    k(f's_cbranch_vccz {done}')
    k(f's_cmp_eq_u32 s{S_BUD}, 0')
    k(f's_cbranch_scc1 {done}')
    k(f's_sub_u32 s{S_BUD}, s{S_BUD}, 1')
    k(f's_sleep {OPT.get("prs", 2)}')
    k(f's_branch {loop}')
    k.label(done)


def rflag_poll(k, sbase, va, vr, smask):
    loop, done = k.newlabel('POLL'), k.newlabel('PDONE')
    k(f's_cmp_lg_u32 s{S_W}, 0')
    k(f's_cbranch_scc1 {done}')
    k.label(loop)
    k.raw(f'    buffer_load_dword v{vr}, v{va}, {WSR}, s{sbase} offen sc1')
    k.raw('    s_waitcnt vmcnt(0)')
    k(f'v_cmp_ne_u32 vcc, s{S_NONCE}, v{vr}')
    k(f's_and_b64 vcc, vcc, s[{smask}:{smask+1}]')
    k(f's_cbranch_scc0 {done}')
    k(f's_cmp_eq_u32 s{S_BUD}, 0')
    k(f's_cbranch_scc1 {done}')
    k(f's_sub_u32 s{S_BUD}, s{S_BUD}, 1')
    k(f's_branch {loop}')
    k.label(done)


def flags_issue(k, base, vr, va):
    k(f'v_lshlrev_b32 v{va}, 4, v1')
    k(f's_lshl_b32 s60, s{S_X8}, 10')
    k(f'v_add_u32 v{va}, s60, v{va}')
    k(f's_mov_b32 s60, {base}')
    return k(f'buffer_load_dwordx4 {v(vr,4)}, v{va}, {WSR}, s60 offen sc1')


def flags_check(k, base, vr, va, tok):
    k.wait(tok)
    slow, back = k.newlabel('FSLOW'), k.newlabel('FBACK')

    def cmpops(c):
        for i in range(4):
            c(f'v_xor_b32 v{vr+i}, s{S_NONCE}, v{vr+i}')
        c(f'v_or3_b32 v{vr}, v{vr}, v{vr+1}, v{vr+2}')
        c(f'v_or_b32 v{vr}, v{vr}, v{vr+3}')
        c(f'v_cmp_ne_u32 vcc, 0, v{vr}')
    cmpops(k)
    k(f's_cbranch_vccnz {slow} ;nodrain')
    k.label(back)

    def cold(c):
        c.label(slow)
        c('s_nop 15')
        c(f's_cmp_eq_u32 s{S_BUD}, 0')
        c(f's_cbranch_scc1 {back}')
        c(f's_sub_u32 s{S_BUD}, s{S_BUD}, 1')
        c('s_sleep 12')
        c(f's_mov_b32 s58, {base}')
        c(f'buffer_load_dwordx4 {v(vr,4)}, v{va}, {WSR}, s58 offen sc1')
        c('s_waitcnt vmcnt(0)')
        cmpops(c)
        c(f's_cbranch_vccnz {slow}')
        c(f's_branch {back}')
    k.cold.append(cold)


def join(k):
    k.reset_counters()
    k.vm_issued = 1
    k.lg_issued = 1


def prologue(k):
    k('s_cmp_ge_u32 s2, 256')
    k('s_cbranch_scc1 %s' % k.realend)
    if OPT.get('cpf', 1):
        k.raw('    s_getpc_b64 s[88:89]')
        k.raw('CODE_PC:')
        k.raw(f'    s_sub_u32 s88, s88, CODE_PC-{NAME}_kernel')
        k.raw('    s_subb_u32 s89, s89, 0')
        k.raw('    s_and_b32 s89, s89, 0xffff')
        k.raw(f'    s_mov_b32 s90, CODE_END-{NAME}_kernel')
        k.raw('    s_mov_b32 s91, 0x00020000')
        k('s_lshr_b32 s92, s2, 3')
        k('s_lshl_b32 s92, s92, 12')
        k('v_lshlrev_b32 v250, 7, v0')
        k('v_cmp_gt_u32 vcc, 32, v0')
        k(f'v_mov_b32 v251, {OOB}')
        k('v_cndmask_b32 v250, v251, v250, vcc')
        k('buffer_load_dword v251, v250, s[88:91], s92 offen')
    k('s_load_dwordx8 s[64:71], s[0:1], 0')
    k('s_load_dwordx8 s[72:79], s[0:1], 32')
    k('s_load_dwordx4 s[80:83], s[0:1], 64')
    k('s_memrealtime s[84:85]')
    k('v_and_b32 v1, 63, v0')
    k('v_lshrrev_b32 v2, 6, v0')
    k(f'v_readfirstlane_b32 s{S_W}, v2')
    k(f's_and_b32 s{S_X8}, s2, 7')
    k(f's_lshr_b32 s{S_I32}, s2, 3')
    k(f's_mov_b32 s{S_BUD}, {OPT.get("bud", 100000)}')
    k(f's_and_b32 s{S_W4}, s{S_W}, 3')
    k('v_and_b32 v0, 255, v0')
    k('v_mov_b32 v253, 0')
    k('s_waitcnt lgkmcnt(0)')
    srds(k, 0, 2)


def srds(k, a_, b_):
    for sr, src, size in ((S_X, 64, 2621440), (S_WQKV, 66, 2457600), (S_WO, 68, 819200), (S_WG, 72, 1966080),
                          (S_WU, 74, 1966080), (S_WD, 76, 1966080), (S_OUT, 78, 2621440), (S_WS, 82, WS_SIZE),
                          (S_DBG, 80, 256))[a_:b_]:
        k(f's_mov_b32 s{sr}, s{src}')
        k(f's_and_b32 s{sr+1}, s{src+1}, 0xffff')
        k(f's_mov_b32 s{sr+2}, {size}')
        k(f's_mov_b32 s{sr+3}, 0x00020000')


def publish_nonce(k):
    k(f's_or_b32 s60, s2, s{S_W}')
    k('s_cmp_eq_u32 s60, 0')
    k(f's_cselect_b32 s61, 0, 0x10000')
    k('s_or_b32 s60, s84, 1')
    k('v_mov_b32 v2, s60')
    k('v_mov_b32 v3, 0')
    k('s_mov_b64 exec, 1')
    k(f'buffer_store_dword v2, v3, s[{S_DBG}:{S_DBG+3}], s61 offen sc1')
    k('s_mov_b64 exec, -1')


def tile1(k):
    k(f's_and_b32 s47, s{S_X8}, 3')
    k(f's_lshr_b32 s46, s{S_X8}, 2')
    k('s_mul_i32 s46, s46, 30')
    k(f's_add_u32 s46, s46, s{S_I32}')
    k('s_lshr_b32 s44, s46, 2')
    k('s_and_b32 s46, s46, 3')
    k('s_lshl_b32 s47, s47, 2')
    k('s_add_u32 s45, s47, s46')
    k('s_add_u32 s56, s45, s44')
    for _ in range(2):
        k('s_sub_u32 s47, s56, 10')
        k('s_cmp_ge_u32 s56, 10')
        k('s_cselect_b32 s56, s47, s56')
    k('s_lshl_b32 s46, s45, 7')
    k(f's_lshl_b32 s47, s{S_W4}, 5')
    k('s_add_u32 s46, s46, s47')


def tile35(k, srt, sct, st):
    if OPT.get('m35', 0):
        k(f's_lshl_b32 s{st}, s{S_X8}, 2')
        k(f's_and_b32 s{srt}, s{S_I32}, 3')
        k(f's_add_u32 s{srt}, s{srt}, s{st}')
        k(f's_lshr_b32 s{sct}, s{S_I32}, 2')
        return
    k(f's_and_b32 s{st}, s{S_X8}, 3')
    k(f's_lshl_b32 s{st}, s{st}, 3')
    k(f's_and_b32 s{srt}, s{S_I32}, 7')
    k(f's_add_u32 s{srt}, s{srt}, s{st}')
    k(f's_lshr_b32 s{st}, s{S_X8}, 2')
    k(f's_lshl_b32 s{st}, s{st}, 2')
    k(f's_lshr_b32 s{sct}, s{S_I32}, 3')
    k(f's_add_u32 s{sct}, s{sct}, s{st}')


def tile4(k, smt, sft, st):
    if OPT.get('m4', 0):
        k(f's_and_b32 s{st}, s{S_X8}, 3')
        k(f's_lshl_b32 s{st}, s{st}, 2')
        k(f's_and_b32 s{smt}, s{S_I32}, 3')
        k(f's_add_u32 s{smt}, s{smt}, s{st}')
        k(f's_lshr_b32 s{st}, s{S_X8}, 2')
        k(f's_lshl_b32 s{st}, s{st}, 3')
        k(f's_lshr_b32 s{sft}, s{S_I32}, 2')
        k(f's_add_u32 s{sft}, s{sft}, s{st}')
        return
    k(f's_and_b32 s{st}, s{S_X8}, 1')
    k(f's_lshl_b32 s{st}, s{st}, 3')
    k(f's_and_b32 s{smt}, s{S_I32}, 7')
    k(f's_add_u32 s{smt}, s{smt}, s{st}')
    k(f's_lshr_b32 s{st}, s{S_X8}, 1')
    k(f's_lshl_b32 s{st}, s{st}, 2')
    k(f's_lshr_b32 s{sft}, s{S_I32}, 3')
    k(f's_add_u32 s{sft}, s{sft}, s{st}')


def strip_id(k, sd):
    k(f's_and_b32 s{sd}, s{S_X8}, 1')
    k(f's_mul_i32 s{sd}, s{sd}, 1536')
    k(f's_lshr_b32 s61, s{S_X8}, 1')
    k('s_mul_i32 s61, s61, 384')
    k(f's_add_u32 s{sd}, s{sd}, s61')
    k(f's_lshl_b32 s61, s{S_I32}, 5')
    k(f's_add_u32 s{sd}, s{sd}, s61')


def clear_ops(k, vs, va):
    ops = []

    def o1():
        k(f's_and_b32 s60, s{S_I32}, 3')
        k(f's_lshl_b32 s61, s{S_X8}, 2')
        k('s_add_u32 s60, s60, s61')
        k('s_and_b32 s65, s60, 1')
        k('s_lshr_b32 s60, s60, 1')
        k('s_mul_i32 s60, s60, 5')
        k('s_lshl_b32 s60, s60, 15')
        k(f's_lshr_b32 s61, s{S_I32}, 2')
        k('s_lshl_b32 s61, s61, 12')
        k('s_add_u32 s60, s60, s61')
        k(f's_lshl_b32 s61, s{S_W4}, 10')
        k('s_add_u32 s60, s60, s61')
        k(f's_add_u32 s64, s60, {WS_OC}')
        k(f's_mul_i32 s61, s65, {3*32768}')
        k('s_add_u32 s66, s64, s61')
        k(f'buffer_store_dwordx4 {v(vs,4)}, v{va}, {WSR}, s66 offen sc1')

    def o2():
        k('s_add_u32 s60, s66, 32768')
        k(f'buffer_store_dwordx4 {v(vs,4)}, v{va}, {WSR}, s60 offen sc1')

    def o3():
        k('s_lshl_b32 s61, s65, 3')
        k('s_add_u32 s60, s64, s61')
        k('s_add_u32 s60, s60, 65536')
        k(f'buffer_store_dwordx2 {v(vs,2)}, v{va}, {WSR}, s60 offen sc1')

    def h1():
        tile35(k, 60, 61, 64)
        k('s_lshl_b32 s67, s61, 14')
        k('s_lshl_b32 s64, s60, 9')
        k('s_add_u32 s67, s67, s64')
        k(f's_add_u32 s67, s67, {WS_HS}')
        k('s_mul_i32 s61, s61, 10')
        k(f's_add_u32 s61, s61, s{S_W4}')
        k('s_lshl_b32 s61, s61, 15')
        k('s_lshl_b32 s60, s60, 10')
        k('s_add_u32 s64, s61, s60')
        k(f's_add_u32 s64, s64, {WS_H1}')
        k(f'buffer_store_dwordx4 {v(vs,4)}, v{va}, {WSR}, s64 offen sc1')

    def h2():
        k(f's_add_u32 s60, s64, {4*32768}')
        k(f'buffer_store_dwordx4 {v(vs,4)}, v{va}, {WSR}, s60 offen sc1')

    def h3():
        k(f's_add_u32 s60, s64, {8*32768}')
        k(f's_mov_b32 s65, {OOB}')
        k(f's_cmp_lt_u32 s{S_W4}, 2')
        k('s_cselect_b32 s60, s60, s65')
        k(f'buffer_store_dwordx4 {v(vs,4)}, v{va}, {WSR}, s60 offen sc1')

    def h4():
        k(f's_cmp_eq_u32 s{S_W4}, 2')
        k('s_cselect_b32 s60, s67, s65')
        k(f'buffer_store_dwordx2 {v(vs,2)}, v{va+1}, {WSR}, s60 offen sc1')

    def c1():
        tile4(k, 60, 61, 64)
        k('s_mul_i32 s61, s61, 384')
        k('s_mul_i32 s64, s60, 12288')
        k('s_add_u32 s61, s61, s64')
        k(f's_mul_i32 s64, s{S_W4}, 6144')
        k('s_add_u32 s61, s61, s64')
        k(f's_add_u32 s61, s61, {WS_PCS}')
        k('s_cmp_lt_u32 s60, 10')
        k('s_cselect_b32 s61, s61, s65')
        k(f's_cmp_lt_u32 s{S_W4}, 2')
        k('s_cselect_b32 s61, s61, s65')
        k('s_mov_b64 exec, 0xffffff')
        k(f'buffer_store_dwordx4 {v(vs,4)}, v{va}, {WSR}, s61 offen sc1')
        k('s_mov_b64 exec, -1')
    return [o1, o2, o3, h1, h2, h3, h4, c1]


def sparse_prefetch(k, srd, rows_per_wg, lines, pitch, colshift, colmul, va, vd, toff=0):
    magic = {5: 13108, 6: 10923}[lines]
    k(f'v_subrev_u32 v{va}, {toff}, v0')
    k(f'v_cmp_gt_u32 vcc, {rows_per_wg*lines}, v{va}')
    k(f'v_mul_u32_u24 v{vd}, {magic}, v{va}')
    k(f'v_lshrrev_b32 v{vd}, 16, v{vd}')
    k(f'v_mul_u32_u24 v{vd}, {pitch-lines*128}, v{vd}')
    k(f'v_lshl_add_u32 v{va}, v{va}, 7, v{vd}')
    k(f'v_mov_b32 v{vd}, {OOB}')
    k(f'v_cndmask_b32 v{va}, v{vd}, v{va}, vcc')
    k(f's_mul_i32 s60, s{S_I32}, {rows_per_wg*pitch}')
    k(f's_lshr_b32 s61, s{S_X8}, {colshift}')
    k(f's_mul_i32 s61, s61, {colmul}')
    k('s_add_u32 s60, s60, s61')
    for sr in srd:
        k(f'buffer_load_dword v{vd}, v{va}, s[{sr}:{sr+3}], s60 offen')


def pf_wo(k, va, vd):
    sparse_prefetch(k, [S_WO], 20, 5, 1280, 2, 640, va, vd)


def pf_wd(k, va, vd):
    sparse_prefetch(k, [S_WD], 48, 5, 1280, 2, 640, va, vd)


def pf_wgu(k, va, vd, toff=0):
    sparse_prefetch(k, [S_WG, S_WU], 20, 6, 3072, 1, 768, va, vd, toff)


P1_R, P1_SLOT = 4, 32768


def p1_dma(k, S_SIG, sa, sb_):
    S_NT, S_TOK, S_LW = 44, 46, 48
    k('s_cmp_ge_u32 s56, 5')
    k(f's_cselect_b32 s{S_SIG}, 5, 0')
    k('v_lshrrev_b32 v10, 3, v1')
    k(f'v_add_u32 v10, s{S_TOK}, v10')
    k('v_mul_u32_u24 v10, 1280, v10')
    k('v_and_b32 v11, 7, v1')
    k('v_lshrrev_b32 v12, 4, v1')
    k('v_xor_b32 v11, v11, v12')
    k('v_xor_b32 v13, 4, v11')
    k('v_lshl_add_u32 v2, v11, 4, v10')
    k('v_lshl_add_u32 v3, v13, 4, v10')
    k(f'v_add_u32 v3, {10240-1024}, v3')
    k(f'v_add_u32 v4, {2*(10240-1024)}, v2')
    k(f'v_add_u32 v5, {2*(10240-1024)}, v3')
    k(f's_lshl_b32 s47, s{S_W4}, 4')
    k('v_add_u32 v10, s47, v12')
    k('v_mul_u32_u24 v10, 3840, v10')
    k(f's_lshl_b32 s47, s{S_NT}, 8')
    k('v_add_u32 v10, s47, v10')
    k('v_bfe_u32 v11, v1, 2, 2')
    k('v_xor_b32 v11, v11, v12')
    k('v_lshl_add_u32 v10, v11, 6, v10')
    k('v_and_b32 v11, 3, v1')
    k('v_lshl_add_u32 v6, v11, 4, v10')
    for i in range(1, 4):
        k(f'v_add_u32 v{6+i}, {i*(4*3840-1024)}, v6')
    k(f's_lshl_b32 s{S_LW}, s{S_W4}, 12')
    tok = {}

    def issue(st):
        slot = st % P1_R
        k(f's_add_u32 m0, s{S_LW}, {slot*P1_SLOT}')
        k(f's_lshl_b32 s{sa}, s{S_SIG}, 7')
        for i in range(4):
            k(f'buffer_load_dwordx4 v{2+i}, s[{S_X}:{S_X+3}], s{sa} offen offset:{i*1024} lds')
        k(f's_add_u32 m0, s{S_LW}, {slot*P1_SLOT+16384}')
        k(f's_mul_i32 s{sb_}, s{S_SIG}, {64*3840}')
        k(f's_add_u32 s{S_SIG}, s{S_SIG}, 1')
        k(f's_cmp_eq_u32 s{S_SIG}, 10')
        k(f's_cselect_b32 s{S_SIG}, 0, s{S_SIG}')
        for i in range(4):
            tok[st] = k(f'buffer_load_dwordx4 v{6+i}, s[{S_WQKV}:{S_WQKV+3}], s{sb_} offen offset:{i*1024} lds')
    return tok, issue


def p1_loader(k, g3):
    tile1(k)
    S_NT, S_TOK, S_LW, S_SIG = 44, 46, 48, 55
    lab_h, lab_e = k.newlabel('L_HELP'), k.newlabel('L_P1E')
    k(f's_cmp_ge_u32 s{S_I32}, 30')
    k(f's_cbranch_scc1 {lab_h}')
    tok, issue = p1_dma(k, S_SIG, 49, 50)
    issue(0)
    srds(k, 2, 9)
    issue(1)
    stamp(k, 1)
    k.wait(tok[0])
    k('s_barrier')
    stamp(k, 2)
    if OPT.get('cdma', 0):
        k(f's_add_u32 s{S_SIG}, s{S_SIG}, 2')
        tok[2] = tok[3] = tok[1]
    else:
        issue(2)
        issue(3)
    blk = k.capture(lambda: (g3.dma_setup(100), p2_setup(k)))
    nb_ = (len(blk) + 2) // 3
    for st in range(1, 10):
        k.wait(tok[st])
        k('s_barrier')
        if st + 3 < 10:
            issue(st + 3)
        if st == 6:
            stamp(k, 3)
            pf_wo(k, 120, 121)
        if 6 <= st <= 8:
            k.items.extend(blk[(st - 6) * nb_:(st - 5) * nb_])
    k(f's_branch {lab_e}')
    k.label(lab_h)
    srds(k, 2, 9)
    for st in range(10):
        k('s_barrier')
    pf_wo(k, 120, 121)
    k.items.extend(blk)
    k.label(lab_e)
    join(k)
    nonce_from_lds(k, 122)
    stamp(k, 9)
    k('s_barrier')
    if OPT.get('wowait', 1):
        cnt_wait(k, 238, 239, 0, OPT.get('wowait', 1))
    stamp(k, 10)
    for st in range(5):
        runall(k, g3.dma_step(st))
    stamp(k, 11)


def p1_compute(k):
    srds(k, 2, 9)
    publish_nonce(k)
    tile1(k)
    S_NT, S_MT, S_TOK, S_LW, S_RHO = 44, 45, 46, 48, 56
    k(f's_lshl_b32 s{S_LW}, s{S_W4}, 12')
    ctok = {}
    if OPT.get('cdma', 0):
        lab_nd = k.newlabel('NODMA')
        k(f's_cmp_ge_u32 s{S_I32}, 30')
        k(f's_cbranch_scc1 {lab_nd}')
        ctok, cissue = p1_dma(k, 55, 49, 50)
        k('s_add_u32 s55, s55, 2')
        cissue(2)
        cissue(3)
        k.label(lab_nd)
    for i in range(4):
        k(f'v_mov_b32 v{96+i}, -1')
    k('v_lshlrev_b32 v100, 4, v1')
    k('v_lshlrev_b32 v101, 3, v1')
    k('v_and_b32 v40, 31, v1')
    k('v_lshlrev_b32 v109, 3, v40')
    k('v_lshlrev_b32 v102, 2, v40')
    k(f's_lshl_b32 s51, s{S_RHO}, 14')
    k(f's_lshl_b32 s47, s{S_TOK}, 3')
    k('s_add_u32 s51, s51, s47')
    k(f's_add_u32 s51, s51, {WS_PS}')
    k(f's_mov_b32 s47, {OOB}')
    k(f's_cmp_lt_u32 s{S_NT}, 10')
    k('s_cselect_b32 s51, s51, s47')
    k(f's_mul_i32 s52, s{S_RHO}, 7680')
    k(f's_lshl_b32 s49, s{S_NT}, 9')
    k('s_add_u32 s52, s52, s49')
    k(f's_lshl_b32 s49, s{S_W4}, 7')
    k('s_add_u32 s52, s52, s49')
    k(f's_add_u32 s52, s52, {WS_PC}')
    k(f's_cmp_lt_u32 s{S_MT}, 10')
    k('s_cselect_b32 s52, s52, s47')
    k(f's_cmp_lt_u32 s{S_I32}, 30')
    k('s_cselect_b32 s51, s51, s47')
    k('s_cselect_b32 s52, s52, s47')
    k(f'buffer_store_dwordx2 {v(96,2)}, v109, {WSR}, s51 offen sc1')
    sctok = k(f'buffer_store_dword v96, v102, {WSR}, s52 offen sc1')
    if OPT.get('qclr', 0):
        k(f's_lshl_b32 s60, s{S_NT}, 5')
        k(f's_lshl_b32 s61, s{S_W4}, 3')
        k('s_add_u32 s60, s60, s61')
        k('s_lshl_b32 s60, s60, 14')
        k(f's_lshl_b32 s61, s{S_MT}, 10')
        k('s_add_u32 s64, s60, s61')
        k(f's_lshr_b32 s60, s{S_TOK}, 5')
        k('s_mul_i32 s60, s60, 40960')
        k(f's_sub_u32 s61, s{S_NT}, 10')
        k('s_lshl_b32 s61, s61, 11')
        k('s_add_u32 s65, s60, s61')
        k(f's_cmp_lt_u32 s{S_I32}, 30')
        k(f's_cselect_b32 s64, s64, {OOB}')
        k(f's_cselect_b32 s65, s65, {OOB}')
        for n in range(8):
            k(f's_add_u32 s60, s64, {WS_QG + n*16384}')
            k(f's_add_u32 s61, s65, {WS_VF + (n//2)*10240 + (n%2)*1024}')
            k(f's_cmp_lt_u32 s{S_NT}, 10')
            k('s_cselect_b32 s60, s60, s61')
            if OPT.get('qclr') == 2:
                k('s_sleep 4')
            sctok = k(f'buffer_store_dwordx4 {v(96,4)}, v100, {WSR}, s60 offen sc1')
    NV = 252
    if OPT.get('tlb', 0) & 1:
        k('v_lshlrev_b32 v115, 20, v1')
        for n_, sr in enumerate((S_WS, S_WO, S_WG, S_WU, S_WD, S_OUT)):
            k(f's_cmp_eq_u32 s{S_W4}, {n_ % 4}')
            k(f's_cselect_b32 s60, 0, {OOB}')
            k(f'buffer_load_dword v{116+n_}, v115, s[{sr}:{sr+3}], s60 offen')
    if OPT.get('tlb', 0) & 2:
        k('v_and_b32 v115, 15, v1')
        k(f's_lshl_b32 s60, s{S_I32}, 4')
        k('v_add_u32 v115, s60, v115')
        k('v_lshlrev_b32 v115, 16, v115')
        k(f's_cmp_eq_u32 s{S_W4}, 1')
        k(f's_cselect_b32 s60, 0, {OOB}')
        k(f'buffer_load_dword v116, v115, {WSR}, s60 offen')
        k('v_and_b32 v115, 1, v1')
        k(f's_lshl_b32 s60, s{S_I32}, 1')
        k('v_add_u32 v115, s60, v115')
        k('v_lshlrev_b32 v115, 16, v115')
        for n_, sr in enumerate((S_WO, S_WG, S_WU, S_WD, S_OUT)):
            k(f's_cmp_eq_u32 s{S_W4}, {2 + n_ % 2}')
            k(f's_cselect_b32 s60, 0, {OOB}')
            k(f'buffer_load_dword v{117+n_}, v115, s[{sr}:{sr+3}], s60 offen')
    def warm():
        k('v_lshlrev_b32 v110, 7, v0')
        k(f's_and_b32 s60, s{S_X8}, 3')
        k('s_lshl_b32 s60, s60, 5')
        k(f's_add_u32 s60, s60, s{S_I32}')
        k('s_mul_i32 s60, s60, 20480')
        k('v_cmp_gt_u32 vcc, 160, v0')
        k(f'v_mov_b32 v111, {OOB}')
        k('v_cndmask_b32 v110, v111, v110, vcc')
        k(f'buffer_load_dword v111, v110, s[{S_X}:{S_X+3}], s60 offen')
        k('v_lshrrev_b32 v110, 4, v0')
        k('v_mul_u32_u24 v110, 3840, v110')
        k('v_and_b32 v112, 15, v0')
        k('v_lshl_add_u32 v110, v112, 7, v110')
        k(f's_mul_i32 s60, s{S_I32}, {20*3840}')
        k(f's_lshr_b32 s61, s{S_X8}, 2')
        k('s_mul_i32 s61, s61, 1792')
        k('s_add_u32 s60, s60, s61')
        k(f'buffer_load_dword v113, v110, s[{S_WQKV}:{S_WQKV+3}], s60 offen')
        k(f's_add_u32 s60, s60, {16*3840}')
        k(f's_mov_b32 s61, {OOB}')
        k(f's_cmp_eq_u32 s{S_W4}, 0')
        k('s_cselect_b32 s60, s60, s61')
        k(f'buffer_load_dword v114, v110, s[{S_WQKV}:{S_WQKV+3}], s60 offen')
    if OPT.get('warm', 0) == 1:
        warm()
    k('v_lshrrev_b32 v41, 5, v1')
    k('v_bfe_u32 v42, v1, 1, 3')
    k('v_xor_b32 v42, v42, v41')
    k('v_lshlrev_b32 v43, 7, v40')
    k('v_lshl_add_u32 v43, v42, 4, v43')
    k(f'v_add_u32 v10, s{S_LW}, v43')
    for ks in range(1, 4):
        k(f'v_xor_b32 v{10+ks}, {ks*32}, v10')
    k('v_bfe_u32 v42, v1, 2, 2')
    k('v_lshl_add_u32 v43, v41, 3, v42')
    k('v_lshlrev_b32 v43, 8, v43')
    k('v_bfe_u32 v44, v1, 4, 1')
    k('v_lshl_add_u32 v43, v44, 5, v43')
    k('v_and_b32 v44, 3, v1')
    k('v_lshl_add_u32 v43, v44, 3, v43')
    k('v_add_u32 v43, 16384, v43')
    for j in range(4):
        k(f's_add_u32 s49, s{S_W4}, {j}')
        k('s_and_b32 s49, s49, 3')
        k('v_xor_b32 v44, s49, v42')
        k(f'v_lshl_add_u32 v{14+j}, v44, 6, v43')
    for i in range(8):
        k(f'v_add_u32 v{18+i}, 65536, v{10+i}')
    VSUM, VSQ, VCS, VONE = 34, 35, 36, 37
    k(f'v_mov_b32 v{VSUM}, 0')
    k(f'v_mov_b32 v{VSQ}, 0')
    k(f'v_mov_b32 v{VCS}, 0')
    k(f'v_mov_b32 v{VONE}, 0x3f803f80')
    k('v_lshrrev_b32 v105, 5, v1')
    k(f'v_mul_u32_u24 v103, {5*16384}, v105')
    k('v_add_u32 v103, v103, v109')
    k(f'v_mul_u32_u24 v104, {5*7680}, v105')
    k('v_add_u32 v104, v104, v102')
    k(f's_lshl_b32 s53, s{S_TOK}, 3')
    k(f's_add_u32 s53, s53, {WS_PS}')
    k(f's_lshl_b32 s54, s{S_NT}, 9')
    k(f's_lshl_b32 s49, s{S_W4}, 7')
    k('s_add_u32 s54, s54, s49')
    k(f's_add_u32 s54, s54, {WS_PC}')
    k('s_sub_u32 s55, s56, 5')
    k('s_cmp_ge_u32 s56, 5')
    k('s_cselect_b32 s55, s55, s56')
    XF, WF, ACC = 40, 48, 128
    PR, PCR, FL = 232, 242, 248
    stamp(k, 1)
    def nonce_share():
        def blk():
            loop, done = k.newlabel('NL'), k.newlabel('ND')
            first = k.newlabel('NF')
            k(f's_branch {first}')
            k.label(loop)
            k.raw(f'    buffer_load_dword v{NV}, v{NV+1}, s[{S_DBG}:{S_DBG+3}], 0 offen sc1')
            k.label(first)
            k.raw('    s_waitcnt vmcnt(0)')
            k(f'v_readfirstlane_b32 s{S_NONCE}, v{NV}')
            k(f's_cmp_lg_u32 s{S_NONCE}, 0')
            k(f's_cbranch_scc1 {done}')
            k(f's_cmp_eq_u32 s{S_BUD}, 0')
            k(f's_cbranch_scc1 {done}')
            k(f's_sub_u32 s{S_BUD}, s{S_BUD}, 1')
            k('s_sleep 4')
            k(f's_branch {loop}')
            k.label(done)
            k(f'v_mov_b32 v{NV+1}, {XNONCE}')
            k.raw(f'    ds_write_b32 v{NV+1}, v{NV}')
            k.raw('    s_waitcnt lgkmcnt(0)')
        k(f's_cmp_eq_u32 s{S_W}, 0')
        k.outline('s_cbranch_scc1', blk)
        k.wait(sctok)

    def nonce_pre():
        def blk():
            k(f'v_mov_b32 v{NV+1}, 0')
            k.raw(f'    buffer_load_dword v{NV}, v{NV+1}, s[{S_DBG}:{S_DBG+3}], 0 offen sc1')
        k(f's_cmp_eq_u32 s{S_W}, 0')
        k.outline('s_cbranch_scc1', blk)

    def nonce_get():
        rflag_store(k, WS_F0, 2, 107, 108)
        nonce_from_lds(k, 107)
    k(f'v_mov_b32 v107, {XCNT}')
    k('v_mov_b32 v108, 0')
    k('ds_write_b32 v107, v108')
    k('ds_write_b32 v107, v108 offset:4')
    k.wait_all(vm=False)
    if OPT.get('warm', 0) == 3:
        k('s_sleep 20')
        warm()
    stamp(k, 2)
    k('s_barrier')
    nonce_pre()
    if OPT.get('warm', 0) == 2:
        warm()
    stamp(k, 3)
    lab_v, lab_h, lab_done = k.newlabel('P1_V'), k.newlabel('C_HELP'), k.newlabel('C_P1D')
    k(f's_cmp_ge_u32 s{S_I32}, 30')
    k(f's_cbranch_scc1 {lab_h}')
    k(f's_cmp_ge_u32 s{S_NT}, 10')
    k(f's_cbranch_scc1 {lab_v}')
    saved = k.snap()
    T = {}

    def part_loads(c):
        for n in range(5):
            c(f's_add_u32 s58, s53, {n*16384}')
            c(f'buffer_load_dwordx2 {v(PR+2*n,2)}, v103, {WSR}, s58 offen sc1')
        tok = None
        for n in range(5):
            c(f's_add_u32 s58, s54, {n*7680}')
            tok = c(f'buffer_load_dword v{PCR+n}, v104, {WSR}, s58 offen sc1')
        return tok

    PRE = {}

    def mainloop(transposed):
        rd = {}

        def reads(kk):
            st, ks = kk // 4, kk % 4
            slot = st % P1_R
            q, so = slot // 2, (slot % 2) * P1_SLOT
            b = kk % 2
            ops = [[] for _ in range(4)]
            ops[0].append(lambda: rd.__setitem__((kk, 'x'), k(
                f'ds_read_b128 {v(XF+4*b,4)}, v{10+8*q+ks} offset:{so}')))
            for j in range(4):
                for hf in range(2):
                    ops[j].append(lambda j=j, hf=hf: rd.__setitem__((kk, j), k(
                        f'ds_read_b64_tr_b16 {v(WF+16*b+4*j+2*hf,2)}, v{14+8*q+j} offset:{so+ks*4096+hf*1024}')))
            return ops
        for l_ in reads(0):
            runall(k, l_)
        clr = clear_ops(k, 96, 100)
        for kk in range(40):
            b = kk % 2
            if kk % 8 == 4:
                stamp(k, 4 + kk // 8)
            fill, rds = [], []
            if kk >= OPT.get('clr0', 28) and kk != 34 and clr:
                fill.append(clr.pop(0))
            if kk + 1 < 40:
                if (kk + 1) % 4 == 0:
                    if kk == 7:
                        nonce_share()
                    if (kk + 1) // 4 in ctok:
                        k.wait(ctok[(kk + 1) // 4])
                    k.wait_all(vm=False)
                    k('s_barrier')
                    if kk == 7:
                        nonce_get()
                rds = reads(kk + 1)
            if kk < 20:
                def dots(b=b, kk=kk):
                    for i in range(4):
                        k(f'v_dot2_f32_bf16 v{VSUM}, v{XF+4*b+i}, v{VONE}, v{VSUM}')
                        k(f'v_dot2_f32_bf16 v{VSQ}, v{XF+4*b+i}, v{XF+4*b+i}, v{VSQ}')
                        k(f'v_dot2_f32_bf16 v{VCS}, v{WF+16*b+i}, v{VONE}, v{VCS}')
                    if kk % 4 == 3:
                        xsum(k, VSUM, 80, 81)
                        xsum(k, VSQ, 80, 81)
                        xsum(k, VCS, 80, 81)
                        k.raw(f'    buffer_store_dwordx2 {v(VSUM,2)}, v109, {WSR}, s51 offen sc1')
                        k.raw(f'    buffer_store_dword v{VCS}, v102, {WSR}, s52 offen sc1')

                def g_(dots=dots, kk=kk):
                    k(f's_cmp_eq_u32 s55, {kk//4}')
                    k.outline('s_cbranch_scc1', dots)
                fill.append(g_)
            if kk == 20:
                fill.append(lambda: T.__setitem__('flags', flags_issue(k, WS_F0, FL, 106)))
            if kk == OPT.get('pl', 27):
                def f():
                    flags_check(k, WS_F0, FL, 106, T['flags'])
                    T['part'] = part_loads(k)
                fill.append(f)
            if kk == 34:
                fill.append(lambda: finalize(transposed))
            fill += PRE.get(kk, [])
            mf = []
            for j in range(4):
                c = '0' if kk == 0 else v(ACC + 16 * j, 16)
                A_, B_ = v(WF + 16 * b + 4 * j, 4), v(XF + 4 * b, 4)
                if not transposed:
                    A_, B_ = B_, A_
                mf.append((lambda j=j: [rd[kk, 'x'], rd[kk, j]],
                           f'v_mfma_f32_32x32x16_bf16 {v(ACC+16*j,16)}, {A_}, {B_}, {c}'))
            roll_step(k, mf, rds, fill)

    def finalize(transposed):
        k.wait(T['part'])
        check_group(k, list(range(PR, PR + 10)) + list(range(PCR, PCR + 5)), 80, part_loads)
        for n in range(1, 5):
            k(f'v_pk_add_f32 {v(PR,2)}, {v(PR,2)}, {v(PR+2*n,2)}')
            k(f'v_add_f32 v{PCR}, v{PCR}, v{PCR+n}')
        xsum(k, PCR, 80, 81)
        k(f's_lshl_b32 s49, s{S_W4}, 7')
        k(f's_add_u32 s49, s49, {XCH}')
        k('v_add_u32 v82, s49, v102')
        k(f'ds_write_b32 v82, v{PCR}')
        vsum, vsq = PR, PR + 1
        xsum(k, vsum, 80, 81)
        xsum(k, vsq, 80, 81)
        k(f'v_mul_f32 v{vsum}, {f32(1.0/640)}, v{vsum}')
        k(f'v_mul_f32 v{vsq}, {f32(1.0/640)}, v{vsq}')
        k(f'v_fma_f32 v{vsq}, -v{vsum}, v{vsum}, v{vsq}')
        k(f'v_max_f32 v{vsq}, 0, v{vsq}')
        rbf(k, 80, vsum)
        rbf(k, 81, vsq)
        k(f'v_add_f32 v81, {f32(1e-5)}, v81')
        rbf(k, 81, 81)
        k('v_sqrt_f32 v81, v81')
        rbf(k, 81, 81)
        k('v_rcp_f32 v38, v81')
        if transposed:
            k(f's_mov_b32 s49, {f32(math.log2(math.e)/math.sqrt(20.0))}')
            k(f's_cmp_lt_u32 s{S_NT}, 5')
            k('s_cselect_b32 s49, s49, 1.0')
            k('v_mul_f32 v38, s49, v38')
        k('v_mul_f32 v39, v80, v38')
        k('v_sub_f32 v39, 0, v39')
        if not transposed:
            k(f's_lshl_b32 s49, s{S_W4}, 8')
            k(f's_add_u32 s49, s49, {XCH}')
            k('v_add_u32 v83, s49, v102')
            k('ds_write_b32 v83, v38 offset:1024')
            k('ds_write_b32 v83, v39 offset:1152')

    def fin():
        stamp(k, 10)
        k(f's_lshl_b32 s49, s{S_MT}, 4')
        k(f's_add_u32 s49, s49, s{S_NT}')
        k.wait_all()
        wflag_store(k, WS_F2, 49, 80, 81, 0)
        k(f's_branch {lab_done}')

    toks = {}
    CB = {0: 192, 1: 208, 2: 48, 3: 64}

    def csreads(j):
        k(f's_add_u32 s49, s{S_W4}, {j}')
        k('s_and_b32 s49, s49, 3')
        k('s_lshl_b32 s52, s49, 7')
        k('v_add_u32 v86, s52, v85')
        for a_ in range(4):
            toks[j, a_] = k(f'ds_read_b128 {v(CB[j]+4*a_,4)}, v86 offset:{a_*32}')

    def csmul(j):
        k.wait(toks[j, 3])
        for q in range(8):
            k(f'v_pk_mul_f32 {v(CB[j]+2*q,2)}, {v(CB[j]+2*q,2)}, {v(38,2)} op_sel:[0,1] op_sel_hi:[1,1]')

    def pre_qk():
        k(f's_lshl_b32 s49, s{S_TOK}, 3')
        k('v_add_u32 v84, s49, v109')
        k('v_lshl_add_u32 v84, v105, 14, v84')
        k('v_lshlrev_b32 v85, 4, v105')
        k(f'v_add_u32 v85, {XCH}, v85')
        csreads(0)
        csreads(1)
    PRE.clear()
    PRE.update({36: [pre_qk], 37: [lambda: csmul(0)], 38: [lambda: csmul(1)]})
    mainloop(True)
    stamp(k, 9)
    k('s_barrier')
    csreads(2)
    csreads(3)
    for j in range(4):
        k(f's_add_u32 s49, s{S_W4}, {j}')
        k('s_and_b32 s49, s49, 3')
        k(f's_lshl_b32 s52, s{S_NT}, 5')
        k('s_lshl_b32 s53, s49, 3')
        k('s_add_u32 s52, s52, s53')
        k('s_lshl_b32 s52, s52, 14')
        if j >= 2:
            csmul(j)
        C0 = CB[j]
        for a_ in range(4):
            r0 = ACC + 16 * j + 4 * a_
            for p in range(2):
                k(f'v_pk_fma_f32 {v(r0+2*p,2)}, {v(r0+2*p,2)}, {v(38,2)}, {v(C0+4*a_+2*p,2)} op_sel_hi:[1,0,1]')
            k(f'v_cvt_pk_bf16_f32 v{112+2*a_}, v{r0}, v{r0+1}')
            k(f'v_cvt_pk_bf16_f32 v{113+2*a_}, v{r0+2}, v{r0+3}')
            k(f's_add_u32 s53, s52, {WS_QG + a_*32768}')
            k(f'buffer_store_dwordx2 {v(112+2*a_,2)}, v84, {WSR}, s53 offen sc1')
    fin()
    k.label(lab_v)
    k.restore(saved)
    tl = []

    def pre_v():
        k(f's_lshl_b32 s49, s{S_W4}, 8')
        k(f's_add_u32 s49, s49, {XCH}')
        k('v_lshlrev_b32 v86, 4, v105')
        k('v_add_u32 v86, s49, v86')
        for a_ in range(4):
            tl.append(k(f'ds_read_b128 {v(192+4*a_,4)}, v86 offset:{1024+a_*32}'))

    def pre_v2():
        for a_ in range(4):
            tl.append(k(f'ds_read_b128 {v(208+4*a_,4)}, v86 offset:{1152+a_*32}'))

    def pre_v3():
        for j in range(4):
            k(f's_add_u32 s52, s{S_W4}, {j}')
            k('s_and_b32 s52, s52, 3')
            k('s_lshl_b32 s52, s52, 7')
            k(f's_add_u32 s52, s52, {XCH}')
            k('v_add_u32 v87, s52, v102')
            tl.append(k(f'ds_read_b32 v{224+2*j}, v87'))
        k('v_mul_u32_u24 v84, 10240, v105')
        k('v_lshl_add_u32 v84, v102, 2, v84')
        k(f's_lshr_b32 s53, s{S_TOK}, 5')
        k('s_mul_i32 s53, s53, 40960')
        k(f's_sub_u32 s54, s{S_NT}, 10')
        k('s_lshl_b32 s54, s54, 11')
        k('s_add_u32 s53, s53, s54')
        k(f's_add_u32 s53, s53, {WS_VF}')
    PRE.clear()
    PRE.update({36: [pre_v], 37: [pre_v2], 38: [pre_v3]})
    mainloop(False)
    stamp(k, 9)
    k.wait(*tl)
    k('s_barrier')
    for j in range(4):
        k(f's_add_u32 s52, s{S_W4}, {j}')
        k('s_and_b32 s52, s52, 3')
        k('s_lshl_b32 s52, s52, 9')
        k('s_add_u32 s52, s52, s53')
        for m in range(2):
            for p in range(4):
                i = 8 * m + 2 * p
                r0 = ACC + 16 * j + i
                k(f'v_pk_mul_f32 {v(88+2*(p%2),2)}, {v(208+i,2)}, {v(224+2*j,2)} op_sel_hi:[1,0]')
                k(f'v_pk_fma_f32 {v(r0,2)}, {v(r0,2)}, {v(192+i,2)}, {v(88+2*(p%2),2)}')
                k(f'v_cvt_pk_bf16_f32 v{112+8*(j%2)+4*m+p}, v{r0}, v{r0+1}')
            k(f's_add_u32 s54, s52, {m*20480}')
            k(f'buffer_store_dwordx4 {v(112+8*(j%2)+4*m,4)}, v84, {WSR}, s54 offen sc1')
    fin()
    k.label(lab_h)
    k.restore(saved)
    nonce_share()
    k('s_barrier')
    nonce_get()
    for _ in range(8):
        k('s_barrier')
    runall(k, clear_ops(k, 96, 100))
    k('s_barrier')
    k(f's_lshl_b32 s49, s{S_X8}, 1')
    k(f's_add_u32 s49, s49, s{S_I32}')
    k('s_sub_u32 s49, s49, 30')
    k('s_lshl_b32 s49, s49, 4')
    k('s_add_u32 s49, s49, 15')
    k.wait_all()
    wflag_store(k, WS_F2, 49, 80, 81, 0)
    k.label(lab_done)


P5_BAR = (2, 4, 6, 8, 10)


class G35:
    def __init__(self, k, which, groups, vb, sb):
        self.k = k
        self.which = which
        self.KT = 640 if which == 3 else 1536
        self.NST = self.KT // 128
        self.SB = S_WO if which == 3 else S_WD
        self.groups = groups
        self.vb = vb
        self.sb = sb
        self.btok = {}
        self.rtok = {}
        self.sr = 36 if which == 3 else 37

    def set_rho(self, sct):
        k = self.k
        sr = self.sr
        if not OPT.get('rot35', 1):
            k(f's_mov_b32 s{sr}, 0')
        elif self.which == 3:
            k(f's_sub_u32 s{sr}, s{sct}, 5')
            k(f's_cmp_ge_u32 s{sct}, 5')
            k(f's_cselect_b32 s{sr}, s{sr}, s{sct}')
        else:
            k(f's_mul_i32 s{sr}, s{sct}, 3')
            k(f's_lshr_b32 s{sr}, s{sr}, 1')

    def rot(self, c, st, sreg, stmp, mul, src=None):
        c(f's_add_u32 s{sreg}, s{self.sr if src is None else src}, {st}')
        c(f's_sub_u32 s{stmp}, s{sreg}, {self.NST}')
        c(f's_cmp_ge_u32 s{sreg}, {self.NST}')
        c(f's_cselect_b32 s{sreg}, s{stmp}, s{sreg}')
        c(f's_mul_i32 s{sreg}, s{sreg}, {mul}')

    def dma_setup(self, t0):
        k, vb, sb = self.k, self.vb, self.sb
        tile35(k, 61, 60, sb)
        self.set_rho(60)
        k('s_mul_i32 s60, s60, 160')
        k(f's_mul_i32 s{sb+1}, s{S_W4}, {(self.KT//4)*1280}')
        k(f's_add_u32 s60, s60, s{sb+1}')
        for n in range(5):
            k(f'v_add_u32 v{t0}, {64*n}, v1')
            k(f'v_mul_u32_u24 v{t0+1}, 6554, v{t0}')
            k(f'v_lshrrev_b32 v{t0+1}, 16, v{t0+1}')
            k(f'v_mul_u32_u24 v{t0+2}, 10, v{t0+1}')
            k(f'v_sub_u32 v{t0+2}, v{t0}, v{t0+2}')
            k(f'v_bfe_u32 v{t0+3}, v{t0+1}, 3, 1')
            k(f'v_lshlrev_b32 v{t0+3}, 2, v{t0+3}')
            k(f'v_xor_b32 v{t0+1}, v{t0+1}, v{t0+3}')
            k(f'v_mul_u32_u24 v{t0+1}, 1280, v{t0+1}')
            k(f'v_lshl_add_u32 v{vb+n}, v{t0+2}, 4, v{t0+1}')
            k(f'v_add_u32 v{vb+n}, s60, v{vb+n}')
            if 0 < n < 4:
                k(f'v_subrev_u32 v{vb+n}, {n*1024}, v{vb+n}')
        k(f's_mul_i32 s{sb}, s{S_W4}, 5120')

    def dma_step(self, st):
        k, vb, sb = self.k, self.vb, self.sb
        base = self.groups[st % len(self.groups)]
        SB = self.SB
        ops = []

        def f0():
            k(f's_add_u32 m0, s{sb}, {base}')
            self.rot(k, st, sb + 1, 38, 32 * 1280)
        ops.append(f0)
        for n in range(4):
            ops.append(lambda n=n: self.btok.__setitem__(st, k(
                f'buffer_load_dwordx4 v{vb+n}, s[{SB}:{SB+3}], s{sb+1} offen offset:{n*1024} lds')))
        ops.append(lambda: k(f's_add_u32 m0, s{sb}, {base+4096}'))
        ops.append(lambda: self.btok.__setitem__(st, k(
            f'buffer_load_dwordx4 v{vb+4}, s[{SB}:{SB+3}], s{sb+1} offen lds')))
        return ops

    def breg_load(self, st, r0):
        k, vb, sb, SB = self.k, self.vb, self.sb, self.SB
        self.rot(k, st, sb + 1, 38, 32 * 1280)
        for n in range(4):
            k(f'buffer_load_dwordx4 {v(r0+4*n,4)}, v{vb+n}, s[{SB}:{SB+3}], s{sb+1} offen offset:{n*1024}')
            if OPT.get('pace', 0):
                k(f's_sleep {OPT.get("pace")}')
        self.rtok[st] = (k(f'buffer_load_dwordx4 {v(r0+16,4)}, v{vb+4}, s[{SB}:{SB+3}], s{sb+1} offen'), r0)

    def breg_write(self, st, va):
        k = self.k
        tok, r0 = self.rtok[st]
        base = self.groups[st % len(self.groups)]
        q, so = base // 61440, base % 61440
        k.wait(tok)
        for n in range(5):
            self.btok[st] = k(f'ds_write_b128 v{va+q}, {v(r0+4*n,4)} offset:{so+n*1024}')

    def loader(self, nb_pre, st0=0):
        k, NST = self.k, self.NST
        NG = len(self.groups)
        k('v_lshlrev_b32 v12, 4, v1')
        k(f's_mul_i32 s46, s{S_W4}, 5120')
        k('v_add_u32 v21, s46, v12')
        k('v_add_u32 v22, 61440, v21')
        k('v_add_u32 v23, 122880, v21')
        stamp(k, st0)
        k.wait(*[self.btok[s_] for s_ in range(7)])
        k('s_barrier')

        def put(nb):
            if nb in self.rtok:
                self.breg_write(nb, 21)
            else:
                runall(k, self.dma_step(nb))
        k('s_barrier')
        for nb in (7, 8, 9):
            put(nb)
        k('s_barrier')
        put(11)
        put(10)
        k.wait(self.btok[7], self.btok[8])
        k('s_barrier')
        k.wait(self.btok[9], self.btok[10])
        k('s_barrier')
        k.wait(self.btok[11])
        k('s_barrier')
        stamp(k, st0 + 3)

    def compute(self, own_tok, st0=0):
        k, NST, which, KT = self.k, self.NST, self.which, self.KT
        NG = len(self.groups)
        ABASE = WS_OC if which == 3 else WS_HC
        S_RT, S_CT, S_PAR = 44, 45, 50
        tile35(k, 44, 45, 46)
        self.set_rho(45)
        k('s_mov_b32 s50, 0')
        k(f's_mul_i32 s51, s{S_W4}, 5120')
        k('v_and_b32 v15, 15, v1')
        k('v_lshrrev_b32 v16, 4, v1')
        k('v_bfe_u32 v17, v1, 2, 2')
        k('v_lshl_add_u32 v18, v16, 3, v17')
        k('v_bfe_u32 v20, v1, 4, 1')
        k('v_lshlrev_b32 v20, 2, v20')
        k('v_xor_b32 v19, v18, v20')
        k('v_xor_b32 v22, 4, v19')
        k('v_and_b32 v21, 3, v1')
        RA = 24
        for hf, src in ((0, 19), (1, 22)):
            k(f'v_mul_u32_u24 v{RA+hf}, 160, v{src}')
            k(f'v_lshl_add_u32 v{RA+hf}, v21, 3, v{RA+hf}')
            k(f'v_add_u32 v{RA+hf}, s51, v{RA+hf}')
        QS = 61440
        for q in (1, 2):
            for i in range(2):
                k(f'v_add_u32 v{RA+2*q+i}, {q*QS}, v{RA+i}')
        k('v_lshlrev_b32 v2, 4, v1')
        k('v_lshlrev_b32 v3, 4, v15')
        k('v_lshl_add_u32 v3, v16, 15, v3')
        for tau in range(4):
            k(f's_add_u32 s46, s{S_W4}, {tau}')
            k('s_and_b32 s46, s46, 3')
            k('s_lshl_b32 s46, s46, 8')
            k(f'v_add_u32 v{4+tau}, s46, v3')
        k('s_lshl_b32 s53, s44, 10')
        k(f's_mul_i32 s54, s{S_W4}, {(KT//32)*32768}')
        k('s_add_u32 s53, s53, s54')
        k(f's_add_u32 s53, s53, {ABASE}')
        NW = 5
        AFR = 164
        atok = {}

        def aload(c, st, sreg):
            self.rot(c, st, sreg, 38, 4 * 32768)
            c(f's_add_u32 s{sreg}, s{sreg}, s53')
            t_ = None
            for t in range(4):
                t_ = c(f'buffer_load_dwordx4 {v(AFR+16*(st%NW)+4*t,4)}, v{4+t}, {WSR}, s{sreg} offen sc1')
            return t_
        RES = 244
        XG = [0, 20480, 40960] if which == 3 else [0, 20480, 49152]
        k('v_add_u32 v30, s51, v2')
        for tau in range(1, 4):
            k(f's_sub_u32 s47, s{S_W4}, {tau}')
            k('s_and_b32 s47, s47, 3')
            k('s_mul_i32 s47, s47, 5120')
            k(f'v_add_u32 v{30+tau}, s47, v2')
        k(f's_lshl_b32 s46, s{S_RT}, 6')
        k(f's_lshl_b32 s47, s{S_W4}, 4')
        k('s_add_u32 s46, s46, s47')
        S_TK = 46
        k('v_add_u32 v12, s46, v15')
        if which == 3:
            k('v_lshlrev_b32 v34, 4, v12')
            k('v_lshrrev_b32 v14, 1, v16')
            k('v_lshl_add_u32 v35, v14, 15, v34')
            k('v_and_b32 v14, 1, v16')
            k('v_lshl_add_u32 v36, v14, 16, v35')
            k('v_lshl_add_u32 v34, v14, 3, v35')
            k('v_lshlrev_b32 v37, 3, v12')
            k('v_mov_b32 v38, 0x3f803f80')
        else:
            P = 176
            k(f'v_mul_u32_u24 v34, {P}, v15')
            k('v_lshl_add_u32 v34, v16, 3, v34')
            k(f's_lshl_b32 s47, s{S_W4}, 12')
            k('s_add_u32 s47, s47, 90112')
            k('v_add_u32 v34, s47, v34')
            for it in range(3):
                k(f'v_add_u32 v17, {64*it}, v1')
                k('v_mul_u32_u24 v18, 6554, v17')
                k('v_lshrrev_b32 v18, 16, v18')
                k('v_mul_u32_u24 v19, 10, v18')
                k('v_sub_u32 v19, v17, v19')
                k(f'v_mul_u32_u24 v20, {P}, v18')
                k('v_lshl_add_u32 v20, v19, 4, v20')
                k(f'v_add_u32 v{35+it}, s47, v20')
                k('v_mul_u32_u24 v20, 1280, v18')
                k(f'v_lshl_add_u32 v{38+it}, v19, 4, v20')
        if which == 3:
            k('v_mul_u32_u24 v13, 1280, v12')
            k('v_lshl_add_u32 v13, v16, 3, v13')
            k(f's_mul_i32 s47, s{S_CT}, 160')
            k(f's_lshl_b32 s48, s{S_PAR}, 5')
            k('s_add_u32 s48, s48, s47')
            k(f's_lshl_b32 s49, s{S_PAR}, 7')
            k('s_sub_u32 s49, 128, s49')
            k('s_add_u32 s49, s49, s47')
            for jt in range(4):
                k(f'buffer_load_dwordx2 {v(RES+2*jt,2)}, v13, s[{S_X}:{S_X+3}], s48 offen offset:{jt*32}')
            rtk = k(f'buffer_load_dwordx2 {v(RES+8,2)}, v13, s[{S_X}:{S_X+3}], s49 offen')
            k('v_bfe_u32 v10, v1, 1, 2')
            k(f'v_mul_u32_u24 v10, {5*32768}, v10')
            k('v_and_b32 v11, 1, v1')
            k('v_lshl_add_u32 v10, v11, 3, v10')
            k('v_bfe_u32 v11, v1, 3, 1')
            k('v_lshl_add_u32 v10, v11, 9, v10')
            k(f's_add_u32 s55, s53, {2*32768 + 31*16}')
            tile4(k, 48, 49, 47)
            k('s_lshl_b32 s48, s48, 4')
            k('s_add_u32 s49, s49, s48')
            stamp(k, st0 - 1)
            k('s_barrier')
            rflag_store(k, WS_F3, 49, 8, 9)
            stamp(k, st0)
            if OPT.get('odelay', 0):
                k(f's_sleep {OPT.get("odelay")}')
            if OPT.get('probe', 0) & 1:
                probe(k, 55, 10, 11)
        else:
            stamp(k, st0)
            k.wait(own_tok)
            if OPT.get('Hdelay', 0):
                k(f's_sleep {OPT.get("Hdelay")}')
            if OPT.get('probe', 0) & 4:
                k('v_and_b32 v10, 3, v1')
                k(f'v_mul_u32_u24 v10, {12*32768}, v10')
                k('v_bfe_u32 v11, v1, 2, 1')
                k('v_lshl_add_u32 v10, v11, 9, v10')
                k(f's_add_u32 s55, s53, {11*32768 + 31*16}')
                probe(k, 55, 10, 11)
        stamp(k, st0 + 1)
        ACC, WF = 44, 124
        D = OPT.get('ad', 1)
        for st in range(D):
            atok[st] = aload(k, st, 54)
        rt = {}

        def reads(st):
            base = self.groups[st % NG]
            q, so = base // QS, base % QS
            b = st % 2
            ops = []
            for jt in range(5):
                for hf in range(2):
                    ops.append(lambda jt=jt, hf=hf: rt.__setitem__((st, jt), k(
                        f'ds_read_b64_tr_b16 {v(WF+20*b+4*jt+2*hf,2)}, v{RA+2*q+hf} offset:{so+jt*32}')))
            return ops
        if which == 5:
            k('s_barrier')
        runall(k, reads(0))
        if which == 3:
            k.wait(rtk)
        for i in range(10):
            k(f'v_lshlrev_b32 v{ACC+2*i}, 16, v{RES+i}')
            k(f'v_and_b32 v{ACC+2*i+1}, 0xffff0000, v{RES+i}')
        na = D
        for st in range(NST):
            b = st % 2
            R0 = AFR + 16 * (st % NW)
            if which == 5 and OPT.get('p5st') and st >= 1:
                stamp(k, 12 + st)
            k.wait(atok[st])
            hi = na if OPT.get('rall', 1) else st + 1
            check_group(k, range(R0, R0 + 16), 14, lambda c, st=st, hi=hi: [aload(c, s_, 58) for s_ in range(st, hi)],
                        pre=(st >= 2))
            if st == 0:
                stamp(k, st0 + 2)
            if which == 5 and OPT.get('p5st') and st >= 1:
                stamp(k, st)
            mf = []
            for t in ((1, 2, 3, 0) if st == NST - 1 else range(4)):
                for jt in range(5):
                    acc = v(ACC + 20 * t + 4 * jt, 4)
                    c = '0' if (st == 0 and t != 0) else acc
                    mf.append((lambda jt=jt: [rt[st, jt]],
                               f'v_mfma_f32_16x16x32_bf16 {acc}, {v(WF+20*b+4*jt,4)}, {v(R0+4*t,4)}, {c}'))
            rds = [[] for _ in range(20)]
            cnt = 0
            while na < NST and na <= st + NW - 1 and cnt < 2:
                def al(na=na):
                    self.rot(k, na, 54, 38, 4 * 32768)
                    k('s_add_u32 s54, s54, s53')
                rds[0 + 10 * cnt].append(al)
                for t in range(4):
                    rds[0 + 10 * cnt + 2 * t].append(lambda t=t, na=na: atok.__setitem__(na, k(
                        f'buffer_load_dwordx4 {v(AFR+16*(na%NW)+4*t,4)}, v{4+t}, {WSR}, s54 offen sc1')))
                na += 1
                cnt += 1
            if st + 1 < NST:
                if which == 5 and st in P5_BAR:
                    def bar():
                        k.wait_all(vm=False)
                        k('s_barrier')
                    rds[5].append(bar)
                for i, f in enumerate(reads(st + 1)):
                    rds[5 + i].append(f)
            if 1 <= st < NST - 1:
                R1 = AFR + 16 * ((st + 1) % NW)
                rds[15].append(lambda st=st: k.wait(atok[st + 1]))
                for i_, o_ in enumerate(maxchain_ops(range(R1, R1 + 16), 14)):
                    rds[15 + i_ // 2].append(o_)
            if st == NST - 1:
                for tau in range(1, 3):
                    for jt in range(5):
                        rds[5 * tau + 4 + jt if tau == 1 else 14 + jt].append(
                            f'ds_write_b128 v30, {v(ACC+20*tau+4*jt,4)} offset:{XG[tau-1]+jt*1024}')
            roll_step(k, mf, rds, [])
        stamp(k, st0 + 3)
        for jt in range(5):
            k(f'ds_write_b128 v30, {v(ACC+60+4*jt,4)} offset:{XG[2]+jt*1024}')
        if which == 3:
            k(f's_mul_i32 s48, s{S_CT}, 10')
            k('s_lshl_b32 s48, s48, 15')
            k(f's_add_u32 s48, s48, {WS_H1}')
            k(f's_lshl_b32 s49, s{S_CT}, 14')
            k(f's_add_u32 s49, s49, {WS_HS}')
            k('v_mov_b32 v40, 0')
            k('v_mov_b32 v41, 0')
        else:
            k(f's_mul_i32 s48, s{S_CT}, 160')
            k(f's_mul_i32 s49, s{S_TK}, 1280')
            k('s_add_u32 s48, s48, s49')
        k.wait_all(vm=False)
        k('s_barrier')
        S0, S1 = ACC, 124
        toks = {}
        for jt in range(5):
            for sidx in range(3):
                toks[sidx, jt] = k(f'ds_read_b128 {v(S1+20*sidx+4*jt,4)}, v{31+sidx} offset:{XG[sidx]+jt*1024}')
        PK = RES if which == 3 else 190
        for jt in range(5):
            k.wait(toks[2, jt])
            for p in range(2):
                r = 4 * jt + 2 * p
                k(f'v_pk_add_f32 {v(S1+r,2)}, {v(S1+r,2)}, {v(S1+20+r,2)}')
                k(f'v_pk_add_f32 {v(S0+r,2)}, {v(S0+r,2)}, {v(S1+40+r,2)}')
            for p in range(2):
                r = 4 * jt + 2 * p
                k(f'v_pk_add_f32 {v(S0+r,2)}, {v(S0+r,2)}, {v(S1+r,2)}')
            for p in range(2):
                r = 4 * jt + 2 * p
                k(f'v_cvt_pk_bf16_f32 v{PK+2*jt+p}, v{S0+r}, v{S0+r+1}')
            if which == 3:
                if jt < 4:
                    for p in range(2):
                        k(f'v_mov_b32 v{200+2*jt+p}, v{PK+2*jt+p}')
                if jt in (1, 3):
                    pr = jt // 2
                    for d in range(2):
                        k(f'v_permlane16_swap_b32 v{200+4*pr+d}, v{200+4*pr+2+d}')
                    k(f's_add_u32 s47, s48, {pr*4*32768}')
                    k(f'buffer_store_dwordx4 {v(200+4*pr,4)}, v36, {WSR}, s47 offen sc1')
                if jt == 4:
                    k(f's_add_u32 s47, s48, {8*32768}')
                    k(f'buffer_store_dwordx2 {v(PK+8,2)}, v34, {WSR}, s47 offen sc1')
            else:
                k(f'ds_write_b64 v34, {v(PK+2*jt,2)} offset:{jt*32}')
        stamp(k, st0 + 4)
        if which == 3:
            for i in range(10):
                k(f'v_dot2_f32_bf16 v40, v{PK+i}, v38, v40')
                k(f'v_dot2_f32_bf16 v41, v{PK+i}, v{PK+i}, v41')
            for r in (40, 41):
                xsum(k, r, 156, 157, 32)
                xsum(k, r, 156, 157, 16)
            k('s_mov_b64 exec, 0xffff')
            self.own = k(f'buffer_store_dwordx2 {v(40,2)}, v37, {WSR}, s49 offen sc1')
            k('s_mov_b64 exec, -1')
            k('s_barrier')
        else:
            k.wait_all(vm=False)
            tl = [k(f'ds_read_b128 {v(168+4*it,4)}, v{35+it}') for it in range(3)]
            for it in range(3):
                k.wait(tl[it])
                if it == 2:
                    k('v_cmp_gt_u32 vcc, 32, v1')
                    k('s_mov_b64 exec, vcc')
                k(f'buffer_store_dwordx4 {v(168+4*it,4)}, v{38+it}, s[{S_OUT}:{S_OUT+3}], s48 offen' + {0: ' sc1', 1: '', 2: ' nt', 3: ' sc0 sc1'}[OPT.get('outm', 2)])
            k('s_mov_b64 exec, -1')


def p2_setup(k):
    LK, LV = 102400, 122880
    k(f's_and_b32 s45, s{S_I32}, 3')
    k(f's_lshl_b32 s44, s{S_X8}, 2')
    k('s_add_u32 s45, s45, s44')
    k(f's_lshr_b32 s44, s{S_I32}, 2')
    S_I, S_H = 44, 45
    k(f's_lshl_b32 s46, s{S_I}, 8')
    k('s_sub_u32 s47, s46, 256')
    k('s_max_i32 s47, s47, 0')
    k(f's_cmp_lt_u32 s{S_W4}, 2')
    k('s_cselect_b32 s48, s47, s46')
    k('s_mov_b32 s50, s48')
    k(f's_and_b32 s49, s{S_W4}, 1')
    k('s_lshl_b32 s49, s49, 7')
    k('s_add_u32 s48, s48, s49')
    k('s_lshl_b32 s48, s48, 3')
    k(f's_mul_i32 s49, s{S_H}, {5*16384}')
    k('s_add_u32 s48, s48, s49')
    k(f's_add_u32 s48, s48, {WS_KG}')
    k('v_lshlrev_b32 v2, 4, v1')
    k('s_lshr_b32 s50, s50, 3')
    k('s_mul_i32 s50, s50, 10240')
    k(f's_mul_i32 s49, s{S_H}, 320')
    k('s_add_u32 s50, s50, s49')
    k(f's_add_u32 s50, s50, {WS_VF}')
    k(f's_cmp_lt_u32 s{S_W}, 4')
    k('s_cselect_b32 s48, s48, s50')
    k('s_cselect_b64 s[96:97], -1, 0')
    k(f's_lshl_b32 s49, s{S_W4}, 10')
    k(f's_add_u32 s49, s49, {LK}')
    k(f's_mul_i32 s50, s{S_W4}, 5120')
    k(f's_add_u32 s50, s50, {LV}')
    k(f's_cmp_lt_u32 s{S_W}, 4')
    k('s_cselect_b32 s50, s49, s50')
    k('s_movk_i32 s56, 1024')
    k('s_cselect_b32 s56, 4096, s56')
    k(f's_and_b32 s49, s{S_W4}, 1')
    k('s_mul_i32 s49, s49, 320')
    for n in range(5):
        k(f'v_add_u32 v3, {n*64}, v1')
        k('v_add_u32 v3, s49, v3')
        k('v_mul_u32_u24 v4, 3277, v3')
        k('v_lshrrev_b32 v4, 16, v4')
        k('v_mul_u32_u24 v5, 20, v4')
        k('v_sub_u32 v5, v3, v5')
        k('v_mul_u32_u24 v4, 10240, v4')
        k(f'v_lshl_add_u32 v4, v5, 4, v4')
        k(f'v_add_u32 v5, {n*16384}, v2')
        k(f'v_cndmask_b32 v{6+n}, v4, v5, s[96:97]')
    k('v_and_b32 v12, 31, v1')
    k('v_lshrrev_b32 v13, 5, v1')
    k('v_lshlrev_b32 v14, 3, v12')
    k('v_lshl_add_u32 v15, v13, 15, v14')
    k(f's_lshl_b32 s51, s{S_W}, 5')
    k('s_add_u32 s51, s51, s46')
    S_Q0 = 51
    k('s_lshl_b32 s52, s51, 3')
    k(f's_mul_i32 s49, s{S_H}, {5*16384}')
    k('s_add_u32 s52, s52, s49')
    k(f's_add_u32 s52, s52, {WS_QG}')
    k('s_add_u32 s53, s52, 16384')
    k(f's_add_u32 s54, s52, {4*16384}')
    PM, NM, ONE, QF, KV, OACC, SB0 = 24, 32, 36, 40, 48, 72, 88
    k('v_lshlrev_b32 v3, 2, v13')
    for i in range(16):
        a_, b_ = i // 4, i % 4
        k(f'v_add_u32 v4, {8*a_+b_}, v3')
        k(f'v_cmp_le_u32 s[{64+2*i}:{65+2*i}], v4, v12')
    k('v_mov_b32 v5, 0xffff')
    k('v_mov_b32 v11, 0xffff0000')
    for p in range(8):
        k(f'v_cndmask_b32 v3, 0, v5, s[{64+4*p}:{65+4*p}]')
        k(f'v_cndmask_b32 v4, 0, v11, s[{66+4*p}:{67+4*p}]')
        k(f'v_or_b32 v{PM+p}, v3, v4')
    k('v_cmp_eq_u32 s[96:97], 1, v13')
    k('v_cmp_gt_u32 s[98:99], 20, v12')
    k('v_cmp_eq_u32 s[100:101], 0, v13')
    k(f's_lshl_b32 s49, s{S_W}, 8')
    k(f's_add_u32 s49, s49, {LK}')
    k('v_lshl_add_u32 v16, v13, 13, v14')
    k('v_add_u32 v16, s49, v16')
    k('v_add_u32 v17, s49, v14')
    k(f's_and_b32 s55, s{S_H}, 1')
    S_PI = 55
    k('v_bfe_u32 v3, v12, 3, 1')
    k('v_bfe_u32 v4, v12, 2, 1')
    k('v_and_b32 v5, 3, v12')
    k('v_lshl_add_u32 v18, v3, 2, v5')
    k('v_lshl_add_u32 v18, v4, 3, v18')
    k('s_lshl_b32 s49, s55, 2')
    k('v_add_u32 v18, s49, v18')
    k('s_lshl_b32 s49, s55, 4')
    k('s_sub_u32 s49, 16, s49')
    k('v_add_u32 v19, s49, v5')
    k('v_cmp_gt_u32 vcc, 16, v12')
    k('v_cndmask_b32 v18, v19, v18, vcc')
    k('v_mul_u32_u24 v19, 320, v13')
    k('v_lshl_add_u32 v18, v18, 4, v19')
    k(f's_mul_i32 s49, s{S_W}, 1280')
    k(f's_add_u32 s49, s49, {LV}')
    k('v_add_u32 v18, s49, v18')
    k('v_mov_b32 v19, 0')
    k('v_mov_b32 v4, 0x3f803f80')
    k('v_cmp_eq_u32 vcc, 20, v12')
    k('v_cndmask_b32 v19, v19, v4, vcc')
    k('v_cmp_eq_u32 vcc, 24, v12')
    k('v_cndmask_b32 v19, v19, v4, vcc')
    for b in range(3):
        k(f'v_mov_b32 v{KV+8*b+6}, 0')
        k(f'v_mov_b32 v{KV+8*b+7}, 0')
    k(f'v_mov_b32 v{QF+6}, 0')
    k(f'v_mov_b32 v{QF+7}, 0')
    k(f'v_cndmask_b32 v{ONE}, v4, 0, s[96:97]')
    for i in range(1, 4):
        k(f'v_mov_b32 v{ONE+i}, 0')
        k(f'v_mov_b32 v{NM+i}, 0')
    k('v_and_b32 v3, 15, v1')
    k(f's_mul_i32 s49, s{S_H}, 20')
    k('s_mov_b64 s[46:47], 0')
    for base, isq in ((0, True), (640, False), (1280, False)):
        for e in (0, 19):
            k(f's_add_u32 s60, s49, {base+e}')
            k('s_lshr_b32 s60, s60, 7')
            k('v_cmp_eq_u32 vcc, s60, v3')
            if isq:
                k('s_and_b64 vcc, vcc, s[96:97]')
            k('s_or_b64 s[46:47], s[46:47], vcc')
    k(f's_cmp_eq_u32 s{S_I}, 0')
    k('s_cselect_b32 s46, 0, s46')
    k(f's_lshl_b32 s49, s{S_I}, 7')
    k(f's_lshl_b32 s60, s{S_X8}, 10')
    k('s_add_u32 s49, s49, s60')
    k(f's_add_u32 s49, s49, {WS_F2 - 128}')
    k('v_lshlrev_b32 v3, 2, v1')


def emit_p2(k, g3):
    LK, LV = 102400, 122880
    S_I, S_H, S_Q0, S_PI = 44, 45, 51, 55
    PM, NM, ONE, QF, KV, OACC, SB0 = 24, 32, 36, 40, 48, 72, 88
    wflag_poll(k, 49, 3, 4, 46, 1, True)
    k('s_barrier')
    stamp(k, 12)
    def kvdma():
        k('s_mov_b32 m0, s50')
        for n in range(5):
            if n:
                k('s_add_u32 m0, m0, s56')
            k.raw(f'    s_nop 0')
            k.raw(f'    buffer_load_dwordx4 v{6+n}, {WSR}, s48 offen sc1 lds')
    k(f's_cmp_lt_u32 s{S_W}, 4')
    k.outline('s_cbranch_scc1', kvdma)
    k(f'buffer_load_dwordx2 {v(QF,2)}, v15, {WSR}, s52 offen sc1')
    k(f'buffer_load_dwordx2 {v(QF+2,2)}, v15, {WSR}, s53 offen sc1')
    qt = k(f'buffer_load_dwordx2 {v(QF+4,2)}, v14, {WSR}, s54 offen sc1')
    k.wait(qt)
    k(f's_cmp_ge_u32 s{S_W}, 4')
    k.outline('s_cbranch_scc1', kvdma)
    k(f'v_cndmask_b32 v{QF+4}, v{QF+4}, 0, s[96:97]')
    k(f'v_cndmask_b32 v{QF+5}, v{QF+5}, 0, s[96:97]')
    k('s_barrier')
    if OPT.get('prio', 0):
        k(f's_cmp_ge_u32 s{S_W}, 4')
        k.outline('s_cbranch_scc1', lambda: k('s_setprio 1'))
    stamp(k, 13)
    hc = []

    def hc0():
        for i in range(4):
            k(f'v_mov_b32 v{244+i}, -1')
        tile4(k, 60, 61, 56)
        k('s_mul_i32 s61, s61, 12')
        k('s_lshl_b32 s61, s61, 15')
        k('s_lshl_b32 s60, s60, 11')
        k('s_add_u32 s56, s61, s60')
        k(f's_add_u32 s56, s56, {WS_HC}')

    def hcn(n):
        def f():
            k(f's_mul_i32 s60, s{S_W}, 3')
            k(f's_add_u32 s60, s60, {n}')
            k('s_and_b32 s61, s60, 1')
            k('s_lshl_b32 s61, s61, 10')
            k('s_lshr_b32 s60, s60, 1')
            k('s_lshl_b32 s60, s60, 15')
            k('s_add_u32 s60, s60, s61')
            k('s_add_u32 s60, s60, s56')
            k(f'buffer_store_dwordx4 {v(244,4)}, v2, {WSR}, s60 offen sc1')
        return f
    T2 = {}

    def wg_():
        k(f's_cmp_lt_u32 s{S_W}, 4')
        k.outline('s_cbranch_scc1', lambda: pf_wgu(k, 238, 239))
    sside = [hc0, hcn(0), hcn(1), hcn(2)]
    if OPT.get('wgu', 2) == 2:
        sside.append(wg_)
    pf = [lambda: T2.__setitem__('f', flags_issue(k, WS_F2, 240, 237))]

    def slot(i):
        return SB0 + 16 * i
    krd = {}

    def kreads(j):
        b = j % 3
        krd[j] = [k(f'ds_read_b64 {v(KV+8*b,2)}, v16 offset:{j*256}'),
                  k(f'ds_read_b64 {v(KV+8*b+2,2)}, v16 offset:{4096+j*256}'),
                  k(f'ds_read_b64 {v(KV+8*b+4,2)}, v17 offset:{16384+j*256}')]
    kreads(0)
    kreads(1)
    for j in range(9):
        b = j % 3
        d = v(slot(j), 16)
        k.wait(*krd[j])
        k(f'v_mfma_f32_32x32x16_bf16 {d}, {v(KV+8*b,4)}, {v(QF,4)}, 0')
        if j + 2 < 9:
            kreads(j + 2)
        k(f'v_mfma_f32_32x32x16_bf16 {d}, {v(KV+8*b+4,4)}, {v(QF+4,4)}, {d}')
        if sside:
            sside.pop(0)()
    def lbar():
        k.raw('    s_waitcnt vmcnt(3)')
        k('s_barrier')
    k(f's_cmp_ge_u32 s{S_W}, 4')
    k.outline('s_cbranch_scc1', lbar)
    stamp(k, 14)
    lab = k.newlabel('P2_FIX')
    k(f's_cmp_lg_u32 s{S_I}, 0')
    k(f's_cbranch_scc1 {lab}')
    for jj in range(8):
        k(f's_cmp_ge_u32 s{S_W}, {8-jj}')
        k(f's_cbranch_scc1 {lab}')
        for i in range(16):
            k(f'v_mov_b32 v{slot(jj)+i}, {f32(-1e30)}')
    k.label(lab)
    for i in range(16):
        k(f'v_mov_b32 v{KV+i}, v19')
    M0, M1 = 20, 21
    ops = []
    regs = [slot(jj) + i for jj in (1, 2, 3, 4, 5, 6, 7, 0) for i in range(16)]
    for i in range(16):
        ops.append(f'v_cndmask_b32 v{slot(0)+i}, v{slot(0)+i}, v{slot(8)+i}, s[{64+2*i}:{65+2*i}]')
    ops += [f'v_max3_f32 v{M0}, v{regs[0]}, v{regs[1]}, v{regs[2]}',
            f'v_max3_f32 v{M1}, v{regs[3]}, v{regs[4]}, v{regs[5]}']
    i, t = 6, 0
    while i < 128:
        m = M0 if t % 2 == 0 else M1
        ops.append(f'v_max3_f32 v{m}, v{m}, v{regs[i]}, v{regs[i+1]}')
        i += 2
        t += 1
    ops += [f'v_max_f32 v{M0}, v{M0}, v{M1}',
            f'v_mov_b32 v{M1}, v{M0}',
            f'v_permlane32_swap_b32 v{M0}, v{M1}',
            f'v_max_f32 v{M0}, v{M0}, v{M1}',
            f'v_sub_f32 v{M0}, 0, v{M0}',
            f'v_cvt_pk_bf16_f32 v{M1}, v{M0}, v{M0}',
            f'v_lshlrev_b32 v{M1}, 16, v{M1}',
            f'v_sub_f32 v{M1}, v{M0}, v{M1}',
            f'v_cvt_pk_bf16_f32 v{NM}, v{M0}, v{M1}',
            f'v_cndmask_b32 v{NM}, v{NM}, 0, s[96:97]']
    spread(k, ops, pf[:2])
    pf = pf[2:]
    k(f's_cmp_lt_u32 s{S_W}, 4')
    k.outline('s_cbranch_scc1', lambda: k('s_barrier'))
    stamp(k, 15)
    vrd = {}
    nbuf = [0]

    def vreads(jkey):
        toks, bufs = [], []
        k('s_mov_b64 exec, s[98:99]')
        for m in range(2):
            bi = nbuf[0] % 4
            nbuf[0] += 1
            bufs.append(bi)
            toks.append(k(f'ds_read_b128 {v(KV+4*bi,4)}, v18 offset:{jkey*1280+m*640}'))
        k('s_mov_b64 exec, -1')
        vrd[jkey] = (toks, bufs)
    first = [True]
    oacc = v(OACC, 16)

    def pv_ops(jkey, preg):
        o = []
        for m in range(2):
            def f(m=m):
                toks, bufs = vrd[jkey]
                k.wait(toks[m])
                c = '0' if first[0] else oacc
                first[0] = False
                k(f'v_mfma_f32_32x32x16_bf16 {oacc}, {v(KV+4*bufs[m],4)}, {v(preg+4*m,4)}, {c}')
            o.append(f)
        return o

    def sub_op(jb):
        d = v(slot(jb), 16)
        return f'v_mfma_f32_32x32x16_bf16 {d}, {v(ONE,4)}, {v(NM,4)}, {d}'
    order = [1, 2, 3, 4, 5, 6, 7, 0]
    k(sub_op(order[0]))
    k(sub_op(order[1]))
    vreads(order[0])
    for n, jb in enumerate(order):
        base = slot(jb)
        val = [f'v_exp_f32 v{base+i}, v{base+i}' for i in range(16)]
        val += [f'v_cvt_pk_bf16_f32 v{base+p}, v{base+2*p}, v{base+2*p+1}' for p in range(8)]
        if jb == 0:
            val += [f'v_and_b32 v{base+8+p}, v{PM+p}, v{base+p}' for p in range(8)]
            val += [f'v_bfi_b32 v{base+p}, v{PM+p}, 0, v{base+p}' for p in range(8)]
        side = []
        if n >= 1:
            side += pv_ops(order[n - 1], slot(order[n - 1]))
        nxt = order[n + 1] if n + 1 < 8 else 8
        side.append(lambda nxt=nxt: vreads(nxt))
        if n + 2 < 8:
            side.append(sub_op(order[n + 2]))
        if pf:
            side.append(pf.pop(0))
        if hc and (n % 2 == 1 or OPT.get('wgulate')):
            side.insert(1, hc.pop(0))
        if OPT.get('wgulate') and pf:
            side.append(pf.pop(0))
        spread(k, val, side)
    tail = pv_ops(0, slot(0)) + pv_ops(8, slot(0) + 8)
    addr = [f's_lshr_b32 s49, s{S_H}, 1', 's_mul_i32 s49, s49, 5', f's_mul_i32 s52, s{S_PI}, 3',
            's_add_u32 s52, s52, s49', 's_lshl_b32 s52, s52, 15', f's_add_u32 s52, s52, {WS_OC}',
            f's_lshl_b32 s53, s{S_Q0}, 4', 's_add_u32 s52, s52, s53', 's_add_u32 s54, s49, 2',
            's_lshl_b32 s54, s54, 15', f's_add_u32 s54, s54, {WS_OC}', 's_add_u32 s54, s54, s53',
            f's_lshl_b32 s49, s{S_PI}, 3', 's_add_u32 s54, s54, s49', 'v_lshlrev_b32 v22, 4, v12',
            'v_lshl_add_u32 v23, v13, 15, v22']
    ftok = T2['f']
    spread(k, addr, tail)
    stamp(k, 18)
    T = OACC
    k(f'v_cndmask_b32 v{T+13}, v{T+12}, v{T+8}, s[96:97]')
    k(f'v_rcp_f32 v{T+14}, v{T+13}')
    for p in range(6):
        k(f'v_pk_mul_f32 {v(T+2*p,2)}, {v(T+2*p,2)}, {v(T+14,2)} op_sel_hi:[1,0]')
    for p in range(6):
        k(f'v_cvt_pk_bf16_f32 v{104+p}, v{T+2*p}, v{T+2*p+1}')
    k(f'buffer_store_dwordx4 {v(104,4)}, v23, {WSR}, s52 offen sc1')
    k('s_mov_b64 exec, s[100:101]')
    own = k(f'buffer_store_dwordx2 {v(108,2)}, v22, {WSR}, s54 offen sc1')
    k('s_mov_b64 exec, -1')
    k.wait_all(vm=False)
    k('s_setprio 0')
    flags_check(k, WS_F2, 240, 237, ftok)
    return own


class P4:
    BS = [102400, 126976, 0, 24576, 49152, 73728]

    def __init__(self, k):
        self.k = k
        self.stok = {}
        self.rtok = {}
        self.VB = 2

    def setup_dma(self, t0):
        k = self.k
        VB = self.VB
        tile4(k, 61, 60, 68)
        k('s_mul_i32 s76, s60, %d' % OPT.get('rot4', 3))
        k('s_add_u32 s76, s76, s61')
        k('s_mul_i32 s77, s76, 6554')
        k('s_lshr_b32 s77, s77, 16')
        k('s_mul_i32 s77, s77, 10')
        k('s_sub_u32 s76, s76, s77')
        k(f's_cmp_lt_u32 s{S_W4}, 2')
        k(f's_cselect_b32 s64, s{S_WG}, s{S_WU}')
        k(f's_cselect_b32 s65, s{S_WG+1}, s{S_WU+1}')
        k('s_mov_b32 s66, 1966080')
        k('s_mov_b32 s67, 0x00020000')
        k(f's_and_b32 s61, s{S_W4}, 1')
        k(f's_mul_i32 s61, s61, {32*3072}')
        k('s_mul_i32 s60, s60, 192')
        k('s_add_u32 s60, s60, s61')
        for n in range(3):
            k(f'v_add_u32 v{t0}, {n*64}, v1')
            k(f'v_mul_u32_u24 v{t0+1}, 5462, v{t0}')
            k(f'v_lshrrev_b32 v{t0+1}, 16, v{t0+1}')
            k(f'v_mul_u32_u24 v{t0+2}, 12, v{t0+1}')
            k(f'v_sub_u32 v{t0+2}, v{t0}, v{t0+2}')
            k(f'v_mul_u32_u24 v{t0+1}, 3072, v{t0+1}')
            k(f'v_lshl_add_u32 v{VB+n}, v{t0+2}, 4, v{t0+1}')
            k(f'v_add_u32 v{VB+n}, s60, v{VB+n}')
            if n:
                k(f'v_subrev_u32 v{VB+n}, {n*1024}, v{VB+n}')
        k(f's_mul_i32 s68, s{S_W4}, 6144')

    def sig(self, c, st, sreg, stmp):
        c(f's_add_u32 s{sreg}, s76, {st}')
        c(f's_sub_u32 s{stmp}, s{sreg}, 10')
        c(f's_cmp_ge_u32 s{sreg}, 10')
        c(f's_cselect_b32 s{sreg}, s{stmp}, s{sreg}')

    def dma_stage(self, st):
        k = self.k
        base = self.BS[st % 6]
        self.sig(k, st, 69, 77)
        k(f's_mul_i32 s69, s69, {64*3072}')
        for per in range(2):
            k(f's_add_u32 m0, s68, {base+per*3072}')
            if per:
                k(f's_add_u32 s69, s69, {16*3072}')
            for n in range(3):
                self.stok[st] = k(f'buffer_load_dwordx4 v{self.VB+n}, s[64:67], s69 offen offset:{n*1024} lds')

    BR = 124

    def breg_load(self, st):
        k = self.k
        r0 = self.BR + 24 * (st - 6)
        self.sig(k, st, 69, 77)
        k(f's_mul_i32 s69, s69, {64*3072}')
        for per in range(2):
            if per:
                k(f's_add_u32 s69, s69, {16*3072}')
            for n in range(3):
                self.rtok[st] = k(f'buffer_load_dwordx4 {v(r0+12*per+4*n,4)}, v{self.VB+n}, s[64:67], s69 offen offset:{n*1024}')

    def breg_write(self, st):
        k = self.k
        r0 = self.BR + 24 * (st - 6)
        base = self.BS[st % 6]
        reg, off = (47, base - 102400) if base >= 102400 else (46, base)
        assert off + 6144 < 65536
        k.wait(self.rtok[st])
        for i in range(6):
            self.stok[st] = k(f'ds_write_b128 v{reg}, {v(r0+4*i,4)} offset:{off+i*1024}')

    def pre_colsum(self):
        k = self.k
        CA = 60
        k('v_lshlrev_b32 v46, 4, v1')
        k('v_add_u32 v46, s68, v46')
        k('v_add_u32 v47, 102400, v46')
        k.wait(self.stok[0])
        tk = [k(f'ds_read_b128 {v(84+4*i,4)}, v47 offset:{i*1024}') for i in range(6)]
        for n in range(3):
            k.wait(tk[n], tk[n + 3])
            for p in range(4):
                k(f'v_lshlrev_b32 v{CA+8*n+2*p}, 16, v{84+4*n+p}')
                k(f'v_and_b32 v{CA+8*n+2*p+1}, 0xffff0000, v{84+4*n+p}')
                k(f'v_lshlrev_b32 v{28+2*(p%2)}, 16, v{96+4*n+p}')
                k(f'v_and_b32 v{29+2*(p%2)}, 0xffff0000, v{96+4*n+p}')
                k(f'v_pk_add_f32 {v(CA+8*n+2*p,2)}, {v(CA+8*n+2*p,2)}, {v(28+2*(p%2),2)}')

    def pre_colsum_write(self):
        k = self.k
        CA = 60
        k('v_lshlrev_b32 v16, 5, v1')
        k('v_add_u32 v16, s68, v16')
        k('v_add_u32 v16, 73728, v16')
        for n in range(3):
            k(f'ds_write_b128 v16, {v(CA+8*n,4)} offset:{n*2048}')
            k(f'ds_write_b128 v16, {v(CA+8*n+4,4)} offset:{n*2048+16}')
        k.wait_all(vm=False)

    def loader_setup(self, g5):
        k = self.k
        tile4(k, 44, 45, 46)
        g5.dma_setup(40)
        k('v_cmp_le_u32 vcc, 96, v0')
        k(f'v_mov_b32 v16, {12288-384}')
        k('v_cndmask_b32 v17, 0, v16, vcc')
        k('v_lshl_add_u32 v17, v0, 2, v17')
        k('v_add_u32 v17, 73728, v17')
        k(f'v_mov_b32 v16, {6144-384}')
        k('v_cndmask_b32 v18, 0, v16, vcc')
        k('v_lshl_add_u32 v18, v0, 2, v18')
        k('v_cmp_gt_u32 vcc, 192, v0')
        k('v_cndmask_b32 v19, 0, v18, vcc')
        k(f'v_mov_b32 v16, {OOB}')
        k('v_cndmask_b32 v18, v16, v18, vcc')
        k('s_mul_i32 s51, s45, 384')
        k(f's_add_u32 s51, s51, {WS_PCS}')
        k('s_mul_i32 s52, s44, 12288')
        k('s_add_u32 s52, s52, s51')
        k(f's_mov_b32 s47, {OOB}')
        k('s_cmp_lt_u32 s44, 10')
        k('s_cselect_b32 s52, s52, s47')

    def colsum_reduce(self):
        k = self.k
        rr = list(range(84, 116))
        for half in range(4):
            tk = []
            for r in range(8):
                x = (half % 2) * 8 + r
                tk.append(k(f'ds_read_b32 v{rr[8*half+r]}, v17 offset:{x*384+(half//2)*6144}'))
            k.wait(*tk)
        for stp in (16, 8, 4, 2, 1):
            for i in range(stp):
                k(f'v_add_f32 v{rr[i]}, v{rr[i]}, v{rr[i+stp]}')
        k(f'buffer_store_dword v{rr[0]}, v18, {WSR}, s52 offen sc1')

    def loader(self, g5):
        k = self.k

        def gather(c):
            t = None
            for r in range(10):
                c(f's_add_u32 s58, s51, {r*12288}')
                t = c(f'buffer_load_dword v{24+r}, v19, {WSR}, s58 offen sc1')
            return t
        T = {}
        g5regs = {2 + i: 60 + 20 * i for i in range(9)}
        k('v_lshlrev_b32 v12, 4, v1')
        k(f's_mul_i32 s46, s{S_W4}, 5120')
        k('v_add_u32 v21, s46, v12')
        k('v_add_u32 v22, 61440, v21')
        k('v_add_u32 v23, 122880, v21')
        for st in range(7):
            k.wait(self.stok[st])
            if st == 6:
                k.wait(self.stok[9])
            k.wait_all(vm=False)
            k('s_barrier')
            if st == 0:
                stamp(k, 32)
                self.colsum_reduce()
            if st == 1:
                self.dma_stage(5)
            if 1 <= st <= 4:
                self.dma_stage(st + 5)
            if st == 4:
                T['g'] = gather(k)
                pf_wd(k, 36, 37)
            if st == 5:
                k.wait(T['g'])
                check_group(k, range(24, 34), 11, gather, slp=8)
                for r in range(1, 10):
                    k(f'v_add_f32 v24, v24, v{24+r}')
                k('v_lshlrev_b32 v16, 2, v0')
                k(f'v_add_u32 v16, {XCH}, v16')
                k('ds_write_b32 v16, v24')
        stamp(k, 36)
        runall(k, g5.dma_step(0))
        runall(k, g5.dma_step(1))
        NR1 = OPT.get('nr1', 6)
        for s5 in range(2, 2 + NR1):
            g5.breg_load(s5, g5regs[s5])
        stamp(k, 38)
        cnt_wait(k, 38, 39, 1, 4, bound=200000)
        for s5 in range(2, 7):
            g5.breg_write(s5, 21)
        for s5 in range(2 + NR1, 11):
            g5.breg_load(s5, g5regs[s5])
        stamp(k, 39)

    def compute(self, own_tok):
        k = self.k
        tile4(k, 44, 45, 46)
        S_MT, S_FT, S_TOK = 44, 45, 46
        k('s_lshl_b32 s46, s44, 7')
        k(f's_lshl_b32 s47, s{S_W4}, 5')
        k('s_add_u32 s46, s46, s47')
        k('v_and_b32 v13, 31, v1')
        k('v_lshrrev_b32 v14, 5, v1')
        k('v_lshlrev_b32 v5, 4, v13')
        k('v_lshl_add_u32 v5, v14, 15, v5')
        k('v_bfe_u32 v15, v1, 2, 2')
        k('v_lshl_add_u32 v15, v14, 3, v15')
        k('v_mul_u32_u24 v15, 192, v15')
        k('v_bfe_u32 v16, v1, 4, 1')
        k('v_lshl_add_u32 v15, v16, 5, v15')
        k('v_and_b32 v16, 1, v1')
        k('v_lshl_add_u32 v15, v16, 4, v15')
        k('v_bfe_u32 v16, v1, 1, 1')
        k('v_lshl_add_u32 v6, v16, 3, v15')
        k('v_add_u32 v7, 49152, v6')
        k('v_add_u32 v8, 102400, v6')
        rbase = {0: (6, 0), 24576: (6, 24576), 49152: (7, 0), 73728: (7, 24576), 102400: (8, 0), 126976: (8, 24576)}
        k('s_mul_i32 s76, s45, %d' % OPT.get('rot4', 3))
        k('s_add_u32 s76, s76, s44')
        k('s_mul_i32 s77, s76, 6554')
        k('s_lshr_b32 s77, s77, 16')
        k('s_mul_i32 s77, s77, 10')
        k('s_sub_u32 s76, s76, s77')
        k('s_lshl_b32 s50, s46, 4')
        k(f's_add_u32 s50, s50, {WS_H1}')
        AFR = 180
        atok = {}

        def abase(c, st, sreg, stmp):
            self.sig(c, st, sreg, stmp)
            c(f's_lshl_b32 s{sreg}, s{sreg}, 18')
            c(f's_add_u32 s{sreg}, s{sreg}, s50')

        def aone(c, st, ks, sreg):
            if ks:
                c(f's_add_u32 s{sreg}, s{sreg}, 65536')
            return c(f'buffer_load_dwordx4 {v(AFR+16*(st%4)+4*ks,4)}, v5, {WSR}, s{sreg} offen sc1')

        def astage(c, st, sreg, stmp):
            abase(c, st, sreg, stmp)
            t = None
            for ks in range(4):
                t = aone(c, st, ks, sreg)
            return t
        k('v_lshlrev_b32 v9, 3, v13')
        k('v_lshl_add_u32 v9, v14, 16, v9')
        k(f's_lshl_b32 s51, s{S_TOK}, 3')
        k(f's_add_u32 s51, s51, {WS_HS}')
        HSR = 20

        def hsload(c):
            t = None
            for n in range(4):
                c(f's_add_u32 s58, s51, {n*16384}')
                t = c(f'buffer_load_dwordx2 {v(HSR+2*n,2)}, v9, {WSR}, s58 offen sc1')
            return t
        k('v_lshlrev_b32 v10, 5, v14')
        k(f'v_add_u32 v10, {XCH}, v10')
        ACC, WF = 36, 132

        def csload(p, base):
            t = None
            for mtx in range(2):
                for q in range(4):
                    off = mtx * 384 + p * 128 + (q // 2) * 64 + (q % 2) * 16
                    t = k(f'ds_read_b128 {v(base+16*mtx+4*q,4)}, v10 offset:{off}')
            return t
        rt = {}

        def reads(kk):
            st, ks = kk // 4, kk % 4
            reg, so = rbase[self.BS[st % 6]]
            b = kk % 2
            ops = [[] for _ in range(6)]
            for j in range(6):
                for hf in range(2):
                    off = so + (j // 3) * 12288 + ks * 3072 + hf * 768 + (j % 3) * 64
                    ops[j].append(lambda j=j, hf=hf, off=off: rt.__setitem__((kk, j), k(
                        f'ds_read_b64_tr_b16 {v(WF+24*b+4*j+2*hf,2)}, v{reg} offset:{off}')))
            return ops
        T = {}

        def stats():
            k.wait(T['hs'])
            check_group(k, range(HSR, HSR + 8), 11, hsload)
            for n in range(1, 4):
                k(f'v_pk_add_f32 {v(HSR,2)}, {v(HSR,2)}, {v(HSR+2*n,2)}')
            VSUM, VSQ = HSR, HSR + 1
            xsum(k, VSUM, 24, 25)
            xsum(k, VSQ, 24, 25)
            k(f'v_mul_f32 v{VSUM}, {f32(1.0/640)}, v{VSUM}')
            k(f'v_mul_f32 v{VSQ}, {f32(1.0/640)}, v{VSQ}')
            k(f'v_fma_f32 v{VSQ}, -v{VSUM}, v{VSUM}, v{VSQ}')
            k(f'v_max_f32 v{VSQ}, 0, v{VSQ}')
            rbf(k, 24, VSUM)
            k('v_sub_f32 v26, 0, v24')
            rbf(k, 25, VSQ)
            k(f'v_add_f32 v25, {f32(1e-5)}, v25')
            rbf(k, 25, 25)
            k('v_sqrt_f32 v25, v25')
            rbf(k, 25, 25)
            k('v_rcp_f32 v28, v25')
            k('v_mul_f32 v30, v25, v25')
        stamp(k, 30)
        k.wait(own_tok)
        if OPT.get('hdelay', 0):
            k(f's_sleep {OPT.get("hdelay")}')
        if OPT.get('probe', 0) & 2:
            k('v_and_b32 v2, 7, v1')
            k('v_lshlrev_b32 v2, 14, v2')
            k('v_bfe_u32 v3, v1, 3, 1')
            k('v_lshl_add_u32 v2, v3, 7, v2')
            probe(k, 51, 2, 3)
        stamp(k, 31)
        D4 = OPT.get('ad4', 1)
        for st in range(D4):
            atok[st] = astage(k, st, 49, 48)
        k('s_barrier')
        for l_ in reads(0):
            runall(k, l_)
        for kk in range(40):
            b = kk % 2
            st, ks = kk // 4, kk % 4
            R0 = AFR + 16 * (st % 4)
            if kk % 8 == 4:
                stamp(k, 33 + kk // 8)
            if ks == 0:
                k.wait(atok[st])
                hi = min(st + 3, 10) if OPT.get('rall', 1) else st + 1
                if st == 0:
                    hi = D4
                check_group(k, range(R0, R0 + 16), 4, lambda c, st=st, hi=hi: [astage(c, s_, 58, 59) for s_ in range(st, hi)],
                            pre=(st >= 1))
                if kk == 0:
                    stamp(k, 32)
                    for s_ in range(D4, 3):
                        atok[s_] = astage(k, s_, 49, 48)
            fill, rds = [], []
            if st + 3 < 10:
                def al(st=st, ks=ks):
                    if ks == 0:
                        abase(k, st + 3, 49, 48)
                    atok[st + 3] = aone(k, st + 3, ks, 49)
                fill.append(al)
            if kk + 1 < 40:
                if (kk + 1) % 4 == 0 and kk < 24:
                    k.wait_all(vm=False)
                    k('s_barrier')
                rds = reads(kk + 1)
            else:
                k.wait_all(vm=False)
                k('v_mov_b32 v2, 1')
                k(f'v_mov_b32 v3, {XCNT+4}')
                k('s_mov_b64 exec, 1')
                k('ds_add_u32 v3, v2')
                k('s_mov_b64 exec, -1')
            if ks == 3 and st + 1 < 10:
                R1 = AFR + 16 * ((st + 1) % 4)
                fill.append(lambda st=st: k.wait(atok[st + 1]))
                fill += maxchain_ops(range(R1, R1 + 16), 4)
            if kk == 28:
                fill.append(lambda: T.__setitem__('hs', hsload(k)))
            if kk == 39:
                fill.append(lambda: T.__setitem__('f3', flags_issue(k, WS_F3, 16, 12)))
            if kk == 39:
                fill.append(lambda: T.__setitem__(('cs', 0), csload(0, 212)))
            if kk == 37:
                fill.append(stats)
            mf = []
            for j in range(6):
                acc = v(ACC + 16 * j, 16)
                c = '0' if kk == 0 else acc
                mf.append((lambda j=j: [rt[kk, j]],
                           f'v_mfma_f32_32x32x16_bf16 {acc}, {v(WF+24*b+4*j,4)}, {v(R0+4*ks,4)}, {c}'))
            roll_step(k, mf, rds, fill)
        stamp(k, 38)
        T['cs', 1] = csload(1, 132)
        c0 = -2.0 * math.sqrt(2.0 / math.pi) * math.log2(math.e)
        c1 = c0 * 0.044715
        k(f'v_mul_f32 v32, {f32(c0)}, v28')
        k('v_mul_f32 v34, v28, v28')
        k('v_mul_f32 v34, v34, v28')
        k(f'v_mul_f32 v34, {f32(c1)}, v34')
        k(f's_mul_i32 s54, s{S_FT}, {12*32768}')
        k(f's_lshl_b32 s55, s{S_TOK}, 4')
        k('s_add_u32 s54, s54, s55')
        k(f's_add_u32 s54, s54, {WS_HC}')
        T_, O = 164, 180
        csb = {0: 212, 1: 132, 2: 212}
        for p in range(3):
            G, U, CS = ACC + 16 * p, ACC + 16 * (3 + p), csb[p]
            k.wait(T['cs', p])
            for q in range(8):
                g2, u2 = v(G + 2 * q, 2), v(U + 2 * q, 2)
                k(f'v_pk_fma_f32 {g2}, {v(CS+2*q,2)}, {v(26,2)}, {g2} op_sel_hi:[1,0,1]')
                k(f'v_pk_fma_f32 {u2}, {v(CS+16+2*q,2)}, {v(26,2)}, {u2} op_sel_hi:[1,0,1]')
            if p == 0:
                T['cs', 2] = csload(2, 212)
            for q in range(8):
                g2, u2, t2 = v(G + 2 * q, 2), v(U + 2 * q, 2), v(T_ + 2 * q, 2)
                k(f'v_pk_mul_f32 {u2}, {u2}, {g2}')
                k(f'v_pk_mul_f32 {t2}, {g2}, {g2}')
                k(f'v_pk_fma_f32 {t2}, {t2}, {v(34,2)}, {v(32,2)} op_sel_hi:[1,0,0]')
                k(f'v_pk_mul_f32 {t2}, {t2}, {g2}')
            for i in range(16):
                k(f'v_exp_f32 v{T_+i}, v{T_+i}')
            for q in range(8):
                t2 = v(T_ + 2 * q, 2)
                k(f'v_pk_fma_f32 {t2}, {t2}, {v(30,2)}, {v(30,2)} op_sel_hi:[1,0,0]')
            for i in range(16):
                k(f'v_rcp_f32 v{T_+i}, v{T_+i}')
            for q in range(8):
                k(f'v_pk_mul_f32 {v(U+2*q,2)}, {v(U+2*q,2)}, {v(T_+2*q,2)}')
            for q in range(8):
                k(f'v_cvt_pk_bf16_f32 v{O+8*(p%2)+q}, v{U+2*q}, v{U+2*q+1}')
            for hf2 in range(2):
                k(f's_add_u32 s55, s54, {(4*p+2*hf2)*32768}')
                self.own = k(f'buffer_store_dwordx4 {v(O+8*(p%2)+4*hf2,4)}, v5, {WSR}, s55 offen sc1')
        flags_check(k, WS_F3, 16, 12, T['f3'])
        stamp(k, 39)


def colsum_strip(k):
    lab = k.newlabel('CS_SKIP')
    k(f's_cmp_lg_u32 s{S_W4}, 0')
    k(f's_cbranch_scc1 {lab}')
    k(f's_cmp_ge_u32 s{S_I32}, 12')
    k(f's_cbranch_scc1 {lab}')
    sn = k.snap()
    k(f's_and_b32 s60, s{S_X8}, 1')
    k('s_cmp_eq_u32 s60, 0')
    k(f's_cselect_b32 s72, s{S_WG}, s{S_WU}')
    k(f's_cselect_b32 s73, s{S_WG+1}, s{S_WU+1}')
    k('s_mov_b32 s74, 1966080')
    k('s_mov_b32 s75, 0x00020000')
    k(f's_lshr_b32 s60, s{S_X8}, 1')
    k('s_mul_i32 s60, s60, 768')
    k(f's_lshl_b32 s61, s{S_I32}, 6')
    k('s_add_u32 s60, s60, s61')
    k('v_lshrrev_b32 v40, 2, v1')
    k('v_mul_u32_u24 v40, 3072, v40')
    k('v_and_b32 v41, 3, v1')
    k('v_lshl_add_u32 v40, v41, 4, v40')
    k('v_add_u32 v40, s60, v40')
    tk = []
    for n in range(40):
        k(f's_mov_b32 s61, {n*16*3072}')
        tk.append(k(f'buffer_load_dwordx4 {v(60+4*n,4)}, v40, s[72:75], s61 offen'))
    for i in range(8):
        k(f'v_mov_b32 v{44+i}, 0')
    for n in range(40):
        k.wait(tk[n])
        for p in range(4):
            k(f'v_lshlrev_b32 v{52+2*(p%2)}, 16, v{60+4*n+p}')
            k(f'v_and_b32 v{53+2*(p%2)}, 0xffff0000, v{60+4*n+p}')
            k(f'v_pk_add_f32 {v(44+2*p,2)}, {v(44+2*p,2)}, {v(52+2*(p%2),2)}')
    for i in range(8):
        xsum(k, 44 + i, 56, 57, 32)
        xsum(k, 44 + i, 56, 57, 16)
        k(f'v_add_f32_dpp v{44+i}, v{44+i}, v{44+i} row_ror:8 row_mask:0xf bank_mask:0xf')
        k(f'v_add_f32_dpp v{44+i}, v{44+i}, v{44+i} row_ror:4 row_mask:0xf bank_mask:0xf')
    strip_id(k, 60)
    k('s_lshl_b32 s60, s60, 2')
    k(f's_add_u32 s60, s60, {WS_CS}')
    k('v_lshlrev_b32 v41, 5, v41')
    k('s_mov_b64 exec, 0xf')
    k(f'buffer_store_dwordx4 {v(44,4)}, v41, {WSR}, s60 offen sc1')
    k(f'buffer_store_dwordx4 {v(48,4)}, v41, {WSR}, s60 offen offset:16 sc1')
    k('s_mov_b64 exec, -1')
    k.wait_all()
    k.restore(sn)
    k.label(lab)


def build():
    k = K()
    name = NAME + '_kernel'
    k.realend = 'K_END'
    k.raw('.p2align 8')
    k.raw(f'.globl {name}')
    k.raw(f'.type {name},@function')
    k.raw(f'{name}:')
    prologue(k)
    if STAMPS:
        k('v_writelane_b32 v255, s84, 60')
        k('v_writelane_b32 v255, s36, 58')
        k('v_writelane_b32 v255, s37, 59')
    if OPT.get('empty'):
        k('s_branch K_END')
    stamp(k, 0)
    g3 = G35(k, 3, [0, 20480, 40960, 61440, 81920], 232, 0)
    g5 = G35(k, 5, [49152, 69632, 90112, 110592, 131072, 0, 20480], 54, 70)
    p4 = P4(k)
    A3 = [102400, 118784, 135168]
    A5 = [61440, 77824, 143360]
    lab_l1, lab_p2, lab_l3, lab_fin = (k.newlabel(x) for x in ('L1', 'P2', 'L3', 'FIN'))
    k(f's_cmp_ge_u32 s{S_W}, 4')
    k(f's_cbranch_scc1 {lab_l1}')
    sn = k.snap()
    p1_compute(k)
    join(k)
    if OPT.get('wgu', 2) == 1:
        pf_wgu(k, 238, 239, 128)
    p2_setup(k)
    k(f's_branch {lab_p2}')
    k.label(lab_l1)
    k.restore(sn)
    p1_loader(k, g3)
    k.label(lab_p2)
    join(k)
    for st in range(5):
        g3.btok[st] = ('vm', 0)
    own = emit_p2(k, g3)
    k(f's_cmp_ge_u32 s{S_W}, 4')
    k(f's_cbranch_scc1 {lab_l3}')
    sn = k.snap()
    g3.compute(own, st0=20)
    p4.compute(g3.own)
    if not OPT.get('nop5'):
        g5.compute(p4.own, st0=40)
    k(f's_branch {lab_fin}')
    k.label(lab_l3)
    k.restore(sn)
    k('s_barrier')
    if OPT.get('wguL', 0):
        pf_wgu(k, 36, 37)
    p4.setup_dma(56)
    p4.dma_stage(0)
    p4.dma_stage(1)
    p4.loader_setup(g5)
    p4.pre_colsum()
    stamp(k, 23)
    k('s_barrier')
    k('s_barrier')
    stamp(k, 24)
    p4.dma_stage(2)
    p4.dma_stage(3)
    p4.dma_stage(4)
    p4.pre_colsum_write()
    stamp(k, 30)
    p4.loader(g5)
    if not OPT.get('nop5'):
        g5.loader(7, st0=40)
        k('s_barrier')
    k.label(lab_fin)
    join(k)
    stamp(k, 50)
    if STAMPS:
        k.wait_all()
        stamp(k, 51)
    stamp_flush(k)
    k.label(k.realend)
    k('s_endpgm')
    c = K()
    for f in k.cold:
        f(c)
    desc = f'''.section .rodata,"a"
.p2align 6
.amdhsa_kernel {name}
  .amdhsa_next_free_vgpr 256
  .amdhsa_next_free_sgpr 102
  .amdhsa_accum_offset 256
  .amdhsa_group_segment_fixed_size 0
  .amdhsa_kernarg_size 80
  .amdhsa_user_sgpr_count 2
  .amdhsa_user_sgpr_kernarg_segment_ptr 1
  .amdhsa_system_sgpr_workgroup_id_x 1
.end_amdhsa_kernel
'''
    return k.render() + c.render() + 'CODE_END:\n' + desc


def main():
    global STAMPS
    STAMPS = 'stamps' in sys.argv
    for a_ in sys.argv[2:]:
        if '=' in a_:
            kk, vv = a_.split('=')
            OPT[kk] = int(vv)
    head = open('cdna_kernels/%s.s.ref' % NAME).read().split('\n')
    hdr = [l for l in head if l.startswith(';') and '@launch' not in l and 'Override launch' not in l and 'grid=ceil' not in l]
    out = '\n'.join(hdr) + '\n'
    out += '; @launch grid=(256,1,1) block=(512,1,1) lds=163840\n'
    out += '.amdgcn_target "amdgcn-amd-amdhsa--gfx950"\n.text\n'
    out += build()
    path = sys.argv[1] if len(sys.argv) > 1 else 'cdna_kernels/%s.s' % NAME
    open(path, 'w').write(out)
    print('wrote', path, len(out), 'bytes')


if __name__ == '__main__':
    main()
```

```python
import math
import struct
import sys
from asmlib import K, v, a, s

NAME = 'sequential_preLN__sliding_block__glu_gated_geglu__prompt'

WS_QG = 0x0000000
WS_KG = 0x0280000
WS_VF = 0x0500000
WS_OC = 0x0780000
WS_H1 = 0x0A00000
WS_HC = 0x0C80000
WS_CS = 0x1280000
WS_F2 = 0x1288000
WS_F3 = 0x128A000
WS_F0 = 0x128C000
WS_PC = 0x1290000
WS_PS = 0x12A8000
WS_HS = 0x12D0000
WS_PCS = 0x1340000
WS_ST = 0x1300000
WS_SIZE = 0x1400000
OOB = 0x40000000

S_X, S_WQKV, S_WO, S_WG, S_WU, S_WD, S_OUT, S_WS, S_DBG = 4, 8, 12, 16, 20, 24, 28, 32, 36
S_NONCE = 3
S_W, S_X8, S_I32, S_W4 = 40, 41, 42, 43
S_BUD = 57
WSR = f's[{S_WS}:{S_WS+3}]'
OPT = {}
STAMPS = False
XCH = 159744
XNONCE = XCH + 3072
XCNT = XCH + 3080


def f32(x):
    return '0x%08x' % struct.unpack('<I', struct.pack('<f', x))[0]


def stamp(k, i):
    if not STAMPS:
        return
    k('s_memtime s[62:63]')
    k.wait_all(vm=False)
    k(f'v_writelane_b32 v255, s62, {i}')


def stamp_flush(k):
    if not STAMPS:
        return
    lab = k.newlabel('ST')
    k('s_memrealtime s[62:63]')
    k.wait_all()
    k('v_writelane_b32 v255, s62, 63')
    k(f'v_writelane_b32 v255, s{S_BUD}, 62')
    k(f's_cmp_lg_u32 s{S_W4}, 0')
    k(f's_cbranch_scc1 {lab}')
    k('v_lshlrev_b32 v254, 2, v1')
    k('s_lshl_b32 s62, s2, 9')
    k(f's_lshl_b32 s63, s{S_W}, 6')
    k('s_add_u32 s62, s62, s63')
    k(f's_add_u32 s62, s62, {WS_ST}')
    k(f'buffer_store_dword v255, v254, {WSR}, s62 offen')
    if OPT.get('dbgout'):
        k('s_cmp_lg_u32 s2, %d' % OPT.get('dbgout'))
        k(f's_cbranch_scc1 {lab}')
        k(f's_cmp_lg_u32 s{S_W}, 0')
        k(f's_cbranch_scc1 {lab}')
        k('v_readlane_b32 s64, v255, 58')
        k('v_readlane_b32 s65, v255, 59')
        k('s_mov_b32 s66, 256')
        k('s_mov_b32 s67, 0x00020000')
        k('v_readlane_b32 s70, v255, 0')
        k('v_readlane_b32 s71, v255, 60')
        sel = [3, 5, 9, 10, 12, 13, 18, 22, 24, 32, 38, 42, 43, 51]
        for i, st_ in enumerate(sel):
            k(f'v_readlane_b32 s68, v255, {st_}')
            k('s_sub_u32 s68, s68, s70')
            k(f'v_writelane_b32 v253, s68, {i+1}')
        k('v_readlane_b32 s68, v255, 63')
        k('s_sub_u32 s68, s68, s71')
        k('v_writelane_b32 v253, s68, 15')
        k('s_mov_b64 exec, 0xfffe')
        k('buffer_store_dword v253, v254, s[64:67], 0 offen')
        k('s_mov_b64 exec, -1')
    k.label(lab)


def run(k, f):
    return f() if callable(f) else k(f)


def runall(k, ops):
    for f in ops:
        run(k, f)


def roll_step(k, mf, rds, fill):
    n, nf, fi = len(mf), len(fill), 0
    for i, (wt, m) in enumerate(mf):
        k.wait(*wt())
        k(m)
        for f in (rds[i] if i < len(rds) else []):
            run(k, f)
        tgt = (nf * (i + 1) + n - 1) // n
        while fi < min(tgt, nf):
            run(k, fill[fi])
            fi += 1


def spread(k, main, side):
    n, nf = len(main), len(side)
    pos = {}
    for j in range(nf):
        pos.setdefault(int(j * n / max(nf, 1)), []).append(side[j])
    for i, m in enumerate(main):
        for f in pos.get(i, []):
            run(k, f)
        run(k, m)


def rbf(k, d, src):
    k(f'v_cvt_pk_bf16_f32 {v(d)}, {v(src)}, {v(src)}')
    k(f'v_lshlrev_b32 {v(d)}, 16, {v(d)}')


def xsum(k, r, t1, t2, which=32):
    k(f'v_mov_b32 {v(t1)}, {v(r)}')
    k(f'v_mov_b32 {v(t2)}, {v(r)}')
    k(f'v_permlane{which}_swap_b32 {v(t1)}, {v(t2)}')
    k(f'v_add_f32 {v(r)}, {v(t1)}, {v(t2)}')


def maxchain_ops(regs, t):
    regs = list(regs)
    ops = [f'v_max3_u32 v{t}, v{regs[0]}, v{regs[1]}, v{regs[2]}']
    i = 3
    while i < len(regs):
        if i + 1 < len(regs):
            ops.append(f'v_max3_u32 v{t}, v{t}, v{regs[i]}, v{regs[i+1]}')
            i += 2
        else:
            ops.append(f'v_max_u32 v{t}, v{t}, v{regs[i]}')
            i += 1
    return ops


def check_group(k, regs, t, reissue, slp=None, pre=False):
    slp = slp or OPT.get('rslp', 2)
    if not pre:
        for o in maxchain_ops(regs, t):
            k(o)
    slow, back, loop = k.newlabel('SLOW'), k.newlabel('BACK'), k.newlabel('RETRY')
    k(f'v_cmp_eq_u32 vcc, -1, v{t}')
    k(f's_cbranch_vccnz {slow} ;nodrain')
    k.label(back)

    def cold(c):
        c.label(slow)
        c('s_nop 15')
        c.label(loop)
        c(f's_cmp_eq_u32 s{S_BUD}, 0')
        c(f's_cbranch_scc1 {back}')
        c(f's_sub_u32 s{S_BUD}, s{S_BUD}, 1')
        c(f's_sleep {slp}')
        reissue(c)
        c('s_waitcnt vmcnt(0)')
        for o in maxchain_ops(regs, t):
            c(o)
        c(f'v_cmp_eq_u32 vcc, -1, v{t}')
        c(f's_cbranch_vccnz {loop}')
        c(f's_branch {back}')
    k.cold.append(cold)


def nonce_issue(k, vr):
    k(f'v_mov_b32 v{vr+1}, 0')
    return k(f'buffer_load_dword v{vr}, v{vr+1}, s[{S_DBG}:{S_DBG+3}], 0 offen sc1')


def nonce_check(k, vr, tok):
    k.wait(tok)
    slow, back = k.newlabel('NSLOW'), k.newlabel('NBACK')
    k(f'v_readfirstlane_b32 s{S_NONCE}, v{vr}')
    k(f's_cmp_eq_u32 s{S_NONCE}, 0')
    k(f's_cbranch_scc1 {slow} ;nodrain')
    k.label(back)

    def cold(c):
        c.label(slow)
        c('s_nop 15')
        c(f's_cmp_eq_u32 s{S_BUD}, 0')
        c(f's_cbranch_scc1 {back}')
        c(f's_sub_u32 s{S_BUD}, s{S_BUD}, 1')
        c('s_sleep 4')
        c(f'buffer_load_dword v{vr}, v{vr+1}, s[{S_DBG}:{S_DBG+3}], 0 offen sc1')
        c('s_waitcnt vmcnt(0)')
        c(f'v_readfirstlane_b32 s{S_NONCE}, v{vr}')
        c(f's_cmp_eq_u32 s{S_NONCE}, 0')
        c(f's_cbranch_scc1 {slow}')
        c(f's_branch {back}')
    k.cold.append(cold)


def nonce_from_lds(k, t):
    k(f'v_mov_b32 v{t}, {XNONCE}')
    tk = k(f'ds_read_b32 v{t}, v{t}')
    k.wait(tk)
    k(f'v_readfirstlane_b32 s{S_NONCE}, v{t}')


def rflag_store(k, base, sidx, t1, t2, wave=0):
    k(f'v_mov_b32 v{t1}, s{S_NONCE}')
    k(f'v_lshlrev_b32 v{t2}, 10, v1')
    k(f's_lshl_b32 s60, s{sidx}, 2')
    k(f's_add_u32 s60, s60, {base}')
    k(f's_mov_b32 s61, {OOB}')
    k(f's_cmp_eq_u32 s{S_W}, {wave}')
    k('s_cselect_b32 s60, s60, s61')
    k('s_mov_b64 exec, 0xff')
    k(f'buffer_store_dword v{t1}, v{t2}, {WSR}, s60 offen sc1')
    k('s_mov_b64 exec, -1')


def wflag_store(k, base, sidx, t1, t2, cnt):
    k(f'v_mov_b32 v{t1}, 1')
    k(f'v_mov_b32 v{t2}, {XCNT+4*cnt}')
    k('s_mov_b64 exec, 1')
    tk = k(f'ds_add_rtn_u32 v{t1}, v{t2}, v{t1}')
    k('s_mov_b64 exec, -1')
    k(f's_lshl_b32 s60, s{sidx}, 2')
    k(f's_add_u32 s60, s60, {base}')
    k.wait(tk)
    k(f'v_readfirstlane_b32 s61, v{t1}')
    k(f'v_mov_b32 v{t1}, s{S_NONCE}')
    k(f'v_lshlrev_b32 v{t2}, 10, v1')
    k('s_cmp_eq_u32 s61, 3')
    k(f's_cselect_b32 s60, s60, {OOB}')
    k('s_mov_b64 exec, 0xff')
    k(f'buffer_store_dword v{t1}, v{t2}, {WSR}, s60 offen sc1')
    k('s_mov_b64 exec, -1')


def cnt_wait(k, t1, t2, cnt, target, bound=2000):
    loop, done = k.newlabel('CW'), k.newlabel('CD')
    k(f'v_mov_b32 v{t2}, {XCNT+4*cnt}')
    k(f's_mov_b32 s61, {bound}')
    k.label(loop)
    k.raw(f'    ds_read_b32 v{t1}, v{t2}')
    k.raw('    s_waitcnt lgkmcnt(0)')
    k(f'v_readfirstlane_b32 s60, v{t1}')
    k(f's_cmp_ge_u32 s60, {target}')
    k(f's_cbranch_scc1 {done}')
    k('s_sub_u32 s61, s61, 1')
    k('s_cmp_eq_u32 s61, 0')
    k(f's_cbranch_scc1 {done}')
    k('s_sleep 2')
    k(f's_branch {loop}')
    k.label(done)


def wflag_poll(k, sbase, va, vr, smask, width, only_wave0):
    loop, done = k.newlabel('POLL'), k.newlabel('PDONE')
    if only_wave0:
        k(f's_cmp_lg_u32 s{S_W}, 0')
        k(f's_cbranch_scc1 {done}')
    k.label(loop)
    if width == 4:
        k.raw(f'    buffer_load_dwordx4 {v(vr,4)}, v{va}, {WSR}, s{sbase} offen sc1')
        k.raw('    s_waitcnt vmcnt(0)')
        for i in range(4):
            k(f'v_xor_b32 v{vr+i}, s{S_NONCE}, v{vr+i}')
        k(f'v_or3_b32 v{vr}, v{vr}, v{vr+1}, v{vr+2}')
        k(f'v_or_b32 v{vr}, v{vr}, v{vr+3}')
        k(f'v_cmp_ne_u32 vcc, 0, v{vr}')
    else:
        k.raw(f'    buffer_load_dword v{vr}, v{va}, {WSR}, s{sbase} offen sc1')
        k.raw('    s_waitcnt vmcnt(0)')
        k(f'v_cmp_ne_u32 vcc, s{S_NONCE}, v{vr}')
    k(f's_and_b64 vcc, vcc, s[{smask}:{smask+1}]')
    k(f's_cbranch_scc0 {done}')
    k(f's_cmp_eq_u32 s{S_BUD}, 0')
    k(f's_cbranch_scc1 {done}')
    k(f's_sub_u32 s{S_BUD}, s{S_BUD}, 1')
    k(f's_sleep {OPT.get("psl", 1)}')
    k(f's_branch {loop}')
    k.label(done)


def probe(k, sbase, va, vr):
    loop, done = k.newlabel('PRB'), k.newlabel('PRD')
    k.label(loop)
    k.raw(f'    buffer_load_dword v{vr}, v{va}, {WSR}, s{sbase} offen sc1')
    k.raw('    s_waitcnt vmcnt(0)')
    k(f'v_cmp_eq_u32 vcc, -1, v{vr}')
    k(f's_cbranch_vccz {done}')
    k(f's_cmp_eq_u32 s{S_BUD}, 0')
    k(f's_cbranch_scc1 {done}')
    k(f's_sub_u32 s{S_BUD}, s{S_BUD}, 1')
    k(f's_sleep {OPT.get("prs", 2)}')
    k(f's_branch {loop}')
    k.label(done)


def rflag_poll(k, sbase, va, vr, smask):
    loop, done = k.newlabel('POLL'), k.newlabel('PDONE')
    k(f's_cmp_lg_u32 s{S_W}, 0')
    k(f's_cbranch_scc1 {done}')
    k.label(loop)
    k.raw(f'    buffer_load_dword v{vr}, v{va}, {WSR}, s{sbase} offen sc1')
    k.raw('    s_waitcnt vmcnt(0)')
    k(f'v_cmp_ne_u32 vcc, s{S_NONCE}, v{vr}')
    k(f's_and_b64 vcc, vcc, s[{smask}:{smask+1}]')
    k(f's_cbranch_scc0 {done}')
    k(f's_cmp_eq_u32 s{S_BUD}, 0')
    k(f's_cbranch_scc1 {done}')
    k(f's_sub_u32 s{S_BUD}, s{S_BUD}, 1')
    k(f's_branch {loop}')
    k.label(done)


def flags_issue(k, base, vr, va):
    k(f'v_lshlrev_b32 v{va}, 4, v1')
    k(f's_lshl_b32 s60, s{S_X8}, 10')
    k(f'v_add_u32 v{va}, s60, v{va}')
    k(f's_mov_b32 s60, {base}')
    return k(f'buffer_load_dwordx4 {v(vr,4)}, v{va}, {WSR}, s60 offen sc1')


def flags_check(k, base, vr, va, tok):
    k.wait(tok)
    slow, back = k.newlabel('FSLOW'), k.newlabel('FBACK')

    def cmpops(c):
        for i in range(4):
            c(f'v_xor_b32 v{vr+i}, s{S_NONCE}, v{vr+i}')
        c(f'v_or3_b32 v{vr}, v{vr}, v{vr+1}, v{vr+2}')
        c(f'v_or_b32 v{vr}, v{vr}, v{vr+3}')
        c(f'v_cmp_ne_u32 vcc, 0, v{vr}')
    cmpops(k)
    k(f's_cbranch_vccnz {slow} ;nodrain')
    k.label(back)

    def cold(c):
        c.label(slow)
        c('s_nop 15')
        c(f's_cmp_eq_u32 s{S_BUD}, 0')
        c(f's_cbranch_scc1 {back}')
        c(f's_sub_u32 s{S_BUD}, s{S_BUD}, 1')
        c('s_sleep 12')
        c(f's_mov_b32 s58, {base}')
        c(f'buffer_load_dwordx4 {v(vr,4)}, v{va}, {WSR}, s58 offen sc1')
        c('s_waitcnt vmcnt(0)')
        cmpops(c)
        c(f's_cbranch_vccnz {slow}')
        c(f's_branch {back}')
    k.cold.append(cold)


def join(k):
    k.reset_counters()
    k.vm_issued = 1
    k.lg_issued = 1


def prologue(k):
    k('s_cmp_ge_u32 s2, 256')
    k('s_cbranch_scc1 %s' % k.realend)
    if OPT.get('cpf', 1):
        k.raw('    s_getpc_b64 s[88:89]')
        k.raw('CODE_PC:')
        k.raw(f'    s_sub_u32 s88, s88, CODE_PC-{NAME}_kernel')
        k.raw('    s_subb_u32 s89, s89, 0')
        k.raw('    s_and_b32 s89, s89, 0xffff')
        k.raw(f'    s_mov_b32 s90, CODE_END-{NAME}_kernel')
        k.raw('    s_mov_b32 s91, 0x00020000')
        k('s_lshr_b32 s92, s2, 3')
        k('s_lshl_b32 s92, s92, 12')
        k('v_lshlrev_b32 v250, 7, v0')
        k('v_cmp_gt_u32 vcc, 32, v0')
        k(f'v_mov_b32 v251, {OOB}')
        k('v_cndmask_b32 v250, v251, v250, vcc')
        k('buffer_load_dword v251, v250, s[88:91], s92 offen')
    k('s_load_dwordx8 s[64:71], s[0:1], 0')
    k('s_load_dwordx8 s[72:79], s[0:1], 32')
    k('s_load_dwordx4 s[80:83], s[0:1], 64')
    k('s_memrealtime s[84:85]')
    k('v_and_b32 v1, 63, v0')
    k('v_lshrrev_b32 v2, 6, v0')
    k(f'v_readfirstlane_b32 s{S_W}, v2')
    k(f's_and_b32 s{S_X8}, s2, 7')
    k(f's_lshr_b32 s{S_I32}, s2, 3')
    k(f's_mov_b32 s{S_BUD}, {OPT.get("bud", 100000)}')
    k(f's_and_b32 s{S_W4}, s{S_W}, 3')
    k('v_and_b32 v0, 255, v0')
    k('v_mov_b32 v253, 0')
    k('s_waitcnt lgkmcnt(0)')
    srds(k, 0, 2)


def srds(k, a_, b_):
    for sr, src, size in ((S_X, 64, 2621440), (S_WQKV, 66, 2457600), (S_WO, 68, 819200), (S_WG, 72, 1966080),
                          (S_WU, 74, 1966080), (S_WD, 76, 1966080), (S_OUT, 78, 2621440), (S_WS, 82, WS_SIZE),
                          (S_DBG, 80, 256))[a_:b_]:
        k(f's_mov_b32 s{sr}, s{src}')
        k(f's_and_b32 s{sr+1}, s{src+1}, 0xffff')
        k(f's_mov_b32 s{sr+2}, {size}')
        k(f's_mov_b32 s{sr+3}, 0x00020000')


def publish_nonce(k):
    k(f's_or_b32 s60, s2, s{S_W}')
    k('s_cmp_eq_u32 s60, 0')
    k(f's_cselect_b32 s61, 0, 0x10000')
    k('s_or_b32 s60, s84, 1')
    k('v_mov_b32 v2, s60')
    k('v_mov_b32 v3, 0')
    k('s_mov_b64 exec, 1')
    k(f'buffer_store_dword v2, v3, s[{S_DBG}:{S_DBG+3}], s61 offen sc1')
    k('s_mov_b64 exec, -1')


def tile1(k):
    k(f's_and_b32 s47, s{S_X8}, 3')
    k(f's_lshr_b32 s46, s{S_X8}, 2')
    k('s_mul_i32 s46, s46, 30')
    k(f's_add_u32 s46, s46, s{S_I32}')
    k('s_lshr_b32 s44, s46, 2')
    k('s_and_b32 s46, s46, 3')
    k('s_lshl_b32 s47, s47, 2')
    k('s_add_u32 s45, s47, s46')
    k('s_add_u32 s56, s45, s44')
    for _ in range(2):
        k('s_sub_u32 s47, s56, 10')
        k('s_cmp_ge_u32 s56, 10')
        k('s_cselect_b32 s56, s47, s56')
    k('s_lshl_b32 s46, s45, 7')
    k(f's_lshl_b32 s47, s{S_W4}, 5')
    k('s_add_u32 s46, s46, s47')


def tile35(k, srt, sct, st):
    if OPT.get('m35', 0):
        k(f's_lshl_b32 s{st}, s{S_X8}, 2')
        k(f's_and_b32 s{srt}, s{S_I32}, 3')
        k(f's_add_u32 s{srt}, s{srt}, s{st}')
        k(f's_lshr_b32 s{sct}, s{S_I32}, 2')
        return
    k(f's_and_b32 s{st}, s{S_X8}, 3')
    k(f's_lshl_b32 s{st}, s{st}, 3')
    k(f's_and_b32 s{srt}, s{S_I32}, 7')
    k(f's_add_u32 s{srt}, s{srt}, s{st}')
    k(f's_lshr_b32 s{st}, s{S_X8}, 2')
    k(f's_lshl_b32 s{st}, s{st}, 2')
    k(f's_lshr_b32 s{sct}, s{S_I32}, 3')
    k(f's_add_u32 s{sct}, s{sct}, s{st}')


def tile4(k, smt, sft, st):
    if OPT.get('m4', 0):
        k(f's_and_b32 s{st}, s{S_X8}, 3')
        k(f's_lshl_b32 s{st}, s{st}, 2')
        k(f's_and_b32 s{smt}, s{S_I32}, 3')
        k(f's_add_u32 s{smt}, s{smt}, s{st}')
        k(f's_lshr_b32 s{st}, s{S_X8}, 2')
        k(f's_lshl_b32 s{st}, s{st}, 3')
        k(f's_lshr_b32 s{sft}, s{S_I32}, 2')
        k(f's_add_u32 s{sft}, s{sft}, s{st}')
        return
    k(f's_and_b32 s{st}, s{S_X8}, 1')
    k(f's_lshl_b32 s{st}, s{st}, 3')
    k(f's_and_b32 s{smt}, s{S_I32}, 7')
    k(f's_add_u32 s{smt}, s{smt}, s{st}')
    k(f's_lshr_b32 s{st}, s{S_X8}, 1')
    k(f's_lshl_b32 s{st}, s{st}, 2')
    k(f's_lshr_b32 s{sft}, s{S_I32}, 3')
    k(f's_add_u32 s{sft}, s{sft}, s{st}')


def strip_id(k, sd):
    k(f's_and_b32 s{sd}, s{S_X8}, 1')
    k(f's_mul_i32 s{sd}, s{sd}, 1536')
    k(f's_lshr_b32 s61, s{S_X8}, 1')
    k('s_mul_i32 s61, s61, 384')
    k(f's_add_u32 s{sd}, s{sd}, s61')
    k(f's_lshl_b32 s61, s{S_I32}, 5')
    k(f's_add_u32 s{sd}, s{sd}, s61')


def clear_ops(k, vs, va):
    ops = []

    def o1():
        k(f's_and_b32 s60, s{S_I32}, 3')
        k(f's_lshl_b32 s61, s{S_X8}, 2')
        k('s_add_u32 s60, s60, s61')
        k('s_and_b32 s65, s60, 1')
        k('s_lshr_b32 s60, s60, 1')
        k('s_mul_i32 s60, s60, 5')
        k('s_lshl_b32 s60, s60, 15')
        k(f's_lshr_b32 s61, s{S_I32}, 2')
        k('s_lshl_b32 s61, s61, 12')
        k('s_add_u32 s60, s60, s61')
        k(f's_lshl_b32 s61, s{S_W4}, 10')
        k('s_add_u32 s60, s60, s61')
        k(f's_add_u32 s64, s60, {WS_OC}')
        k(f's_mul_i32 s61, s65, {3*32768}')
        k('s_add_u32 s66, s64, s61')
        k(f'buffer_store_dwordx4 {v(vs,4)}, v{va}, {WSR}, s66 offen sc1')

    def o2():
        k('s_add_u32 s60, s66, 32768')
        k(f'buffer_store_dwordx4 {v(vs,4)}, v{va}, {WSR}, s60 offen sc1')

    def o3():
        k('s_lshl_b32 s61, s65, 3')
        k('s_add_u32 s60, s64, s61')
        k('s_add_u32 s60, s60, 65536')
        k(f'buffer_store_dwordx2 {v(vs,2)}, v{va}, {WSR}, s60 offen sc1')

    def h1():
        tile35(k, 60, 61, 64)
        k('s_lshl_b32 s67, s61, 14')
        k('s_lshl_b32 s64, s60, 9')
        k('s_add_u32 s67, s67, s64')
        k(f's_add_u32 s67, s67, {WS_HS}')
        k('s_mul_i32 s61, s61, 10')
        k(f's_add_u32 s61, s61, s{S_W4}')
        k('s_lshl_b32 s61, s61, 15')
        k('s_lshl_b32 s60, s60, 10')
        k('s_add_u32 s64, s61, s60')
        k(f's_add_u32 s64, s64, {WS_H1}')
        k(f'buffer_store_dwordx4 {v(vs,4)}, v{va}, {WSR}, s64 offen sc1')

    def h2():
        k(f's_add_u32 s60, s64, {4*32768}')
        k(f'buffer_store_dwordx4 {v(vs,4)}, v{va}, {WSR}, s60 offen sc1')

    def h3():
        k(f's_add_u32 s60, s64, {8*32768}')
        k(f's_mov_b32 s65, {OOB}')
        k(f's_cmp_lt_u32 s{S_W4}, 2')
        k('s_cselect_b32 s60, s60, s65')
        k(f'buffer_store_dwordx4 {v(vs,4)}, v{va}, {WSR}, s60 offen sc1')

    def h4():
        k(f's_cmp_eq_u32 s{S_W4}, 2')
        k('s_cselect_b32 s60, s67, s65')
        k(f'buffer_store_dwordx2 {v(vs,2)}, v{va+1}, {WSR}, s60 offen sc1')

    def c1():
        tile4(k, 60, 61, 64)
        k('s_mul_i32 s61, s61, 384')
        k('s_mul_i32 s64, s60, 12288')
        k('s_add_u32 s61, s61, s64')
        k(f's_mul_i32 s64, s{S_W4}, 6144')
        k('s_add_u32 s61, s61, s64')
        k(f's_add_u32 s61, s61, {WS_PCS}')
        k('s_cmp_lt_u32 s60, 10')
        k('s_cselect_b32 s61, s61, s65')
        k(f's_cmp_lt_u32 s{S_W4}, 2')
        k('s_cselect_b32 s61, s61, s65')
        k('s_mov_b64 exec, 0xffffff')
        k(f'buffer_store_dwordx4 {v(vs,4)}, v{va}, {WSR}, s61 offen sc1')
        k('s_mov_b64 exec, -1')
    return [o1, o2, o3, h1, h2, h3, h4, c1]


def sparse_prefetch(k, srd, rows_per_wg, lines, pitch, colshift, colmul, va, vd, toff=0):
    magic = {5: 13108, 6: 10923}[lines]
    k(f'v_subrev_u32 v{va}, {toff}, v0')
    k(f'v_cmp_gt_u32 vcc, {rows_per_wg*lines}, v{va}')
    k(f'v_mul_u32_u24 v{vd}, {magic}, v{va}')
    k(f'v_lshrrev_b32 v{vd}, 16, v{vd}')
    k(f'v_mul_u32_u24 v{vd}, {pitch-lines*128}, v{vd}')
    k(f'v_lshl_add_u32 v{va}, v{va}, 7, v{vd}')
    k(f'v_mov_b32 v{vd}, {OOB}')
    k(f'v_cndmask_b32 v{va}, v{vd}, v{va}, vcc')
    k(f's_mul_i32 s60, s{S_I32}, {rows_per_wg*pitch}')
    k(f's_lshr_b32 s61, s{S_X8}, {colshift}')
    k(f's_mul_i32 s61, s61, {colmul}')
    k('s_add_u32 s60, s60, s61')
    for sr in srd:
        k(f'buffer_load_dword v{vd}, v{va}, s[{sr}:{sr+3}], s60 offen')


def pf_wo(k, va, vd):
    sparse_prefetch(k, [S_WO], 20, 5, 1280, 2, 640, va, vd)


def pf_wd(k, va, vd):
    sparse_prefetch(k, [S_WD], 48, 5, 1280, 2, 640, va, vd)


def pf_wgu(k, va, vd, toff=0):
    sparse_prefetch(k, [S_WG, S_WU], 20, 6, 3072, 1, 768, va, vd, toff)


P1_R, P1_SLOT = 4, 32768


def p1_dma(k, S_SIG, sa, sb_):
    FL1 = {0: '', 1: ' sc1', 2: ' nt', 3: ' sc0'}[OPT.get('p1sc', 0)]
    S_NT, S_TOK, S_LW = 44, 46, 48
    k('s_cmp_ge_u32 s56, 5')
    k(f's_cselect_b32 s{S_SIG}, 5, 0')
    k('v_lshrrev_b32 v10, 3, v1')
    k(f'v_add_u32 v10, s{S_TOK}, v10')
    k('v_mul_u32_u24 v10, 1280, v10')
    k('v_and_b32 v11, 7, v1')
    k('v_lshrrev_b32 v12, 4, v1')
    k('v_xor_b32 v11, v11, v12')
    k('v_xor_b32 v13, 4, v11')
    k('v_lshl_add_u32 v2, v11, 4, v10')
    k('v_lshl_add_u32 v3, v13, 4, v10')
    k(f'v_add_u32 v3, {10240-1024}, v3')
    k(f'v_add_u32 v4, {2*(10240-1024)}, v2')
    k(f'v_add_u32 v5, {2*(10240-1024)}, v3')
    k(f's_lshl_b32 s47, s{S_W4}, 4')
    k('v_add_u32 v10, s47, v12')
    k('v_mul_u32_u24 v10, 3840, v10')
    k(f's_lshl_b32 s47, s{S_NT}, 8')
    k('v_add_u32 v10, s47, v10')
    k('v_bfe_u32 v11, v1, 2, 2')
    k('v_xor_b32 v11, v11, v12')
    k('v_lshl_add_u32 v10, v11, 6, v10')
    k('v_and_b32 v11, 3, v1')
    k('v_lshl_add_u32 v6, v11, 4, v10')
    for i in range(1, 4):
        k(f'v_add_u32 v{6+i}, {i*(4*3840-1024)}, v6')
    k(f's_lshl_b32 s{S_LW}, s{S_W4}, 12')
    tok = {}

    def issue(st):
        slot = st % P1_R
        k(f's_add_u32 m0, s{S_LW}, {slot*P1_SLOT}')
        k(f's_lshl_b32 s{sa}, s{S_SIG}, 7')
        for i in range(4):
            k(f'buffer_load_dwordx4 v{2+i}, s[{S_X}:{S_X+3}], s{sa} offen offset:{i*1024}' + FL1 + ' lds')
        k(f's_add_u32 m0, s{S_LW}, {slot*P1_SLOT+16384}')
        k(f's_mul_i32 s{sb_}, s{S_SIG}, {64*3840}')
        k(f's_add_u32 s{S_SIG}, s{S_SIG}, 1')
        k(f's_cmp_eq_u32 s{S_SIG}, 10')
        k(f's_cselect_b32 s{S_SIG}, 0, s{S_SIG}')
        for i in range(4):
            tok[st] = k(f'buffer_load_dwordx4 v{6+i}, s[{S_WQKV}:{S_WQKV+3}], s{sb_} offen offset:{i*1024}' + FL1 + ' lds')
    return tok, issue


def p1_loader(k, g3):
    tile1(k)
    S_NT, S_TOK, S_LW, S_SIG = 44, 46, 48, 55
    lab_h, lab_e = k.newlabel('L_HELP'), k.newlabel('L_P1E')
    k(f's_cmp_ge_u32 s{S_I32}, 30')
    k(f's_cbranch_scc1 {lab_h}')
    tok, issue = p1_dma(k, S_SIG, 49, 50)
    issue(0)
    srds(k, 2, 9)
    issue(1)
    stamp(k, 1)
    k.wait(tok[0])
    k('s_barrier')
    stamp(k, 2)
    if OPT.get('cdma', 0):
        k(f's_add_u32 s{S_SIG}, s{S_SIG}, 2')
        tok[2] = tok[3] = tok[1]
    else:
        issue(2)
        issue(3)
    blk = k.capture(lambda: (g3.dma_setup(100), p2_setup(k)))
    nb_ = (len(blk) + 2) // 3
    for st in range(1, 10):
        k.wait(tok[st])
        k('s_barrier')
        if st + 3 < 10:
            issue(st + 3)
        if st == 6:
            stamp(k, 3)
            pf_wo(k, 120, 121)
        if 6 <= st <= 8:
            k.items.extend(blk[(st - 6) * nb_:(st - 5) * nb_])
    k(f's_branch {lab_e}')
    k.label(lab_h)
    srds(k, 2, 9)
    for st in range(10):
        k('s_barrier')
    pf_wo(k, 120, 121)
    k.items.extend(blk)
    k.label(lab_e)
    join(k)
    nonce_from_lds(k, 122)
    stamp(k, 9)
    k('s_barrier')
    if OPT.get('wowait', 1):
        cnt_wait(k, 238, 239, 0, OPT.get('wowait', 1))
    stamp(k, 10)
    for st in range(OPT.get('woL', 4)):
        runall(k, g3.dma_step(st))
    stamp(k, 11)


def p1_compute(k):
    srds(k, 2, 9)
    publish_nonce(k)
    tile1(k)
    S_NT, S_MT, S_TOK, S_LW, S_RHO = 44, 45, 46, 48, 56
    k(f's_lshl_b32 s{S_LW}, s{S_W4}, 12')
    ctok = {}
    if OPT.get('cdma', 0):
        lab_nd = k.newlabel('NODMA')
        k(f's_cmp_ge_u32 s{S_I32}, 30')
        k(f's_cbranch_scc1 {lab_nd}')
        ctok, cissue = p1_dma(k, 55, 49, 50)
        k('s_add_u32 s55, s55, 2')
        cissue(2)
        cissue(3)
        k.label(lab_nd)
    for i in range(4):
        k(f'v_mov_b32 v{96+i}, -1')
    k('v_lshlrev_b32 v100, 4, v1')
    k('v_lshlrev_b32 v101, 3, v1')
    k('v_and_b32 v40, 31, v1')
    k('v_lshlrev_b32 v109, 3, v40')
    k('v_lshlrev_b32 v102, 2, v40')
    k(f's_lshl_b32 s51, s{S_RHO}, 14')
    k(f's_lshl_b32 s47, s{S_TOK}, 3')
    k('s_add_u32 s51, s51, s47')
    k(f's_add_u32 s51, s51, {WS_PS}')
    k(f's_mov_b32 s47, {OOB}')
    k(f's_cmp_lt_u32 s{S_NT}, 10')
    k('s_cselect_b32 s51, s51, s47')
    k(f's_mul_i32 s52, s{S_RHO}, 7680')
    k(f's_lshl_b32 s49, s{S_NT}, 9')
    k('s_add_u32 s52, s52, s49')
    k(f's_lshl_b32 s49, s{S_W4}, 7')
    k('s_add_u32 s52, s52, s49')
    k(f's_add_u32 s52, s52, {WS_PC}')
    k(f's_cmp_lt_u32 s{S_MT}, 10')
    k('s_cselect_b32 s52, s52, s47')
    k(f's_cmp_lt_u32 s{S_I32}, 30')
    k('s_cselect_b32 s51, s51, s47')
    k('s_cselect_b32 s52, s52, s47')
    k(f'buffer_store_dwordx2 {v(96,2)}, v109, {WSR}, s51 offen sc1')
    sctok = k(f'buffer_store_dword v96, v102, {WSR}, s52 offen sc1')
    if OPT.get('qclr', 0):
        k(f's_lshl_b32 s60, s{S_NT}, 5')
        k(f's_lshl_b32 s61, s{S_W4}, 3')
        k('s_add_u32 s60, s60, s61')
        k('s_lshl_b32 s60, s60, 14')
        k(f's_lshl_b32 s61, s{S_MT}, 10')
        k('s_add_u32 s64, s60, s61')
        k(f's_lshr_b32 s60, s{S_TOK}, 5')
        k('s_mul_i32 s60, s60, 40960')
        k(f's_sub_u32 s61, s{S_NT}, 10')
        k('s_lshl_b32 s61, s61, 11')
        k('s_add_u32 s65, s60, s61')
        k(f's_cmp_lt_u32 s{S_I32}, 30')
        k(f's_cselect_b32 s64, s64, {OOB}')
        k(f's_cselect_b32 s65, s65, {OOB}')
        for n in range(8):
            k(f's_add_u32 s60, s64, {WS_QG + n*16384}')
            k(f's_add_u32 s61, s65, {WS_VF + (n//2)*10240 + (n%2)*1024}')
            k(f's_cmp_lt_u32 s{S_NT}, 10')
            k('s_cselect_b32 s60, s60, s61')
            if OPT.get('qclr') == 2:
                k('s_sleep 4')
            sctok = k(f'buffer_store_dwordx4 {v(96,4)}, v100, {WSR}, s60 offen sc1')
    NV = 252
    if OPT.get('tlb', 0) & 1:
        k('v_lshlrev_b32 v115, 20, v1')
        for n_, sr in enumerate((S_WS, S_WO, S_WG, S_WU, S_WD, S_OUT)):
            k(f's_cmp_eq_u32 s{S_W4}, {n_ % 4}')
            k(f's_cselect_b32 s60, 0, {OOB}')
            k(f'buffer_load_dword v{116+n_}, v115, s[{sr}:{sr+3}], s60 offen')
    if OPT.get('tlb', 0) & 2:
        k('v_and_b32 v115, 15, v1')
        k(f's_lshl_b32 s60, s{S_I32}, 4')
        k('v_add_u32 v115, s60, v115')
        k('v_lshlrev_b32 v115, 16, v115')
        k(f's_cmp_eq_u32 s{S_W4}, 1')
        k(f's_cselect_b32 s60, 0, {OOB}')
        k(f'buffer_load_dword v116, v115, {WSR}, s60 offen')
        k('v_and_b32 v115, 1, v1')
        k(f's_lshl_b32 s60, s{S_I32}, 1')
        k('v_add_u32 v115, s60, v115')
        k('v_lshlrev_b32 v115, 16, v115')
        for n_, sr in enumerate((S_WO, S_WG, S_WU, S_WD, S_OUT)):
            k(f's_cmp_eq_u32 s{S_W4}, {2 + n_ % 2}')
            k(f's_cselect_b32 s60, 0, {OOB}')
            k(f'buffer_load_dword v{117+n_}, v115, s[{sr}:{sr+3}], s60 offen')
    def warm():
        k('v_lshlrev_b32 v110, 7, v0')
        k(f's_and_b32 s60, s{S_X8}, 3')
        k('s_lshl_b32 s60, s60, 5')
        k(f's_add_u32 s60, s60, s{S_I32}')
        k('s_mul_i32 s60, s60, 20480')
        k('v_cmp_gt_u32 vcc, 160, v0')
        k(f'v_mov_b32 v111, {OOB}')
        k('v_cndmask_b32 v110, v111, v110, vcc')
        k(f'buffer_load_dword v111, v110, s[{S_X}:{S_X+3}], s60 offen')
        k('v_lshrrev_b32 v110, 4, v0')
        k('v_mul_u32_u24 v110, 3840, v110')
        k('v_and_b32 v112, 15, v0')
        k('v_lshl_add_u32 v110, v112, 7, v110')
        k(f's_mul_i32 s60, s{S_I32}, {20*3840}')
        k(f's_lshr_b32 s61, s{S_X8}, 2')
        k('s_mul_i32 s61, s61, 1792')
        k('s_add_u32 s60, s60, s61')
        k(f'buffer_load_dword v113, v110, s[{S_WQKV}:{S_WQKV+3}], s60 offen')
        k(f's_add_u32 s60, s60, {16*3840}')
        k(f's_mov_b32 s61, {OOB}')
        k(f's_cmp_eq_u32 s{S_W4}, 0')
        k('s_cselect_b32 s60, s60, s61')
        k(f'buffer_load_dword v114, v110, s[{S_WQKV}:{S_WQKV+3}], s60 offen')
    if OPT.get('warm', 0) == 1:
        warm()
    k('v_lshrrev_b32 v41, 5, v1')
    k('v_bfe_u32 v42, v1, 1, 3')
    k('v_xor_b32 v42, v42, v41')
    k('v_lshlrev_b32 v43, 7, v40')
    k('v_lshl_add_u32 v43, v42, 4, v43')
    k(f'v_add_u32 v10, s{S_LW}, v43')
    for ks in range(1, 4):
        k(f'v_xor_b32 v{10+ks}, {ks*32}, v10')
    k('v_bfe_u32 v42, v1, 2, 2')
    k('v_lshl_add_u32 v43, v41, 3, v42')
    k('v_lshlrev_b32 v43, 8, v43')
    k('v_bfe_u32 v44, v1, 4, 1')
    k('v_lshl_add_u32 v43, v44, 5, v43')
    k('v_and_b32 v44, 3, v1')
    k('v_lshl_add_u32 v43, v44, 3, v43')
    k('v_add_u32 v43, 16384, v43')
    for j in range(4):
        k(f's_add_u32 s49, s{S_W4}, {j}')
        k('s_and_b32 s49, s49, 3')
        k('v_xor_b32 v44, s49, v42')
        k(f'v_lshl_add_u32 v{14+j}, v44, 6, v43')
    for i in range(8):
        k(f'v_add_u32 v{18+i}, 65536, v{10+i}')
    VSUM, VSQ, VCS, VONE = 34, 35, 36, 37
    k(f'v_mov_b32 v{VSUM}, 0')
    k(f'v_mov_b32 v{VSQ}, 0')
    k(f'v_mov_b32 v{VCS}, 0')
    k(f'v_mov_b32 v{VONE}, 0x3f803f80')
    k('v_lshrrev_b32 v105, 5, v1')
    k(f'v_mul_u32_u24 v103, {5*16384}, v105')
    k('v_add_u32 v103, v103, v109')
    k(f'v_mul_u32_u24 v104, {5*7680}, v105')
    k('v_add_u32 v104, v104, v102')
    k(f's_lshl_b32 s53, s{S_TOK}, 3')
    k(f's_add_u32 s53, s53, {WS_PS}')
    k(f's_lshl_b32 s54, s{S_NT}, 9')
    k(f's_lshl_b32 s49, s{S_W4}, 7')
    k('s_add_u32 s54, s54, s49')
    k(f's_add_u32 s54, s54, {WS_PC}')
    k('s_sub_u32 s55, s56, 5')
    k('s_cmp_ge_u32 s56, 5')
    k('s_cselect_b32 s55, s55, s56')
    XF, WF, ACC = 40, 48, 128
    PR, PCR, FL = 232, 242, 248
    stamp(k, 1)
    def nonce_share():
        def blk():
            loop, done = k.newlabel('NL'), k.newlabel('ND')
            first = k.newlabel('NF')
            k(f's_branch {first}')
            k.label(loop)
            k.raw(f'    buffer_load_dword v{NV}, v{NV+1}, s[{S_DBG}:{S_DBG+3}], 0 offen sc1')
            k.label(first)
            k.raw('    s_waitcnt vmcnt(0)')
            k(f'v_readfirstlane_b32 s{S_NONCE}, v{NV}')
            k(f's_cmp_lg_u32 s{S_NONCE}, 0')
            k(f's_cbranch_scc1 {done}')
            k(f's_cmp_eq_u32 s{S_BUD}, 0')
            k(f's_cbranch_scc1 {done}')
            k(f's_sub_u32 s{S_BUD}, s{S_BUD}, 1')
            k('s_sleep 4')
            k(f's_branch {loop}')
            k.label(done)
            k(f'v_mov_b32 v{NV+1}, {XNONCE}')
            k.raw(f'    ds_write_b32 v{NV+1}, v{NV}')
            k.raw('    s_waitcnt lgkmcnt(0)')
        k(f's_cmp_eq_u32 s{S_W}, 0')
        k.outline('s_cbranch_scc1', blk)
        k.wait(sctok)

    def nonce_pre():
        def blk():
            k(f'v_mov_b32 v{NV+1}, 0')
            k.raw(f'    buffer_load_dword v{NV}, v{NV+1}, s[{S_DBG}:{S_DBG+3}], 0 offen sc1')
        k(f's_cmp_eq_u32 s{S_W}, 0')
        k.outline('s_cbranch_scc1', blk)

    def nonce_get():
        rflag_store(k, WS_F0, 2, 107, 108)
        nonce_from_lds(k, 107)
    k(f'v_mov_b32 v107, {XCNT}')
    k('v_mov_b32 v108, 0')
    k('ds_write_b32 v107, v108')
    k('ds_write_b32 v107, v108 offset:4')
    k.wait_all(vm=False)
    if OPT.get('warm', 0) == 3:
        k('s_sleep 20')
        warm()
    stamp(k, 2)
    k('s_barrier')
    nonce_pre()
    if OPT.get('warm', 0) == 2:
        warm()
    stamp(k, 3)
    lab_v, lab_h, lab_done = k.newlabel('P1_V'), k.newlabel('C_HELP'), k.newlabel('C_P1D')
    k(f's_cmp_ge_u32 s{S_I32}, 30')
    k(f's_cbranch_scc1 {lab_h}')
    k(f's_cmp_ge_u32 s{S_NT}, 10')
    k(f's_cbranch_scc1 {lab_v}')
    saved = k.snap()
    T = {}

    def part_loads(c):
        for n in range(5):
            c(f's_add_u32 s58, s53, {n*16384}')
            c(f'buffer_load_dwordx2 {v(PR+2*n,2)}, v103, {WSR}, s58 offen sc1')
        tok = None
        for n in range(5):
            c(f's_add_u32 s58, s54, {n*7680}')
            tok = c(f'buffer_load_dword v{PCR+n}, v104, {WSR}, s58 offen sc1')
        return tok

    PRE = {}

    def mainloop(transposed):
        rd = {}

        def reads(kk):
            st, ks = kk // 4, kk % 4
            slot = st % P1_R
            q, so = slot // 2, (slot % 2) * P1_SLOT
            b = kk % 2
            ops = [[] for _ in range(4)]
            ops[0].append(lambda: rd.__setitem__((kk, 'x'), k(
                f'ds_read_b128 {v(XF+4*b,4)}, v{10+8*q+ks} offset:{so}')))
            for j in range(4):
                for hf in range(2):
                    ops[j].append(lambda j=j, hf=hf: rd.__setitem__((kk, j), k(
                        f'ds_read_b64_tr_b16 {v(WF+16*b+4*j+2*hf,2)}, v{14+8*q+j} offset:{so+ks*4096+hf*1024}')))
            return ops
        for l_ in reads(0):
            runall(k, l_)
        clr = clear_ops(k, 96, 100)
        for kk in range(40):
            b = kk % 2
            if kk % 8 == 4:
                stamp(k, 4 + kk // 8)
            fill, rds = [], []
            if kk >= OPT.get('clr0', 28) and kk != 34 and clr:
                fill.append(clr.pop(0))
            if kk + 1 < 40:
                if (kk + 1) % 4 == 0:
                    if kk == 7:
                        nonce_share()
                    if (kk + 1) // 4 in ctok:
                        k.wait(ctok[(kk + 1) // 4])
                    k.wait_all(vm=False)
                    k('s_barrier')
                    if kk == 7:
                        nonce_get()
                rds = reads(kk + 1)
            if kk < 20:
                def dots(b=b, kk=kk):
                    for i in range(4):
                        k(f'v_dot2_f32_bf16 v{VSUM}, v{XF+4*b+i}, v{VONE}, v{VSUM}')
                        k(f'v_dot2_f32_bf16 v{VSQ}, v{XF+4*b+i}, v{XF+4*b+i}, v{VSQ}')
                        k(f'v_dot2_f32_bf16 v{VCS}, v{WF+16*b+i}, v{VONE}, v{VCS}')
                    if kk % 4 == 3:
                        xsum(k, VSUM, 80, 81)
                        xsum(k, VSQ, 80, 81)
                        xsum(k, VCS, 80, 81)
                        k.raw(f'    buffer_store_dwordx2 {v(VSUM,2)}, v109, {WSR}, s51 offen sc1')
                        k.raw(f'    buffer_store_dword v{VCS}, v102, {WSR}, s52 offen sc1')

                def g_(dots=dots, kk=kk):
                    k(f's_cmp_eq_u32 s55, {kk//4}')
                    k.outline('s_cbranch_scc1', dots)
                fill.append(g_)
            if kk == 20:
                fill.append(lambda: T.__setitem__('flags', flags_issue(k, WS_F0, FL, 106)))
            if kk == OPT.get('pl', 27):
                def f():
                    flags_check(k, WS_F0, FL, 106, T['flags'])
                    T['part'] = part_loads(k)
                fill.append(f)
            if kk == 34:
                fill.append(lambda: finalize(transposed))
            fill += PRE.get(kk, [])
            mf = []
            for j in range(4):
                c = '0' if kk == 0 else v(ACC + 16 * j, 16)
                A_, B_ = v(WF + 16 * b + 4 * j, 4), v(XF + 4 * b, 4)
                if not transposed:
                    A_, B_ = B_, A_
                mf.append((lambda j=j: [rd[kk, 'x'], rd[kk, j]],
                           f'v_mfma_f32_32x32x16_bf16 {v(ACC+16*j,16)}, {A_}, {B_}, {c}'))
            roll_step(k, mf, rds, fill)

    def finalize(transposed):
        k.wait(T['part'])
        check_group(k, list(range(PR, PR + 10)) + list(range(PCR, PCR + 5)), 80, part_loads)
        for n in range(1, 5):
            k(f'v_pk_add_f32 {v(PR,2)}, {v(PR,2)}, {v(PR+2*n,2)}')
            k(f'v_add_f32 v{PCR}, v{PCR}, v{PCR+n}')
        xsum(k, PCR, 80, 81)
        k(f's_lshl_b32 s49, s{S_W4}, 7')
        k(f's_add_u32 s49, s49, {XCH}')
        k('v_add_u32 v82, s49, v102')
        k(f'ds_write_b32 v82, v{PCR}')
        vsum, vsq = PR, PR + 1
        xsum(k, vsum, 80, 81)
        xsum(k, vsq, 80, 81)
        k(f'v_mul_f32 v{vsum}, {f32(1.0/640)}, v{vsum}')
        k(f'v_mul_f32 v{vsq}, {f32(1.0/640)}, v{vsq}')
        k(f'v_fma_f32 v{vsq}, -v{vsum}, v{vsum}, v{vsq}')
        k(f'v_max_f32 v{vsq}, 0, v{vsq}')
        rbf(k, 80, vsum)
        rbf(k, 81, vsq)
        k(f'v_add_f32 v81, {f32(1e-5)}, v81')
        rbf(k, 81, 81)
        k('v_sqrt_f32 v81, v81')
        rbf(k, 81, 81)
        k('v_rcp_f32 v38, v81')
        if transposed:
            k(f's_mov_b32 s49, {f32(math.log2(math.e)/math.sqrt(20.0))}')
            k(f's_cmp_lt_u32 s{S_NT}, 5')
            k('s_cselect_b32 s49, s49, 1.0')
            k('v_mul_f32 v38, s49, v38')
        k('v_mul_f32 v39, v80, v38')
        k('v_sub_f32 v39, 0, v39')
        if not transposed:
            k(f's_lshl_b32 s49, s{S_W4}, 8')
            k(f's_add_u32 s49, s49, {XCH}')
            k('v_add_u32 v83, s49, v102')
            k('ds_write_b32 v83, v38 offset:1024')
            k('ds_write_b32 v83, v39 offset:1152')

    def fin():
        stamp(k, 10)
        k(f's_lshl_b32 s49, s{S_MT}, 4')
        k(f's_add_u32 s49, s49, s{S_NT}')
        k.wait_all()
        wflag_store(k, WS_F2, 49, 80, 81, 0)
        k(f's_branch {lab_done}')

    toks = {}
    CB = {0: 192, 1: 208, 2: 48, 3: 64}

    def csreads(j):
        k(f's_add_u32 s49, s{S_W4}, {j}')
        k('s_and_b32 s49, s49, 3')
        k('s_lshl_b32 s52, s49, 7')
        k('v_add_u32 v86, s52, v85')
        for a_ in range(4):
            toks[j, a_] = k(f'ds_read_b128 {v(CB[j]+4*a_,4)}, v86 offset:{a_*32}')

    def csmul(j):
        k.wait(toks[j, 3])
        for q in range(8):
            k(f'v_pk_mul_f32 {v(CB[j]+2*q,2)}, {v(CB[j]+2*q,2)}, {v(38,2)} op_sel:[0,1] op_sel_hi:[1,1]')

    def pre_qk():
        k(f's_lshl_b32 s49, s{S_TOK}, 3')
        k('v_add_u32 v84, s49, v109')
        k('v_lshl_add_u32 v84, v105, 14, v84')
        k('v_lshlrev_b32 v85, 4, v105')
        k(f'v_add_u32 v85, {XCH}, v85')
        csreads(0)
        csreads(1)
    PRE.clear()
    PRE.update({36: [pre_qk], 37: [lambda: csmul(0)], 38: [lambda: csmul(1)]})
    mainloop(True)
    stamp(k, 9)
    k('s_barrier')
    csreads(2)
    csreads(3)
    for j in range(4):
        k(f's_add_u32 s49, s{S_W4}, {j}')
        k('s_and_b32 s49, s49, 3')
        k(f's_lshl_b32 s52, s{S_NT}, 5')
        k('s_lshl_b32 s53, s49, 3')
        k('s_add_u32 s52, s52, s53')
        k('s_lshl_b32 s52, s52, 14')
        if j >= 2:
            csmul(j)
        C0 = CB[j]
        for a_ in range(4):
            r0 = ACC + 16 * j + 4 * a_
            for p in range(2):
                k(f'v_pk_fma_f32 {v(r0+2*p,2)}, {v(r0+2*p,2)}, {v(38,2)}, {v(C0+4*a_+2*p,2)} op_sel_hi:[1,0,1]')
            k(f'v_cvt_pk_bf16_f32 v{112+2*a_}, v{r0}, v{r0+1}')
            k(f'v_cvt_pk_bf16_f32 v{113+2*a_}, v{r0+2}, v{r0+3}')
            k(f's_add_u32 s53, s52, {WS_QG + a_*32768}')
            k(f'buffer_store_dwordx2 {v(112+2*a_,2)}, v84, {WSR}, s53 offen sc1')
    fin()
    k.label(lab_v)
    k.restore(saved)
    tl = []

    def pre_v():
        k(f's_lshl_b32 s49, s{S_W4}, 8')
        k(f's_add_u32 s49, s49, {XCH}')
        k('v_lshlrev_b32 v86, 4, v105')
        k('v_add_u32 v86, s49, v86')
        for a_ in range(4):
            tl.append(k(f'ds_read_b128 {v(192+4*a_,4)}, v86 offset:{1024+a_*32}'))

    def pre_v2():
        for a_ in range(4):
            tl.append(k(f'ds_read_b128 {v(208+4*a_,4)}, v86 offset:{1152+a_*32}'))

    def pre_v3():
        for j in range(4):
            k(f's_add_u32 s52, s{S_W4}, {j}')
            k('s_and_b32 s52, s52, 3')
            k('s_lshl_b32 s52, s52, 7')
            k(f's_add_u32 s52, s52, {XCH}')
            k('v_add_u32 v87, s52, v102')
            tl.append(k(f'ds_read_b32 v{224+2*j}, v87'))
        k('v_mul_u32_u24 v84, 10240, v105')
        k('v_lshl_add_u32 v84, v102, 2, v84')
        k(f's_lshr_b32 s53, s{S_TOK}, 5')
        k('s_mul_i32 s53, s53, 40960')
        k(f's_sub_u32 s54, s{S_NT}, 10')
        k('s_lshl_b32 s54, s54, 11')
        k('s_add_u32 s53, s53, s54')
        k(f's_add_u32 s53, s53, {WS_VF}')
    PRE.clear()
    PRE.update({36: [pre_v], 37: [pre_v2], 38: [pre_v3]})
    mainloop(False)
    stamp(k, 9)
    k.wait(*tl)
    k('s_barrier')
    for j in range(4):
        k(f's_add_u32 s52, s{S_W4}, {j}')
        k('s_and_b32 s52, s52, 3')
        k('s_lshl_b32 s52, s52, 9')
        k('s_add_u32 s52, s52, s53')
        for m in range(2):
            for p in range(4):
                i = 8 * m + 2 * p
                r0 = ACC + 16 * j + i
                k(f'v_pk_mul_f32 {v(88+2*(p%2),2)}, {v(208+i,2)}, {v(224+2*j,2)} op_sel_hi:[1,0]')
                k(f'v_pk_fma_f32 {v(r0,2)}, {v(r0,2)}, {v(192+i,2)}, {v(88+2*(p%2),2)}')
                k(f'v_cvt_pk_bf16_f32 v{112+8*(j%2)+4*m+p}, v{r0}, v{r0+1}')
            k(f's_add_u32 s54, s52, {m*20480}')
            k(f'buffer_store_dwordx4 {v(112+8*(j%2)+4*m,4)}, v84, {WSR}, s54 offen sc1')
    fin()
    k.label(lab_h)
    k.restore(saved)
    nonce_share()
    k('s_barrier')
    nonce_get()
    for _ in range(8):
        k('s_barrier')
    runall(k, clear_ops(k, 96, 100))
    k('s_barrier')
    k(f's_lshl_b32 s49, s{S_X8}, 1')
    k(f's_add_u32 s49, s49, s{S_I32}')
    k('s_sub_u32 s49, s49, 30')
    k('s_lshl_b32 s49, s49, 4')
    k('s_add_u32 s49, s49, 15')
    k.wait_all()
    wflag_store(k, WS_F2, 49, 80, 81, 0)
    k.label(lab_done)


P5_BAR = (2, 4, 6, 8, 10)


class G35:
    def __init__(self, k, which, groups, vb, sb):
        self.k = k
        self.which = which
        self.KT = 640 if which == 3 else 1536
        self.NST = self.KT // 128
        self.SB = S_WO if which == 3 else S_WD
        self.groups = groups
        self.vb = vb
        self.sb = sb
        self.btok = {}
        self.rtok = {}
        self.sr = 36 if which == 3 else 37

    def set_rho(self, sct):
        k = self.k
        sr = self.sr
        if not OPT.get('rot35', 1):
            k(f's_mov_b32 s{sr}, 0')
        elif self.which == 3:
            k(f's_sub_u32 s{sr}, s{sct}, 5')
            k(f's_cmp_ge_u32 s{sct}, 5')
            k(f's_cselect_b32 s{sr}, s{sr}, s{sct}')
        else:
            k(f's_mul_i32 s{sr}, s{sct}, 3')
            k(f's_lshr_b32 s{sr}, s{sr}, 1')

    def rot(self, c, st, sreg, stmp, mul, src=None):
        c(f's_add_u32 s{sreg}, s{self.sr if src is None else src}, {st}')
        c(f's_sub_u32 s{stmp}, s{sreg}, {self.NST}')
        c(f's_cmp_ge_u32 s{sreg}, {self.NST}')
        c(f's_cselect_b32 s{sreg}, s{stmp}, s{sreg}')
        c(f's_mul_i32 s{sreg}, s{sreg}, {mul}')

    def dma_setup(self, t0):
        k, vb, sb = self.k, self.vb, self.sb
        tile35(k, 61, 60, sb)
        self.set_rho(60)
        k('s_mul_i32 s60, s60, 160')
        k(f's_mul_i32 s{sb+1}, s{S_W4}, {(self.KT//4)*1280}')
        k(f's_add_u32 s60, s60, s{sb+1}')
        for n in range(5):
            k(f'v_add_u32 v{t0}, {64*n}, v1')
            k(f'v_mul_u32_u24 v{t0+1}, 6554, v{t0}')
            k(f'v_lshrrev_b32 v{t0+1}, 16, v{t0+1}')
            k(f'v_mul_u32_u24 v{t0+2}, 10, v{t0+1}')
            k(f'v_sub_u32 v{t0+2}, v{t0}, v{t0+2}')
            k(f'v_bfe_u32 v{t0+3}, v{t0+1}, 3, 1')
            k(f'v_lshlrev_b32 v{t0+3}, 2, v{t0+3}')
            k(f'v_xor_b32 v{t0+1}, v{t0+1}, v{t0+3}')
            k(f'v_mul_u32_u24 v{t0+1}, 1280, v{t0+1}')
            k(f'v_lshl_add_u32 v{vb+n}, v{t0+2}, 4, v{t0+1}')
            k(f'v_add_u32 v{vb+n}, s60, v{vb+n}')
            if 0 < n < 4:
                k(f'v_subrev_u32 v{vb+n}, {n*1024}, v{vb+n}')
        k(f's_mul_i32 s{sb}, s{S_W4}, 5120')

    def dma_step(self, st):
        k, vb, sb = self.k, self.vb, self.sb
        base = self.groups[st % len(self.groups)]
        SB = self.SB
        ops = []

        def f0():
            k(f's_add_u32 m0, s{sb}, {base}')
            self.rot(k, st, sb + 1, 38, 32 * 1280)
        ops.append(f0)
        for n in range(4):
            ops.append(lambda n=n: self.btok.__setitem__(st, k(
                f'buffer_load_dwordx4 v{vb+n}, s[{SB}:{SB+3}], s{sb+1} offen offset:{n*1024} lds')))
        ops.append(lambda: k(f's_add_u32 m0, s{sb}, {base+4096}'))
        ops.append(lambda: self.btok.__setitem__(st, k(
            f'buffer_load_dwordx4 v{vb+4}, s[{SB}:{SB+3}], s{sb+1} offen lds')))
        return ops

    def breg_load(self, st, r0):
        k, vb, sb, SB = self.k, self.vb, self.sb, self.SB
        self.rot(k, st, sb + 1, 38, 32 * 1280)
        for n in range(4):
            k(f'buffer_load_dwordx4 {v(r0+4*n,4)}, v{vb+n}, s[{SB}:{SB+3}], s{sb+1} offen offset:{n*1024}')
            if OPT.get('pace', 0):
                k(f's_sleep {OPT.get("pace")}')
        self.rtok[st] = (k(f'buffer_load_dwordx4 {v(r0+16,4)}, v{vb+4}, s[{SB}:{SB+3}], s{sb+1} offen'), r0)

    def breg_write(self, st, va):
        k = self.k
        tok, r0 = self.rtok[st]
        base = self.groups[st % len(self.groups)]
        q, so = base // 61440, base % 61440
        k.wait(tok)
        for n in range(5):
            self.btok[st] = k(f'ds_write_b128 v{va+q}, {v(r0+4*n,4)} offset:{so+n*1024}')

    def loader(self, nb_pre, st0=0):
        k, NST = self.k, self.NST
        NG = len(self.groups)
        k('v_lshlrev_b32 v12, 4, v1')
        k(f's_mul_i32 s46, s{S_W4}, 5120')
        k('v_add_u32 v21, s46, v12')
        k('v_add_u32 v22, 61440, v21')
        k('v_add_u32 v23, 122880, v21')
        stamp(k, st0)
        k.wait(*[self.btok[s_] for s_ in range(7)])
        k('s_barrier')

        def put(nb):
            if nb in self.rtok:
                self.breg_write(nb, 21)
            else:
                runall(k, self.dma_step(nb))
        k('s_barrier')
        for nb in (7, 8, 9):
            put(nb)
        k('s_barrier')
        put(11)
        put(10)
        k.wait(self.btok[7], self.btok[8])
        k('s_barrier')
        k.wait(self.btok[9], self.btok[10])
        k('s_barrier')
        k.wait(self.btok[11])
        k('s_barrier')
        stamp(k, st0 + 3)

    def compute(self, own_tok, st0=0):
        k, NST, which, KT = self.k, self.NST, self.which, self.KT
        NG = len(self.groups)
        ABASE = WS_OC if which == 3 else WS_HC
        S_RT, S_CT, S_PAR = 44, 45, 50
        if which == 3:
            for st_ in range(OPT.get('woL', 4), 5):
                runall(k, self.dma_step(st_))
        tile35(k, 44, 45, 46)
        self.set_rho(45)
        k('s_mov_b32 s50, 0')
        k(f's_mul_i32 s51, s{S_W4}, 5120')
        k('v_and_b32 v15, 15, v1')
        k('v_lshrrev_b32 v16, 4, v1')
        k('v_bfe_u32 v17, v1, 2, 2')
        k('v_lshl_add_u32 v18, v16, 3, v17')
        k('v_bfe_u32 v20, v1, 4, 1')
        k('v_lshlrev_b32 v20, 2, v20')
        k('v_xor_b32 v19, v18, v20')
        k('v_xor_b32 v22, 4, v19')
        k('v_and_b32 v21, 3, v1')
        RA = 24
        for hf, src in ((0, 19), (1, 22)):
            k(f'v_mul_u32_u24 v{RA+hf}, 160, v{src}')
            k(f'v_lshl_add_u32 v{RA+hf}, v21, 3, v{RA+hf}')
            k(f'v_add_u32 v{RA+hf}, s51, v{RA+hf}')
        QS = 61440
        for q in (1, 2):
            for i in range(2):
                k(f'v_add_u32 v{RA+2*q+i}, {q*QS}, v{RA+i}')
        k('v_lshlrev_b32 v2, 4, v1')
        k('v_lshlrev_b32 v3, 4, v15')
        k('v_lshl_add_u32 v3, v16, 15, v3')
        for tau in range(4):
            k(f's_add_u32 s46, s{S_W4}, {tau}')
            k('s_and_b32 s46, s46, 3')
            k('s_lshl_b32 s46, s46, 8')
            k(f'v_add_u32 v{4+tau}, s46, v3')
        k('s_lshl_b32 s53, s44, 10')
        k(f's_mul_i32 s54, s{S_W4}, {(KT//32)*32768}')
        k('s_add_u32 s53, s53, s54')
        k(f's_add_u32 s53, s53, {ABASE}')
        NW = 5
        AFR = 164
        atok = {}

        def aload(c, st, sreg):
            self.rot(c, st, sreg, 38, 4 * 32768)
            c(f's_add_u32 s{sreg}, s{sreg}, s53')
            t_ = None
            for t in range(4):
                t_ = c(f'buffer_load_dwordx4 {v(AFR+16*(st%NW)+4*t,4)}, v{4+t}, {WSR}, s{sreg} offen sc1')
            return t_
        RES = 244
        XG = [0, 20480, 40960] if which == 3 else [0, 20480, 49152]
        k('v_add_u32 v30, s51, v2')
        for tau in range(1, 4):
            k(f's_sub_u32 s47, s{S_W4}, {tau}')
            k('s_and_b32 s47, s47, 3')
            k('s_mul_i32 s47, s47, 5120')
            k(f'v_add_u32 v{30+tau}, s47, v2')
        k(f's_lshl_b32 s46, s{S_RT}, 6')
        k(f's_lshl_b32 s47, s{S_W4}, 4')
        k('s_add_u32 s46, s46, s47')
        S_TK = 46
        k('v_add_u32 v12, s46, v15')
        if which == 3:
            k('v_lshlrev_b32 v34, 4, v12')
            k('v_lshrrev_b32 v14, 1, v16')
            k('v_lshl_add_u32 v35, v14, 15, v34')
            k('v_and_b32 v14, 1, v16')
            k('v_lshl_add_u32 v36, v14, 16, v35')
            k('v_lshl_add_u32 v34, v14, 3, v35')
            k('v_lshlrev_b32 v37, 3, v12')
            k('v_mov_b32 v38, 0x3f803f80')
        else:
            P = 176
            k(f'v_mul_u32_u24 v34, {P}, v15')
            k('v_lshl_add_u32 v34, v16, 3, v34')
            k(f's_lshl_b32 s47, s{S_W4}, 12')
            k('s_add_u32 s47, s47, 90112')
            k('v_add_u32 v34, s47, v34')
            for it in range(3):
                k(f'v_add_u32 v17, {64*it}, v1')
                k('v_mul_u32_u24 v18, 6554, v17')
                k('v_lshrrev_b32 v18, 16, v18')
                k('v_mul_u32_u24 v19, 10, v18')
                k('v_sub_u32 v19, v17, v19')
                k(f'v_mul_u32_u24 v20, {P}, v18')
                k('v_lshl_add_u32 v20, v19, 4, v20')
                k(f'v_add_u32 v{35+it}, s47, v20')
                k('v_mul_u32_u24 v20, 1280, v18')
                k(f'v_lshl_add_u32 v{38+it}, v19, 4, v20')
        if which == 3:
            k('v_mul_u32_u24 v13, 1280, v12')
            k('v_lshl_add_u32 v13, v16, 3, v13')
            k(f's_mul_i32 s47, s{S_CT}, 160')
            k(f's_lshl_b32 s48, s{S_PAR}, 5')
            k('s_add_u32 s48, s48, s47')
            k(f's_lshl_b32 s49, s{S_PAR}, 7')
            k('s_sub_u32 s49, 128, s49')
            k('s_add_u32 s49, s49, s47')
            for jt in range(4):
                k(f'buffer_load_dwordx2 {v(RES+2*jt,2)}, v13, s[{S_X}:{S_X+3}], s48 offen offset:{jt*32}')
            rtk = k(f'buffer_load_dwordx2 {v(RES+8,2)}, v13, s[{S_X}:{S_X+3}], s49 offen')
            k('v_bfe_u32 v10, v1, 1, 2')
            k(f'v_mul_u32_u24 v10, {5*32768}, v10')
            k('v_and_b32 v11, 1, v1')
            k('v_lshl_add_u32 v10, v11, 3, v10')
            k('v_bfe_u32 v11, v1, 3, 1')
            k('v_lshl_add_u32 v10, v11, 9, v10')
            k(f's_add_u32 s55, s53, {2*32768 + 31*16}')
            tile4(k, 48, 49, 47)
            k('s_lshl_b32 s48, s48, 4')
            k('s_add_u32 s49, s49, s48')
            stamp(k, st0 - 1)
            k('s_barrier')
            rflag_store(k, WS_F3, 49, 8, 9)
            stamp(k, st0)
            if OPT.get('odelay', 0):
                k(f's_sleep {OPT.get("odelay")}')
            if OPT.get('probe', 0) & 1:
                probe(k, 55, 10, 11)
        else:
            stamp(k, st0)
            k.wait(own_tok)
            if OPT.get('Hdelay', 0):
                k(f's_sleep {OPT.get("Hdelay")}')
            if OPT.get('probe', 0) & 4:
                k('v_and_b32 v10, 3, v1')
                k(f'v_mul_u32_u24 v10, {12*32768}, v10')
                k('v_bfe_u32 v11, v1, 2, 1')
                k('v_lshl_add_u32 v10, v11, 9, v10')
                k(f's_add_u32 s55, s53, {11*32768 + 31*16}')
                probe(k, 55, 10, 11)
        stamp(k, st0 + 1)
        ACC, WF = 44, 124
        D = OPT.get('ad', 1)
        for st in range(D):
            atok[st] = aload(k, st, 54)
        rt = {}

        def reads(st):
            base = self.groups[st % NG]
            q, so = base // QS, base % QS
            b = st % 2
            ops = []
            for jt in range(5):
                for hf in range(2):
                    ops.append(lambda jt=jt, hf=hf: rt.__setitem__((st, jt), k(
                        f'ds_read_b64_tr_b16 {v(WF+20*b+4*jt+2*hf,2)}, v{RA+2*q+hf} offset:{so+jt*32}')))
            return ops
        if which == 5:
            k('s_barrier')
        runall(k, reads(0))
        if which == 3:
            k.wait(rtk)
        for i in range(10):
            k(f'v_lshlrev_b32 v{ACC+2*i}, 16, v{RES+i}')
            k(f'v_and_b32 v{ACC+2*i+1}, 0xffff0000, v{RES+i}')
        na = D
        for st in range(NST):
            b = st % 2
            R0 = AFR + 16 * (st % NW)
            if which == 5 and OPT.get('p5st') and st >= 1:
                stamp(k, 12 + st)
            k.wait(atok[st])
            hi = na if OPT.get('rall', 1) else st + 1
            check_group(k, range(R0, R0 + 16), 14, lambda c, st=st, hi=hi: [aload(c, s_, 58) for s_ in range(st, hi)],
                        pre=(st >= 2))
            if st == 0:
                stamp(k, st0 + 2)
            if which == 5 and OPT.get('p5st') and st >= 1:
                stamp(k, st)
            mf = []
            for t in ((1, 2, 3, 0) if st == NST - 1 else range(4)):
                for jt in range(5):
                    acc = v(ACC + 20 * t + 4 * jt, 4)
                    c = '0' if (st == 0 and t != 0) else acc
                    mf.append((lambda jt=jt: [rt[st, jt]],
                               f'v_mfma_f32_16x16x32_bf16 {acc}, {v(WF+20*b+4*jt,4)}, {v(R0+4*t,4)}, {c}'))
            rds = [[] for _ in range(20)]
            cnt = 0
            while na < NST and na <= st + NW - 1 and cnt < 2:
                def al(na=na):
                    self.rot(k, na, 54, 38, 4 * 32768)
                    k('s_add_u32 s54, s54, s53')
                rds[0 + 10 * cnt].append(al)
                for t in range(4):
                    rds[0 + 10 * cnt + 2 * t].append(lambda t=t, na=na: atok.__setitem__(na, k(
                        f'buffer_load_dwordx4 {v(AFR+16*(na%NW)+4*t,4)}, v{4+t}, {WSR}, s54 offen sc1')))
                na += 1
                cnt += 1
            if st + 1 < NST:
                if which == 5 and st in P5_BAR:
                    def bar():
                        k.wait_all(vm=False)
                        k('s_barrier')
                    rds[5].append(bar)
                for i, f in enumerate(reads(st + 1)):
                    rds[5 + i].append(f)
            if 1 <= st < NST - 1:
                R1 = AFR + 16 * ((st + 1) % NW)
                rds[15].append(lambda st=st: k.wait(atok[st + 1]))
                for i_, o_ in enumerate(maxchain_ops(range(R1, R1 + 16), 14)):
                    rds[15 + i_ // 2].append(o_)
            if st == NST - 1:
                for tau in range(1, 3):
                    for jt in range(5):
                        rds[5 * tau + 4 + jt if tau == 1 else 14 + jt].append(
                            f'ds_write_b128 v30, {v(ACC+20*tau+4*jt,4)} offset:{XG[tau-1]+jt*1024}')
            roll_step(k, mf, rds, [])
        stamp(k, st0 + 3)
        for jt in range(5):
            k(f'ds_write_b128 v30, {v(ACC+60+4*jt,4)} offset:{XG[2]+jt*1024}')
        if which == 3:
            k(f's_mul_i32 s48, s{S_CT}, 10')
            k('s_lshl_b32 s48, s48, 15')
            k(f's_add_u32 s48, s48, {WS_H1}')
            k(f's_lshl_b32 s49, s{S_CT}, 14')
            k(f's_add_u32 s49, s49, {WS_HS}')
            k('v_mov_b32 v40, 0')
            k('v_mov_b32 v41, 0')
        else:
            k(f's_mul_i32 s48, s{S_CT}, 160')
            k(f's_mul_i32 s49, s{S_TK}, 1280')
            k('s_add_u32 s48, s48, s49')
        k.wait_all(vm=False)
        k('s_barrier')
        S0, S1 = ACC, 124
        toks = {}
        for jt in range(5):
            for sidx in range(3):
                toks[sidx, jt] = k(f'ds_read_b128 {v(S1+20*sidx+4*jt,4)}, v{31+sidx} offset:{XG[sidx]+jt*1024}')
        PK = RES if which == 3 else 190
        for jt in range(5):
            k.wait(toks[2, jt])
            for p in range(2):
                r = 4 * jt + 2 * p
                k(f'v_pk_add_f32 {v(S1+r,2)}, {v(S1+r,2)}, {v(S1+20+r,2)}')
                k(f'v_pk_add_f32 {v(S0+r,2)}, {v(S0+r,2)}, {v(S1+40+r,2)}')
            for p in range(2):
                r = 4 * jt + 2 * p
                k(f'v_pk_add_f32 {v(S0+r,2)}, {v(S0+r,2)}, {v(S1+r,2)}')
            for p in range(2):
                r = 4 * jt + 2 * p
                k(f'v_cvt_pk_bf16_f32 v{PK+2*jt+p}, v{S0+r}, v{S0+r+1}')
            if which == 3:
                if jt < 4:
                    for p in range(2):
                        k(f'v_mov_b32 v{200+2*jt+p}, v{PK+2*jt+p}')
                if jt in (1, 3):
                    pr = jt // 2
                    for d in range(2):
                        k(f'v_permlane16_swap_b32 v{200+4*pr+d}, v{200+4*pr+2+d}')
                    k(f's_add_u32 s47, s48, {pr*4*32768}')
                    k(f'buffer_store_dwordx4 {v(200+4*pr,4)}, v36, {WSR}, s47 offen sc1')
                if jt == 4:
                    k(f's_add_u32 s47, s48, {8*32768}')
                    k(f'buffer_store_dwordx2 {v(PK+8,2)}, v34, {WSR}, s47 offen sc1')
            else:
                k(f'ds_write_b64 v34, {v(PK+2*jt,2)} offset:{jt*32}')
        stamp(k, st0 + 4)
        if which == 3:
            for i in range(10):
                k(f'v_dot2_f32_bf16 v40, v{PK+i}, v38, v40')
                k(f'v_dot2_f32_bf16 v41, v{PK+i}, v{PK+i}, v41')
            for r in (40, 41):
                xsum(k, r, 156, 157, 32)
                xsum(k, r, 156, 157, 16)
            k('s_mov_b64 exec, 0xffff')
            self.own = k(f'buffer_store_dwordx2 {v(40,2)}, v37, {WSR}, s49 offen sc1')
            k('s_mov_b64 exec, -1')
            k('s_barrier')
        else:
            k.wait_all(vm=False)
            tl = [k(f'ds_read_b128 {v(168+4*it,4)}, v{35+it}') for it in range(3)]
            for it in range(3):
                k.wait(tl[it])
                if it == 2:
                    k('v_cmp_gt_u32 vcc, 32, v1')
                    k('s_mov_b64 exec, vcc')
                k(f'buffer_store_dwordx4 {v(168+4*it,4)}, v{38+it}, s[{S_OUT}:{S_OUT+3}], s48 offen' + {0: ' sc1', 1: '', 2: ' nt', 3: ' sc0 sc1'}[OPT.get('outm', 2)])
            k('s_mov_b64 exec, -1')


def p2_setup(k):
    LK, LV = 102400, 122880
    k(f's_and_b32 s45, s{S_I32}, 3')
    k(f's_lshl_b32 s44, s{S_X8}, 2')
    k('s_add_u32 s45, s45, s44')
    k(f's_lshr_b32 s44, s{S_I32}, 2')
    S_I, S_H = 44, 45
    k(f's_lshl_b32 s46, s{S_I}, 8')
    k('s_sub_u32 s47, s46, 256')
    k('s_max_i32 s47, s47, 0')
    k(f's_cmp_lt_u32 s{S_W4}, 2')
    k('s_cselect_b32 s48, s47, s46')
    k('s_mov_b32 s50, s48')
    k(f's_and_b32 s49, s{S_W4}, 1')
    k('s_lshl_b32 s49, s49, 7')
    k('s_add_u32 s48, s48, s49')
    k('s_lshl_b32 s48, s48, 3')
    k(f's_mul_i32 s49, s{S_H}, {5*16384}')
    k('s_add_u32 s48, s48, s49')
    k(f's_add_u32 s48, s48, {WS_KG}')
    k('v_lshlrev_b32 v2, 4, v1')
    k('s_lshr_b32 s50, s50, 3')
    k('s_mul_i32 s50, s50, 10240')
    k(f's_mul_i32 s49, s{S_H}, 320')
    k('s_add_u32 s50, s50, s49')
    k(f's_add_u32 s50, s50, {WS_VF}')
    k(f's_cmp_lt_u32 s{S_W}, 4')
    k('s_cselect_b32 s48, s48, s50')
    k('s_cselect_b64 s[96:97], -1, 0')
    k(f's_lshl_b32 s49, s{S_W4}, 10')
    k(f's_add_u32 s49, s49, {LK}')
    k(f's_mul_i32 s50, s{S_W4}, 5120')
    k(f's_add_u32 s50, s50, {LV}')
    k(f's_cmp_lt_u32 s{S_W}, 4')
    k('s_cselect_b32 s50, s49, s50')
    k('s_movk_i32 s56, 1024')
    k('s_cselect_b32 s56, 4096, s56')
    k(f's_and_b32 s49, s{S_W4}, 1')
    k('s_mul_i32 s49, s49, 320')
    for n in range(5):
        k(f'v_add_u32 v3, {n*64}, v1')
        k('v_add_u32 v3, s49, v3')
        k('v_mul_u32_u24 v4, 3277, v3')
        k('v_lshrrev_b32 v4, 16, v4')
        k('v_mul_u32_u24 v5, 20, v4')
        k('v_sub_u32 v5, v3, v5')
        k('v_mul_u32_u24 v4, 10240, v4')
        k(f'v_lshl_add_u32 v4, v5, 4, v4')
        k(f'v_add_u32 v5, {n*16384}, v2')
        k(f'v_cndmask_b32 v{6+n}, v4, v5, s[96:97]')
    k('v_and_b32 v12, 31, v1')
    k('v_lshrrev_b32 v13, 5, v1')
    k('v_lshlrev_b32 v14, 3, v12')
    k('v_lshl_add_u32 v15, v13, 15, v14')
    k(f's_lshl_b32 s51, s{S_W}, 5')
    k('s_add_u32 s51, s51, s46')
    S_Q0 = 51
    k('s_lshl_b32 s52, s51, 3')
    k(f's_mul_i32 s49, s{S_H}, {5*16384}')
    k('s_add_u32 s52, s52, s49')
    k(f's_add_u32 s52, s52, {WS_QG}')
    k('s_add_u32 s53, s52, 16384')
    k(f's_add_u32 s54, s52, {4*16384}')
    PM, NM, ONE, QF, KV, OACC, SB0 = 24, 32, 36, 40, 48, 72, 88
    k('v_lshlrev_b32 v3, 2, v13')
    for i in range(16):
        a_, b_ = i // 4, i % 4
        k(f'v_add_u32 v4, {8*a_+b_}, v3')
        k(f'v_cmp_le_u32 s[{64+2*i}:{65+2*i}], v4, v12')
    k('v_mov_b32 v5, 0xffff')
    k('v_mov_b32 v11, 0xffff0000')
    for p in range(8):
        k(f'v_cndmask_b32 v3, 0, v5, s[{64+4*p}:{65+4*p}]')
        k(f'v_cndmask_b32 v4, 0, v11, s[{66+4*p}:{67+4*p}]')
        k(f'v_or_b32 v{PM+p}, v3, v4')
    k('v_cmp_eq_u32 s[96:97], 1, v13')
    k('v_cmp_gt_u32 s[98:99], 20, v12')
    k('v_cmp_eq_u32 s[100:101], 0, v13')
    k(f's_lshl_b32 s49, s{S_W}, 8')
    k(f's_add_u32 s49, s49, {LK}')
    k('v_lshl_add_u32 v16, v13, 13, v14')
    k('v_add_u32 v16, s49, v16')
    k('v_add_u32 v17, s49, v14')
    k(f's_and_b32 s55, s{S_H}, 1')
    S_PI = 55
    k('v_bfe_u32 v3, v12, 3, 1')
    k('v_bfe_u32 v4, v12, 2, 1')
    k('v_and_b32 v5, 3, v12')
    k('v_lshl_add_u32 v18, v3, 2, v5')
    k('v_lshl_add_u32 v18, v4, 3, v18')
    k('s_lshl_b32 s49, s55, 2')
    k('v_add_u32 v18, s49, v18')
    k('s_lshl_b32 s49, s55, 4')
    k('s_sub_u32 s49, 16, s49')
    k('v_add_u32 v19, s49, v5')
    k('v_cmp_gt_u32 vcc, 16, v12')
    k('v_cndmask_b32 v18, v19, v18, vcc')
    k('v_mul_u32_u24 v19, 320, v13')
    k('v_lshl_add_u32 v18, v18, 4, v19')
    k(f's_mul_i32 s49, s{S_W}, 1280')
    k(f's_add_u32 s49, s49, {LV}')
    k('v_add_u32 v18, s49, v18')
    k('v_mov_b32 v19, 0')
    k('v_mov_b32 v4, 0x3f803f80')
    k('v_cmp_eq_u32 vcc, 20, v12')
    k('v_cndmask_b32 v19, v19, v4, vcc')
    k('v_cmp_eq_u32 vcc, 24, v12')
    k('v_cndmask_b32 v19, v19, v4, vcc')
    for b in range(3):
        k(f'v_mov_b32 v{KV+8*b+6}, 0')
        k(f'v_mov_b32 v{KV+8*b+7}, 0')
    k(f'v_mov_b32 v{QF+6}, 0')
    k(f'v_mov_b32 v{QF+7}, 0')
    k(f'v_cndmask_b32 v{ONE}, v4, 0, s[96:97]')
    for i in range(1, 4):
        k(f'v_mov_b32 v{ONE+i}, 0')
        k(f'v_mov_b32 v{NM+i}, 0')
    k('v_and_b32 v3, 15, v1')
    k(f's_mul_i32 s49, s{S_H}, 20')
    k('s_mov_b64 s[46:47], 0')
    for base, isq in ((0, True), (640, False), (1280, False)):
        for e in (0, 19):
            k(f's_add_u32 s60, s49, {base+e}')
            k('s_lshr_b32 s60, s60, 7')
            k('v_cmp_eq_u32 vcc, s60, v3')
            if isq:
                k('s_and_b64 vcc, vcc, s[96:97]')
            k('s_or_b64 s[46:47], s[46:47], vcc')
    k(f's_cmp_eq_u32 s{S_I}, 0')
    k('s_cselect_b32 s46, 0, s46')
    k(f's_lshl_b32 s49, s{S_I}, 7')
    k(f's_lshl_b32 s60, s{S_X8}, 10')
    k('s_add_u32 s49, s49, s60')
    k(f's_add_u32 s49, s49, {WS_F2 - 128}')
    k('v_lshlrev_b32 v3, 2, v1')


def emit_p2(k, g3):
    LK, LV = 102400, 122880
    S_I, S_H, S_Q0, S_PI = 44, 45, 51, 55
    PM, NM, ONE, QF, KV, OACC, SB0 = 24, 32, 36, 40, 48, 72, 88
    wflag_poll(k, 49, 3, 4, 46, 1, True)
    k('s_barrier')
    stamp(k, 12)
    def kvdma():
        k('s_mov_b32 m0, s50')
        for n in range(5):
            if n:
                k('s_add_u32 m0, m0, s56')
            k.raw(f'    s_nop 0')
            k.raw(f'    buffer_load_dwordx4 v{6+n}, {WSR}, s48 offen sc1 lds')
    k(f's_cmp_lt_u32 s{S_W}, 4')
    k.outline('s_cbranch_scc1', kvdma)
    k(f'buffer_load_dwordx2 {v(QF,2)}, v15, {WSR}, s52 offen sc1')
    k(f'buffer_load_dwordx2 {v(QF+2,2)}, v15, {WSR}, s53 offen sc1')
    qt = k(f'buffer_load_dwordx2 {v(QF+4,2)}, v14, {WSR}, s54 offen sc1')
    k.wait(qt)
    k(f's_cmp_ge_u32 s{S_W}, 4')
    k.outline('s_cbranch_scc1', kvdma)
    k(f'v_cndmask_b32 v{QF+4}, v{QF+4}, 0, s[96:97]')
    k(f'v_cndmask_b32 v{QF+5}, v{QF+5}, 0, s[96:97]')
    k('s_barrier')
    if OPT.get('prio', 0):
        k(f's_cmp_ge_u32 s{S_W}, 4')
        k.outline('s_cbranch_scc1', lambda: k('s_setprio 1'))
    stamp(k, 13)
    hc = []

    def hc0():
        for i in range(4):
            k(f'v_mov_b32 v{244+i}, -1')
        tile4(k, 60, 61, 56)
        k('s_mul_i32 s61, s61, 12')
        k('s_lshl_b32 s61, s61, 15')
        k('s_lshl_b32 s60, s60, 11')
        k('s_add_u32 s56, s61, s60')
        k(f's_add_u32 s56, s56, {WS_HC}')

    def hcn(n):
        def f():
            k(f's_mul_i32 s60, s{S_W}, 3')
            k(f's_add_u32 s60, s60, {n}')
            k('s_and_b32 s61, s60, 1')
            k('s_lshl_b32 s61, s61, 10')
            k('s_lshr_b32 s60, s60, 1')
            k('s_lshl_b32 s60, s60, 15')
            k('s_add_u32 s60, s60, s61')
            k('s_add_u32 s60, s60, s56')
            k(f'buffer_store_dwordx4 {v(244,4)}, v2, {WSR}, s60 offen sc1')
        return f
    T2 = {}

    def wg_():
        k(f's_cmp_lt_u32 s{S_W}, 4')
        k.outline('s_cbranch_scc1', lambda: pf_wgu(k, 238, 239))
    sside = [hc0, hcn(0), hcn(1), hcn(2)]
    if OPT.get('wgu', 2) == 2:
        sside.append(wg_)
    pf = [lambda: T2.__setitem__('f', flags_issue(k, WS_F2, 240, 237))]

    def slot(i):
        return SB0 + 16 * i
    krd = {}

    def kreads(j):
        b = j % 3
        krd[j] = [k(f'ds_read_b64 {v(KV+8*b,2)}, v16 offset:{j*256}'),
                  k(f'ds_read_b64 {v(KV+8*b+2,2)}, v16 offset:{4096+j*256}'),
                  k(f'ds_read_b64 {v(KV+8*b+4,2)}, v17 offset:{16384+j*256}')]
    kreads(0)
    kreads(1)
    for j in range(9):
        b = j % 3
        d = v(slot(j), 16)
        k.wait(*krd[j])
        k(f'v_mfma_f32_32x32x16_bf16 {d}, {v(KV+8*b,4)}, {v(QF,4)}, 0')
        if j + 2 < 9:
            kreads(j + 2)
        k(f'v_mfma_f32_32x32x16_bf16 {d}, {v(KV+8*b+4,4)}, {v(QF+4,4)}, {d}')
        if sside:
            sside.pop(0)()
    def lbar():
        k.raw('    s_waitcnt vmcnt(3)')
        k('s_barrier')
    k(f's_cmp_ge_u32 s{S_W}, 4')
    k.outline('s_cbranch_scc1', lbar)
    stamp(k, 14)
    lab = k.newlabel('P2_FIX')
    k(f's_cmp_lg_u32 s{S_I}, 0')
    k(f's_cbranch_scc1 {lab}')
    for jj in range(8):
        k(f's_cmp_ge_u32 s{S_W}, {8-jj}')
        k(f's_cbranch_scc1 {lab}')
        for i in range(16):
            k(f'v_mov_b32 v{slot(jj)+i}, {f32(-1e30)}')
    k.label(lab)
    for i in range(16):
        k(f'v_mov_b32 v{KV+i}, v19')
    M0, M1 = 20, 21
    ops = []
    regs = [slot(jj) + i for jj in (1, 2, 3, 4, 5, 6, 7, 0) for i in range(16)]
    for i in range(16):
        ops.append(f'v_cndmask_b32 v{slot(0)+i}, v{slot(0)+i}, v{slot(8)+i}, s[{64+2*i}:{65+2*i}]')
    ops += [f'v_max3_f32 v{M0}, v{regs[0]}, v{regs[1]}, v{regs[2]}',
            f'v_max3_f32 v{M1}, v{regs[3]}, v{regs[4]}, v{regs[5]}']
    i, t = 6, 0
    while i < 128:
        m = M0 if t % 2 == 0 else M1
        ops.append(f'v_max3_f32 v{m}, v{m}, v{regs[i]}, v{regs[i+1]}')
        i += 2
        t += 1
    ops += [f'v_max_f32 v{M0}, v{M0}, v{M1}',
            f'v_mov_b32 v{M1}, v{M0}',
            f'v_permlane32_swap_b32 v{M0}, v{M1}',
            f'v_max_f32 v{M0}, v{M0}, v{M1}',
            f'v_sub_f32 v{M0}, 0, v{M0}',
            f'v_cvt_pk_bf16_f32 v{M1}, v{M0}, v{M0}',
            f'v_lshlrev_b32 v{M1}, 16, v{M1}',
            f'v_sub_f32 v{M1}, v{M0}, v{M1}',
            f'v_cvt_pk_bf16_f32 v{NM}, v{M0}, v{M1}',
            f'v_cndmask_b32 v{NM}, v{NM}, 0, s[96:97]']
    spread(k, ops, pf[:2])
    pf = pf[2:]
    k(f's_cmp_lt_u32 s{S_W}, 4')
    k.outline('s_cbranch_scc1', lambda: k('s_barrier'))
    stamp(k, 15)
    vrd = {}
    nbuf = [0]

    def vreads(jkey):
        toks, bufs = [], []
        k('s_mov_b64 exec, s[98:99]')
        for m in range(2):
            bi = nbuf[0] % 4
            nbuf[0] += 1
            bufs.append(bi)
            toks.append(k(f'ds_read_b128 {v(KV+4*bi,4)}, v18 offset:{jkey*1280+m*640}'))
        k('s_mov_b64 exec, -1')
        vrd[jkey] = (toks, bufs)
    first = [True]
    oacc = v(OACC, 16)

    def pv_ops(jkey, preg):
        o = []
        for m in range(2):
            def f(m=m):
                toks, bufs = vrd[jkey]
                k.wait(toks[m])
                c = '0' if first[0] else oacc
                first[0] = False
                k(f'v_mfma_f32_32x32x16_bf16 {oacc}, {v(KV+4*bufs[m],4)}, {v(preg+4*m,4)}, {c}')
            o.append(f)
        return o

    def sub_op(jb):
        d = v(slot(jb), 16)
        return f'v_mfma_f32_32x32x16_bf16 {d}, {v(ONE,4)}, {v(NM,4)}, {d}'
    order = [1, 2, 3, 4, 5, 6, 7, 0]
    k(sub_op(order[0]))
    k(sub_op(order[1]))
    vreads(order[0])
    for n, jb in enumerate(order):
        base = slot(jb)
        val = [f'v_exp_f32 v{base+i}, v{base+i}' for i in range(16)]
        val += [f'v_cvt_pk_bf16_f32 v{base+p}, v{base+2*p}, v{base+2*p+1}' for p in range(8)]
        if jb == 0:
            val += [f'v_and_b32 v{base+8+p}, v{PM+p}, v{base+p}' for p in range(8)]
            val += [f'v_bfi_b32 v{base+p}, v{PM+p}, 0, v{base+p}' for p in range(8)]
        side = []
        if n >= 1:
            side += pv_ops(order[n - 1], slot(order[n - 1]))
        nxt = order[n + 1] if n + 1 < 8 else 8
        side.append(lambda nxt=nxt: vreads(nxt))
        if n + 2 < 8:
            side.append(sub_op(order[n + 2]))
        if pf:
            side.append(pf.pop(0))
        if hc and (n % 2 == 1 or OPT.get('wgulate')):
            side.insert(1, hc.pop(0))
        if OPT.get('wgulate') and pf:
            side.append(pf.pop(0))
        spread(k, val, side)
    tail = pv_ops(0, slot(0)) + pv_ops(8, slot(0) + 8)
    addr = [f's_lshr_b32 s49, s{S_H}, 1', 's_mul_i32 s49, s49, 5', f's_mul_i32 s52, s{S_PI}, 3',
            's_add_u32 s52, s52, s49', 's_lshl_b32 s52, s52, 15', f's_add_u32 s52, s52, {WS_OC}',
            f's_lshl_b32 s53, s{S_Q0}, 4', 's_add_u32 s52, s52, s53', 's_add_u32 s54, s49, 2',
            's_lshl_b32 s54, s54, 15', f's_add_u32 s54, s54, {WS_OC}', 's_add_u32 s54, s54, s53',
            f's_lshl_b32 s49, s{S_PI}, 3', 's_add_u32 s54, s54, s49', 'v_lshlrev_b32 v22, 4, v12',
            'v_lshl_add_u32 v23, v13, 15, v22']
    ftok = T2['f']
    spread(k, addr, tail)
    stamp(k, 18)
    T = OACC
    k(f'v_cndmask_b32 v{T+13}, v{T+12}, v{T+8}, s[96:97]')
    k(f'v_rcp_f32 v{T+14}, v{T+13}')
    for p in range(6):
        k(f'v_pk_mul_f32 {v(T+2*p,2)}, {v(T+2*p,2)}, {v(T+14,2)} op_sel_hi:[1,0]')
    for p in range(6):
        k(f'v_cvt_pk_bf16_f32 v{104+p}, v{T+2*p}, v{T+2*p+1}')
    k(f'buffer_store_dwordx4 {v(104,4)}, v23, {WSR}, s52 offen sc1')
    k('s_mov_b64 exec, s[100:101]')
    own = k(f'buffer_store_dwordx2 {v(108,2)}, v22, {WSR}, s54 offen sc1')
    k('s_mov_b64 exec, -1')
    k.wait_all(vm=False)
    k('s_setprio 0')
    flags_check(k, WS_F2, 240, 237, ftok)
    return own


class P4:
    BS = [102400, 126976, 0, 24576, 49152, 73728]

    def __init__(self, k):
        self.k = k
        self.stok = {}
        self.rtok = {}
        self.VB = 2

    def setup_dma(self, t0):
        k = self.k
        VB = self.VB
        tile4(k, 61, 60, 68)
        k('s_mul_i32 s76, s60, %d' % OPT.get('rot4', 3))
        k('s_add_u32 s76, s76, s61')
        k('s_mul_i32 s77, s76, 6554')
        k('s_lshr_b32 s77, s77, 16')
        k('s_mul_i32 s77, s77, 10')
        k('s_sub_u32 s76, s76, s77')
        k(f's_cmp_lt_u32 s{S_W4}, 2')
        k(f's_cselect_b32 s64, s{S_WG}, s{S_WU}')
        k(f's_cselect_b32 s65, s{S_WG+1}, s{S_WU+1}')
        k('s_mov_b32 s66, 1966080')
        k('s_mov_b32 s67, 0x00020000')
        k(f's_and_b32 s61, s{S_W4}, 1')
        k(f's_mul_i32 s61, s61, {32*3072}')
        k('s_mul_i32 s60, s60, 192')
        k('s_add_u32 s60, s60, s61')
        for n in range(3):
            k(f'v_add_u32 v{t0}, {n*64}, v1')
            k(f'v_mul_u32_u24 v{t0+1}, 5462, v{t0}')
            k(f'v_lshrrev_b32 v{t0+1}, 16, v{t0+1}')
            k(f'v_mul_u32_u24 v{t0+2}, 12, v{t0+1}')
            k(f'v_sub_u32 v{t0+2}, v{t0}, v{t0+2}')
            k(f'v_mul_u32_u24 v{t0+1}, 3072, v{t0+1}')
            k(f'v_lshl_add_u32 v{VB+n}, v{t0+2}, 4, v{t0+1}')
            k(f'v_add_u32 v{VB+n}, s60, v{VB+n}')
            if n:
                k(f'v_subrev_u32 v{VB+n}, {n*1024}, v{VB+n}')
        k(f's_mul_i32 s68, s{S_W4}, 6144')

    def sig(self, c, st, sreg, stmp):
        c(f's_add_u32 s{sreg}, s76, {st}')
        c(f's_sub_u32 s{stmp}, s{sreg}, 10')
        c(f's_cmp_ge_u32 s{sreg}, 10')
        c(f's_cselect_b32 s{sreg}, s{stmp}, s{sreg}')

    def dma_stage(self, st):
        k = self.k
        base = self.BS[st % 6]
        self.sig(k, st, 69, 77)
        k(f's_mul_i32 s69, s69, {64*3072}')
        for per in range(2):
            k(f's_add_u32 m0, s68, {base+per*3072}')
            if per:
                k(f's_add_u32 s69, s69, {16*3072}')
            for n in range(3):
                self.stok[st] = k(f'buffer_load_dwordx4 v{self.VB+n}, s[64:67], s69 offen offset:{n*1024}' + {0: '', 1: ' sc1'}[OPT.get('p4sc', 0)] + ' lds')

    BR = 124

    def breg_load(self, st):
        k = self.k
        r0 = self.BR + 24 * (st - 6)
        self.sig(k, st, 69, 77)
        k(f's_mul_i32 s69, s69, {64*3072}')
        for per in range(2):
            if per:
                k(f's_add_u32 s69, s69, {16*3072}')
            for n in range(3):
                self.rtok[st] = k(f'buffer_load_dwordx4 {v(r0+12*per+4*n,4)}, v{self.VB+n}, s[64:67], s69 offen offset:{n*1024}')

    def breg_write(self, st):
        k = self.k
        r0 = self.BR + 24 * (st - 6)
        base = self.BS[st % 6]
        reg, off = (47, base - 102400) if base >= 102400 else (46, base)
        assert off + 6144 < 65536
        k.wait(self.rtok[st])
        for i in range(6):
            self.stok[st] = k(f'ds_write_b128 v{reg}, {v(r0+4*i,4)} offset:{off+i*1024}')

    def pre_colsum(self):
        k = self.k
        CA = 60
        k('v_lshlrev_b32 v46, 4, v1')
        k('v_add_u32 v46, s68, v46')
        k('v_add_u32 v47, 102400, v46')
        k.wait(self.stok[0])
        tk = [k(f'ds_read_b128 {v(84+4*i,4)}, v47 offset:{i*1024}') for i in range(6)]
        for n in range(3):
            k.wait(tk[n], tk[n + 3])
            for p in range(4):
                k(f'v_lshlrev_b32 v{CA+8*n+2*p}, 16, v{84+4*n+p}')
                k(f'v_and_b32 v{CA+8*n+2*p+1}, 0xffff0000, v{84+4*n+p}')
                k(f'v_lshlrev_b32 v{28+2*(p%2)}, 16, v{96+4*n+p}')
                k(f'v_and_b32 v{29+2*(p%2)}, 0xffff0000, v{96+4*n+p}')
                k(f'v_pk_add_f32 {v(CA+8*n+2*p,2)}, {v(CA+8*n+2*p,2)}, {v(28+2*(p%2),2)}')

    def pre_colsum_write(self):
        k = self.k
        CA = 60
        k('v_lshlrev_b32 v16, 5, v1')
        k('v_add_u32 v16, s68, v16')
        k('v_add_u32 v16, 73728, v16')
        for n in range(3):
            k(f'ds_write_b128 v16, {v(CA+8*n,4)} offset:{n*2048}')
            k(f'ds_write_b128 v16, {v(CA+8*n+4,4)} offset:{n*2048+16}')
        k.wait_all(vm=False)

    def loader_setup(self, g5):
        k = self.k
        tile4(k, 44, 45, 46)
        g5.dma_setup(40)
        k('v_cmp_le_u32 vcc, 96, v0')
        k(f'v_mov_b32 v16, {12288-384}')
        k('v_cndmask_b32 v17, 0, v16, vcc')
        k('v_lshl_add_u32 v17, v0, 2, v17')
        k('v_add_u32 v17, 73728, v17')
        k(f'v_mov_b32 v16, {6144-384}')
        k('v_cndmask_b32 v18, 0, v16, vcc')
        k('v_lshl_add_u32 v18, v0, 2, v18')
        k('v_cmp_gt_u32 vcc, 192, v0')
        k('v_cndmask_b32 v19, 0, v18, vcc')
        k(f'v_mov_b32 v16, {OOB}')
        k('v_cndmask_b32 v18, v16, v18, vcc')
        k('s_mul_i32 s51, s45, 384')
        k(f's_add_u32 s51, s51, {WS_PCS}')
        k('s_mul_i32 s52, s44, 12288')
        k('s_add_u32 s52, s52, s51')
        k(f's_mov_b32 s47, {OOB}')
        k('s_cmp_lt_u32 s44, 10')
        k('s_cselect_b32 s52, s52, s47')

    def colsum_reduce(self):
        k = self.k
        rr = list(range(84, 116))
        for half in range(4):
            tk = []
            for r in range(8):
                x = (half % 2) * 8 + r
                tk.append(k(f'ds_read_b32 v{rr[8*half+r]}, v17 offset:{x*384+(half//2)*6144}'))
            k.wait(*tk)
        for stp in (16, 8, 4, 2, 1):
            for i in range(stp):
                k(f'v_add_f32 v{rr[i]}, v{rr[i]}, v{rr[i+stp]}')
        k(f'buffer_store_dword v{rr[0]}, v18, {WSR}, s52 offen sc1')

    def loader(self, g5):
        k = self.k

        def gather(c):
            t = None
            for r in range(10):
                c(f's_add_u32 s58, s51, {r*12288}')
                t = c(f'buffer_load_dword v{24+r}, v19, {WSR}, s58 offen sc1')
            return t
        T = {}
        g5regs = {2 + i: 60 + 20 * i for i in range(9)}
        k('v_lshlrev_b32 v12, 4, v1')
        k(f's_mul_i32 s46, s{S_W4}, 5120')
        k('v_add_u32 v21, s46, v12')
        k('v_add_u32 v22, 61440, v21')
        k('v_add_u32 v23, 122880, v21')
        for st in range(7):
            k.wait(self.stok[st])
            if st == 6:
                k.wait(self.stok[9])
            k.wait_all(vm=False)
            k('s_barrier')
            if st == 0:
                stamp(k, 32)
                self.colsum_reduce()
            if st == 1:
                self.dma_stage(5)
            if 1 <= st <= 4:
                self.dma_stage(st + 5)
            if st == 4:
                T['g'] = gather(k)
                pf_wd(k, 36, 37)
            if st == 5:
                k.wait(T['g'])
                check_group(k, range(24, 34), 11, gather, slp=8)
                for r in range(1, 10):
                    k(f'v_add_f32 v24, v24, v{24+r}')
                k('v_lshlrev_b32 v16, 2, v0')
                k(f'v_add_u32 v16, {XCH}, v16')
                k('ds_write_b32 v16, v24')
        stamp(k, 36)
        runall(k, g5.dma_step(0))
        runall(k, g5.dma_step(1))
        NR1 = OPT.get('nr1', 6)
        for s5 in range(2, 2 + NR1):
            g5.breg_load(s5, g5regs[s5])
        stamp(k, 38)
        cnt_wait(k, 38, 39, 1, 4, bound=200000)
        for s5 in range(2, 7):
            g5.breg_write(s5, 21)
        for s5 in range(2 + NR1, 11):
            g5.breg_load(s5, g5regs[s5])
        stamp(k, 39)

    def compute(self, own_tok):
        k = self.k
        tile4(k, 44, 45, 46)
        S_MT, S_FT, S_TOK = 44, 45, 46
        k('s_lshl_b32 s46, s44, 7')
        k(f's_lshl_b32 s47, s{S_W4}, 5')
        k('s_add_u32 s46, s46, s47')
        k('v_and_b32 v13, 31, v1')
        k('v_lshrrev_b32 v14, 5, v1')
        k('v_lshlrev_b32 v5, 4, v13')
        k('v_lshl_add_u32 v5, v14, 15, v5')
        k('v_bfe_u32 v15, v1, 2, 2')
        k('v_lshl_add_u32 v15, v14, 3, v15')
        k('v_mul_u32_u24 v15, 192, v15')
        k('v_bfe_u32 v16, v1, 4, 1')
        k('v_lshl_add_u32 v15, v16, 5, v15')
        k('v_and_b32 v16, 1, v1')
        k('v_lshl_add_u32 v15, v16, 4, v15')
        k('v_bfe_u32 v16, v1, 1, 1')
        k('v_lshl_add_u32 v6, v16, 3, v15')
        k('v_add_u32 v7, 49152, v6')
        k('v_add_u32 v8, 102400, v6')
        rbase = {0: (6, 0), 24576: (6, 24576), 49152: (7, 0), 73728: (7, 24576), 102400: (8, 0), 126976: (8, 24576)}
        k('s_mul_i32 s76, s45, %d' % OPT.get('rot4', 3))
        k('s_add_u32 s76, s76, s44')
        k('s_mul_i32 s77, s76, 6554')
        k('s_lshr_b32 s77, s77, 16')
        k('s_mul_i32 s77, s77, 10')
        k('s_sub_u32 s76, s76, s77')
        k('s_lshl_b32 s50, s46, 4')
        k(f's_add_u32 s50, s50, {WS_H1}')
        AFR = 180
        atok = {}

        def abase(c, st, sreg, stmp):
            self.sig(c, st, sreg, stmp)
            c(f's_lshl_b32 s{sreg}, s{sreg}, 18')
            c(f's_add_u32 s{sreg}, s{sreg}, s50')

        def aone(c, st, ks, sreg):
            if ks:
                c(f's_add_u32 s{sreg}, s{sreg}, 65536')
            return c(f'buffer_load_dwordx4 {v(AFR+16*(st%4)+4*ks,4)}, v5, {WSR}, s{sreg} offen sc1')

        def astage(c, st, sreg, stmp):
            abase(c, st, sreg, stmp)
            t = None
            for ks in range(4):
                t = aone(c, st, ks, sreg)
            return t
        k('v_lshlrev_b32 v9, 3, v13')
        k('v_lshl_add_u32 v9, v14, 16, v9')
        k(f's_lshl_b32 s51, s{S_TOK}, 3')
        k(f's_add_u32 s51, s51, {WS_HS}')
        HSR = 20

        def hsload(c):
            t = None
            for n in range(4):
                c(f's_add_u32 s58, s51, {n*16384}')
                t = c(f'buffer_load_dwordx2 {v(HSR+2*n,2)}, v9, {WSR}, s58 offen sc1')
            return t
        k('v_lshlrev_b32 v10, 5, v14')
        k(f'v_add_u32 v10, {XCH}, v10')
        ACC, WF = 36, 132

        def csload(p, base):
            t = None
            for mtx in range(2):
                for q in range(4):
                    off = mtx * 384 + p * 128 + (q // 2) * 64 + (q % 2) * 16
                    t = k(f'ds_read_b128 {v(base+16*mtx+4*q,4)}, v10 offset:{off}')
            return t
        rt = {}

        def reads(kk):
            st, ks = kk // 4, kk % 4
            reg, so = rbase[self.BS[st % 6]]
            b = kk % 2
            ops = [[] for _ in range(6)]
            for j in range(6):
                for hf in range(2):
                    off = so + (j // 3) * 12288 + ks * 3072 + hf * 768 + (j % 3) * 64
                    ops[j].append(lambda j=j, hf=hf, off=off: rt.__setitem__((kk, j), k(
                        f'ds_read_b64_tr_b16 {v(WF+24*b+4*j+2*hf,2)}, v{reg} offset:{off}')))
            return ops
        T = {}

        def stats():
            k.wait(T['hs'])
            check_group(k, range(HSR, HSR + 8), 11, hsload)
            for n in range(1, 4):
                k(f'v_pk_add_f32 {v(HSR,2)}, {v(HSR,2)}, {v(HSR+2*n,2)}')
            VSUM, VSQ = HSR, HSR + 1
            xsum(k, VSUM, 24, 25)
            xsum(k, VSQ, 24, 25)
            k(f'v_mul_f32 v{VSUM}, {f32(1.0/640)}, v{VSUM}')
            k(f'v_mul_f32 v{VSQ}, {f32(1.0/640)}, v{VSQ}')
            k(f'v_fma_f32 v{VSQ}, -v{VSUM}, v{VSUM}, v{VSQ}')
            k(f'v_max_f32 v{VSQ}, 0, v{VSQ}')
            rbf(k, 24, VSUM)
            k('v_sub_f32 v26, 0, v24')
            rbf(k, 25, VSQ)
            k(f'v_add_f32 v25, {f32(1e-5)}, v25')
            rbf(k, 25, 25)
            k('v_sqrt_f32 v25, v25')
            rbf(k, 25, 25)
            k('v_rcp_f32 v28, v25')
            k('v_mul_f32 v30, v25, v25')
        stamp(k, 30)
        k.wait(own_tok)
        if OPT.get('hdelay', 0):
            k(f's_sleep {OPT.get("hdelay")}')
        if OPT.get('probe', 0) & 2:
            k('v_and_b32 v2, 7, v1')
            k('v_lshlrev_b32 v2, 14, v2')
            k('v_bfe_u32 v3, v1, 3, 1')
            k('v_lshl_add_u32 v2, v3, 7, v2')
            probe(k, 51, 2, 3)
        stamp(k, 31)
        D4 = OPT.get('ad4', 1)
        for st in range(D4):
            atok[st] = astage(k, st, 49, 48)
        k('s_barrier')
        for l_ in reads(0):
            runall(k, l_)
        for kk in range(40):
            b = kk % 2
            st, ks = kk // 4, kk % 4
            R0 = AFR + 16 * (st % 4)
            if kk % 8 == 4:
                stamp(k, 33 + kk // 8)
            if ks == 0:
                k.wait(atok[st])
                hi = min(st + 3, 10) if OPT.get('rall', 1) else st + 1
                if st == 0:
                    hi = D4
                check_group(k, range(R0, R0 + 16), 4, lambda c, st=st, hi=hi: [astage(c, s_, 58, 59) for s_ in range(st, hi)],
                            pre=(st >= 1))
                if kk == 0:
                    stamp(k, 32)
                    for s_ in range(D4, 3):
                        atok[s_] = astage(k, s_, 49, 48)
            fill, rds = [], []
            if st + 3 < 10:
                def al(st=st, ks=ks):
                    if ks == 0:
                        abase(k, st + 3, 49, 48)
                    atok[st + 3] = aone(k, st + 3, ks, 49)
                fill.append(al)
            if kk + 1 < 40:
                if (kk + 1) % 4 == 0 and kk < 24:
                    k.wait_all(vm=False)
                    k('s_barrier')
                rds = reads(kk + 1)
            else:
                k.wait_all(vm=False)
                k('v_mov_b32 v2, 1')
                k(f'v_mov_b32 v3, {XCNT+4}')
                k('s_mov_b64 exec, 1')
                k('ds_add_u32 v3, v2')
                k('s_mov_b64 exec, -1')
            if ks == 3 and st + 1 < 10:
                R1 = AFR + 16 * ((st + 1) % 4)
                fill.append(lambda st=st: k.wait(atok[st + 1]))
                fill += maxchain_ops(range(R1, R1 + 16), 4)
            if kk == 28:
                fill.append(lambda: T.__setitem__('hs', hsload(k)))
            if kk == 39:
                fill.append(lambda: T.__setitem__('f3', flags_issue(k, WS_F3, 16, 12)))
            if kk == 39:
                fill.append(lambda: T.__setitem__(('cs', 0), csload(0, 212)))
            if kk == 37:
                fill.append(stats)
            mf = []
            for j in range(6):
                acc = v(ACC + 16 * j, 16)
                c = '0' if kk == 0 else acc
                mf.append((lambda j=j: [rt[kk, j]],
                           f'v_mfma_f32_32x32x16_bf16 {acc}, {v(WF+24*b+4*j,4)}, {v(R0+4*ks,4)}, {c}'))
            roll_step(k, mf, rds, fill)
        stamp(k, 38)
        T['cs', 1] = csload(1, 132)
        c0 = -2.0 * math.sqrt(2.0 / math.pi) * math.log2(math.e)
        c1 = c0 * 0.044715
        k(f'v_mul_f32 v32, {f32(c0)}, v28')
        k('v_mul_f32 v34, v28, v28')
        k('v_mul_f32 v34, v34, v28')
        k(f'v_mul_f32 v34, {f32(c1)}, v34')
        k(f's_mul_i32 s54, s{S_FT}, {12*32768}')
        k(f's_lshl_b32 s55, s{S_TOK}, 4')
        k('s_add_u32 s54, s54, s55')
        k(f's_add_u32 s54, s54, {WS_HC}')
        T_, O = 164, 180
        csb = {0: 212, 1: 132, 2: 212}
        for p in range(3):
            G, U, CS = ACC + 16 * p, ACC + 16 * (3 + p), csb[p]
            k.wait(T['cs', p])
            for q in range(8):
                g2, u2 = v(G + 2 * q, 2), v(U + 2 * q, 2)
                k(f'v_pk_fma_f32 {g2}, {v(CS+2*q,2)}, {v(26,2)}, {g2} op_sel_hi:[1,0,1]')
                k(f'v_pk_fma_f32 {u2}, {v(CS+16+2*q,2)}, {v(26,2)}, {u2} op_sel_hi:[1,0,1]')
            if p == 0:
                T['cs', 2] = csload(2, 212)
            for q in range(8):
                g2, u2, t2 = v(G + 2 * q, 2), v(U + 2 * q, 2), v(T_ + 2 * q, 2)
                k(f'v_pk_mul_f32 {u2}, {u2}, {g2}')
                k(f'v_pk_mul_f32 {t2}, {g2}, {g2}')
                k(f'v_pk_fma_f32 {t2}, {t2}, {v(34,2)}, {v(32,2)} op_sel_hi:[1,0,0]')
                k(f'v_pk_mul_f32 {t2}, {t2}, {g2}')
            for i in range(16):
                k(f'v_exp_f32 v{T_+i}, v{T_+i}')
            for q in range(8):
                t2 = v(T_ + 2 * q, 2)
                k(f'v_pk_fma_f32 {t2}, {t2}, {v(30,2)}, {v(30,2)} op_sel_hi:[1,0,0]')
            for i in range(16):
                k(f'v_rcp_f32 v{T_+i}, v{T_+i}')
            for q in range(8):
                k(f'v_pk_mul_f32 {v(U+2*q,2)}, {v(U+2*q,2)}, {v(T_+2*q,2)}')
            for q in range(8):
                k(f'v_cvt_pk_bf16_f32 v{O+8*(p%2)+q}, v{U+2*q}, v{U+2*q+1}')
            for hf2 in range(2):
                k(f's_add_u32 s55, s54, {(4*p+2*hf2)*32768}')
                self.own = k(f'buffer_store_dwordx4 {v(O+8*(p%2)+4*hf2,4)}, v5, {WSR}, s55 offen sc1')
        flags_check(k, WS_F3, 16, 12, T['f3'])
        stamp(k, 39)


def colsum_strip(k):
    lab = k.newlabel('CS_SKIP')
    k(f's_cmp_lg_u32 s{S_W4}, 0')
    k(f's_cbranch_scc1 {lab}')
    k(f's_cmp_ge_u32 s{S_I32}, 12')
    k(f's_cbranch_scc1 {lab}')
    sn = k.snap()
    k(f's_and_b32 s60, s{S_X8}, 1')
    k('s_cmp_eq_u32 s60, 0')
    k(f's_cselect_b32 s72, s{S_WG}, s{S_WU}')
    k(f's_cselect_b32 s73, s{S_WG+1}, s{S_WU+1}')
    k('s_mov_b32 s74, 1966080')
    k('s_mov_b32 s75, 0x00020000')
    k(f's_lshr_b32 s60, s{S_X8}, 1')
    k('s_mul_i32 s60, s60, 768')
    k(f's_lshl_b32 s61, s{S_I32}, 6')
    k('s_add_u32 s60, s60, s61')
    k('v_lshrrev_b32 v40, 2, v1')
    k('v_mul_u32_u24 v40, 3072, v40')
    k('v_and_b32 v41, 3, v1')
    k('v_lshl_add_u32 v40, v41, 4, v40')
    k('v_add_u32 v40, s60, v40')
    tk = []
    for n in range(40):
        k(f's_mov_b32 s61, {n*16*3072}')
        tk.append(k(f'buffer_load_dwordx4 {v(60+4*n,4)}, v40, s[72:75], s61 offen'))
    for i in range(8):
        k(f'v_mov_b32 v{44+i}, 0')
    for n in range(40):
        k.wait(tk[n])
        for p in range(4):
            k(f'v_lshlrev_b32 v{52+2*(p%2)}, 16, v{60+4*n+p}')
            k(f'v_and_b32 v{53+2*(p%2)}, 0xffff0000, v{60+4*n+p}')
            k(f'v_pk_add_f32 {v(44+2*p,2)}, {v(44+2*p,2)}, {v(52+2*(p%2),2)}')
    for i in range(8):
        xsum(k, 44 + i, 56, 57, 32)
        xsum(k, 44 + i, 56, 57, 16)
        k(f'v_add_f32_dpp v{44+i}, v{44+i}, v{44+i} row_ror:8 row_mask:0xf bank_mask:0xf')
        k(f'v_add_f32_dpp v{44+i}, v{44+i}, v{44+i} row_ror:4 row_mask:0xf bank_mask:0xf')
    strip_id(k, 60)
    k('s_lshl_b32 s60, s60, 2')
    k(f's_add_u32 s60, s60, {WS_CS}')
    k('v_lshlrev_b32 v41, 5, v41')
    k('s_mov_b64 exec, 0xf')
    k(f'buffer_store_dwordx4 {v(44,4)}, v41, {WSR}, s60 offen sc1')
    k(f'buffer_store_dwordx4 {v(48,4)}, v41, {WSR}, s60 offen offset:16 sc1')
    k('s_mov_b64 exec, -1')
    k.wait_all()
    k.restore(sn)
    k.label(lab)


def build():
    k = K()
    name = NAME + '_kernel'
    k.realend = 'K_END'
    k.raw('.p2align 8')
    k.raw(f'.globl {name}')
    k.raw(f'.type {name},@function')
    k.raw(f'{name}:')
    prologue(k)
    if STAMPS:
        k('v_writelane_b32 v255, s84, 60')
        k('v_writelane_b32 v255, s36, 58')
        k('v_writelane_b32 v255, s37, 59')
    if OPT.get('empty'):
        k('s_branch K_END')
    stamp(k, 0)
    g3 = G35(k, 3, [0, 20480, 40960, 61440, 81920], 232, 0)
    g5 = G35(k, 5, [49152, 69632, 90112, 110592, 131072, 0, 20480], 54, 70)
    p4 = P4(k)
    A3 = [102400, 118784, 135168]
    A5 = [61440, 77824, 143360]
    lab_l1, lab_p2, lab_l3, lab_fin = (k.newlabel(x) for x in ('L1', 'P2', 'L3', 'FIN'))
    k(f's_cmp_ge_u32 s{S_W}, 4')
    k(f's_cbranch_scc1 {lab_l1}')
    sn = k.snap()
    p1_compute(k)
    join(k)
    if OPT.get('woL', 4) < 5:
        g3.dma_setup(24)
    p2_setup(k)
    k(f's_branch {lab_p2}')
    k.label(lab_l1)
    k.restore(sn)
    p1_loader(k, g3)
    k.label(lab_p2)
    join(k)
    for st in range(5):
        g3.btok[st] = ('vm', 0)
    own = emit_p2(k, g3)
    k(f's_cmp_ge_u32 s{S_W}, 4')
    k(f's_cbranch_scc1 {lab_l3}')
    sn = k.snap()
    g3.compute(own, st0=20)
    p4.compute(g3.own)
    if not OPT.get('nop5'):
        g5.compute(p4.own, st0=40)
    k(f's_branch {lab_fin}')
    k.label(lab_l3)
    k.restore(sn)
    k('s_barrier')
    if OPT.get('cpf2', 0):
        k.raw('    s_getpc_b64 s[88:89]')
        k.raw('CODE_PC2:')
        k.raw(f'    s_sub_u32 s88, s88, CODE_PC2-{NAME}_kernel')
        k.raw('    s_subb_u32 s89, s89, 0')
        k.raw('    s_and_b32 s89, s89, 0xffff')
        k.raw(f'    s_mov_b32 s90, CODE_END-{NAME}_kernel')
        k.raw('    s_mov_b32 s91, 0x00020000')
        k(f's_lshl_b32 s92, s{S_I32}, 12')
        k('v_lshlrev_b32 v250, 7, v0')
        k('v_cmp_gt_u32 vcc, 32, v0')
        k(f'v_mov_b32 v251, {OOB}')
        k('v_cndmask_b32 v250, v251, v250, vcc')
        k('buffer_load_dword v251, v250, s[88:91], s92 offen')
    if OPT.get('wguL', 0):
        pf_wgu(k, 36, 37)
    p4.setup_dma(56)
    p4.dma_stage(0)
    p4.dma_stage(1)
    p4.loader_setup(g5)
    p4.pre_colsum()
    stamp(k, 23)
    k('s_barrier')
    k('s_barrier')
    stamp(k, 24)
    p4.dma_stage(2)
    p4.dma_stage(3)
    p4.dma_stage(4)
    p4.pre_colsum_write()
    stamp(k, 30)
    p4.loader(g5)
    if not OPT.get('nop5'):
        g5.loader(7, st0=40)
        k('s_barrier')
    k.label(lab_fin)
    join(k)
    stamp(k, 50)
    if STAMPS:
        k.wait_all()
        stamp(k, 51)
    stamp_flush(k)
    k.label(k.realend)
    k('s_endpgm')
    c = K()
    for f in k.cold:
        f(c)
    desc = f'''.section .rodata,"a"
.p2align 6
.amdhsa_kernel {name}
  .amdhsa_next_free_vgpr 256
  .amdhsa_next_free_sgpr 102
  .amdhsa_accum_offset 256
  .amdhsa_group_segment_fixed_size 0
  .amdhsa_kernarg_size 80
  .amdhsa_user_sgpr_count 2
  .amdhsa_user_sgpr_kernarg_segment_ptr 1
  .amdhsa_system_sgpr_workgroup_id_x 1
.end_amdhsa_kernel
'''
    return k.render() + c.render() + 'CODE_END:\n' + desc


def main():
    global STAMPS
    STAMPS = 'stamps' in sys.argv
    for a_ in sys.argv[2:]:
        if '=' in a_:
            kk, vv = a_.split('=')
            OPT[kk] = int(vv)
    head = open('cdna_kernels/%s.s.ref' % NAME).read().split('\n')
    hdr = [l for l in head if l.startswith(';') and '@launch' not in l and 'Override launch' not in l and 'grid=ceil' not in l]
    out = '\n'.join(hdr) + '\n'
    out += '; @launch grid=(256,1,1) block=(512,1,1) lds=163840\n'
    out += '.amdgcn_target "amdgcn-amd-amdhsa--gfx950"\n.text\n'
    out += build()
    path = sys.argv[1] if len(sys.argv) > 1 else 'cdna_kernels/%s.s' % NAME
    open(path, 'w').write(out)
    print('wrote', path, len(out), 'bytes')


if __name__ == '__main__':
    main()
```
